```python
import torch

def _softmax(x, axis=-1):
    return torch.softmax(x, dim=axis)
def _gelu(x):
    return torch.nn.functional.gelu(x, approximate="tanh")
def _silu(x):
    return torch.nn.functional.silu(x)
def _sigmoid(x):
    return torch.sigmoid(x)
def _layernorm(x, axis=-1, eps=1e-5):
    m = x.mean(dim=axis, keepdim=True)
    v = x.var(dim=axis, keepdim=True, unbiased=False)
    return (x - m) / torch.sqrt(v + eps)
def _scatter_add(tgt, idx, src, axis=0):
    return tgt.clone().index_add_(axis, idx, src)
def _segment_sum(src, seg, n):
    out = torch.zeros((n,) + src.shape[1:], dtype=src.dtype)
    return out.index_add_(0, seg, src)
def _pad(x, pw):
    flat = tuple(v for pair in reversed(pw) for v in pair)
    return torch.nn.functional.pad(x, flat)

kernel_name = 'sequential_preLN__ssm_conv_h3__moe_arch_mod__prompt'

def setup_inputs():

    _w = (lambda a: (lambda t: t.to(torch.bfloat16) if t.is_floating_point() else t)(torch.as_tensor(a)))
    def _A_setup():
        B, S, D = 1, 2048, 1024
        ks = 4
        return {
            "q": _w((lambda *s: torch.randn(*s, dtype=torch.bfloat16) * 0.05)(B, S, D)),
            "k": _w((lambda *s: torch.randn(*s, dtype=torch.bfloat16) * 0.4)(B, S, D)),
            "v": _w((lambda *s: torch.randn(*s, dtype=torch.bfloat16) * 0.4)(B, S, D)),
            "shift_k": _w((lambda *s: torch.randn(*s, dtype=torch.bfloat16) * 0.4)(D, ks) * 0.5),
            "ssm_k": _w((lambda *s: torch.randn(*s, dtype=torch.bfloat16) * 0.4)(D, S) * (1.0 / S ** 0.5)),
            "ssm_D": _w((lambda *s: torch.randn(*s, dtype=torch.bfloat16) * 0.4)(D)),
        }
    _A_in = _A_setup()

    def _B_setup():
        B, S, D, F, C = 1, 2048, 1024, 3584, 1
        return {
            "x": _w((lambda *s: torch.randn(*s, dtype=torch.bfloat16) * 0.05)(B, S, D)),
            "w_r": _w((lambda *s: torch.randn(*s, dtype=torch.bfloat16) * 0.05)(D)),
            "w_gate": _w((lambda *s: torch.randn(*s, dtype=torch.bfloat16) * 0.05)(D, F)),
            "w_up": _w((lambda *s: torch.randn(*s, dtype=torch.bfloat16) * 0.05)(D, F)),
            "w_down": _w((lambda *s: torch.randn(*s, dtype=torch.bfloat16) * 0.05)(F, D)),
        }
    _B_in = _B_setup()

    return {
        "A_q": _A_in["q"],
        "A_k": _A_in["k"],
        "A_v": _A_in["v"],
        "A_shift_k": _A_in["shift_k"],
        "A_ssm_k": _A_in["ssm_k"],
        "A_ssm_D": _A_in["ssm_D"],
        "B_x": _B_in["x"],
        "B_w_r": _B_in["w_r"],
        "B_w_gate": _B_in["w_gate"],
        "B_w_up": _B_in["w_up"],
        "B_w_down": _B_in["w_down"],
    }

def reference(A_q, A_k, A_v, A_shift_k, A_ssm_k, A_ssm_D, B_x, B_w_r, B_w_gate, B_w_up, B_w_down):
    def _A_ref(q, k, v, shift_k, ssm_k, ssm_D):
        B, S, D = q.shape
        ks = shift_k.shape[-1]
        k_pad = _pad(k, ((0, 0), (ks - 1, 0), (0, 0)))
        k_shift = torch.zeros_like(k)
        for t in range(ks):
            k_shift = k_shift + k_pad[:, t:t + S, :] * shift_k[:, ks - 1 - t][None, None, :]
        kv = k_shift * v
        L = 2 * S
        kv_pad = _pad(kv, ((0, 0), (0, S), (0, 0)))
        kf_pad = _pad(ssm_k, ((0, 0), (0, S)))
        kv_f = (lambda x, axes=(-2,-1): torch.fft.rfft2(x.float(), dim=axes))(kv_pad[:, None, :, :], axes=(1, 2))
        kf_f = (lambda x, axes=(-2,-1): torch.fft.rfft2(x.float(), dim=axes))(kf_pad[:, None, :], axes=(1, 2))
        kf_f = (lambda x, *d: x.permute(*d))(kf_f, 1, 2, 0)
        y_f = kv_f * kf_f[None, :, :, :]
        y = (lambda x, s, axes=(-2,-1): torch.fft.irfft2(x, s=s, dim=axes).to(torch.bfloat16))(y_f, (1, L), axes=(1, 2))[:, 0, :S, :]
        y = y + kv * ssm_D[None, None, :]
        return q * y

    def _B_ref(x, w_r, w_gate, w_up, w_down):
        B, S, D = x.shape
        C = 1
        r = x @ w_r
        idx = torch.argsort(-r, axis=-1)[:, :C]
        idx_e = (lambda x, n, axis: torch.repeat_interleave(x, n, dim=axis))(idx.reshape(B, C, 1), D, axis=2)
        x_sel = (lambda x, i, axis: torch.take_along_dim(x, i, dim=axis))(x, idx_e, axis=1)
        g = _silu(x_sel @ w_gate)
        u = x_sel @ w_up
        y = (g * u) @ w_down
        r_sel = _sigmoid((lambda x, i, axis: torch.take_along_dim(x, i, dim=axis))(r, idx, axis=1))
        y = y * r_sel.reshape(B, C, 1)
        b_off = (torch.arange(B) * S).reshape(B, 1)
        flat_idx = (idx + b_off).reshape(B * C)
        zero = (x * 0.0).reshape(B * S, D)
        upd = _scatter_add(zero, flat_idx, y.reshape(B * C, D), axis=0)
        return x + upd.reshape(B, S, D)

    x = A_q
    h = x + _A_ref(_layernorm(x, axis=-1), A_k, A_v, A_shift_k, A_ssm_k, A_ssm_D)
    h2 = h + _B_ref(_layernorm(h, axis=-1), B_w_r, B_w_gate, B_w_up, B_w_down)
    return h2
```

```python
import re

REG_RE = re.compile(r'^(-|\|)?(abs\()?([vsa])(\d+)\)?\|?$')
RANGE_RE = re.compile(r'^(-|\|)?(abs\()?([vsa])\[(\d+):(\d+)\]\)?\|?$')

TRANS = ('v_exp_f32', 'v_log_f32', 'v_rcp_f32', 'v_rsq_f32', 'v_sqrt_f32', 'v_sin_f32', 'v_cos_f32',
         'v_rcp_iflag_f32')


def parse_reg(tok):
    tok = tok.strip()
    m = REG_RE.match(tok)
    if m:
        return {(m.group(3), int(m.group(4)))}
    m = RANGE_RE.match(tok)
    if m:
        return {(m.group(3), i) for i in range(int(m.group(4)), int(m.group(5)) + 1)}
    if tok == 'vcc':
        return {('vcc', 0), ('vcc', 1)}
    if tok == 'vcc_lo':
        return {('vcc', 0)}
    if tok == 'vcc_hi':
        return {('vcc', 1)}
    if tok == 'exec':
        return {('exec', 0), ('exec', 1)}
    if tok == 'exec_lo':
        return {('exec', 0)}
    if tok == 'exec_hi':
        return {('exec', 1)}
    if tok == 'm0':
        return {('m0', 0)}
    return set()


def split_ops(s):
    out, cur, depth = [], '', 0
    for ch in s:
        if ch in '[(':
            depth += 1
        if ch in '])':
            depth -= 1
        if ch == ',' and depth == 0:
            out.append(cur.strip())
            cur = ''
        else:
            cur += ch
    out.append(cur.strip())
    mods = []
    if out:
        parts = out[-1].split()
        if parts:
            out[-1] = parts[0]
            mods = parts[1:]
    return out, mods


class Inst:
    __slots__ = ('text', 'mn', 'ops', 'mods', 'rd', 'wr', 'kind', 'passes', 'srcc', 'srcab', 'is_dpp', 'states',
                 'store_data', 'lanesel', 'sgpr_addr')

    def __init__(self, text):
        self.text = text
        t = text.split(';')[0].strip()
        sp = t.split(None, 1)
        self.mn = sp[0]
        rest = sp[1] if len(sp) > 1 else ''
        self.ops, self.mods = split_ops(rest) if rest else ([], [])
        self.rd, self.wr = set(), set()
        self.passes = 0
        self.srcc = set()
        self.srcab = set()
        self.store_data = set()
        self.lanesel = set()
        self.sgpr_addr = set()
        self.is_dpp = any(m.startswith(('row_', 'quad_perm', 'wave_', 'row_bcast', 'row_mirror', 'row_half_mirror',
                                        'row_newbcast')) for m in self.mods) or self.mn.endswith('_dpp')
        self.states = 1
        mn = self.mn
        base = re.sub(r'_(e32|e64|dpp|sdwa)$', '', mn)
        regs = [parse_reg(o) for o in self.ops]
        if mn == 's_nop':
            self.kind = 'nop'
            self.states = int(self.ops[0], 0) + 1
        elif mn.startswith('v_mfma'):
            self.kind = 'mfma'
            self.wr = regs[0]
            self.srcab = regs[1] | regs[2]
            self.srcc = regs[3]
            self.rd = self.srcab | self.srcc
            if '16x16x32' in mn or '16x16x16' in mn:
                self.passes = 4
            elif '32x32x16' in mn or '32x32x8' in mn:
                self.passes = 8
            else:
                raise ValueError('unknown mfma ' + mn)
        elif mn.startswith('v_'):
            self.kind = 'trans' if base in TRANS else 'valu'
            if base.startswith('v_cmp'):
                self.wr = regs[0]
                self.rd = set().union(*regs[1:])
                if base.startswith('v_cmpx'):
                    raise ValueError('no cmpx please')
            elif base in ('v_add_co_u32', 'v_sub_co_u32', 'v_subrev_co_u32', 'v_addc_co_u32', 'v_subb_co_u32',
                          'v_mad_u64_u32', 'v_div_scale_f32'):
                self.wr = regs[0] | regs[1]
                self.rd = set().union(*regs[2:])
            elif base in ('v_permlane16_swap_b32', 'v_permlane32_swap_b32', 'v_swap_b32'):
                self.wr = regs[0] | regs[1]
                self.rd = regs[0] | regs[1]
            elif base in ('v_readlane_b32', 'v_writelane_b32'):
                self.wr = regs[0]
                self.rd = set().union(*regs[1:])
                self.lanesel = regs[2]
                if base == 'v_writelane_b32':
                    self.rd |= regs[0]
            elif base == 'v_nop':
                pass
            else:
                self.wr = regs[0]
                self.rd = set().union(*regs[1:]) if len(regs) > 1 else set()
                if base in ('v_fmac_f32', 'v_pk_fmac_f16', 'v_dot2c_f32_bf16', 'v_dot2c_f32_f16', 'v_mac_f32'):
                    self.rd |= regs[0]
                if self.is_dpp:
                    self.rd |= regs[0]
                if base == 'v_div_fmas_f32':
                    self.rd |= parse_reg('vcc')
                if base.startswith('v_cndmask') and len(self.ops) == 3:
                    self.rd |= parse_reg('vcc')
        elif mn.startswith('ds_'):
            self.kind = 'ds'
            if mn.startswith(('ds_read', 'ds_bpermute', 'ds_permute', 'ds_swizzle')) or '_rtn' in mn:
                self.wr = regs[0]
                self.rd = set().union(*regs[1:]) if len(regs) > 1 else set()
            else:
                self.rd = set().union(*regs)
        elif mn.startswith(('global_', 'buffer_', 'flat_')):
            self.kind = 'vmem'
            is_lds = 'lds' in self.mods or '_lds_' in mn
            if mn in ('buffer_wbl2', 'buffer_inv'):
                pass
            elif ('load' in mn) and not is_lds:
                self.wr = regs[0]
                self.rd = set().union(*regs[1:])
                if 'd16' in mn:
                    self.rd |= regs[0]
            elif 'atomic' in mn and 'sc0' in self.mods and mn.startswith('global_'):
                self.wr = regs[0]
                self.rd = set().union(*regs[1:])
            else:
                self.rd = set().union(*regs)
                if 'atomic' in mn and 'sc0' in self.mods:
                    self.wr = regs[0]
                if 'store' in mn and ('x3' in mn or 'x4' in mn):
                    self.store_data = regs[0] if mn.startswith('buffer_') else regs[1]
                if is_lds:
                    self.rd |= parse_reg('m0')
            self.sgpr_addr = {r for r in self.rd if r[0] in ('s', 'vcc')}
        elif mn.startswith('s_'):
            self.kind = 'salu'
            if mn.startswith(('s_cmp', 's_cbranch', 's_branch', 's_waitcnt', 's_barrier', 's_endpgm', 's_sleep',
                              's_setprio', 's_bitcmp', 's_setreg', 's_sethalt', 's_setpc')):
                self.rd = set().union(*regs) if regs else set()
                if mn.startswith(('s_cbranch', 's_branch', 's_endpgm', 's_setpc')):
                    self.kind = 'branch'
            else:
                self.wr = regs[0]
                self.rd = set().union(*regs[1:]) if len(regs) > 1 else set()
                if 'saveexec' in mn:
                    self.wr |= parse_reg('exec')
                    self.rd |= parse_reg('exec')
                if mn.startswith(('s_load', 's_buffer_load', 's_memtime', 's_memrealtime', 's_atomic')):
                    self.kind = 'smem'
        else:
            raise ValueError('unknown instruction: ' + text)


def isv(r):
    return r[0] in ('v', 'a')


def iss(r):
    return r[0] in ('s', 'vcc')


XDL_VALU = {2: 5, 4: 8, 8: 12, 16: 20}
XDL_AB = {2: 5, 4: 8, 8: 12, 16: 20}
XDL_C_OVL = {2: 4, 4: 6, 8: 10, 16: 18}
XDL_WAR_C = {2: 1, 4: 3, 8: 7, 16: 15}


def required(p, c):
    need = 0
    pv = p.kind in ('valu', 'trans')
    cv = c.kind in ('valu', 'trans')
    cbase = re.sub(r'_(e32|e64|dpp|sdwa)$', '', c.mn)
    if pv:
        wv = {r for r in p.wr if isv(r)}
        ws = {r for r in p.wr if iss(r)}
        if c.kind == 'mfma' and (wv & c.rd):
            need = max(need, 2)
        if cv and c.is_dpp and (wv & c.rd):
            need = max(need, 2)
        if cbase in ('v_readlane_b32', 'v_readfirstlane_b32') and (wv & c.rd):
            need = max(need, 1)
        if cbase.startswith('v_permlane') and (wv & c.rd):
            need = max(need, 2)
        if p.kind == 'trans' and (c.kind in ('valu', 'mfma', 'vmem', 'ds')) and (wv & c.rd):
            need = max(need, 1)
        if ws:
            if cv and (ws & c.rd):
                need = max(need, 2)
            if c.lanesel & ws:
                need = max(need, 4)
            if cbase == 'v_div_fmas_f32' and any(r[0] == 'vcc' for r in ws):
                need = max(need, 4)
            if c.kind == 'vmem' and (ws & c.sgpr_addr):
                need = max(need, 5)
            if c.kind in ('salu', 'smem', 'branch') and ((ws & c.rd) or (c.mn.startswith('s_cbranch_vcc') and any(r[0] == 'vcc' for r in ws))):
                need = max(need, 1)
        if 'sdwa' in p.mn or any(m.startswith(('op_sel', 'dst_sel')) for m in p.mods):
            if (cv or c.kind == 'mfma') and (wv & (c.rd | c.wr)):
                need = max(need, 1)
    if p.kind == 'mfma':
        d = p.wr
        if c.kind == 'mfma':
            if d & c.srcab:
                need = max(need, XDL_AB[p.passes])
            if d & c.srcc:
                if c.srcc == d and c.passes == p.passes:
                    need = max(need, 2 if p.passes == 2 else 0)
                else:
                    need = max(need, XDL_C_OVL[p.passes])
            elif d & c.wr:
                need = max(need, XDL_VALU[p.passes])
        elif c.kind in ('valu', 'trans', 'vmem', 'ds'):
            if d & (c.rd | c.wr):
                need = max(need, XDL_VALU[p.passes])
        if c.kind in ('valu', 'trans', 'vmem', 'ds') and (p.srcc & c.wr):
            need = max(need, XDL_WAR_C[p.passes])
    if p.kind == 'vmem' and p.store_data:
        if p.store_data & c.wr:
            need = max(need, 2 if (cv or c.kind == 'mfma') else 1)
    if p.kind == 'salu' and any(r[0] == 'm0' for r in p.wr):
        if any(r[0] == 'm0' for r in c.rd) and c.kind in ('vmem', 'ds'):
            need = max(need, 1)
    if p.kind == 'salu' and any(r[0] == 'exec' for r in p.wr):
        if cv and c.is_dpp:
            need = max(need, 1)
    return need


def max_pending(p):
    if p.kind == 'mfma':
        return XDL_VALU[p.passes]
    if p.kind in ('valu', 'trans'):
        if any(iss(r) for r in p.wr):
            return 5
        return 2
    if p.kind == 'vmem' and p.store_data:
        return 2
    if p.kind == 'salu' and any(r[0] in ('m0', 'exec') for r in p.wr):
        return 1
    return 0


class Asm:
    def __init__(self):
        self.items = []
        self.uid = 0

    def __call__(self, text):
        for line in text.strip().split('\n'):
            line = line.strip()
            if not line or line.startswith(';'):
                if line:
                    self.items.append(('r', '    ' + line))
                continue
            if line.endswith(':') and ' ' not in line:
                self.items.append(('l', line[:-1]))
            else:
                self.items.append(('i', Inst(line)))

    def raw(self, text):
        self.items.append(('r', text))

    def label(self, name):
        self.items.append(('l', name))

    def newlabel(self, base='L'):
        self.uid += 1
        return f'{base}_{self.uid}'

    def render(self):
        out = []
        hist = []
        WINDOW = 24

        def pad(n):
            while n > 0:
                k = min(n, 16)
                out.append(f'    s_nop {k - 1}')
                for h in hist:
                    h[1] += k
                n -= k

        for kind, it in self.items:
            if kind == 'r':
                out.append(it)
                if it.strip().startswith(('.p2align', '.text', '.section', '.globl', '.type', '.amdhsa', '.end')):
                    pass
                continue
            if kind == 'l':
                need = 0
                for h in hist:
                    need = max(need, max_pending(h[0]) - h[1])
                pad(need)
                hist = []
                out.append(it + ':')
                continue
            need = 0
            for h in hist:
                need = max(need, required(h[0], it) - h[1])
            if it.kind == 'branch' and it.mn != 's_endpgm':
                for h in hist:
                    need = max(need, max_pending(h[0]) - h[1] - 1)
            pad(need)
            out.append('    ' + it.text)
            for h in hist:
                h[1] += it.states
            hist = [h for h in hist if h[1] < WINDOW]
            hist.append([it, 0])
            if it.mn in ('s_endpgm', 's_branch'):
                hist = []
        return '\n'.join(out) + '\n'


def kernel_begin(a, name):
    a.raw('.text')
    a.raw(f'.globl {name}')
    a.raw('.p2align 8')
    a.raw(f'.type {name},@function')
    a.label(name)


def kernel_desc(name, vgpr, sgpr, accum=None):
    if accum is None:
        accum = (vgpr + 3) // 4 * 4
    return f'''.section .rodata,"a"
.p2align 6
.amdhsa_kernel {name}
  .amdhsa_next_free_vgpr {vgpr}
  .amdhsa_next_free_sgpr {sgpr}
  .amdhsa_accum_offset {accum}
  .amdhsa_group_segment_fixed_size 0
  .amdhsa_kernarg_size 112
  .amdhsa_user_sgpr_count 2
  .amdhsa_user_sgpr_kernarg_segment_ptr 1
  .amdhsa_system_sgpr_workgroup_id_x 1
  .amdhsa_float_denorm_mode_32 3
.end_amdhsa_kernel
'''
```

```python
import sys
from asmlib import *

NAME = 'sequential_preLN__ssm_conv_h3__moe_arch_mod__prompt'
HEADER = open('cdna_kernels/%s.s.ref' % NAME).read().split('; Override launch')[0]

WS_UT = 0
WS_Y = 4 << 20
WS_KEYS = 8 << 20
WS_CAND = (8 << 20) + 65536
WS_PART = 10 << 20
MB4 = 4 << 20

a = Asm()


def srd(dst, base, nbytes, off=0):
    if off:
        a(f's_add_u32 s{dst}, s{base}, {off}')
        a(f's_addc_u32 s{dst + 1}, s{base + 1}, 0')
    else:
        a(f's_mov_b32 s{dst}, s{base}')
        a(f's_mov_b32 s{dst + 1}, s{base + 1}')
    a(f's_mov_b32 s{dst + 2}, {nbytes}')
    a(f's_mov_b32 s{dst + 3}, 0x00020000')


def rnd(d, s):
    a(f'v_cvt_pk_bf16_f32 v{d}, 0, v{s}')


def unpack(dlo, dhi, s):
    a(f'v_lshlrev_b32 v{dlo}, 16, v{s}')
    a(f'v_and_b32 v{dhi}, 0xffff0000, v{s}')


def wave_reduce(op, v):
    for sh in (1, 2, 4, 8):
        a(f'{op}_dpp v{v}, v{v}, v{v} row_shr:{sh} row_mask:0xf bank_mask:0xf bound_ctrl:0')
    a(f'{op}_dpp v{v}, v{v}, v{v} row_bcast:15 row_mask:0xa bank_mask:0xf')
    a(f'{op}_dpp v{v}, v{v}, v{v} row_bcast:31 row_mask:0xc bank_mask:0xf')


def k_prep():
    kernel_begin(a, 'prep_kernel')
    a('s_cmp_ge_u32 s2, 256')
    a('s_cbranch_scc1 prep_done')
    a('s_load_dwordx4 s[4:7], s[0:1], 8')
    a('s_load_dwordx2 s[8:9], s[0:1], 24')
    a('s_load_dwordx2 s[10:11], s[0:1], 104')
    a('s_lshr_b32 s12, s2, 4')
    a('s_and_b32 s13, s2, 15')
    a('v_and_b32 v1, 15, v0')
    a('v_lshrrev_b32 v2, 4, v0')
    a('s_lshl_b32 s14, s12, 18')
    a('s_lshl_b32 s15, s13, 7')
    a('s_add_u32 s14, s14, s15')
    a('v_lshlrev_b32 v3, 14, v2')
    a('v_lshl_add_u32 v3, v1, 3, v3')
    a('v_add_u32 v3, s14, v3')
    a('v_subrev_u32 v4, 6144, v3')
    a('v_mov_b32 v5, 0x80000000')
    a('v_cmp_gt_u32 vcc, 6144, v3')
    a('v_cndmask_b32 v4, v4, v5, vcc')
    a('s_lshl_b32 s15, s13, 9')
    a('v_lshlrev_b32 v5, 5, v1')
    a('v_add_u32 v5, s15, v5')
    a('s_mov_b32 s40, 4096')
    a('s_mov_b32 s41, 8192')
    a('s_mov_b32 s42, 12288')
    a('s_waitcnt lgkmcnt(0)')
    srd(16, 4, MB4)
    srd(20, 6, MB4)
    srd(24, 8, 8192)
    srd(28, 10, MB4, WS_UT)
    KR, VR, WR = 8, 30, 46
    a(f'buffer_load_dwordx4 v[{WR}:{WR + 3}], v5, s[24:27], 0 offen')
    a(f'buffer_load_dwordx4 v[{WR + 4}:{WR + 7}], v5, s[24:27], 0 offen offset:16')
    so = ['0', 's40', 's41', 's42']
    for r in range(3):
        a(f'buffer_load_dwordx2 v[{KR + 2 * r}:{KR + 2 * r + 1}], v4, s[16:19], {so[r >> 1]} offen offset:{(r & 1) * 2048} nt')
    for r in range(8):
        a(f'buffer_load_dwordx2 v[{KR + 6 + 2 * r}:{KR + 7 + 2 * r}], v3, s[16:19], {so[r >> 1]} offen offset:{(r & 1) * 2048} nt')
    for r in range(8):
        a(f'buffer_load_dwordx2 v[{VR + 2 * r}:{VR + 2 * r + 1}], v3, s[20:23], {so[r >> 1]} offen offset:{(r & 1) * 2048} nt')
    a('v_mul_u32_u24 v6, 1040, v1')
    a('v_sub_u32 v7, 15, v2')
    a('v_lshl_add_u32 v6, v7, 4, v6')
    WF = 54
    KF = 70
    VF = 92
    P = 108
    ACC = 110
    O = 112
    CH = 128
    a('s_waitcnt vmcnt(19)')
    for p in range(2):
        for jj in range(2):
            j = 2 * p + jj
            unpack(WF + 8 * p + 0 + jj, WF + 8 * p + 2 + jj, WR + 2 * j)
            unpack(WF + 8 * p + 4 + jj, WF + 8 * p + 6 + jj, WR + 2 * j + 1)
    a('s_waitcnt vmcnt(0)')
    for p in range(2):
        for r in range(11):
            unpack(KF + 2 * r, KF + 2 * r + 1, KR + 2 * r + p)
        for r in range(8):
            unpack(VF + 2 * r, VF + 2 * r + 1, VR + 2 * r + p)
        for r in range(8):
            for t in range(4):
                tap = 3 - t
                dst = ACC if t == 0 else P
                a(f'v_pk_mul_f32 v[{dst}:{dst + 1}], v[{KF + 2 * (r + t)}:{KF + 2 * (r + t) + 1}], v[{WF + 8 * p + 2 * tap}:{WF + 8 * p + 2 * tap + 1}]')
                rnd(dst, dst)
                rnd(dst + 1, dst + 1)
                if t:
                    a(f'v_pk_add_f32 v[{ACC}:{ACC + 1}], v[{ACC}:{ACC + 1}], v[{P}:{P + 1}]')
                    rnd(ACC, ACC)
                    rnd(ACC + 1, ACC + 1)
            a(f'v_pk_mul_f32 v[{O + 2 * r}:{O + 2 * r + 1}], v[{ACC}:{ACC + 1}], v[{VF + 2 * r}:{VF + 2 * r + 1}]')
        for jj in range(2):
            for m in range(4):
                a(f'v_cvt_pk_bf16_f32 v{CH + 4 * jj + m}, v{O + 2 * (7 - 2 * m) + jj}, v{O + 2 * (6 - 2 * m) + jj}')
            a(f'ds_write_b128 v6, v[{CH + 4 * jj}:{CH + 4 * jj + 3}] offset:{(2 * p + jj) * 256}')
    a('v_lshrrev_b32 v8, 6, v0')
    a('v_mul_u32_u24 v8, 1040, v8')
    a('v_and_b32 v9, 63, v0')
    a('v_lshl_add_u32 v8, v9, 4, v8')
    a('s_lshl_b32 s14, s13, 18')
    a('s_sub_u32 s15, 15, s12')
    a('s_lshl_b32 s15, s15, 8')
    a('s_add_u32 s14, s14, s15')
    a('v_lshlrev_b32 v9, 12, v2')
    a('v_lshl_add_u32 v9, v1, 4, v9')
    a('v_add_u32 v9, s14, v9')
    a('s_mov_b32 s40, 0x10000')
    a('s_mov_b32 s41, 0x20000')
    a('s_mov_b32 s42, 0x30000')
    a('s_waitcnt lgkmcnt(0)')
    a('s_barrier')
    for p in range(4):
        a(f'ds_read_b128 v[{12 + 4 * p}:{15 + 4 * p}], v8 offset:{4160 * p}')
    for p in range(4):
        a(f's_waitcnt lgkmcnt({3 - p})')
        a(f'buffer_store_dwordx4 v[{12 + 4 * p}:{15 + 4 * p}], v9, s[28:31], {so[p]} offen')
    a('prep_done:')
    a('s_endpgm')
    return kernel_desc('prep_kernel', 136, 48)


GS = 4160
UOFF = 8 * GS
WSTRIDE = 37952
CONV_LDS = 4 * WSTRIDE


def k_conv():
    kernel_begin(a, 'conv_kernel')
    a('s_cmp_ge_u32 s2, 256')
    a('s_cbranch_scc1 conv_done')
    a('s_load_dwordx4 s[4:7], s[0:1], 32')
    a('s_load_dwordx2 s[10:11], s[0:1], 104')
    a('v_lshrrev_b32 v1, 6, v0')
    a('v_and_b32 v2, 63, v0')
    a('v_readfirstlane_b32 s12, v1')
    a('s_lshl_b32 s13, s2, 2')
    a('s_add_u32 s13, s13, s12')
    a('s_mul_i32 s14, s12, %d' % WSTRIDE)
    a('s_lshl_b32 s15, s13, 12')
    a('v_lshlrev_b32 v3, 4, v2')
    a('v_subrev_u32 v4, 16, v3')
    a('s_lshl_b32 s33, s13, 1')
    a('s_and_b32 s33, s33, 0xfffffffc')
    a('s_waitcnt lgkmcnt(0)')
    a('s_add_u32 s16, s4, s15')
    a('s_addc_u32 s17, s5, 0')
    a('s_mov_b32 s18, 4096')
    a('s_mov_b32 s19, 0x00020000')
    a('s_add_u32 s20, s10, s15')
    a('s_addc_u32 s21, s11, 0')
    a('s_mov_b32 s22, 4096')
    a('s_mov_b32 s23, 0x00020000')
    srd(24, 10, MB4, WS_Y)
    a('s_load_dword s34, s[6:7], s33')
    W = 16
    U = 48
    for i in range(4):
        if i == 0:
            a(f'buffer_load_dwordx4 v[{W}:{W + 3}], v4, s[16:19], 0 offen nt')
        else:
            a(f'buffer_load_dwordx4 v[{W + 8 * i}:{W + 8 * i + 3}], v3, s[16:19], 0 offen offset:{1024 * i - 16} nt')
        a(f'buffer_load_dwordx4 v[{W + 8 * i + 4}:{W + 8 * i + 7}], v3, s[16:19], 0 offen offset:{1024 * i} nt')
    for i in range(4):
        a(f'buffer_load_dwordx4 v[{U + 4 * i}:{U + 4 * i + 3}], v3, s[20:23], 0 offen offset:{1024 * i}')
    a('v_add_u32 v5, s14, v3')
    a('v_and_b32 v6, 15, v2')
    a('v_lshrrev_b32 v7, 4, v2')
    a('v_and_b32 v8, 7, v2')
    a(f'v_mul_u32_u24 v8, {GS}, v8')
    a('v_add_u32 v8, s14, v8')
    a('v_bfe_u32 v9, v2, 3, 1')
    a('v_add_u32 v9, v9, v7')
    a('v_lshl_add_u32 v9, v9, 4, v8')
    a(f's_add_u32 s35, s14, {UOFF + 480}')
    a('v_lshlrev_b32 v10, 5, v6')
    a('v_sub_u32 v10, s35, v10')
    a('v_lshl_add_u32 v11, v7, 4, v10')
    a('v_lshlrev_b32 v12, 3, v7')
    a('v_sub_u32 v13, v10, v12')
    a('v_add_u32 v13, 24, v13')
    a('v_lshl_add_u32 v14, v6, 5, v12')
    a('v_add_u32 v14, s14, v14')
    Z = 64
    for j in range(4):
        a(f'v_mov_b32 v{Z + j}, 0')
    a('s_mov_b64 exec, 0xff')
    a(f'ds_write_b128 v8, v[{Z}:{Z + 3}]')
    a('s_mov_b64 exec, 0x3fffffff')
    a(f'ds_write_b128 v5, v[{Z}:{Z + 3}] offset:{UOFF + 4096}')
    a('s_mov_b64 exec, -1')
    T1, T2, T3 = 68, 74, 80
    for i in range(4):
        w = W + 8 * i
        a(f's_waitcnt vmcnt({10 - 2 * i})')
        for j in range(6):
            a(f'v_alignbit_b32 v{T1 + j}, v{w + j + 1}, v{w + j}, 16')
        for j in range(6):
            a(f'v_alignbit_b32 v{T2 + j}, v{w + j + 2}, v{w + j + 1}, 16')
        for j in range(6):
            a(f'v_mov_b32 v{T3 + j}, v{w + j + 1}')
        src = {7: w + 4, 3: w + 2, 1: T3, 5: T3 + 2, 0: T1, 4: T1 + 2, 2: T2, 6: T2 + 2}
        for e in (7, 3, 0, 4, 2, 6, 1, 5):
            a(f'ds_write_b128 v5, v[{src[e]}:{src[e] + 3}] offset:{e * GS + 1024 * i + 16}')
    for i in range(4):
        a(f's_waitcnt vmcnt({3 - i})')
        a(f'ds_write_b128 v5, v[{U + 4 * i}:{U + 4 * i + 3}] offset:{UOFF + 1024 * i}')
    a('s_waitcnt lgkmcnt(0)')
    ACC = 16
    FR = [96, 160]

    def reads(c):
        s = FR[c & 1]
        out = []
        for j in range(8):
            out.append(f'ds_read_b128 v[{s + 4 * j}:{s + 4 * j + 3}], v9 offset:{64 * (8 * j + c)}')
            out.append(f'ds_read_b128 v[{s + 32 + 4 * j}:{s + 32 + 4 * j + 3}], v11 offset:{64 * (56 - (8 * j - c))}')
        return out

    for r in reads(0):
        a(r)
    for c in range(8):
        s = FR[c & 1]
        a('s_waitcnt lgkmcnt(0)')
        nxt = reads(c + 1) if c < 7 else []
        k = 0
        for n in range(8):
            for z in range(8 - n):
                w = n + z
                cc = '0' if (c == 0 and n == 0) else f'v[{ACC + 4 * w}:{ACC + 4 * w + 3}]'
                a(f'v_mfma_f32_16x16x32_bf16 v[{ACC + 4 * w}:{ACC + 4 * w + 3}], v[{s + 4 * n}:{s + 4 * n + 3}], v[{s + 32 + 4 * z}:{s + 32 + 4 * z + 3}], {cc}')
                if nxt and k % 2 == 0:
                    a(nxt.pop(0))
                k += 1
        assert not nxt
    E = 96
    for w in range(8):
        a(f'ds_read_b64 v[{E + 2 * w}:{E + 2 * w + 1}], v13 offset:{512 * (7 - w)}')
    a('s_and_b32 s36, s13, 1')
    a('s_lshl_b32 s37, s34, 16')
    a('s_and_b32 s38, s34, 0xffff0000')
    a('s_cmp_eq_u32 s36, 0')
    a('s_cselect_b32 s34, s37, s38')
    a('s_waitcnt lgkmcnt(0)')
    T = 112
    for w in range(8):
        unpack(T + 3, T + 2, E + 2 * w)
        unpack(T + 1, T + 0, E + 2 * w + 1)
        for r in range(4):
            a(f'v_mul_f32 v{T + r}, s34, v{T + r}')
        for r in range(4):
            rnd(T + r, T + r)
            rnd(ACC + 4 * w + r, ACC + 4 * w + r)
        for r in range(4):
            a(f'v_add_f32 v{T + r}, v{T + r}, v{ACC + 4 * w + r}')
        a(f'v_cvt_pk_bf16_f32 v{T + 4}, v{T}, v{T + 1}')
        a(f'v_cvt_pk_bf16_f32 v{T + 5}, v{T + 2}, v{T + 3}')
        a(f'ds_write_b64 v14, v[{T + 4}:{T + 5}] offset:{512 * w}')
    a('v_and_b32 v1, 3, v0')
    a('v_lshrrev_b32 v2, 2, v0')
    a(f'v_mul_u32_u24 v3, {WSTRIDE}, v1')
    a('v_lshl_add_u32 v3, v2, 4, v3')
    a('v_lshlrev_b32 v4, 14, v2')
    a('v_lshl_add_u32 v4, v1, 4, v4')
    a('s_lshl_b32 s36, s2, 6')
    a('v_add_u32 v4, s36, v4')
    a('s_mov_b32 s40, 0x100000')
    a('s_mov_b32 s41, 0x200000')
    a('s_mov_b32 s42, 0x300000')
    so = ['0', 's40', 's41', 's42']
    a('s_waitcnt lgkmcnt(0)')
    a('s_barrier')
    for p in range(4):
        a(f'ds_read_b128 v[{16 + 4 * p}:{19 + 4 * p}], v3 offset:{1024 * p}')
    for p in range(4):
        a(f's_waitcnt lgkmcnt({3 - p})')
        a(f'buffer_store_dwordx4 v[{16 + 4 * p}:{19 + 4 * p}], v4, s[24:27], {so[p]} offen')
    a('conv_done:')
    a('s_endpgm')
    return kernel_desc('conv_kernel', 224, 48)


def layernorm(X, N, T, sreg):
    for i in range(4):
        a(f'v_pk_add_f32 v[{T + 2 * i}:{T + 2 * i + 1}], v[{X + 4 * i}:{X + 4 * i + 1}], v[{X + 4 * i + 2}:{X + 4 * i + 3}]')
    a(f'v_pk_add_f32 v[{T}:{T + 1}], v[{T}:{T + 1}], v[{T + 2}:{T + 3}]')
    a(f'v_pk_add_f32 v[{T + 4}:{T + 5}], v[{T + 4}:{T + 5}], v[{T + 6}:{T + 7}]')
    a(f'v_pk_add_f32 v[{T}:{T + 1}], v[{T}:{T + 1}], v[{T + 4}:{T + 5}]')
    a(f'v_add_f32 v{T}, v{T}, v{T + 1}')
    wave_reduce('v_add_f32', T)
    a(f'v_readlane_b32 s{sreg}, v{T}, 63')
    M = T + 16
    a(f'v_mov_b32 v{M}, 0x3a800000')
    a(f'v_mul_f32 v{M}, s{sreg}, v{M}')
    for i in range(16):
        a(f'v_sub_f32 v{T + i}, v{X + i}, v{M}')
    a(f'v_pk_mul_f32 v[{T}:{T + 1}], v[{T}:{T + 1}], v[{T}:{T + 1}]')
    a(f'v_pk_mul_f32 v[{T + 2}:{T + 3}], v[{T + 2}:{T + 3}], v[{T + 2}:{T + 3}]')
    for i in range(2, 8):
        d = T + 2 * (i & 1)
        a(f'v_pk_fma_f32 v[{d}:{d + 1}], v[{T + 2 * i}:{T + 2 * i + 1}], v[{T + 2 * i}:{T + 2 * i + 1}], v[{d}:{d + 1}]')
    a(f'v_pk_add_f32 v[{T}:{T + 1}], v[{T}:{T + 1}], v[{T + 2}:{T + 3}]')
    a(f'v_add_f32 v{T}, v{T}, v{T + 1}')
    wave_reduce('v_add_f32', T)
    a(f'v_readlane_b32 s{sreg}, v{T}, 63')
    V = T + 17
    a(f'v_mov_b32 v{V}, 0x3a800000')
    a(f'v_mul_f32 v{V}, s{sreg}, v{V}')
    rnd(M, M)
    rnd(V, V)
    a(f'v_add_f32 v{V}, 0x3727c5ac, v{V}')
    rnd(V, V)
    a(f'v_sqrt_f32 v{V}, v{V}')
    rnd(V, V)
    a(f'v_rcp_f32 v{V}, v{V}')
    for i in range(16):
        a(f'v_sub_f32 v{N + i}, v{X + i}, v{M}')
    for i in range(16):
        rnd(N + i, N + i)
    for i in range(16):
        a(f'v_mul_f32 v{N + i}, v{N + i}, v{V}')
    for i in range(16):
        rnd(N + i, N + i)


def k_rows():
    kernel_begin(a, 'rows_kernel')
    a('s_cmp_ge_u32 s2, 256')
    a('s_cbranch_scc1 rows_done')
    a('s_load_dwordx2 s[4:5], s[0:1], 0')
    a('s_load_dwordx2 s[6:7], s[0:1], 56')
    a('s_load_dwordx2 s[8:9], s[0:1], 88')
    a('s_load_dwordx2 s[10:11], s[0:1], 104')
    a('v_lshrrev_b32 v1, 6, v0')
    a('v_and_b32 v2, 63, v0')
    a('v_readfirstlane_b32 s12, v1')
    a('s_lshl_b32 s13, s2, 3')
    a('s_add_u32 s13, s13, s12')
    a('s_lshl_b32 s14, s13, 11')
    a('v_lshlrev_b32 v3, 4, v2')
    a('v_add_u32 v4, s14, v3')
    a('s_lshl_b32 s15, s2, 14')
    a('v_lshlrev_b32 v5, 5, v0')
    a('v_add_u32 v5, s15, v5')
    a('s_waitcnt lgkmcnt(0)')
    srd(16, 4, MB4)
    srd(20, 6, 2048)
    srd(24, 8, MB4)
    srd(28, 10, MB4, WS_Y)
    srd(32, 10, 1024, WS_KEYS)
    srd(36, 10, 1 << 20, WS_CAND)
    XR, YR, WR = 8, 16, 24
    a(f'buffer_load_dwordx4 v[{XR}:{XR + 3}], v4, s[16:19], 0 offen nt')
    a(f'buffer_load_dwordx4 v[{XR + 4}:{XR + 7}], v4, s[16:19], 0 offen offset:1024 nt')
    a(f'buffer_load_dwordx4 v[{YR}:{YR + 3}], v5, s[28:31], 0 offen')
    a(f'buffer_load_dwordx4 v[{YR + 4}:{YR + 7}], v5, s[28:31], 0 offen offset:16')
    a(f'buffer_load_dwordx4 v[{WR}:{WR + 3}], v3, s[20:23], 0 offen')
    a(f'buffer_load_dwordx4 v[{WR + 4}:{WR + 7}], v3, s[20:23], 0 offen offset:1024')
    a('s_mov_b32 s40, 0x05040100')
    a('s_mov_b32 s41, 0x07060302')
    a('v_lshlrev_b32 v6, 2, v0')
    a('s_lshl_b32 s15, s12, 11')
    a('v_add_u32 v7, s15, v3')
    X, N, T, H = 32, 48, 64, 84
    a('s_waitcnt vmcnt(2)')
    P = T
    for i in range(4):
        a(f'v_perm_b32 v{P + 2 * i}, v{YR + 4 + i}, v{YR + i}, s40')
        a(f'v_perm_b32 v{P + 2 * i + 1}, v{YR + 4 + i}, v{YR + i}, s41')
    for i in range(4):
        a(f'ds_write2st64_b32 v6, v{P + 2 * i}, v{P + 2 * i + 1} offset0:{16 * i} offset1:{16 * i + 8}')
    for i in range(8):
        unpack(X + 2 * i, X + 2 * i + 1, XR + i)
    a('s_waitcnt lgkmcnt(0)')
    a('s_barrier')
    a(f'ds_read_b128 v[{YR}:{YR + 3}], v7')
    a(f'ds_read_b128 v[{YR + 4}:{YR + 7}], v7 offset:1024')
    layernorm(X, N, T, 42)
    a('s_waitcnt lgkmcnt(0)')
    for i in range(8):
        unpack(H + 2 * i, H + 2 * i + 1, YR + i)
    for i in range(8):
        a(f'v_pk_mul_f32 v[{H + 2 * i}:{H + 2 * i + 1}], v[{H + 2 * i}:{H + 2 * i + 1}], v[{N + 2 * i}:{N + 2 * i + 1}]')
    for i in range(16):
        rnd(H + i, H + i)
    for i in range(8):
        a(f'v_pk_add_f32 v[{H + 2 * i}:{H + 2 * i + 1}], v[{H + 2 * i}:{H + 2 * i + 1}], v[{X + 2 * i}:{X + 2 * i + 1}]')
    for i in range(16):
        rnd(H + i, H + i)
    layernorm(H, N, T, 42)
    for i in range(8):
        a(f'v_pk_add_f32 v[{X + 2 * i}:{X + 2 * i + 1}], v[{H + 2 * i}:{H + 2 * i + 1}], v[{N + 2 * i}:{N + 2 * i + 1}]')
    for i in range(8):
        a(f'v_cvt_pk_bf16_f32 v{XR + i}, v{X + 2 * i}, v{X + 2 * i + 1}')
    a(f'buffer_store_dwordx4 v[{XR}:{XR + 3}], v4, s[24:27], 0 offen')
    a(f'buffer_store_dwordx4 v[{XR + 4}:{XR + 7}], v4, s[24:27], 0 offen offset:1024')
    a('s_waitcnt vmcnt(2)')
    for i in range(8):
        unpack(X + 2 * i, X + 2 * i + 1, WR + i)
    a(f'v_pk_mul_f32 v[{T}:{T + 1}], v[{X}:{X + 1}], v[{N}:{N + 1}]')
    a(f'v_pk_mul_f32 v[{T + 2}:{T + 3}], v[{X + 2}:{X + 3}], v[{N + 2}:{N + 3}]')
    for i in range(2, 8):
        d = T + 2 * (i & 1)
        a(f'v_pk_fma_f32 v[{d}:{d + 1}], v[{X + 2 * i}:{X + 2 * i + 1}], v[{N + 2 * i}:{N + 2 * i + 1}], v[{d}:{d + 1}]')
    a(f'v_pk_add_f32 v[{T}:{T + 1}], v[{T}:{T + 1}], v[{T + 2}:{T + 3}]')
    a(f'v_add_f32 v{T}, v{T}, v{T + 1}')
    wave_reduce('v_add_f32', T)
    rnd(T, T)
    a(f'v_readlane_b32 s42, v{T}, 63')
    a('s_not_b32 s43, s42')
    a('s_or_b32 s44, s42, 0x80000000')
    a('s_cmp_lt_i32 s42, 0')
    a('s_cselect_b32 s42, s43, s44')
    a('s_and_b32 s42, s42, 0xffff0000')
    a('s_sub_u32 s43, 2047, s13')
    a('s_or_b32 s42, s42, s43')
    a('v_mov_b32 v1, s42')
    a('s_lshl_b32 s43, s12, 2')
    a('s_add_u32 s43, s43, 16384')
    a('v_mov_b32 v6, s43')
    a('ds_write_b32 v6, v1')
    for i in range(8):
        a(f'v_cvt_pk_bf16_f32 v{YR + i}, v{N + 2 * i}, v{N + 2 * i + 1}')
    for i in range(8):
        a(f'v_cvt_pk_bf16_f32 v{WR + i}, v{H + 2 * i}, v{H + 2 * i + 1}')
    a('v_mov_b32 v6, 16384')
    a('s_waitcnt lgkmcnt(0)')
    a('s_barrier')
    a(f'ds_read_b128 v[{T}:{T + 3}], v6')
    a(f'ds_read_b128 v[{T + 4}:{T + 7}], v6 offset:16')
    a('s_waitcnt lgkmcnt(0)')
    a(f'v_max3_u32 v{T}, v{T}, v{T + 1}, v{T + 2}')
    a(f'v_max3_u32 v{T + 3}, v{T + 3}, v{T + 4}, v{T + 5}')
    a(f'v_max3_u32 v{T}, v{T}, v{T + 6}, v{T + 7}')
    a(f'v_max_u32 v{T}, v{T}, v{T + 3}')
    a(f'v_readfirstlane_b32 s43, v{T}')
    a('s_cmp_eq_u32 s43, s42')
    a('s_cbranch_scc0 rows_done')
    a('s_lshl_b32 s43, s2, 12')
    a('v_add_u32 v6, s43, v3')
    a(f'buffer_store_dwordx4 v[{YR}:{YR + 3}], v6, s[36:39], 0 offen')
    a(f'buffer_store_dwordx4 v[{YR + 4}:{YR + 7}], v6, s[36:39], 0 offen offset:1024')
    a(f'buffer_store_dwordx4 v[{WR}:{WR + 3}], v6, s[36:39], 0 offen offset:2048')
    a(f'buffer_store_dwordx4 v[{WR + 4}:{WR + 7}], v6, s[36:39], 0 offen offset:3072')
    a('s_lshl_b32 s43, s2, 2')
    a('v_mov_b32 v6, s43')
    a('s_mov_b64 exec, 1')
    a('buffer_store_dword v1, v6, s[32:35], 0 offen')
    a('rows_done:')
    a('s_endpgm')
    return kernel_desc('rows_kernel', 104, 48)


def argmax_key(sdst, vt, srd_keys, vlane16):
    a(f'v_max3_u32 v{vt}, v{vt}, v{vt + 1}, v{vt + 2}')
    a(f'v_max_u32 v{vt}, v{vt}, v{vt + 3}')
    wave_reduce('v_max_u32', vt)
    a(f'v_readlane_b32 s{sdst}, v{vt}, 63')


def k_ffn():
    kernel_begin(a, 'ffn_kernel')
    a('s_cmp_ge_u32 s2, 224')
    a('s_cbranch_scc1 ffn_done')
    a('s_load_dwordx4 s[4:7], s[0:1], 64')
    a('s_load_dwordx2 s[8:9], s[0:1], 80')
    a('s_load_dwordx2 s[10:11], s[0:1], 104')
    a('s_and_b32 s12, s2, 7')
    a('s_mul_i32 s12, s12, 28')
    a('s_lshr_b32 s13, s2, 3')
    a('s_add_u32 s12, s12, s13')
    a('v_and_b32 v1, 63, v0')
    a('v_lshlrev_b32 v1, 4, v1')
    a('v_lshrrev_b32 v2, 1, v0')
    a('v_and_b32 v3, 1, v0')
    a('v_mul_u32_u24 v4, %d, v2' % (8 * 7168))
    a('v_lshl_add_u32 v4, v3, 4, v4')
    a('s_lshl_b32 s13, s12, 5')
    a('v_add_u32 v4, s13, v4')
    a('s_lshl_b32 s13, s12, 15')
    a('v_lshlrev_b32 v5, 3, v0')
    a('v_add_u32 v5, s13, v5')
    for r in range(1, 8):
        a(f's_mov_b32 s{56 + r}, {7168 * r}')
        a(f's_mov_b32 s{64 + r}, {4096 * r}')
    a('s_waitcnt lgkmcnt(0)')
    srd(16, 4, 1024 * 7168)
    srd(20, 6, 1024 * 7168)
    srd(24, 8, 3584 * 2048)
    srd(28, 10, 1024, WS_KEYS)
    srd(32, 10, 1 << 20, WS_CAND)
    srd(36, 10, 224 * 4096, WS_PART)
    KY, XS, G, U, DN = 8, 12, 16, 48, 80
    a(f'buffer_load_dwordx4 v[{KY}:{KY + 3}], v1, s[28:31], 0 offen')
    for r in range(8):
        so = '0' if r == 0 else f's{56 + r}'
        a(f'buffer_load_dwordx4 v[{G + 4 * r}:{G + 4 * r + 3}], v4, s[16:19], {so} offen nt')
        a(f'buffer_load_dwordx4 v[{U + 4 * r}:{U + 4 * r + 3}], v4, s[20:23], {so} offen nt')
    for r in range(16):
        so = '0' if r < 2 else f's{64 + (r >> 1)}'
        a(f'buffer_load_dwordx2 v[{DN + 2 * r}:{DN + 2 * r + 1}], v5, s[24:27], {so} offen offset:{(r & 1) * 2048} nt')
    a('s_waitcnt vmcnt(32)')
    argmax_key(40, KY, None, None)
    a('s_and_b32 s41, s40, 0xffff')
    a('s_sub_u32 s41, 2047, s41')
    a('s_lshr_b32 s41, s41, 3')
    a('s_lshl_b32 s41, s41, 12')
    a('v_lshlrev_b32 v6, 4, v2')
    a(f'buffer_load_dwordx4 v[{XS}:{XS + 3}], v6, s[32:35], s41 offen')
    XF, AC, T = 112, 120, 136
    a('s_waitcnt vmcnt(0)')
    for i in range(4):
        unpack(XF + 2 * i, XF + 2 * i + 1, XS + i)
    for m, base in ((0, G), (1, U)):
        for r in range(8):
            for c in range(4):
                unpack(T, T + 1, base + 4 * r + c)
                d = AC + 8 * m + 2 * c
                xp = XF + (r & ~1)
                sel = 'op_sel:[0,1,0] op_sel_hi:[1,1,1]' if (r & 1) else 'op_sel:[0,0,0] op_sel_hi:[1,0,1]'
                if r == 0:
                    a(f'v_pk_mul_f32 v[{d}:{d + 1}], v[{T}:{T + 1}], v[{xp}:{xp + 1}] op_sel:[0,0] op_sel_hi:[1,0]')
                else:
                    a(f'v_pk_fma_f32 v[{d}:{d + 1}], v[{T}:{T + 1}], v[{xp}:{xp + 1}], v[{d}:{d + 1}] {sel}')
    for sh in (2, 4, 8):
        for i in range(16):
            a(f'v_add_f32_dpp v{AC + i}, v{AC + i}, v{AC + i} row_shr:{sh} row_mask:0xf bank_mask:0xf bound_ctrl:0')
    a('v_lshrrev_b32 v6, 4, v0')
    a('v_lshlrev_b32 v6, 7, v6')
    a('v_lshl_add_u32 v6, v3, 5, v6')
    a('s_mov_b32 s42, 0xc000c000')
    a('s_mov_b32 s43, 0xc000c000')
    a('s_mov_b64 exec, s[42:43]')
    for m in range(2):
        a(f'ds_write_b128 v6, v[{AC + 8 * m}:{AC + 8 * m + 3}] offset:{64 * m}')
        a(f'ds_write_b128 v6, v[{AC + 8 * m + 4}:{AC + 8 * m + 7}] offset:{64 * m + 16}')
    a('s_mov_b64 exec, -1')
    a('v_and_b32 v7, 15, v0')
    a('v_bfe_u32 v6, v0, 4, 2')
    a('v_lshlrev_b32 v6, 9, v6')
    a('v_lshl_add_u32 v6, v7, 2, v6')
    a('s_waitcnt lgkmcnt(0)')
    a('s_barrier')
    for q in range(4):
        a(f'ds_read2_b32 v[{T + 2 * q}:{T + 2 * q + 1}], v6 offset0:{32 * q} offset1:{32 * q + 16}')
    a('s_waitcnt lgkmcnt(0)')
    a(f'v_pk_add_f32 v[{T}:{T + 1}], v[{T}:{T + 1}], v[{T + 2}:{T + 3}]')
    a(f'v_pk_add_f32 v[{T + 4}:{T + 5}], v[{T + 4}:{T + 5}], v[{T + 6}:{T + 7}]')
    a(f'v_pk_add_f32 v[{T}:{T + 1}], v[{T}:{T + 1}], v[{T + 4}:{T + 5}]')
    for reg in (T, T + 1):
        a(f'v_mov_b32 v{T + 2}, v{reg}')
        a(f'v_permlane16_swap_b32 v{reg}, v{T + 2}')
        a(f'v_add_f32 v{reg}, v{reg}, v{T + 2}')
        a(f'v_mov_b32 v{T + 2}, v{reg}')
        a(f'v_permlane32_swap_b32 v{reg}, v{T + 2}')
        a(f'v_add_f32 v{reg}, v{reg}, v{T + 2}')
    rnd(T, T)
    rnd(T + 1, T + 1)
    a(f'v_mul_f32 v{T + 2}, 0xbfb8aa3b, v{T}')
    a(f'v_exp_f32 v{T + 2}, v{T + 2}')
    a(f'v_add_f32 v{T + 2}, 1.0, v{T + 2}')
    a(f'v_rcp_f32 v{T + 2}, v{T + 2}')
    a(f'v_mul_f32 v{T}, v{T}, v{T + 2}')
    rnd(T, T)
    a(f'v_mul_f32 v{T}, v{T}, v{T + 1}')
    rnd(T, T)
    for r in range(16):
        a(f'v_readlane_b32 s{64 + r}, v{T}, {r}')
    for r in range(16):
        unpack(T + 4, T + 5, DN + 2 * r)
        unpack(T + 6, T + 7, DN + 2 * r + 1)
        for c in range(4):
            if r == 0:
                a(f'v_mul_f32 v{AC + c}, s{64 + r}, v{T + 4 + c}')
            else:
                a(f'v_fmac_f32 v{AC + c}, s{64 + r}, v{T + 4 + c}')
    a('s_lshl_b32 s13, s12, 12')
    a('v_lshlrev_b32 v6, 4, v0')
    a(f'buffer_store_dwordx4 v[{AC}:{AC + 3}], v6, s[36:39], s13 offen')
    a('ffn_done:')
    a('s_endpgm')
    return kernel_desc('ffn_kernel', 144, 88)


def k_fin():
    kernel_begin(a, 'fin_kernel')
    a('s_cmp_ge_u32 s2, 32')
    a('s_cbranch_scc1 fin_done')
    a('s_load_dwordx2 s[8:9], s[0:1], 88')
    a('s_load_dwordx2 s[10:11], s[0:1], 104')
    a('v_and_b32 v1, 63, v0')
    a('v_lshlrev_b32 v1, 4, v1')
    a('v_and_b32 v2, 7, v0')
    a('v_lshrrev_b32 v3, 3, v0')
    a('v_lshlrev_b32 v4, 12, v3')
    a('v_lshl_add_u32 v4, v2, 4, v4')
    a('s_lshl_b32 s12, s2, 7')
    a('v_add_u32 v4, s12, v4')
    for r in range(1, 7):
        a(f's_mov_b32 s{56 + r}, {32 * 4096 * r}')
    a('s_waitcnt lgkmcnt(0)')
    srd(24, 8, MB4)
    srd(28, 10, 1024, WS_KEYS)
    srd(32, 10, 1 << 20, WS_CAND)
    srd(36, 10, 224 * 4096, WS_PART)
    KY, P = 8, 12
    a(f'buffer_load_dwordx4 v[{KY}:{KY + 3}], v1, s[28:31], 0 offen')
    for r in range(7):
        so = '0' if r == 0 else f's{56 + r}'
        a(f'buffer_load_dwordx4 v[{P + 4 * r}:{P + 4 * r + 3}], v4, s[36:39], {so} offen')
    a('s_waitcnt vmcnt(7)')
    argmax_key(40, KY, None, None)
    a('s_and_b32 s41, s40, 0xffff')
    a('s_sub_u32 s41, 2047, s41')
    a('s_lshr_b32 s42, s41, 3')
    a('s_lshl_b32 s42, s42, 12')
    a('s_lshl_b32 s43, s2, 6')
    a('s_add_u32 s42, s42, s43')
    a('s_lshl_b32 s44, s41, 11')
    a('s_add_u32 s44, s44, s43')
    a('v_and_b32 v5, 31, v0')
    a('v_lshlrev_b32 v6, 1, v5')
    a('buffer_load_ushort v40, v6, s[32:35], s42 offen')
    a('buffer_load_ushort v41, v6, s[32:35], s42 offen offset:2048')
    a('s_and_b32 s45, s40, 0xffff0000')
    a('s_xor_b32 s46, s45, 0x80000000')
    a('s_xor_b32 s47, s45, 0xffff0000')
    a('s_cmp_lt_i32 s45, 0')
    a('s_cselect_b32 s45, s46, s47')
    a('v_mov_b32 v42, 0xbfb8aa3b')
    a('v_mul_f32 v42, s45, v42')
    a('v_exp_f32 v42, v42')
    a('v_add_f32 v42, 1.0, v42')
    a('v_rcp_f32 v42, v42')
    rnd(42, 42)
    a('s_waitcnt vmcnt(2)')
    for r in range(1, 7):
        a(f'v_pk_add_f32 v[{P}:{P + 1}], v[{P}:{P + 1}], v[{P + 4 * r}:{P + 4 * r + 1}]')
        a(f'v_pk_add_f32 v[{P + 2}:{P + 3}], v[{P + 2}:{P + 3}], v[{P + 4 * r + 2}:{P + 4 * r + 3}]')
    a('v_lshlrev_b32 v7, 4, v0')
    a(f'ds_write_b128 v7, v[{P}:{P + 3}]')
    a('v_lshrrev_b32 v7, 5, v0')
    a('v_lshlrev_b32 v7, 9, v7')
    a('v_lshl_add_u32 v7, v5, 2, v7')
    a('s_waitcnt lgkmcnt(0)')
    a('s_barrier')
    a('ds_read2_b32 v[16:17], v7 offset0:0 offset1:32')
    a('ds_read2_b32 v[18:19], v7 offset0:64 offset1:96')
    a('s_waitcnt lgkmcnt(0)')
    a('v_pk_add_f32 v[16:17], v[16:17], v[18:19]')
    a('v_add_f32 v16, v16, v17')
    a('v_lshlrev_b32 v7, 2, v0')
    a('ds_write_b32 v7, v16 offset:4096')
    a('v_lshlrev_b32 v7, 2, v5')
    a('s_waitcnt lgkmcnt(0)')
    a('s_barrier')
    for q in range(4):
        a(f'ds_read2_b32 v[{16 + 2 * q}:{17 + 2 * q}], v7 offset0:{0} offset1:{32}' if False else
          f'ds_read_b32 v{16 + 2 * q}, v7 offset:{4096 + 256 * q}')
        a(f'ds_read_b32 v{17 + 2 * q}, v7 offset:{4096 + 256 * q + 128}')
    a('s_waitcnt lgkmcnt(0)')
    a('v_pk_add_f32 v[16:17], v[16:17], v[18:19]')
    a('v_pk_add_f32 v[20:21], v[20:21], v[22:23]')
    a('v_pk_add_f32 v[16:17], v[16:17], v[20:21]')
    a('v_add_f32 v16, v16, v17')
    rnd(16, 16)
    a('v_mul_f32 v16, v16, v42')
    rnd(16, 16)
    a('s_waitcnt vmcnt(0)')
    a('v_lshlrev_b32 v40, 16, v40')
    a('v_lshlrev_b32 v41, 16, v41')
    a('v_add_f32 v16, v16, v40')
    rnd(16, 16)
    a('v_add_f32 v16, v16, v41')
    a('v_cvt_pk_bf16_f32 v16, v16, v16')
    a('v_cmp_gt_u32 vcc, 32, v0')
    a('s_and_saveexec_b64 s[46:47], vcc')
    a('s_cbranch_execz fin_done')
    a('buffer_store_short v16, v6, s[24:27], s44 offen')
    a('fin_done:')
    a('s_endpgm')
    return kernel_desc('fin_kernel', 48, 72)


launch = '''; @launch kernel=prep_kernel grid=(256,1,1) block=(256,1,1) lds=16896
; @launch kernel=conv_kernel grid=(256,1,1) block=(256,1,1) lds=%d
; @launch kernel=rows_kernel grid=(256,1,1) block=(512,1,1) lds=16448
; @launch kernel=ffn_kernel grid=(224,1,1) block=(256,1,1) lds=2048
; @launch kernel=fin_kernel grid=(32,1,1) block=(256,1,1) lds=5120
''' % CONV_LDS

descs = [k_prep(), k_conv(), k_rows(), k_ffn(), k_fin()]
text = HEADER + launch + '.amdgcn_target "amdgcn-amd-amdhsa--gfx950"\n' + a.render() + ''.join(descs)
out = sys.argv[1] if len(sys.argv) > 1 else 'cdna_kernels/%s.s' % NAME
open(out, 'w').write(text)
print('wrote', out, len(text))
```

```python
import sys
from asmlib import *

NAME = 'sequential_preLN__ssm_conv_h3__moe_arch_mod__prompt'
HEADER = open('cdna_kernels/%s.s.ref' % NAME).read().split('; Override launch')[0]

WS_UT = 0
WS_Y = 4 << 20
WS_KEYS = 8 << 20
WS_CAND = (8 << 20) + 65536
WS_PART = 10 << 20
MB4 = 4 << 20

a = Asm()
STAMPS = '--stamps' in sys.argv
WS_STAMP = 16 << 20
_st = {'n': 0, 'k': 0}


def stamp_begin(kidx):
    _st['n'] = 0
    _st['k'] = kidx
    stamp()


def stamp():
    if not STAMPS:
        return
    n = _st['n']
    assert n < 5
    a(f's_memrealtime s[{90 + 2 * n}:{91 + 2 * n}]')
    _st['n'] += 1


DBGST = '--dbgstamps' in sys.argv
if DBGST:
    STAMPS = True


def dbg_flush():
    a('s_waitcnt vmcnt(0) lgkmcnt(0)')
    stamp()
    a('s_load_dwordx2 s[84:85], s[0:1], 96')
    a('s_mov_b64 exec, -1')
    a('v_readfirstlane_b32 s88, v0')
    a('s_or_b32 s88, s88, s2')
    a('s_waitcnt lgkmcnt(0)')
    lab = a.newlabel('dbgskip')
    a('s_cmp_eq_u32 s88, 0')
    a(f's_cbranch_scc0 {lab}')
    a(f's_add_u32 s84, s84, {512 * (4 - _st["k"])}')
    a('s_addc_u32 s85, s85, 0')
    a('s_mov_b32 s86, 256')
    a('s_mov_b32 s87, 0x00020000')
    a('s_mov_b64 exec, 1')
    a('v_mov_b32 v1, 0')
    a('v_mov_b32 v2, s90')
    a(f'v_mov_b32 v3, s{90 + 2 * (_st["n"] - 1)}')
    a(f'buffer_store_dwordx2 v[2:3], v1, s[84:87], 0 offen offset:{8 * _st["k"]}')
    a(f'{lab}:')


def stamp_flush(wsreg):
    if DBGST:
        return dbg_flush()
    return stamp_flush2(wsreg)


def stamp_flush2(wsreg):
    if not STAMPS:
        return
    a('s_waitcnt vmcnt(0) lgkmcnt(0)')
    stamp()
    a('s_mov_b64 exec, -1')
    a('v_lshrrev_b32 v1, 6, v0')
    a(f's_add_u32 s88, s2, {_st["k"] * 256}')
    a('s_lshl_b32 s88, s88, 9')
    a('v_lshlrev_b32 v1, 6, v1')
    a('v_add_u32 v1, s88, v1')
    a(f's_add_u32 s84, s{wsreg}, {WS_STAMP}')
    a(f's_addc_u32 s85, s{wsreg + 1}, 0')
    a('s_mov_b32 s86, 0x100000')
    a('s_mov_b32 s87, 0x00020000')
    a('s_waitcnt lgkmcnt(0)')
    a('s_mov_b64 exec, 1')
    for i in range(_st['n']):
        a(f'v_mov_b32 v2, s{90 + 2 * i}')
        a(f'v_mov_b32 v3, s{91 + 2 * i}')
        a(f'buffer_store_dwordx2 v[2:3], v1, s[84:87], 0 offen offset:{8 * i}')


def srd(dst, base, nbytes, off=0):
    if off:
        a(f's_add_u32 s{dst}, s{base}, {off}')
        a(f's_addc_u32 s{dst + 1}, s{base + 1}, 0')
    else:
        a(f's_mov_b32 s{dst}, s{base}')
        a(f's_mov_b32 s{dst + 1}, s{base + 1}')
    a(f's_mov_b32 s{dst + 2}, {nbytes}')
    a(f's_mov_b32 s{dst + 3}, 0x00020000')


def rnd(d, s):
    a(f'v_cvt_pk_bf16_f32 v{d}, 0, v{s}')


def unpack(dlo, dhi, s):
    a(f'v_lshlrev_b32 v{dlo}, 16, v{s}')
    a(f'v_and_b32 v{dhi}, 0xffff0000, v{s}')


def wave_reduce(op, v):
    for sh in (1, 2, 4, 8):
        a(f'{op}_dpp v{v}, v{v}, v{v} row_shr:{sh} row_mask:0xf bank_mask:0xf bound_ctrl:0')
    a(f'{op}_dpp v{v}, v{v}, v{v} row_bcast:15 row_mask:0xa bank_mask:0xf')
    a(f'{op}_dpp v{v}, v{v}, v{v} row_bcast:31 row_mask:0xc bank_mask:0xf')


def k_prep():
    kernel_begin(a, 'prep_kernel')
    a('s_cmp_ge_u32 s2, 256')
    a('s_cbranch_scc1 prep_done')
    stamp_begin(0)
    a('s_load_dwordx4 s[4:7], s[0:1], 8')
    a('s_load_dwordx2 s[8:9], s[0:1], 24')
    a('s_load_dwordx2 s[10:11], s[0:1], 104')
    a('s_lshr_b32 s12, s2, 4')
    a('s_and_b32 s13, s2, 15')
    a('v_and_b32 v1, 15, v0')
    a('v_lshrrev_b32 v2, 4, v0')
    a('s_lshl_b32 s14, s12, 18')
    a('s_lshl_b32 s15, s13, 7')
    a('s_add_u32 s14, s14, s15')
    a('v_lshlrev_b32 v3, 14, v2')
    a('v_lshl_add_u32 v3, v1, 3, v3')
    a('v_add_u32 v3, s14, v3')
    a('v_subrev_u32 v4, 6144, v3')
    a('v_mov_b32 v5, 0x80000000')
    a('v_cmp_gt_u32 vcc, 6144, v3')
    a('v_cndmask_b32 v4, v4, v5, vcc')
    a('s_lshl_b32 s15, s13, 9')
    a('v_lshlrev_b32 v5, 5, v1')
    a('v_add_u32 v5, s15, v5')
    a('s_mov_b32 s40, 4096')
    a('s_mov_b32 s41, 8192')
    a('s_mov_b32 s42, 12288')
    a('s_waitcnt lgkmcnt(0)')
    srd(16, 4, MB4)
    srd(20, 6, MB4)
    srd(24, 8, 8192)
    srd(28, 10, MB4, WS_UT)
    KR, VR, WR = 8, 30, 46
    a(f'buffer_load_dwordx4 v[{WR}:{WR + 3}], v5, s[24:27], 0 offen')
    a(f'buffer_load_dwordx4 v[{WR + 4}:{WR + 7}], v5, s[24:27], 0 offen offset:16')
    so = ['0', 's40', 's41', 's42']
    for r in range(3):
        a(f'buffer_load_dwordx2 v[{KR + 2 * r}:{KR + 2 * r + 1}], v4, s[16:19], {so[r >> 1]} offen offset:{(r & 1) * 2048} nt')
    for r in range(8):
        a(f'buffer_load_dwordx2 v[{KR + 6 + 2 * r}:{KR + 7 + 2 * r}], v3, s[16:19], {so[r >> 1]} offen offset:{(r & 1) * 2048} nt')
    for r in range(8):
        a(f'buffer_load_dwordx2 v[{VR + 2 * r}:{VR + 2 * r + 1}], v3, s[20:23], {so[r >> 1]} offen offset:{(r & 1) * 2048} nt')
    a('v_mul_u32_u24 v6, 1040, v1')
    a('v_sub_u32 v7, 15, v2')
    a('v_lshl_add_u32 v6, v7, 4, v6')
    WF = 54
    KF = 70
    VF = 92
    P = 108
    ACC = 110
    O = 112
    CH = 128
    a('s_waitcnt vmcnt(19)')
    for p in range(2):
        for jj in range(2):
            j = 2 * p + jj
            unpack(WF + 8 * p + 0 + jj, WF + 8 * p + 2 + jj, WR + 2 * j)
            unpack(WF + 8 * p + 4 + jj, WF + 8 * p + 6 + jj, WR + 2 * j + 1)
    a('s_waitcnt vmcnt(0)')
    stamp()
    for p in range(2):
        for r in range(11):
            unpack(KF + 2 * r, KF + 2 * r + 1, KR + 2 * r + p)
        for r in range(8):
            unpack(VF + 2 * r, VF + 2 * r + 1, VR + 2 * r + p)
        for r in range(8):
            for t in range(4):
                tap = 3 - t
                dst = ACC if t == 0 else P
                a(f'v_pk_mul_f32 v[{dst}:{dst + 1}], v[{KF + 2 * (r + t)}:{KF + 2 * (r + t) + 1}], v[{WF + 8 * p + 2 * tap}:{WF + 8 * p + 2 * tap + 1}]')
                rnd(dst, dst)
                rnd(dst + 1, dst + 1)
                if t:
                    a(f'v_pk_add_f32 v[{ACC}:{ACC + 1}], v[{ACC}:{ACC + 1}], v[{P}:{P + 1}]')
                    rnd(ACC, ACC)
                    rnd(ACC + 1, ACC + 1)
            a(f'v_pk_mul_f32 v[{O + 2 * r}:{O + 2 * r + 1}], v[{ACC}:{ACC + 1}], v[{VF + 2 * r}:{VF + 2 * r + 1}]')
        for jj in range(2):
            for m in range(4):
                a(f'v_cvt_pk_bf16_f32 v{CH + 4 * jj + m}, v{O + 2 * (7 - 2 * m) + jj}, v{O + 2 * (6 - 2 * m) + jj}')
            a(f'ds_write_b128 v6, v[{CH + 4 * jj}:{CH + 4 * jj + 3}] offset:{(2 * p + jj) * 256}')
    stamp()
    a('v_lshrrev_b32 v8, 6, v0')
    a('v_mul_u32_u24 v8, 1040, v8')
    a('v_and_b32 v9, 63, v0')
    a('v_lshl_add_u32 v8, v9, 4, v8')
    a('s_lshl_b32 s14, s13, 18')
    a('s_sub_u32 s15, 15, s12')
    a('s_lshl_b32 s15, s15, 8')
    a('s_add_u32 s14, s14, s15')
    a('v_lshlrev_b32 v9, 12, v2')
    a('v_lshl_add_u32 v9, v1, 4, v9')
    a('v_add_u32 v9, s14, v9')
    a('s_mov_b32 s40, 0x10000')
    a('s_mov_b32 s41, 0x20000')
    a('s_mov_b32 s42, 0x30000')
    a('s_waitcnt lgkmcnt(0)')
    a('s_barrier')
    for p in range(4):
        a(f'ds_read_b128 v[{12 + 4 * p}:{15 + 4 * p}], v8 offset:{4160 * p}')
    for p in range(4):
        a(f's_waitcnt lgkmcnt({3 - p})')
        a(f'buffer_store_dwordx4 v[{12 + 4 * p}:{15 + 4 * p}], v9, s[28:31], {so[p]} offen')
    a('prep_fl:')
    stamp_flush(10)
    a('prep_done:')
    a('s_endpgm')
    return kernel_desc('prep_kernel', 136, 100 if STAMPS else 48)


GS = 4160
UOFF = 8 * GS
WSTRIDE = 37952
CONV_LDS = 4 * WSTRIDE


def k_conv():
    kernel_begin(a, 'conv_kernel')
    a('s_cmp_ge_u32 s2, 256')
    a('s_cbranch_scc1 conv_done')
    stamp_begin(1)
    a('s_load_dwordx4 s[4:7], s[0:1], 32')
    a('s_load_dwordx2 s[10:11], s[0:1], 104')
    a('v_lshrrev_b32 v1, 6, v0')
    a('v_and_b32 v2, 63, v0')
    a('v_readfirstlane_b32 s12, v1')
    a('s_lshl_b32 s13, s2, 2')
    a('s_add_u32 s13, s13, s12')
    a('s_mul_i32 s14, s12, %d' % WSTRIDE)
    a('s_lshl_b32 s15, s13, 12')
    a('v_lshlrev_b32 v3, 4, v2')
    a('v_subrev_u32 v4, 16, v3')
    a('s_lshl_b32 s33, s13, 1')
    a('s_and_b32 s33, s33, 0xfffffffc')
    a('s_waitcnt lgkmcnt(0)')
    a('s_add_u32 s16, s4, s15')
    a('s_addc_u32 s17, s5, 0')
    a('s_mov_b32 s18, 4096')
    a('s_mov_b32 s19, 0x00020000')
    a('s_add_u32 s20, s10, s15')
    a('s_addc_u32 s21, s11, 0')
    a('s_mov_b32 s22, 4096')
    a('s_mov_b32 s23, 0x00020000')
    srd(24, 10, MB4, WS_Y)
    a('s_load_dword s34, s[6:7], s33')
    W = 16
    U = 48
    for i in range(4):
        if i == 0:
            a(f'buffer_load_dwordx4 v[{W}:{W + 3}], v4, s[16:19], 0 offen nt')
        else:
            a(f'buffer_load_dwordx4 v[{W + 8 * i}:{W + 8 * i + 3}], v3, s[16:19], 0 offen offset:{1024 * i - 16} nt')
        a(f'buffer_load_dwordx4 v[{W + 8 * i + 4}:{W + 8 * i + 7}], v3, s[16:19], 0 offen offset:{1024 * i} nt')
    for i in range(4):
        a(f'buffer_load_dwordx4 v[{U + 4 * i}:{U + 4 * i + 3}], v3, s[20:23], 0 offen offset:{1024 * i}')
    a('v_add_u32 v5, s14, v3')
    a('v_and_b32 v6, 15, v2')
    a('v_lshrrev_b32 v7, 4, v2')
    a('v_and_b32 v8, 7, v2')
    a(f'v_mul_u32_u24 v8, {GS}, v8')
    a('v_add_u32 v8, s14, v8')
    a('v_bfe_u32 v9, v2, 3, 1')
    a('v_add_u32 v9, v9, v7')
    a('v_lshl_add_u32 v9, v9, 4, v8')
    a(f's_add_u32 s35, s14, {UOFF + 480}')
    a('v_lshlrev_b32 v10, 5, v6')
    a('v_sub_u32 v10, s35, v10')
    a('v_lshl_add_u32 v11, v7, 4, v10')
    a('v_lshlrev_b32 v12, 3, v7')
    a('v_sub_u32 v13, v10, v12')
    a('v_add_u32 v13, 24, v13')
    a('v_lshl_add_u32 v14, v6, 5, v12')
    a('v_add_u32 v14, s14, v14')
    Z = 64
    for j in range(4):
        a(f'v_mov_b32 v{Z + j}, 0')
    a('s_mov_b64 exec, 0xff')
    a(f'ds_write_b128 v8, v[{Z}:{Z + 3}]')
    a('s_mov_b64 exec, 0x3fffffff')
    a(f'ds_write_b128 v5, v[{Z}:{Z + 3}] offset:{UOFF + 4096}')
    a('s_mov_b64 exec, -1')
    T1, T2, T3 = 68, 74, 80
    if STAMPS:
        a('s_waitcnt vmcnt(10)')
    stamp()
    for i in range(4):
        w = W + 8 * i
        a(f's_waitcnt vmcnt({10 - 2 * i})')
        for j in range(6):
            a(f'v_alignbit_b32 v{T1 + j}, v{w + j + 1}, v{w + j}, 16')
        for j in range(6):
            a(f'v_alignbit_b32 v{T2 + j}, v{w + j + 2}, v{w + j + 1}, 16')
        for j in range(6):
            a(f'v_mov_b32 v{T3 + j}, v{w + j + 1}')
        src = {7: w + 4, 3: w + 2, 1: T3, 5: T3 + 2, 0: T1, 4: T1 + 2, 2: T2, 6: T2 + 2}
        for e in (7, 3, 0, 4, 2, 6, 1, 5):
            a(f'ds_write_b128 v5, v[{src[e]}:{src[e] + 3}] offset:{e * GS + 1024 * i + 16}')
    for i in range(4):
        a(f's_waitcnt vmcnt({3 - i})')
        a(f'ds_write_b128 v5, v[{U + 4 * i}:{U + 4 * i + 3}] offset:{UOFF + 1024 * i}')
    a('s_waitcnt lgkmcnt(0)')
    stamp()
    ACC = 16
    FR = [96, 160]

    def reads(c):
        s = FR[c & 1]
        out = []
        for j in range(8):
            out.append(f'ds_read_b128 v[{s + 4 * j}:{s + 4 * j + 3}], v9 offset:{64 * (8 * j + c)}')
            out.append(f'ds_read_b128 v[{s + 32 + 4 * j}:{s + 32 + 4 * j + 3}], v11 offset:{64 * (56 - (8 * j - c))}')
        return out

    for r in reads(0):
        a(r)
    for c in range(8):
        s = FR[c & 1]
        a('s_waitcnt lgkmcnt(0)')
        nxt = reads(c + 1) if c < 7 else []
        k = 0
        for n in range(8):
            for z in range(8 - n):
                w = n + z
                cc = '0' if (c == 0 and n == 0) else f'v[{ACC + 4 * w}:{ACC + 4 * w + 3}]'
                a(f'v_mfma_f32_16x16x32_bf16 v[{ACC + 4 * w}:{ACC + 4 * w + 3}], v[{s + 4 * n}:{s + 4 * n + 3}], v[{s + 32 + 4 * z}:{s + 32 + 4 * z + 3}], {cc}')
                if nxt and k % 2 == 0:
                    a(nxt.pop(0))
                k += 1
        assert not nxt
    stamp()
    E = 96
    for w in range(8):
        a(f'ds_read_b64 v[{E + 2 * w}:{E + 2 * w + 1}], v13 offset:{512 * (7 - w)}')
    a('s_and_b32 s36, s13, 1')
    a('s_lshl_b32 s37, s34, 16')
    a('s_and_b32 s38, s34, 0xffff0000')
    a('s_cmp_eq_u32 s36, 0')
    a('s_cselect_b32 s34, s37, s38')
    a('s_waitcnt lgkmcnt(0)')
    T = 112
    for w in range(8):
        unpack(T + 3, T + 2, E + 2 * w)
        unpack(T + 1, T + 0, E + 2 * w + 1)
        for r in range(4):
            a(f'v_mul_f32 v{T + r}, s34, v{T + r}')
        for r in range(4):
            rnd(T + r, T + r)
            rnd(ACC + 4 * w + r, ACC + 4 * w + r)
        for r in range(4):
            a(f'v_add_f32 v{T + r}, v{T + r}, v{ACC + 4 * w + r}')
        a(f'v_cvt_pk_bf16_f32 v{T + 4}, v{T}, v{T + 1}')
        a(f'v_cvt_pk_bf16_f32 v{T + 5}, v{T + 2}, v{T + 3}')
        a(f'ds_write_b64 v14, v[{T + 4}:{T + 5}] offset:{512 * w}')
    a('v_and_b32 v1, 3, v0')
    a('v_lshrrev_b32 v2, 2, v0')
    a(f'v_mul_u32_u24 v3, {WSTRIDE}, v1')
    a('v_lshl_add_u32 v3, v2, 4, v3')
    a('v_lshlrev_b32 v4, 14, v2')
    a('v_lshl_add_u32 v4, v1, 4, v4')
    a('s_lshl_b32 s36, s2, 6')
    a('v_add_u32 v4, s36, v4')
    a('s_mov_b32 s40, 0x100000')
    a('s_mov_b32 s41, 0x200000')
    a('s_mov_b32 s42, 0x300000')
    so = ['0', 's40', 's41', 's42']
    a('s_waitcnt lgkmcnt(0)')
    a('s_barrier')
    for p in range(4):
        a(f'ds_read_b128 v[{16 + 4 * p}:{19 + 4 * p}], v3 offset:{1024 * p}')
    for p in range(4):
        a(f's_waitcnt lgkmcnt({3 - p})')
        a(f'buffer_store_dwordx4 v[{16 + 4 * p}:{19 + 4 * p}], v4, s[24:27], {so[p]} offen')
    a('conv_fl:')
    stamp_flush(10)
    a('conv_done:')
    a('s_endpgm')
    return kernel_desc('conv_kernel', 224, 100 if STAMPS else 48)


def layernorm(X, N, T, sreg):
    for i in range(4):
        a(f'v_pk_add_f32 v[{T + 2 * i}:{T + 2 * i + 1}], v[{X + 4 * i}:{X + 4 * i + 1}], v[{X + 4 * i + 2}:{X + 4 * i + 3}]')
    a(f'v_pk_add_f32 v[{T}:{T + 1}], v[{T}:{T + 1}], v[{T + 2}:{T + 3}]')
    a(f'v_pk_add_f32 v[{T + 4}:{T + 5}], v[{T + 4}:{T + 5}], v[{T + 6}:{T + 7}]')
    a(f'v_pk_add_f32 v[{T}:{T + 1}], v[{T}:{T + 1}], v[{T + 4}:{T + 5}]')
    a(f'v_add_f32 v{T}, v{T}, v{T + 1}')
    wave_reduce('v_add_f32', T)
    a(f'v_readlane_b32 s{sreg}, v{T}, 63')
    M = T + 16
    a(f'v_mov_b32 v{M}, 0x3a800000')
    a(f'v_mul_f32 v{M}, s{sreg}, v{M}')
    for i in range(16):
        a(f'v_sub_f32 v{T + i}, v{X + i}, v{M}')
    a(f'v_pk_mul_f32 v[{T}:{T + 1}], v[{T}:{T + 1}], v[{T}:{T + 1}]')
    a(f'v_pk_mul_f32 v[{T + 2}:{T + 3}], v[{T + 2}:{T + 3}], v[{T + 2}:{T + 3}]')
    for i in range(2, 8):
        d = T + 2 * (i & 1)
        a(f'v_pk_fma_f32 v[{d}:{d + 1}], v[{T + 2 * i}:{T + 2 * i + 1}], v[{T + 2 * i}:{T + 2 * i + 1}], v[{d}:{d + 1}]')
    a(f'v_pk_add_f32 v[{T}:{T + 1}], v[{T}:{T + 1}], v[{T + 2}:{T + 3}]')
    a(f'v_add_f32 v{T}, v{T}, v{T + 1}')
    wave_reduce('v_add_f32', T)
    a(f'v_readlane_b32 s{sreg}, v{T}, 63')
    V = T + 17
    a(f'v_mov_b32 v{V}, 0x3a800000')
    a(f'v_mul_f32 v{V}, s{sreg}, v{V}')
    rnd(M, M)
    rnd(V, V)
    a(f'v_add_f32 v{V}, 0x3727c5ac, v{V}')
    rnd(V, V)
    a(f'v_sqrt_f32 v{V}, v{V}')
    rnd(V, V)
    a(f'v_rcp_f32 v{V}, v{V}')
    for i in range(16):
        a(f'v_sub_f32 v{N + i}, v{X + i}, v{M}')
    for i in range(16):
        rnd(N + i, N + i)
    for i in range(16):
        a(f'v_mul_f32 v{N + i}, v{N + i}, v{V}')
    for i in range(16):
        rnd(N + i, N + i)


def k_rows():
    kernel_begin(a, 'rows_kernel')
    a('s_cmp_ge_u32 s2, 256')
    a('s_cbranch_scc1 rows_done')
    stamp_begin(2)
    a('s_load_dwordx2 s[4:5], s[0:1], 0')
    a('s_load_dwordx2 s[6:7], s[0:1], 56')
    a('s_load_dwordx2 s[8:9], s[0:1], 88')
    a('s_load_dwordx2 s[10:11], s[0:1], 104')
    a('v_lshrrev_b32 v1, 6, v0')
    a('v_and_b32 v2, 63, v0')
    a('v_readfirstlane_b32 s12, v1')
    a('s_lshl_b32 s13, s2, 3')
    a('s_add_u32 s13, s13, s12')
    a('s_lshl_b32 s14, s13, 11')
    a('v_lshlrev_b32 v3, 4, v2')
    a('v_add_u32 v4, s14, v3')
    a('s_lshl_b32 s15, s2, 14')
    a('v_lshlrev_b32 v5, 5, v0')
    a('v_add_u32 v5, s15, v5')
    a('s_waitcnt lgkmcnt(0)')
    srd(16, 4, MB4)
    srd(20, 6, 2048)
    srd(24, 8, MB4)
    srd(28, 10, MB4, WS_Y)
    srd(32, 10, 1024, WS_KEYS)
    srd(36, 10, 1 << 20, WS_CAND)
    XR, YR, WR = 8, 16, 24
    a(f'buffer_load_dwordx4 v[{XR}:{XR + 3}], v4, s[16:19], 0 offen nt')
    a(f'buffer_load_dwordx4 v[{XR + 4}:{XR + 7}], v4, s[16:19], 0 offen offset:1024 nt')
    a(f'buffer_load_dwordx4 v[{YR}:{YR + 3}], v5, s[28:31], 0 offen')
    a(f'buffer_load_dwordx4 v[{YR + 4}:{YR + 7}], v5, s[28:31], 0 offen offset:16')
    a(f'buffer_load_dwordx4 v[{WR}:{WR + 3}], v3, s[20:23], 0 offen')
    a(f'buffer_load_dwordx4 v[{WR + 4}:{WR + 7}], v3, s[20:23], 0 offen offset:1024')
    a('s_mov_b32 s40, 0x05040100')
    a('s_mov_b32 s41, 0x07060302')
    a('v_lshlrev_b32 v6, 2, v0')
    a('s_lshl_b32 s15, s12, 11')
    a('v_add_u32 v7, s15, v3')
    X, N, T, H = 32, 48, 64, 84
    a('s_waitcnt vmcnt(2)')
    P = T
    stamp()
    for i in range(4):
        a(f'v_perm_b32 v{P + 2 * i}, v{YR + 4 + i}, v{YR + i}, s40')
        a(f'v_perm_b32 v{P + 2 * i + 1}, v{YR + 4 + i}, v{YR + i}, s41')
    for i in range(4):
        a(f'ds_write2st64_b32 v6, v{P + 2 * i}, v{P + 2 * i + 1} offset0:{16 * i} offset1:{16 * i + 8}')
    for i in range(8):
        unpack(X + 2 * i, X + 2 * i + 1, XR + i)
    a('s_waitcnt lgkmcnt(0)')
    a('s_barrier')
    a(f'ds_read_b128 v[{YR}:{YR + 3}], v7')
    a(f'ds_read_b128 v[{YR + 4}:{YR + 7}], v7 offset:1024')
    layernorm(X, N, T, 42)
    a('s_waitcnt lgkmcnt(0)')
    for i in range(8):
        unpack(H + 2 * i, H + 2 * i + 1, YR + i)
    for i in range(8):
        a(f'v_pk_mul_f32 v[{H + 2 * i}:{H + 2 * i + 1}], v[{H + 2 * i}:{H + 2 * i + 1}], v[{N + 2 * i}:{N + 2 * i + 1}]')
    for i in range(16):
        rnd(H + i, H + i)
    for i in range(8):
        a(f'v_pk_add_f32 v[{H + 2 * i}:{H + 2 * i + 1}], v[{H + 2 * i}:{H + 2 * i + 1}], v[{X + 2 * i}:{X + 2 * i + 1}]')
    for i in range(16):
        rnd(H + i, H + i)
    layernorm(H, N, T, 42)
    stamp()
    for i in range(8):
        a(f'v_pk_add_f32 v[{X + 2 * i}:{X + 2 * i + 1}], v[{H + 2 * i}:{H + 2 * i + 1}], v[{N + 2 * i}:{N + 2 * i + 1}]')
    for i in range(8):
        a(f'v_cvt_pk_bf16_f32 v{XR + i}, v{X + 2 * i}, v{X + 2 * i + 1}')
    a(f'buffer_store_dwordx4 v[{XR}:{XR + 3}], v4, s[24:27], 0 offen')
    a(f'buffer_store_dwordx4 v[{XR + 4}:{XR + 7}], v4, s[24:27], 0 offen offset:1024')
    a('s_waitcnt vmcnt(2)')
    for i in range(8):
        unpack(X + 2 * i, X + 2 * i + 1, WR + i)
    a(f'v_pk_mul_f32 v[{T}:{T + 1}], v[{X}:{X + 1}], v[{N}:{N + 1}]')
    a(f'v_pk_mul_f32 v[{T + 2}:{T + 3}], v[{X + 2}:{X + 3}], v[{N + 2}:{N + 3}]')
    for i in range(2, 8):
        d = T + 2 * (i & 1)
        a(f'v_pk_fma_f32 v[{d}:{d + 1}], v[{X + 2 * i}:{X + 2 * i + 1}], v[{N + 2 * i}:{N + 2 * i + 1}], v[{d}:{d + 1}]')
    a(f'v_pk_add_f32 v[{T}:{T + 1}], v[{T}:{T + 1}], v[{T + 2}:{T + 3}]')
    a(f'v_add_f32 v{T}, v{T}, v{T + 1}')
    wave_reduce('v_add_f32', T)
    rnd(T, T)
    a(f'v_readlane_b32 s42, v{T}, 63')
    a('s_not_b32 s43, s42')
    a('s_or_b32 s44, s42, 0x80000000')
    a('s_cmp_lt_i32 s42, 0')
    a('s_cselect_b32 s42, s43, s44')
    a('s_and_b32 s42, s42, 0xffff0000')
    a('s_sub_u32 s43, 2047, s13')
    a('s_or_b32 s42, s42, s43')
    a('v_mov_b32 v1, s42')
    a('s_lshl_b32 s43, s12, 2')
    a('s_add_u32 s43, s43, 16384')
    a('v_mov_b32 v6, s43')
    a('ds_write_b32 v6, v1')
    for i in range(8):
        a(f'v_cvt_pk_bf16_f32 v{YR + i}, v{N + 2 * i}, v{N + 2 * i + 1}')
    for i in range(8):
        a(f'v_cvt_pk_bf16_f32 v{WR + i}, v{H + 2 * i}, v{H + 2 * i + 1}')
    a('v_mov_b32 v6, 16384')
    a('s_waitcnt lgkmcnt(0)')
    a('s_barrier')
    a(f'ds_read_b128 v[{T}:{T + 3}], v6')
    a(f'ds_read_b128 v[{T + 4}:{T + 7}], v6 offset:16')
    a('s_waitcnt lgkmcnt(0)')
    a(f'v_max3_u32 v{T}, v{T}, v{T + 1}, v{T + 2}')
    a(f'v_max3_u32 v{T + 3}, v{T + 3}, v{T + 4}, v{T + 5}')
    a(f'v_max3_u32 v{T}, v{T}, v{T + 6}, v{T + 7}')
    a(f'v_max_u32 v{T}, v{T}, v{T + 3}')
    a(f'v_readfirstlane_b32 s43, v{T}')
    a('s_cmp_eq_u32 s43, s42')
    a('s_cbranch_scc0 rows_fl')
    a('s_lshl_b32 s43, s2, 12')
    a('v_add_u32 v6, s43, v3')
    a(f'buffer_store_dwordx4 v[{YR}:{YR + 3}], v6, s[36:39], 0 offen')
    a(f'buffer_store_dwordx4 v[{YR + 4}:{YR + 7}], v6, s[36:39], 0 offen offset:1024')
    a(f'buffer_store_dwordx4 v[{WR}:{WR + 3}], v6, s[36:39], 0 offen offset:2048')
    a(f'buffer_store_dwordx4 v[{WR + 4}:{WR + 7}], v6, s[36:39], 0 offen offset:3072')
    a('s_lshl_b32 s43, s2, 2')
    a('v_mov_b32 v6, s43')
    a('s_mov_b64 exec, 1')
    a('buffer_store_dword v1, v6, s[32:35], 0 offen')
    a('rows_fl:')
    stamp_flush(10)
    a('rows_done:')
    a('s_endpgm')
    return kernel_desc('rows_kernel', 104, 100 if STAMPS else 48)


def argmax_key(sdst, vt, srd_keys, vlane16):
    a(f'v_max3_u32 v{vt}, v{vt}, v{vt + 1}, v{vt + 2}')
    a(f'v_max_u32 v{vt}, v{vt}, v{vt + 3}')
    wave_reduce('v_max_u32', vt)
    a(f'v_readlane_b32 s{sdst}, v{vt}, 63')


def k_ffn():
    kernel_begin(a, 'ffn_kernel')
    a('s_cmp_ge_u32 s2, 224')
    a('s_cbranch_scc1 ffn_done')
    stamp_begin(3)
    a('s_load_dwordx4 s[4:7], s[0:1], 64')
    a('s_load_dwordx2 s[8:9], s[0:1], 80')
    a('s_load_dwordx2 s[10:11], s[0:1], 104')
    a('s_and_b32 s12, s2, 7')
    a('s_mul_i32 s12, s12, 28')
    a('s_lshr_b32 s13, s2, 3')
    a('s_add_u32 s12, s12, s13')
    a('v_and_b32 v1, 63, v0')
    a('v_lshlrev_b32 v1, 4, v1')
    a('v_lshrrev_b32 v2, 1, v0')
    a('v_and_b32 v3, 1, v0')
    a('v_mul_u32_u24 v4, %d, v2' % (8 * 7168))
    a('v_lshl_add_u32 v4, v3, 4, v4')
    a('s_lshl_b32 s13, s12, 5')
    a('v_add_u32 v4, s13, v4')
    a('s_lshl_b32 s13, s12, 15')
    a('v_lshlrev_b32 v5, 3, v0')
    a('v_add_u32 v5, s13, v5')
    for r in range(1, 8):
        a(f's_mov_b32 s{56 + r}, {7168 * r}')
        a(f's_mov_b32 s{64 + r}, {4096 * r}')
    a('s_waitcnt lgkmcnt(0)')
    srd(16, 4, 1024 * 7168)
    srd(20, 6, 1024 * 7168)
    srd(24, 8, 3584 * 2048)
    srd(28, 10, 1024, WS_KEYS)
    srd(32, 10, 1 << 20, WS_CAND)
    srd(36, 10, 224 * 4096, WS_PART)
    KY, XS, G, U, DN = 8, 12, 16, 48, 80
    a(f'buffer_load_dwordx4 v[{KY}:{KY + 3}], v1, s[28:31], 0 offen')
    for r in range(8):
        so = '0' if r == 0 else f's{56 + r}'
        a(f'buffer_load_dwordx4 v[{G + 4 * r}:{G + 4 * r + 3}], v4, s[16:19], {so} offen nt')
        a(f'buffer_load_dwordx4 v[{U + 4 * r}:{U + 4 * r + 3}], v4, s[20:23], {so} offen nt')
    for r in range(16):
        so = '0' if r < 2 else f's{64 + (r >> 1)}'
        a(f'buffer_load_dwordx2 v[{DN + 2 * r}:{DN + 2 * r + 1}], v5, s[24:27], {so} offen offset:{(r & 1) * 2048} nt')
    a('s_waitcnt vmcnt(32)')
    stamp()
    argmax_key(40, KY, None, None)
    a('s_and_b32 s41, s40, 0xffff')
    a('s_sub_u32 s41, 2047, s41')
    a('s_lshr_b32 s41, s41, 3')
    a('s_lshl_b32 s41, s41, 12')
    a('v_lshlrev_b32 v6, 4, v2')
    a(f'buffer_load_dwordx4 v[{XS}:{XS + 3}], v6, s[32:35], s41 offen')
    XF, AC, T = 112, 120, 136
    a('s_waitcnt vmcnt(0)')
    stamp()
    for i in range(4):
        unpack(XF + 2 * i, XF + 2 * i + 1, XS + i)
    for m, base in ((0, G), (1, U)):
        for r in range(8):
            for c in range(4):
                unpack(T, T + 1, base + 4 * r + c)
                d = AC + 8 * m + 2 * c
                xp = XF + (r & ~1)
                sel = 'op_sel:[0,1,0] op_sel_hi:[1,1,1]' if (r & 1) else 'op_sel:[0,0,0] op_sel_hi:[1,0,1]'
                if r == 0:
                    a(f'v_pk_mul_f32 v[{d}:{d + 1}], v[{T}:{T + 1}], v[{xp}:{xp + 1}] op_sel:[0,0] op_sel_hi:[1,0]')
                else:
                    a(f'v_pk_fma_f32 v[{d}:{d + 1}], v[{T}:{T + 1}], v[{xp}:{xp + 1}], v[{d}:{d + 1}] {sel}')
    for sh in (2, 4, 8):
        for i in range(16):
            a(f'v_add_f32_dpp v{AC + i}, v{AC + i}, v{AC + i} row_shr:{sh} row_mask:0xf bank_mask:0xf bound_ctrl:0')
    a('v_lshrrev_b32 v6, 4, v0')
    a('v_lshlrev_b32 v6, 7, v6')
    a('v_lshl_add_u32 v6, v3, 5, v6')
    a('s_mov_b32 s42, 0xc000c000')
    a('s_mov_b32 s43, 0xc000c000')
    a('s_mov_b64 exec, s[42:43]')
    for m in range(2):
        a(f'ds_write_b128 v6, v[{AC + 8 * m}:{AC + 8 * m + 3}] offset:{64 * m}')
        a(f'ds_write_b128 v6, v[{AC + 8 * m + 4}:{AC + 8 * m + 7}] offset:{64 * m + 16}')
    a('s_mov_b64 exec, -1')
    a('v_and_b32 v7, 15, v0')
    a('v_bfe_u32 v6, v0, 4, 2')
    a('v_lshlrev_b32 v6, 9, v6')
    a('v_lshl_add_u32 v6, v7, 2, v6')
    a('s_waitcnt lgkmcnt(0)')
    a('s_barrier')
    for q in range(4):
        a(f'ds_read2_b32 v[{T + 2 * q}:{T + 2 * q + 1}], v6 offset0:{32 * q} offset1:{32 * q + 16}')
    a('s_waitcnt lgkmcnt(0)')
    a(f'v_pk_add_f32 v[{T}:{T + 1}], v[{T}:{T + 1}], v[{T + 2}:{T + 3}]')
    a(f'v_pk_add_f32 v[{T + 4}:{T + 5}], v[{T + 4}:{T + 5}], v[{T + 6}:{T + 7}]')
    a(f'v_pk_add_f32 v[{T}:{T + 1}], v[{T}:{T + 1}], v[{T + 4}:{T + 5}]')
    for reg in (T, T + 1):
        a(f'v_mov_b32 v{T + 2}, v{reg}')
        a(f'v_permlane16_swap_b32 v{reg}, v{T + 2}')
        a(f'v_add_f32 v{reg}, v{reg}, v{T + 2}')
        a(f'v_mov_b32 v{T + 2}, v{reg}')
        a(f'v_permlane32_swap_b32 v{reg}, v{T + 2}')
        a(f'v_add_f32 v{reg}, v{reg}, v{T + 2}')
    rnd(T, T)
    rnd(T + 1, T + 1)
    a(f'v_mul_f32 v{T + 2}, 0xbfb8aa3b, v{T}')
    a(f'v_exp_f32 v{T + 2}, v{T + 2}')
    a(f'v_add_f32 v{T + 2}, 1.0, v{T + 2}')
    a(f'v_rcp_f32 v{T + 2}, v{T + 2}')
    a(f'v_mul_f32 v{T}, v{T}, v{T + 2}')
    rnd(T, T)
    a(f'v_mul_f32 v{T}, v{T}, v{T + 1}')
    rnd(T, T)
    for r in range(16):
        a(f'v_readlane_b32 s{64 + r}, v{T}, {r}')
    for r in range(16):
        unpack(T + 4, T + 5, DN + 2 * r)
        unpack(T + 6, T + 7, DN + 2 * r + 1)
        for c in range(4):
            if r == 0:
                a(f'v_mul_f32 v{AC + c}, s{64 + r}, v{T + 4 + c}')
            else:
                a(f'v_fmac_f32 v{AC + c}, s{64 + r}, v{T + 4 + c}')
    a('s_lshl_b32 s13, s12, 12')
    a('v_lshlrev_b32 v6, 4, v0')
    a(f'buffer_store_dwordx4 v[{AC}:{AC + 3}], v6, s[36:39], s13 offen')
    a('ffn_fl:')
    stamp_flush(10)
    a('ffn_done:')
    a('s_endpgm')
    return kernel_desc('ffn_kernel', 144, 100 if STAMPS else 88)


def k_fin():
    kernel_begin(a, 'fin_kernel')
    a('s_cmp_ge_u32 s2, 32')
    a('s_cbranch_scc1 fin_done')
    stamp_begin(4)
    a('s_load_dwordx2 s[8:9], s[0:1], 88')
    a('s_load_dwordx2 s[10:11], s[0:1], 104')
    a('v_and_b32 v1, 63, v0')
    a('v_lshlrev_b32 v1, 4, v1')
    a('v_and_b32 v2, 7, v0')
    a('v_lshrrev_b32 v3, 3, v0')
    a('v_lshlrev_b32 v4, 12, v3')
    a('v_lshl_add_u32 v4, v2, 4, v4')
    a('s_lshl_b32 s12, s2, 7')
    a('v_add_u32 v4, s12, v4')
    for r in range(1, 7):
        a(f's_mov_b32 s{56 + r}, {32 * 4096 * r}')
    a('s_waitcnt lgkmcnt(0)')
    srd(24, 8, MB4)
    srd(28, 10, 1024, WS_KEYS)
    srd(32, 10, 1 << 20, WS_CAND)
    srd(36, 10, 224 * 4096, WS_PART)
    KY, P = 8, 12
    a(f'buffer_load_dwordx4 v[{KY}:{KY + 3}], v1, s[28:31], 0 offen')
    for r in range(7):
        so = '0' if r == 0 else f's{56 + r}'
        a(f'buffer_load_dwordx4 v[{P + 4 * r}:{P + 4 * r + 3}], v4, s[36:39], {so} offen')
    a('s_waitcnt vmcnt(7)')
    stamp()
    argmax_key(40, KY, None, None)
    a('s_and_b32 s41, s40, 0xffff')
    a('s_sub_u32 s41, 2047, s41')
    a('s_lshr_b32 s42, s41, 3')
    a('s_lshl_b32 s42, s42, 12')
    a('s_lshl_b32 s43, s2, 6')
    a('s_add_u32 s42, s42, s43')
    a('s_lshl_b32 s44, s41, 11')
    a('s_add_u32 s44, s44, s43')
    a('v_and_b32 v5, 31, v0')
    a('v_lshlrev_b32 v6, 1, v5')
    a('buffer_load_ushort v40, v6, s[32:35], s42 offen')
    a('buffer_load_ushort v41, v6, s[32:35], s42 offen offset:2048')
    a('s_and_b32 s45, s40, 0xffff0000')
    a('s_xor_b32 s46, s45, 0x80000000')
    a('s_xor_b32 s47, s45, 0xffff0000')
    a('s_cmp_lt_i32 s45, 0')
    a('s_cselect_b32 s45, s46, s47')
    a('v_mov_b32 v42, 0xbfb8aa3b')
    a('v_mul_f32 v42, s45, v42')
    a('v_exp_f32 v42, v42')
    a('v_add_f32 v42, 1.0, v42')
    a('v_rcp_f32 v42, v42')
    rnd(42, 42)
    a('s_waitcnt vmcnt(2)')
    stamp()
    for r in range(1, 7):
        a(f'v_pk_add_f32 v[{P}:{P + 1}], v[{P}:{P + 1}], v[{P + 4 * r}:{P + 4 * r + 1}]')
        a(f'v_pk_add_f32 v[{P + 2}:{P + 3}], v[{P + 2}:{P + 3}], v[{P + 4 * r + 2}:{P + 4 * r + 3}]')
    a('v_lshlrev_b32 v7, 4, v0')
    a(f'ds_write_b128 v7, v[{P}:{P + 3}]')
    a('v_lshrrev_b32 v7, 5, v0')
    a('v_lshlrev_b32 v7, 9, v7')
    a('v_lshl_add_u32 v7, v5, 2, v7')
    a('s_waitcnt lgkmcnt(0)')
    a('s_barrier')
    a('ds_read2_b32 v[16:17], v7 offset0:0 offset1:32')
    a('ds_read2_b32 v[18:19], v7 offset0:64 offset1:96')
    a('s_waitcnt lgkmcnt(0)')
    a('v_pk_add_f32 v[16:17], v[16:17], v[18:19]')
    a('v_add_f32 v16, v16, v17')
    a('v_lshlrev_b32 v7, 2, v0')
    a('ds_write_b32 v7, v16 offset:4096')
    a('v_lshlrev_b32 v7, 2, v5')
    a('s_waitcnt lgkmcnt(0)')
    a('s_barrier')
    for q in range(4):
        a(f'ds_read2_b32 v[{16 + 2 * q}:{17 + 2 * q}], v7 offset0:{0} offset1:{32}' if False else
          f'ds_read_b32 v{16 + 2 * q}, v7 offset:{4096 + 256 * q}')
        a(f'ds_read_b32 v{17 + 2 * q}, v7 offset:{4096 + 256 * q + 128}')
    a('s_waitcnt lgkmcnt(0)')
    a('v_pk_add_f32 v[16:17], v[16:17], v[18:19]')
    a('v_pk_add_f32 v[20:21], v[20:21], v[22:23]')
    a('v_pk_add_f32 v[16:17], v[16:17], v[20:21]')
    a('v_add_f32 v16, v16, v17')
    rnd(16, 16)
    a('v_mul_f32 v16, v16, v42')
    rnd(16, 16)
    a('s_waitcnt vmcnt(0)')
    a('v_lshlrev_b32 v40, 16, v40')
    a('v_lshlrev_b32 v41, 16, v41')
    a('v_add_f32 v16, v16, v40')
    rnd(16, 16)
    a('v_add_f32 v16, v16, v41')
    a('v_cvt_pk_bf16_f32 v16, v16, v16')
    a('v_cmp_gt_u32 vcc, 32, v0')
    a('s_and_saveexec_b64 s[46:47], vcc')
    a('s_cbranch_execz fin_fl')
    a('buffer_store_short v16, v6, s[24:27], s44 offen')
    a('fin_fl:')
    stamp_flush(10)
    a('fin_done:')
    a('s_endpgm')
    return kernel_desc('fin_kernel', 48, 100 if STAMPS else 72)


launch = '''; @launch kernel=prep_kernel grid=(256,1,1) block=(256,1,1) lds=16896
; @launch kernel=conv_kernel grid=(256,1,1) block=(256,1,1) lds=%d
; @launch kernel=rows_kernel grid=(256,1,1) block=(512,1,1) lds=16448
; @launch kernel=ffn_kernel grid=(224,1,1) block=(256,1,1) lds=2048
; @launch kernel=fin_kernel grid=(32,1,1) block=(256,1,1) lds=5120
''' % CONV_LDS

descs = [k_prep(), k_conv(), k_rows(), k_ffn(), k_fin()]
text = HEADER + launch + '.amdgcn_target "amdgcn-amd-amdhsa--gfx950"\n' + a.render() + ''.join(descs)
out = sys.argv[1] if len(sys.argv) > 1 and not sys.argv[1].startswith('--') else 'cdna_kernels/%s.s' % NAME
open(out, 'w').write(text)
print('wrote', out, len(text))
```

```python
import sys
from asmlib import *

NAME = 'sequential_preLN__ssm_conv_h3__moe_arch_mod__prompt'
HEADER = open('cdna_kernels/%s.s.ref' % NAME).read().split('; Override launch')[0]

WS_UT = 0
WS_Y = 4 << 20
WS_KEYS = 8 << 20
WS_CAND = (8 << 20) + 65536
WS_PART = 10 << 20
MB4 = 4 << 20

a = Asm()
RELAX = int([x for x in sys.argv if x.startswith('--relax=')][0][8:]) if any(x.startswith('--relax=') for x in sys.argv) else 0
STAMPS = '--stamps' in sys.argv
WS_STAMP = 16 << 20
_st = {'n': 0, 'k': 0}


def stamp_begin(kidx):
    _st['n'] = 0
    _st['k'] = kidx
    stamp()


def stamp():
    if not STAMPS:
        return
    n = _st['n']
    assert n < 5
    a(f's_memrealtime s[{90 + 2 * n}:{91 + 2 * n}]')
    _st['n'] += 1


DBGST = '--dbgstamps' in sys.argv
if DBGST:
    STAMPS = True


def dbg_flush():
    a('s_waitcnt vmcnt(0) lgkmcnt(0)')
    stamp()
    a('s_load_dwordx2 s[84:85], s[0:1], 96')
    a('s_mov_b64 exec, -1')
    a('v_readfirstlane_b32 s88, v0')
    a('s_or_b32 s88, s88, s2')
    a('s_waitcnt lgkmcnt(0)')
    lab = a.newlabel('dbgskip')
    a('s_cmp_eq_u32 s88, 0')
    a(f's_cbranch_scc0 {lab}')
    a(f's_add_u32 s84, s84, {512 * (4 - _st["k"])}')
    a('s_addc_u32 s85, s85, 0')
    a('s_mov_b32 s86, 256')
    a('s_mov_b32 s87, 0x00020000')
    a('s_mov_b64 exec, 1')
    a('v_mov_b32 v1, 0')
    a('v_mov_b32 v2, s90')
    a(f'v_mov_b32 v3, s{90 + 2 * (_st["n"] - 1)}')
    a(f'buffer_store_dwordx2 v[2:3], v1, s[84:87], 0 offen offset:{8 * _st["k"]}')
    a(f'{lab}:')


def stamp_flush(wsreg):
    if DBGST:
        return dbg_flush()
    return stamp_flush2(wsreg)


def stamp_flush2(wsreg):
    if not STAMPS:
        return
    a('s_waitcnt vmcnt(0) lgkmcnt(0)')
    stamp()
    a('s_mov_b64 exec, -1')
    a('v_lshrrev_b32 v1, 6, v0')
    a(f's_add_u32 s88, s2, {_st["k"] * 256}')
    a('s_lshl_b32 s88, s88, 9')
    a('v_lshlrev_b32 v1, 6, v1')
    a('v_add_u32 v1, s88, v1')
    a(f's_add_u32 s84, s{wsreg}, {WS_STAMP}')
    a(f's_addc_u32 s85, s{wsreg + 1}, 0')
    a('s_mov_b32 s86, 0x100000')
    a('s_mov_b32 s87, 0x00020000')
    a('s_waitcnt lgkmcnt(0)')
    a('s_mov_b64 exec, 1')
    for i in range(_st['n']):
        a(f'v_mov_b32 v2, s{90 + 2 * i}')
        a(f'v_mov_b32 v3, s{91 + 2 * i}')
        a(f'buffer_store_dwordx2 v[2:3], v1, s[84:87], 0 offen offset:{8 * i}')


def srd(dst, base, nbytes, off=0):
    if off:
        a(f's_add_u32 s{dst}, s{base}, {off}')
        a(f's_addc_u32 s{dst + 1}, s{base + 1}, 0')
    else:
        a(f's_mov_b32 s{dst}, s{base}')
        a(f's_mov_b32 s{dst + 1}, s{base + 1}')
    a(f's_mov_b32 s{dst + 2}, {nbytes}')
    a(f's_mov_b32 s{dst + 3}, 0x00020000')


def rnd(d, s):
    a(f'v_cvt_pk_bf16_f32 v{d}, 0, v{s}')


def unpack(dlo, dhi, s):
    a(f'v_lshlrev_b32 v{dlo}, 16, v{s}')
    a(f'v_and_b32 v{dhi}, 0xffff0000, v{s}')


def wave_reduce(op, v):
    for sh in (1, 2, 4, 8):
        a(f'{op}_dpp v{v}, v{v}, v{v} row_shr:{sh} row_mask:0xf bank_mask:0xf bound_ctrl:0')
    a(f'{op}_dpp v{v}, v{v}, v{v} row_bcast:15 row_mask:0xa bank_mask:0xf')
    a(f'{op}_dpp v{v}, v{v}, v{v} row_bcast:31 row_mask:0xc bank_mask:0xf')


def k_prep():
    kernel_begin(a, 'prep_kernel')
    a('s_cmp_ge_u32 s2, 256')
    a('s_cbranch_scc1 prep_done')
    stamp_begin(0)
    a('s_load_dwordx4 s[4:7], s[0:1], 8')
    a('s_load_dwordx2 s[8:9], s[0:1], 24')
    a('s_load_dwordx2 s[10:11], s[0:1], 104')
    a('s_lshr_b32 s12, s2, 4')
    a('s_and_b32 s13, s2, 15')
    a('v_and_b32 v1, 15, v0')
    a('v_lshrrev_b32 v2, 4, v0')
    a('s_lshl_b32 s14, s12, 18')
    a('s_lshl_b32 s15, s13, 7')
    a('s_add_u32 s14, s14, s15')
    a('v_lshlrev_b32 v3, 14, v2')
    a('v_lshl_add_u32 v3, v1, 3, v3')
    a('v_add_u32 v3, s14, v3')
    a('v_subrev_u32 v4, 6144, v3')
    a('v_mov_b32 v5, 0x80000000')
    a('v_cmp_gt_u32 vcc, 6144, v3')
    a('v_cndmask_b32 v4, v4, v5, vcc')
    a('s_lshl_b32 s15, s13, 9')
    a('v_lshlrev_b32 v5, 5, v1')
    a('v_add_u32 v5, s15, v5')
    a('s_mov_b32 s40, 4096')
    a('s_mov_b32 s41, 8192')
    a('s_mov_b32 s42, 12288')
    a('s_waitcnt lgkmcnt(0)')
    srd(16, 4, MB4)
    srd(20, 6, MB4)
    srd(24, 8, 8192)
    srd(28, 10, MB4, WS_UT)
    KR, VR, WR = 8, 30, 46
    a(f'buffer_load_dwordx4 v[{WR}:{WR + 3}], v5, s[24:27], 0 offen')
    a(f'buffer_load_dwordx4 v[{WR + 4}:{WR + 7}], v5, s[24:27], 0 offen offset:16')
    so = ['0', 's40', 's41', 's42']
    for r in range(3):
        a(f'buffer_load_dwordx2 v[{KR + 2 * r}:{KR + 2 * r + 1}], v4, s[16:19], {so[r >> 1]} offen offset:{(r & 1) * 2048} nt')
    for r in range(8):
        a(f'buffer_load_dwordx2 v[{KR + 6 + 2 * r}:{KR + 7 + 2 * r}], v3, s[16:19], {so[r >> 1]} offen offset:{(r & 1) * 2048} nt')
    for r in range(8):
        a(f'buffer_load_dwordx2 v[{VR + 2 * r}:{VR + 2 * r + 1}], v3, s[20:23], {so[r >> 1]} offen offset:{(r & 1) * 2048} nt')
    a('v_mul_u32_u24 v6, 1040, v1')
    a('v_sub_u32 v7, 15, v2')
    a('v_lshl_add_u32 v6, v7, 4, v6')
    WF = 54
    KF = 70
    VF = 92
    P = 108
    ACC = 110
    O = 112
    CH = 128
    a('s_waitcnt vmcnt(19)')
    for p in range(2):
        for jj in range(2):
            j = 2 * p + jj
            unpack(WF + 8 * p + 0 + jj, WF + 8 * p + 2 + jj, WR + 2 * j)
            unpack(WF + 8 * p + 4 + jj, WF + 8 * p + 6 + jj, WR + 2 * j + 1)
    a('s_waitcnt vmcnt(0)')
    stamp()
    for p in range(2):
        for r in range(11):
            unpack(KF + 2 * r, KF + 2 * r + 1, KR + 2 * r + p)
        for r in range(8):
            unpack(VF + 2 * r, VF + 2 * r + 1, VR + 2 * r + p)
        for r in range(8):
            for t in range(4):
                tap = 3 - t
                dst = ACC if t == 0 else P
                if RELAX & 1:
                    if t == 0:
                        a(f'v_pk_mul_f32 v[{ACC}:{ACC + 1}], v[{KF + 2 * (r + t)}:{KF + 2 * (r + t) + 1}], v[{WF + 8 * p + 2 * tap}:{WF + 8 * p + 2 * tap + 1}]')
                    else:
                        a(f'v_pk_fma_f32 v[{ACC}:{ACC + 1}], v[{KF + 2 * (r + t)}:{KF + 2 * (r + t) + 1}], v[{WF + 8 * p + 2 * tap}:{WF + 8 * p + 2 * tap + 1}], v[{ACC}:{ACC + 1}]')
                    continue
                a(f'v_pk_mul_f32 v[{dst}:{dst + 1}], v[{KF + 2 * (r + t)}:{KF + 2 * (r + t) + 1}], v[{WF + 8 * p + 2 * tap}:{WF + 8 * p + 2 * tap + 1}]')
                rnd(dst, dst)
                rnd(dst + 1, dst + 1)
                if t:
                    a(f'v_pk_add_f32 v[{ACC}:{ACC + 1}], v[{ACC}:{ACC + 1}], v[{P}:{P + 1}]')
                    rnd(ACC, ACC)
                    rnd(ACC + 1, ACC + 1)
            a(f'v_pk_mul_f32 v[{O + 2 * r}:{O + 2 * r + 1}], v[{ACC}:{ACC + 1}], v[{VF + 2 * r}:{VF + 2 * r + 1}]')
        for jj in range(2):
            for m in range(4):
                a(f'v_cvt_pk_bf16_f32 v{CH + 4 * jj + m}, v{O + 2 * (7 - 2 * m) + jj}, v{O + 2 * (6 - 2 * m) + jj}')
            a(f'ds_write_b128 v6, v[{CH + 4 * jj}:{CH + 4 * jj + 3}] offset:{(2 * p + jj) * 256}')
    stamp()
    a('v_lshrrev_b32 v8, 6, v0')
    a('v_mul_u32_u24 v8, 1040, v8')
    a('v_and_b32 v9, 63, v0')
    a('v_lshl_add_u32 v8, v9, 4, v8')
    a('s_lshl_b32 s14, s13, 18')
    a('s_sub_u32 s15, 15, s12')
    a('s_lshl_b32 s15, s15, 8')
    a('s_add_u32 s14, s14, s15')
    a('v_lshlrev_b32 v9, 12, v2')
    a('v_lshl_add_u32 v9, v1, 4, v9')
    a('v_add_u32 v9, s14, v9')
    a('s_mov_b32 s40, 0x10000')
    a('s_mov_b32 s41, 0x20000')
    a('s_mov_b32 s42, 0x30000')
    a('s_waitcnt lgkmcnt(0)')
    a('s_barrier')
    for p in range(4):
        a(f'ds_read_b128 v[{12 + 4 * p}:{15 + 4 * p}], v8 offset:{4160 * p}')
    for p in range(4):
        a(f's_waitcnt lgkmcnt({3 - p})')
        a(f'buffer_store_dwordx4 v[{12 + 4 * p}:{15 + 4 * p}], v9, s[28:31], {so[p]} offen')
    a('prep_fl:')
    stamp_flush(10)
    a('prep_done:')
    a('s_endpgm')
    return kernel_desc('prep_kernel', 136, 100 if STAMPS else 48)


GS = 4160
UOFF = 8 * GS
WSTRIDE = 37952
CONV_LDS = 4 * WSTRIDE


def k_conv():
    kernel_begin(a, 'conv_kernel')
    a('s_cmp_ge_u32 s2, 256')
    a('s_cbranch_scc1 conv_done')
    stamp_begin(1)
    a('s_load_dwordx4 s[4:7], s[0:1], 32')
    a('s_load_dwordx2 s[10:11], s[0:1], 104')
    a('v_lshrrev_b32 v1, 6, v0')
    a('v_and_b32 v2, 63, v0')
    a('v_readfirstlane_b32 s12, v1')
    a('s_lshl_b32 s13, s2, 2')
    a('s_add_u32 s13, s13, s12')
    a('s_mul_i32 s14, s12, %d' % WSTRIDE)
    a('s_lshl_b32 s15, s13, 12')
    a('v_lshlrev_b32 v3, 4, v2')
    a('v_subrev_u32 v4, 16, v3')
    a('s_lshl_b32 s33, s13, 1')
    a('s_and_b32 s33, s33, 0xfffffffc')
    a('s_waitcnt lgkmcnt(0)')
    a('s_add_u32 s16, s4, s15')
    a('s_addc_u32 s17, s5, 0')
    a('s_mov_b32 s18, 4096')
    a('s_mov_b32 s19, 0x00020000')
    a('s_add_u32 s20, s10, s15')
    a('s_addc_u32 s21, s11, 0')
    a('s_mov_b32 s22, 4096')
    a('s_mov_b32 s23, 0x00020000')
    srd(24, 10, MB4, WS_Y)
    a('s_load_dword s34, s[6:7], s33')
    W = 16
    U = 48
    for i in range(4):
        if i == 0:
            a(f'buffer_load_dwordx4 v[{W}:{W + 3}], v4, s[16:19], 0 offen nt')
        else:
            a(f'buffer_load_dwordx4 v[{W + 8 * i}:{W + 8 * i + 3}], v3, s[16:19], 0 offen offset:{1024 * i - 16} nt')
        a(f'buffer_load_dwordx4 v[{W + 8 * i + 4}:{W + 8 * i + 7}], v3, s[16:19], 0 offen offset:{1024 * i} nt')
    for i in range(4):
        a(f'buffer_load_dwordx4 v[{U + 4 * i}:{U + 4 * i + 3}], v3, s[20:23], 0 offen offset:{1024 * i}')
    a('v_add_u32 v5, s14, v3')
    a('v_and_b32 v6, 15, v2')
    a('v_lshrrev_b32 v7, 4, v2')
    a('v_and_b32 v8, 7, v2')
    a(f'v_mul_u32_u24 v8, {GS}, v8')
    a('v_add_u32 v8, s14, v8')
    a('v_bfe_u32 v9, v2, 3, 1')
    a('v_add_u32 v9, v9, v7')
    a('v_lshl_add_u32 v9, v9, 4, v8')
    a(f's_add_u32 s35, s14, {UOFF + 480}')
    a('v_lshlrev_b32 v10, 5, v6')
    a('v_sub_u32 v10, s35, v10')
    a('v_lshl_add_u32 v11, v7, 4, v10')
    a('v_lshlrev_b32 v12, 3, v7')
    a('v_sub_u32 v13, v10, v12')
    a('v_add_u32 v13, 24, v13')
    a('v_lshl_add_u32 v14, v6, 5, v12')
    a('v_add_u32 v14, s14, v14')
    Z = 64
    for j in range(4):
        a(f'v_mov_b32 v{Z + j}, 0')
    a('s_mov_b64 exec, 0xff')
    a(f'ds_write_b128 v8, v[{Z}:{Z + 3}]')
    a('s_mov_b64 exec, 0x3fffffff')
    a(f'ds_write_b128 v5, v[{Z}:{Z + 3}] offset:{UOFF + 4096}')
    a('s_mov_b64 exec, -1')
    T1, T2, T3 = 68, 74, 80
    if STAMPS:
        a('s_waitcnt vmcnt(10)')
    stamp()
    for i in range(4):
        w = W + 8 * i
        a(f's_waitcnt vmcnt({10 - 2 * i})')
        for j in range(6):
            a(f'v_alignbit_b32 v{T1 + j}, v{w + j + 1}, v{w + j}, 16')
        for j in range(6):
            a(f'v_alignbit_b32 v{T2 + j}, v{w + j + 2}, v{w + j + 1}, 16')
        for j in range(6):
            a(f'v_mov_b32 v{T3 + j}, v{w + j + 1}')
        src = {7: w + 4, 3: w + 2, 1: T3, 5: T3 + 2, 0: T1, 4: T1 + 2, 2: T2, 6: T2 + 2}
        for e in (7, 3, 0, 4, 2, 6, 1, 5):
            a(f'ds_write_b128 v5, v[{src[e]}:{src[e] + 3}] offset:{e * GS + 1024 * i + 16}')
    for i in range(4):
        a(f's_waitcnt vmcnt({3 - i})')
        a(f'ds_write_b128 v5, v[{U + 4 * i}:{U + 4 * i + 3}] offset:{UOFF + 1024 * i}')
    a('s_waitcnt lgkmcnt(0)')
    stamp()
    ACC = 16
    FR = [96, 160]

    def reads(c):
        s = FR[c & 1]
        out = []
        for j in range(8):
            out.append(f'ds_read_b128 v[{s + 4 * j}:{s + 4 * j + 3}], v9 offset:{64 * (8 * j + c)}')
            out.append(f'ds_read_b128 v[{s + 32 + 4 * j}:{s + 32 + 4 * j + 3}], v11 offset:{64 * (56 - (8 * j - c))}')
        return out

    for r in reads(0):
        a(r)
    for c in range(8):
        s = FR[c & 1]
        a('s_waitcnt lgkmcnt(0)')
        nxt = reads(c + 1) if c < 7 else []
        k = 0
        for n in range(8):
            for z in range(8 - n):
                w = n + z
                cc = '0' if (c == 0 and n == 0) else f'v[{ACC + 4 * w}:{ACC + 4 * w + 3}]'
                a(f'v_mfma_f32_16x16x32_bf16 v[{ACC + 4 * w}:{ACC + 4 * w + 3}], v[{s + 4 * n}:{s + 4 * n + 3}], v[{s + 32 + 4 * z}:{s + 32 + 4 * z + 3}], {cc}')
                if nxt and k % 2 == 0:
                    a(nxt.pop(0))
                k += 1
        assert not nxt
    stamp()
    E = 96
    for w in range(8):
        a(f'ds_read_b64 v[{E + 2 * w}:{E + 2 * w + 1}], v13 offset:{512 * (7 - w)}')
    a('s_and_b32 s36, s13, 1')
    a('s_lshl_b32 s37, s34, 16')
    a('s_and_b32 s38, s34, 0xffff0000')
    a('s_cmp_eq_u32 s36, 0')
    a('s_cselect_b32 s34, s37, s38')
    a('s_waitcnt lgkmcnt(0)')
    T = 112
    for w in range(8):
        unpack(T + 3, T + 2, E + 2 * w)
        unpack(T + 1, T + 0, E + 2 * w + 1)
        for r in range(4):
            a(f'v_mul_f32 v{T + r}, s34, v{T + r}')
        for r in range(4):
            if RELAX & 2:
                continue
            rnd(T + r, T + r)
            rnd(ACC + 4 * w + r, ACC + 4 * w + r)
        for r in range(4):
            a(f'v_add_f32 v{T + r}, v{T + r}, v{ACC + 4 * w + r}')
        a(f'v_cvt_pk_bf16_f32 v{T + 4}, v{T}, v{T + 1}')
        a(f'v_cvt_pk_bf16_f32 v{T + 5}, v{T + 2}, v{T + 3}')
        a(f'ds_write_b64 v14, v[{T + 4}:{T + 5}] offset:{512 * w}')
    a('v_and_b32 v1, 3, v0')
    a('v_lshrrev_b32 v2, 2, v0')
    a(f'v_mul_u32_u24 v3, {WSTRIDE}, v1')
    a('v_lshl_add_u32 v3, v2, 4, v3')
    a('v_lshlrev_b32 v4, 14, v2')
    a('v_lshl_add_u32 v4, v1, 4, v4')
    a('s_lshl_b32 s36, s2, 6')
    a('v_add_u32 v4, s36, v4')
    a('s_mov_b32 s40, 0x100000')
    a('s_mov_b32 s41, 0x200000')
    a('s_mov_b32 s42, 0x300000')
    so = ['0', 's40', 's41', 's42']
    a('s_waitcnt lgkmcnt(0)')
    a('s_barrier')
    for p in range(4):
        a(f'ds_read_b128 v[{16 + 4 * p}:{19 + 4 * p}], v3 offset:{1024 * p}')
    for p in range(4):
        a(f's_waitcnt lgkmcnt({3 - p})')
        a(f'buffer_store_dwordx4 v[{16 + 4 * p}:{19 + 4 * p}], v4, s[24:27], {so[p]} offen')
    a('conv_fl:')
    stamp_flush(10)
    a('conv_done:')
    a('s_endpgm')
    return kernel_desc('conv_kernel', 224, 100 if STAMPS else 48)


def layernorm(X, N, T, sreg):
    for i in range(4):
        a(f'v_pk_add_f32 v[{T + 2 * i}:{T + 2 * i + 1}], v[{X + 4 * i}:{X + 4 * i + 1}], v[{X + 4 * i + 2}:{X + 4 * i + 3}]')
    a(f'v_pk_add_f32 v[{T}:{T + 1}], v[{T}:{T + 1}], v[{T + 2}:{T + 3}]')
    a(f'v_pk_add_f32 v[{T + 4}:{T + 5}], v[{T + 4}:{T + 5}], v[{T + 6}:{T + 7}]')
    a(f'v_pk_add_f32 v[{T}:{T + 1}], v[{T}:{T + 1}], v[{T + 4}:{T + 5}]')
    a(f'v_add_f32 v{T}, v{T}, v{T + 1}')
    wave_reduce('v_add_f32', T)
    a(f'v_readlane_b32 s{sreg}, v{T}, 63')
    M = T + 16
    a(f'v_mov_b32 v{M}, 0x3a800000')
    a(f'v_mul_f32 v{M}, s{sreg}, v{M}')
    for i in range(16):
        a(f'v_sub_f32 v{T + i}, v{X + i}, v{M}')
    a(f'v_pk_mul_f32 v[{T}:{T + 1}], v[{T}:{T + 1}], v[{T}:{T + 1}]')
    a(f'v_pk_mul_f32 v[{T + 2}:{T + 3}], v[{T + 2}:{T + 3}], v[{T + 2}:{T + 3}]')
    for i in range(2, 8):
        d = T + 2 * (i & 1)
        a(f'v_pk_fma_f32 v[{d}:{d + 1}], v[{T + 2 * i}:{T + 2 * i + 1}], v[{T + 2 * i}:{T + 2 * i + 1}], v[{d}:{d + 1}]')
    a(f'v_pk_add_f32 v[{T}:{T + 1}], v[{T}:{T + 1}], v[{T + 2}:{T + 3}]')
    a(f'v_add_f32 v{T}, v{T}, v{T + 1}')
    wave_reduce('v_add_f32', T)
    a(f'v_readlane_b32 s{sreg}, v{T}, 63')
    V = T + 17
    a(f'v_mov_b32 v{V}, 0x3a800000')
    a(f'v_mul_f32 v{V}, s{sreg}, v{V}')
    rnd(M, M)
    rnd(V, V)
    a(f'v_add_f32 v{V}, 0x3727c5ac, v{V}')
    rnd(V, V)
    a(f'v_sqrt_f32 v{V}, v{V}')
    rnd(V, V)
    a(f'v_rcp_f32 v{V}, v{V}')
    for i in range(16):
        a(f'v_sub_f32 v{N + i}, v{X + i}, v{M}')
    for i in range(16):
        if not (RELAX & 8):
            rnd(N + i, N + i)
    for i in range(16):
        a(f'v_mul_f32 v{N + i}, v{N + i}, v{V}')
    for i in range(16):
        rnd(N + i, N + i)


def k_rows():
    kernel_begin(a, 'rows_kernel')
    a('s_cmp_ge_u32 s2, 256')
    a('s_cbranch_scc1 rows_done')
    stamp_begin(2)
    a('s_load_dwordx2 s[4:5], s[0:1], 0')
    a('s_load_dwordx2 s[6:7], s[0:1], 56')
    a('s_load_dwordx2 s[8:9], s[0:1], 88')
    a('s_load_dwordx2 s[10:11], s[0:1], 104')
    a('v_lshrrev_b32 v1, 6, v0')
    a('v_and_b32 v2, 63, v0')
    a('v_readfirstlane_b32 s12, v1')
    a('s_lshl_b32 s13, s2, 3')
    a('s_add_u32 s13, s13, s12')
    a('s_lshl_b32 s14, s13, 11')
    a('v_lshlrev_b32 v3, 4, v2')
    a('v_add_u32 v4, s14, v3')
    a('s_lshl_b32 s15, s2, 14')
    a('v_lshlrev_b32 v5, 5, v0')
    a('v_add_u32 v5, s15, v5')
    a('s_waitcnt lgkmcnt(0)')
    srd(16, 4, MB4)
    srd(20, 6, 2048)
    srd(24, 8, MB4)
    srd(28, 10, MB4, WS_Y)
    srd(32, 10, 1024, WS_KEYS)
    srd(36, 10, 1 << 20, WS_CAND)
    XR, YR, WR = 8, 16, 24
    a(f'buffer_load_dwordx4 v[{XR}:{XR + 3}], v4, s[16:19], 0 offen nt')
    a(f'buffer_load_dwordx4 v[{XR + 4}:{XR + 7}], v4, s[16:19], 0 offen offset:1024 nt')
    a(f'buffer_load_dwordx4 v[{YR}:{YR + 3}], v5, s[28:31], 0 offen')
    a(f'buffer_load_dwordx4 v[{YR + 4}:{YR + 7}], v5, s[28:31], 0 offen offset:16')
    a(f'buffer_load_dwordx4 v[{WR}:{WR + 3}], v3, s[20:23], 0 offen')
    a(f'buffer_load_dwordx4 v[{WR + 4}:{WR + 7}], v3, s[20:23], 0 offen offset:1024')
    a('s_mov_b32 s40, 0x05040100')
    a('s_mov_b32 s41, 0x07060302')
    a('v_lshlrev_b32 v6, 2, v0')
    a('s_lshl_b32 s15, s12, 11')
    a('v_add_u32 v7, s15, v3')
    X, N, T, H = 32, 48, 64, 84
    a('s_waitcnt vmcnt(2)')
    P = T
    stamp()
    for i in range(4):
        a(f'v_perm_b32 v{P + 2 * i}, v{YR + 4 + i}, v{YR + i}, s40')
        a(f'v_perm_b32 v{P + 2 * i + 1}, v{YR + 4 + i}, v{YR + i}, s41')
    for i in range(4):
        a(f'ds_write2st64_b32 v6, v{P + 2 * i}, v{P + 2 * i + 1} offset0:{16 * i} offset1:{16 * i + 8}')
    for i in range(8):
        unpack(X + 2 * i, X + 2 * i + 1, XR + i)
    a('s_waitcnt lgkmcnt(0)')
    a('s_barrier')
    a(f'ds_read_b128 v[{YR}:{YR + 3}], v7')
    a(f'ds_read_b128 v[{YR + 4}:{YR + 7}], v7 offset:1024')
    layernorm(X, N, T, 42)
    a('s_waitcnt lgkmcnt(0)')
    for i in range(8):
        unpack(H + 2 * i, H + 2 * i + 1, YR + i)
    for i in range(8):
        a(f'v_pk_mul_f32 v[{H + 2 * i}:{H + 2 * i + 1}], v[{H + 2 * i}:{H + 2 * i + 1}], v[{N + 2 * i}:{N + 2 * i + 1}]')
    for i in range(16):
        if not (RELAX & 4):
            rnd(H + i, H + i)
    for i in range(8):
        a(f'v_pk_add_f32 v[{H + 2 * i}:{H + 2 * i + 1}], v[{H + 2 * i}:{H + 2 * i + 1}], v[{X + 2 * i}:{X + 2 * i + 1}]')
    for i in range(16):
        rnd(H + i, H + i)
    layernorm(H, N, T, 42)
    stamp()
    for i in range(8):
        a(f'v_pk_add_f32 v[{X + 2 * i}:{X + 2 * i + 1}], v[{H + 2 * i}:{H + 2 * i + 1}], v[{N + 2 * i}:{N + 2 * i + 1}]')
    for i in range(8):
        a(f'v_cvt_pk_bf16_f32 v{XR + i}, v{X + 2 * i}, v{X + 2 * i + 1}')
    a(f'buffer_store_dwordx4 v[{XR}:{XR + 3}], v4, s[24:27], 0 offen')
    a(f'buffer_store_dwordx4 v[{XR + 4}:{XR + 7}], v4, s[24:27], 0 offen offset:1024')
    a('s_waitcnt vmcnt(2)')
    for i in range(8):
        unpack(X + 2 * i, X + 2 * i + 1, WR + i)
    a(f'v_pk_mul_f32 v[{T}:{T + 1}], v[{X}:{X + 1}], v[{N}:{N + 1}]')
    a(f'v_pk_mul_f32 v[{T + 2}:{T + 3}], v[{X + 2}:{X + 3}], v[{N + 2}:{N + 3}]')
    for i in range(2, 8):
        d = T + 2 * (i & 1)
        a(f'v_pk_fma_f32 v[{d}:{d + 1}], v[{X + 2 * i}:{X + 2 * i + 1}], v[{N + 2 * i}:{N + 2 * i + 1}], v[{d}:{d + 1}]')
    a(f'v_pk_add_f32 v[{T}:{T + 1}], v[{T}:{T + 1}], v[{T + 2}:{T + 3}]')
    a(f'v_add_f32 v{T}, v{T}, v{T + 1}')
    wave_reduce('v_add_f32', T)
    rnd(T, T)
    a(f'v_readlane_b32 s42, v{T}, 63')
    a('s_not_b32 s43, s42')
    a('s_or_b32 s44, s42, 0x80000000')
    a('s_cmp_lt_i32 s42, 0')
    a('s_cselect_b32 s42, s43, s44')
    a('s_and_b32 s42, s42, 0xffff0000')
    a('s_sub_u32 s43, 2047, s13')
    a('s_or_b32 s42, s42, s43')
    a('v_mov_b32 v1, s42')
    a('s_lshl_b32 s43, s12, 2')
    a('s_add_u32 s43, s43, 16384')
    a('v_mov_b32 v6, s43')
    a('ds_write_b32 v6, v1')
    for i in range(8):
        a(f'v_cvt_pk_bf16_f32 v{YR + i}, v{N + 2 * i}, v{N + 2 * i + 1}')
    for i in range(8):
        a(f'v_cvt_pk_bf16_f32 v{WR + i}, v{H + 2 * i}, v{H + 2 * i + 1}')
    a('v_mov_b32 v6, 16384')
    a('s_waitcnt lgkmcnt(0)')
    a('s_barrier')
    a(f'ds_read_b128 v[{T}:{T + 3}], v6')
    a(f'ds_read_b128 v[{T + 4}:{T + 7}], v6 offset:16')
    a('s_waitcnt lgkmcnt(0)')
    a(f'v_max3_u32 v{T}, v{T}, v{T + 1}, v{T + 2}')
    a(f'v_max3_u32 v{T + 3}, v{T + 3}, v{T + 4}, v{T + 5}')
    a(f'v_max3_u32 v{T}, v{T}, v{T + 6}, v{T + 7}')
    a(f'v_max_u32 v{T}, v{T}, v{T + 3}')
    a(f'v_readfirstlane_b32 s43, v{T}')
    a('s_cmp_eq_u32 s43, s42')
    a('s_cbranch_scc0 rows_fl')
    a('s_lshl_b32 s43, s2, 12')
    a('v_add_u32 v6, s43, v3')
    a(f'buffer_store_dwordx4 v[{YR}:{YR + 3}], v6, s[36:39], 0 offen')
    a(f'buffer_store_dwordx4 v[{YR + 4}:{YR + 7}], v6, s[36:39], 0 offen offset:1024')
    a(f'buffer_store_dwordx4 v[{WR}:{WR + 3}], v6, s[36:39], 0 offen offset:2048')
    a(f'buffer_store_dwordx4 v[{WR + 4}:{WR + 7}], v6, s[36:39], 0 offen offset:3072')
    a('s_lshl_b32 s43, s2, 2')
    a('v_mov_b32 v6, s43')
    a('s_mov_b64 exec, 1')
    a('buffer_store_dword v1, v6, s[32:35], 0 offen')
    a('rows_fl:')
    stamp_flush(10)
    a('rows_done:')
    a('s_endpgm')
    return kernel_desc('rows_kernel', 104, 100 if STAMPS else 48)


def argmax_key(sdst, vt, srd_keys, vlane16):
    a(f'v_max3_u32 v{vt}, v{vt}, v{vt + 1}, v{vt + 2}')
    a(f'v_max_u32 v{vt}, v{vt}, v{vt + 3}')
    wave_reduce('v_max_u32', vt)
    a(f'v_readlane_b32 s{sdst}, v{vt}, 63')


def k_ffn():
    kernel_begin(a, 'ffn_kernel')
    a('s_cmp_ge_u32 s2, 224')
    a('s_cbranch_scc1 ffn_done')
    stamp_begin(3)
    a('s_load_dwordx4 s[4:7], s[0:1], 64')
    a('s_load_dwordx2 s[8:9], s[0:1], 80')
    a('s_load_dwordx2 s[10:11], s[0:1], 104')
    a('s_and_b32 s12, s2, 7')
    a('s_mul_i32 s12, s12, 28')
    a('s_lshr_b32 s13, s2, 3')
    a('s_add_u32 s12, s12, s13')
    a('v_and_b32 v1, 63, v0')
    a('v_lshlrev_b32 v1, 4, v1')
    a('v_lshrrev_b32 v2, 1, v0')
    a('v_and_b32 v3, 1, v0')
    a('v_mul_u32_u24 v4, %d, v2' % (8 * 7168))
    a('v_lshl_add_u32 v4, v3, 4, v4')
    a('s_lshl_b32 s13, s12, 5')
    a('v_add_u32 v4, s13, v4')
    a('s_lshl_b32 s13, s12, 15')
    a('v_lshlrev_b32 v5, 3, v0')
    a('v_add_u32 v5, s13, v5')
    for r in range(1, 8):
        a(f's_mov_b32 s{56 + r}, {7168 * r}')
        a(f's_mov_b32 s{64 + r}, {4096 * r}')
    a('s_waitcnt lgkmcnt(0)')
    srd(16, 4, 1024 * 7168)
    srd(20, 6, 1024 * 7168)
    srd(24, 8, 3584 * 2048)
    srd(28, 10, 1024, WS_KEYS)
    srd(32, 10, 1 << 20, WS_CAND)
    srd(36, 10, 224 * 4096, WS_PART)
    KY, XS, G, U, DN = 8, 12, 16, 48, 80
    a(f'buffer_load_dwordx4 v[{KY}:{KY + 3}], v1, s[28:31], 0 offen')
    for r in range(8):
        so = '0' if r == 0 else f's{56 + r}'
        a(f'buffer_load_dwordx4 v[{G + 4 * r}:{G + 4 * r + 3}], v4, s[16:19], {so} offen nt')
        a(f'buffer_load_dwordx4 v[{U + 4 * r}:{U + 4 * r + 3}], v4, s[20:23], {so} offen nt')
    for r in range(16):
        so = '0' if r < 2 else f's{64 + (r >> 1)}'
        a(f'buffer_load_dwordx2 v[{DN + 2 * r}:{DN + 2 * r + 1}], v5, s[24:27], {so} offen offset:{(r & 1) * 2048} nt')
    a('s_waitcnt vmcnt(32)')
    stamp()
    argmax_key(40, KY, None, None)
    a('s_and_b32 s41, s40, 0xffff')
    a('s_sub_u32 s41, 2047, s41')
    a('s_lshr_b32 s41, s41, 3')
    a('s_lshl_b32 s41, s41, 12')
    a('v_lshlrev_b32 v6, 4, v2')
    a(f'buffer_load_dwordx4 v[{XS}:{XS + 3}], v6, s[32:35], s41 offen')
    XF, AC, T = 112, 120, 136
    a('s_waitcnt vmcnt(0)')
    stamp()
    for i in range(4):
        unpack(XF + 2 * i, XF + 2 * i + 1, XS + i)
    for m, base in ((0, G), (1, U)):
        for r in range(8):
            for c in range(4):
                unpack(T, T + 1, base + 4 * r + c)
                d = AC + 8 * m + 2 * c
                xp = XF + (r & ~1)
                sel = 'op_sel:[0,1,0] op_sel_hi:[1,1,1]' if (r & 1) else 'op_sel:[0,0,0] op_sel_hi:[1,0,1]'
                if r == 0:
                    a(f'v_pk_mul_f32 v[{d}:{d + 1}], v[{T}:{T + 1}], v[{xp}:{xp + 1}] op_sel:[0,0] op_sel_hi:[1,0]')
                else:
                    a(f'v_pk_fma_f32 v[{d}:{d + 1}], v[{T}:{T + 1}], v[{xp}:{xp + 1}], v[{d}:{d + 1}] {sel}')
    for sh in (2, 4, 8):
        for i in range(16):
            a(f'v_add_f32_dpp v{AC + i}, v{AC + i}, v{AC + i} row_shr:{sh} row_mask:0xf bank_mask:0xf bound_ctrl:0')
    a('v_lshrrev_b32 v6, 4, v0')
    a('v_lshlrev_b32 v6, 7, v6')
    a('v_lshl_add_u32 v6, v3, 5, v6')
    a('s_mov_b32 s42, 0xc000c000')
    a('s_mov_b32 s43, 0xc000c000')
    a('s_mov_b64 exec, s[42:43]')
    for m in range(2):
        a(f'ds_write_b128 v6, v[{AC + 8 * m}:{AC + 8 * m + 3}] offset:{64 * m}')
        a(f'ds_write_b128 v6, v[{AC + 8 * m + 4}:{AC + 8 * m + 7}] offset:{64 * m + 16}')
    a('s_mov_b64 exec, -1')
    a('v_and_b32 v7, 15, v0')
    a('v_bfe_u32 v6, v0, 4, 2')
    a('v_lshlrev_b32 v6, 9, v6')
    a('v_lshl_add_u32 v6, v7, 2, v6')
    a('s_waitcnt lgkmcnt(0)')
    a('s_barrier')
    for q in range(4):
        a(f'ds_read2_b32 v[{T + 2 * q}:{T + 2 * q + 1}], v6 offset0:{32 * q} offset1:{32 * q + 16}')
    a('s_waitcnt lgkmcnt(0)')
    a(f'v_pk_add_f32 v[{T}:{T + 1}], v[{T}:{T + 1}], v[{T + 2}:{T + 3}]')
    a(f'v_pk_add_f32 v[{T + 4}:{T + 5}], v[{T + 4}:{T + 5}], v[{T + 6}:{T + 7}]')
    a(f'v_pk_add_f32 v[{T}:{T + 1}], v[{T}:{T + 1}], v[{T + 4}:{T + 5}]')
    for reg in (T, T + 1):
        a(f'v_mov_b32 v{T + 2}, v{reg}')
        a(f'v_permlane16_swap_b32 v{reg}, v{T + 2}')
        a(f'v_add_f32 v{reg}, v{reg}, v{T + 2}')
        a(f'v_mov_b32 v{T + 2}, v{reg}')
        a(f'v_permlane32_swap_b32 v{reg}, v{T + 2}')
        a(f'v_add_f32 v{reg}, v{reg}, v{T + 2}')
    rnd(T, T)
    rnd(T + 1, T + 1)
    a(f'v_mul_f32 v{T + 2}, 0xbfb8aa3b, v{T}')
    a(f'v_exp_f32 v{T + 2}, v{T + 2}')
    a(f'v_add_f32 v{T + 2}, 1.0, v{T + 2}')
    a(f'v_rcp_f32 v{T + 2}, v{T + 2}')
    a(f'v_mul_f32 v{T}, v{T}, v{T + 2}')
    rnd(T, T)
    a(f'v_mul_f32 v{T}, v{T}, v{T + 1}')
    rnd(T, T)
    for r in range(16):
        a(f'v_readlane_b32 s{64 + r}, v{T}, {r}')
    for r in range(16):
        unpack(T + 4, T + 5, DN + 2 * r)
        unpack(T + 6, T + 7, DN + 2 * r + 1)
        for c in range(4):
            if r == 0:
                a(f'v_mul_f32 v{AC + c}, s{64 + r}, v{T + 4 + c}')
            else:
                a(f'v_fmac_f32 v{AC + c}, s{64 + r}, v{T + 4 + c}')
    a('s_lshl_b32 s13, s12, 12')
    a('v_lshlrev_b32 v6, 4, v0')
    a(f'buffer_store_dwordx4 v[{AC}:{AC + 3}], v6, s[36:39], s13 offen')
    a('ffn_fl:')
    stamp_flush(10)
    a('ffn_done:')
    a('s_endpgm')
    return kernel_desc('ffn_kernel', 144, 100 if STAMPS else 88)


def k_fin():
    kernel_begin(a, 'fin_kernel')
    a('s_cmp_ge_u32 s2, 32')
    a('s_cbranch_scc1 fin_done')
    stamp_begin(4)
    a('s_load_dwordx2 s[8:9], s[0:1], 88')
    a('s_load_dwordx2 s[10:11], s[0:1], 104')
    a('v_and_b32 v1, 63, v0')
    a('v_lshlrev_b32 v1, 4, v1')
    a('v_and_b32 v2, 7, v0')
    a('v_lshrrev_b32 v3, 3, v0')
    a('v_lshlrev_b32 v4, 12, v3')
    a('v_lshl_add_u32 v4, v2, 4, v4')
    a('s_lshl_b32 s12, s2, 7')
    a('v_add_u32 v4, s12, v4')
    for r in range(1, 7):
        a(f's_mov_b32 s{56 + r}, {32 * 4096 * r}')
    a('s_waitcnt lgkmcnt(0)')
    srd(24, 8, MB4)
    srd(28, 10, 1024, WS_KEYS)
    srd(32, 10, 1 << 20, WS_CAND)
    srd(36, 10, 224 * 4096, WS_PART)
    KY, P = 8, 12
    a(f'buffer_load_dwordx4 v[{KY}:{KY + 3}], v1, s[28:31], 0 offen')
    for r in range(7):
        so = '0' if r == 0 else f's{56 + r}'
        a(f'buffer_load_dwordx4 v[{P + 4 * r}:{P + 4 * r + 3}], v4, s[36:39], {so} offen')
    a('s_waitcnt vmcnt(7)')
    stamp()
    argmax_key(40, KY, None, None)
    a('s_and_b32 s41, s40, 0xffff')
    a('s_sub_u32 s41, 2047, s41')
    a('s_lshr_b32 s42, s41, 3')
    a('s_lshl_b32 s42, s42, 12')
    a('s_lshl_b32 s43, s2, 6')
    a('s_add_u32 s42, s42, s43')
    a('s_lshl_b32 s44, s41, 11')
    a('s_add_u32 s44, s44, s43')
    a('v_and_b32 v5, 31, v0')
    a('v_lshlrev_b32 v6, 1, v5')
    a('buffer_load_ushort v40, v6, s[32:35], s42 offen')
    a('buffer_load_ushort v41, v6, s[32:35], s42 offen offset:2048')
    a('s_and_b32 s45, s40, 0xffff0000')
    a('s_xor_b32 s46, s45, 0x80000000')
    a('s_xor_b32 s47, s45, 0xffff0000')
    a('s_cmp_lt_i32 s45, 0')
    a('s_cselect_b32 s45, s46, s47')
    a('v_mov_b32 v42, 0xbfb8aa3b')
    a('v_mul_f32 v42, s45, v42')
    a('v_exp_f32 v42, v42')
    a('v_add_f32 v42, 1.0, v42')
    a('v_rcp_f32 v42, v42')
    rnd(42, 42)
    a('s_waitcnt vmcnt(2)')
    stamp()
    for r in range(1, 7):
        a(f'v_pk_add_f32 v[{P}:{P + 1}], v[{P}:{P + 1}], v[{P + 4 * r}:{P + 4 * r + 1}]')
        a(f'v_pk_add_f32 v[{P + 2}:{P + 3}], v[{P + 2}:{P + 3}], v[{P + 4 * r + 2}:{P + 4 * r + 3}]')
    a('v_lshlrev_b32 v7, 4, v0')
    a(f'ds_write_b128 v7, v[{P}:{P + 3}]')
    a('v_lshrrev_b32 v7, 5, v0')
    a('v_lshlrev_b32 v7, 9, v7')
    a('v_lshl_add_u32 v7, v5, 2, v7')
    a('s_waitcnt lgkmcnt(0)')
    a('s_barrier')
    a('ds_read2_b32 v[16:17], v7 offset0:0 offset1:32')
    a('ds_read2_b32 v[18:19], v7 offset0:64 offset1:96')
    a('s_waitcnt lgkmcnt(0)')
    a('v_pk_add_f32 v[16:17], v[16:17], v[18:19]')
    a('v_add_f32 v16, v16, v17')
    a('v_lshlrev_b32 v7, 2, v0')
    a('ds_write_b32 v7, v16 offset:4096')
    a('v_lshlrev_b32 v7, 2, v5')
    a('s_waitcnt lgkmcnt(0)')
    a('s_barrier')
    for q in range(4):
        a(f'ds_read2_b32 v[{16 + 2 * q}:{17 + 2 * q}], v7 offset0:{0} offset1:{32}' if False else
          f'ds_read_b32 v{16 + 2 * q}, v7 offset:{4096 + 256 * q}')
        a(f'ds_read_b32 v{17 + 2 * q}, v7 offset:{4096 + 256 * q + 128}')
    a('s_waitcnt lgkmcnt(0)')
    a('v_pk_add_f32 v[16:17], v[16:17], v[18:19]')
    a('v_pk_add_f32 v[20:21], v[20:21], v[22:23]')
    a('v_pk_add_f32 v[16:17], v[16:17], v[20:21]')
    a('v_add_f32 v16, v16, v17')
    rnd(16, 16)
    a('v_mul_f32 v16, v16, v42')
    rnd(16, 16)
    a('s_waitcnt vmcnt(0)')
    a('v_lshlrev_b32 v40, 16, v40')
    a('v_lshlrev_b32 v41, 16, v41')
    a('v_add_f32 v16, v16, v40')
    rnd(16, 16)
    a('v_add_f32 v16, v16, v41')
    a('v_cvt_pk_bf16_f32 v16, v16, v16')
    a('v_cmp_gt_u32 vcc, 32, v0')
    a('s_and_saveexec_b64 s[46:47], vcc')
    a('s_cbranch_execz fin_fl')
    a('buffer_store_short v16, v6, s[24:27], s44 offen')
    a('fin_fl:')
    stamp_flush(10)
    a('fin_done:')
    a('s_endpgm')
    return kernel_desc('fin_kernel', 48, 100 if STAMPS else 72)


launch = '''; @launch kernel=prep_kernel grid=(256,1,1) block=(256,1,1) lds=16896
; @launch kernel=conv_kernel grid=(256,1,1) block=(256,1,1) lds=%d
; @launch kernel=rows_kernel grid=(256,1,1) block=(512,1,1) lds=16448
; @launch kernel=ffn_kernel grid=(224,1,1) block=(256,1,1) lds=2048
; @launch kernel=fin_kernel grid=(32,1,1) block=(256,1,1) lds=5120
''' % CONV_LDS

descs = [k_prep(), k_conv(), k_rows(), k_ffn(), k_fin()]
text = HEADER + launch + '.amdgcn_target "amdgcn-amd-amdhsa--gfx950"\n' + a.render() + ''.join(descs)
out = sys.argv[1] if len(sys.argv) > 1 and not sys.argv[1].startswith('--') else 'cdna_kernels/%s.s' % NAME
open(out, 'w').write(text)
print('wrote', out, len(text))
```

```python
import re

REG_RE = re.compile(r'^(-|\|)?(abs\()?([vsa])(\d+)\)?\|?$')
RANGE_RE = re.compile(r'^(-|\|)?(abs\()?([vsa])\[(\d+):(\d+)\]\)?\|?$')

TRANS = ('v_exp_f32', 'v_log_f32', 'v_rcp_f32', 'v_rsq_f32', 'v_sqrt_f32', 'v_sin_f32', 'v_cos_f32',
         'v_rcp_iflag_f32')


def parse_reg(tok):
    tok = tok.strip()
    m = REG_RE.match(tok)
    if m:
        return {(m.group(3), int(m.group(4)))}
    m = RANGE_RE.match(tok)
    if m:
        return {(m.group(3), i) for i in range(int(m.group(4)), int(m.group(5)) + 1)}
    if tok == 'vcc':
        return {('vcc', 0), ('vcc', 1)}
    if tok == 'vcc_lo':
        return {('vcc', 0)}
    if tok == 'vcc_hi':
        return {('vcc', 1)}
    if tok == 'exec':
        return {('exec', 0), ('exec', 1)}
    if tok == 'exec_lo':
        return {('exec', 0)}
    if tok == 'exec_hi':
        return {('exec', 1)}
    if tok == 'm0':
        return {('m0', 0)}
    return set()


def split_ops(s):
    out, cur, depth = [], '', 0
    for ch in s:
        if ch in '[(':
            depth += 1
        if ch in '])':
            depth -= 1
        if ch == ',' and depth == 0:
            out.append(cur.strip())
            cur = ''
        else:
            cur += ch
    out.append(cur.strip())
    mods = []
    if out:
        parts = out[-1].split()
        if parts:
            out[-1] = parts[0]
            mods = parts[1:]
    return out, mods


class Inst:
    __slots__ = ('text', 'mn', 'ops', 'mods', 'rd', 'wr', 'kind', 'passes', 'srcc', 'srcab', 'is_dpp', 'states',
                 'store_data', 'lanesel', 'sgpr_addr')

    def __init__(self, text):
        self.text = text
        t = text.split(';')[0].strip()
        sp = t.split(None, 1)
        self.mn = sp[0]
        rest = sp[1] if len(sp) > 1 else ''
        self.ops, self.mods = split_ops(rest) if rest else ([], [])
        self.rd, self.wr = set(), set()
        self.passes = 0
        self.srcc = set()
        self.srcab = set()
        self.store_data = set()
        self.lanesel = set()
        self.sgpr_addr = set()
        self.is_dpp = any(m.startswith(('row_', 'quad_perm', 'wave_', 'row_bcast', 'row_mirror', 'row_half_mirror',
                                        'row_newbcast')) for m in self.mods) or self.mn.endswith('_dpp')
        self.states = 1
        mn = self.mn
        base = re.sub(r'_(e32|e64|dpp|sdwa)$', '', mn)
        regs = [parse_reg(o) for o in self.ops]
        if mn == 's_nop':
            self.kind = 'nop'
            self.states = int(self.ops[0], 0) + 1
        elif mn.startswith('v_mfma'):
            self.kind = 'mfma'
            self.wr = regs[0]
            self.srcab = regs[1] | regs[2]
            self.srcc = regs[3]
            self.rd = self.srcab | self.srcc
            if '16x16x32' in mn or '16x16x16' in mn:
                self.passes = 4
            elif '32x32x16' in mn or '32x32x8' in mn:
                self.passes = 8
            else:
                raise ValueError('unknown mfma ' + mn)
        elif mn.startswith('v_'):
            self.kind = 'trans' if base in TRANS else 'valu'
            if base.startswith('v_cmp'):
                self.wr = regs[0]
                self.rd = set().union(*regs[1:])
                if base.startswith('v_cmpx'):
                    raise ValueError('no cmpx please')
            elif base in ('v_add_co_u32', 'v_sub_co_u32', 'v_subrev_co_u32', 'v_addc_co_u32', 'v_subb_co_u32',
                          'v_mad_u64_u32', 'v_div_scale_f32'):
                self.wr = regs[0] | regs[1]
                self.rd = set().union(*regs[2:])
            elif base in ('v_permlane16_swap_b32', 'v_permlane32_swap_b32', 'v_swap_b32'):
                self.wr = regs[0] | regs[1]
                self.rd = regs[0] | regs[1]
            elif base in ('v_readlane_b32', 'v_writelane_b32'):
                self.wr = regs[0]
                self.rd = set().union(*regs[1:])
                self.lanesel = regs[2]
                if base == 'v_writelane_b32':
                    self.rd |= regs[0]
            elif base == 'v_nop':
                pass
            else:
                self.wr = regs[0]
                self.rd = set().union(*regs[1:]) if len(regs) > 1 else set()
                if base in ('v_fmac_f32', 'v_pk_fmac_f16', 'v_dot2c_f32_bf16', 'v_dot2c_f32_f16', 'v_mac_f32'):
                    self.rd |= regs[0]
                if self.is_dpp:
                    self.rd |= regs[0]
                if base == 'v_div_fmas_f32':
                    self.rd |= parse_reg('vcc')
                if base.startswith('v_cndmask') and len(self.ops) == 3:
                    self.rd |= parse_reg('vcc')
        elif mn.startswith('ds_'):
            self.kind = 'ds'
            if mn.startswith(('ds_read', 'ds_bpermute', 'ds_permute', 'ds_swizzle')) or '_rtn' in mn:
                self.wr = regs[0]
                self.rd = set().union(*regs[1:]) if len(regs) > 1 else set()
            else:
                self.rd = set().union(*regs)
        elif mn.startswith(('global_', 'buffer_', 'flat_')):
            self.kind = 'vmem'
            is_lds = 'lds' in self.mods or '_lds_' in mn
            if mn in ('buffer_wbl2', 'buffer_inv'):
                pass
            elif ('load' in mn) and not is_lds:
                self.wr = regs[0]
                self.rd = set().union(*regs[1:])
                if 'd16' in mn:
                    self.rd |= regs[0]
            elif 'atomic' in mn and 'sc0' in self.mods and mn.startswith('global_'):
                self.wr = regs[0]
                self.rd = set().union(*regs[1:])
            else:
                self.rd = set().union(*regs)
                if 'atomic' in mn and 'sc0' in self.mods:
                    self.wr = regs[0]
                if 'store' in mn and ('x3' in mn or 'x4' in mn):
                    self.store_data = regs[0] if mn.startswith('buffer_') else regs[1]
                if is_lds:
                    self.rd |= parse_reg('m0')
            self.sgpr_addr = {r for r in self.rd if r[0] in ('s', 'vcc')}
        elif mn.startswith('s_'):
            self.kind = 'salu'
            if mn.startswith(('s_cmp', 's_cbranch', 's_branch', 's_waitcnt', 's_barrier', 's_endpgm', 's_sleep',
                              's_setprio', 's_bitcmp', 's_setreg', 's_sethalt', 's_setpc')):
                self.rd = set().union(*regs) if regs else set()
                if mn.startswith(('s_cbranch', 's_branch', 's_endpgm', 's_setpc')):
                    self.kind = 'branch'
            else:
                self.wr = regs[0]
                self.rd = set().union(*regs[1:]) if len(regs) > 1 else set()
                if 'saveexec' in mn:
                    self.wr |= parse_reg('exec')
                    self.rd |= parse_reg('exec')
                if mn.startswith(('s_load', 's_buffer_load', 's_memtime', 's_memrealtime', 's_atomic')):
                    self.kind = 'smem'
        else:
            raise ValueError('unknown instruction: ' + text)


def isv(r):
    return r[0] in ('v', 'a')


def iss(r):
    return r[0] in ('s', 'vcc')


XDL_VALU = {2: 5, 4: 8, 8: 12, 16: 20}
XDL_AB = {2: 5, 4: 8, 8: 12, 16: 20}
XDL_C_OVL = {2: 4, 4: 6, 8: 10, 16: 18}
XDL_WAR_C = {2: 1, 4: 3, 8: 7, 16: 15}


def required(p, c):
    need = 0
    pv = p.kind in ('valu', 'trans')
    cv = c.kind in ('valu', 'trans')
    cbase = re.sub(r'_(e32|e64|dpp|sdwa)$', '', c.mn)
    if pv:
        wv = {r for r in p.wr if isv(r)}
        ws = {r for r in p.wr if iss(r)}
        if c.kind == 'mfma' and (wv & c.rd):
            need = max(need, 2)
        if cv and c.is_dpp and (wv & c.rd):
            need = max(need, 2)
        if cbase in ('v_readlane_b32', 'v_readfirstlane_b32') and (wv & c.rd):
            need = max(need, 1)
        if cbase.startswith('v_permlane') and (wv & c.rd):
            need = max(need, 2)
        if p.kind == 'trans' and (c.kind in ('valu', 'mfma', 'vmem', 'ds')) and (wv & c.rd):
            need = max(need, 1)
        if ws:
            if cv and (ws & c.rd):
                need = max(need, 2)
            if c.lanesel & ws:
                need = max(need, 4)
            if cbase == 'v_div_fmas_f32' and any(r[0] == 'vcc' for r in ws):
                need = max(need, 4)
            if c.kind == 'vmem' and (ws & c.sgpr_addr):
                need = max(need, 5)
            if c.kind in ('salu', 'smem', 'branch') and ((ws & c.rd) or (c.mn.startswith('s_cbranch_vcc') and any(r[0] == 'vcc' for r in ws))):
                need = max(need, 1)
        if p.mn.startswith('v_dot'):
            if c.mn == p.mn and cv:
                srcab = set()
                for o in c.ops[1:3]:
                    srcab |= parse_reg(o)
                if wv & srcab:
                    need = max(need, 3)
            elif wv & (c.rd | c.wr):
                need = max(need, 3)
        if 'sdwa' in p.mn or (any(m.startswith(('op_sel', 'dst_sel')) for m in p.mods) and not p.mn.startswith('v_pk_')):
            if (cv or c.kind == 'mfma') and (wv & (c.rd | c.wr)):
                need = max(need, 1)
    if p.kind == 'mfma':
        d = p.wr
        if c.kind == 'mfma':
            if d & c.srcab:
                need = max(need, XDL_AB[p.passes])
            if d & c.srcc:
                if c.srcc == d and c.passes == p.passes:
                    need = max(need, 2 if p.passes == 2 else 0)
                else:
                    need = max(need, XDL_C_OVL[p.passes])
            elif d & c.wr:
                need = max(need, XDL_VALU[p.passes])
        elif c.kind in ('valu', 'trans', 'vmem', 'ds'):
            if d & (c.rd | c.wr):
                need = max(need, XDL_VALU[p.passes])
        if c.kind in ('valu', 'trans', 'vmem', 'ds') and (p.srcc & c.wr):
            need = max(need, XDL_WAR_C[p.passes])
    if p.kind == 'vmem' and p.store_data:
        if p.store_data & c.wr:
            need = max(need, 2 if (cv or c.kind == 'mfma') else 1)
    if p.kind == 'salu' and any(r[0] == 'm0' for r in p.wr):
        if any(r[0] == 'm0' for r in c.rd) and c.kind in ('vmem', 'ds'):
            need = max(need, 1)
    if p.kind == 'salu' and any(r[0] == 'exec' for r in p.wr):
        if cv and c.is_dpp:
            need = max(need, 1)
    return need


def max_pending(p):
    if p.kind == 'mfma':
        return XDL_VALU[p.passes]
    if p.kind in ('valu', 'trans'):
        if any(iss(r) for r in p.wr):
            return 5
        if p.mn.startswith('v_dot'):
            return 3
        return 2
    if p.kind == 'vmem' and p.store_data:
        return 2
    if p.kind == 'salu' and any(r[0] in ('m0', 'exec') for r in p.wr):
        return 1
    return 0


class Asm:
    def __init__(self):
        self.items = []
        self.uid = 0

    def __call__(self, text):
        for line in text.strip().split('\n'):
            line = line.strip()
            if not line or line.startswith(';'):
                if line:
                    self.items.append(('r', '    ' + line))
                continue
            if line.endswith(':') and ' ' not in line:
                self.items.append(('l', line[:-1]))
            else:
                self.items.append(('i', Inst(line)))

    def raw(self, text):
        self.items.append(('r', text))

    def label(self, name):
        self.items.append(('l', name))

    def newlabel(self, base='L'):
        self.uid += 1
        return f'{base}_{self.uid}'

    def render(self):
        out = []
        hist = []
        WINDOW = 24

        def pad(n):
            while n > 0:
                k = min(n, 16)
                out.append(f'    s_nop {k - 1}')
                for h in hist:
                    h[1] += k
                n -= k

        for kind, it in self.items:
            if kind == 'r':
                out.append(it)
                if it.strip().startswith(('.p2align', '.text', '.section', '.globl', '.type', '.amdhsa', '.end')):
                    pass
                continue
            if kind == 'l':
                need = 0
                for h in hist:
                    need = max(need, max_pending(h[0]) - h[1])
                pad(need)
                hist = []
                out.append(it + ':')
                continue
            need = 0
            for h in hist:
                need = max(need, required(h[0], it) - h[1])
            if it.kind == 'branch' and it.mn != 's_endpgm':
                for h in hist:
                    need = max(need, max_pending(h[0]) - h[1] - 1)
            pad(need)
            out.append('    ' + it.text)
            for h in hist:
                h[1] += it.states
            hist = [h for h in hist if h[1] < WINDOW]
            hist.append([it, 0])
            if it.mn in ('s_endpgm', 's_branch'):
                hist = []
        return '\n'.join(out) + '\n'


def kernel_begin(a, name):
    a.raw('.text')
    a.raw(f'.globl {name}')
    a.raw('.p2align 8')
    a.raw(f'.type {name},@function')
    a.label(name)


def kernel_desc(name, vgpr, sgpr, accum=None):
    if accum is None:
        accum = (vgpr + 3) // 4 * 4
    return f'''.section .rodata,"a"
.p2align 6
.amdhsa_kernel {name}
  .amdhsa_next_free_vgpr {vgpr}
  .amdhsa_next_free_sgpr {sgpr}
  .amdhsa_accum_offset {accum}
  .amdhsa_group_segment_fixed_size 0
  .amdhsa_kernarg_size 112
  .amdhsa_user_sgpr_count 2
  .amdhsa_user_sgpr_kernarg_segment_ptr 1
  .amdhsa_system_sgpr_workgroup_id_x 1
  .amdhsa_float_denorm_mode_32 3
.end_amdhsa_kernel
'''
```

```python
import sys
from asmlib import *

NAME = 'sequential_preLN__ssm_conv_h3__moe_arch_mod__prompt'
HEADER = open('cdna_kernels/%s.s.ref' % NAME).read().split('; Override launch')[0]
MB4 = 4 << 20
a = Asm()
STAMPS = '--stamps' in sys.argv
WS_STAMP = 16 << 20
_st = {'n': 0, 'k': 0}


def opt(name, default=0):
    for x in sys.argv:
        if x.startswith('--%s=' % name):
            return int(x.split('=')[1], 0)
    return default


def stamp_begin(kidx):
    _st['k'] = kidx
    if STAMPS:
        for i in range(8):
            a(f's_mov_b64 s[{80 + 2 * i}:{81 + 2 * i}], 0')
    stamp(0)


def stamp(n):
    if not STAMPS:
        return
    assert n < 8
    a(f's_memrealtime s[{80 + 2 * n}:{81 + 2 * n}]')


def stamp_flush(wsreg, n, vtid):
    if not STAMPS:
        return
    a('s_waitcnt vmcnt(0) lgkmcnt(0)')
    stamp(n)
    a('s_mov_b64 exec, -1')
    a(f'v_lshrrev_b32 v1, 6, v{vtid}')
    a(f's_add_u32 s100, s2, {_st["k"] * 256}')
    a('s_lshl_b32 s100, s100, 9')
    a('v_lshlrev_b32 v1, 6, v1')
    a('v_add_u32 v1, s100, v1')
    a(f's_add_u32 s96, s{wsreg}, {WS_STAMP}')
    a(f's_addc_u32 s97, s{wsreg + 1}, 0')
    a('s_mov_b32 s98, 0x100000')
    a('s_mov_b32 s99, 0x00020000')
    a('s_waitcnt lgkmcnt(0)')
    a('s_mov_b64 exec, 1')
    for i in range(8):
        a(f'v_mov_b32 v2, s{80 + 2 * i}')
        a(f'v_mov_b32 v3, s{81 + 2 * i}')
        a(f'buffer_store_dwordx2 v[2:3], v1, s[96:99], 0 offen offset:{8 * i}')


def srd(dst, base, nbytes, off=0):
    if off:
        a(f's_add_u32 s{dst}, s{base}, {off}')
        a(f's_addc_u32 s{dst + 1}, s{base + 1}, 0')
    else:
        if dst != base:
            a(f's_mov_b32 s{dst}, s{base}')
            a(f's_mov_b32 s{dst + 1}, s{base + 1}')
    a(f's_mov_b32 s{dst + 2}, {nbytes}')
    a(f's_mov_b32 s{dst + 3}, 0x00020000')


def rnd(d, s):
    a(f'v_cvt_pk_bf16_f32 v{d}, 0, v{s}')


def unpack(dlo, dhi, s):
    if dlo == s:
        a(f'v_and_b32 v{dhi}, 0xffff0000, v{s}')
        a(f'v_lshlrev_b32 v{dlo}, 16, v{s}')
    else:
        a(f'v_lshlrev_b32 v{dlo}, 16, v{s}')
        a(f'v_and_b32 v{dhi}, 0xffff0000, v{s}')


def wave_reduce(op, vs):
    if isinstance(vs, int):
        vs = [vs]
    for sh in (1, 2, 4, 8):
        for v in vs:
            a(f'{op}_dpp v{v}, v{v}, v{v} row_shr:{sh} row_mask:0xf bank_mask:0xf bound_ctrl:0')
    for v in vs:
        a(f'{op}_dpp v{v}, v{v}, v{v} row_bcast:15 row_mask:0xa bank_mask:0xf')
    for v in vs:
        a(f'{op}_dpp v{v}, v{v}, v{v} row_bcast:31 row_mask:0xc bank_mask:0xf')


def pk(op, d, x, y, z=None, mods=''):
    if z is None:
        a(f'v_pk_{op}_f32 v[{d}:{d + 1}], v[{x}:{x + 1}], v[{y}:{y + 1}] {mods}')
    else:
        a(f'v_pk_{op}_f32 v[{d}:{d + 1}], v[{x}:{x + 1}], v[{y}:{y + 1}], v[{z}:{z + 1}] {mods}')


def finish(launch, descs):
    text = HEADER + launch + '.amdgcn_target "amdgcn-amd-amdhsa--gfx950"\n' + a.render() + ''.join(descs)
    out = sys.argv[1] if len(sys.argv) > 1 and not sys.argv[1].startswith('--') else 'cdna_kernels/%s.s' % NAME
    open(out, 'w').write(text)
    print('wrote', out, len(text))
```

```python
from common import *

WS_UT = 0
WS_Y = 4 << 20
WS_KEYS = 8 << 20
WS_CAND = (8 << 20) + 262144
WS_PART = 10 << 20
WS_GX = WS_KEYS + 32768
WS_SIZE = 12 << 20
POLL_MAX = 1 << 16
PF = opt('pf', 3)


def k_prep():
    kernel_begin(a, 'prep_kernel')
    a('s_cmp_ge_u32 s2, 256')
    a('s_cbranch_scc1 prep_done')
    stamp_begin(0)
    a('s_load_dwordx8 s[4:11], s[0:1], 0')
    a('s_load_dwordx2 s[44:45], s[0:1], 32')
    a('s_load_dwordx2 s[28:29], s[0:1], 104')
    a('s_lshr_b32 s12, s2, 4')
    a('s_and_b32 s13, s2, 15')
    a('v_and_b32 v1, 15, v0')
    a('v_lshrrev_b32 v2, 4, v0')
    a('s_lshl_b32 s14, s12, 18')
    a('s_lshl_b32 s15, s13, 7')
    a('s_add_u32 s14, s14, s15')
    a('v_lshlrev_b32 v3, 14, v2')
    a('v_lshl_add_u32 v3, v1, 3, v3')
    a('v_add_u32 v3, s14, v3')
    a('v_subrev_u32 v4, 6144, v3')
    a('v_mov_b32 v5, 0x80000000')
    a('v_cmp_gt_u32 vcc, 6144, v3')
    a('v_cndmask_b32 v4, v4, v5, vcc')
    a('s_lshl_b32 s15, s13, 9')
    a('v_lshlrev_b32 v5, 5, v1')
    a('v_add_u32 v5, s15, v5')
    a('s_mov_b32 s40, 4096')
    a('s_mov_b32 s41, 8192')
    a('s_mov_b32 s42, 12288')
    a('v_lshlrev_b32 v10, 4, v0')
    a('s_lshl_b32 s52, s2, 14')
    a('v_add_u32 v11, s52, v10')
    for j in range(4):
        a(f'v_mov_b32 v{136 + j}, -1')
    a('s_waitcnt lgkmcnt(0)')
    srd(16, 6, MB4)
    srd(20, 8, MB4)
    srd(24, 10, 8192)
    srd(28, 28, WS_SIZE)
    srd(32, 4, MB4)
    srd(44, 44, MB4)
    KR, VR, WR = 12, 34, 50
    a(f'buffer_load_dwordx4 v[{WR}:{WR + 3}], v5, s[24:27], 0 offen')
    a(f'buffer_load_dwordx4 v[{WR + 4}:{WR + 7}], v5, s[24:27], 0 offen offset:16')
    so = ['0', 's40', 's41', 's42']
    for r in range(3):
        a(f'buffer_load_dwordx2 v[{KR + 2 * r}:{KR + 2 * r + 1}], v4, s[16:19], {so[r >> 1]} offen offset:{(r & 1) * 2048} nt')
    for r in range(8):
        a(f'buffer_load_dwordx2 v[{KR + 6 + 2 * r}:{KR + 7 + 2 * r}], v3, s[16:19], {so[r >> 1]} offen offset:{(r & 1) * 2048} nt')
    for r in range(8):
        a(f'buffer_load_dwordx2 v[{VR + 2 * r}:{VR + 2 * r + 1}], v3, s[20:23], {so[r >> 1]} offen offset:{(r & 1) * 2048} nt')
    later = 0
    a(f'v_add_u32 v6, {WS_Y}, v11')
    for p in range(4):
        a(f'buffer_store_dwordx4 v[136:139], v6, s[28:31], {so[p]} offen sc1')
    a('s_lshl_b32 s53, s2, 12')
    a(f's_add_u32 s54, s53, {WS_CAND}')
    a(f's_add_u32 s55, s53, {WS_PART}')
    a('buffer_store_dwordx4 v[136:139], v10, s[28:31], s54 offen sc1')
    a('buffer_store_dwordx4 v[136:139], v10, s[28:31], s55 offen sc1')
    later += 6
    a('s_cmp_lt_u32 s2, 40')
    a('s_cselect_b32 s56, s53, 0x40000000')
    a(f's_add_u32 s56, s56, {WS_KEYS}')
    a('buffer_store_dwordx4 v[136:139], v10, s[28:31], s56 offen sc1')
    later += 1
    if PF & 1:
        for p in range(4):
            a(f'buffer_load_dwordx4 v[140:143], v11, s[44:47], {so[p]} offen nt')
        later += 4
    if PF & 2:
        for p in range(4):
            a(f'buffer_load_dwordx4 v[140:143], v11, s[32:35], {so[p]} offen nt')
        later += 4
    a('v_mul_u32_u24 v6, 1040, v1')
    a('v_sub_u32 v7, 15, v2')
    a('v_lshl_add_u32 v6, v7, 4, v6')
    a('v_lshrrev_b32 v8, 6, v0')
    a('v_mul_u32_u24 v8, 1040, v8')
    a('v_and_b32 v9, 63, v0')
    a('v_lshl_add_u32 v8, v9, 4, v8')
    a('s_lshl_b32 s14, s13, 18')
    a('s_sub_u32 s15, 15, s12')
    a('s_lshl_b32 s15, s15, 8')
    a('s_add_u32 s14, s14, s15')
    a('v_lshlrev_b32 v9, 12, v2')
    a('v_lshl_add_u32 v9, v1, 4, v9')
    a('v_add_u32 v9, s14, v9')
    a('s_mov_b32 s48, 0x10000')
    a('s_mov_b32 s49, 0x20000')
    a('s_mov_b32 s50, 0x30000')
    WF = 58
    KF = 74
    VF = 96
    O = 112
    CH = 128
    a(f's_waitcnt vmcnt({19 + later})')
    for p in range(2):
        for jj in range(2):
            j = 2 * p + jj
            unpack(WF + 8 * p + 0 + jj, WF + 8 * p + 2 + jj, WR + 2 * j)
            unpack(WF + 8 * p + 4 + jj, WF + 8 * p + 6 + jj, WR + 2 * j + 1)
    a(f's_waitcnt vmcnt({8 + later})')
    stamp(1)
    for p in range(2):
        for r in range(11):
            unpack(KF + 2 * r, KF + 2 * r + 1, KR + 2 * r + p)
        for t in range(4):
            tap = 3 - t
            for r in range(8):
                if t == 0:
                    pk('mul', O + 2 * r, KF + 2 * (r + t), WF + 8 * p + 2 * tap)
                else:
                    pk('fma', O + 2 * r, KF + 2 * (r + t), WF + 8 * p + 2 * tap, O + 2 * r)
        if p == 0:
            a(f's_waitcnt vmcnt({later})')
        for r in range(8):
            unpack(VF + 2 * r, VF + 2 * r + 1, VR + 2 * r + p)
        for r in range(8):
            pk('mul', O + 2 * r, O + 2 * r, VF + 2 * r)
        for jj in range(2):
            for m in range(4):
                a(f'v_cvt_pk_bf16_f32 v{CH + 4 * jj + m}, v{O + 2 * (7 - 2 * m) + jj}, v{O + 2 * (6 - 2 * m) + jj}')
            a(f'ds_write_b128 v6, v[{CH + 4 * jj}:{CH + 4 * jj + 3}] offset:{(2 * p + jj) * 256}')
    stamp(2)
    so = ['0', 's48', 's49', 's50']
    a('s_waitcnt lgkmcnt(0)')
    a('s_barrier')
    for p in range(4):
        a(f'ds_read_b128 v[{12 + 4 * p}:{15 + 4 * p}], v8 offset:{4160 * p}')
    for p in range(4):
        a(f's_waitcnt lgkmcnt({3 - p})')
        a(f'buffer_store_dwordx4 v[{12 + 4 * p}:{15 + 4 * p}], v9, s[28:31], {so[p]} offen')
    stamp_flush(28, 3, 0)
    a('prep_done:')
    a('s_endpgm')
    return kernel_desc('prep_kernel', 144, 102 if STAMPS else 64)


GS = 4160
UOFF = 4 * GS
CS = 21312
L_YT = 4 * CS
L_KEY = L_YT + 16384
L_FLAG = L_KEY + 32
L_GKEY = L_KEY + 48
L_X = L_KEY + 64
L_RED = L_X + 2048
MAIN_LDS = L_RED + 2048

S_H, S_WS, S_Q, S_WR, S_OUT, S_G, S_U, S_D = 28, 32, 36, 40, 44, 48, 52, 56


def poll_loop(name, loads, regs, tmp, sleep=2):
    a('s_mov_b32 s61, 0')
    a(f'{name}_again:')
    for l in loads:
        a(l)
    a('s_waitcnt vmcnt(0)')
    rs = list(regs)
    cur = rs.pop(0)
    first = True
    while rs:
        if len(rs) >= 2:
            a(f'v_max3_u32 v{tmp}, v{cur}, v{rs[0]}, v{rs[1]}')
            rs = rs[2:]
        else:
            a(f'v_max_u32 v{tmp}, v{cur}, v{rs[0]}')
            rs = rs[1:]
        cur = tmp
    a(f'v_cmp_eq_u32 vcc, -1, v{cur}')
    a(f's_cbranch_vccz {name}_ok')
    a('s_add_u32 s61, s61, 1')
    a(f's_cmp_ge_u32 s61, {POLL_MAX}')
    a(f's_cbranch_scc1 {name}_ok')
    a(f's_sleep {sleep}')
    a(f's_branch {name}_again')
    a(f'{name}_ok:')


def ln_x(XR, X, N, T):
    for i in range(8):
        unpack(X + 2 * i, X + 2 * i + 1, XR + i)
    ln_stats(X, T, None, None)
    ln_apply(T, N)


def ln_stats(X, T, W, sdot):
    M, V = T + 16, T + 18
    for i in range(4):
        pk('add', T + 2 * i, X + 4 * i, X + 4 * i + 2)
    pk('add', T, T, T + 2)
    pk('add', T + 4, T + 4, T + 6)
    pk('add', T, T, T + 4)
    a(f'v_add_f32 v{T}, v{T}, v{T + 1}')
    a(f'v_mov_b32 v{V}, 0x3a800000')
    wave_reduce('v_add_f32', T)
    a(f'v_readlane_b32 s60, v{T}, 63')
    a(f'v_mul_f32 v{V}, s60, v{V}')
    rnd(M, V)
    rnd(M + 1, V)
    a(f'v_sub_f32 v{V}, v{V}, v{M}')
    for i in range(8):
        pk('add', T + 2 * i, X + 2 * i, M, mods='neg_lo:[0,1] neg_hi:[0,1]')
    A0 = X if False else None
    return


def row_tail_stats(T, W, A, want_r):
    M, V = T + 16, T + 18
    pk('mul', A, T, T)
    pk('mul', A + 2, T + 2, T + 2)
    if want_r:
        pk('mul', A + 4, T, W)
        pk('mul', A + 6, T + 2, W + 2)
    for i in range(2, 8):
        d = A + 2 * (i & 1)
        pk('fma', d, T + 2 * i, T + 2 * i, d)
        if want_r:
            pk('fma', d + 4, T + 2 * i, W + 2 * i, d + 4)
    pk('add', A, A, A + 2)
    if want_r:
        pk('add', A + 4, A + 4, A + 6)
    a(f'v_add_f32 v{A}, v{A}, v{A + 1}')
    if want_r:
        a(f'v_add_f32 v{A + 4}, v{A + 4}, v{A + 5}')
    a(f'v_mul_f32 v{V}, v{V}, v{V}')
    a(f'v_mov_b32 v{A + 1}, 0x3a800000')
    wave_reduce('v_add_f32', [A, A + 4] if want_r else [A])
    a(f'v_readlane_b32 s60, v{A}, 63')
    if want_r:
        a(f'v_readlane_b32 s62, v{A + 4}, 63')
    a(f'v_fma_f32 v{V}, s60, v{A + 1}, -v{V}')
    rnd(V, V)
    a(f'v_add_f32 v{V}, 0x3727c5ac, v{V}')
    rnd(V, V)
    a(f'v_sqrt_f32 v{V}, v{V}')
    rnd(V, V)
    a(f'v_rcp_f32 v{V + 1}, v{V}')
    a(f'v_rcp_f32 v{V}, v{V}')
    if want_r:
        a(f'v_mul_f32 v{M}, s62, v{V}')
        rnd(M, M)


def ln_apply(T, N):
    V = T + 18
    for i in range(16):
        rnd(N + i, T + i)
    for i in range(8):
        pk('mul', N + 2 * i, N + 2 * i, V)
    for i in range(16):
        rnd(N + i, N + i)


def k_main():
    kernel_begin(a, 'main_kernel')
    a('s_cmp_ge_u32 s2, 256')
    a('s_cbranch_scc1 main_done')
    stamp_begin(1)
    a('s_load_dwordx2 s[4:5], s[0:1], 0')
    a('s_load_dwordx4 s[8:11], s[0:1], 32')
    a('s_load_dwordx8 s[16:23], s[0:1], 56')
    a('s_load_dwordx2 s[24:25], s[0:1], 88')
    a('s_load_dwordx2 s[26:27], s[0:1], 104')
    a('v_lshrrev_b32 v3, 6, v0')
    a('v_and_b32 v1, 63, v0')
    a('v_readfirstlane_b32 s12, v3')
    a('v_lshlrev_b32 v2, 4, v1')
    a('s_and_b32 s13, s12, 3')
    a('s_lshr_b32 s14, s12, 2')
    a('s_lshl_b32 s15, s2, 2')
    a('s_add_u32 s15, s15, s13')
    a('s_lshl_b32 s63, s15, 12')
    a('s_lshl_b32 s64, s14, 11')
    a('s_add_u32 s65, s63, s64')
    a(f's_mul_i32 s66, s13, {CS}')
    a('s_add_u32 s67, s66, s64')
    a('v_add_u32 v3, s67, v2')
    a('s_lshl_b32 s68, s2, 3')
    a('s_add_u32 s68, s68, s12')
    a('s_lshl_b32 s69, s68, 11')
    a('s_lshl_b32 s70, s15, 1')
    a('s_and_b32 s70, s70, 0xfffffffc')
    a('s_waitcnt lgkmcnt(0)')
    a(f's_add_u32 s{S_H}, s8, s63')
    a(f's_addc_u32 s{S_H + 1}, s9, 0')
    a(f's_mov_b32 s{S_H + 2}, 4096')
    a(f's_mov_b32 s{S_H + 3}, 0x00020000')
    srd(S_WS, 26, WS_SIZE)
    srd(S_Q, 4, MB4)
    srd(S_WR, 16, 2048)
    GL = 16
    UL = 40
    XR, WR = 232, 240
    for i in range(2):
        for j in range(3):
            a(f'buffer_load_dwordx4 v[{GL + 12 * i + 4 * j}:{GL + 12 * i + 4 * j + 3}], v2, s[{S_H}:{S_H + 3}], s64 offen offset:{1024 * i + 4 * j} nt')
    for i in range(2):
        a(f'buffer_load_dwordx4 v[{UL + 4 * i}:{UL + 4 * i + 3}], v2, s[{S_WS}:{S_WS + 3}], s65 offen offset:{1024 * i}')
    for i in range(2):
        a(f'buffer_load_dwordx4 v[{XR + 4 * i}:{XR + 4 * i + 3}], v2, s[{S_Q}:{S_Q + 3}], s69 offen offset:{1024 * i} nt')
    for i in range(2):
        a(f'buffer_load_dwordx4 v[{WR + 4 * i}:{WR + 4 * i + 3}], v2, s[{S_WR}:{S_WR + 3}], 0 offen offset:{1024 * i}')
    a('s_load_dword s71, s[10:11], s70')
    a(f's_load_dwordx2 s[72:73], s[{S_H}:{S_H + 1}], 0')
    srd(S_OUT, 24, MB4)
    a('s_mov_b32 s74, 0x05040100')
    a('s_mov_b32 s75, 0x07060302')

    def build_g(extra):
        TA, TB = 48, 52
        for i in range(2):
            y, x, z = GL + 12 * i, GL + 12 * i + 4, GL + 12 * i + 8
            a(f's_waitcnt vmcnt({9 - 3 * i + extra})')
            a(f'ds_write_b128 v3, v[{x}:{x + 3}] offset:{32 + 1024 * i + 1 * GS}')
            a(f'ds_write_b128 v3, v[{z}:{z + 3}] offset:{32 + 1024 * i + 3 * GS}')
            for j in range(4):
                a(f'v_alignbit_b32 v{TA + 8 * i + j}, v{x + j}, v{y + j}, 16')
            a(f'ds_write_b128 v3, v[{TA + 8 * i}:{TA + 8 * i + 3}] offset:{32 + 1024 * i + 0 * GS}')
            for j in range(4):
                a(f'v_alignbit_b32 v{TB + 8 * i + j}, v{z + j}, v{x + j}, 16')
            a(f'ds_write_b128 v3, v[{TB + 8 * i}:{TB + 8 * i + 3}] offset:{32 + 1024 * i + 2 * GS}')
        a(f's_waitcnt vmcnt({4 + extra})')
        for i in range(2):
            a(f'ds_write_b128 v3, v[{UL + 4 * i}:{UL + 4 * i + 3}] offset:{UOFF + 1024 * i}')

    X, N, T, A8, Y, WF = 4, 20, 36, 56, 64, 72

    a('s_cmp_eq_u32 s14, 0')
    a('s_cbranch_scc0 helper')
    a('v_and_b32 v4, 15, v1')
    a('v_lshrrev_b32 v5, 4, v1')
    a('v_and_b32 v6, 3, v1')
    a(f'v_mul_u32_u24 v6, {GS}, v6')
    a('v_bfe_u32 v7, v1, 2, 2')
    a('v_lshl_add_u32 v6, v7, 3, v6')
    a('v_lshl_add_u32 v6, v5, 4, v6')
    a('v_add_u32 v6, s66, v6')
    a(f's_add_u32 s67, s66, {UOFF + 480}')
    a('v_lshlrev_b32 v8, 5, v4')
    a('v_sub_u32 v7, s67, v8')
    a('v_lshl_add_u32 v7, v5, 4, v7')
    a('v_lshl_add_u32 v8, v5, 3, v8')
    a('v_add_u32 v8, s66, v8')
    a('v_lshl_add_u32 v9, v5, 3, v4')
    a('v_sub_u32 v9, 15, v9')
    a('v_and_b32 v10, 1, v9')
    a('v_lshlrev_b32 v10, 4, v10')
    a('v_ashrrev_i32 v9, 1, v9')
    a('s_and_b32 s76, s15, 1')
    a('s_lshl_b32 s76, s76, 4')
    a('s_waitcnt lgkmcnt(0)')
    a('s_lshr_b32 s71, s71, s76')
    a('s_and_b32 s71, s71, 0xffff')
    a('v_lshlrev_b32 v10, v10, s71')
    for r in range(4):
        a(f'v_cmp_eq_u32 vcc, {r}, v9')
        a(f'v_cndmask_b32 v{12 + r}, 0, v10, vcc')
    build_g(0)
    a('s_waitcnt lgkmcnt(0)')
    a('s_barrier')
    stamp(1)
    ACC = 16
    FR = [48, 112]

    def reads(c):
        s = FR[c & 1]
        out = []
        for j in range(8):
            out.append(f'ds_read_b128 v[{s + 32 + 4 * j}:{s + 32 + 4 * j + 3}], v7 offset:{64 * (56 - (8 * j - c))}')
            out.append(f'ds_read_b64 v[{s + 4 * j}:{s + 4 * j + 1}], v6 offset:{64 * (8 * j + c)}')
            out.append(f'ds_read_b64 v[{s + 4 * j + 2}:{s + 4 * j + 3}], v6 offset:{64 * (8 * j + c) + 8}')
        return out

    r0 = reads(0)
    for r in r0[0::3]:
        a(r)
    for r in [x for i, x in enumerate(r0) if i % 3]:
        a(r)
    s = FR[0]
    for z in range(8):
        a(f's_waitcnt lgkmcnt({min(15, 16 + 7 - z)})')
        a(f'v_mfma_f32_16x16x32_bf16 v[{ACC + 4 * z}:{ACC + 4 * z + 3}], v[12:15], v[{s + 32 + 4 * z}:{s + 32 + 4 * z + 3}], 0')
    for c in range(8):
        s = FR[c & 1]
        a('s_waitcnt lgkmcnt(0)')
        nxt = reads(c + 1) if c < 7 else []
        order = [(n, z) for n in range(8) for z in range(8 - n)]
        if c == 7:
            order = sorted(order, key=lambda nz: (nz[0] + nz[1], nz[0]))
        pend = []
        for k, (n, z) in enumerate(order):
            w = n + z
            a(f'v_mfma_f32_16x16x32_bf16 v[{ACC + 4 * w}:{ACC + 4 * w + 3}], v[{s + 4 * n}:{s + 4 * n + 3}], v[{s + 32 + 4 * z}:{s + 32 + 4 * z + 3}], v[{ACC + 4 * w}:{ACC + 4 * w + 3}]')
            if nxt:
                a(nxt.pop(0))
            if c == 7:
                if n == w:
                    pend.append([w, 0])
                for p in pend:
                    p[1] += 1
                if pend and pend[0][1] > 5:
                    w0 = pend.pop(0)[0]
                    E = FR[0] + 2 * w0
                    a(f'v_cvt_pk_bf16_f32 v{E}, v{ACC + 4 * w0}, v{ACC + 4 * w0 + 1}')
                    a(f'v_cvt_pk_bf16_f32 v{E + 1}, v{ACC + 4 * w0 + 2}, v{ACC + 4 * w0 + 3}')
                    a(f'ds_write_b64 v8, v[{E}:{E + 1}] offset:{512 * w0}')
        assert not nxt
    a('v_and_b32 v4, 3, v0')
    a('v_lshrrev_b32 v5, 2, v0')
    a(f'v_mul_u32_u24 v6, {CS}, v4')
    a('v_lshl_add_u32 v6, v5, 4, v6')
    a('v_lshlrev_b32 v7, 14, v5')
    a('v_lshl_add_u32 v7, v4, 4, v7')
    a('s_lshl_b32 s67, s2, 6')
    a(f's_add_u32 s67, s67, {WS_Y}')
    a('v_add_u32 v7, s67, v7')
    a(f'v_mov_b32 v9, {L_FLAG}')
    a('v_mov_b32 v10, 1')
    for w0, _ in pend:
        E = FR[0] + 2 * w0
        a(f'v_cvt_pk_bf16_f32 v{E}, v{ACC + 4 * w0}, v{ACC + 4 * w0 + 1}')
        a(f'v_cvt_pk_bf16_f32 v{E + 1}, v{ACC + 4 * w0 + 2}, v{ACC + 4 * w0 + 3}')
        a(f'ds_write_b64 v8, v[{E}:{E + 1}] offset:{512 * w0}')
    stamp(2)
    a('s_mov_b64 exec, 1')
    a('ds_add_u32 v9, v10')
    a('s_mov_b64 exec, -1')
    a('s_mov_b32 s76, 0x100000')
    a('s_mov_b32 s77, 0x200000')
    a('s_mov_b32 s78, 0x300000')
    a('s_mov_b32 s61, 0')
    a('cw_spin:')
    a('ds_read_b32 v11, v9')
    a('s_add_u32 s61, s61, 1')
    a('s_waitcnt lgkmcnt(0)')
    a('v_readfirstlane_b32 s60, v11')
    a(f's_cmp_ge_u32 s61, {1 << 20}')
    a('s_cbranch_scc1 cw_go')
    a('s_cmp_lt_u32 s60, 4')
    a('s_cbranch_scc1 cw_spin')
    a('cw_go:')
    so = ['0', 's76', 's77', 's78']
    GA = 96
    for p in range(4):
        a(f'ds_read_b128 v[{GA + 4 * p}:{GA + 4 * p + 3}], v6 offset:{1024 * p}')
    for p in range(4):
        a(f's_waitcnt lgkmcnt({3 - p})')
        a(f'buffer_store_dwordx4 v[{GA + 4 * p}:{GA + 4 * p + 3}], v7, s[{S_WS}:{S_WS + 3}], {so[p]} offen sc1')
    a('v_lshlrev_b32 v112, 6, v0')
    a('s_lshl_b32 s67, s2, 14')
    a(f's_add_u32 s67, s67, {WS_Y}')
    a('v_lshlrev_b32 v113, 3, v0')
    a(f'v_add_u32 v113, {L_YT}, v113')
    a('s_waitcnt vmcnt(4)')
    for i in range(8):
        unpack(X + 2 * i, X + 2 * i + 1, XR + i)
    ln_stats(X, T, None, None)
    row_tail_stats(T, None, A8, False)
    ln_apply(T, N)
    for i in range(8):
        unpack(WF + 2 * i, WF + 2 * i + 1, WR + i)
    a('s_waitcnt vmcnt(0)')
    stamp(3)
    PY = 116
    loads = [f'buffer_load_dwordx4 v[{PY + 4 * p}:{PY + 4 * p + 3}], v112, s[{S_WS}:{S_WS + 3}], s67 offen offset:{16 * p} sc1' for p in range(4)]
    poll_loop('py', loads, range(PY, PY + 16), 114)
    stamp(4)
    PT = 132
    for i in range(4):
        for hsel, sel in ((0, 's74'), (1, 's75')):
            r = 2 * i + hsel
            a(f'v_perm_b32 v{PT + 2 * r}, v{PY + 4 + i}, v{PY + i}, {sel}')
            a(f'v_perm_b32 v{PT + 2 * r + 1}, v{PY + 12 + i}, v{PY + 8 + i}, {sel}')
            a(f'ds_write_b64 v113, v[{PT + 2 * r}:{PT + 2 * r + 1}] offset:{2048 * r}')
    a('s_branch rows')

    a('helper:')
    GW, UW, DW = 96, 128, 160
    a('s_mov_b32 s79, 0')
    a('s_cmp_lt_u32 s2, 224')
    a('s_cbranch_scc0 helper_now')
    srd(S_G, 18, 1024 * 7168)
    srd(S_U, 20, 1024 * 7168)
    srd(S_D, 22, 3584 * 2048)
    a('s_mov_b32 s76, s2')
    a('v_and_b32 v4, 255, v0')
    a('v_lshrrev_b32 v5, 3, v4')
    a(f'v_mul_u32_u24 v202, {8 * 7168}, v5')
    a('v_and_b32 v6, 7, v4')
    a('v_lshl_add_u32 v202, v6, 4, v202')
    a('s_and_b32 s77, s76, 3')
    a('s_lshl_b32 s60, s77, 9')
    a(f's_add_u32 s60, s60, {L_X}')
    a('v_lshlrev_b32 v201, 4, v5')
    a('v_add_u32 v201, s60, v201')
    a(f's_mul_i32 s77, s77, {256 * 7168}')
    a('s_lshr_b32 s78, s76, 2')
    a('s_lshl_b32 s78, s78, 7')
    a('s_add_u32 s77, s77, s78')
    a('v_lshlrev_b32 v203, 3, v4')

    def special():
        a('v_mov_b32 v8, 0')
        a('v_mov_b32 v9, 0')
        a('v_mov_b32 v10, 0')
        a('v_mov_b32 v11, 0')
        a('v_mov_b32 v12, 0')
        a('v_mov_b32 v13, 0')
        a(f'v_mul_u32_u24 v14, {GS}, v1')
        a('v_add_u32 v14, s66, v14')
        a('v_add_u32 v15, s66, v2')
        a('s_waitcnt lgkmcnt(0)')
        a('s_lshl_b32 s60, s72, 16')
        a('s_lshr_b32 s61, s72, 16')
        a('s_lshl_b32 s62, s73, 16')
        a('s_or_b32 s61, s61, s62')
        a('v_writelane_b32 v13, s60, 0')
        a('v_writelane_b32 v13, s72, 1')
        a('v_writelane_b32 v13, s61, 2')
        a('v_writelane_b32 v13, s73, 3')
        a('v_writelane_b32 v12, s60, 2')
        a('v_writelane_b32 v12, s72, 3')
        a('s_mov_b64 exec, 0xf')
        a('ds_write_b128 v14, v[8:11]')
        a('ds_write_b128 v14, v[10:13] offset:16')
        a('s_mov_b64 exec, 0x3fffffff')
        a(f'ds_write_b128 v15, v[8:11] offset:{UOFF + 4096}')
        a('s_mov_b64 exec, 1')
        a(f'v_mov_b32 v15, {L_FLAG}')
        a('ds_write_b32 v15, v8')
        a('s_mov_b64 exec, -1')

    def weights_issue():
        for i in range(8):
            a(f'buffer_load_dwordx4 v[{GW + 4 * i}:{GW + 4 * i + 3}], v202, s[{S_G}:{S_G + 3}], s77 offen nt')
            a(f'buffer_load_dwordx4 v[{UW + 4 * i}:{UW + 4 * i + 3}], v202, s[{S_U}:{S_U + 3}], s77 offen nt')
            if i < 7:
                a(f's_add_u32 s77, s77, {7168}')
        a('s_lshl_b32 s77, s76, 15')
        for r in range(16):
            a(f'buffer_load_dwordx2 v[{DW + 2 * r}:{DW + 2 * r + 1}], v203, s[{S_D}:{S_D + 3}], s77 offen offset:{(r & 1) * 2048} nt')
            if r & 1 and r < 15:
                a('s_add_u32 s77, s77, 4096')

    def helper_mid(extra):
        special()
        build_g(0)
        a('s_waitcnt lgkmcnt(0)')
        a('s_barrier')
        stamp(1)
        if extra:
            weights_issue()
        a(f's_waitcnt vmcnt({extra})')
        for i in range(8):
            unpack(X + 2 * i, X + 2 * i + 1, XR + i)
        ln_stats(X, T, None, None)
        row_tail_stats(T, None, A8, False)
        ln_apply(T, N)
        for i in range(8):
            unpack(WF + 2 * i, WF + 2 * i + 1, WR + i)

    helper_mid(32)
    a('s_branch rows')
    a('helper_now:')
    helper_mid(0)

    a('rows:')
    a('s_lshl_b32 s60, s12, 11')
    a(f's_add_u32 s60, s60, {L_YT}')
    a('v_add_u32 v3, s60, v2')
    a('s_waitcnt lgkmcnt(0)')
    a('s_barrier')
    a(f'ds_read_b128 v[{Y}:{Y + 3}], v3')
    a(f'ds_read_b128 v[{Y + 4}:{Y + 7}], v3 offset:1024')
    H = X
    for hf in range(2):
        a(f's_waitcnt lgkmcnt({1 - hf})')
        for i in range(4 * hf, 4 * hf + 4):
            unpack(T + 2 * i, T + 2 * i + 1, Y + i)
        for i in range(4 * hf, 4 * hf + 4):
            pk('fma', H + 2 * i, T + 2 * i, N + 2 * i, X + 2 * i)
        for i in range(8 * hf, 8 * hf + 8):
            rnd(H + i, H + i)
    ln_stats(H, T, None, None)
    row_tail_stats(T, WF, A8, True)
    a(f'v_readfirstlane_b32 s62, v{T + 16}')
    a('s_lshl_b32 s60, s12, 2')
    a(f's_add_u32 s60, s60, {L_KEY}')
    a('v_mov_b32 v3, s60')
    a('s_not_b32 s60, s62')
    a('s_or_b32 s61, s62, 0x80000000')
    a('s_cmp_lt_i32 s62, 0')
    a('s_cselect_b32 s62, s60, s61')
    a('s_and_b32 s62, s62, 0xffff0000')
    a('s_sub_u32 s60, 2047, s68')
    a('s_or_b32 s63, s62, s60')
    a(f'v_mov_b32 v{A8}, s63')
    a(f'ds_write_b32 v3, v{A8}')
    a(f'v_mov_b32 v3, {L_KEY}')
    a('s_lshl_b32 s60, s2, 7')
    a(f's_add_u32 s60, s60, {WS_KEYS}')
    a(f'v_mov_b32 v{A8 + 1}, 0')
    a('s_waitcnt lgkmcnt(0)')
    a('s_barrier')
    a(f'ds_read_b128 v[{Y}:{Y + 3}], v3')
    a(f'ds_read_b128 v[{Y + 4}:{Y + 7}], v3 offset:16')
    a('s_waitcnt lgkmcnt(0)')
    a(f'v_max3_u32 v{Y}, v{Y}, v{Y + 1}, v{Y + 2}')
    a(f'v_max3_u32 v{Y + 3}, v{Y + 3}, v{Y + 4}, v{Y + 5}')
    a(f'v_max3_u32 v{Y}, v{Y}, v{Y + 6}, v{Y + 7}')
    a(f'v_max_u32 v{Y}, v{Y}, v{Y + 3}')
    a(f'v_readfirstlane_b32 s61, v{Y}')
    a('s_cmp_eq_u32 s61, s63')
    a('s_cselect_b32 s64, 1, 0')
    a('s_cbranch_scc0 no_key')
    a('s_mov_b64 exec, 1')
    a(f'buffer_store_dword v{A8}, v{A8 + 1}, s[{S_WS}:{S_WS + 3}], s60 offen sc1')
    a('s_mov_b64 exec, -1')
    a('no_key:')
    stamp(5)
    ln_apply(T, N)
    OUTR = 232
    a('s_cmp_eq_u32 s64, 0')
    a('s_cbranch_scc1 no_cand')
    for i in range(8):
        a(f'v_cvt_pk_bf16_f32 v{Y + i}, v{N + 2 * i}, v{N + 2 * i + 1}')
    a('s_lshl_b32 s60, s2, 12')
    a(f's_add_u32 s60, s60, {WS_CAND}')
    a(f'buffer_store_dwordx4 v[{Y}:{Y + 3}], v2, s[{S_WS}:{S_WS + 3}], s60 offen sc1')
    a(f'buffer_store_dwordx4 v[{Y + 4}:{Y + 7}], v2, s[{S_WS}:{S_WS + 3}], s60 offen offset:1024 sc1')
    for i in range(8):
        a(f'v_cvt_pk_bf16_f32 v{A8 + i}, v{H + 2 * i}, v{H + 2 * i + 1}')
    a(f'buffer_store_dwordx4 v[{A8}:{A8 + 3}], v2, s[{S_WS}:{S_WS + 3}], s60 offen offset:2048 sc1')
    a(f'buffer_store_dwordx4 v[{A8 + 4}:{A8 + 7}], v2, s[{S_WS}:{S_WS + 3}], s60 offen offset:3072 sc1')
    a('no_cand:')
    for i in range(8):
        pk('add', T + 2 * i, H + 2 * i, N + 2 * i)
    for i in range(8):
        a(f'v_cvt_pk_bf16_f32 v{OUTR + i}, v{T + 2 * i}, v{T + 2 * i + 1}')
    a('s_cmp_eq_u32 s64, 0')
    a('s_cbranch_scc0 out_deferred')
    a(f'buffer_store_dwordx4 v[{OUTR}:{OUTR + 3}], v2, s[{S_OUT}:{S_OUT + 3}], s69 offen')
    a(f'buffer_store_dwordx4 v[{OUTR + 4}:{OUTR + 7}], v2, s[{S_OUT}:{S_OUT + 3}], s69 offen offset:1024')
    a('out_deferred:')
    a('s_cmp_eq_u32 s12, 0')
    a('s_cbranch_scc0 not_w0')
    a('v_lshlrev_b32 v4, 7, v1')
    a(f's_mov_b32 s65, {WS_KEYS}')
    a(f's_mov_b32 s66, {WS_KEYS + 8192}')
    a(f's_mov_b32 s67, {WS_KEYS + 16384}')
    a(f's_mov_b32 s70, {WS_KEYS + 24576}')
    loads = [f'buffer_load_dword v{8 + p}, v4, s[{S_WS}:{S_WS + 3}], s{sr} offen sc1' for p, sr in enumerate((65, 66, 67, 70))]
    poll_loop('pk', loads, range(8, 12), 12)
    wave_reduce('v_max_u32', 12)
    a('v_readlane_b32 s65, v12, 63')
    stamp(6)
    a('s_and_b32 s66, s65, 0xffff')
    a('s_sub_u32 s66, 2047, s66')
    a('s_lshr_b32 s66, s66, 3')
    a('s_lshl_b32 s66, s66, 12')
    a(f's_add_u32 s66, s66, {WS_CAND}')
    a(f'v_add_u32 v5, {L_X}, v2')
    a(f'v_mov_b32 v6, {L_GKEY}')
    a('v_mov_b32 v7, s65')
    a('ds_write_b32 v6, v7')
    loads = [f'buffer_load_dwordx4 v[{8 + 4 * p}:{11 + 4 * p}], v2, s[{S_WS}:{S_WS + 3}], s66 offen offset:{1024 * p} sc1' for p in range(2)]
    poll_loop('px', loads, range(8, 16), 16)
    a('ds_write_b128 v5, v[8:11]')
    a('ds_write_b128 v5, v[12:15] offset:1024')
    a('s_branch bar4')
    a('not_w0:')
    a('s_cmp_eq_u32 s14, 0')
    a('s_cbranch_scc1 bar4')
    a('s_cmp_lt_u32 s2, 224')
    a('s_cbranch_scc0 bar4')
    a('s_waitcnt vmcnt(0)')
    stamp(6)
    PG = 4
    for m, base in ((0, GW), (1, UW)):
        for p in range(4):
            for k in range(4):
                lo, hi = base + 4 * (2 * p) + k, base + 4 * (2 * p + 1) + k
                a(f'v_perm_b32 v{PG + 32 * m + 4 * (2 * k) + p}, v{hi}, v{lo}, s74')
                a(f'v_perm_b32 v{PG + 32 * m + 4 * (2 * k + 1) + p}, v{hi}, v{lo}, s75')
    PD = 96
    for p in range(8):
        for k in range(2):
            lo, hi = DW + 2 * (2 * p) + k, DW + 2 * (2 * p + 1) + k
            a(f'v_perm_b32 v{PD + 8 * (2 * k) + p}, v{hi}, v{lo}, s74')
            a(f'v_perm_b32 v{PD + 8 * (2 * k + 1) + p}, v{hi}, v{lo}, s75')
    a('bar4:')
    a(f'v_mov_b32 v3, {L_GKEY}')
    a('s_waitcnt lgkmcnt(0)')
    a('s_barrier')
    a('s_cmp_eq_u32 s64, 0')
    a('s_cbranch_scc1 no_defer')
    a('ds_read_b32 v3, v3')
    a('s_waitcnt lgkmcnt(0)')
    a('v_readfirstlane_b32 s65, v3')
    a('s_cmp_eq_u32 s65, s63')
    a('s_cbranch_scc1 no_defer')
    a(f'buffer_store_dwordx4 v[{OUTR}:{OUTR + 3}], v2, s[{S_OUT}:{S_OUT + 3}], s69 offen')
    a(f'buffer_store_dwordx4 v[{OUTR + 4}:{OUTR + 7}], v2, s[{S_OUT}:{S_OUT + 3}], s69 offen offset:1024')
    a('no_defer:')
    a('s_cmp_lt_u32 s2, 224')
    a('s_cbranch_scc0 final')
    a('s_cmp_eq_u32 s14, 0')
    a('s_cbranch_scc1 main_fl')
    XS, AC = 68, 72
    stamp(2)
    a(f'ds_read_b128 v[{XS}:{XS + 3}], v201')
    a('v_bfe_u32 v128, v1, 1, 2')
    a('v_lshlrev_b32 v128, 7, v128')
    a('v_bfe_u32 v129, v1, 5, 1')
    a('v_lshl_add_u32 v128, v129, 6, v128')
    a('v_and_b32 v129, 1, v1')
    a('v_lshl_add_u32 v128, v129, 5, v128')
    a('v_bfe_u32 v129, v1, 4, 1')
    a('v_lshl_add_u32 v128, v129, 4, v128')
    a('s_lshl_b32 s60, s13, 9')
    a(f's_add_u32 s60, s60, {L_RED}')
    a('v_add_u32 v128, s60, v128')
    a('s_waitcnt lgkmcnt(0)')
    for p in range(4):
        for i in range(16):
            src2 = '0' if p == 0 else f'v{AC + i}'
            a(f'v_dot2_f32_bf16 v{AC + i}, v{PG + 4 * i + p}, v{XS + p}, {src2}')
    for i in range(8):
        a(f'v_permlane32_swap_b32 v{AC + i}, v{AC + 8 + i}')
    for i in range(8):
        a(f'v_add_f32 v{AC + i}, v{AC + i}, v{AC + 8 + i}')
    for i in range(4):
        a(f'v_permlane16_swap_b32 v{AC + i}, v{AC + 4 + i}')
    for i in range(4):
        a(f'v_add_f32 v{AC + i}, v{AC + i}, v{AC + 4 + i}')
    for i in range(4):
        a(f'v_add_f32_dpp v{AC + i}, v{AC + i}, v{AC + i} row_shr:8 row_mask:0xf bank_mask:0xf bound_ctrl:0')
    a('s_mov_b32 s60, 0xff00ff00')
    a('s_mov_b32 s61, 0xff00ff00')
    a('s_mov_b64 exec, s[60:61]')
    a(f'ds_write_b128 v128, v[{AC}:{AC + 3}]')
    a('s_mov_b64 exec, -1')
    a('v_lshlrev_b32 v129, 3, v1')
    a(f'v_add_u32 v131, {L_RED}, v129')
    a('v_and_b32 v130, 255, v0')
    a('v_lshlrev_b32 v130, 4, v130')
    a('s_lshl_b32 s77, s76, 12')
    a(f's_add_u32 s77, s77, {WS_PART}')
    a('s_lshr_b32 s60, s76, 2')
    a('s_lshl_b32 s60, s60, 11')
    a(f's_add_u32 s60, s60, {WS_GX}')
    a('s_and_b32 s62, s76, 3')
    a('s_lshl_b32 s65, s62, 7')
    a('s_add_u32 s65, s65, s60')
    a('s_lshl_b32 s66, s62, 9')
    a('s_add_u32 s66, s66, s60')
    a('v_lshrrev_b32 v132, 4, v1')
    a('v_lshlrev_b32 v132, 9, v132')
    a('v_and_b32 v133, 15, v1')
    a('v_lshl_add_u32 v132, v133, 3, v132')
    a('v_lshlrev_b32 v133, 2, v133')
    a('s_waitcnt lgkmcnt(0)')
    a('s_barrier')
    TT = 136
    a('s_cmp_eq_u32 s13, 0')
    a('s_cbranch_scc0 gx_nostore')
    for q in range(4):
        a(f'ds_read_b64 v[{TT + 2 * q}:{TT + 2 * q + 1}], v131 offset:{512 * q}')
    a('s_waitcnt lgkmcnt(0)')
    pk('add', TT, TT, TT + 2)
    pk('add', TT + 4, TT + 4, TT + 6)
    pk('add', TT, TT, TT + 4)
    a(f'buffer_store_dwordx2 v[{TT}:{TT + 1}], v132, s[{S_WS}:{S_WS + 3}], s65 offen sc1')
    a('s_waitcnt vmcnt(0)')
    a('gx_nostore:')
    a('s_barrier')
    stamp(3)
    loads = []
    for k in range(4):
        loads.append(f'buffer_load_dword v{TT + 2 * k}, v133, s[{S_WS}:{S_WS + 3}], s66 offen offset:{128 * k} sc1')
        loads.append(f'buffer_load_dword v{TT + 2 * k + 1}, v133, s[{S_WS}:{S_WS + 3}], s66 offen offset:{128 * k + 64} sc1')
    poll_loop('pg', loads, range(TT, TT + 8), TT + 8)
    stamp(4)
    pk('add', TT, TT, TT + 2)
    pk('add', TT + 4, TT + 4, TT + 6)
    pk('add', TT, TT, TT + 4)
    rnd(TT, TT)
    rnd(TT + 1, TT + 1)
    a(f'v_mul_f32 v{TT + 2}, 0xbfb8aa3b, v{TT}')
    a(f'v_exp_f32 v{TT + 2}, v{TT + 2}')
    a(f'v_add_f32 v{TT + 2}, 1.0, v{TT + 2}')
    a(f'v_rcp_f32 v{TT + 2}, v{TT + 2}')
    a(f'v_mul_f32 v{TT}, v{TT}, v{TT + 2}')
    rnd(TT, TT)
    a(f'v_mul_f32 v{TT}, v{TT}, v{TT + 1}')
    a(f'v_mov_b32_dpp v{TT + 1}, v{TT} row_shr:1 row_mask:0xf bank_mask:0xf bound_ctrl:0')
    a(f'v_cvt_pk_bf16_f32 v{TT}, v{TT + 1}, v{TT}')
    for p in range(8):
        a(f'v_readlane_b32 s{64 + p}, v{TT}, {2 * p + 1}')
    for p in range(8):
        for c in range(4):
            src2 = '0' if p == 0 else f'v{AC + c}'
            a(f'v_dot2_f32_bf16 v{AC + c}, v{PD + 8 * c + p}, s{64 + p}, {src2}')
    a(f'buffer_store_dwordx4 v[{AC}:{AC + 3}], v130, s[{S_WS}:{S_WS + 3}], s77 offen sc1')
    a('s_branch main_fl')

    a('final:')
    srd(S_G, 26, 224 * 4096, WS_PART)
    a(f'v_mov_b32 v3, {L_GKEY}')
    a('ds_read_b32 v3, v3')
    a('s_sub_u32 s76, s2, 224')
    a('v_and_b32 v4, 7, v0')
    a('v_lshrrev_b32 v5, 3, v0')
    a('v_lshlrev_b32 v5, 12, v5')
    a('v_lshl_add_u32 v5, v4, 4, v5')
    a('s_lshl_b32 s65, s76, 7')
    a(f's_add_u32 s66, s65, {64 * 4096}')
    a(f's_add_u32 s67, s65, {128 * 4096}')
    a(f's_add_u32 s70, s65, {192 * 4096}')
    a('s_waitcnt lgkmcnt(0)')
    a('v_readfirstlane_b32 s71, v3')
    a('s_and_b32 s72, s71, 0xffff')
    a('s_sub_u32 s72, 2047, s72')
    a('s_lshr_b32 s73, s72, 3')
    a('s_lshl_b32 s73, s73, 12')
    a('s_lshl_b32 s60, s76, 6')
    a('s_add_u32 s73, s73, s60')
    a(f's_add_u32 s73, s73, {WS_CAND}')
    a('s_lshl_b32 s72, s72, 11')
    a('s_add_u32 s72, s72, s60')
    a('v_and_b32 v6, 15, v0')
    a('v_lshlrev_b32 v6, 2, v6')
    a('s_cmp_eq_u32 s12, 0')
    a('s_cbranch_scc0 fin_nohn')
    loads = [f'buffer_load_dword v{40 + p}, v6, s[{S_WS}:{S_WS + 3}], s73 offen offset:{2048 * p} sc1' for p in range(2)]
    poll_loop('ph', loads, (40, 41), 42)
    a('s_and_b32 s60, s71, 0xffff0000')
    a('s_xor_b32 s61, s60, 0x80000000')
    a('s_xor_b32 s62, s60, 0xffff0000')
    a('s_cmp_lt_i32 s60, 0')
    a('s_cselect_b32 s60, s61, s62')
    a('v_mov_b32 v42, 0xbfb8aa3b')
    a('v_mul_f32 v42, s60, v42')
    a('v_exp_f32 v42, v42')
    a('v_add_f32 v42, 1.0, v42')
    a('v_rcp_f32 v42, v42')
    rnd(42, 42)
    a('fin_nohn:')
    a(f's_sleep {opt("finsleep", 8)}')
    P = 8
    loads = [f'buffer_load_dwordx4 v[{P + 4 * r}:{P + 4 * r + 3}], v5, s[{S_G}:{S_G + 3}], s{sr} offen sc1' for r, sr in enumerate((65, 66, 67, 70))]
    poll_loop('pp', loads, range(P, P + 16), 24)
    stamp(6)
    pk('add', P, P, P + 4)
    pk('add', P + 2, P + 2, P + 6)
    pk('add', P + 8, P + 8, P + 12)
    pk('add', P + 10, P + 10, P + 14)
    pk('add', P, P, P + 8)
    pk('add', P + 2, P + 2, P + 10)
    a(f'v_permlane32_swap_b32 v{P}, v{P + 2}')
    a(f'v_permlane32_swap_b32 v{P + 1}, v{P + 3}')
    pk('add', P, P, P + 2)
    a(f'v_permlane16_swap_b32 v{P}, v{P + 1}')
    a(f'v_add_f32 v{P}, v{P}, v{P + 1}')
    a(f'v_add_f32_dpp v{P}, v{P}, v{P} row_shr:8 row_mask:0xf bank_mask:0xf bound_ctrl:0')
    a('v_lshrrev_b32 v7, 4, v1')
    a('v_lshl_add_u32 v7, v4, 2, v7')
    a('v_lshlrev_b32 v7, 2, v7')
    a('s_lshl_b32 s60, s12, 7')
    a(f's_add_u32 s60, s60, {L_RED}')
    a('v_add_u32 v7, s60, v7')
    a('s_mov_b32 s60, 0xff00ff00')
    a('s_mov_b32 s61, 0xff00ff00')
    a('s_mov_b64 exec, s[60:61]')
    a(f'ds_write_b32 v7, v{P}')
    a('s_mov_b64 exec, -1')
    a('v_lshlrev_b32 v7, 1, v6')
    a(f'v_add_u32 v7, {L_RED}, v7')
    a('s_waitcnt lgkmcnt(0)')
    a('s_barrier')
    a('s_cmp_eq_u32 s12, 0')
    a('s_cbranch_scc0 main_fl')
    for q in range(8):
        a(f'ds_read_b64 v[{P + 2 * q}:{P + 2 * q + 1}], v7 offset:{128 * q}')
    a('s_waitcnt lgkmcnt(0)')
    for q in range(4):
        pk('add', P + 4 * q, P + 4 * q, P + 4 * q + 2)
    pk('add', P, P, P + 4)
    pk('add', P + 8, P + 8, P + 12)
    pk('add', P, P, P + 8)
    rnd(P, P)
    rnd(P + 1, P + 1)
    a(f'v_mul_f32 v{P}, v{P}, v42')
    a(f'v_mul_f32 v{P + 1}, v{P + 1}, v42')
    rnd(P, P)
    rnd(P + 1, P + 1)
    unpack(44, 45, 40)
    unpack(46, 47, 41)
    pk('add', P, P, 44)
    rnd(P, P)
    rnd(P + 1, P + 1)
    pk('add', P, P, 46)
    a(f'v_cvt_pk_bf16_f32 v{P}, v{P}, v{P + 1}')
    a('s_mov_b64 exec, 0xffff')
    a(f'buffer_store_dword v{P}, v6, s[{S_OUT}:{S_OUT + 3}], s72 offen')
    a('main_fl:')
    stamp_flush(26, 7, 0)
    a('main_done:')
    a('s_endpgm')
    return kernel_desc('main_kernel', 248, 102 if STAMPS else 80)


launch = '''; @launch kernel=prep_kernel grid=(256,1,1) block=(256,1,1) lds=16896
; @launch kernel=main_kernel grid=(256,1,1) block=(512,1,1) lds=%d
''' % MAIN_LDS
finish(launch, [k_prep(), k_main()])
```

```python
import sys
from asmlib import *

NAME = 'sequential_preLN__ssm_conv_h3__moe_arch_mod__prompt'
HEADER = open('cdna_kernels/%s.s.ref' % NAME).read().split('; Override launch')[0]
MB4 = 4 << 20
a = Asm()
STAMPS = '--stamps' in sys.argv
WS_STAMP = 16 << 20
_st = {'n': 0, 'k': 0}


def opt(name, default=0):
    for x in sys.argv:
        if x.startswith('--%s=' % name):
            return int(x.split('=')[1], 0)
    return default


def stamp_begin(kidx):
    _st['k'] = kidx
    if STAMPS:
        for i in range(8):
            a(f's_mov_b64 s[{80 + 2 * i}:{81 + 2 * i}], 0')
    stamp(0)


STNAMES = {}
for x in sys.argv:
    if x.startswith('--st='):
        STAMPS = True
        for i, grp in enumerate(x[5:].split(',')):
            for nm in grp.split('+'):
                STNAMES[nm] = i + 1


def stamp(n):
    if not STAMPS:
        return
    if isinstance(n, str):
        if n not in STNAMES:
            return
        n = STNAMES[n]
    assert n < 8
    a(f's_memrealtime s[{80 + 2 * n}:{81 + 2 * n}]')


def stamp_flush(wsreg, n, vtid):
    if not STAMPS:
        return
    a('s_waitcnt vmcnt(0) lgkmcnt(0)')
    stamp(n)
    a('s_mov_b64 exec, -1')
    a(f'v_lshrrev_b32 v1, 6, v{vtid}')
    a(f's_add_u32 s100, s2, {_st["k"] * 256}')
    a('s_lshl_b32 s100, s100, 9')
    a('v_lshlrev_b32 v1, 6, v1')
    a('v_add_u32 v1, s100, v1')
    a(f's_add_u32 s96, s{wsreg}, {WS_STAMP}')
    a(f's_addc_u32 s97, s{wsreg + 1}, 0')
    a('s_mov_b32 s98, 0x100000')
    a('s_mov_b32 s99, 0x00020000')
    a('s_waitcnt lgkmcnt(0)')
    a('s_mov_b64 exec, 1')
    for i in range(8):
        a(f'v_mov_b32 v2, s{80 + 2 * i}')
        a(f'v_mov_b32 v3, s{81 + 2 * i}')
        a(f'buffer_store_dwordx2 v[2:3], v1, s[96:99], 0 offen offset:{8 * i}')


def srd(dst, base, nbytes, off=0):
    if off:
        a(f's_add_u32 s{dst}, s{base}, {off}')
        a(f's_addc_u32 s{dst + 1}, s{base + 1}, 0')
    else:
        if dst != base:
            a(f's_mov_b32 s{dst}, s{base}')
            a(f's_mov_b32 s{dst + 1}, s{base + 1}')
    a(f's_mov_b32 s{dst + 2}, {nbytes}')
    a(f's_mov_b32 s{dst + 3}, 0x00020000')


def rnd(d, s):
    a(f'v_cvt_pk_bf16_f32 v{d}, 0, v{s}')


def unpack(dlo, dhi, s):
    if dlo == s:
        a(f'v_and_b32 v{dhi}, 0xffff0000, v{s}')
        a(f'v_lshlrev_b32 v{dlo}, 16, v{s}')
    else:
        a(f'v_lshlrev_b32 v{dlo}, 16, v{s}')
        a(f'v_and_b32 v{dhi}, 0xffff0000, v{s}')


def wave_reduce(op, vs):
    if isinstance(vs, int):
        vs = [vs]
    for sh in (1, 2, 4, 8):
        for v in vs:
            a(f'{op}_dpp v{v}, v{v}, v{v} row_shr:{sh} row_mask:0xf bank_mask:0xf bound_ctrl:0')
    for v in vs:
        a(f'{op}_dpp v{v}, v{v}, v{v} row_bcast:15 row_mask:0xa bank_mask:0xf')
    for v in vs:
        a(f'{op}_dpp v{v}, v{v}, v{v} row_bcast:31 row_mask:0xc bank_mask:0xf')


def pk(op, d, x, y, z=None, mods=''):
    if z is None:
        a(f'v_pk_{op}_f32 v[{d}:{d + 1}], v[{x}:{x + 1}], v[{y}:{y + 1}] {mods}')
    else:
        a(f'v_pk_{op}_f32 v[{d}:{d + 1}], v[{x}:{x + 1}], v[{y}:{y + 1}], v[{z}:{z + 1}] {mods}')


def finish(launch, descs):
    text = HEADER + launch + '.amdgcn_target "amdgcn-amd-amdhsa--gfx950"\n' + a.render() + ''.join(descs)
    out = sys.argv[1] if len(sys.argv) > 1 and not sys.argv[1].startswith('--') else 'cdna_kernels/%s.s' % NAME
    open(out, 'w').write(text)
    print('wrote', out, len(text))
```

```python
from common import *
import common
STAMPS = common.STAMPS

WS_Y = 0
WS_KEYS = 0
WS_GX = WS_KEYS + 32768
WS_FA = WS_KEYS + 192 * 1024
WS_FB = WS_KEYS + 164 * 1024
WS_EPOCH = WS_KEYS + 168 * 1024
WS_FY = WS_KEYS + 224 * 1024
WS_CAND = WS_KEYS + 262144
WS_PART = 2 << 20
WS_SIZE = 4 << 20
POLL_MAX = 1 << 16
KN = NAME + '_kernel'

DEPTH = opt('depth', 10)
EARLY = opt('early', 0)
FBPOS = opt('fbpos', 14)
S1POS = opt('s1pos', 3)
BATCH1 = opt('batch1', 4)
C1POS = opt('c1pos', 4)
UEARLY = opt('uearly', 0)
YSLEEP = opt('ysleep', 4)
FBC = opt('fbc', 6)
KSH = opt('ksh', 7)
FLC = opt('flc', 2)
MID = opt('mid', 0)
SMALLPOS = opt('smallpos', 4)
CODEPF = opt('codepf', 5)
PRE = opt('pre', 22)

GS = 4160
UOFF = 4 * GS
CS = 21312
L_YL = 4 * CS
RS = 2064
L_YT = L_YL + 16384
L_P0 = L_YL
L_KEY = L_YL + 36864
L_CNT = L_KEY + 32
L_GKEY = L_KEY + 60
L_X = L_KEY + 64
L_RED = L_X + 2048
MAIN_LDS = L_RED + 2048

S_K, S_V, S_SK, S_H, S_WS, S_Q, S_WR, S_OUT, S_G, S_U, S_D = 16, 20, 24, 28, 32, 36, 40, 44, 48, 52, 56
WSR = f's[{S_WS}:{S_WS + 3}]'
XBR = f's[{S_OUT}:{S_OUT + 3}]'


def sentinel_check(regs, tmp):
    rs = list(regs)
    cur = rs.pop(0)
    while rs:
        if len(rs) >= 2:
            a(f'v_max3_u32 v{tmp}, v{cur}, v{rs[0]}, v{rs[1]}')
            rs = rs[2:]
        else:
            a(f'v_max_u32 v{tmp}, v{cur}, v{rs[0]}')
            rs = rs[1:]
        cur = tmp
    a(f'v_cmp_eq_u32 vcc, -1, v{cur}')


def poll_loop(name, loads, regs, tmp, sleep=2, issued=False):
    a('s_mov_b32 s61, 0')
    if issued:
        a(f's_branch {name}_chk')
    a(f'{name}_again:')
    for l in loads:
        a(l)
    a(f'{name}_chk:')
    a('s_waitcnt vmcnt(0)')
    sentinel_check(regs, tmp)
    a(f's_cbranch_vccz {name}_ok')
    a('s_add_u32 s61, s61, 1')
    a(f's_cmp_ge_u32 s61, {POLL_MAX}')
    a(f's_cbranch_scc1 {name}_ok')
    a('s_mov_b64 exec, vcc')
    a(f's_sleep {sleep}')
    a(f's_branch {name}_again')
    a(f'{name}_ok:')
    a('s_mov_b64 exec, -1')


def lds_spin(name, vaddr, off, want, vt):
    a('s_mov_b32 s61, 0')
    a(f'{name}_spin:')
    a(f'ds_read_b32 v{vt}, v{vaddr} offset:{off}')
    a('s_add_u32 s61, s61, 1')
    a('s_waitcnt lgkmcnt(0)')
    a(f'v_readfirstlane_b32 s60, v{vt}')
    a(f's_cmp_ge_u32 s61, {1 << 22}')
    a(f's_cbranch_scc1 {name}_go')
    a(f's_cmp_ge_u32 s60, {want}')
    a(f's_cbranch_scc1 {name}_go')
    a('s_sleep 1')
    a(f's_branch {name}_spin')
    a(f'{name}_go:')


XP, N, T, A8, Y, WF = 4, 20, 36, 56, 68, 76
XR, WR = 232, 240
VC = 254
V1 = 255


def ln_x():
    X = T
    M, V = T + 16, T + 18
    for i in range(8):
        unpack(XP + 2 * i, XP + 2 * i + 1, XR + i)
    for i in range(8):
        unpack(WF + 2 * i, WF + 2 * i + 1, WR + i)
    for i in range(4):
        pk('add', T + 2 * i, XP + 4 * i, XP + 4 * i + 2)
        pk('add', T + 8 + 2 * i, WF + 4 * i, WF + 4 * i + 2)
    for b in (T, T + 8):
        pk('add', b, b, b + 2)
        pk('add', b + 4, b + 4, b + 6)
    for b in (T, T + 8):
        pk('add', b, b, b + 4)
    for b in (T, T + 8):
        a(f'v_add_f32 v{b}, v{b}, v{b + 1}')
    a(f'v_mov_b32 v{V}, 0x3a800000')
    wave_reduce('v_add_f32', [T, T + 8])
    a(f'v_readlane_b32 s60, v{T}, 63')
    a(f'v_readlane_b32 s73, v{T + 8}, 63')
    a(f'v_mul_f32 v{V}, s60, v{V}')
    rnd(M, V)
    rnd(M + 1, V)
    a(f'v_sub_f32 v{V}, v{V}, v{M}')
    a(f'v_readfirstlane_b32 s72, v{M}')
    for i in range(8):
        pk('add', XP + 2 * i, XP + 2 * i, M, mods='neg_lo:[0,1] neg_hi:[0,1]')
    A = A8
    pk('mul', A, XP, XP)
    pk('mul', A + 2, XP + 2, XP + 2)
    for i in range(2, 8):
        d = A + 2 * (i & 1)
        pk('fma', d, XP + 2 * i, XP + 2 * i, d)
    pk('add', A, A, A + 2)
    a(f'v_add_f32 v{A}, v{A}, v{A + 1}')
    a(f'v_mul_f32 v{V}, v{V}, v{V}')
    a(f'v_mov_b32 v{A + 1}, 0x3a800000')
    wave_reduce('v_add_f32', [A])
    a(f'v_readlane_b32 s60, v{A}, 63')
    a(f'v_fma_f32 v{V}, s60, v{A + 1}, -v{V}')
    rnd(V, V)
    a(f'v_add_f32 v{V}, 0x3727c5ac, v{V}')
    rnd(V, V)
    a(f'v_sqrt_f32 v{V}, v{V}')
    rnd(V, V)
    a(f'v_rcp_f32 v{V + 1}, v{V}')
    a(f'v_rcp_f32 v{V}, v{V}')
    for i in range(16):
        rnd(N + i, XP + i)
    for i in range(8):
        pk('mul', N + 2 * i, N + 2 * i, V)
    for i in range(16):
        rnd(N + i, N + i)


def k_main():
    kernel_begin(a, KN)
    a('s_cmp_ge_u32 s2, 256')
    a('s_cbranch_scc1 main_done')
    stamp_begin(0)
    for sr, off in ((S_WS, 104), (S_K, 8), (S_V, 16), (S_SK, 24), (S_H, 32), (10, 40), (S_Q, 0), (S_WR, 56), (S_OUT, 88), (S_G, 64), (S_U, 72), (S_D, 80)):
        a(f's_load_dwordx2 s[{sr}:{sr + 1}], s[0:1], {off}')
    if CODEPF:
        a('s_getpc_b64 s[4:5]')
        a('pc0:')
        a('s_mov_b32 s6, main_done-pc0')
        a('s_mov_b32 s7, 0x00020000')
        a('s_lshr_b32 s3, s2, 3')
        a(f's_mul_i32 s3, s3, {CODEPF * 128}')
        a('v_lshlrev_b32 v3, 7, v0')
        a(f'v_cmp_gt_u32 vcc, {CODEPF}, v0')
        a('s_and_saveexec_b64 s[60:61], vcc')
        a('s_cbranch_execz no_codepf')
        a('buffer_load_dword v252, v3, s[4:7], s3 offen')
        a('no_codepf:')
        a('s_mov_b64 exec, -1')
    if opt('remap', 1) == 1:
        a('s_lshr_b32 s3, s2, 4')
        a('s_and_b32 s2, s2, 15')
        a('s_lshl_b32 s2, s2, 4')
        a('s_or_b32 s2, s2, s3')
    a('v_lshrrev_b32 v3, 6, v0')
    a('v_and_b32 v1, 63, v0')
    a('v_readfirstlane_b32 s12, v3')
    a('v_lshlrev_b32 v2, 4, v1')
    a(f'v_mov_b32 v{VC}, {L_CNT}')
    a(f'v_mov_b32 v{V1}, 1')
    for r in range(6):
        a(f'v_mov_b32 v{144 + r}, 0')
    a('s_cmp_eq_u32 s12, 0')
    a('s_cbranch_scc0 no_cnt_init')
    a('s_mov_b64 exec, 1')
    a(f'ds_write_b128 v{VC}, v[144:147]')
    a(f'ds_write_b64 v{VC}, v[144:145] offset:16')
    a('s_mov_b64 exec, -1')
    a('no_cnt_init:')
    for sr, n in ((S_WS, WS_SIZE), (S_K, MB4), (S_V, MB4), (S_SK, 8192), (S_H, 4096), (S_Q, MB4), (S_WR, 2048), (S_OUT, MB4),
                  (S_G, 1024 * 7168), (S_U, 1024 * 7168), (S_D, 3584 * 2048)):
        a(f's_mov_b32 s{sr + 2}, {n}')
        a(f's_mov_b32 s{sr + 3}, 0x00020000')
    a('s_and_b32 s13, s12, 3')
    a('s_lshr_b32 s14, s12, 2')
    a('s_lshl_b32 s15, s2, 2')
    a('s_add_u32 s15, s15, s13')
    a('s_lshr_b32 s4, s2, 4')
    a('s_and_b32 s5, s2, 15')
    a('v_and_b32 v4, 15, v1')
    a('v_lshrrev_b32 v5, 4, v1')
    a('v_and_b32 v10, 31, v1')
    a('v_lshrrev_b32 v11, 5, v1')
    a('v_lshrrev_b32 v6, 3, v1')
    a('v_lshlrev_b32 v6, 14, v6')
    a('v_and_b32 v7, 7, v1')
    a('v_lshl_add_u32 v6, v7, 4, v6')
    a('s_lshl_b32 s62, s4, 18')
    a('s_lshl_b32 s63, s12, 11')
    a('s_add_u32 s62, s62, s63')
    a('s_lshl_b32 s63, s5, 7')
    a('s_add_u32 s62, s62, s63')
    a('s_add_u32 s63, s62, 0x20000')
    for r in range(4):
        a(f'v_mov_b32 v{12 + r}, -1')
    a('s_lshl_b32 s64, s12, 19')
    a('s_lshl_b32 s65, s5, 15')
    a('s_add_u32 s64, s64, s65')
    a('s_lshl_b32 s65, s4, 7')
    a('s_add_u32 s64, s64, s65')
    a('s_add_u32 s65, s64, 16384')
    a('s_sub_u32 s77, s64, 6144')
    a('s_cselect_b32 s77, 0x40000000, s77')
    a('v_lshrrev_b32 v8, 3, v1')
    a('v_lshlrev_b32 v8, 11, v8')
    a('v_lshl_add_u32 v8, v7, 4, v8')
    a('s_lshl_b32 s79, s4, 9')
    a('v_lshlrev_b32 v9, 4, v10')
    a('s_lshl_b32 s67, s15, 12')
    a('s_lshl_b32 s70, s15, 1')
    a('s_and_b32 s70, s70, 0xfffffffc')
    a('s_lshl_b32 s68, s2, 3')
    a('s_add_u32 s68, s68, s12')
    a('s_lshl_b32 s69, s68, 11')
    a('s_mul_i32 s66, s12, 4608')
    a(f's_add_u32 s66, s66, {L_P0}')
    a(f's_mov_b32 s6, {WS_EPOCH}')
    a('s_mov_b32 m0, s66')
    a('s_waitcnt lgkmcnt(0)')
    stamp('karg')
    a(f's_load_dword s8, s[{S_WS}:{S_WS + 1}], s6')
    a('s_load_dword s9, s[10:11], s70')
    KR, VR, SKR = 16, 28, 36

    def fa_count():
        stamp('kvack')
        a('s_mov_b64 exec, 1')
        a(f'ds_add_rtn_u32 v12, v{VC}, v{V1}')
        a('s_lshl_b32 s60, s2, 7')
        a(f's_add_u32 s60, s60, {WS_FA}')
        a('v_mov_b32 v14, 0')
        a('v_mov_b32 v13, s8')
        a('s_waitcnt lgkmcnt(0)')
        a('v_cmp_eq_u32 vcc, 7, v12')
        a('v_cndmask_b32 v14, -16, v14, vcc')
        a(f'buffer_store_dword v13, v14, {WSR}, s60 offen sc1')
        a('s_mov_b64 exec, -1')

    a(f'buffer_load_dwordx4 v[{SKR}:{SKR + 3}], v9, s[{S_SK}:{S_SK + 3}], s79 offen')
    a('s_mov_b64 exec, 0xffffff')
    a(f'buffer_load_dwordx4 v8, s[{S_K}:{S_K + 3}], s77 offen nt lds')
    a('s_mov_b64 exec, -1')
    for (sr, so, lo) in ((S_K, 64, 384), (S_K, 65, 1408), (S_V, 64, 2432), (S_V, 65, 3456)):
        a(f's_add_u32 m0, s66, {lo}')
        a(f'buffer_load_dwordx4 v8, s[{sr}:{sr + 3}], s{so} offen nt lds')
    a('s_barrier')
    stamp('bar1')
    a(f's_add_u32 s{S_H}, s{S_H}, s67')
    a(f's_addc_u32 s{S_H + 1}, s{S_H + 1}, 0')
    a(f's_mul_i32 s67, s13, {CS}')
    a('s_mov_b32 s74, 0x05040100')
    a('s_mov_b32 s75, 0x07060302')
    a('v_lshlrev_b32 v92, 10, v11')
    a('v_lshl_add_u32 v92, v10, 2, v92')
    a('v_add_u32 v92, s66, v92')
    a('v_add_u32 v93, 1024, v92')
    a('v_add_u32 v94, 2432, v92')
    a('v_lshrrev_b32 v8, 1, v10')
    a('v_mul_u32_u24 v8, 144, v8')
    a('v_and_b32 v9, 1, v10')
    a('v_lshl_add_u32 v8, v9, 6, v8')
    a('v_sub_u32 v9, 1, v11')
    a('v_lshl_add_u32 v8, v9, 4, v8')
    a('v_add_u32 v8, s66, v8')
    a('v_lshrrev_b32 v9, 3, v1')
    a('v_mul_u32_u24 v9, 144, v9')
    a('v_lshl_add_u32 v9, v7, 4, v9')
    a('v_add_u32 v9, s66, v9')

    def p0(after, mid=None, mid2=None):
        stamp('issued')
        WFp, KF, VF, O, PKD = 40, 48, 70, 70, 86
        a('s_waitcnt lgkmcnt(0)')
        a('s_add_u32 s8, s8, 0x9e3779b9')
        a(f's_waitcnt vmcnt({5 + after})')
        for jj in range(2):
            unpack(WFp + 0 + jj, WFp + 2 + jj, SKR + 2 * jj)
            unpack(WFp + 4 + jj, WFp + 6 + jj, SKR + 2 * jj + 1)
        a(f's_waitcnt vmcnt({2 + after})')
        stamp('kdata')
        for r in range(0, 8, 2):
            a(f'ds_read2_b32 v[{KR + r}:{KR + r + 1}], v92 offset0:{32 * r} offset1:{32 * r + 32}')
        a(f'ds_read2_b32 v[{KR + 8}:{KR + 9}], v93 offset0:0 offset1:32')
        a(f'ds_read_b32 v{KR + 10}, v93 offset:256')
        a(f's_waitcnt vmcnt({after})')
        for r in range(0, 8, 2):
            a(f'ds_read2_b32 v[{VR + r}:{VR + r + 1}], v94 offset0:{32 * r} offset1:{32 * r + 32}')
        for r in range(11):
            if r % 2 == 0:
                a(f's_waitcnt lgkmcnt({9 - r // 2})')
            unpack(KF + 2 * r, KF + 2 * r + 1, KR + r)
        for t in (0, 1, 2, 3):
            tap = 3 - t
            for r in range(8):
                if t == 0:
                    pk('mul', O + 2 * r, KF + 2 * (r + t), WFp + 2 * tap)
                else:
                    pk('fma', O + 2 * r, KF + 2 * (r + t), WFp + 2 * tap, O + 2 * r)
        a('s_waitcnt lgkmcnt(0)')
        for r in range(8):
            unpack(KF + 2 * r, KF + 2 * r + 1, VR + r)
        for r in range(8):
            pk('mul', O + 2 * r, O + 2 * r, KF + 2 * r)
        for jj in range(2):
            d = PKD + 2 + 4 * jj
            for m in range(4):
                a(f'v_cvt_pk_bf16_f32 v{d + m}, v{O + 2 * (7 - 2 * m) + jj}, v{O + 2 * (6 - 2 * m) + jj}')
            a(f'ds_write_b128 v8, v[{d}:{d + 3}] offset:{32 * jj}')
        a('s_waitcnt lgkmcnt(0)')
        a('ds_read_b128 v[16:19], v9')
        a(f'ds_read_b128 v[20:23], v9 offset:{8 * 144}')
        a('s_waitcnt lgkmcnt(1)')
        a(f'buffer_store_dwordx4 v[16:19], v6, {XBR}, s62 offen sc1')
        a('s_waitcnt lgkmcnt(0)')
        a(f'buffer_store_dwordx4 v[20:23], v6, {XBR}, s63 offen sc1')
        stamp('kvst')
        return after + 2

    a('s_cmp_eq_u32 s14, 0')
    a('s_cbranch_scc0 helper')
    GL = 96

    for i in range(4):
        a(f'buffer_load_dwordx4 v[{GL + 6 * i}:{GL + 6 * i + 3}], v2, s[{S_H}:{S_H + 3}], 0 offen offset:{1024 * i} nt')
    a('v_lshlrev_b32 v152, 7, v4')
    a('v_add_u32 v160, s67, v2')
    a('v_and_b32 v161, 3, v1')
    a(f'v_mul_u32_u24 v161, {GS}, v161')
    a('v_bfe_u32 v162, v1, 2, 2')
    a('v_lshl_add_u32 v161, v162, 3, v161')
    a('v_lshl_add_u32 v161, v5, 4, v161')
    a('v_add_u32 v161, s67, v161')
    a(f's_add_u32 s60, s67, {UOFF + 480}')
    a('v_lshlrev_b32 v163, 5, v4')
    a('v_sub_u32 v162, s60, v163')
    a('v_lshl_add_u32 v162, v5, 4, v162')
    a('v_lshl_add_u32 v163, v5, 3, v163')
    a('s_lshl_b32 s60, s13, 12')
    a(f's_add_u32 s60, s60, {L_YL}')
    a('v_add_u32 v163, s60, v163')
    a('v_bfe_u32 v165, v1, 1, 2')
    a(f'v_mul_u32_u24 v165, {CS}, v165')
    a('v_and_b32 v166, 1, v1')
    a('v_lshl_add_u32 v165, v166, 4, v165')
    a('v_lshrrev_b32 v166, 3, v1')
    a('v_lshlrev_b32 v166, 5, v166')
    a('v_sub_u32 v165, v165, v166')
    a('s_lshl_b32 s60, s13, 10')
    a(f's_sub_u32 s60, {UOFF + 4064 - 768}, s60')
    a('v_add_u32 v165, s60, v165')
    a('s_lshl_b32 s78, s2, 14')
    a('s_lshl_b32 s60, s13, 12')
    a('s_add_u32 s78, s78, s60')
    a('v_lshl_add_u32 v166, v5, 3, v4')
    a('v_sub_u32 v166, 15, v166')
    a('v_and_b32 v167, 1, v166')
    a('v_lshlrev_b32 v167, 4, v167')
    a('v_ashrrev_i32 v166, 1, v166')
    a(f'v_mul_u32_u24 v150, {GS}, v1')
    a('v_add_u32 v150, s67, v150')
    a('s_mov_b64 exec, 0xf')
    a('ds_write_b128 v150, v[144:147]')
    a('s_mov_b64 exec, 0x3fffffff')
    a(f'ds_write_b128 v160, v[144:147] offset:{UOFF + 4096}')
    a('s_mov_b64 exec, -1')
    p0(4)
    a('s_lshl_b32 s64, s4, 11')
    a(f's_add_u32 s64, s64, {WS_FA}')
    a('s_and_b32 s61, s15, 1')
    a('s_lshl_b32 s61, s61, 4')
    a('s_lshr_b32 s9, s9, s61')
    a('s_and_b32 s9, s9, 0xffff')
    a('v_lshlrev_b32 v167, v167, s9')
    for r in range(4):
        a(f'v_cmp_eq_u32 vcc, {r}, v166')
        a(f'v_cndmask_b32 v{168 + r}, 0, v167, vcc')
    UP = 120
    loads0 = [f'buffer_load_dwordx4 v[{UP + 4 * q}:{UP + 4 * q + 3}], v2, {XBR}, s78 offen offset:{1024 * q} sc1' for q in range(4)]
    a('s_waitcnt vmcnt(0)')
    fa_count()
    a(f'v_readlane_b32 s76, v{GL}, 0')
    a(f'v_readlane_b32 s77, v{GL + 1}, 0')
    for i in range(4):
        w = GL + 6 * i
        a(f'v_mov_b32_dpp v{w + 4}, v{w} wave_shl:1 row_mask:0xf bank_mask:0xf bound_ctrl:0')
        a(f'v_mov_b32_dpp v{w + 5}, v{w + 1} wave_shl:1 row_mask:0xf bank_mask:0xf bound_ctrl:0')
    a('s_lshl_b32 s70, s76, 16')
    a('s_lshr_b32 s61, s76, 16')
    a('s_lshl_b32 s71, s77, 16')
    a('s_or_b32 s61, s61, s71')
    a('v_writelane_b32 v149, s70, 0')
    a('v_writelane_b32 v149, s76, 1')
    a('v_writelane_b32 v149, s61, 2')
    a('v_writelane_b32 v149, s77, 3')
    a('v_writelane_b32 v148, s70, 2')
    a('v_writelane_b32 v148, s76, 3')
    for i in range(3):
        w = GL + 6 * i
        a(f'v_readlane_b32 s70, v{w + 6}, 0')
        a(f'v_readlane_b32 s71, v{w + 7}, 0')
        a(f'v_writelane_b32 v{w + 4}, s70, 63')
        a(f'v_writelane_b32 v{w + 5}, s71, 63')
    a('s_mov_b64 exec, 0xf')
    a('ds_write_b128 v150, v[146:149] offset:16')
    a('s_mov_b64 exec, -1')
    for i in range(4):
        w = GL + 6 * i
        ta, tb, tc = 24 + 12 * i, 28 + 12 * i, 32 + 12 * i
        a(f'ds_write_b128 v160, v[{w + 2}:{w + 5}] offset:{32 + 1024 * i + 3 * GS}')
        for j in range(4):
            a(f'v_alignbit_b32 v{ta + j}, v{w + j + 1}, v{w + j}, 16')
        a(f'ds_write_b128 v160, v[{ta}:{ta + 3}] offset:{32 + 1024 * i + 0 * GS}')
        for j in range(4):
            a(f'v_alignbit_b32 v{tb + j}, v{w + j + 2}, v{w + j + 1}, 16')
        a(f'ds_write_b128 v160, v[{tb}:{tb + 3}] offset:{32 + 1024 * i + 2 * GS}')
        for j in range(4):
            a(f'v_mov_b32 v{tc + j}, v{w + j + 1}')
        a(f'ds_write_b128 v160, v[{tc}:{tc + 3}] offset:{32 + 1024 * i + 1 * GS}')
    a('s_waitcnt lgkmcnt(0)')
    stamp('gdone')
    ACC = 16
    FR = [48, 204]
    FB_ = [80, 112]

    def readsA(s, c, nn):
        out = []
        for j in range(nn):
            out.append(f'ds_read_b64 v[{s + 4 * j}:{s + 4 * j + 1}], v161 offset:{64 * (8 * j + c)}')
            out.append(f'ds_read_b64 v[{s + 4 * j + 2}:{s + 4 * j + 3}], v161 offset:{64 * (8 * j + c) + 8}')
        return out

    def readsB(s, c, zs):
        return [f'ds_read_b128 v[{s + 4 * i}:{s + 4 * i + 3}], v162 offset:{64 * (56 - (8 * z - c))}' for i, z in enumerate(zs)]

    for r in readsA(FR[0], 0, 8):
        a(r)
    for r in range(4):
        a(f'v_mov_b32 v{144 + r}, -1')
    a('s_lshl_b32 s7, s2, 7')
    a('v_lshlrev_b32 v151, 7, v1')
    a(f's_add_u32 s7, s7, {WS_FY}')
    a('v_mov_b32 v148, s8')
    a('v_mov_b32 v149, 0')
    lds_spin('kv8', VC, 0, 8, 153)
    a('s_mov_b32 s61, 0')
    a('s_mov_b64 exec, 0xffff')
    a('fa_again:')
    a(f'buffer_load_dword v153, v152, {WSR}, s64 offen sc1')
    a('s_waitcnt vmcnt(0)')
    a('v_cmp_ne_u32 vcc, s8, v153')
    a('s_cbranch_vccz fa_ok')
    a('s_add_u32 s61, s61, 1')
    a(f's_cmp_ge_u32 s61, {POLL_MAX}')
    a('s_cbranch_scc1 fa_ok')
    a('s_mov_b64 exec, vcc')
    a('s_sleep 2')
    a('s_branch fa_again')
    a('fa_ok:')
    a('s_mov_b64 exec, -1')
    stamp('faok')
    for l in loads0:
        a(l)
    a('s_mov_b64 exec, 1')
    a(f'ds_add_u32 v{VC}, v{V1} offset:20')
    a('s_mov_b64 exec, -1')
    for q in range(4):
        a(f's_waitcnt vmcnt({3 - q})')
        a(f'ds_write_b128 v165, v[{UP + 4 * q}:{UP + 4 * q + 3}] offset:{768 - 256 * q}')
    a('s_mov_b64 exec, 1')
    a(f'ds_add_u32 v{VC}, v{V1} offset:12')
    a('s_mov_b64 exec, -1')
    for q in range(4):
        a(f'buffer_store_dwordx4 v[144:147], v2, {XBR}, s78 offen offset:{1024 * q} sc1')
    stamp('u0')
    lds_spin('u4', VC, 12, 4, 153)
    for r in readsB(FB_[0], 0, range(8)):
        a(r)

    def mfma(w, A, B, init=False):
        c = '0' if init else f'v[{ACC + 4 * w}:{ACC + 4 * w + 3}]'
        a(f'v_mfma_f32_16x16x32_bf16 v[{ACC + 4 * w}:{ACC + 4 * w + 3}], v[{A}:{A + 3}], v[{B}:{B + 3}], {c}')

    def ystage(w):
        E = 172 + 2 * (w & 3)
        return [f'v_cvt_pk_bf16_f32 v{E}, v{ACC + 4 * w}, v{ACC + 4 * w + 1}',
                f'v_cvt_pk_bf16_f32 v{E + 1}, v{ACC + 4 * w + 2}, v{ACC + 4 * w + 3}',
                f'ds_write_b64 v163, v[{E}:{E + 1}] offset:{512 * w}']

    gsetup = ['v_lshlrev_b32 v180, 2, v0', f'v_add_u32 v180, {L_YL}, v180', 'v_add_u32 v181, 0x2000, v180',
              'v_lshrrev_b32 v182, 2, v0', 'v_lshlrev_b32 v182, 14, v182', 'v_and_b32 v183, 3, v0', 'v_lshl_add_u32 v182, v183, 4, v182',
              's_lshl_b32 s62, s2, 6', f's_add_u32 s62, s62, {WS_Y}', 's_add_u32 s63, s62, 0x100000', 's_add_u32 s64, s62, 0x200000', 's_add_u32 s65, s62, 0x300000',
              'v_lshlrev_b32 v184, 4, v0', 's_lshl_b32 s66, s2, 14', f's_add_u32 s66, s66, {WS_Y}', 's_add_u32 s70, s66, 4096', 's_add_u32 s71, s66, 8192',
              's_add_u32 s76, s66, 12288', f'v_mul_u32_u24 v185, {2 * RS}, v183', 'v_lshrrev_b32 v183, 2, v0', 'v_lshl_add_u32 v185, v183, 3, v185',
              f'v_add_u32 v185, {L_YT}, v185']

    XR2 = 152

    def gather(p0_, sregs, GR, GP):
        out = []
        for ch in range(4):
            base = 180 + (ch >> 1)
            out.append(f'ds_read2st64_b32 v[{GR + 2 * ch}:{GR + 2 * ch + 1}], v{base} offset0:{16 * (ch & 1) + 4 * p0_} offset1:{16 * (ch & 1) + 4 * p0_ + 4}')
        out.append('s_waitcnt lgkmcnt(0)')
        for p in range(2):
            g = GP + 4 * p
            out.append(f'v_perm_b32 v{g}, v{GR + 2 + p}, v{GR + p}, s74')
            out.append(f'v_perm_b32 v{g + 1}, v{GR + 6 + p}, v{GR + 4 + p}, s74')
            out.append(f'v_perm_b32 v{g + 2}, v{GR + 2 + p}, v{GR + p}, s75')
            out.append(f'v_perm_b32 v{g + 3}, v{GR + 6 + p}, v{GR + 4 + p}, s75')
            out.append(f'buffer_store_dwordx4 v[{g}:{g + 3}], v182, {XBR}, s{sregs[p]} offen sc1')
        return out

    fbload = f'buffer_load_dword v167, v151, {WSR}, s6 offen sc1'
    for c in range(8):
        sa, sb = FR[c & 1], FB_[c & 1]
        a('s_waitcnt lgkmcnt(0)')
        fill = []
        if c < 7:
            fill = readsB(FB_[(c + 1) & 1], c + 1, range(8)) + readsA(FR[(c + 1) & 1], c + 1, 8)
        if c == 0:
            for z in range(8):
                mfma(z, 168, sb + 4 * z, True)
        if c == 1:
            fill = fill + gsetup[:12]
        if c == 2:
            fill = fill + gsetup[12:] + ['s_lshl_b32 s6, s13, 13', f's_add_u32 s6, s6, {WS_FY}']
        if c == S1POS:
            fill = [f'buffer_load_dwordx4 v[{XR2 + 4 * i}:{XR2 + 4 * i + 3}], v2, s[{S_Q}:{S_Q + 3}], s69 offen offset:{1024 * i} nt' for i in range(2)] \
                + [f'buffer_load_dwordx4 v[{WR + 4 * i}:{WR + 4 * i + 3}], v2, s[{S_WR}:{S_WR + 3}], 0 offen offset:{1024 * i}' for i in range(2)] + fill
        if c == FBC:
            fill = [fbload] + fill
        if c == FLC:
            a('s_waitcnt vmcnt(0)')
            a('s_mov_b64 exec, 1')
            a(f'ds_add_rtn_u32 v150, v{VC}, v{V1} offset:16')
            a('s_mov_b64 exec, -1')
        if c == FLC + 1:
            a('v_cmp_eq_u32 vcc, 3, v150')
            a('v_cndmask_b32 v149, -16, v149, vcc')
            a('s_mov_b64 exec, 1')
            a(f'buffer_store_dword v148, v149, {WSR}, s7 offen sc1')
            a('s_mov_b64 exec, -1')
            stamp('fillB')
        order = [(n, z) for n in range(8) for z in range(8 - n)]
        pend = []
        if c == 7:
            order = sorted(order, key=lambda nz: (nz[0] + nz[1], nz[0]))
        nper = -(-len(fill) // len(order))
        for (n, z) in order:
            w = n + z
            mfma(w, sa + 4 * n, sb + 4 * z)
            for _ in range(nper):
                if fill:
                    a(fill.pop(0))
            if c == 7:
                if z == 0:
                    pend.append([w, 0])
                for q in pend:
                    q[1] += 1
                if pend and pend[0][1] > 5:
                    for l in ystage(pend.pop(0)[0]):
                        a(l)
        assert not fill
    a('s_mov_b32 s61, 0')
    for w0, _ in pend:
        for l in ystage(w0):
            a(l)
    stamp('s1end')
    a('s_branch fb_chk')
    a('fb_again:')
    a(fbload)
    a('fb_chk:')
    a('s_waitcnt vmcnt(0)')
    a('v_cmp_ne_u32 vcc, s8, v167')
    a('s_cbranch_vccz fb_ok')
    a('s_add_u32 s61, s61, 1')
    a(f's_cmp_ge_u32 s61, {POLL_MAX}')
    a('s_cbranch_scc1 fb_ok')
    a('s_mov_b64 exec, vcc')
    a('s_sleep 2')
    a('s_branch fb_again')
    a('fb_ok:')
    a('s_mov_b64 exec, 1')
    a(f'ds_add_u32 v{VC}, v{V1} offset:8')
    a('s_mov_b64 exec, -1')
    stamp('fbok')
    lds_spin('c2', VC, 8, 4, 166)
    g0, g1 = gather(0, (62, 63), 188, 120), gather(2, (64, 65), 196, 128)
    for l in g0[:4] + g1[:4] + ['s_waitcnt lgkmcnt(4)'] + g0[5:] + ['s_waitcnt lgkmcnt(0)'] + g1[5:]:
        a(l)
    for i in range(8):
        a(f'v_mov_b32 v{XR + i}, v{XR2 + i}')
    ln_x()
    stamp('lnx')
    a('s_waitcnt vmcnt(0)')
    stamp('ydrain')
    PY = 96
    loads = [f'buffer_load_dwordx4 v[{PY + 4 * p}:{PY + 4 * p + 3}], v184, {XBR}, s{sr} offen sc1' for p, sr in enumerate((66, 70, 71, 76))]
    poll_loop('py', loads, range(PY, PY + 16), 166, sleep=YSLEEP)
    for p in range(4):
        a(f'ds_write_b64 v185, v[{PY + 4 * p}:{PY + 4 * p + 1}] offset:{512 * p}')
        a(f'ds_write_b64 v185, v[{PY + 4 * p + 2}:{PY + 4 * p + 3}] offset:{512 * p + RS}')
    stamp('ypoll')
    a('s_branch rows')

    a('helper:')
    GW, UW, DW = 96, 128, 160
    a('v_and_b32 v200, 255, v0')
    a('v_lshrrev_b32 v201, 3, v200')
    a(f'v_mul_u32_u24 v202, {8 * 7168}, v201')
    a('v_lshl_add_u32 v202, v7, 4, v202')
    a('s_and_b32 s77, s2, 3')
    a('s_lshl_b32 s60, s77, 9')
    a(f's_add_u32 s60, s60, {L_X}')
    a('v_lshlrev_b32 v201, 4, v201')
    a('v_add_u32 v201, s60, v201')
    a(f's_mul_i32 s77, s77, {256 * 7168}')
    a('s_lshr_b32 s78, s2, 2')
    a('s_lshl_b32 s78, s78, 7')
    a('s_add_u32 s77, s77, s78')
    a('s_lshl_b32 s78, s2, 15')
    a('s_cmp_lt_u32 s2, 224')
    a('s_cselect_b32 s77, s77, 0x40000000')
    a('s_cselect_b32 s78, s78, 0x40000000')
    a('v_lshlrev_b32 v203, 3, v200')
    stream = []
    for i in range(2):
        stream.append([f'buffer_load_dwordx4 v[{XR + 4 * i}:{XR + 4 * i + 3}], v2, s[{S_Q}:{S_Q + 3}], s69 offen offset:{1024 * i} nt'])
    for i in range(2):
        stream.append([f'buffer_load_dwordx4 v[{WR + 4 * i}:{WR + 4 * i + 3}], v2, s[{S_WR}:{S_WR + 3}], 0 offen offset:{1024 * i}'])
    for i in range(8):
        stream.append([f'buffer_load_dwordx4 v[{GW + 4 * i}:{GW + 4 * i + 3}], v202, s[{S_G}:{S_G + 3}], s77 offen nt'])
        stream.append([f'buffer_load_dwordx4 v[{UW + 4 * i}:{UW + 4 * i + 3}], v202, s[{S_U}:{S_U + 3}], s77 offen nt', 's_add_u32 s77, s77, 7168'])
    for r in range(8):
        stream.append([f'buffer_load_dwordx2 v[{DW + 4 * r}:{DW + 4 * r + 1}], v203, s[{S_D}:{S_D + 3}], s78 offen nt',
                       f'buffer_load_dwordx2 v[{DW + 4 * r + 2}:{DW + 4 * r + 3}], v203, s[{S_D}:{S_D + 3}], s78 offen offset:2048 nt', 's_add_u32 s78, s78, 4096'])
    pos = 0
    for _ in range(EARLY):
        for l in stream[pos]:
            a(l)
        pos += 1
    p0(EARLY)
    nb = 0
    for _ in range(MID):
        for l in stream[pos]:
            a(l)
            nb += l.startswith('buffer_load')
        pos += 1
    for r in range(4):
        a(f'v_mov_b32 v{24 + r}, -1')
    a('v_lshlrev_b32 v29, 4, v200')
    a('s_lshr_b32 s60, s2, 2')
    a('s_lshl_b32 s60, s60, 11')
    a('s_and_b32 s61, s2, 3')
    a('s_lshl_b32 s61, s61, 7')
    a('s_add_u32 s60, s60, s61')
    a(f's_add_u32 s60, s60, {WS_GX}')
    a('v_lshrrev_b32 v30, 3, v1')
    a('v_lshlrev_b32 v30, 9, v30')
    a('v_add_u32 v30, s60, v30')
    a('v_lshl_add_u32 v30, v7, 4, v30')
    a('v_mov_b32 v31, -16')
    a('v_cmp_gt_u32 vcc, 32, v200')
    a('v_cndmask_b32 v30, v31, v30, vcc')
    a('s_lshl_b32 s61, s2, 12')
    a(f's_add_u32 s62, s61, {WS_CAND}')
    a(f's_add_u32 s63, s61, {WS_PART}')
    a(f's_waitcnt vmcnt({nb})')
    fa_count()
    small = [[f'buffer_store_dwordx4 v[24:27], v29, {WSR}, s62 offen sc1'],
             [f'buffer_store_dwordx4 v[24:27], v29, {WSR}, s63 offen sc1', f'buffer_store_dwordx4 v[24:27], v30, {WSR}, 0 offen sc1']]
    stream[SMALLPOS:SMALLPOS] = small
    lds_spin('uw', VC, 20, 4, 28)
    stamp('uw')

    def nloads(step):
        return sum(1 for l in step if l.startswith('buffer_'))

    def run_stream(upto):
        nonlocal pos
        while pos < upto:
            for l in stream[pos]:
                a(l)
            k, cnt = pos, 0
            tot = 0
            while k >= 0 and cnt < DEPTH - 1:
                tot += nloads(stream[k])
                cnt += 1
                k -= 1
            a(f's_waitcnt vmcnt({tot})')
            pos += 1

    run_stream(max(pos, PRE, SMALLPOS + 2 + DEPTH))
    stamp('pre')
    lds_spin('mf', VC, 8, 4, Y)
    ln_x()
    stamp('lnx')

    a('rows:')
    a(f's_mul_i32 s60, s12, {RS}')
    a(f's_add_u32 s60, s60, {L_YT}')
    a('v_add_u32 v3, s60, v2')
    a('s_waitcnt lgkmcnt(0)')
    a('s_barrier')
    a(f'ds_read_b128 v[{Y}:{Y + 3}], v3')
    a(f'ds_read_b128 v[{Y + 4}:{Y + 7}], v3 offset:1024')
    stamp('bar2')
    a('s_cmp_eq_u32 s14, 0')
    a('s_cbranch_scc1 no_down')
    nd = 0
    while pos < len(stream):
        for l in stream[pos]:
            a(l)
            nd += l.startswith('buffer_load')
        pos += 1
    a('no_down:')
    H = XP
    M, V = T + 16, T + 18
    A = A8
    a('s_lshl_b32 s60, s12, 2')
    a(f's_add_u32 s60, s60, {L_KEY}')
    a('v_mov_b32 v3, s60')
    a(f'v_mov_b32 v{V}, 0x3a800000')
    for hf in range(2):
        a(f's_waitcnt lgkmcnt({1 - hf})')
        for i in range(4 * hf, 4 * hf + 4):
            unpack(T + 2 * i, T + 2 * i + 1, Y + i)
        for i in range(4 * hf, 4 * hf + 4):
            pk('fma', H + 2 * i, T + 2 * i, N + 2 * i, XP + 2 * i)
        for i in range(4 * hf, 4 * hf + 4):
            if i == 0:
                pk('mul', A + 2, H, H)
                pk('mul', A + 4, H, WF)
            else:
                if i == 1:
                    pk('add', A, H, H + 2)
                else:
                    pk('add', A, A, H + 2 * i)
                pk('fma', A + 2, H + 2 * i, H + 2 * i, A + 2)
                pk('fma', A + 4, H + 2 * i, WF + 2 * i, A + 4)
    for b in (A, A + 2, A + 4):
        a(f'v_add_f32 v{b}, v{b}, v{b + 1}')
    wave_reduce('v_add_f32', [A, A + 2, A + 4])
    a(f'v_readlane_b32 s60, v{A}, 63')
    a(f'v_readlane_b32 s61, v{A + 2}, 63')
    a(f'v_readlane_b32 s62, v{A + 4}, 63')
    a(f'v_mul_f32 v{A}, s60, v{V}')
    a(f'v_mul_f32 v{A + 1}, v{A}, v{A}')
    a(f'v_fma_f32 v{V}, s61, v{V}, -v{A + 1}')
    a(f'v_add_f32 v{M}, s72, v{A}')
    rnd(V, V)
    rnd(M, M)
    a(f'v_add_f32 v{V}, 0x3727c5ac, v{V}')
    a(f'v_subrev_f32 v{A}, s72, v{M}')
    rnd(V, V)
    a(f'v_mov_b32 v{A + 1}, s62')
    a(f'v_sqrt_f32 v{V}, v{V}')
    a(f'v_fma_f32 v{A + 1}, -v{A}, s73, v{A + 1}')
    rnd(V, V)
    a(f'v_rcp_f32 v{V}, v{V}')
    a(f'v_mul_f32 v{A + 1}, v{A + 1}, v{V}')
    rnd(A + 1, A + 1)
    a(f'v_readfirstlane_b32 s62, v{A + 1}')
    a('s_not_b32 s60, s62')
    a('s_or_b32 s61, s62, 0x80000000')
    a('s_cmp_lt_i32 s62, 0')
    a('s_cselect_b32 s62, s60, s61')
    a('s_and_b32 s62, s62, 0xffff0000')
    a('s_sub_u32 s60, 2047, s68')
    a('s_or_b32 s63, s62, s60')
    a(f'v_mov_b32 v{A + 2}, s63')
    a(f'ds_write_b32 v3, v{A + 2}')
    a(f'v_mov_b32 v3, {L_KEY}')
    a(f's_lshl_b32 s60, s2, {KSH}')
    a(f's_add_u32 s60, s60, {WS_KEYS}')
    a(f'v_mov_b32 v{A + 3}, s8')
    a(f'v_mov_b32 v{A + 6}, 0')
    a(f'v_mov_b32 v{V + 1}, v{V}')
    a(f'v_mov_b32 v{M + 1}, v{M}')
    a(f'v_mov_b32 v{A + 4}, s72')
    a(f'v_mov_b32 v{A + 5}, s72')
    a('s_waitcnt lgkmcnt(0)')
    a('s_barrier')
    a(f'ds_read_b128 v[{Y}:{Y + 3}], v3')
    a(f'ds_read_b128 v[{Y + 4}:{Y + 7}], v3 offset:16')
    for i in range(8):
        pk('add', H + 2 * i, H + 2 * i, A + 4)
    a('s_waitcnt lgkmcnt(0)')
    a(f'v_max3_u32 v{Y}, v{Y}, v{Y + 1}, v{Y + 2}')
    a(f'v_max3_u32 v{Y + 3}, v{Y + 3}, v{Y + 4}, v{Y + 5}')
    a(f'v_max3_u32 v{Y}, v{Y}, v{Y + 6}, v{Y + 7}')
    a(f'v_max_u32 v{Y}, v{Y}, v{Y + 3}')
    a(f'v_readfirstlane_b32 s61, v{Y}')
    a('s_cmp_eq_u32 s61, s63')
    a('s_cselect_b32 s64, 1, 0')
    a('s_cbranch_scc0 no_key')
    a('s_mov_b64 exec, 1')
    a(f'buffer_store_dwordx2 v[{A + 2}:{A + 3}], v{A + 6}, {WSR}, s60 offen sc1')
    a('s_mov_b64 exec, -1')
    a('no_key:')
    stamp('key')
    for i in range(16):
        rnd(H + i, H + i)
    for i in range(8):
        pk('add', N + 2 * i, H + 2 * i, M, mods='neg_lo:[0,1] neg_hi:[0,1]')
    for i in range(16):
        rnd(N + i, N + i)
    for i in range(8):
        pk('mul', N + 2 * i, N + 2 * i, V)
    for i in range(8):
        a(f'v_cvt_pk_bf16_f32 v{Y + i}, v{N + 2 * i}, v{N + 2 * i + 1}')
    OUTR = XR
    a('s_cmp_eq_u32 s64, 0')
    a('s_cbranch_scc1 no_cand')
    a('s_lshl_b32 s60, s2, 12')
    a(f's_add_u32 s60, s60, {WS_CAND}')
    a(f'buffer_store_dwordx4 v[{Y}:{Y + 3}], v2, {WSR}, s60 offen sc1')
    a(f'buffer_store_dwordx4 v[{Y + 4}:{Y + 7}], v2, {WSR}, s60 offen offset:1024 sc1')
    for i in range(8):
        a(f'v_cvt_pk_bf16_f32 v{WF + i}, v{H + 2 * i}, v{H + 2 * i + 1}')
    a(f'buffer_store_dwordx4 v[{WF}:{WF + 3}], v2, {WSR}, s60 offen offset:2048 sc1')
    a(f'buffer_store_dwordx4 v[{WF + 4}:{WF + 7}], v2, {WSR}, s60 offen offset:3072 sc1')
    a('no_cand:')
    for i in range(8):
        unpack(N + 2 * i, N + 2 * i + 1, Y + i)
    for i in range(8):
        pk('add', T + 2 * i, H + 2 * i, N + 2 * i)
    for i in range(8):
        a(f'v_cvt_pk_bf16_f32 v{OUTR + i}, v{T + 2 * i}, v{T + 2 * i + 1}')
    a('s_cmp_eq_u32 s12, 0')
    a('s_cbranch_scc0 not_w0')
    a(f'v_lshlrev_b32 v4, {KSH}, v1')
    for p, sr in enumerate((65, 66, 67, 70)):
        a(f's_mov_b32 s{sr}, {WS_KEYS + (64 * p << KSH)}')
    a('s_mov_b32 s61, 0')
    a('pk_again:')
    for p, sr in enumerate((65, 66, 67, 70)):
        a(f'buffer_load_dwordx2 v[{16 + 2 * p}:{17 + 2 * p}], v4, {WSR}, s{sr} offen sc1')
    a('s_waitcnt vmcnt(0)')
    a('v_xor_b32 v8, s8, v17')
    a('v_xor_b32 v9, s8, v19')
    a('v_xor_b32 v10, s8, v21')
    a('v_xor_b32 v11, s8, v23')
    a('v_max3_u32 v12, v16, v18, v20')
    a('v_or3_b32 v8, v8, v9, v10')
    a('v_max_u32 v12, v12, v22')
    a('v_or_b32 v8, v8, v11')
    a('v_cmp_ne_u32 vcc, 0, v8')
    a('s_cbranch_vccz pk_ok')
    a('s_add_u32 s61, s61, 1')
    a(f's_cmp_ge_u32 s61, {POLL_MAX}')
    a('s_cbranch_scc1 pk_ok')
    a('s_mov_b64 exec, vcc')
    a('s_sleep 2')
    a('s_branch pk_again')
    a('pk_ok:')
    a('s_mov_b64 exec, -1')
    wave_reduce('v_max_u32', 12)
    a('v_readlane_b32 s65, v12, 63')
    stamp('gkey')
    a('s_and_b32 s66, s65, 0xffff')
    a('s_sub_u32 s66, 2047, s66')
    a('s_lshr_b32 s66, s66, 3')
    a('s_lshl_b32 s66, s66, 12')
    a(f's_add_u32 s66, s66, {WS_CAND}')
    a(f'v_add_u32 v5, {L_X}, v2')
    a(f'v_mov_b32 v6, {L_GKEY}')
    a('v_mov_b32 v7, s65')
    a('ds_write_b32 v6, v7')
    loads = [f'buffer_load_dwordx4 v[{8 + 4 * p}:{11 + 4 * p}], v2, {WSR}, s66 offen offset:{1024 * p} sc1' for p in range(2)]
    poll_loop('px', loads, range(8, 16), 16)
    a('ds_write_b128 v5, v[8:11]')
    a('ds_write_b128 v5, v[12:15] offset:1024')
    a('s_branch bar4')
    a('not_w0:')
    a('s_cmp_eq_u32 s14, 0')
    a('s_cbranch_scc1 bar4')
    a('s_cmp_lt_u32 s2, 224')
    a('s_cbranch_scc0 bar4')
    a(f's_waitcnt vmcnt({min(nd, 16)})')
    PG = 4
    for m, base in ((0, GW), (1, UW)):
        for p in range(4):
            for k in range(4):
                lo, hi = base + 4 * (2 * p) + k, base + 4 * (2 * p + 1) + k
                a(f'v_perm_b32 v{PG + 32 * m + 4 * (2 * k) + p}, v{hi}, v{lo}, s74')
                a(f'v_perm_b32 v{PG + 32 * m + 4 * (2 * k + 1) + p}, v{hi}, v{lo}, s75')
    a('v_bfe_u32 v128, v1, 1, 2')
    a('v_lshlrev_b32 v128, 7, v128')
    a('v_bfe_u32 v129, v1, 5, 1')
    a('v_lshl_add_u32 v128, v129, 6, v128')
    a('v_and_b32 v129, 1, v1')
    a('v_lshl_add_u32 v128, v129, 5, v128')
    a('v_bfe_u32 v129, v1, 4, 1')
    a('v_lshl_add_u32 v128, v129, 4, v128')
    a('s_lshl_b32 s60, s13, 9')
    a(f's_add_u32 s60, s60, {L_RED}')
    a('v_add_u32 v128, s60, v128')
    a('v_lshlrev_b32 v129, 3, v1')
    a(f'v_add_u32 v131, {L_RED}, v129')
    a('v_lshlrev_b32 v130, 4, v200')
    a('s_lshl_b32 s77, s2, 12')
    a(f's_add_u32 s77, s77, {WS_PART}')
    a('s_lshr_b32 s60, s2, 2')
    a('s_lshl_b32 s60, s60, 11')
    a(f's_add_u32 s60, s60, {WS_GX}')
    a('s_and_b32 s62, s2, 3')
    a('s_lshl_b32 s78, s62, 7')
    a('s_add_u32 s78, s78, s60')
    a('s_lshl_b32 s79, s62, 9')
    a('s_add_u32 s79, s79, s60')
    a('v_lshrrev_b32 v132, 4, v1')
    a('v_lshlrev_b32 v132, 9, v132')
    a('v_and_b32 v133, 15, v1')
    a('v_lshl_add_u32 v132, v133, 3, v132')
    a('v_lshlrev_b32 v133, 2, v133')
    stamp('wready')
    a('bar4:')
    a(f'v_mov_b32 v3, {L_GKEY}')
    a('s_waitcnt lgkmcnt(0)')
    a('s_barrier')
    a('ds_read_b32 v3, v3')
    a('s_mov_b32 s9, s69')

    def out_store():
        lab = a.newlabel('skip_out')
        a('v_readfirstlane_b32 s60, v3')
        a('s_cmp_eq_u32 s60, s63')
        a(f's_cbranch_scc1 {lab}')
        a(f'buffer_store_dwordx4 v[{OUTR}:{OUTR + 3}], v2, s[{S_OUT}:{S_OUT + 3}], s9 offen')
        a(f'buffer_store_dwordx4 v[{OUTR + 4}:{OUTR + 7}], v2, s[{S_OUT}:{S_OUT + 3}], s9 offen offset:1024')
        a(f'{lab}:')

    a('s_cmp_lt_u32 s2, 224')
    a('s_cbranch_scc0 final')
    a('s_cmp_eq_u32 s14, 0')
    a('s_cbranch_scc0 ffn')
    a('s_barrier')
    a('s_barrier')
    a('s_waitcnt lgkmcnt(0)')
    a('s_barrier')
    out_store()
    a('s_branch main_fl')
    a('ffn:')
    XS, AC = 68, 72
    stamp('ffn0')
    a(f'ds_read_b128 v[{XS}:{XS + 3}], v201')
    a('s_mov_b32 s60, 0xff00ff00')
    a('s_mov_b32 s61, 0xff00ff00')
    a('s_waitcnt lgkmcnt(0)')
    for p in range(4):
        for i in range(16):
            src2 = '0' if p == 0 else f'v{AC + i}'
            a(f'v_dot2_f32_bf16 v{AC + i}, v{PG + 4 * i + p}, v{XS + p}, {src2}')
    for i in range(8):
        a(f'v_permlane32_swap_b32 v{AC + i}, v{AC + 8 + i}')
    for i in range(8):
        a(f'v_add_f32 v{AC + i}, v{AC + i}, v{AC + 8 + i}')
    for i in range(4):
        a(f'v_permlane16_swap_b32 v{AC + i}, v{AC + 4 + i}')
    for i in range(4):
        a(f'v_add_f32 v{AC + i}, v{AC + i}, v{AC + 4 + i}')
    for i in range(4):
        a(f'v_add_f32_dpp v{AC + i}, v{AC + i}, v{AC + i} row_shr:8 row_mask:0xf bank_mask:0xf bound_ctrl:0')
    a('s_mov_b64 exec, s[60:61]')
    a(f'ds_write_b128 v128, v[{AC}:{AC + 3}]')
    a('s_mov_b64 exec, -1')
    a('s_waitcnt lgkmcnt(0)')
    a('s_barrier')
    TT = 136
    a('s_cmp_eq_u32 s13, 0')
    a('s_cbranch_scc0 gx_nostore')
    for q in range(4):
        a(f'ds_read_b64 v[{TT + 2 * q}:{TT + 2 * q + 1}], v131 offset:{512 * q}')
    a('s_waitcnt lgkmcnt(0)')
    pk('add', TT, TT, TT + 2)
    pk('add', TT + 4, TT + 4, TT + 6)
    pk('add', TT, TT, TT + 4)
    a(f'buffer_store_dwordx2 v[{TT}:{TT + 1}], v132, {WSR}, s78 offen sc1')
    a('s_waitcnt vmcnt(0)')
    a('gx_nostore:')
    a('s_waitcnt vmcnt(0)')
    PD = 96
    for p in range(8):
        for k in range(2):
            lo, hi = DW + 2 * (2 * p) + k, DW + 2 * (2 * p + 1) + k
            a(f'v_perm_b32 v{PD + 8 * (2 * k) + p}, v{hi}, v{lo}, s74')
            a(f'v_perm_b32 v{PD + 8 * (2 * k + 1) + p}, v{hi}, v{lo}, s75')
    a('s_barrier')
    stamp('gxst')
    loads = []
    for k in range(4):
        loads.append(f'buffer_load_dword v{TT + 2 * k}, v133, {WSR}, s79 offen offset:{128 * k} sc1')
        loads.append(f'buffer_load_dword v{TT + 2 * k + 1}, v133, {WSR}, s79 offen offset:{128 * k + 64} sc1')
    poll_loop('pg', loads, range(TT, TT + 8), TT + 8)
    stamp('gxpoll')
    pk('add', TT, TT, TT + 2)
    pk('add', TT + 4, TT + 4, TT + 6)
    pk('add', TT, TT, TT + 4)
    rnd(TT, TT)
    rnd(TT + 1, TT + 1)
    a(f'v_mul_f32 v{TT + 2}, 0xbfb8aa3b, v{TT}')
    a(f'v_exp_f32 v{TT + 2}, v{TT + 2}')
    a(f'v_add_f32 v{TT + 2}, 1.0, v{TT + 2}')
    a(f'v_rcp_f32 v{TT + 2}, v{TT + 2}')
    a(f'v_mul_f32 v{TT}, v{TT}, v{TT + 2}')
    rnd(TT, TT)
    a(f'v_mul_f32 v{TT}, v{TT}, v{TT + 1}')
    a(f'v_mov_b32_dpp v{TT + 1}, v{TT} row_shr:1 row_mask:0xf bank_mask:0xf bound_ctrl:0')
    a(f'v_cvt_pk_bf16_f32 v{TT}, v{TT + 1}, v{TT}')
    for p in range(8):
        a(f'v_readlane_b32 s{64 + p}, v{TT}, {2 * p + 1}')
    for p in range(8):
        for c in range(4):
            src2 = '0' if p == 0 else f'v{AC + c}'
            a(f'v_dot2_f32_bf16 v{AC + c}, v{PD + 8 * c + p}, s{64 + p}, {src2}')
    a(f'buffer_store_dwordx4 v[{AC}:{AC + 3}], v130, {WSR}, s77 offen sc1')
    a('s_barrier')
    out_store()
    a('s_branch main_fl')

    a('final:')
    a(f's_add_u32 s{S_G}, s{S_WS}, {WS_PART}')
    a(f's_addc_u32 s{S_G + 1}, s{S_WS + 1}, 0')
    a(f's_mov_b32 s{S_G + 2}, {224 * 4096}')
    a('s_waitcnt lgkmcnt(0)')
    out_store()
    a('s_sub_u32 s76, s2, 224')
    a('v_and_b32 v4, 7, v0')
    a('v_lshrrev_b32 v5, 3, v0')
    a('v_lshlrev_b32 v5, 12, v5')
    a('v_lshl_add_u32 v5, v4, 4, v5')
    a('s_lshl_b32 s65, s76, 7')
    a(f's_add_u32 s66, s65, {64 * 4096}')
    a(f's_add_u32 s67, s65, {128 * 4096}')
    a(f's_add_u32 s70, s65, {192 * 4096}')
    a('s_waitcnt lgkmcnt(0)')
    a('v_readfirstlane_b32 s71, v3')
    a('s_and_b32 s72, s71, 0xffff')
    a('s_sub_u32 s72, 2047, s72')
    a('s_lshr_b32 s73, s72, 3')
    a('s_lshl_b32 s73, s73, 12')
    a('s_lshl_b32 s60, s76, 6')
    a('s_add_u32 s73, s73, s60')
    a(f's_add_u32 s73, s73, {WS_CAND}')
    a('s_lshl_b32 s72, s72, 11')
    a('s_add_u32 s72, s72, s60')
    a('v_and_b32 v6, 15, v0')
    a('v_lshlrev_b32 v6, 2, v6')
    a('v_lshrrev_b32 v7, 4, v1')
    a('v_lshl_add_u32 v7, v4, 2, v7')
    a('v_lshlrev_b32 v7, 2, v7')
    a('s_lshl_b32 s60, s12, 7')
    a(f's_add_u32 s60, s60, {L_RED}')
    a('v_add_u32 v7, s60, v7')
    a('v_lshlrev_b32 v48, 1, v6')
    a(f'v_add_u32 v48, {L_RED}, v48')
    a('s_cmp_eq_u32 s12, 0')
    a('s_cbranch_scc0 fin_nohn')
    a('s_cmp_eq_u32 s2, 224')
    a(f's_cselect_b32 s60, {WS_EPOCH}, 0x40000000')
    a('v_mov_b32 v49, s8')
    a('v_mov_b32 v50, 0')
    a('s_mov_b64 exec, 1')
    a(f'buffer_store_dword v49, v50, {WSR}, s60 offen')
    a('s_mov_b64 exec, -1')
    loads = [f'buffer_load_dword v{40 + p}, v6, {WSR}, s73 offen offset:{2048 * p} sc1' for p in range(2)]
    poll_loop('ph', loads, (40, 41), 42)
    a('s_and_b32 s60, s71, 0xffff0000')
    a('s_xor_b32 s61, s60, 0x80000000')
    a('s_xor_b32 s62, s60, 0xffff0000')
    a('s_cmp_lt_i32 s60, 0')
    a('s_cselect_b32 s60, s61, s62')
    a('v_mov_b32 v42, 0xbfb8aa3b')
    a('v_mul_f32 v42, s60, v42')
    a('v_exp_f32 v42, v42')
    a('v_add_f32 v42, 1.0, v42')
    a('v_rcp_f32 v42, v42')
    rnd(42, 42)
    unpack(44, 45, 40)
    unpack(46, 47, 41)
    a('fin_nohn:')
    a(f's_sleep {opt("finsleep", 30)}')
    P = 8
    loads = [f'buffer_load_dwordx4 v[{P + 4 * r}:{P + 4 * r + 3}], v5, s[{S_G}:{S_G + 3}], s{sr} offen sc1' for r, sr in enumerate((65, 66, 67, 70))]
    poll_loop('pp', loads, range(P, P + 16), 24)
    stamp('ppoll')
    pk('add', P, P, P + 4)
    pk('add', P + 2, P + 2, P + 6)
    pk('add', P + 8, P + 8, P + 12)
    pk('add', P + 10, P + 10, P + 14)
    pk('add', P, P, P + 8)
    pk('add', P + 2, P + 2, P + 10)
    a('s_mov_b32 s60, 0xff00ff00')
    a('s_mov_b32 s61, 0xff00ff00')
    a(f'v_permlane32_swap_b32 v{P}, v{P + 2}')
    a(f'v_permlane32_swap_b32 v{P + 1}, v{P + 3}')
    pk('add', P, P, P + 2)
    a(f'v_permlane16_swap_b32 v{P}, v{P + 1}')
    a(f'v_add_f32 v{P}, v{P}, v{P + 1}')
    a(f'v_add_f32_dpp v{P}, v{P}, v{P} row_shr:8 row_mask:0xf bank_mask:0xf bound_ctrl:0')
    a('s_mov_b64 exec, s[60:61]')
    a(f'ds_write_b32 v7, v{P}')
    a('s_mov_b64 exec, -1')
    a('s_waitcnt lgkmcnt(0)')
    a('s_barrier')
    a('s_cmp_eq_u32 s12, 0')
    a('s_cbranch_scc0 main_fl')
    for q in range(8):
        a(f'ds_read_b64 v[{P + 2 * q}:{P + 2 * q + 1}], v48 offset:{128 * q}')
    a('s_waitcnt lgkmcnt(0)')
    for q in range(4):
        pk('add', P + 4 * q, P + 4 * q, P + 4 * q + 2)
    pk('add', P, P, P + 4)
    pk('add', P + 8, P + 8, P + 12)
    pk('add', P, P, P + 8)
    rnd(P, P)
    rnd(P + 1, P + 1)
    a(f'v_mul_f32 v{P}, v{P}, v42')
    a(f'v_mul_f32 v{P + 1}, v{P + 1}, v42')
    rnd(P, P)
    rnd(P + 1, P + 1)
    pk('add', P, P, 44)
    rnd(P, P)
    rnd(P + 1, P + 1)
    pk('add', P, P, 46)
    a(f'v_cvt_pk_bf16_f32 v{P}, v{P}, v{P + 1}')
    a('s_mov_b64 exec, 0xffff')
    a(f'buffer_store_dword v{P}, v6, s[{S_OUT}:{S_OUT + 3}], s72 offen')
    a('main_fl:')
    stamp_flush(S_WS, 7, 0)
    a('main_done:')
    a('s_endpgm')
    return kernel_desc(KN, 256, 102 if STAMPS else 80)


launch = '; @launch grid=(256,1,1) block=(512,1,1) lds=%d\n' % MAIN_LDS
finish(launch, [k_main()])
```

```python
import sys
from asmlib import *

NAME = 'sequential_preLN__ssm_conv_h3__moe_arch_mod__prompt'
HEADER = open('cdna_kernels/%s.s.ref' % NAME).read().split('; Override launch')[0]
MB4 = 4 << 20
a = Asm()
STAMPS = '--stamps' in sys.argv
WS_STAMP = 16 << 20
_st = {'n': 0, 'k': 0}


def opt(name, default=0):
    for x in reversed(sys.argv):
        if x.startswith('--%s=' % name):
            return int(x.split('=')[1], 0)
    return default


def stamp_begin(kidx):
    _st['k'] = kidx
    if STAMPS:
        for i in range(8):
            a(f's_mov_b64 s[{80 + 2 * i}:{81 + 2 * i}], 0')
    stamp(0)


STNAMES = {}
for x in sys.argv:
    if x.startswith('--st='):
        STAMPS = True
        for i, grp in enumerate(x[5:].split(',')):
            for nm in grp.split('+'):
                STNAMES[nm] = i + 1


def stamp(n):
    if not STAMPS:
        return
    if isinstance(n, str):
        if n + '@' in STNAMES:
            k = STNAMES[n + '@']
            a(f's_memtime s[{80 + 2 * k}:{81 + 2 * k}]')
        if n not in STNAMES:
            return
        n = STNAMES[n]
    assert n < 8
    a(f's_memrealtime s[{80 + 2 * n}:{81 + 2 * n}]')


def stamp_flush(wsreg, n, vtid):
    if not STAMPS:
        return
    a('s_waitcnt vmcnt(0) lgkmcnt(0)')
    stamp(n)
    a('s_mov_b64 exec, -1')
    a(f'v_lshrrev_b32 v1, 6, v{vtid}')
    a(f's_add_u32 s100, s2, {_st["k"] * 256}')
    a('s_lshl_b32 s100, s100, 9')
    a('v_lshlrev_b32 v1, 6, v1')
    a('v_add_u32 v1, s100, v1')
    if WS_STAMP >= 0:
        a(f's_add_u32 s96, s{wsreg}, {WS_STAMP}')
        a(f's_addc_u32 s97, s{wsreg + 1}, 0')
    else:
        a(f's_sub_u32 s96, s{wsreg}, {-WS_STAMP}')
        a(f's_subb_u32 s97, s{wsreg + 1}, 0')
    a('s_mov_b32 s98, 0x100000')
    a('s_mov_b32 s99, 0x00020000')
    a('s_waitcnt lgkmcnt(0)')
    a('s_mov_b64 exec, 1')
    for i in range(8):
        a(f'v_mov_b32 v2, s{80 + 2 * i}')
        a(f'v_mov_b32 v3, s{81 + 2 * i}')
        a(f'buffer_store_dwordx2 v[2:3], v1, s[96:99], 0 offen offset:{8 * i}')


def srd(dst, base, nbytes, off=0):
    if off:
        a(f's_add_u32 s{dst}, s{base}, {off}')
        a(f's_addc_u32 s{dst + 1}, s{base + 1}, 0')
    else:
        if dst != base:
            a(f's_mov_b32 s{dst}, s{base}')
            a(f's_mov_b32 s{dst + 1}, s{base + 1}')
    a(f's_mov_b32 s{dst + 2}, {nbytes}')
    a(f's_mov_b32 s{dst + 3}, 0x00020000')


def rnd(d, s):
    a(f'v_cvt_pk_bf16_f32 v{d}, 0, v{s}')


def unpack(dlo, dhi, s):
    if dlo == s:
        a(f'v_and_b32 v{dhi}, 0xffff0000, v{s}')
        a(f'v_lshlrev_b32 v{dlo}, 16, v{s}')
    else:
        a(f'v_lshlrev_b32 v{dlo}, 16, v{s}')
        a(f'v_and_b32 v{dhi}, 0xffff0000, v{s}')


def wave_reduce(op, vs):
    if isinstance(vs, int):
        vs = [vs]
    for sh in (1, 2, 4, 8):
        for v in vs:
            a(f'{op}_dpp v{v}, v{v}, v{v} row_shr:{sh} row_mask:0xf bank_mask:0xf bound_ctrl:0')
    for v in vs:
        a(f'{op}_dpp v{v}, v{v}, v{v} row_bcast:15 row_mask:0xa bank_mask:0xf')
    for v in vs:
        a(f'{op}_dpp v{v}, v{v}, v{v} row_bcast:31 row_mask:0xc bank_mask:0xf')


def pk(op, d, x, y, z=None, mods=''):
    if z is None:
        a(f'v_pk_{op}_f32 v[{d}:{d + 1}], v[{x}:{x + 1}], v[{y}:{y + 1}] {mods}')
    else:
        a(f'v_pk_{op}_f32 v[{d}:{d + 1}], v[{x}:{x + 1}], v[{y}:{y + 1}], v[{z}:{z + 1}] {mods}')


def finish(launch, descs):
    text = HEADER + launch + '.amdgcn_target "amdgcn-amd-amdhsa--gfx950"\n' + a.render() + ''.join(descs)
    out = sys.argv[1] if len(sys.argv) > 1 and not sys.argv[1].startswith('--') else 'cdna_kernels/%s.s' % NAME
    open(out, 'w').write(text)
    print('wrote', out, len(text))
```

```python
from common import *
import common
STAMPS = common.STAMPS

WS_KEYS = 0
WS_EPOCH = 32 * 1024
WS_GX = 1536 * 1024
WS_FA = 128 * 1024
WS_FB = 192 * 1024
WS_FA2 = 64 * 1024
WS_CAND = 262144
WS_PART = 1 << 20
WS_KV = 2 << 20
WS_SIZE = 6 << 20
WSOFF = opt('wsoff', 0) << 20
common.WS_STAMP -= WSOFF
POLL_MAX = 1 << 16
KN = NAME + '_kernel'

DEPTH = opt('depth', 7)
XPOS = opt('xpos', 4)
UWOFF = opt('uwoff', 0)
FLC = opt('flc', 3)
FBC = opt('fbc', 10)
YSLEEP = opt('ysleep', 1)
CODEPF = opt('codepf', 6)
DEARLY = opt('dearly', 0)
DYN = opt('dyn', 0)
LSLEEP = opt('lsleep', 6)
FILLBY = opt('fillby', 1)
DUAL = opt('dual', 12)
KVS = '' if opt('l2kv', 0) else ' sc1'
KVL = {0: ' sc1', 1: ' sc0', 2: ''}[opt('kvl', 0)]
FAL = {0: ' sc1', 1: ' sc0', 2: ''}[opt('fal', 0)]
PAUSE = opt('pause', 20)

GS = 4160
UOFF = 4 * GS
CS = 21312
L_YL = 4 * CS
RS = 2064
L_YT = L_YL + 16384
L_P0 = L_YL
L_W = L_YT + 16 * RS
L_ST = L_W + 2048
L_PART = 0
PS = 272
L_H = 8192
L_CNT = L_ST + 272
L_GKEY = L_CNT + 28
L_SW = L_CNT + 32
L_X = L_CNT + 48
L_RED = L_X + 1024
MAIN_LDS = L_RED + 4096

S_K, S_V, S_SK, S_H, S_WS, S_Q, S_WR, S_OUT, S_G, S_U, S_D = 16, 20, 24, 28, 32, 36, 40, 44, 48, 52, 56
WSR = f's[{S_WS}:{S_WS + 3}]'
XBR = f's[{S_OUT}:{S_OUT + 3}]'
KVR = WSR
VC, V1 = 254, 255


def sentinel_check(regs, tmp):
    rs = list(regs)
    cur = rs.pop(0)
    while rs:
        if len(rs) >= 2:
            a(f'v_max3_u32 v{tmp}, v{cur}, v{rs[0]}, v{rs[1]}')
            rs = rs[2:]
        else:
            a(f'v_max_u32 v{tmp}, v{cur}, v{rs[0]}')
            rs = rs[1:]
        cur = tmp
    a(f'v_cmp_eq_u32 vcc, -1, v{cur}')


def retry_loop(name, loads, check, sleep=2, issued=False, mask='-1'):
    a('s_mov_b32 s61, 0')
    if issued:
        a(f's_branch {name}_chk')
    a(f'{name}_again:')
    for l in loads:
        a(l)
    a(f'{name}_chk:')
    a('s_waitcnt vmcnt(0)')
    check()
    a(f's_cbranch_vccz {name}_ok')
    a('s_add_u32 s61, s61, 1')
    a(f's_cmp_ge_u32 s61, {POLL_MAX}')
    a(f's_cbranch_scc1 {name}_ok')
    a('s_mov_b64 exec, vcc')
    a(f's_sleep {sleep}')
    a(f's_branch {name}_again')
    a(f'{name}_ok:')
    a(f's_mov_b64 exec, {mask}')


def poll_loop(name, loads, regs, tmp, sleep=2, issued=False):
    retry_loop(name, loads, lambda: sentinel_check(regs, tmp), sleep, issued)


def lds_spin(name, off, want, vt, sleep=1):
    a('s_mov_b32 s61, 0')
    a(f'{name}_spin:')
    a(f'ds_read_b32 v{vt}, v{VC} offset:{off}')
    a('s_add_u32 s61, s61, 1')
    a('s_waitcnt lgkmcnt(0)')
    a(f'v_readfirstlane_b32 s60, v{vt}')
    a(f's_cmp_ge_u32 s60, {want}')
    a(f's_cbranch_scc1 {name}_go')
    a(f's_cmp_ge_u32 s61, {1 << 22}')
    a(f's_cbranch_scc1 {name}_go')
    a(f's_sleep {sleep}')
    a(f's_branch {name}_spin')
    a(f'{name}_go:')


def lds_inc(off):
    a('s_mov_b64 exec, 1')
    a(f'ds_add_u32 v{VC}, v{V1} offset:{off}')
    a('s_mov_b64 exec, -1')


XP = [4, 20]
N = [36, 52]
T = [68, 84]
WF = 100
MV = [116, 120]
AA = [124, 132]
YR = [140, 148]
XR = 36
VG8, VXA, VWA, VSA, VKL, VPR, VPW, VRA, VBIT = range(228, 237)


def ln_x(xr, wr):
    for r in range(2):
        for i in range(8):
            unpack(XP[r] + 2 * i, XP[r] + 2 * i + 1, xr + 8 * r + i)
    for i in range(8):
        unpack(WF + 2 * i, WF + 2 * i + 1, wr + i)
    srcs = [(XP[0], T[0]), (XP[1], T[0] + 8), (WF, T[1])]
    for i in range(4):
        for (sx, t) in srcs:
            pk('add', t + 2 * i, sx + 4 * i, sx + 4 * i + 2)
    for (_, b) in srcs:
        pk('add', b, b, b + 2)
        pk('add', b + 4, b + 4, b + 6)
    for (_, b) in srcs:
        pk('add', b, b, b + 4)
    for (_, b) in srcs:
        a(f'v_add_f32 v{b}, v{b}, v{b + 1}')
    K = T[1] + 8
    a(f'v_mov_b32 v{K}, 0x3a800000')
    wave_reduce('v_add_f32', [b for _, b in srcs])
    a(f'v_readlane_b32 s60, v{T[0]}, 63')
    a(f'v_readlane_b32 s62, v{T[0] + 8}, 63')
    a(f'v_readlane_b32 s71, v{T[1]}, 63')
    for r in range(2):
        M, V = MV[r], MV[r] + 2
        a(f'v_mul_f32 v{V}, s{60 + 2 * r}, v{K}')
    for r in range(2):
        M, V = MV[r], MV[r] + 2
        rnd(M, V)
        rnd(M + 1, V)
        a(f'v_sub_f32 v{V}, v{V}, v{M}')
        a(f'v_readfirstlane_b32 s{72 + r}, v{M}')
    for r in range(2):
        for i in range(8):
            pk('add', XP[r] + 2 * i, XP[r] + 2 * i, MV[r], mods='neg_lo:[0,1] neg_hi:[0,1]')
    for i in range(8):
        for r in range(2):
            if i == 0:
                pk('mul', AA[r], XP[r], XP[r])
            else:
                pk('fma', AA[r], XP[r] + 2 * i, XP[r] + 2 * i, AA[r])
    for r in range(2):
        a(f'v_add_f32 v{AA[r]}, v{AA[r]}, v{AA[r] + 1}')
        a(f'v_mul_f32 v{MV[r] + 2}, v{MV[r] + 2}, v{MV[r] + 2}')
    wave_reduce('v_add_f32', AA)
    for r in range(2):
        a(f'v_readlane_b32 s{60 + 2 * r}, v{AA[r]}, 63')
    for step in range(8):
        for r in range(2):
            V = MV[r] + 2
            if step == 0:
                a(f'v_fma_f32 v{V}, s{60 + 2 * r}, v{K}, -v{V}')
            elif step in (1, 3, 5):
                rnd(V, V)
            elif step == 2:
                a(f'v_add_f32 v{V}, 0x3727c5ac, v{V}')
            elif step == 4:
                a(f'v_sqrt_f32 v{V}, v{V}')
            elif step == 6:
                a(f'v_rcp_f32 v{V + 1}, v{V}')
            else:
                a(f'v_rcp_f32 v{V}, v{V}')
    for r in range(2):
        for i in range(16):
            rnd(N[r] + i, XP[r] + i)
    for r in range(2):
        for i in range(8):
            pk('mul', N[r] + 2 * i, N[r] + 2 * i, MV[r] + 2)
    for r in range(2):
        for i in range(16):
            rnd(N[r] + i, N[r] + i)


def key_poll(dst):
    a('v_lshlrev_b32 v4, 7, v1')
    a(f's_mov_b32 s65, {WS_KEYS}')
    a(f's_mov_b32 s66, {WS_KEYS + 8192}')
    if opt('kcan', 1):
        a('s_lshl_b32 s62, s3, 7')
        a(f's_add_u32 s62, s62, {WS_KEYS + 4}')
        a('s_mov_b64 exec, 1')
        retry_loop(a.newlabel('kc'), [f'buffer_load_dword v8, v4, {WSR}, s62 offen sc1'], lambda: a('v_cmp_ne_u32 vcc, s8, v8'), sleep=opt('kcsleep', 2))
        stamp('kcan')
    loads = [f'buffer_load_dwordx2 v[{16 + 2 * p}:{17 + 2 * p}], v4, {WSR}, s{65 + p} offen sc1' for p in range(2)]

    def chk():
        a('v_xor_b32 v8, s8, v17')
        a('v_xor_b32 v9, s8, v19')
        a('v_max_u32 v12, v16, v18')
        a('v_or_b32 v8, v8, v9')
        a('v_cmp_ne_u32 vcc, 0, v8')
    retry_loop(a.newlabel('pk'), loads, chk, sleep=opt('ksleep', 2))
    wave_reduce('v_max_u32', 12)
    a(f'v_readlane_b32 s{dst}, v12, 63')


def k_main():
    kernel_begin(a, KN)
    a('s_cmp_ge_u32 s2, 256')
    a('s_cbranch_scc1 main_done')
    stamp_begin(0)
    for sr, off in ((S_WS, 104), (S_K, 8), (S_V, 16), (S_SK, 24), (S_H, 32), (10, 40), (S_Q, 0), (S_WR, 56), (S_OUT, 88), (S_G, 64), (S_U, 72), (S_D, 80)):
        a(f's_load_dwordx2 s[{sr}:{sr + 1}], s[0:1], {off}')
    if CODEPF:
        a('s_getpc_b64 s[4:5]')
        a('pc0:')
        a('s_mov_b32 s6, main_done-pc0')
        a('s_mov_b32 s7, 0x00020000')
        a('s_lshr_b32 s3, s2, 3')
        a(f's_mul_i32 s3, s3, {CODEPF * 128}')
        a('v_lshlrev_b32 v3, 7, v0')
        a(f'v_cmp_gt_u32 vcc, {CODEPF}, v0')
        a('s_and_saveexec_b64 s[60:61], vcc')
        a('s_cbranch_execz no_codepf')
        a('buffer_load_dword v252, v3, s[4:7], s3 offen')
        a('no_codepf:')
        a('s_mov_b64 exec, -1')
    a('s_lshr_b32 s5, s2, 4')
    if opt('grot', 0):
        a(f's_add_u32 s4, s2, {opt("grot", 0)}')
        a('s_and_b32 s4, s4, 15')
    else:
        a('s_and_b32 s4, s2, 15')
    a('s_lshl_b32 s2, s4, 4')
    a('s_or_b32 s2, s2, s5')
    a('v_lshrrev_b32 v3, 6, v0')
    a('v_and_b32 v1, 63, v0')
    a('v_readfirstlane_b32 s12, v3')
    a('v_lshlrev_b32 v2, 4, v1')
    a(f'v_mov_b32 v{VC}, {L_CNT}')
    a(f'v_mov_b32 v{V1}, 1')
    for r in range(6):
        a(f'v_mov_b32 v{144 + r}, 0')
    for r in range(4):
        a(f'v_mov_b32 v{240 + r}, -1')
    a('s_cmp_eq_u32 s12, 0')
    a('s_cbranch_scc0 no_cnt_init')
    a('s_mov_b64 exec, 1')
    a(f'ds_write_b128 v{VC}, v[144:147]')
    a(f'ds_write_b128 v{VC}, v[144:147] offset:16')
    a('s_mov_b64 exec, -1')
    a('no_cnt_init:')
    for sr, n in ((S_WS, WS_SIZE), (S_K, MB4), (S_V, MB4), (S_SK, 8192), (S_H, 4096), (S_Q, MB4), (S_WR, 2048), (S_OUT, MB4),
                  (S_G, 1024 * 7168), (S_U, 1024 * 7168), (S_D, 3584 * 2048)):
        a(f's_mov_b32 s{sr + 2}, {n}')
        a(f's_mov_b32 s{sr + 3}, 0x00020000')
    a('s_and_b32 s13, s12, 3')
    a('s_lshr_b32 s14, s12, 2')
    a('s_lshl_b32 s15, s2, 2')
    a('s_add_u32 s15, s15, s13')
    a('s_lshr_b32 s3, s2, 1')
    a('v_and_b32 v4, 15, v1')
    a('v_lshrrev_b32 v5, 4, v1')
    a('v_and_b32 v10, 31, v1')
    a('v_lshrrev_b32 v11, 5, v1')
    a('v_lshrrev_b32 v6, 3, v1')
    a('v_lshlrev_b32 v8, 11, v6')
    a('v_lshlrev_b32 v6, 13, v6')
    a('v_and_b32 v7, 7, v1')
    a('v_lshl_add_u32 v6, v7, 4, v6')
    a('v_lshl_add_u32 v8, v7, 4, v8')
    a('s_lshl_b32 s62, s4, 17')
    a('s_lshl_b32 s63, s13, 11')
    a('s_add_u32 s62, s62, s63')
    a('s_lshl_b32 s63, s14, 21')
    a('s_add_u32 s62, s62, s63')
    a(f's_add_u32 s62, s62, {WS_KV}')
    a('s_lshl_b32 s63, s5, 7')
    a('s_add_u32 s62, s62, s63')
    a('s_add_u32 s63, s62, 0x10000')
    a('s_lshl_b32 s64, s12, 19')
    a('s_lshl_b32 s65, s5, 15')
    a('s_add_u32 s64, s64, s65')
    a('s_lshl_b32 s65, s4, 7')
    a('s_add_u32 s64, s64, s65')
    a('s_add_u32 s65, s64, 16384')
    a('s_sub_u32 s77, s64, 6144')
    a('s_cselect_b32 s77, 0x40000000, s77')
    a('s_lshl_b32 s79, s4, 9')
    a('v_lshlrev_b32 v9, 4, v10')
    a('s_lshl_b32 s67, s15, 12')
    a('s_lshl_b32 s70, s15, 1')
    a('s_and_b32 s70, s70, 0xfffffffc')
    a('s_lshl_b32 s68, s3, 4')
    a('s_lshl_b32 s69, s12, 1')
    a('s_add_u32 s68, s68, s69')
    a('s_lshl_b32 s69, s68, 11')
    a('s_mul_i32 s66, s12, 4608')
    a(f's_add_u32 s66, s66, {L_P0}')
    a(f's_mov_b32 s6, {WS_EPOCH}')
    a('s_mov_b32 m0, s66')
    a('s_waitcnt lgkmcnt(0)')
    stamp('karg')
    if WSOFF:
        a(f's_add_u32 s{S_WS}, s{S_WS}, {WSOFF}')
        a(f's_addc_u32 s{S_WS + 1}, s{S_WS + 1}, 0')
    a(f's_load_dword s8, s[{S_WS}:{S_WS + 1}], s6')
    a('s_load_dword s9, s[10:11], s70')
    KR, VR, SKR = 16, 28, 36

    GL = 96
    a('s_cmp_eq_u32 s14, 0')
    a('s_cbranch_scc1 ld_kv')
    a(f's_add_u32 s{S_H}, s{S_H}, s67')
    a(f's_addc_u32 s{S_H + 1}, s{S_H + 1}, 0')
    a('s_barrier')
    for i in range(4):
        a(f'buffer_load_dwordx4 v[{GL + 6 * i}:{GL + 6 * i + 3}], v2, s[{S_H}:{S_H + 3}], 0 offen offset:{1024 * i} nt')
    if opt('hipos', 0):
        a(f's_waitcnt vmcnt({4 - opt("hipos", 0)})')
    a('ld_kv:')
    a(f'buffer_load_dwordx4 v[{SKR}:{SKR + 3}], v9, s[{S_SK}:{S_SK + 3}], s79 offen')
    a('s_mov_b64 exec, 0xffffff')
    a(f'buffer_load_dwordx4 v8, s[{S_K}:{S_K + 3}], s77 offen nt lds')
    a('s_mov_b64 exec, -1')
    for (sr, so, lo) in ((S_K, 64, 384), (S_K, 65, 1408), (S_V, 64, 2432), (S_V, 65, 3456)):
        a(f's_add_u32 m0, s66, {lo}')
        a(f'buffer_load_dwordx4 v8, s[{sr}:{sr + 3}], s{so} offen nt lds')
    a('s_cmp_eq_u32 s14, 0')
    a('s_cbranch_scc0 ld_done')
    a('s_barrier')
    a('ld_done:')
    a(f's_mul_i32 s67, s13, {CS}')
    a('s_mov_b32 s74, 0x05040100')
    a('s_mov_b32 s75, 0x07060302')
    a('v_lshlrev_b32 v92, 10, v11')
    a('v_lshl_add_u32 v92, v10, 2, v92')
    a('v_add_u32 v92, s66, v92')
    a('v_add_u32 v93, 1024, v92')
    a('v_add_u32 v94, 2432, v92')
    a('v_lshrrev_b32 v8, 1, v10')
    a('v_mul_u32_u24 v8, 144, v8')
    a('v_and_b32 v9, 1, v10')
    a('v_lshl_add_u32 v8, v9, 6, v8')
    a('v_sub_u32 v9, 1, v11')
    a('v_lshl_add_u32 v8, v9, 4, v8')
    a('v_add_u32 v8, s66, v8')
    a('v_lshrrev_b32 v9, 3, v1')
    a('v_mul_u32_u24 v9, 144, v9')
    a('v_lshl_add_u32 v9, v7, 4, v9')
    a('v_add_u32 v9, s66, v9')
    a('v_add_u32 v160, s67, v2')
    a('v_and_b32 v161, 3, v1')
    a(f'v_mul_u32_u24 v161, {GS}, v161')
    a('v_bfe_u32 v162, v1, 2, 2')
    a('v_lshl_add_u32 v161, v162, 3, v161')
    a('v_lshl_add_u32 v161, v5, 4, v161')
    a('v_add_u32 v161, s67, v161')
    a(f's_add_u32 s60, s67, {UOFF + 480}')
    a('v_lshlrev_b32 v163, 5, v4')
    a('v_sub_u32 v162, s60, v163')
    a('v_lshl_add_u32 v162, v5, 4, v162')
    a('v_lshl_add_u32 v163, v5, 3, v163')
    a('s_lshl_b32 s60, s13, 12')
    a(f's_add_u32 s60, s60, {L_YL}')
    a('v_add_u32 v163, s60, v163')
    a('v_bfe_u32 v165, v1, 1, 2')
    a(f'v_mul_u32_u24 v165, {CS}, v165')
    a('v_and_b32 v166, 1, v1')
    a('v_lshl_add_u32 v165, v166, 4, v165')
    a('v_lshrrev_b32 v166, 3, v1')
    a('v_lshlrev_b32 v166, 5, v166')
    a('v_sub_u32 v165, v165, v166')
    a('s_lshl_b32 s60, s12, 9')
    a(f's_sub_u32 s60, {UOFF + 4064 - 256}, s60')
    a('v_add_u32 v165, s60, v165')
    a('s_lshl_b32 s78, s2, 13')
    a('s_lshl_b32 s60, s13, 11')
    a('s_add_u32 s78, s78, s60')
    a('s_lshl_b32 s60, s14, 21')
    a('s_add_u32 s78, s78, s60')
    a(f's_add_u32 s78, s78, {WS_KV}')
    a('v_lshl_add_u32 v166, v5, 3, v4')
    a('v_sub_u32 v166, 15, v166')
    a('v_and_b32 v167, 1, v166')
    a('v_lshlrev_b32 v167, 4, v167')
    a('v_ashrrev_i32 v166, 1, v166')
    a(f'v_mul_u32_u24 v150, {GS}, v1')
    a('v_add_u32 v150, s67, v150')
    a('v_lshlrev_b32 v152, 7, v4')
    a('v_bfe_u32 v248, v1, 3, 2')
    a('v_lshlrev_b32 v248, 13, v248')
    a('v_lshl_add_u32 v248, v7, 7, v248')
    a('v_lshlrev_b32 v251, 4, v0')
    a(f'v_lshrrev_b32 v{VG8}, 3, v0')
    a(f'v_lshlrev_b32 v{VG8}, 3, v{VG8}')
    a(f'v_mul_u32_u24 v{VXA}, {2 * RS}, v7')
    a(f'v_add_u32 v{VXA}, v{VXA}, v{VG8}')
    a(f'v_add_u32 v{VXA}, {L_YT}, v{VXA}')
    a(f'v_add_u32 v{VWA}, {L_W}, v{VG8}')
    a(f'v_lshlrev_b32 v{VSA}, 5, v7')
    a(f'v_add_u32 v{VSA}, {L_ST}, v{VSA}')
    a(f'v_bfe_u32 v{VKL}, v1, 3, 1')
    a(f'v_lshl_add_u32 v{VKL}, v7, 1, v{VKL}')
    a(f'v_mul_u32_u24 v{VPR}, {PS}, v{VKL}')
    a(f'v_lshl_add_u32 v{VPR}, v5, 6, v{VPR}')
    a(f'v_lshl_add_u32 v{VPW}, v7, 1, v11')
    a(f'v_mul_u32_u24 v{VPW}, {PS}, v{VPW}')
    a('v_and_b32 v3, 1, v5')
    a(f'v_lshl_add_u32 v{VPW}, v3, 4, v{VPW}')
    a('s_lshl_b32 s60, s12, 5')
    a(f'v_add_u32 v{VPW}, s60, v{VPW}')
    a('s_lshl_b32 s60, s3, 4')
    a('s_sub_u32 s60, 2047, s60')
    a(f'v_sub_u32 v{VKL}, s60, v{VKL}')
    a(f's_mul_i32 s60, s12, {2 * RS}')
    a(f's_add_u32 s60, s60, {L_YT}')
    a(f'v_add_u32 v{VRA}, s60, v2')
    a(f'v_lshrrev_b32 v{VBIT}, 3, v1')
    a(f'v_lshlrev_b32 v{VBIT}, v{VBIT}, 1')
    a('v_and_b32 v253, 255, v0')
    a('v_lshlrev_b32 v253, 3, v253')
    a('s_mov_b64 exec, 0xf')
    a('ds_write_b128 v150, v[144:147]')
    a('s_mov_b64 exec, 0x3fffffff')
    a(f'ds_write_b128 v160, v[144:147] offset:{UOFF + 4096}')
    a('s_mov_b64 exec, -1')
    WFp, KF, O, PKD = 40, 48, 70, 86
    a('s_waitcnt lgkmcnt(0)')
    a('s_add_u32 s8, s8, 0x9e3779b9')
    a('s_or_b32 s8, s8, 1')
    a('s_and_b32 s61, s15, 1')
    a('s_lshl_b32 s61, s61, 4')
    a('s_lshr_b32 s9, s9, s61')
    a('s_and_b32 s9, s9, 0xffff')
    a('v_lshlrev_b32 v167, v167, s9')
    for r in range(4):
        a(f'v_cmp_eq_u32 vcc, {r}, v166')
        a(f'v_cndmask_b32 v{168 + r}, 0, v167, vcc')
    a('s_lshl_b32 s64, s4, 11')
    a(f's_add_u32 s64, s64, {WS_FA}')
    a('s_lshl_b32 s65, s2, 7')
    a(f's_add_u32 s7, s65, {WS_FB}')
    a(f's_add_u32 s65, s65, {WS_FA}')
    a('v_mov_b32 v13, s8')
    a('v_mov_b32 v14, 0')
    a(f's_add_u32 s10, s65, {WS_FA2 - WS_FA}')
    a('s_cmp_eq_u32 s12, 0')
    a('s_cselect_b32 s60, s10, 0x40000000')
    a('s_mov_b64 exec, 0xff')
    a(f'buffer_store_dwordx4 v[144:147], v2, {WSR}, s60 offen')
    a('s_mov_b64 exec, -1')
    XV = 1
    a('s_lshl_b32 s60, s12, 2')
    a('s_add_u32 s64, s64, s60')
    a('s_add_u32 s65, s65, s60')
    a('s_add_u32 s10, s10, s60')
    a(f's_add_u32 s11, s64, {WS_FA2 - WS_FA}')
    if DYN:
        a('s_memrealtime s[4:5]')
    a('s_cmp_eq_u32 s14, 0')
    a('s_cbranch_scc1 p0')
    LATER = 6 + XV
    a(f's_waitcnt vmcnt({LATER + 3})')
    a(f'v_readlane_b32 s76, v{GL}, 0')
    a(f'v_readlane_b32 s77, v{GL + 1}, 0')
    a('s_lshl_b32 s70, s76, 16')
    a('s_lshr_b32 s61, s76, 16')
    a('s_lshl_b32 s71, s77, 16')
    a('s_or_b32 s61, s61, s71')
    a('v_writelane_b32 v149, s70, 0')
    a('v_writelane_b32 v149, s76, 1')
    a('v_writelane_b32 v149, s61, 2')
    a('v_writelane_b32 v149, s77, 3')
    a('v_writelane_b32 v148, s70, 2')
    a('v_writelane_b32 v148, s76, 3')
    a('s_mov_b64 exec, 0xf')
    a('ds_write_b128 v150, v[146:149] offset:16')
    a('s_mov_b64 exec, -1')
    for i in range(4):
        w = GL + 6 * i
        a(f'v_mov_b32_dpp v{w + 4}, v{w} wave_shl:1 row_mask:0xf bank_mask:0xf bound_ctrl:0')
        a(f'v_mov_b32_dpp v{w + 5}, v{w + 1} wave_shl:1 row_mask:0xf bank_mask:0xf bound_ctrl:0')
        if i < 3:
            a(f's_waitcnt vmcnt({LATER + 2 - i})')
            a(f'v_readlane_b32 s70, v{w + 6}, 0')
            a(f'v_readlane_b32 s71, v{w + 7}, 0')
            a(f'v_writelane_b32 v{w + 4}, s70, 63')
            a(f'v_writelane_b32 v{w + 5}, s71, 63')
        ta, tb, tc = 176 + 12 * i, 180 + 12 * i, 184 + 12 * i
        a(f'ds_write_b128 v160, v[{w + 2}:{w + 5}] offset:{32 + 1024 * i + 3 * GS}')
        for j in range(4):
            a(f'v_alignbit_b32 v{ta + j}, v{w + j + 1}, v{w + j}, 16')
        a(f'ds_write_b128 v160, v[{ta}:{ta + 3}] offset:{32 + 1024 * i + 0 * GS}')
        for j in range(4):
            a(f'v_alignbit_b32 v{tb + j}, v{w + j + 2}, v{w + j + 1}, 16')
        a(f'ds_write_b128 v160, v[{tb}:{tb + 3}] offset:{32 + 1024 * i + 2 * GS}')
        for j in range(4):
            a(f'v_mov_b32 v{tc + j}, v{w + j + 1}')
        a(f'ds_write_b128 v160, v[{tc}:{tc + 3}] offset:{32 + 1024 * i + 1 * GS}')
    lds_inc(20)
    a('s_waitcnt lgkmcnt(0)')
    stamp('gdone')
    a('p0:')
    a(f's_waitcnt vmcnt({5 + XV})')
    for jj in range(2):
        unpack(WFp + 0 + jj, WFp + 2 + jj, SKR + 2 * jj)
        unpack(WFp + 4 + jj, WFp + 6 + jj, SKR + 2 * jj + 1)
    a(f's_waitcnt vmcnt({2 + XV})')
    stamp('kdata')
    for r in range(0, 8, 2):
        a(f'ds_read2_b32 v[{KR + r}:{KR + r + 1}], v92 offset0:{32 * r} offset1:{32 * r + 32}')
    a(f'ds_read2_b32 v[{KR + 8}:{KR + 9}], v93 offset0:0 offset1:32')
    a(f'ds_read_b32 v{KR + 10}, v93 offset:256')
    a(f's_waitcnt vmcnt({0 + XV})')
    for r in range(0, 8, 2):
        a(f'ds_read2_b32 v[{VR + r}:{VR + r + 1}], v94 offset0:{32 * r} offset1:{32 * r + 32}')
    for r in range(11):
        if r % 2 == 0:
            a(f's_waitcnt lgkmcnt({9 - r // 2})')
        unpack(KF + 2 * r, KF + 2 * r + 1, KR + r)
    for t in range(4):
        tap = 3 - t
        for r in range(8):
            if t == 0:
                pk('mul', O + 2 * r, KF + 2 * (r + t), WFp + 2 * tap)
            else:
                pk('fma', O + 2 * r, KF + 2 * (r + t), WFp + 2 * tap, O + 2 * r)
    a('s_waitcnt lgkmcnt(0)')
    for r in range(8):
        unpack(KF + 2 * r, KF + 2 * r + 1, VR + r)
    for r in range(8):
        pk('mul', O + 2 * r, O + 2 * r, KF + 2 * r)
    for jj in range(2):
        d = PKD + 2 + 4 * jj
        for m in range(4):
            a(f'v_cvt_pk_bf16_f32 v{d + m}, v{O + 2 * (7 - 2 * m) + jj}, v{O + 2 * (6 - 2 * m) + jj}')
        a(f'ds_write_b128 v8, v[{d}:{d + 3}] offset:{32 * jj}')
    a('s_waitcnt lgkmcnt(0)')
    a('ds_read_b128 v[16:19], v9')
    a(f'ds_read_b128 v[20:23], v9 offset:{8 * 144}')
    a('s_waitcnt lgkmcnt(1)')
    a(f'buffer_store_dwordx4 v[16:19], v6, {KVR}, s62 offen sc1')
    a('s_waitcnt lgkmcnt(0)')
    a(f'buffer_store_dwordx4 v[20:23], v6, {KVR}, s63 offen sc1')
    stamp('kvst')
    UP = 120
    a('s_waitcnt vmcnt(0)')
    stamp('kvack')
    a('s_mov_b64 exec, 1')
    a(f'buffer_store_dword v13, v14, {WSR}, s10 offen')
    a(f'buffer_store_dword v13, v14, {WSR}, s65 offen sc1')
    a('s_mov_b64 exec, 0xffff')
    a('s_mov_b32 s61, 0')
    a('fa2_again:')
    a(f'buffer_load_dword v153, v152, {WSR}, s11 offen sc1')
    a('s_add_u32 s61, s61, 1')
    a('s_waitcnt vmcnt(0)')
    a('v_cmp_ne_u32 vcc, s8, v153')
    a('s_cbranch_vccz fa_ok')
    a('s_mov_b64 exec, vcc')
    if opt('fa2sleep', 0):
        a(f's_sleep {opt("fa2sleep", 0)}')
    a(f's_cmp_lt_u32 s61, {DUAL}')
    a('s_cbranch_scc1 fa2_again')
    retry_loop('fa', [f'buffer_load_dword v153, v152, {WSR}, s64 offen sc1'], lambda: a('v_cmp_ne_u32 vcc, s8, v153'), sleep=opt('fasleep', 1))
    stamp('faok')
    for q in range(2):
        a(f'buffer_load_dwordx4 v[{UP + 4 * q}:{UP + 4 * q + 3}], v2, {KVR}, s78 offen offset:{1024 * q}{KVL}')
    a('s_cmp_eq_u32 s14, 0')
    a('s_cbranch_scc0 helper')

    ACC = 16
    FA_ = [48, 196]
    FB_ = [80, 112]

    def readsA(s, c):
        out = []
        for j in range(8):
            out.append(f'ds_read_b64 v[{s + 4 * j}:{s + 4 * j + 1}], v161 offset:{64 * (8 * j + c)}')
            out.append(f'ds_read_b64 v[{s + 4 * j + 2}:{s + 4 * j + 3}], v161 offset:{64 * (8 * j + c) + 8}')
        return out

    def readsB(s, c):
        return [f'ds_read_b128 v[{s + 4 * z}:{s + 4 * z + 3}], v162 offset:{64 * (56 - (8 * z - c))}' for z in range(8)]

    def y_fill():
        a('v_bfe_u32 v182, v0, 3, 5')
        a('v_lshlrev_b32 v182, 15, v182')
        a('v_lshl_add_u32 v182, v7, 4, v182')
        a('s_lshl_b32 s62, s2, 7')
        for q in range(4):
            a(f'buffer_store_dwordx4 v[240:243], v182, {XBR}, s62 offen sc1')
            if q < 3:
                a('s_add_u32 s62, s62, 0x100000')

    lds_spin('g4', 20, 4, 153)
    for r in readsA(FA_[0], 0):
        a(r)
    for q in range(2):
        a(f's_waitcnt vmcnt({1 - q})')
        a(f'ds_write_b128 v165, v[{UP + 4 * q}:{UP + 4 * q + 3}] offset:{256 - 256 * q}')
    lds_inc(12)
    stamp('u0')
    if FILLBY == 1 and opt('fst', -1) < 0:
        y_fill()
    lds_spin('u4', 12, 4, 153)
    stamp('mf0')
    for r in readsB(FB_[0], 0)[:4]:
        a(r)

    def mfma(w, A, B, init=False):
        c = '0' if init else f'v[{ACC + 4 * w}:{ACC + 4 * w + 3}]'
        a(f'v_mfma_f32_16x16x32_bf16 v[{ACC + 4 * w}:{ACC + 4 * w + 3}], v[{A}:{A + 3}], v[{B}:{B + 3}], {c}')

    def ystage(w):
        E = 172 + 2 * (w & 3)
        return [f'v_cvt_pk_bf16_f32 v{E}, v{ACC + 4 * w}, v{ACC + 4 * w + 1}',
                f'v_cvt_pk_bf16_f32 v{E + 1}, v{ACC + 4 * w + 2}, v{ACC + 4 * w + 3}',
                f'ds_write_b64 v163, v[{E}:{E + 1}] offset:{512 * w}']

    gsetup = ['v_lshlrev_b32 v180, 2, v0', f'v_add_u32 v180, {L_YL}, v180', 'v_add_u32 v181, 0x2000, v180',
              'v_lshrrev_b32 v182, 3, v0', 'v_lshlrev_b32 v182, 15, v182', 'v_lshl_add_u32 v182, v7, 4, v182',
              's_lshl_b32 s62, s2, 7', 's_add_u32 s63, s62, 0x100000', 's_add_u32 s64, s62, 0x200000', 's_add_u32 s65, s62, 0x300000',
              's_lshl_b32 s6, s12, 10', f's_add_u32 s6, s6, {WS_FB}',
              's_bitcmp0_b32 s2, 0', 's_cselect_b32 s66, s69, 0x40000000', 's_cselect_b32 s70, 0, 0x40000000', 's_cselect_b32 s71, s6, 0x40000000']
    WR2 = 152

    def gather(p0_, sregs, GR, GP):
        rd, out = [], []
        for ch in range(4):
            base = 180 + (ch >> 1)
            rd.append(f'ds_read2st64_b32 v[{GR + 2 * ch}:{GR + 2 * ch + 1}], v{base} offset0:{16 * (ch & 1) + 4 * p0_} offset1:{16 * (ch & 1) + 4 * p0_ + 4}')
        for p in range(2):
            g = GP + 4 * p
            out.append(f'v_perm_b32 v{g}, v{GR + 2 + p}, v{GR + p}, s74')
            out.append(f'v_perm_b32 v{g + 1}, v{GR + 6 + p}, v{GR + 4 + p}, s74')
            out.append(f'v_perm_b32 v{g + 2}, v{GR + 2 + p}, v{GR + p}, s75')
            out.append(f'v_perm_b32 v{g + 3}, v{GR + 6 + p}, v{GR + 4 + p}, s75')
            out.append(f'buffer_store_dwordx4 v[{g}:{g + 3}], v182, {XBR}, s{sregs[p]} offen sc1')
        return rd, out

    fbload = f'buffer_load_dword v249, v248, {WSR}, s6 offen sc1'
    PY = YR[0]
    YM = 16

    GM = 48

    def y_setup():
        for p in range(4):
            a(f's_mov_b64 s[{YM + 2 * p}:{YM + 2 * p + 1}], -1')
            a(f'v_mov_b32 v{PY + 4 * p}, -1')
        a('s_lshl_b32 s24, s3, 15')
        for p in range(1, 4):
            a(f's_add_u32 s{24 + p}, s24, {8192 * p}')
        a('s_mov_b64 s[0:1], -1')

    def fb_check():
        lab = a.newlabel('fbk')
        a('s_cmp_eq_u32 s0, 0')
        a(f's_cbranch_scc1 {lab}')
        a('v_cmp_ne_u32 s[0:1], s8, v249')
        for p in range(4):
            a(f's_lshr_b32 s9, s0, {8 * p}')
            a(f'v_and_b32 v250, s9, v{VBIT}')
            a(f'v_cmp_eq_u32 s[{GM + 2 * p}:{GM + 2 * p + 1}], 0, v250')
        a(f'{lab}:')

    def y_issue():
        lab = a.newlabel('yf')
        a('s_mov_b32 exec_lo, s0')
        a('s_mov_b32 exec_hi, 0')
        a(f's_cbranch_execz {lab}')
        a(fbload)
        a(f'{lab}:')
        for p in range(4):
            lab = a.newlabel('yi')
            a(f's_and_b64 exec, s[{YM + 2 * p}:{YM + 2 * p + 1}], s[{GM + 2 * p}:{GM + 2 * p + 1}]')
            a(f's_cbranch_execz {lab}')
            a(f'buffer_load_dwordx4 v[{PY + 4 * p}:{PY + 4 * p + 3}], v251, {XBR}, s{24 + p} offen sc1')
            a(f'{lab}:')
        a('s_mov_b64 exec, -1')

    def y_check():
        a('s_waitcnt vmcnt(0)')
        fb_check()
        for p in range(4):
            a(f'v_max3_u32 v250, v{PY + 4 * p}, v{PY + 4 * p + 1}, v{PY + 4 * p + 2}')
            a(f'v_max_u32 v250, v250, v{PY + 4 * p + 3}')
            a(f'v_cmp_eq_u32 s[{YM + 2 * p}:{YM + 2 * p + 1}], -1, v250')
        a(f's_or_b64 s[28:29], s[{YM}:{YM + 1}], s[{YM + 2}:{YM + 3}]')
        a(f's_or_b64 s[30:31], s[{YM + 4}:{YM + 5}], s[{YM + 6}:{YM + 7}]')
        a('s_or_b64 s[28:29], s[28:29], s[30:31]')

    AC = [116, 122]
    ST = [128, 132]
    TY = 68

    def prep_a():
        lds_spin(a.newlabel('xr'), 28, 4, 3)
        RX, RW = 76, 92
        for r in range(2):
            for p in range(4):
                a(f'ds_read_b64 v[{RX + 8 * r + 2 * p}:{RX + 8 * r + 2 * p + 1}], v{VXA} offset:{512 * p + RS * r}')
        for p in range(4):
            a(f'ds_read_b64 v[{RW + 2 * p}:{RW + 2 * p + 1}], v{VWA} offset:{512 * p}')
        for i in range(0, 12, 2):
            a(f'v_mov_b64 v[{AC[0] + i}:{AC[0] + i + 1}], 0')
        a('s_mov_b32 s72, 0')
        for r in range(2):
            a(f's_waitcnt lgkmcnt({8 - 4 * r})')
            for i in range(8):
                unpack(XP[r] + 2 * i, XP[r] + 2 * i + 1, RX + 8 * r + i)
        a('s_waitcnt lgkmcnt(0)')
        for i in range(8):
            unpack(WF + 2 * i, WF + 2 * i + 1, RW + i)

    def prep_b():
        lds_spin(a.newlabel('xs'), 28, 8, 3)
        for r in range(2):
            a(f'ds_read_b128 v[{ST[r]}:{ST[r] + 3}], v{VSA} offset:{16 * r}')
        a(f'ds_read_b32 v3, v{VC} offset:{L_SW - L_CNT}')
        for r in range(2):
            a(f's_waitcnt lgkmcnt({2 - r})')
            for i in range(8):
                pk('fma', N[r] + 2 * i, XP[r] + 2 * i, ST[r] + 2, ST[r])
        a('s_waitcnt lgkmcnt(0)')
        a('v_readfirstlane_b32 s71, v3')
        stamp('lnx')

    def y_fold():
        for p in range(4):
            lab = a.newlabel('yd')
            a(f's_bitcmp1_b32 s72, {p}')
            a(f's_cbranch_scc1 {lab}')
            a(f's_cmp_eq_u64 s[{YM + 2 * p}:{YM + 2 * p + 1}], 0')
            a(f's_cbranch_scc0 {lab}')
            a(f's_bitset1_b32 s72, {p}')
            for i in range(4):
                unpack(TY + 2 * i, TY + 2 * i + 1, PY + 4 * p + i)
            for i in range(4):
                e = XP[i >> 1] + 4 * p + 2 * (i & 1)
                pk('fma', e, TY + 2 * i, N[i >> 1] + 4 * p + 2 * (i & 1), e)
            for k in range(2):
                for r in range(2):
                    e = XP[r] + 4 * p + 2 * k
                    pk('add', AC[r], AC[r], e)
                    pk('fma', AC[r] + 2, e, e, AC[r] + 2)
                    pk('fma', AC[r] + 4, e, WF + 4 * p + 2 * k, AC[r] + 4)
            a(f'{lab}:')

    def spread(pairs):
        out, left = [], list(pairs)
        while left:
            cnt = {}
            for q in left:
                cnt[q[0]] = cnt.get(q[0], 0) + 1
            recent = [q[0] for q in out[-2:]]
            cand = [q for q in left if q[0] not in recent] or [q for q in left if q[0] != recent[-1]] or left
            mx = max(cnt[q[0]] for q in cand)
            pick = cand[0] if 2 * mx <= len(left) - 1 else [q for q in cand if cnt[q[0]] == mx][0]
            out.append(pick)
            left.remove(pick)
        return out

    def stage_reads(st):
        sa, sb = FA_[st & 1], FB_[st & 1]
        if st < 8:
            return readsB(sb, st)[:4] + readsA(sa, st)
        out = []
        for hf in range(2):
            c = 2 * (st - 8) + hf
            out += readsB(sb + 16 * hf - 16, c)[4:] + readsA(sa + 16 * hf, c)[:8]
        return out

    NST = 12
    for st in range(NST):
        sa, sb = FA_[st & 1], FB_[st & 1]
        a('s_waitcnt lgkmcnt(0)')
        if st == 7:
            a('v_readfirstlane_b32 s60, v164')
            a('s_cmp_ge_u32 s60, 4')
            a('s_cbranch_scc1 uhi_go')
            lds_spin('uhi', 0, 4, 164)
            stamp('uhi')
        if st == FLC and FILLBY:
            a('s_waitcnt vmcnt(0)')
            a('s_mov_b64 exec, 1')
            a(f'ds_add_rtn_u32 v12, v{VC}, v{V1} offset:4')
            a(f'ds_add_u32 v{VC}, v{V1} offset:8')
            a('s_mov_b64 exec, -1')
            stamp('fillB')
        if st == FLC + 1 and FILLBY:
            a('s_mov_b64 exec, 1')
            a('v_cmp_eq_u32 vcc, 3, v12')
            a('v_cndmask_b32 v14, -16, v14, vcc')
            a(f'buffer_store_dword v13, v14, {WSR}, s7 offen sc1')
            a('s_mov_b64 exec, -1')
        fill = stage_reads(st + 1) if st + 1 < NST else []
        if st == 6:
            fill = fill + [f'ds_read_b32 v164, v{VC} offset:0']
        if st == FBC:
            fill = [f'ds_write_b32 v{VC}, v{V1} offset:24'] + fill
        if st == opt('fbc2', 10):
            fill = [fbload.replace('s6 ', 's71 ')] + fill
        if st == opt('fst', -1):
            assert st >= 1
            fill = [f'buffer_store_dwordx4 v[240:243], v182, {XBR}, s{62 + q} offen sc1' for q in range(4)] + fill
        if st == 0:
            fill = fill + gsetup[:12]
        if st == 1:
            for l in gsetup[12:]:
                a(l)
        if st in (8, 9):
            for w in (2 * (st - 8), 2 * (st - 8) + 1):
                fill = fill + ystage(w)
        if st < 8:
            pairs = [(n + z, sa + 4 * n, sb + 4 * z) for n in range(8) for z in range(min(4, 8 - n))]
            if st == 0:
                pairs = [(z, 168, sb + 4 * z) for z in range(4)] + pairs
        else:
            pairs = []
            for hf in range(2):
                pairs += [(n + z, sa + 16 * hf + 4 * n, sb + 16 * hf + 4 * (z - 4)) for n in range(4) for z in range(4, 8 - n)]
            if st == 8:
                pairs = [(z, 168, sb + 4 * (z - 4)) for z in range(4, 8)] + pairs
        order = spread(pairs)
        seen = set() if st == 0 else set(range(8))
        last = {q[0]: i for i, q in enumerate(order)}
        pend = []
        nper = -(-len(fill) // (len(order) - (4 if st >= 7 else 0)))
        for i, (w, A, B) in enumerate(order):
            mfma(w, A, B, w not in seen)
            seen.add(w)
            for _ in range(nper):
                if fill:
                    a(fill.pop(0))
            if st == NST - 1:
                if last[w] == i:
                    pend.append([w, 0])
                for q in pend:
                    q[1] += 1
                if pend and pend[0][1] > 3:
                    for l in ystage(pend.pop(0)[0]):
                        a(l)
        assert not fill
    for w0, _ in pend:
        for l in ystage(w0):
            a(l)
    stamp('s1end')
    if opt('cprio', 1):
        a('s_setprio 2')
    lds_inc(8)
    lds_spin('c2', 8, 8, 166)
    (r0, o0), (r1, o1) = gather(0, (62, 63), 184, 196), gather(2, (64, 65), 164, 204)
    for l in r0 + r1 + ['s_waitcnt lgkmcnt(4)'] + o0 + ['s_waitcnt lgkmcnt(0)'] + o1:
        a(l)
    stamp('yst')
    if opt('cprio', 1):
        a('s_setprio 0')
    lds_inc(8)
    a('s_bitcmp0_b32 s2, 0')
    a('s_cbranch_scc0 conv_ffn')
    a('s_waitcnt vmcnt(4)')
    y_setup()
    fb_check()
    y_issue()
    prep_a()
    prep_b()
    a('s_branch rows')

    a('helper:')
    for q in range(2):
        a(f's_waitcnt vmcnt({1 - q})')
        a(f'ds_write_b128 v165, v[{UP + 4 * q}:{UP + 4 * q + 3}] offset:{256 - 256 * q}')
    lds_inc(0)
    stamp('u0')
    a('v_and_b32 v200, 255, v0')
    if FILLBY == 0:
        lds_spin('uw', UWOFF, 4, 28)
        y_fill()

    def fb_publish():
        if FILLBY:
            return
        a('s_mov_b64 exec, 1')
        a(f'ds_add_rtn_u32 v12, v{VC}, v{V1} offset:4')
        a(f'ds_add_u32 v{VC}, v{V1} offset:8')
        a('s_waitcnt lgkmcnt(0)')
        a('v_cmp_eq_u32 vcc, 3, v12')
        a('v_cndmask_b32 v14, -16, v14, vcc')
        a(f'buffer_store_dword v13, v14, {WSR}, s7 offen sc1')
        a('s_mov_b64 exec, -1')
        stamp('fillB')
    if FILLBY:
        lds_spin('uw', UWOFF, 4, 28)
    for r in range(4):
        a(f'v_mov_b32 v{24 + r}, -1')
    a('v_lshlrev_b32 v29, 4, v200')
    a('s_lshl_b32 s61, s3, 12')
    a('s_bitcmp0_b32 s2, 0')
    a('s_cbranch_scc0 helper_ffn')
    a(f's_add_u32 s62, s61, {WS_CAND}')
    a(f's_add_u32 s63, s61, {WS_PART}')
    a(f's_add_u32 s79, s61, {WS_GX}')
    DW = 156
    a('s_lshl_b32 s78, s3, 16')
    dl = []
    for r in range(32):
        dl.append([f'buffer_load_dwordx2 v[{DW + 2 * r}:{DW + 2 * r + 1}], v253, s[{S_D}:{S_D + 3}], s78 offen offset:{(r & 1) * 2048} nt']
                  + (['s_add_u32 s78, s78, 4096'] if r & 1 else []))
    XH, WH = 68, 100
    stamp('xiss')
    a('s_lshl_b32 s60, s3, 15')
    a('s_lshl_b32 s61, s13, 13')
    a('s_add_u32 s60, s60, s61')
    a('s_add_u32 s61, s60, 4096')
    for i in range(8):
        a(f'buffer_load_dwordx4 v[{XH + 4 * i}:{XH + 4 * i + 3}], v2, s[{S_Q}:{S_Q + 3}], s{60 + (i >> 2)} offen offset:{1024 * (i & 3)} nt')
    for i in range(2):
        a(f'buffer_load_dwordx4 v[{WH + 4 * i}:{WH + 4 * i + 3}], v2, s[{S_WR}:{S_WR + 3}], 0 offen offset:{1024 * i}')
    if not FILLBY:
        a('s_waitcnt vmcnt(10)')
        fb_publish()
    a(f'buffer_store_dwordx4 v[24:27], v29, {WSR}, s62 offen sc1')
    a(f'buffer_store_dwordx4 v[24:27], v29, {WSR}, s63 offen sc1')
    a(f'buffer_store_dwordx4 v[24:27], v29, {WSR}, s79 offen sc1')
    NL = 3 + (0 if FILLBY else 1)
    a(f's_mul_i32 s60, s13, {4 * RS}')
    a(f's_add_u32 s60, s60, {L_YT}')
    a('v_add_u32 v30, s60, v2')
    a(f'v_add_u32 v31, {L_W}, v2')
    a('v_and_b32 v32, 1, v5')
    a('v_lshl_add_u32 v32, v32, 1, v11')
    a('v_lshlrev_b32 v32, 4, v32')
    a('s_lshl_b32 s60, s13, 6')
    a(f's_add_u32 s60, s60, {L_ST}')
    a('v_add_u32 v32, s60, v32')
    a('s_mov_b32 s72, 0x3f803f80')
    a('s_mov_b32 s73, 0x3a800000')
    a('s_lshl_b32 s6, s12, 10')
    a(f's_add_u32 s6, s6, {WS_FB}')
    y_setup()
    lds_spin('cp0', 12, 4, 28)
    for r in range(4):
        a(f's_waitcnt vmcnt({NL + 2 + 6 - 2 * r})')
        for hf in range(2):
            a(f'ds_write_b128 v30, v[{XH + 8 * r + 4 * hf}:{XH + 8 * r + 4 * hf + 3}] offset:{RS * r + 1024 * hf}')
    a(f's_waitcnt vmcnt({NL})')
    for hf in range(2):
        a(f'ds_write_b128 v31, v[{WH + 4 * hf}:{WH + 4 * hf + 3}] offset:{1024 * hf}')
    lds_inc(28)
    stamp('xarr')
    lds_spin('late', 24, 1, 3, sleep=LSLEEP)
    a(fbload)
    if DYN:
        a('s_memrealtime s[60:61]')
        a('s_waitcnt lgkmcnt(0)')
        a('s_sub_u32 s60, s60, s4')
        a(f's_cmp_lt_u32 s60, {DYN}')
        a('s_cselect_b32 s5, 1, 0')
        a('s_cbranch_scc1 d_early')
        a('s_waitcnt vmcnt(0)')
        a('s_branch d_early_done')
        a('d_early:')
    for r in range(DEARLY):
        for l in dl[r]:
            a(l)
    stamp('dearly')
    a(f's_waitcnt vmcnt({DEARLY})')
    a('d_early_done:')
    fb_check()
    stamp('fbok')
    S1, S2, SW = 36, 40, 44

    def stats_a():
        for i in range(8):
            for r in range(4):
                x = XH + 8 * r + i
                a(f'v_dot2_f32_bf16 v{S1 + r}, v{x}, s72, {"0" if i == 0 else "v%d" % (S1 + r)}')
                a(f'v_dot2_f32_bf16 v{S2 + r}, v{x}, v{x}, {"0" if i == 0 else "v%d" % (S2 + r)}')
            a(f'v_dot2_f32_bf16 v{SW}, v{WH + i}, s72, {"0" if i == 0 else "v%d" % SW}')
    if opt('stearly', 1):
        lds_spin('mf0', 8, 8, 3)
        stats_a()
    lds_spin('mf', 8, opt('mfcnt', 12), 3)
    y_issue()
    if not opt('stearly', 1):
        stats_a()
    for b in (S1, S2):
        a(f'v_permlane32_swap_b32 v{b}, v{b + 1}')
        a(f'v_permlane32_swap_b32 v{b + 2}, v{b + 3}')
    for b in (S1, S2):
        a(f'v_add_f32 v{b}, v{b}, v{b + 1}')
        a(f'v_add_f32 v{b + 2}, v{b + 2}, v{b + 3}')
    for b in (S1, S2):
        a(f'v_permlane16_swap_b32 v{b}, v{b + 2}')
    for b in (S1, S2):
        a(f'v_add_f32 v{b}, v{b}, v{b + 2}')
    for sh in (1, 2, 4, 8):
        for v in (S1, S2, SW):
            a(f'v_add_f32_dpp v{v}, v{v}, v{v} row_shr:{sh} row_mask:0xf bank_mask:0xf bound_ctrl:0')
    a(f'v_add_f32_dpp v{SW}, v{SW}, v{SW} row_bcast:15 row_mask:0xa bank_mask:0xf')
    a(f'v_mul_f32 v{S1}, s73, v{S1}')
    a(f'v_add_f32_dpp v{SW}, v{SW}, v{SW} row_bcast:31 row_mask:0xc bank_mask:0xf')
    a(f'v_mul_f32 v{S1 + 1}, v{S1}, v{S1}')
    a(f'v_fma_f32 v{S2}, v{S2}, s73, -v{S1 + 1}')
    a(f'v_max_f32 v{S2}, 0, v{S2}')
    rnd(S1, S1)
    rnd(S2, S2)
    a(f'v_add_f32 v{S2}, 0x3727c5ac, v{S2}')
    rnd(S2, S2)
    a(f'v_sqrt_f32 v{S2}, v{S2}')
    rnd(S2, S2)
    a(f'v_rcp_f32 v50, v{S2}')
    a(f'v_rcp_f32 v51, v{S2}')
    a(f'v_mul_f32 v48, -v{S1}, v50')
    a(f'v_mul_f32 v49, -v{S1}, v50')
    a('s_mov_b32 exec_lo, 0x80008000')
    a('s_mov_b32 exec_hi, 0x80008000')
    a('ds_write_b128 v32, v[48:51]')
    a('s_mov_b32 exec_lo, 0')
    a('s_mov_b32 exec_hi, 0x80000000')
    a(f'ds_write_b32 v{VC}, v{SW} offset:{L_SW - L_CNT}')
    lds_inc(28)
    stamp('pre')
    prep_a()
    prep_b()

    a('rows:')
    a('s_mov_b32 s61, 0')
    a('py_top:')
    y_check()
    a('s_cbranch_scc0 py_ok')
    a('s_add_u32 s61, s61, 1')
    a(f's_cmp_ge_u32 s61, {POLL_MAX}')
    a('s_cbranch_scc1 py_give')
    if YSLEEP:
        a(f's_sleep {YSLEEP}')
    y_issue()
    y_fold()
    a('s_branch py_top')
    a('py_give:')
    for p in range(4):
        a(f's_mov_b64 s[{YM + 2 * p}:{YM + 2 * p + 1}], 0')
    a('py_ok:')
    stamp('ypoll')
    y_fold()
    H = XP
    a('s_mov_b32 s73, 0x3a800000')
    Q = TY
    for r in range(2):
        for k in range(3):
            d = Q + k if r == 0 else Q + 4 + k
            a(f'v_add_f32 v{d}, v{AC[r] + 2 * k}, v{AC[r] + 2 * k + 1}')
    for k in range(3):
        a(f'v_permlane32_swap_b32 v{Q + k}, v{Q + 4 + k}')
    for k in range(3):
        a(f'v_add_f32 v{Q + k}, v{Q + k}, v{Q + 4 + k}')
    for k in range(3):
        a(f'v_add_f32_dpp v{Q + k}, v{Q + k}, v{Q + k} row_ror:8 row_mask:0xf bank_mask:0xf')
    a('s_mov_b32 exec_lo, 0x00ff00ff')
    a('s_mov_b32 exec_hi, 0x00ff00ff')
    a(f'ds_write_b128 v{VPW}, v[{Q}:{Q + 3}]')
    a('s_mov_b64 exec, -1')
    a('s_lshl_b32 s60, s3, 7')
    a(f's_add_u32 s60, s60, {WS_KEYS}')
    a('s_cmp_eq_u32 s12, 0')
    a('s_cselect_b32 s60, s60, 0x40000000')
    if opt('prio', 1):
        a('s_cbranch_scc0 no_prio')
        a('s_setprio 3')
        a('no_prio:')
    a('s_waitcnt lgkmcnt(0)')
    a('s_barrier')
    R = 76
    for i in range(4):
        a(f'ds_read_b128 v[{R + 4 * i}:{R + 4 * i + 3}], v{VPR} offset:{16 * i}')
    stamp('bar2')
    A = AC[0]
    a(f'v_mov_b32 v{A + 7}, s8')
    a(f'v_mov_b32 v{A + 5}, 0')
    a('s_waitcnt lgkmcnt(2)')
    pk('add', R, R, R + 4)
    a(f'v_add_f32 v{R + 2}, v{R + 2}, v{R + 6}')
    a('s_waitcnt lgkmcnt(0)')
    pk('add', R + 8, R + 8, R + 12)
    a(f'v_add_f32 v{R + 10}, v{R + 10}, v{R + 14}')
    pk('add', R, R, R + 8)
    a(f'v_add_f32 v{R + 2}, v{R + 2}, v{R + 10}')
    for sw in ('v_permlane32_swap_b32', 'v_permlane16_swap_b32'):
        for k in range(3):
            a(f'v_mov_b32 v{R + 4 + k}, v{R + k}')
        for k in range(3):
            a(f'{sw} v{R + k}, v{R + 4 + k}')
        pk('add', R, R, R + 4)
        a(f'v_add_f32 v{R + 2}, v{R + 2}, v{R + 6}')
    M, V = R + 8, R + 9
    a(f'v_mul_f32 v{R}, s73, v{R}')
    a(f'v_mul_f32 v{R + 3}, v{R}, v{R}')
    a(f'v_fma_f32 v{V}, v{R + 1}, s73, -v{R + 3}')
    rnd(M, R)
    a(f'v_max_f32 v{V}, 0, v{V}')
    rnd(V, V)
    a(f'v_fma_f32 v{R + 2}, -v{M}, s71, v{R + 2}')
    a(f'v_add_f32 v{V}, 0x3727c5ac, v{V}')
    rnd(V, V)
    a(f'v_sqrt_f32 v{V}, v{V}')
    rnd(V, V)
    a(f'v_rcp_f32 v{V}, v{V}')
    a(f'v_mul_f32 v{R + 2}, v{R + 2}, v{V}')
    rnd(R + 2, R + 2)
    a(f'v_ashrrev_i32 v{R + 3}, 31, v{R + 2}')
    a(f'v_and_b32 v{R + 3}, 0x7fff0000, v{R + 3}')
    a(f'v_xor_b32 v{R + 2}, 0x80000000, v{R + 2}')
    a(f'v_xor_b32 v{R + 2}, v{R + 2}, v{R + 3}')
    a(f'v_or_b32 v{A + 6}, v{R + 2}, v{VKL}')
    for sh in (1, 2, 4, 8):
        a(f'v_max_u32_dpp v{A + 6}, v{A + 6}, v{A + 6} row_ror:{sh} row_mask:0xf bank_mask:0xf')
    a('s_mov_b64 exec, 1')
    a(f'buffer_store_dwordx2 v[{A + 6}:{A + 7}], v{A + 5}, {WSR}, s60 offen sc1')
    a('s_mov_b64 exec, -1')
    stamp('key')
    if opt('prio', 1):
        a('s_setprio 0')
    a(f'v_readfirstlane_b32 s76, v{A + 6}')
    DMID = opt('dmid', 0)

    def down_loads(r0, r1):
        r1 = min(r1, 32)
        if r1 <= r0:
            return
        lab = a.newlabel('nodl')
        a('s_cmp_eq_u32 s14, 0')
        a(f's_cbranch_scc1 {lab}')
        for r in range(r0, r1):
            for l in dl[r]:
                a(l)
        a(f'{lab}:')
    if not DYN:
        down_loads(DEARLY, DEARLY + DMID)
    a(f'v_mul_f32 v{M}, -v{M}, v{V}')
    HS = [R + 12, R + 16]
    a(f'v_mov_b32_dpp v{R + 11}, v{V} row_ror:8 row_mask:0xf bank_mask:0xf')
    a(f'v_mov_b32_dpp v{R + 10}, v{M} row_ror:8 row_mask:0xf bank_mask:0xf')
    a('s_mov_b32 vcc_lo, 0xff00ff00')
    a('s_mov_b32 vcc_hi, 0xff00ff00')
    for k in range(4):
        own, oth = M + (k >> 1), R + 10 + (k >> 1)
        a(f'v_cndmask_b32 v{HS[0] + k}, v{own}, v{oth}, vcc')
        a(f'v_cndmask_b32 v{HS[1] + k}, v{oth}, v{own}, vcc')
    a('s_lshl_b32 s77, s3, 12')
    a(f's_add_u32 s77, s77, {WS_CAND}')
    a('s_not_b32 s64, s76')
    a('s_bfe_u32 s65, s64, 0x30001')
    a('s_mov_b32 s66, 0x01010101')
    a('s_lshl_b32 s66, s66, s65')
    a('s_mov_b32 s67, s66')
    OUTR = [124, 132]

    def cand_row(r):
        a('s_mov_b64 exec, s[66:67]')
        for i in range(8):
            pk('fma', N[0] + 2 * i, H[r] + 2 * i, HS[r] + 2, HS[r])
        for i in range(8):
            a(f'v_cvt_pk_bf16_f32 v{YR[0] + i}, v{N[0] + 2 * i}, v{N[0] + 2 * i + 1}')
        for p in range(4):
            a(f'buffer_store_dwordx2 v[{YR[0] + 2 * p}:{YR[0] + 2 * p + 1}], v{VG8}, {WSR}, s77 offen offset:{512 * p} sc1')
        for i in range(8):
            a(f'v_cvt_pk_bf16_f32 v{WF + i}, v{H[r] + 2 * i}, v{H[r] + 2 * i + 1}')

    a('s_bitcmp1_b32 s64, 0')
    a('s_cbranch_scc1 order10')
    cand_row(0)
    a('s_branch cand_done')
    a('order10:')
    cand_row(1)
    a('cand_done:')
    stamp('cand')
    for p in range(4):
        a(f'ds_write_b64 v{VG8}, v[{WF + 2 * p}:{WF + 2 * p + 1}] offset:{L_H + 512 * p}')
    a('s_mov_b64 exec, -1')
    if DYN:
        a('s_cmp_eq_u32 s5, 1')
        a('s_cbranch_scc1 d_rest')
        down_loads(0, DEARLY)
        a('d_rest:')
        down_loads(DEARLY, 32)
    else:
        down_loads(DEARLY + DMID, 32)
    for r in range(2):
        a(f'v_add_f32 v{HS[r] + 2}, 1.0, v{HS[r] + 2}')
        a(f'v_add_f32 v{HS[r] + 3}, 1.0, v{HS[r] + 3}')
    for r in range(2):
        for i in range(8):
            pk('fma', H[r] + 2 * i, H[r] + 2 * i, HS[r] + 2, HS[r])
        for i in range(8):
            a(f'v_cvt_pk_bf16_f32 v{N[1] + 8 * r + i}, v{H[r] + 2 * i}, v{H[r] + 2 * i + 1}')
        for p in range(4):
            a(f'ds_write_b64 v{VXA}, v[{N[1] + 8 * r + 2 * p}:{N[1] + 8 * r + 2 * p + 1}] offset:{512 * p + RS * r}')
    a('s_waitcnt lgkmcnt(0)')
    a('s_barrier')
    for r in range(2):
        a(f'ds_read_b128 v[{OUTR[r]}:{OUTR[r] + 3}], v{VRA} offset:{RS * r}')
        a(f'ds_read_b128 v[{OUTR[r] + 4}:{OUTR[r] + 7}], v{VRA} offset:{RS * r + 1024}')
    for hf in range(2):
        a(f'ds_read_b128 v[{WF + 4 * hf}:{WF + 4 * hf + 3}], v2 offset:{L_H + 1024 * hf}')
    a('s_waitcnt lgkmcnt(0)')
    POL = ' ' + {0: '', 1: 'nt', 2: 'sc1'}[opt('outpol', 2)]

    def row_store(r, pol):
        a(f'buffer_store_dwordx4 v[{OUTR[r]}:{OUTR[r] + 3}], v2, {XBR}, s69 offen offset:{2048 * r}{pol}')
        a(f'buffer_store_dwordx4 v[{OUTR[r] + 4}:{OUTR[r] + 7}], v2, {XBR}, s69 offen offset:{2048 * r + 1024}{pol}')

    a('s_cmp_eq_u32 s12, s65')
    a('s_cbranch_scc0 no_cand_h')
    for r in range(2):
        row_store(r, ' sc1')
    a('s_mov_b32 s69, 0x40000000')
    a('s_waitcnt vmcnt(0)')
    a(f'buffer_store_dwordx4 v[{WF}:{WF + 3}], v2, {WSR}, s77 offen offset:2048 sc1')
    a(f'buffer_store_dwordx4 v[{WF + 4}:{WF + 7}], v2, {WSR}, s77 offen offset:3072 sc1')
    a('no_cand_h:')
    a('s_cmp_lt_u32 s3, 112')
    a('s_cbranch_scc0 rows_st')
    a('s_cmp_eq_u32 s14, 0')
    a('s_cbranch_scc0 ffn2')
    if opt('odefer', 1):
        lds_spin('dr', 16, 4, 8)
    a('rows_st:')
    for r in range(2):
        row_store(r, ' sc1')
    a('s_branch main_fl')
    a('ffn2:')
    a('v_lshlrev_b32 v41, 1, v253')
    a('s_lshl_b32 s77, s3, 12')
    a(f's_add_u32 s77, s77, {WS_PART}')
    a('s_cmp_eq_u32 s12, s65')
    a('s_cbranch_scc1 d_ok')
    a('s_waitcnt vmcnt(0)')
    a('d_ok:')
    lds_inc(16)
    stamp('dready')
    for p in range(16):
        for k in range(2):
            lo, hi = DW + 2 * (8 * (p >> 2) + (p & 3)) + k, DW + 2 * (8 * (p >> 2) + (p & 3) + 4) + k
            t = 48 + k
            a(f'v_perm_b32 v{t}, v{hi}, v{lo}, s74')
            a(f'v_perm_b32 v{hi}, v{hi}, v{lo}, s75')
            a(f'v_mov_b32 v{lo}, v{t}')
    if opt('gxcan', 1):
        a('s_mov_b64 exec, 1')
        a('s_lshl_b32 s60, s13, 10')
        a('s_add_u32 s62, s79, s60')
        retry_loop('pgc', [f'buffer_load_dword v8, v2, {WSR}, s62 offen sc1'], lambda: a('v_cmp_eq_u32 vcc, -1, v8'), sleep=opt('gxcsleep', 2))
    TT = 8
    if opt('gxdelay', 0):
        a(f's_sleep {opt("gxdelay", 0)}')
    P = 52
    poll_loop('pg', [f'buffer_load_dwordx4 v[{P + 4 * q}:{P + 4 * q + 3}], v2, {WSR}, s79 offen offset:{1024 * q} sc1' for q in range(4)], range(P, P + 16), P + 16, sleep=opt('gxsleep', 1))
    stamp('gxpoll')
    pk('add', P, P, P + 4)
    pk('add', P + 2, P + 2, P + 6)
    pk('add', P + 8, P + 8, P + 12)
    pk('add', P + 10, P + 10, P + 14)
    pk('add', P, P, P + 8)
    pk('add', P + 2, P + 2, P + 10)
    a(f'v_permlane32_swap_b32 v{P}, v{P + 2}')
    a(f'v_permlane32_swap_b32 v{P + 1}, v{P + 3}')
    pk('add', P, P, P + 2)
    a(f'v_permlane16_swap_b32 v{P}, v{P + 1}')
    a(f'v_add_f32 v{TT}, v{P}, v{P + 1}')
    rnd(TT, TT)
    a(f'v_mul_f32 v{TT + 2}, 0xbfb8aa3b, v{TT}')
    a(f'v_mov_b32_dpp v{TT + 3}, v{TT} row_ror:8 row_mask:0xf bank_mask:0xf')
    a(f'v_exp_f32 v{TT + 2}, v{TT + 2}')
    a(f'v_add_f32 v{TT + 2}, 1.0, v{TT + 2}')
    a(f'v_rcp_f32 v{TT + 2}, v{TT + 2}')
    a(f'v_mul_f32 v{TT}, v{TT}, v{TT + 2}')
    rnd(TT, TT)
    a(f'v_mul_f32 v{TT}, v{TT}, v{TT + 3}')
    a(f'v_mov_b32_dpp v{TT + 1}, v{TT} row_shr:1 row_mask:0xf bank_mask:0xf bound_ctrl:0')
    a(f'v_cvt_pk_bf16_f32 v{TT}, v{TT + 1}, v{TT}')
    for p in range(16):
        a(f'v_readlane_b32 s{S_K + p}, v{TT}, {16 * (p & 3) + 2 * (p >> 2) + 1}')
    AC2 = 24
    for p in range(16):
        for c in range(4):
            r = DW + 2 * (8 * (p >> 2) + (p & 3) + 4 * (c & 1)) + (c >> 1)
            h = AC2 + 4 * (p & 1) + c
            src2 = '0' if p < 2 else f'v{h}'
            a(f'v_dot2_f32_bf16 v{h}, v{r}, s{S_K + p}, {src2}')
    pk('add', AC2, AC2, AC2 + 4)
    pk('add', AC2 + 2, AC2 + 2, AC2 + 6)
    a(f'buffer_store_dwordx4 v[{AC2}:{AC2 + 3}], v41, {WSR}, s77 offen sc1')
    stamp('pst')
    a('s_branch rows_st')

    a('helper_ffn:')
    a('s_cmp_lt_u32 s3, 112')
    a('s_cbranch_scc1 ffn_go')
    a('s_waitcnt vmcnt(0)')
    fb_publish()
    a('s_branch red_wait')
    a('ffn_go:')
    GW = 64
    a('s_and_b32 s76, s3, 15')
    a('s_lshl_b32 s77, s76, 2')
    a('s_add_u32 s77, s77, s13')
    a(f's_mul_i32 s77, s77, {16 * 7168}')
    a('s_lshr_b32 s78, s3, 4')
    a('s_lshl_b32 s60, s78, 10')
    a('s_add_u32 s77, s77, s60')
    a('s_lshl_b32 s60, s13, 5')
    a(f's_add_u32 s60, s60, {L_X}')
    a('v_mov_b32 v201, s60')
    a('s_lshl_b32 s78, s78, 2')
    a('s_add_u32 s78, s78, s13')
    a('s_lshl_b32 s78, s78, 14')
    a('s_lshl_b32 s60, s76, 8')
    a('s_add_u32 s78, s78, s60')
    a(f's_add_u32 s78, s78, {WS_GX}')
    a('v_lshlrev_b32 v204, 12, v5')
    a('v_lshl_add_u32 v204, v4, 4, v204')
    a('v_lshrrev_b32 v203, 2, v1')
    a('v_lshlrev_b32 v203, 8, v203')
    a('v_and_b32 v205, 3, v1')
    a('v_lshl_add_u32 v203, v205, 5, v203')
    a('s_lshl_b32 s60, s13, 12')
    a('v_add_u32 v203, s60, v203')
    a('s_lshl_b32 s60, s13, 10')
    a('v_add_u32 v205, s60, v2')
    stamp('uw')
    steps = []
    for i in range(16):
        for m, sr in ((0, S_G), (1, S_U)):
            r = GW + 64 * m + 4 * i
            steps.append([f'buffer_load_dwordx4 v[{r}:{r + 3}], v2, s[{sr}:{sr + 3}], s77 offen nt'])
        steps[-1].append('s_add_u32 s77, s77, 7168')
    FBK = opt('fbk', 2)
    for k, stp in enumerate(steps):
        if k == PAUSE:
            stamp('pause')
            lds_spin('late2', 24, 1, 28, sleep=LSLEEP)
            lds_spin('yw', 8, 12, 28)
            if opt('rsleep', 0):
                a(f's_sleep {opt("rsleep", 0)}')
        for l in stp:
            a(l)
        if k >= DEPTH - 1 and k < PAUSE:
            a(f's_waitcnt vmcnt({DEPTH - 1})')
        if k == FBK - 1 and not FILLBY:
            a(f's_waitcnt vmcnt({FBK})')
            fb_publish()
    if PAUSE >= 32:
        lds_spin('yw', 8, 12, 28)
    for i2 in range(8):
        a(f's_waitcnt vmcnt({max(0, min(63, 32 - 4 * (i2 + 1)))})')
        for m in range(2):
            for k in range(4):
                lo, hi = GW + 64 * m + 8 * i2 + k, GW + 64 * m + 8 * i2 + 4 + k
                t = 32 + (k & 3)
                a(f'v_perm_b32 v{t}, v{hi}, v{lo}, s74')
                a(f'v_perm_b32 v{hi}, v{hi}, v{lo}, s75')
                a(f'v_mov_b32 v{lo}, v{t}')
    stamp('wready')
    a('s_cmp_eq_u32 s13, 0')
    a('s_cbranch_scc0 f2_bar')
    a('v_lshlrev_b32 v6, 2, v1')
    a(f'v_add_u32 v7, {L_X}, v6')
    if opt('kdelay', 0):
        a(f's_sleep {opt("kdelay", 0)}')
    key_poll(65)
    stamp('gkey')
    a('s_and_b32 s66, s65, 0xffff')
    a('s_sub_u32 s66, 2047, s66')
    a('s_lshr_b32 s66, s66, 4')
    a('s_lshl_b32 s66, s66, 12')
    a('s_lshl_b32 s60, s76, 7')
    a('s_add_u32 s66, s66, s60')
    a(f's_add_u32 s66, s66, {WS_CAND}')
    a('s_mov_b32 exec_hi, 0')
    retry_loop('px', [f'buffer_load_dword v8, v6, {WSR}, s66 offen sc1'], lambda: a('v_cmp_eq_u32 vcc, -1, v8'), sleep=1, mask='0xffffffff')
    a('ds_write_b32 v7, v8')
    a('s_mov_b64 exec, -1')
    a('s_waitcnt lgkmcnt(0)')
    a('f2_bar:')
    a('s_barrier')
    XS, AC = 36, 44
    stamp('ffn0')
    a(f'ds_read_b128 v[{XS}:{XS + 3}], v201')
    a(f'ds_read_b128 v[{XS + 4}:{XS + 7}], v201 offset:16')
    for p in range(8):
        if p % 4 == 0:
            a(f's_waitcnt lgkmcnt({1 - p // 4})')
        for m in range(2):
            for c in range(8):
                r = GW + 64 * m + 8 * p + 4 * (c & 1) + (c >> 1)
                i = AC + 8 * m + c
                src2 = '0' if p == 0 else f'v{i}'
                a(f'v_dot2_f32_bf16 v{i}, v{r}, v{XS + p}, {src2}')
    for q in range(4):
        a(f'ds_write_b128 v203, v[{AC + 4 * q}:{AC + 4 * q + 3}] offset:{128 * (q >> 1) + 16 * (q & 1)}')
    a('s_waitcnt lgkmcnt(0)')
    a('s_barrier')
    for q in range(4):
        a(f'ds_read_b128 v[{8 + 4 * q}:{11 + 4 * q}], v205 offset:{4096 * q}')
    a('s_waitcnt lgkmcnt(2)')
    pk('add', 8, 8, 12)
    pk('add', 10, 10, 14)
    a('s_waitcnt lgkmcnt(0)')
    pk('add', 16, 16, 20)
    pk('add', 18, 18, 22)
    pk('add', 8, 8, 16)
    pk('add', 10, 10, 18)
    a(f'buffer_store_dwordx4 v[8:11], v204, {WSR}, s78 offen sc1')
    stamp('gxst')
    a('s_branch main_fl')

    a('conv_ffn:')
    a('s_cmp_lt_u32 s3, 112')
    a('s_cbranch_scc0 red_conv')
    a('s_branch main_fl')

    a('red_conv:')
    a('s_cmp_eq_u32 s12, 0')
    a('s_cbranch_scc0 red_wait')
    if opt('rdelay', 0):
        a(f's_sleep {opt("rdelay", 0)}')
    key_poll(71)
    a('s_sub_u32 s76, s3, 112')
    a('s_and_b32 s72, s71, 0xffff')
    a('s_sub_u32 s72, 2047, s72')
    a('s_lshr_b32 s73, s72, 4')
    a('s_lshl_b32 s73, s73, 12')
    a('s_lshl_b32 s60, s76, 7')
    a('s_add_u32 s73, s73, s60')
    a(f's_add_u32 s73, s73, {WS_CAND}')
    a('s_lshl_b32 s72, s72, 11')
    a('s_add_u32 s72, s72, s60')
    a('v_and_b32 v6, 31, v0')
    a('v_lshlrev_b32 v6, 2, v6')
    a('s_cmp_eq_u32 s76, 0')
    a(f's_cselect_b32 s60, {WS_EPOCH}, 0x40000000')
    a('v_mov_b32 v49, s8')
    a('v_mov_b32 v50, 0')
    a('s_mov_b64 exec, 1')
    a(f'buffer_store_dword v49, v50, {WSR}, s60 offen')
    a('s_mov_b64 exec, -1')
    loads = [f'buffer_load_dword v{40 + p}, v6, {WSR}, s73 offen offset:{2048 * p} sc1' for p in range(2)]
    poll_loop('ph', loads, (40, 41), 42)
    a('s_and_b32 s60, s71, 0xffff0000')
    a('s_xor_b32 s61, s60, 0x80000000')
    a('s_xor_b32 s62, s60, 0xffff0000')
    a('s_cmp_lt_i32 s60, 0')
    a('s_cselect_b32 s60, s61, s62')
    a('v_mov_b32 v42, 0xbfb8aa3b')
    a('v_mul_f32 v42, s60, v42')
    a('v_exp_f32 v42, v42')
    a('v_add_f32 v42, 1.0, v42')
    a('v_rcp_f32 v42, v42')
    rnd(42, 42)
    unpack(44, 45, 40)
    unpack(46, 47, 41)
    a('red_wait:')
    a(f's_add_u32 s{S_G}, s{S_WS}, {WS_PART}')
    a(f's_addc_u32 s{S_G + 1}, s{S_WS + 1}, 0')
    a(f's_mov_b32 s{S_G + 2}, {112 * 4096}')
    a('s_sub_u32 s76, s3, 112')
    a('v_and_b32 v4, 15, v0')
    a('v_lshrrev_b32 v5, 4, v0')
    a('v_lshlrev_b32 v5, 12, v5')
    a('v_lshl_add_u32 v5, v4, 4, v5')
    a('s_lshl_b32 s64, s76, 8')
    a(f's_add_u32 s65, s64, {32 * 4096}')
    a(f's_add_u32 s66, s64, {64 * 4096}')
    a(f's_add_u32 s67, s64, {96 * 4096}')
    a('v_lshrrev_b32 v7, 4, v1')
    a('v_lshl_add_u32 v7, v4, 2, v7')
    a('v_lshlrev_b32 v7, 2, v7')
    a('s_lshl_b32 s60, s12, 8')
    a(f's_add_u32 s60, s60, {L_RED}')
    a('v_add_u32 v7, s60, v7')
    a('v_lshlrev_b32 v48, 3, v1')
    a(f'v_add_u32 v48, {L_RED}, v48')
    a('s_barrier')
    a(f's_sleep {opt("finsleep", 30)}')
    P = 8
    loads = [f'buffer_load_dwordx4 v[{P + 4 * r}:{P + 4 * r + 3}], v5, s[{S_G}:{S_G + 3}], s{64 + r} offen sc1' for r in range(4)]
    poll_loop('pp', loads, range(P, P + 16), 24)
    stamp('ppoll')
    pk('add', P, P, P + 4)
    pk('add', P + 2, P + 2, P + 6)
    pk('add', P + 8, P + 8, P + 12)
    pk('add', P + 10, P + 10, P + 14)
    pk('add', P, P, P + 8)
    pk('add', P + 2, P + 2, P + 10)
    a(f'v_permlane32_swap_b32 v{P}, v{P + 2}')
    a(f'v_permlane32_swap_b32 v{P + 1}, v{P + 3}')
    pk('add', P, P, P + 2)
    a(f'v_permlane16_swap_b32 v{P}, v{P + 1}')
    a(f'v_add_f32 v{P}, v{P}, v{P + 1}')
    a(f'ds_write_b32 v7, v{P}')
    a('s_waitcnt lgkmcnt(0)')
    a('s_barrier')
    a('s_cmp_eq_u32 s12, 0')
    a('s_cbranch_scc0 main_fl')
    a('s_mov_b32 exec_hi, 0')
    for q in range(8):
        a(f'ds_read_b64 v[{P + 2 * q}:{P + 2 * q + 1}], v48 offset:{256 * q}')
    a('s_waitcnt lgkmcnt(0)')
    for q in range(4):
        pk('add', P + 4 * q, P + 4 * q, P + 4 * q + 2)
    pk('add', P, P, P + 4)
    pk('add', P + 8, P + 8, P + 12)
    pk('add', P, P, P + 8)
    rnd(P, P)
    rnd(P + 1, P + 1)
    a(f'v_mul_f32 v{P}, v{P}, v42')
    a(f'v_mul_f32 v{P + 1}, v{P + 1}, v42')
    rnd(P, P)
    rnd(P + 1, P + 1)
    pk('add', P, P, 44)
    rnd(P, P)
    rnd(P + 1, P + 1)
    pk('add', P, P, 46)
    a(f'v_cvt_pk_bf16_f32 v{P}, v{P}, v{P + 1}')
    a(f'buffer_store_dword v{P}, v6, {XBR}, s72 offen')
    a('main_fl:')
    stamp_flush(S_WS, 7, 0)
    a('main_done:')
    a('s_endpgm')
    return kernel_desc(KN, 256, 102 if STAMPS else 80)


launch = '; @launch grid=(256,1,1) block=(512,1,1) lds=%d\n' % MAIN_LDS
finish(launch, [k_main()])
```

```python
from common import *
import common
STAMPS = common.STAMPS

WS_KEYS = 0
WS_EPOCH = 32 * 1024
WS_GX = 1536 * 1024
WS_FA = 128 * 1024
WS_FB = 192 * 1024
WS_FA2 = 64 * 1024
WS_CAND = 262144
WS_PART = 1 << 20
WS_GX2 = 6 << 20
WS_KV = 2 << 20
WS_SIZE = 7 << 20
WSOFF = opt('wsoff', 0) << 20
common.WS_STAMP -= WSOFF
POLL_MAX = 1 << 16
KN = NAME + '_kernel'

DEPTH = opt('depth', 7)
XPOS = opt('xpos', 4)
UWOFF = opt('uwoff', 0)
FLC = opt('flc', 3)
FBC = opt('fbc', 10)
YSLEEP = opt('ysleep', 1)
CODEPF = opt('codepf', 6)
DEARLY = opt('dearly', 0)
DWHO = opt('dwho', 0)
GXL = opt('gxl', 40)
DYN = opt('dyn', 0)
LSLEEP = opt('lsleep', 6)
FILLBY = opt('fillby', 1)
DUAL = opt('dual', 12)
KVS = '' if opt('l2kv', 0) else ' sc1'
KVL = {0: ' sc1', 1: ' sc0', 2: ''}[opt('kvl', 0)]
FAL = {0: ' sc1', 1: ' sc0', 2: ''}[opt('fal', 0)]
PAUSE = opt('pause', 20)

GS = 4160
UOFF = 4 * GS
CS = 21312
L_YL = 4 * CS
RS = 2064
L_YT = L_YL + 16384
L_P0 = L_YL
L_W = L_YT + 16 * RS
L_ST = L_W + 2048
L_PART = 0
PS = 272
RP = 272
L_H = 8192
L_CNT = L_ST + 272
L_GKEY = L_CNT + 28
L_SW = L_CNT + 32
L_X = L_CNT + 48
L_RED = L_X + 1024
MAIN_LDS = L_RED + 4096

S_K, S_V, S_SK, S_H, S_WS, S_Q, S_WR, S_OUT, S_G, S_U, S_D = 16, 20, 24, 28, 32, 36, 40, 44, 48, 52, 56
WSR = f's[{S_WS}:{S_WS + 3}]'
XBR = f's[{S_OUT}:{S_OUT + 3}]'
KVR = WSR
VC, V1 = 254, 255


def sentinel_check(regs, tmp):
    rs = list(regs)
    cur = rs.pop(0)
    while rs:
        if len(rs) >= 2:
            a(f'v_max3_u32 v{tmp}, v{cur}, v{rs[0]}, v{rs[1]}')
            rs = rs[2:]
        else:
            a(f'v_max_u32 v{tmp}, v{cur}, v{rs[0]}')
            rs = rs[1:]
        cur = tmp
    a(f'v_cmp_eq_u32 vcc, -1, v{cur}')


def retry_loop(name, loads, check, sleep=2, issued=False, mask='-1'):
    a('s_mov_b32 s61, 0')
    if issued:
        a(f's_branch {name}_chk')
    a(f'{name}_again:')
    for l in loads:
        a(l)
    a(f'{name}_chk:')
    a('s_waitcnt vmcnt(0)')
    check()
    a(f's_cbranch_vccz {name}_ok')
    a('s_add_u32 s61, s61, 1')
    a(f's_cmp_ge_u32 s61, {POLL_MAX}')
    a(f's_cbranch_scc1 {name}_ok')
    a('s_mov_b64 exec, vcc')
    a(f's_sleep {sleep}')
    a(f's_branch {name}_again')
    a(f'{name}_ok:')
    a(f's_mov_b64 exec, {mask}')


def poll_loop(name, loads, regs, tmp, sleep=2, issued=False):
    retry_loop(name, loads, lambda: sentinel_check(regs, tmp), sleep, issued)


def lds_spin(name, off, want, vt, sleep=1):
    a('s_mov_b32 s61, 0')
    a(f'{name}_spin:')
    a(f'ds_read_b32 v{vt}, v{VC} offset:{off}')
    a('s_add_u32 s61, s61, 1')
    a('s_waitcnt lgkmcnt(0)')
    a(f'v_readfirstlane_b32 s60, v{vt}')
    a(f's_cmp_ge_u32 s60, {want}')
    a(f's_cbranch_scc1 {name}_go')
    a(f's_cmp_ge_u32 s61, {1 << 22}')
    a(f's_cbranch_scc1 {name}_go')
    a(f's_sleep {sleep}')
    a(f's_branch {name}_spin')
    a(f'{name}_go:')


def lds_inc(off):
    a('s_mov_b64 exec, 1')
    a(f'ds_add_u32 v{VC}, v{V1} offset:{off}')
    a('s_mov_b64 exec, -1')


XP = [4, 20]
N = [36, 52]
T = [68, 84]
WF = 100
MV = [116, 120]
AA = [124, 132]
YR = [140, 148]
XR = 36
VG8, VXA, VWA, VSA, VKL, VPR, VPW, VRA, VBIT = range(228, 237)


def ln_x(xr, wr):
    for r in range(2):
        for i in range(8):
            unpack(XP[r] + 2 * i, XP[r] + 2 * i + 1, xr + 8 * r + i)
    for i in range(8):
        unpack(WF + 2 * i, WF + 2 * i + 1, wr + i)
    srcs = [(XP[0], T[0]), (XP[1], T[0] + 8), (WF, T[1])]
    for i in range(4):
        for (sx, t) in srcs:
            pk('add', t + 2 * i, sx + 4 * i, sx + 4 * i + 2)
    for (_, b) in srcs:
        pk('add', b, b, b + 2)
        pk('add', b + 4, b + 4, b + 6)
    for (_, b) in srcs:
        pk('add', b, b, b + 4)
    for (_, b) in srcs:
        a(f'v_add_f32 v{b}, v{b}, v{b + 1}')
    K = T[1] + 8
    a(f'v_mov_b32 v{K}, 0x3a800000')
    wave_reduce('v_add_f32', [b for _, b in srcs])
    a(f'v_readlane_b32 s60, v{T[0]}, 63')
    a(f'v_readlane_b32 s62, v{T[0] + 8}, 63')
    a(f'v_readlane_b32 s71, v{T[1]}, 63')
    for r in range(2):
        M, V = MV[r], MV[r] + 2
        a(f'v_mul_f32 v{V}, s{60 + 2 * r}, v{K}')
    for r in range(2):
        M, V = MV[r], MV[r] + 2
        rnd(M, V)
        rnd(M + 1, V)
        a(f'v_sub_f32 v{V}, v{V}, v{M}')
        a(f'v_readfirstlane_b32 s{72 + r}, v{M}')
    for r in range(2):
        for i in range(8):
            pk('add', XP[r] + 2 * i, XP[r] + 2 * i, MV[r], mods='neg_lo:[0,1] neg_hi:[0,1]')
    for i in range(8):
        for r in range(2):
            if i == 0:
                pk('mul', AA[r], XP[r], XP[r])
            else:
                pk('fma', AA[r], XP[r] + 2 * i, XP[r] + 2 * i, AA[r])
    for r in range(2):
        a(f'v_add_f32 v{AA[r]}, v{AA[r]}, v{AA[r] + 1}')
        a(f'v_mul_f32 v{MV[r] + 2}, v{MV[r] + 2}, v{MV[r] + 2}')
    wave_reduce('v_add_f32', AA)
    for r in range(2):
        a(f'v_readlane_b32 s{60 + 2 * r}, v{AA[r]}, 63')
    for step in range(8):
        for r in range(2):
            V = MV[r] + 2
            if step == 0:
                a(f'v_fma_f32 v{V}, s{60 + 2 * r}, v{K}, -v{V}')
            elif step in (1, 3, 5):
                rnd(V, V)
            elif step == 2:
                a(f'v_add_f32 v{V}, 0x3727c5ac, v{V}')
            elif step == 4:
                a(f'v_sqrt_f32 v{V}, v{V}')
            elif step == 6:
                a(f'v_rcp_f32 v{V + 1}, v{V}')
            else:
                a(f'v_rcp_f32 v{V}, v{V}')
    for r in range(2):
        for i in range(16):
            rnd(N[r] + i, XP[r] + i)
    for r in range(2):
        for i in range(8):
            pk('mul', N[r] + 2 * i, N[r] + 2 * i, MV[r] + 2)
    for r in range(2):
        for i in range(16):
            rnd(N[r] + i, N[r] + i)


def key_poll(dst):
    a('v_lshlrev_b32 v4, 7, v1')
    a(f's_mov_b32 s65, {WS_KEYS}')
    a(f's_mov_b32 s66, {WS_KEYS + 8192}')
    if opt('kcan', 1):
        a('s_lshl_b32 s62, s3, 7')
        a(f's_add_u32 s62, s62, {WS_KEYS + 4}')
        a('s_mov_b64 exec, 1')
        retry_loop(a.newlabel('kc'), [f'buffer_load_dword v8, v4, {WSR}, s62 offen sc1'], lambda: a('v_cmp_ne_u32 vcc, s8, v8'), sleep=opt('kcsleep', 2))
        stamp('kcan')
    loads = [f'buffer_load_dwordx2 v[{16 + 2 * p}:{17 + 2 * p}], v4, {WSR}, s{65 + p} offen sc1' for p in range(2)]

    def chk():
        a('v_xor_b32 v8, s8, v17')
        a('v_xor_b32 v9, s8, v19')
        a('v_max_u32 v12, v16, v18')
        a('v_or_b32 v8, v8, v9')
        a('v_cmp_ne_u32 vcc, 0, v8')
    retry_loop(a.newlabel('pk'), loads, chk, sleep=opt('ksleep', 2))
    wave_reduce('v_max_u32', 12)
    a(f'v_readlane_b32 s{dst}, v12, 63')


def k_main():
    kernel_begin(a, KN)
    a('s_cmp_ge_u32 s2, 256')
    a('s_cbranch_scc1 main_done')
    stamp_begin(0)
    for sr, off in ((S_WS, 104), (S_K, 8), (S_V, 16), (S_SK, 24), (S_H, 32), (10, 40), (S_Q, 0), (S_WR, 56), (S_OUT, 88), (S_G, 64), (S_U, 72), (S_D, 80)):
        a(f's_load_dwordx2 s[{sr}:{sr + 1}], s[0:1], {off}')
    if CODEPF:
        a('s_getpc_b64 s[4:5]')
        a('pc0:')
        a('s_mov_b32 s6, main_done-pc0')
        a('s_mov_b32 s7, 0x00020000')
        a('s_lshr_b32 s3, s2, 3')
        a(f's_mul_i32 s3, s3, {CODEPF * 128}')
        a('v_lshlrev_b32 v3, 7, v0')
        a(f'v_cmp_gt_u32 vcc, {CODEPF}, v0')
        a('s_and_saveexec_b64 s[60:61], vcc')
        a('s_cbranch_execz no_codepf')
        a('buffer_load_dword v252, v3, s[4:7], s3 offen')
        a('no_codepf:')
        a('s_mov_b64 exec, -1')
    a('s_lshr_b32 s5, s2, 4')
    a('s_and_b32 s4, s2, 7')
    a('s_lshl_b32 s4, s4, 1')
    a('s_bfe_u32 s6, s2, 0x10003')
    a('s_or_b32 s4, s4, s6')
    a('s_lshl_b32 s2, s4, 4')
    a('s_or_b32 s2, s2, s5')
    a('v_lshrrev_b32 v3, 6, v0')
    a('v_and_b32 v1, 63, v0')
    a('v_readfirstlane_b32 s12, v3')
    a('v_lshlrev_b32 v2, 4, v1')
    a(f'v_mov_b32 v{VC}, {L_CNT}')
    a(f'v_mov_b32 v{V1}, 1')
    for r in range(6):
        a(f'v_mov_b32 v{144 + r}, 0')
    for r in range(4):
        a(f'v_mov_b32 v{240 + r}, -1')
    a('s_cmp_eq_u32 s12, 0')
    a('s_cbranch_scc0 no_cnt_init')
    a('s_mov_b64 exec, 1')
    a(f'ds_write_b128 v{VC}, v[144:147]')
    a(f'ds_write_b128 v{VC}, v[144:147] offset:16')
    a('s_mov_b64 exec, -1')
    a('no_cnt_init:')
    for sr, n in ((S_WS, WS_SIZE), (S_K, MB4), (S_V, MB4), (S_SK, 8192), (S_H, 4096), (S_Q, MB4), (S_WR, 2048), (S_OUT, MB4),
                  (S_G, 1024 * 7168), (S_U, 1024 * 7168), (S_D, 3584 * 2048)):
        a(f's_mov_b32 s{sr + 2}, {n}')
        a(f's_mov_b32 s{sr + 3}, 0x00020000')
    a('s_and_b32 s13, s12, 3')
    if opt('gmix', 1):
        a('s_and_b32 s14, s12, 1')
        a('s_xor_b32 s4, s4, s14')
    a('s_lshr_b32 s14, s12, 2')
    a('s_lshl_b32 s15, s2, 2')
    a('s_add_u32 s15, s15, s13')
    a('s_lshr_b32 s3, s2, 1')
    a('v_and_b32 v4, 15, v1')
    a('v_lshrrev_b32 v5, 4, v1')
    a('v_and_b32 v10, 31, v1')
    a('v_lshrrev_b32 v11, 5, v1')
    a('v_lshrrev_b32 v6, 3, v1')
    a('v_lshlrev_b32 v8, 11, v6')
    a('v_lshlrev_b32 v6, 13, v6')
    a('v_and_b32 v7, 7, v1')
    a('v_lshl_add_u32 v6, v7, 4, v6')
    a('v_lshl_add_u32 v8, v7, 4, v8')
    a('s_lshl_b32 s62, s4, 17')
    a('s_lshl_b32 s63, s13, 11')
    a('s_add_u32 s62, s62, s63')
    a('s_lshl_b32 s63, s14, 21')
    a('s_add_u32 s62, s62, s63')
    a(f's_add_u32 s62, s62, {WS_KV}')
    a('s_lshl_b32 s63, s5, 7')
    a('s_add_u32 s62, s62, s63')
    a('s_add_u32 s63, s62, 0x10000')
    a('s_lshl_b32 s64, s12, 19')
    a('s_lshl_b32 s65, s5, 15')
    a('s_add_u32 s64, s64, s65')
    a('s_lshl_b32 s65, s4, 7')
    a('s_add_u32 s64, s64, s65')
    a('s_add_u32 s65, s64, 16384')
    a('s_sub_u32 s77, s64, 6144')
    a('s_cselect_b32 s77, 0x40000000, s77')
    a('s_lshl_b32 s79, s4, 9')
    a('v_lshlrev_b32 v9, 4, v10')
    a('s_lshl_b32 s67, s15, 12')
    a('s_lshl_b32 s70, s15, 1')
    a('s_and_b32 s70, s70, 0xfffffffc')
    a('s_lshl_b32 s68, s3, 4')
    a('s_lshl_b32 s69, s13, 2')
    a('s_add_u32 s68, s68, s69')
    a('s_lshl_b32 s69, s68, 11')
    a('s_mul_i32 s66, s12, 4608')
    a(f's_add_u32 s66, s66, {L_P0}')
    a(f's_mov_b32 s6, {WS_EPOCH}')
    a('s_mov_b32 m0, s66')
    a('s_waitcnt lgkmcnt(0)')
    stamp('karg')
    if WSOFF:
        a(f's_add_u32 s{S_WS}, s{S_WS}, {WSOFF}')
        a(f's_addc_u32 s{S_WS + 1}, s{S_WS + 1}, 0')
    a(f's_load_dword s8, s[{S_WS}:{S_WS + 1}], s6')
    a('s_load_dword s9, s[10:11], s70')
    KR, VR, SKR = 16, 28, 36

    GL = 96
    a('s_cmp_eq_u32 s14, 0')
    a('s_cbranch_scc1 ld_kv')
    a(f's_add_u32 s{S_H}, s{S_H}, s67')
    a(f's_addc_u32 s{S_H + 1}, s{S_H + 1}, 0')
    a('s_barrier')
    for i in range(4):
        a(f'buffer_load_dwordx4 v[{GL + 6 * i}:{GL + 6 * i + 3}], v2, s[{S_H}:{S_H + 3}], 0 offen offset:{1024 * i} nt')
    if opt('hipos', 0):
        a(f's_waitcnt vmcnt({4 - opt("hipos", 0)})')
    a('ld_kv:')
    a(f'buffer_load_dwordx4 v[{SKR}:{SKR + 3}], v9, s[{S_SK}:{S_SK + 3}], s79 offen')
    a('s_mov_b64 exec, 0xffffff')
    a(f'buffer_load_dwordx4 v8, s[{S_K}:{S_K + 3}], s77 offen nt lds')
    a('s_mov_b64 exec, -1')
    for (sr, so, lo) in ((S_K, 64, 384), (S_K, 65, 1408), (S_V, 64, 2432), (S_V, 65, 3456)):
        a(f's_add_u32 m0, s66, {lo}')
        a(f'buffer_load_dwordx4 v8, s[{sr}:{sr + 3}], s{so} offen nt lds')
    a('s_cmp_eq_u32 s14, 0')
    a('s_cbranch_scc0 ld_done')
    a('s_barrier')
    a('ld_done:')
    a(f's_mul_i32 s67, s13, {CS}')
    a('s_mov_b32 s74, 0x05040100')
    a('s_mov_b32 s75, 0x07060302')
    a('v_lshlrev_b32 v92, 10, v11')
    a('v_lshl_add_u32 v92, v10, 2, v92')
    a('v_add_u32 v92, s66, v92')
    a('v_add_u32 v93, 1024, v92')
    a('v_add_u32 v94, 2432, v92')
    a('v_lshrrev_b32 v8, 1, v10')
    a('v_mul_u32_u24 v8, 144, v8')
    a('v_and_b32 v9, 1, v10')
    a('v_lshl_add_u32 v8, v9, 6, v8')
    a('v_sub_u32 v9, 1, v11')
    a('v_lshl_add_u32 v8, v9, 4, v8')
    a('v_add_u32 v8, s66, v8')
    a('v_lshrrev_b32 v9, 3, v1')
    a('v_mul_u32_u24 v9, 144, v9')
    a('v_lshl_add_u32 v9, v7, 4, v9')
    a('v_add_u32 v9, s66, v9')
    a('v_add_u32 v160, s67, v2')
    a('v_and_b32 v161, 3, v1')
    a(f'v_mul_u32_u24 v161, {GS}, v161')
    a('v_bfe_u32 v162, v1, 2, 2')
    a('v_lshl_add_u32 v161, v162, 3, v161')
    a('v_lshl_add_u32 v161, v5, 4, v161')
    a('v_add_u32 v161, s67, v161')
    a(f's_add_u32 s60, s67, {UOFF + 480}')
    a('v_lshlrev_b32 v163, 5, v4')
    a('v_sub_u32 v162, s60, v163')
    a('v_lshl_add_u32 v162, v5, 4, v162')
    a('v_lshl_add_u32 v163, v5, 3, v163')
    a('s_lshl_b32 s60, s13, 12')
    a(f's_add_u32 s60, s60, {L_YL}')
    a('v_add_u32 v163, s60, v163')
    a('v_bfe_u32 v165, v1, 1, 2')
    a(f'v_mul_u32_u24 v165, {CS}, v165')
    a('v_and_b32 v166, 1, v1')
    a('v_lshl_add_u32 v165, v166, 4, v165')
    a('v_lshrrev_b32 v166, 3, v1')
    a('v_lshlrev_b32 v166, 5, v166')
    a('v_sub_u32 v165, v165, v166')
    a('s_lshl_b32 s60, s12, 9')
    a(f's_sub_u32 s60, {UOFF + 4064 - 256}, s60')
    a('v_add_u32 v165, s60, v165')
    a('s_lshl_b32 s78, s2, 13')
    a('s_lshl_b32 s60, s13, 11')
    a('s_add_u32 s78, s78, s60')
    a('s_lshl_b32 s60, s14, 21')
    a('s_add_u32 s78, s78, s60')
    a(f's_add_u32 s78, s78, {WS_KV}')
    a('v_lshl_add_u32 v166, v5, 3, v4')
    a('v_sub_u32 v166, 15, v166')
    a('v_and_b32 v167, 1, v166')
    a('v_lshlrev_b32 v167, 4, v167')
    a('v_ashrrev_i32 v166, 1, v166')
    a(f'v_mul_u32_u24 v150, {GS}, v1')
    a('v_add_u32 v150, s67, v150')
    a('v_lshlrev_b32 v245, 7, v4')
    a('v_bfe_u32 v248, v1, 3, 2')
    a('v_lshlrev_b32 v248, 13, v248')
    a('v_lshl_add_u32 v248, v7, 7, v248')
    a('v_lshlrev_b32 v251, 4, v0')
    a(f'v_lshrrev_b32 v{VG8}, 3, v0')
    a(f'v_lshlrev_b32 v{VG8}, 3, v{VG8}')
    a(f'v_mul_u32_u24 v{VXA}, {2 * RS}, v7')
    a(f'v_add_u32 v{VXA}, v{VXA}, v{VG8}')
    a(f'v_add_u32 v{VXA}, {L_YT}, v{VXA}')
    a(f'v_add_u32 v{VWA}, {L_W}, v{VG8}')
    a(f'v_lshlrev_b32 v{VSA}, 5, v7')
    a(f'v_add_u32 v{VSA}, {L_ST}, v{VSA}')
    a(f'v_bfe_u32 v{VKL}, v1, 3, 1')
    a(f'v_lshl_add_u32 v{VKL}, v7, 1, v{VKL}')
    a(f'v_mul_u32_u24 v{VPR}, {PS}, v{VKL}')
    a(f'v_lshl_add_u32 v{VPR}, v5, 6, v{VPR}')
    a(f'v_lshl_add_u32 v{VPW}, v7, 1, v11')
    a(f'v_mul_u32_u24 v{VPW}, {PS}, v{VPW}')
    a('v_and_b32 v3, 1, v5')
    a(f'v_lshl_add_u32 v{VPW}, v3, 4, v{VPW}')
    a('s_lshl_b32 s60, s12, 5')
    a(f'v_add_u32 v{VPW}, s60, v{VPW}')
    a('s_lshl_b32 s60, s3, 4')
    a('s_sub_u32 s60, 2047, s60')
    a(f'v_sub_u32 v{VKL}, s60, v{VKL}')
    a(f's_mul_i32 s60, s13, {4 * RS}')
    a(f's_add_u32 s60, s60, {L_YT}')
    a(f'v_add_u32 v{VRA}, s60, v2')
    a(f'v_lshrrev_b32 v{VBIT}, 3, v1')
    a(f'v_lshlrev_b32 v{VBIT}, v{VBIT}, 1')
    a('v_and_b32 v253, 255, v0')
    a('v_lshlrev_b32 v253, 3, v253')
    a('v_lshlrev_b32 v237, 1, v253')
    a('v_lshlrev_b32 v247, 12, v5')
    a('v_lshl_add_u32 v247, v4, 4, v247')
    a('s_mov_b64 exec, 0xf')
    a('ds_write_b128 v150, v[144:147]')
    a('s_mov_b64 exec, 0x3fffffff')
    a(f'ds_write_b128 v160, v[144:147] offset:{UOFF + 4096}')
    a('s_mov_b64 exec, -1')
    WFp, KF, O, PKD = 40, 48, 70, 86
    a('s_waitcnt lgkmcnt(0)')
    a('s_add_u32 s8, s8, 0x9e3779b9')
    a('s_or_b32 s8, s8, 1')
    a('s_and_b32 s61, s15, 1')
    a('s_lshl_b32 s61, s61, 4')
    a('s_lshr_b32 s9, s9, s61')
    a('s_and_b32 s9, s9, 0xffff')
    a('v_lshlrev_b32 v167, v167, s9')
    for r in range(4):
        a(f'v_cmp_eq_u32 vcc, {r}, v166')
        a(f'v_cndmask_b32 v{168 + r}, 0, v167, vcc')
    a('s_lshl_b32 s64, s4, 11')
    a(f's_add_u32 s64, s64, {WS_FA}')
    a('s_lshl_b32 s65, s2, 7')
    a(f's_add_u32 s7, s65, {WS_FB}')
    a(f's_add_u32 s65, s65, {WS_FA}')
    a('v_mov_b32 v13, s8')
    a('v_mov_b32 v14, 0')
    a(f's_add_u32 s10, s65, {WS_FA2 - WS_FA}')
    a('s_cmp_eq_u32 s12, 0')
    a('s_cselect_b32 s60, s10, 0x40000000')
    a('s_mov_b64 exec, 0xff')
    a(f'buffer_store_dwordx4 v[144:147], v2, {WSR}, s60 offen')
    a('s_mov_b64 exec, -1')
    XV = 1
    a('s_lshl_b32 s60, s12, 2')
    a('s_add_u32 s64, s64, s60')
    a('s_add_u32 s65, s65, s60')
    a('s_add_u32 s10, s10, s60')
    a(f's_add_u32 s11, s64, {WS_FA2 - WS_FA}')
    if DYN:
        a('s_memrealtime s[4:5]')
    a('s_cmp_eq_u32 s14, 0')
    a('s_cbranch_scc1 p0')
    LATER = 6 + XV
    a(f's_waitcnt vmcnt({LATER + 3})')
    a(f'v_readlane_b32 s76, v{GL}, 0')
    a(f'v_readlane_b32 s77, v{GL + 1}, 0')
    a('s_lshl_b32 s70, s76, 16')
    a('s_lshr_b32 s61, s76, 16')
    a('s_lshl_b32 s71, s77, 16')
    a('s_or_b32 s61, s61, s71')
    a('v_writelane_b32 v149, s70, 0')
    a('v_writelane_b32 v149, s76, 1')
    a('v_writelane_b32 v149, s61, 2')
    a('v_writelane_b32 v149, s77, 3')
    a('v_writelane_b32 v148, s70, 2')
    a('v_writelane_b32 v148, s76, 3')
    a('s_mov_b64 exec, 0xf')
    a('ds_write_b128 v150, v[146:149] offset:16')
    a('s_mov_b64 exec, -1')
    for i in range(4):
        w = GL + 6 * i
        a(f'v_mov_b32_dpp v{w + 4}, v{w} wave_shl:1 row_mask:0xf bank_mask:0xf bound_ctrl:0')
        a(f'v_mov_b32_dpp v{w + 5}, v{w + 1} wave_shl:1 row_mask:0xf bank_mask:0xf bound_ctrl:0')
        if i < 3:
            a(f's_waitcnt vmcnt({LATER + 2 - i})')
            a(f'v_readlane_b32 s70, v{w + 6}, 0')
            a(f'v_readlane_b32 s71, v{w + 7}, 0')
            a(f'v_writelane_b32 v{w + 4}, s70, 63')
            a(f'v_writelane_b32 v{w + 5}, s71, 63')
        ta, tb, tc = 176 + 12 * i, 180 + 12 * i, 184 + 12 * i
        a(f'ds_write_b128 v160, v[{w + 2}:{w + 5}] offset:{32 + 1024 * i + 3 * GS}')
        for j in range(4):
            a(f'v_alignbit_b32 v{ta + j}, v{w + j + 1}, v{w + j}, 16')
        a(f'ds_write_b128 v160, v[{ta}:{ta + 3}] offset:{32 + 1024 * i + 0 * GS}')
        for j in range(4):
            a(f'v_alignbit_b32 v{tb + j}, v{w + j + 2}, v{w + j + 1}, 16')
        a(f'ds_write_b128 v160, v[{tb}:{tb + 3}] offset:{32 + 1024 * i + 2 * GS}')
        for j in range(4):
            a(f'v_mov_b32 v{tc + j}, v{w + j + 1}')
        a(f'ds_write_b128 v160, v[{tc}:{tc + 3}] offset:{32 + 1024 * i + 1 * GS}')
    lds_inc(20)
    a(f'v_add_u32 v239, {L_W}, v2')
    a('v_and_b32 v244, 1, v5')
    a('v_lshl_add_u32 v244, v244, 1, v11')
    a('v_lshlrev_b32 v244, 4, v244')
    a('s_lshl_b32 s60, s13, 6')
    a(f's_add_u32 s60, s60, {L_ST}')
    a('v_add_u32 v244, s60, v244')
    a('s_waitcnt lgkmcnt(0)')
    for p in range(4):
        a(f'v_mov_b32 v{YR[0] + 4 * p}, -1')
    a('s_lshl_b32 s60, s13, 5')
    a(f's_add_u32 s60, s60, {L_X}')
    a('v_mov_b32 v201, s60')
    a(f'v_mul_u32_u24 v203, {RP}, v4')
    a('v_lshl_add_u32 v203, v5, 5, v203')
    a(f's_mul_i32 s60, s13, {16 * RP}')
    a('v_add_u32 v203, s60, v203')
    a(f'v_mul_u32_u24 v205, {RP}, v5')
    a('v_lshl_add_u32 v205, v4, 4, v205')
    a(f's_mul_i32 s60, s13, {4 * RP}')
    a('v_add_u32 v205, s60, v205')
    stamp('gdone')
    a('p0:')
    a(f's_waitcnt vmcnt({5 + XV})')
    for jj in range(2):
        unpack(WFp + 0 + jj, WFp + 2 + jj, SKR + 2 * jj)
        unpack(WFp + 4 + jj, WFp + 6 + jj, SKR + 2 * jj + 1)
    a(f's_waitcnt vmcnt({2 + XV})')
    stamp('kdata')
    for r in range(0, 8, 2):
        a(f'ds_read2_b32 v[{KR + r}:{KR + r + 1}], v92 offset0:{32 * r} offset1:{32 * r + 32}')
    a(f'ds_read2_b32 v[{KR + 8}:{KR + 9}], v93 offset0:0 offset1:32')
    a(f'ds_read_b32 v{KR + 10}, v93 offset:256')
    a(f's_waitcnt vmcnt({0 + XV})')
    for r in range(0, 8, 2):
        a(f'ds_read2_b32 v[{VR + r}:{VR + r + 1}], v94 offset0:{32 * r} offset1:{32 * r + 32}')
    for r in range(11):
        if r % 2 == 0:
            a(f's_waitcnt lgkmcnt({9 - r // 2})')
        unpack(KF + 2 * r, KF + 2 * r + 1, KR + r)
    for t in range(4):
        tap = 3 - t
        for r in range(8):
            if t == 0:
                pk('mul', O + 2 * r, KF + 2 * (r + t), WFp + 2 * tap)
            else:
                pk('fma', O + 2 * r, KF + 2 * (r + t), WFp + 2 * tap, O + 2 * r)
    a('s_waitcnt lgkmcnt(0)')
    for r in range(8):
        unpack(KF + 2 * r, KF + 2 * r + 1, VR + r)
    for r in range(8):
        pk('mul', O + 2 * r, O + 2 * r, KF + 2 * r)
    for jj in range(2):
        d = PKD + 2 + 4 * jj
        for m in range(4):
            a(f'v_cvt_pk_bf16_f32 v{d + m}, v{O + 2 * (7 - 2 * m) + jj}, v{O + 2 * (6 - 2 * m) + jj}')
        a(f'ds_write_b128 v8, v[{d}:{d + 3}] offset:{32 * jj}')
    a('s_waitcnt lgkmcnt(0)')
    a('ds_read_b128 v[16:19], v9')
    a(f'ds_read_b128 v[20:23], v9 offset:{8 * 144}')
    a('s_waitcnt lgkmcnt(1)')
    a(f'buffer_store_dwordx4 v[16:19], v6, {KVR}, s62 offen sc1')
    a('s_waitcnt lgkmcnt(0)')
    a(f'buffer_store_dwordx4 v[20:23], v6, {KVR}, s63 offen sc1')
    stamp('kvst')
    UP = 120
    a('s_waitcnt vmcnt(0)')
    stamp('kvack')
    a('s_mov_b64 exec, 1')
    a(f'buffer_store_dword v13, v14, {WSR}, s10 offen')
    a(f'buffer_store_dword v13, v14, {WSR}, s65 offen sc1')
    a('s_mov_b64 exec, 0xffff')
    a('s_mov_b32 s61, 0')
    a('fa2_again:')
    a(f'buffer_load_dword v246, v245, {WSR}, s11 offen sc1')
    a('s_add_u32 s61, s61, 1')
    a('s_waitcnt vmcnt(0)')
    a('v_cmp_ne_u32 vcc, s8, v246')
    a('s_cbranch_vccz fa_ok')
    a('s_mov_b64 exec, vcc')
    if opt('fa2sleep', 0):
        a(f's_sleep {opt("fa2sleep", 0)}')
    a(f's_cmp_lt_u32 s61, {DUAL}')
    a('s_cbranch_scc1 fa2_again')
    retry_loop('fa', [f'buffer_load_dword v246, v245, {WSR}, s64 offen sc1'], lambda: a('v_cmp_ne_u32 vcc, s8, v246'), sleep=opt('fasleep', 1))
    stamp('faok')
    for q in range(2):
        a(f'buffer_load_dwordx4 v[{UP + 4 * q}:{UP + 4 * q + 3}], v2, {KVR}, s78 offen offset:{1024 * q}{KVL}')
    a('s_cmp_eq_u32 s14, 0')
    a('s_cbranch_scc0 helper')

    ACC = 16
    FA_ = [48, 196]
    FB_ = [80, 112]

    def readsA(s, c):
        out = []
        for j in range(8):
            out.append(f'ds_read_b64 v[{s + 4 * j}:{s + 4 * j + 1}], v161 offset:{64 * (8 * j + c)}')
            out.append(f'ds_read_b64 v[{s + 4 * j + 2}:{s + 4 * j + 3}], v161 offset:{64 * (8 * j + c) + 8}')
        return out

    def readsB(s, c):
        return [f'ds_read_b128 v[{s + 4 * z}:{s + 4 * z + 3}], v162 offset:{64 * (56 - (8 * z - c))}' for z in range(8)]

    def y_fill():
        a('v_bfe_u32 v182, v0, 3, 5')
        a('v_lshlrev_b32 v182, 15, v182')
        a('v_lshl_add_u32 v182, v7, 4, v182')
        a('s_lshl_b32 s62, s2, 7')
        for q in range(4):
            a(f'buffer_store_dwordx4 v[240:243], v182, {XBR}, s62 offen sc1')
            if q < 3:
                a('s_add_u32 s62, s62, 0x100000')

    lds_spin('g4', 20, 4, 153)
    for r in readsA(FA_[0], 0):
        a(r)
    for q in range(2):
        a(f's_waitcnt vmcnt({1 - q})')
        a(f'ds_write_b128 v165, v[{UP + 4 * q}:{UP + 4 * q + 3}] offset:{256 - 256 * q}')
    lds_inc(12)
    stamp('u0')
    if FILLBY == 1 and opt('fst', -1) < 0:
        y_fill()
    lds_spin('u4', 12, 4, 153)
    stamp('mf0')
    for r in readsB(FB_[0], 0)[:4]:
        a(r)

    def mfma(w, A, B, init=False):
        c = '0' if init else f'v[{ACC + 4 * w}:{ACC + 4 * w + 3}]'
        a(f'v_mfma_f32_16x16x32_bf16 v[{ACC + 4 * w}:{ACC + 4 * w + 3}], v[{A}:{A + 3}], v[{B}:{B + 3}], {c}')

    def ystage(w):
        E = 172 + 2 * (w & 3)
        return [f'v_cvt_pk_bf16_f32 v{E}, v{ACC + 4 * w}, v{ACC + 4 * w + 1}',
                f'v_cvt_pk_bf16_f32 v{E + 1}, v{ACC + 4 * w + 2}, v{ACC + 4 * w + 3}',
                f'ds_write_b64 v163, v[{E}:{E + 1}] offset:{512 * w}']

    gsetup = ['v_lshlrev_b32 v180, 2, v0', f'v_add_u32 v180, {L_YL}, v180', 'v_add_u32 v181, 0x2000, v180',
              'v_lshrrev_b32 v182, 3, v0', 'v_lshlrev_b32 v182, 15, v182', 'v_lshl_add_u32 v182, v7, 4, v182',
              's_lshl_b32 s62, s2, 7', 's_add_u32 s63, s62, 0x100000', 's_add_u32 s64, s62, 0x200000', 's_add_u32 s65, s62, 0x300000',
              's_lshl_b32 s6, s12, 10', f's_add_u32 s6, s6, {WS_FB}',
              's_bitcmp0_b32 s2, 0', 's_cselect_b32 s66, s69, 0x40000000', 's_cselect_b32 s70, 0, 0x40000000', 's_cselect_b32 s71, s6, 0x40000000']
    WR2 = 152

    def gather(p0_, sregs, GR, GP):
        rd, out = [], []
        for ch in range(4):
            base = 180 + (ch >> 1)
            rd.append(f'ds_read2st64_b32 v[{GR + 2 * ch}:{GR + 2 * ch + 1}], v{base} offset0:{16 * (ch & 1) + 4 * p0_} offset1:{16 * (ch & 1) + 4 * p0_ + 4}')
        for p in range(2):
            g = GP + 4 * p
            out.append(f'v_perm_b32 v{g}, v{GR + 2 + p}, v{GR + p}, s74')
            out.append(f'v_perm_b32 v{g + 1}, v{GR + 6 + p}, v{GR + 4 + p}, s74')
            out.append(f'v_perm_b32 v{g + 2}, v{GR + 2 + p}, v{GR + p}, s75')
            out.append(f'v_perm_b32 v{g + 3}, v{GR + 6 + p}, v{GR + 4 + p}, s75')
            out.append(f'buffer_store_dwordx4 v[{g}:{g + 3}], v182, {XBR}, s{sregs[p]} offen sc1')
        return rd, out

    fbload = f'buffer_load_dword v249, v248, {WSR}, s6 offen sc1'
    PY = YR[0]
    YM = 16

    GM = 48

    def y_setup(regs=True):
        for p in range(4):
            a(f's_mov_b64 s[{YM + 2 * p}:{YM + 2 * p + 1}], -1')
            if regs:
                a(f'v_mov_b32 v{PY + 4 * p}, -1')
        a('s_lshl_b32 s24, s3, 15')
        for p in range(1, 4):
            a(f's_add_u32 s{24 + p}, s24, {8192 * p}')
        a('s_mov_b64 s[0:1], -1')

    def fb_check():
        lab = a.newlabel('fbk')
        a('s_cmp_eq_u32 s0, 0')
        a(f's_cbranch_scc1 {lab}')
        a('v_cmp_ne_u32 s[0:1], s8, v249')
        for p in range(4):
            a(f's_lshr_b32 s9, s0, {8 * p}')
            a(f'v_and_b32 v250, s9, v{VBIT}')
            a(f'v_cmp_eq_u32 s[{GM + 2 * p}:{GM + 2 * p + 1}], 0, v250')
        a(f'{lab}:')

    def y_issue():
        lab = a.newlabel('yf')
        a('s_mov_b32 exec_lo, s0')
        a('s_mov_b32 exec_hi, 0')
        a(f's_cbranch_execz {lab}')
        a(fbload)
        a(f'{lab}:')
        for p in range(4):
            lab = a.newlabel('yi')
            a(f's_and_b64 exec, s[{YM + 2 * p}:{YM + 2 * p + 1}], s[{GM + 2 * p}:{GM + 2 * p + 1}]')
            a(f's_cbranch_execz {lab}')
            a(f'buffer_load_dwordx4 v[{PY + 4 * p}:{PY + 4 * p + 3}], v251, {XBR}, s{24 + p} offen sc1')
            a(f'{lab}:')
        a('s_mov_b64 exec, -1')

    def y_check():
        a('s_waitcnt vmcnt(0)')
        fb_check()
        for p in range(4):
            a(f'v_max3_u32 v250, v{PY + 4 * p}, v{PY + 4 * p + 1}, v{PY + 4 * p + 2}')
            a(f'v_max_u32 v250, v250, v{PY + 4 * p + 3}')
            a(f'v_cmp_eq_u32 s[{YM + 2 * p}:{YM + 2 * p + 1}], -1, v250')
        a(f's_or_b64 s[28:29], s[{YM}:{YM + 1}], s[{YM + 2}:{YM + 3}]')
        a(f's_or_b64 s[30:31], s[{YM + 4}:{YM + 5}], s[{YM + 6}:{YM + 7}]')
        a('s_or_b64 s[28:29], s[28:29], s[30:31]')

    AC = [116, 122]
    ST = [128, 132]
    TY = 68

    def prep_a():
        lds_spin(a.newlabel('xr'), 12, 8, 3)
        RX, RW = 76, 92
        for r in range(2):
            for p in range(4):
                a(f'ds_read_b64 v[{RX + 8 * r + 2 * p}:{RX + 8 * r + 2 * p + 1}], v{VXA} offset:{512 * p + RS * r}')
        for p in range(4):
            a(f'ds_read_b64 v[{RW + 2 * p}:{RW + 2 * p + 1}], v{VWA} offset:{512 * p}')
        for i in range(0, 12, 2):
            a(f'v_mov_b64 v[{AC[0] + i}:{AC[0] + i + 1}], 0')
        a('s_mov_b32 s72, 0')
        for r in range(2):
            a(f's_waitcnt lgkmcnt({8 - 4 * r})')
            for i in range(8):
                unpack(XP[r] + 2 * i, XP[r] + 2 * i + 1, RX + 8 * r + i)
        a('s_waitcnt lgkmcnt(0)')
        for i in range(8):
            unpack(WF + 2 * i, WF + 2 * i + 1, RW + i)

    def prep_b():
        lds_spin(a.newlabel('xs'), 28, 4, 3)
        for r in range(2):
            a(f'ds_read_b128 v[{ST[r]}:{ST[r] + 3}], v{VSA} offset:{16 * r}')
        a(f'ds_read_b32 v3, v{VC} offset:{L_SW - L_CNT}')
        for r in range(2):
            a(f's_waitcnt lgkmcnt({2 - r})')
            for i in range(8):
                pk('fma', N[r] + 2 * i, XP[r] + 2 * i, ST[r] + 2, ST[r])
        a('s_waitcnt lgkmcnt(0)')
        a('v_readfirstlane_b32 s71, v3')
        stamp('lnx')

    def y_fold():
        for p in range(4):
            lab = a.newlabel('yd')
            a(f's_bitcmp1_b32 s72, {p}')
            a(f's_cbranch_scc1 {lab}')
            a(f's_cmp_eq_u64 s[{YM + 2 * p}:{YM + 2 * p + 1}], 0')
            a(f's_cbranch_scc0 {lab}')
            a(f's_bitset1_b32 s72, {p}')
            for i in range(4):
                unpack(TY + 2 * i, TY + 2 * i + 1, PY + 4 * p + i)
            for i in range(4):
                e = XP[i >> 1] + 4 * p + 2 * (i & 1)
                pk('fma', e, TY + 2 * i, N[i >> 1] + 4 * p + 2 * (i & 1), e)
            for k in range(2):
                for r in range(2):
                    e = XP[r] + 4 * p + 2 * k
                    pk('add', AC[r], AC[r], e)
                    pk('fma', AC[r] + 2, e, e, AC[r] + 2)
                    pk('fma', AC[r] + 4, e, WF + 4 * p + 2 * k, AC[r] + 4)
            a(f'{lab}:')

    def spread(pairs):
        out, left = [], list(pairs)
        while left:
            cnt = {}
            for q in left:
                cnt[q[0]] = cnt.get(q[0], 0) + 1
            recent = [q[0] for q in out[-2:]]
            cand = [q for q in left if q[0] not in recent] or [q for q in left if q[0] != recent[-1]] or left
            mx = max(cnt[q[0]] for q in cand)
            pick = cand[0] if 2 * mx <= len(left) - 1 else [q for q in cand if cnt[q[0]] == mx][0]
            out.append(pick)
            left.remove(pick)
        return out

    def stage_reads(st):
        sa, sb = FA_[st & 1], FB_[st & 1]
        if st < 8:
            return readsB(sb, st)[:4] + readsA(sa, st)
        out = []
        for hf in range(2):
            c = 2 * (st - 8) + hf
            out += readsB(sb + 16 * hf - 16, c)[4:] + readsA(sa + 16 * hf, c)[:8]
        return out

    NST = 12
    for st in range(NST):
        sa, sb = FA_[st & 1], FB_[st & 1]
        a('s_waitcnt lgkmcnt(0)')
        if st == 7:
            a('v_readfirstlane_b32 s60, v164')
            a('s_cmp_ge_u32 s60, 4')
            a('s_cbranch_scc1 uhi_go')
            lds_spin('uhi', 0, 4, 164)
            stamp('uhi')
        if st == FLC and FILLBY:
            a('s_waitcnt vmcnt(0)')
            a('s_mov_b64 exec, 1')
            a(f'ds_add_rtn_u32 v12, v{VC}, v{V1} offset:4')
            a(f'ds_add_u32 v{VC}, v{V1} offset:8')
            a('s_mov_b64 exec, -1')
            stamp('fillB')
        if st == FLC + 1 and FILLBY:
            a('s_mov_b64 exec, 1')
            a('v_cmp_eq_u32 vcc, 3, v12')
            a('v_cndmask_b32 v14, -16, v14, vcc')
            a(f'buffer_store_dword v13, v14, {WSR}, s7 offen sc1')
            a('s_mov_b64 exec, -1')
        fill = stage_reads(st + 1) if st + 1 < NST else []
        if st == 6:
            fill = fill + [f'ds_read_b32 v164, v{VC} offset:0']
        if st == FBC:
            fill = [f'ds_write_b32 v{VC}, v{V1} offset:24'] + fill
        if st == opt('fbc2', 10):
            fill = [fbload.replace('s6 ', 's71 ')] + fill
        if st == opt('fst', -1):
            assert st >= 1
            fill = [f'buffer_store_dwordx4 v[240:243], v182, {XBR}, s{62 + q} offen sc1' for q in range(4)] + fill
        if st == 0:
            fill = fill + gsetup[:12]
        if st == 1:
            for l in gsetup[12:]:
                a(l)
        if st in (8, 9):
            for w in (2 * (st - 8), 2 * (st - 8) + 1):
                fill = fill + ystage(w)
        if st < 8:
            pairs = [(n + z, sa + 4 * n, sb + 4 * z) for n in range(8) for z in range(min(4, 8 - n))]
            if st == 0:
                pairs = [(z, 168, sb + 4 * z) for z in range(4)] + pairs
        else:
            pairs = []
            for hf in range(2):
                pairs += [(n + z, sa + 16 * hf + 4 * n, sb + 16 * hf + 4 * (z - 4)) for n in range(4) for z in range(4, 8 - n)]
            if st == 8:
                pairs = [(z, 168, sb + 4 * (z - 4)) for z in range(4, 8)] + pairs
        order = spread(pairs)
        seen = set() if st == 0 else set(range(8))
        last = {q[0]: i for i, q in enumerate(order)}
        pend = []
        nper = -(-len(fill) // (len(order) - (4 if st >= 7 else 0)))
        for i, (w, A, B) in enumerate(order):
            mfma(w, A, B, w not in seen)
            seen.add(w)
            for _ in range(nper):
                if fill:
                    a(fill.pop(0))
            if st == NST - 1:
                if last[w] == i:
                    pend.append([w, 0])
                for q in pend:
                    q[1] += 1
                if pend and pend[0][1] > 3:
                    for l in ystage(pend.pop(0)[0]):
                        a(l)
        assert not fill
    for w0, _ in pend:
        for l in ystage(w0):
            a(l)
    stamp('s1end')
    if opt('cprio', 1):
        a('s_setprio 2')
    lds_inc(8)
    lds_spin('c2', 8, 8, 166)
    if GXL and DWHO:
        a('s_and_b32 s60, s2, 1')
        a('s_cmp_lt_u32 s3, 112')
        a('s_cselect_b32 s60, s60, 0')
        a('s_cmp_eq_u32 s60, 0')
        a('s_cbranch_scc1 ib_go')
        lds_spin('ib', 28, 4, 166)
    (r0, o0), (r1, o1) = gather(0, (62, 63), 184, 196), gather(2, (64, 65), 164, 204)
    for l in r0 + r1 + ['s_waitcnt lgkmcnt(4)'] + o0 + ['s_waitcnt lgkmcnt(0)'] + o1:
        a(l)
    stamp('yst')
    if opt('cprio', 1):
        a('s_setprio 0')
    lds_inc(8)
    a('s_bitcmp0_b32 s2, 0')
    a('s_cbranch_scc0 conv_ffn')
    a('s_waitcnt vmcnt(4)')
    y_setup()
    fb_check()
    y_issue()
    prep_a()
    prep_b()
    a('s_branch rows')

    a('helper:')
    for q in range(2):
        a(f's_waitcnt vmcnt({1 - q})')
        a(f'ds_write_b128 v165, v[{UP + 4 * q}:{UP + 4 * q + 3}] offset:{256 - 256 * q}')
    lds_inc(0)
    stamp('u0')
    if FILLBY == 0:
        lds_spin('uw', UWOFF, 4, 28)
        y_fill()

    def fb_publish():
        if FILLBY:
            return
        a('s_mov_b64 exec, 1')
        a(f'ds_add_rtn_u32 v12, v{VC}, v{V1} offset:4')
        a(f'ds_add_u32 v{VC}, v{V1} offset:8')
        a('s_waitcnt lgkmcnt(0)')
        a('v_cmp_eq_u32 vcc, 3, v12')
        a('v_cndmask_b32 v14, -16, v14, vcc')
        a(f'buffer_store_dword v13, v14, {WSR}, s7 offen sc1')
        a('s_mov_b64 exec, -1')
        stamp('fillB')
    if FILLBY:
        lds_spin('uw', UWOFF, 4, 28)
    a('s_lshl_b32 s61, s3, 12')
    a('s_bitcmp0_b32 s2, 0')
    a('s_cbranch_scc0 helper_ffn')
    a(f's_add_u32 s62, s61, {WS_CAND}')
    a(f's_add_u32 s63, s61, {WS_PART}')
    a(f's_add_u32 s79, s61, {WS_GX}')
    DW = 156
    DSP = opt('dsp', 1)

    def d_base():
        if DSP:
            a('s_lshr_b32 s78, s3, 4')
            a('s_lshl_b32 s78, s78, 20')
            a('s_and_b32 s60, s3, 15')
            a('s_lshl_b32 s60, s60, 14')
            a('s_add_u32 s78, s78, s60')
        else:
            a('s_lshl_b32 s78, s3, 16')

    def d_list(DW):
        return [[f'buffer_load_dwordx2 v[{DW + 2 * r}:{DW + 2 * r + 1}], v253, s[{S_D}:{S_D + 3}], s78 offen offset:{(r & 1) * 2048} nt']
                + ([f's_add_u32 s78, s78, {4096 + (262144 - 16384 if DSP and r % 8 == 7 else 0)}'] if r & 1 else []) for r in range(32)]
    d_base()
    dl = d_list(DW)
    XH, WH = 68, 100
    stamp('xiss')
    a('s_lshl_b32 s60, s3, 15')
    a('s_lshl_b32 s61, s13, 13')
    a('s_add_u32 s60, s60, s61')
    a('s_add_u32 s61, s60, 4096')
    for i in range(8):
        a(f'buffer_load_dwordx4 v[{XH + 4 * i}:{XH + 4 * i + 3}], v2, s[{S_Q}:{S_Q + 3}], s{60 + (i >> 2)} offen offset:{1024 * (i & 3)} nt')
    for i in range(2):
        a(f'buffer_load_dwordx4 v[{WH + 4 * i}:{WH + 4 * i + 3}], v2, s[{S_WR}:{S_WR + 3}], 0 offen offset:{1024 * i}')
    if not FILLBY:
        a('s_waitcnt vmcnt(10)')
        fb_publish()
    a(f'buffer_store_dwordx4 v[240:243], v237, {WSR}, s62 offen sc1')
    a(f'buffer_store_dwordx4 v[240:243], v237, {WSR}, s63 offen sc1')
    a(f'buffer_store_dwordx4 v[240:243], v237, {WSR}, s79 offen sc1')
    NL = 3 + (0 if FILLBY else 1)
    if GXL and not DWHO:
        a(f's_add_u32 s60, s79, {WS_GX2 - WS_GX}')
        a(f'buffer_store_dwordx4 v[240:243], v237, {WSR}, s60 offen')
        NL += 1
    a('s_mov_b32 s72, 0x3f803f80')
    a('s_mov_b32 s73, 0x3a800000')
    a('s_lshl_b32 s6, s12, 10')
    a(f's_add_u32 s6, s6, {WS_FB}')
    y_setup(False)
    XLATE = opt('xlate', 1)

    def x_to_lds(waits):
        for r in range(4):
            if waits:
                a(f's_waitcnt vmcnt({NL + 2 + 6 - 2 * r})')
            for hf in range(2):
                a(f'ds_write_b128 v{VRA}, v[{XH + 8 * r + 4 * hf}:{XH + 8 * r + 4 * hf + 3}] offset:{RS * r + 1024 * hf}')
        if waits:
            a(f's_waitcnt vmcnt({NL})')
        for hf in range(2):
            a(f'ds_write_b128 v239, v[{WH + 4 * hf}:{WH + 4 * hf + 3}] offset:{1024 * hf}')
        lds_inc(12)
    if not XLATE:
        lds_spin('cp0', 12, 4, 28)
        x_to_lds(True)
    elif opt('dafterx', 1):
        a(f's_waitcnt vmcnt({NL})')
    stamp('xarr')
    lds_spin('late', 24, 1, 3, sleep=LSLEEP)
    a(fbload)
    if DYN:
        a('s_memrealtime s[60:61]')
        a('s_waitcnt lgkmcnt(0)')
        a('s_sub_u32 s60, s60, s4')
        a(f's_cmp_lt_u32 s60, {DYN}')
        a('s_cselect_b32 s5, 1, 0')
        a('s_cbranch_scc1 d_early')
        a('s_waitcnt vmcnt(0)')
        a('s_branch d_early_done')
        a('d_early:')
    for r in range(DEARLY):
        for l in dl[r]:
            a(l)
    stamp('dearly')
    a(f's_waitcnt vmcnt({DEARLY})')
    a('d_early_done:')
    S1, S2, SW = 36, 40, 44

    def stats_a():
        for i in range(8):
            for r in range(4):
                x = XH + 8 * r + i
                a(f'v_dot2_f32_bf16 v{S1 + r}, v{x}, s72, {"0" if i == 0 else "v%d" % (S1 + r)}')
                a(f'v_dot2_f32_bf16 v{S2 + r}, v{x}, v{x}, {"0" if i == 0 else "v%d" % (S2 + r)}')
            a(f'v_dot2_f32_bf16 v{SW}, v{WH + i}, s72, {"0" if i == 0 else "v%d" % SW}')
    if opt('stearly', 1):
        lds_spin('mf0', 8, 8, 3)
        stats_a()
    lds_spin('mf1', 8, 8, 3)
    if XLATE:
        x_to_lds(False)
    fb_check()
    lds_spin('mf', 8, opt('mfcnt', 12), 3)
    y_issue()
    if not opt('stearly', 1):
        stats_a()
    for b in (S1, S2):
        a(f'v_permlane32_swap_b32 v{b}, v{b + 1}')
        a(f'v_permlane32_swap_b32 v{b + 2}, v{b + 3}')
    for b in (S1, S2):
        a(f'v_add_f32 v{b}, v{b}, v{b + 1}')
        a(f'v_add_f32 v{b + 2}, v{b + 2}, v{b + 3}')
    for b in (S1, S2):
        a(f'v_permlane16_swap_b32 v{b}, v{b + 2}')
    for b in (S1, S2):
        a(f'v_add_f32 v{b}, v{b}, v{b + 2}')
    for sh in (1, 2, 4, 8):
        for v in (S1, S2, SW):
            a(f'v_add_f32_dpp v{v}, v{v}, v{v} row_shr:{sh} row_mask:0xf bank_mask:0xf bound_ctrl:0')
    a(f'v_add_f32_dpp v{SW}, v{SW}, v{SW} row_bcast:15 row_mask:0xa bank_mask:0xf')
    a(f'v_mul_f32 v{S1}, s73, v{S1}')
    a(f'v_add_f32_dpp v{SW}, v{SW}, v{SW} row_bcast:31 row_mask:0xc bank_mask:0xf')
    a(f'v_mul_f32 v{S1 + 1}, v{S1}, v{S1}')
    a(f'v_fma_f32 v{S2}, v{S2}, s73, -v{S1 + 1}')
    a(f'v_max_f32 v{S2}, 0, v{S2}')
    rnd(S1, S1)
    rnd(S2, S2)
    a(f'v_add_f32 v{S2}, 0x3727c5ac, v{S2}')
    rnd(S2, S2)
    a(f'v_sqrt_f32 v{S2}, v{S2}')
    rnd(S2, S2)
    a(f'v_rcp_f32 v50, v{S2}')
    a(f'v_rcp_f32 v51, v{S2}')
    a(f'v_mul_f32 v48, -v{S1}, v50')
    a(f'v_mul_f32 v49, -v{S1}, v50')
    a('s_mov_b32 exec_lo, 0x80008000')
    a('s_mov_b32 exec_hi, 0x80008000')
    a('ds_write_b128 v244, v[48:51]')
    a('s_mov_b32 exec_lo, 0')
    a('s_mov_b32 exec_hi, 0x80000000')
    a(f'ds_write_b32 v{VC}, v{SW} offset:{L_SW - L_CNT}')
    lds_inc(28)
    stamp('pre')
    prep_a()
    prep_b()

    a('rows:')
    a('s_mov_b32 s61, 0')
    a('py_top:')
    y_check()
    a('s_cbranch_scc0 py_ok')
    a('s_add_u32 s61, s61, 1')
    a(f's_cmp_ge_u32 s61, {POLL_MAX}')
    a('s_cbranch_scc1 py_give')
    if YSLEEP:
        a(f's_sleep {YSLEEP}')
    y_issue()
    y_fold()
    a('s_branch py_top')
    a('py_give:')
    for p in range(4):
        a(f's_mov_b64 s[{YM + 2 * p}:{YM + 2 * p + 1}], 0')
    a('py_ok:')
    stamp('ypoll')
    y_fold()
    H = XP
    a('s_mov_b32 s73, 0x3a800000')
    Q = TY
    for r in range(2):
        for k in range(3):
            d = Q + k if r == 0 else Q + 4 + k
            a(f'v_add_f32 v{d}, v{AC[r] + 2 * k}, v{AC[r] + 2 * k + 1}')
    for k in range(3):
        a(f'v_permlane32_swap_b32 v{Q + k}, v{Q + 4 + k}')
    for k in range(3):
        a(f'v_add_f32 v{Q + k}, v{Q + k}, v{Q + 4 + k}')
    for k in range(3):
        a(f'v_add_f32_dpp v{Q + k}, v{Q + k}, v{Q + k} row_ror:8 row_mask:0xf bank_mask:0xf')
    a('s_mov_b32 exec_lo, 0x00ff00ff')
    a('s_mov_b32 exec_hi, 0x00ff00ff')
    a(f'ds_write_b128 v{VPW}, v[{Q}:{Q + 3}]')
    a('s_mov_b64 exec, -1')
    a('s_lshl_b32 s60, s3, 7')
    a(f's_add_u32 s60, s60, {WS_KEYS}')
    a('s_cmp_eq_u32 s12, 0')
    a('s_cselect_b32 s60, s60, 0x40000000')
    if opt('prio', 1):
        a('s_cbranch_scc0 no_prio')
        a('s_setprio 3')
        a('no_prio:')
    a('s_waitcnt lgkmcnt(0)')
    a('s_barrier')
    R = 76
    for i in range(4):
        a(f'ds_read_b128 v[{R + 4 * i}:{R + 4 * i + 3}], v{VPR} offset:{16 * i}')
    stamp('bar2')
    A = AC[0]
    a(f'v_mov_b32 v{A + 7}, s8')
    a(f'v_mov_b32 v{A + 5}, 0')
    a('s_waitcnt lgkmcnt(2)')
    pk('add', R, R, R + 4)
    a(f'v_add_f32 v{R + 2}, v{R + 2}, v{R + 6}')
    a('s_waitcnt lgkmcnt(0)')
    pk('add', R + 8, R + 8, R + 12)
    a(f'v_add_f32 v{R + 10}, v{R + 10}, v{R + 14}')
    pk('add', R, R, R + 8)
    a(f'v_add_f32 v{R + 2}, v{R + 2}, v{R + 10}')
    for sw in ('v_permlane32_swap_b32', 'v_permlane16_swap_b32'):
        for k in range(3):
            a(f'v_mov_b32 v{R + 4 + k}, v{R + k}')
        for k in range(3):
            a(f'{sw} v{R + k}, v{R + 4 + k}')
        pk('add', R, R, R + 4)
        a(f'v_add_f32 v{R + 2}, v{R + 2}, v{R + 6}')
    M, V = R + 8, R + 9
    a(f'v_mul_f32 v{R}, s73, v{R}')
    a(f'v_mul_f32 v{R + 3}, v{R}, v{R}')
    a(f'v_fma_f32 v{V}, v{R + 1}, s73, -v{R + 3}')
    rnd(M, R)
    a(f'v_max_f32 v{V}, 0, v{V}')
    rnd(V, V)
    a(f'v_fma_f32 v{R + 2}, -v{M}, s71, v{R + 2}')
    a(f'v_add_f32 v{V}, 0x3727c5ac, v{V}')
    rnd(V, V)
    a(f'v_sqrt_f32 v{V}, v{V}')
    rnd(V, V)
    a(f'v_rcp_f32 v{V}, v{V}')
    a(f'v_mul_f32 v{R + 2}, v{R + 2}, v{V}')
    rnd(R + 2, R + 2)
    a(f'v_ashrrev_i32 v{R + 3}, 31, v{R + 2}')
    a(f'v_and_b32 v{R + 3}, 0x7fff0000, v{R + 3}')
    a(f'v_xor_b32 v{R + 2}, 0x80000000, v{R + 2}')
    a(f'v_xor_b32 v{R + 2}, v{R + 2}, v{R + 3}')
    a(f'v_or_b32 v{A + 6}, v{R + 2}, v{VKL}')
    for sh in (1, 2, 4, 8):
        a(f'v_max_u32_dpp v{A + 6}, v{A + 6}, v{A + 6} row_ror:{sh} row_mask:0xf bank_mask:0xf')
    a('s_mov_b64 exec, 1')
    a(f'buffer_store_dwordx2 v[{A + 6}:{A + 7}], v{A + 5}, {WSR}, s60 offen sc1')
    a('s_mov_b64 exec, -1')
    stamp('key')
    if opt('prio', 1):
        a('s_setprio 0')
    a(f'v_readfirstlane_b32 s76, v{A + 6}')
    DMID = opt('dmid', 0)

    def down_loads(r0, r1):
        r1 = min(r1, 32)
        if r1 <= r0 or DWHO:
            return
        lab = a.newlabel('nodl')
        a('s_cmp_eq_u32 s14, 0')
        a(f's_cbranch_scc1 {lab}')
        for r in range(r0, r1):
            for l in dl[r]:
                a(l)
        a(f'{lab}:')
    if not DYN:
        down_loads(DEARLY, DEARLY + DMID)
    a(f'v_mul_f32 v{M}, -v{M}, v{V}')
    HS = [R + 12, R + 16]
    a(f'v_mov_b32_dpp v{R + 11}, v{V} row_ror:8 row_mask:0xf bank_mask:0xf')
    a(f'v_mov_b32_dpp v{R + 10}, v{M} row_ror:8 row_mask:0xf bank_mask:0xf')
    a('s_mov_b32 vcc_lo, 0xff00ff00')
    a('s_mov_b32 vcc_hi, 0xff00ff00')
    for k in range(4):
        own, oth = M + (k >> 1), R + 10 + (k >> 1)
        a(f'v_cndmask_b32 v{HS[0] + k}, v{own}, v{oth}, vcc')
        a(f'v_cndmask_b32 v{HS[1] + k}, v{oth}, v{own}, vcc')
    a('s_lshl_b32 s77, s3, 12')
    a(f's_add_u32 s77, s77, {WS_CAND}')
    a('s_not_b32 s64, s76')
    a('s_bfe_u32 s65, s64, 0x30001')
    a('s_mov_b32 s66, 0x01010101')
    a('s_lshl_b32 s66, s66, s65')
    a('s_mov_b32 s67, s66')
    OUTR = [124, 132]

    def cand_row(r):
        a('s_mov_b64 exec, s[66:67]')
        for i in range(8):
            pk('fma', N[0] + 2 * i, H[r] + 2 * i, HS[r] + 2, HS[r])
        for i in range(8):
            a(f'v_cvt_pk_bf16_f32 v{YR[0] + i}, v{N[0] + 2 * i}, v{N[0] + 2 * i + 1}')
        for p in range(4):
            a(f'buffer_store_dwordx2 v[{YR[0] + 2 * p}:{YR[0] + 2 * p + 1}], v{VG8}, {WSR}, s77 offen offset:{512 * p} sc1')
        for i in range(8):
            a(f'v_cvt_pk_bf16_f32 v{WF + i}, v{H[r] + 2 * i}, v{H[r] + 2 * i + 1}')

    a('s_bitcmp1_b32 s64, 0')
    a('s_cbranch_scc1 order10')
    cand_row(0)
    a('s_branch cand_done')
    a('order10:')
    cand_row(1)
    a('cand_done:')
    stamp('cand')
    for p in range(4):
        a(f'ds_write_b64 v{VG8}, v[{WF + 2 * p}:{WF + 2 * p + 1}] offset:{L_H + 512 * p}')
    a('s_mov_b64 exec, -1')
    assert not DYN
    D2 = DEARLY + DMID + opt('dmid2', 8)
    down_loads(DEARLY + DMID, D2)
    EXACT = opt('exact', 0)
    if not EXACT:
        for r in range(2):
            a(f'v_add_f32 v{HS[r] + 2}, 1.0, v{HS[r] + 2}')
            a(f'v_add_f32 v{HS[r] + 3}, 1.0, v{HS[r] + 3}')
    for r in range(2):
        if EXACT:
            for i in range(16):
                rnd(H[r] + i, H[r] + i)
            for i in range(8):
                pk('fma', N[0] + 2 * i, H[r] + 2 * i, HS[r] + 2, HS[r])
            for i in range(16):
                rnd(N[0] + i, N[0] + i)
            for i in range(8):
                pk('add', H[r] + 2 * i, H[r] + 2 * i, N[0] + 2 * i)
        else:
            for i in range(8):
                pk('fma', H[r] + 2 * i, H[r] + 2 * i, HS[r] + 2, HS[r])
        for i in range(8):
            a(f'v_cvt_pk_bf16_f32 v{N[1] + 8 * r + i}, v{H[r] + 2 * i}, v{H[r] + 2 * i + 1}')
        for p in range(4):
            a(f'ds_write_b64 v{VXA}, v[{N[1] + 8 * r + 2 * p}:{N[1] + 8 * r + 2 * p + 1}] offset:{512 * p + RS * r}')
    lds_inc(28)
    a('s_cmp_eq_u32 s14, 0')
    a('s_cbranch_scc0 ffn2')
    a('s_and_b32 s64, s64, 15')
    a(f's_mul_i32 s60, s64, {RS}')
    a(f's_add_u32 s60, s60, {L_YT}')
    a('v_add_u32 v3, s60, v2')
    a('s_lshl_b32 s65, s3, 4')
    a('s_add_u32 s64, s64, s65')
    a('s_lshl_b32 s65, s64, 11')
    lds_spin('o8', 28, 12, 68)
    a('s_cmp_eq_u32 s12, 0')
    a('s_cbranch_scc0 no_cand_h')
    for hf in range(2):
        a(f'ds_read_b128 v[{68 + 4 * hf}:{71 + 4 * hf}], v3 offset:{1024 * hf}')
    for hf in range(2):
        a(f'ds_read_b128 v[{WF + 4 * hf}:{WF + 4 * hf + 3}], v2 offset:{L_H + 1024 * hf}')
    for hf in range(2):
        a(f's_waitcnt lgkmcnt({3 - hf})')
        a(f'buffer_store_dwordx4 v[{68 + 4 * hf}:{71 + 4 * hf}], v2, {XBR}, s65 offen offset:{1024 * hf} sc1')
    a('s_waitcnt vmcnt(0) lgkmcnt(0)')
    a(f'buffer_store_dwordx4 v[{WF}:{WF + 3}], v2, {WSR}, s77 offen offset:2048 sc1')
    a(f'buffer_store_dwordx4 v[{WF + 4}:{WF + 7}], v2, {WSR}, s77 offen offset:3072 sc1')
    a('no_cand_h:')
    for i in range(8):
        a(f'ds_read_b128 v[{4 + 4 * i}:{7 + 4 * i}], v{VRA} offset:{RS * (i >> 1) + 1024 * (i & 1)}')
    OE, OM = opt('oearly', 0), opt('omid', 0)
    a('s_waitcnt lgkmcnt(0)')
    for r in range(4):
        if r == OE and OM and not DWHO:
            a('s_cmp_lt_u32 s3, 112')
            a('s_cbranch_scc0 dr_go')
            lds_spin('dr', 16, 4, 68)
        if r == OE + OM and not DWHO:
            a('s_cmp_lt_u32 s3, 112')
            a('s_cbranch_scc0 dp_go')
            lds_spin('dp', 16, 8, 68, sleep=2)
        a('s_cmp_eq_u32 s68, s64')
        a('s_cselect_b32 s60, 0x40000000, s69')
        for hf in range(2):
            i = 2 * r + hf
            a(f'buffer_store_dwordx4 v[{4 + 4 * i}:{7 + 4 * i}], v2, {XBR}, s60 offen offset:{1024 * hf} sc1')
        if r < 3:
            a('s_add_u32 s68, s68, 1')
            a('s_add_u32 s69, s69, 2048')
    a('s_branch main_fl')
    TT = 8

    def d_perm(DW, ps):
        for p in ps:
            for k in range(2):
                lo, hi = DW + 2 * (8 * (p >> 2) + (p & 3)) + k, DW + 2 * (8 * (p >> 2) + (p & 3) + 4) + k
                t = 48 + k
                a(f'v_perm_b32 v{t}, v{hi}, v{lo}, s74')
                a(f'v_perm_b32 v{hi}, v{hi}, v{lo}, s75')
                a(f'v_mov_b32 v{lo}, v{t}')

    def gx_loads():
        for q in range(4):
            a(f'buffer_load_dwordx4 v[{52 + 4 * q}:{52 + 4 * q + 3}], v2, {WSR}, s62 offen offset:{1024 * q} sc1')

    def ffn2(DW, issued):
        P = 52
        a('s_mov_b32 s61, 0')
        if issued:
            a('s_branch pg_chk')
        a('pg_again:')
        gx_loads()
        a('pg_chk:')
        a('s_waitcnt vmcnt(0)')
        sentinel_check(range(P, P + 16), P + 16)
        a('s_cbranch_vccz pg_ok')
        a('s_add_u32 s61, s61, 1')
        a(f's_cmp_ge_u32 s61, {POLL_MAX}')
        a('s_cbranch_scc1 pg_ok')
        a('s_mov_b64 exec, vcc')
        a(f's_cmp_lt_u32 s61, {GXL}')
        a('s_cselect_b32 s62, s63, s79')
        if opt('gxsleep', 1):
            a(f's_sleep {opt("gxsleep", 1)}')
        a('s_branch pg_again')
        a('pg_ok:')
        a('s_mov_b64 exec, -1')
        stamp('gxpoll')
        pk('add', P, P, P + 4)
        pk('add', P + 2, P + 2, P + 6)
        pk('add', P + 8, P + 8, P + 12)
        pk('add', P + 10, P + 10, P + 14)
        pk('add', P, P, P + 8)
        pk('add', P + 2, P + 2, P + 10)
        a(f'v_permlane32_swap_b32 v{P}, v{P + 2}')
        a(f'v_permlane32_swap_b32 v{P + 1}, v{P + 3}')
        pk('add', P, P, P + 2)
        a(f'v_permlane16_swap_b32 v{P}, v{P + 1}')
        a(f'v_add_f32 v{TT}, v{P}, v{P + 1}')
        rnd(TT, TT)
        a(f'v_mul_f32 v{TT + 2}, 0xbfb8aa3b, v{TT}')
        a(f'v_mov_b32_dpp v{TT + 3}, v{TT} row_ror:8 row_mask:0xf bank_mask:0xf')
        a(f'v_exp_f32 v{TT + 2}, v{TT + 2}')
        a(f'v_add_f32 v{TT + 2}, 1.0, v{TT + 2}')
        a(f'v_rcp_f32 v{TT + 2}, v{TT + 2}')
        a(f'v_mul_f32 v{TT}, v{TT}, v{TT + 2}')
        rnd(TT, TT)
        a(f'v_mul_f32 v{TT}, v{TT}, v{TT + 3}')
        a(f'v_mov_b32_dpp v{TT + 1}, v{TT} row_shr:1 row_mask:0xf bank_mask:0xf bound_ctrl:0')
        a(f'v_cvt_pk_bf16_f32 v{TT}, v{TT + 1}, v{TT}')
        for p in range(16):
            a(f'v_readlane_b32 s{S_K + p}, v{TT}, {16 * (p & 3) + 2 * (p >> 2) + 1}')
        AC2 = 24
        for p in range(16):
            for c in range(4):
                r = DW + 2 * (8 * (p >> 2) + (p & 3) + 4 * (c & 1)) + (c >> 1)
                h = AC2 + 4 * (p & 1) + c
                src2 = '0' if p < 2 else f'v{h}'
                a(f'v_dot2_f32_bf16 v{h}, v{r}, s{S_K + p}, {src2}')
        pk('add', AC2, AC2, AC2 + 4)
        pk('add', AC2 + 2, AC2 + 2, AC2 + 6)
        a(f'buffer_store_dwordx4 v[{AC2}:{AC2 + 3}], v237, {WSR}, s77 offen sc1')
        stamp('pst')

    a('ffn2:')
    if DWHO:
        a('s_branch main_fl')
    else:
        a('s_cmp_lt_u32 s3, 112')
        a('s_cbranch_scc0 main_fl')
        for r in range(min(D2, 32), 32):
            for l in dl[r]:
                a(l)
        a('s_lshl_b32 s77, s3, 12')
        a(f's_add_u32 s77, s77, {WS_PART}')
        a(f's_add_u32 s63, s79, {WS_GX2 - WS_GX}')
        a(f's_mov_b32 s62, s{63 if GXL else 79}')
        for aa in range(4):
            a(f's_waitcnt vmcnt({24 - 8 * aa})')
            if aa == 3:
                lds_inc(16)
                stamp('dready')
                gx_loads()
            d_perm(DW, range(4 * aa, 4 * aa + 4))
        ffn2(DW, True)
        lds_inc(16)
        a('s_branch main_fl')

    a('helper_ffn:')
    a('s_cmp_lt_u32 s3, 112')
    a('s_cbranch_scc1 ffn_go')
    a('s_waitcnt vmcnt(0)')
    fb_publish()
    a('s_branch red_wait')
    a('ffn_go:')
    GW = 64
    a('s_and_b32 s76, s3, 15')
    a('s_lshl_b32 s77, s76, 2')
    a('s_add_u32 s77, s77, s13')
    a(f's_mul_i32 s77, s77, {16 * 7168}')
    a('s_lshr_b32 s78, s3, 4')
    a('s_lshl_b32 s60, s78, 10')
    a('s_add_u32 s77, s77, s60')
    a('s_lshl_b32 s78, s78, 2')
    a('s_add_u32 s78, s78, s13')
    a('s_lshl_b32 s78, s78, 14')
    a('s_lshl_b32 s60, s76, 8')
    a('s_add_u32 s78, s78, s60')
    a(f's_add_u32 s78, s78, {WS_GX}')
    a(f's_add_u32 s79, s78, {WS_GX2 - WS_GX}')
    if GXL and DWHO:
        a(f's_add_u32 s60, s61, {WS_GX2}')
        a(f'buffer_store_dwordx4 v[240:243], v237, {WSR}, s60 offen')
    assert DSP
    stamp('uw')
    steps = []
    for i in range(16):
        for m, sr in ((0, S_G), (1, S_U)):
            r = GW + 64 * m + 4 * i
            steps.append([f'buffer_load_dwordx4 v[{r}:{r + 3}], v2, s[{sr}:{sr + 3}], s77 offen nt'])
        steps[-1].append('s_add_u32 s77, s77, 7168')
    FBK = opt('fbk', 2)
    for k, stp in enumerate(steps):
        if k == PAUSE:
            stamp('pause')
            lds_spin('late2', 24, 1, 28, sleep=LSLEEP)
            lds_spin('yw', 8, 12, 28)
            if opt('rsleep', 0):
                a(f's_sleep {opt("rsleep", 0)}')
        for l in stp:
            a(l)
        if k >= DEPTH - 1 and k < PAUSE:
            a(f's_waitcnt vmcnt({DEPTH - 1})')
        if k == DEPTH - 1 and GXL and DWHO:
            lds_inc(28)
        if k == FBK - 1 and not FILLBY:
            a(f's_waitcnt vmcnt({FBK})')
            fb_publish()
    assert DEPTH <= PAUSE < 32
    if DWHO:
        lds_inc(16)
    for i2 in range(8):
        a(f's_waitcnt vmcnt({max(0, min(63, 32 - 4 * (i2 + 1)))})')
        for m in range(2):
            for k in range(4):
                lo, hi = GW + 64 * m + 8 * i2 + k, GW + 64 * m + 8 * i2 + 4 + k
                t = 32 + (k & 3)
                a(f'v_perm_b32 v{t}, v{hi}, v{lo}, s74')
                a(f'v_perm_b32 v{hi}, v{hi}, v{lo}, s75')
                a(f'v_mov_b32 v{lo}, v{t}')
    stamp('wready')
    a('s_cmp_eq_u32 s13, 0')
    a('s_cbranch_scc0 f2_bar')
    a('v_lshlrev_b32 v6, 2, v1')
    a(f'v_add_u32 v7, {L_X}, v6')
    if opt('kdelay', 0):
        a(f's_sleep {opt("kdelay", 0)}')
    key_poll(65)
    stamp('gkey')
    a('s_and_b32 s66, s65, 0xffff')
    a('s_sub_u32 s66, 2047, s66')
    a('s_lshr_b32 s66, s66, 4')
    a('s_lshl_b32 s66, s66, 12')
    a('s_lshl_b32 s60, s76, 7')
    a('s_add_u32 s66, s66, s60')
    a(f's_add_u32 s66, s66, {WS_CAND}')
    a('s_mov_b32 exec_hi, 0')
    retry_loop('px', [f'buffer_load_dword v8, v6, {WSR}, s66 offen sc1'], lambda: a('v_cmp_eq_u32 vcc, -1, v8'), sleep=1, mask='0xffffffff')
    a('ds_write_b32 v7, v8')
    a('s_mov_b64 exec, -1')
    a('s_waitcnt lgkmcnt(0)')
    a('f2_bar:')
    a('s_barrier')
    XS, AC = 36, 44
    stamp('ffn0')
    a(f'ds_read_b128 v[{XS}:{XS + 3}], v201')
    a(f'ds_read_b128 v[{XS + 4}:{XS + 7}], v201 offset:16')
    for p in range(8):
        if p % 4 == 0:
            a(f's_waitcnt lgkmcnt({1 - p // 4})')
        for m in range(2):
            for c in range(8):
                r = GW + 64 * m + 8 * p + 4 * (c & 1) + (c >> 1)
                i = AC + 8 * m + c
                src2 = '0' if p == 0 else f'v{i}'
                a(f'v_dot2_f32_bf16 v{i}, v{r}, v{XS + p}, {src2}')
    for q in range(4):
        a(f'ds_write_b128 v203, v[{AC + 4 * q}:{AC + 4 * q + 3}] offset:{128 * (q >> 1) + 16 * (q & 1)}')
    a('s_waitcnt lgkmcnt(0)')
    a('s_barrier')
    for q in range(4):
        a(f'ds_read_b128 v[{8 + 4 * q}:{11 + 4 * q}], v205 offset:{16 * RP * q}')
    a('s_waitcnt lgkmcnt(2)')
    pk('add', 8, 8, 12)
    pk('add', 10, 10, 14)
    a('s_waitcnt lgkmcnt(0)')
    pk('add', 16, 16, 20)
    pk('add', 18, 18, 22)
    pk('add', 8, 8, 16)
    pk('add', 10, 10, 18)
    if GXL:
        a(f'buffer_store_dwordx4 v[8:11], v247, {WSR}, s79 offen')
    a(f'buffer_store_dwordx4 v[8:11], v247, {WSR}, s78 offen sc1')
    stamp('gxst')
    a('s_branch main_fl')

    a('conv_ffn:')
    a('s_cmp_lt_u32 s3, 112')
    a('s_cbranch_scc0 red_conv')
    if DWHO:
        DW2 = 80
        lds_spin('gu', 16, 4, 8)
        d_base()
        for stp in d_list(DW2):
            for l in stp:
                a(l)
        a('v_lshlrev_b32 v237, 1, v253')
        a('s_lshl_b32 s77, s3, 12')
        a(f's_add_u32 s79, s77, {WS_GX}')
        a(f's_add_u32 s77, s77, {WS_PART}')
        a(f's_add_u32 s63, s79, {WS_GX2 - WS_GX}')
        a(f's_mov_b32 s62, s{63 if GXL else 79}')
        for aa in range(4):
            a(f's_waitcnt vmcnt({24 - 8 * aa})')
            d_perm(DW2, range(4 * aa, 4 * aa + 4))
        stamp('dready')
        a('s_barrier')
        a('s_barrier')
        ffn2(DW2, False)
    a('s_branch main_fl')

    a('red_conv:')
    a('s_cmp_eq_u32 s12, 0')
    a('s_cbranch_scc0 red_wait')
    if opt('rdelay', 0):
        a(f's_sleep {opt("rdelay", 0)}')
    key_poll(71)
    a('s_sub_u32 s76, s3, 112')
    a('s_and_b32 s72, s71, 0xffff')
    a('s_sub_u32 s72, 2047, s72')
    a('s_lshr_b32 s73, s72, 4')
    a('s_lshl_b32 s73, s73, 12')
    a('s_lshl_b32 s60, s76, 7')
    a('s_add_u32 s73, s73, s60')
    a(f's_add_u32 s73, s73, {WS_CAND}')
    a('s_lshl_b32 s72, s72, 11')
    a('s_add_u32 s72, s72, s60')
    a('v_and_b32 v6, 31, v0')
    a('v_lshlrev_b32 v6, 2, v6')
    a('s_cmp_eq_u32 s76, 0')
    a(f's_cselect_b32 s60, {WS_EPOCH}, 0x40000000')
    a('v_mov_b32 v49, s8')
    a('v_mov_b32 v50, 0')
    a('s_mov_b64 exec, 1')
    a(f'buffer_store_dword v49, v50, {WSR}, s60 offen')
    a('s_mov_b64 exec, -1')
    loads = [f'buffer_load_dword v{40 + p}, v6, {WSR}, s73 offen offset:{2048 * p} sc1' for p in range(2)]
    poll_loop('ph', loads, (40, 41), 42)
    a('s_and_b32 s60, s71, 0xffff0000')
    a('s_xor_b32 s61, s60, 0x80000000')
    a('s_xor_b32 s62, s60, 0xffff0000')
    a('s_cmp_lt_i32 s60, 0')
    a('s_cselect_b32 s60, s61, s62')
    a('v_mov_b32 v42, 0xbfb8aa3b')
    a('v_mul_f32 v42, s60, v42')
    a('v_exp_f32 v42, v42')
    a('v_add_f32 v42, 1.0, v42')
    a('v_rcp_f32 v42, v42')
    rnd(42, 42)
    unpack(44, 45, 40)
    unpack(46, 47, 41)
    a('red_wait:')
    a(f's_add_u32 s{S_G}, s{S_WS}, {WS_PART}')
    a(f's_addc_u32 s{S_G + 1}, s{S_WS + 1}, 0')
    a(f's_mov_b32 s{S_G + 2}, {112 * 4096}')
    a('s_sub_u32 s76, s3, 112')
    a('v_and_b32 v4, 15, v0')
    a('v_lshrrev_b32 v5, 4, v0')
    a('v_lshlrev_b32 v5, 12, v5')
    a('v_lshl_add_u32 v5, v4, 4, v5')
    a('s_lshl_b32 s64, s76, 8')
    a(f's_add_u32 s65, s64, {32 * 4096}')
    a(f's_add_u32 s66, s64, {64 * 4096}')
    a(f's_add_u32 s67, s64, {96 * 4096}')
    a('v_lshrrev_b32 v7, 4, v1')
    a('v_lshl_add_u32 v7, v4, 2, v7')
    a('v_lshlrev_b32 v7, 2, v7')
    a('s_lshl_b32 s60, s12, 8')
    a(f's_add_u32 s60, s60, {L_RED}')
    a('v_add_u32 v7, s60, v7')
    a('v_lshlrev_b32 v48, 3, v1')
    a(f'v_add_u32 v48, {L_RED}, v48')
    a('s_barrier')
    a(f's_sleep {opt("finsleep", 30)}')
    P = 8
    loads = [f'buffer_load_dwordx4 v[{P + 4 * r}:{P + 4 * r + 3}], v5, s[{S_G}:{S_G + 3}], s{64 + r} offen sc1' for r in range(4)]
    poll_loop('pp', loads, range(P, P + 16), 24)
    stamp('ppoll')
    pk('add', P, P, P + 4)
    pk('add', P + 2, P + 2, P + 6)
    pk('add', P + 8, P + 8, P + 12)
    pk('add', P + 10, P + 10, P + 14)
    pk('add', P, P, P + 8)
    pk('add', P + 2, P + 2, P + 10)
    a(f'v_permlane32_swap_b32 v{P}, v{P + 2}')
    a(f'v_permlane32_swap_b32 v{P + 1}, v{P + 3}')
    pk('add', P, P, P + 2)
    a(f'v_permlane16_swap_b32 v{P}, v{P + 1}')
    a(f'v_add_f32 v{P}, v{P}, v{P + 1}')
    a(f'ds_write_b32 v7, v{P}')
    a('s_waitcnt lgkmcnt(0)')
    a('s_barrier')
    a('s_cmp_eq_u32 s12, 0')
    a('s_cbranch_scc0 main_fl')
    a('s_mov_b32 exec_hi, 0')
    for q in range(8):
        a(f'ds_read_b64 v[{P + 2 * q}:{P + 2 * q + 1}], v48 offset:{256 * q}')
    a('s_waitcnt lgkmcnt(0)')
    for q in range(4):
        pk('add', P + 4 * q, P + 4 * q, P + 4 * q + 2)
    pk('add', P, P, P + 4)
    pk('add', P + 8, P + 8, P + 12)
    pk('add', P, P, P + 8)
    rnd(P, P)
    rnd(P + 1, P + 1)
    a(f'v_mul_f32 v{P}, v{P}, v42')
    a(f'v_mul_f32 v{P + 1}, v{P + 1}, v42')
    rnd(P, P)
    rnd(P + 1, P + 1)
    pk('add', P, P, 44)
    rnd(P, P)
    rnd(P + 1, P + 1)
    pk('add', P, P, 46)
    a(f'v_cvt_pk_bf16_f32 v{P}, v{P}, v{P + 1}')
    a(f'buffer_store_dword v{P}, v6, {XBR}, s72 offen')
    a('main_fl:')
    stamp_flush(S_WS, 7, 0)
    a('main_done:')
    a('s_endpgm')
    return kernel_desc(KN, 256, 102 if STAMPS else 80)


launch = '; @launch grid=(256,1,1) block=(512,1,1) lds=%d\n' % MAIN_LDS
finish(launch, [k_main()])
```

```python
from common import *
import common
STAMPS = common.STAMPS

WS_KEYS = 0
WS_EPOCH = 32 * 1024
WS_GX = 1536 * 1024
WS_FA = 128 * 1024
WS_FB = 192 * 1024
WS_FA2 = 64 * 1024
WS_CAND = 262144
WS_PART = 1 << 20
WS_GX2 = 6 << 20
WS_KV = 2 << 20
WS_SIZE = 7 << 20
WSOFF = opt('wsoff', 0) << 20
common.WS_STAMP -= WSOFF
POLL_MAX = 1 << 16
KN = NAME + '_kernel'

DEPTH = opt('depth', 7)
XPOS = opt('xpos', 4)
UWOFF = opt('uwoff', 0)
FLC = opt('flc', 3)
FBC = opt('fbc', 10)
YSLEEP = opt('ysleep', 1)
CODEPF = opt('codepf', 6)
DEARLY = opt('dearly', 0)
DWHO = opt('dwho', 0)
GXL = opt('gxl', 40)
DYN = opt('dyn', 0)
LSLEEP = opt('lsleep', 6)
FILLBY = opt('fillby', 1)
DUAL = opt('dual', 12)
KVS = '' if opt('l2kv', 0) else ' sc1'
KVL = {0: ' sc1', 1: ' sc0', 2: ''}[opt('kvl', 0)]
FAL = {0: ' sc1', 1: ' sc0', 2: ''}[opt('fal', 0)]
PAUSE = opt('pause', 20)

GS = 4160
UOFF = 4 * GS
CS = 21312
L_YL = 4 * CS
RS = 2064
L_YT = L_YL + 16384
L_P0 = L_YL
L_W = L_YT + 16 * RS
L_ST = L_W + 2048
L_PART = 0
PS = 272
RP = 272
L_H = 8192
L_CNT = L_ST + 272
L_GKEY = L_CNT + 28
L_SW = L_CNT + 32
L_X = L_CNT + 48
L_RED = L_X + 1024
MAIN_LDS = L_RED + 4096

S_K, S_V, S_SK, S_H, S_WS, S_Q, S_WR, S_OUT, S_G, S_U, S_D = 16, 20, 24, 28, 32, 36, 40, 44, 48, 52, 56
WSR = f's[{S_WS}:{S_WS + 3}]'
XBR = f's[{S_OUT}:{S_OUT + 3}]'
KVR = WSR
VC, V1 = 254, 255


def sentinel_check(regs, tmp):
    rs = list(regs)
    cur = rs.pop(0)
    while rs:
        if len(rs) >= 2:
            a(f'v_max3_u32 v{tmp}, v{cur}, v{rs[0]}, v{rs[1]}')
            rs = rs[2:]
        else:
            a(f'v_max_u32 v{tmp}, v{cur}, v{rs[0]}')
            rs = rs[1:]
        cur = tmp
    a(f'v_cmp_eq_u32 vcc, -1, v{cur}')


def retry_loop(name, loads, check, sleep=2, issued=False, mask='-1'):
    a('s_mov_b32 s61, 0')
    if issued:
        a(f's_branch {name}_chk')
    a(f'{name}_again:')
    for l in loads:
        a(l)
    a(f'{name}_chk:')
    a('s_waitcnt vmcnt(0)')
    check()
    a(f's_cbranch_vccz {name}_ok')
    a('s_add_u32 s61, s61, 1')
    a(f's_cmp_ge_u32 s61, {POLL_MAX}')
    a(f's_cbranch_scc1 {name}_ok')
    a('s_mov_b64 exec, vcc')
    a(f's_sleep {sleep}')
    a(f's_branch {name}_again')
    a(f'{name}_ok:')
    a(f's_mov_b64 exec, {mask}')


def poll_loop(name, loads, regs, tmp, sleep=2, issued=False):
    retry_loop(name, loads, lambda: sentinel_check(regs, tmp), sleep, issued)


def lds_spin(name, off, want, vt, sleep=1):
    a('s_mov_b32 s61, 0')
    a(f'{name}_spin:')
    a(f'ds_read_b32 v{vt}, v{VC} offset:{off}')
    a('s_add_u32 s61, s61, 1')
    a('s_waitcnt lgkmcnt(0)')
    a(f'v_readfirstlane_b32 s60, v{vt}')
    a(f's_cmp_ge_u32 s60, {want}')
    a(f's_cbranch_scc1 {name}_go')
    a(f's_cmp_ge_u32 s61, {1 << 22}')
    a(f's_cbranch_scc1 {name}_go')
    a(f's_sleep {sleep}')
    a(f's_branch {name}_spin')
    a(f'{name}_go:')


def lds_inc(off):
    a('s_mov_b64 exec, 1')
    a(f'ds_add_u32 v{VC}, v{V1} offset:{off}')
    a('s_mov_b64 exec, -1')


XP = [4, 20]
N = [36, 52]
T = [68, 84]
WF = 100
MV = [116, 120]
AA = [124, 132]
YR = [140, 148]
XR = 36
VG8, VXA, VWA, VSA, VKL, VPR, VPW, VRA, VBIT = range(228, 237)


def ln_x(xr, wr):
    for r in range(2):
        for i in range(8):
            unpack(XP[r] + 2 * i, XP[r] + 2 * i + 1, xr + 8 * r + i)
    for i in range(8):
        unpack(WF + 2 * i, WF + 2 * i + 1, wr + i)
    srcs = [(XP[0], T[0]), (XP[1], T[0] + 8), (WF, T[1])]
    for i in range(4):
        for (sx, t) in srcs:
            pk('add', t + 2 * i, sx + 4 * i, sx + 4 * i + 2)
    for (_, b) in srcs:
        pk('add', b, b, b + 2)
        pk('add', b + 4, b + 4, b + 6)
    for (_, b) in srcs:
        pk('add', b, b, b + 4)
    for (_, b) in srcs:
        a(f'v_add_f32 v{b}, v{b}, v{b + 1}')
    K = T[1] + 8
    a(f'v_mov_b32 v{K}, 0x3a800000')
    wave_reduce('v_add_f32', [b for _, b in srcs])
    a(f'v_readlane_b32 s60, v{T[0]}, 63')
    a(f'v_readlane_b32 s62, v{T[0] + 8}, 63')
    a(f'v_readlane_b32 s71, v{T[1]}, 63')
    for r in range(2):
        M, V = MV[r], MV[r] + 2
        a(f'v_mul_f32 v{V}, s{60 + 2 * r}, v{K}')
    for r in range(2):
        M, V = MV[r], MV[r] + 2
        rnd(M, V)
        rnd(M + 1, V)
        a(f'v_sub_f32 v{V}, v{V}, v{M}')
        a(f'v_readfirstlane_b32 s{72 + r}, v{M}')
    for r in range(2):
        for i in range(8):
            pk('add', XP[r] + 2 * i, XP[r] + 2 * i, MV[r], mods='neg_lo:[0,1] neg_hi:[0,1]')
    for i in range(8):
        for r in range(2):
            if i == 0:
                pk('mul', AA[r], XP[r], XP[r])
            else:
                pk('fma', AA[r], XP[r] + 2 * i, XP[r] + 2 * i, AA[r])
    for r in range(2):
        a(f'v_add_f32 v{AA[r]}, v{AA[r]}, v{AA[r] + 1}')
        a(f'v_mul_f32 v{MV[r] + 2}, v{MV[r] + 2}, v{MV[r] + 2}')
    wave_reduce('v_add_f32', AA)
    for r in range(2):
        a(f'v_readlane_b32 s{60 + 2 * r}, v{AA[r]}, 63')
    for step in range(8):
        for r in range(2):
            V = MV[r] + 2
            if step == 0:
                a(f'v_fma_f32 v{V}, s{60 + 2 * r}, v{K}, -v{V}')
            elif step in (1, 3, 5):
                rnd(V, V)
            elif step == 2:
                a(f'v_add_f32 v{V}, 0x3727c5ac, v{V}')
            elif step == 4:
                a(f'v_sqrt_f32 v{V}, v{V}')
            elif step == 6:
                a(f'v_rcp_f32 v{V + 1}, v{V}')
            else:
                a(f'v_rcp_f32 v{V}, v{V}')
    for r in range(2):
        for i in range(16):
            rnd(N[r] + i, XP[r] + i)
    for r in range(2):
        for i in range(8):
            pk('mul', N[r] + 2 * i, N[r] + 2 * i, MV[r] + 2)
    for r in range(2):
        for i in range(16):
            rnd(N[r] + i, N[r] + i)


def key_poll(dst):
    a('v_lshlrev_b32 v4, 7, v1')
    a(f's_mov_b32 s65, {WS_KEYS}')
    a(f's_mov_b32 s66, {WS_KEYS + 8192}')
    if opt('kcan', 1):
        a('s_lshl_b32 s62, s3, 7')
        a(f's_add_u32 s62, s62, {WS_KEYS + 4}')
        a('s_mov_b64 exec, 1')
        retry_loop(a.newlabel('kc'), [f'buffer_load_dword v8, v4, {WSR}, s62 offen sc1'], lambda: a('v_cmp_ne_u32 vcc, s8, v8'), sleep=opt('kcsleep', 2))
        stamp('kcan')
    loads = [f'buffer_load_dwordx2 v[{16 + 2 * p}:{17 + 2 * p}], v4, {WSR}, s{65 + p} offen sc1' for p in range(2)]

    def chk():
        a('v_xor_b32 v8, s8, v17')
        a('v_xor_b32 v9, s8, v19')
        a('v_max_u32 v12, v16, v18')
        a('v_or_b32 v8, v8, v9')
        a('v_cmp_ne_u32 vcc, 0, v8')
    retry_loop(a.newlabel('pk'), loads, chk, sleep=opt('ksleep', 2))
    wave_reduce('v_max_u32', 12)
    a(f'v_readlane_b32 s{dst}, v12, 63')


def k_main():
    kernel_begin(a, KN)
    a('s_cmp_ge_u32 s2, 256')
    a('s_cbranch_scc1 main_done')
    stamp_begin(0)
    if opt('dbg', 0):
        a('s_load_dwordx2 s[100:101], s[0:1], 96')
    for sr, off in ((S_WS, 104), (S_K, 8), (S_V, 16), (S_SK, 24), (S_H, 32), (10, 40), (S_Q, 0), (S_WR, 56), (S_OUT, 88), (S_G, 64), (S_U, 72), (S_D, 80)):
        a(f's_load_dwordx2 s[{sr}:{sr + 1}], s[0:1], {off}')
    if CODEPF:
        a('s_getpc_b64 s[4:5]')
        a('pc0:')
        a('s_mov_b32 s6, main_done-pc0')
        a('s_mov_b32 s7, 0x00020000')
        a('s_lshr_b32 s3, s2, 3')
        a(f's_mul_i32 s3, s3, {CODEPF * 128}')
        a('v_lshlrev_b32 v3, 7, v0')
        a(f'v_cmp_gt_u32 vcc, {CODEPF}, v0')
        a('s_and_saveexec_b64 s[60:61], vcc')
        a('s_cbranch_execz no_codepf')
        a('buffer_load_dword v252, v3, s[4:7], s3 offen')
        a('no_codepf:')
        a('s_mov_b64 exec, -1')
    a('s_lshr_b32 s5, s2, 4')
    a('s_and_b32 s4, s2, 7')
    a('s_lshl_b32 s4, s4, 1')
    a('s_bfe_u32 s6, s2, 0x10003')
    a('s_or_b32 s4, s4, s6')
    a('s_lshl_b32 s2, s4, 4')
    a('s_or_b32 s2, s2, s5')
    a('v_lshrrev_b32 v3, 6, v0')
    a('v_and_b32 v1, 63, v0')
    a('v_readfirstlane_b32 s12, v3')
    a('v_lshlrev_b32 v2, 4, v1')
    a(f'v_mov_b32 v{VC}, {L_CNT}')
    a(f'v_mov_b32 v{V1}, 1')
    for r in range(6):
        a(f'v_mov_b32 v{144 + r}, 0')
    for r in range(4):
        a(f'v_mov_b32 v{240 + r}, -1')
    a('s_cmp_eq_u32 s12, 0')
    a('s_cbranch_scc0 no_cnt_init')
    a('s_mov_b64 exec, 1')
    a(f'ds_write_b128 v{VC}, v[144:147]')
    a(f'ds_write_b128 v{VC}, v[144:147] offset:16')
    a('s_mov_b64 exec, -1')
    a('no_cnt_init:')
    for sr, n in ((S_WS, WS_SIZE), (S_K, MB4), (S_V, MB4), (S_SK, 8192), (S_H, 4096), (S_Q, MB4), (S_WR, 2048), (S_OUT, MB4),
                  (S_G, 1024 * 7168), (S_U, 1024 * 7168), (S_D, 3584 * 2048)):
        a(f's_mov_b32 s{sr + 2}, {n}')
        a(f's_mov_b32 s{sr + 3}, 0x00020000')
    a('s_and_b32 s13, s12, 3')
    if opt('gmix', 1):
        a('s_and_b32 s14, s12, 1')
        a('s_xor_b32 s4, s4, s14')
    a('s_lshr_b32 s14, s12, 2')
    a('s_lshl_b32 s15, s2, 2')
    a('s_add_u32 s15, s15, s13')
    a('s_lshr_b32 s3, s2, 1')
    a('v_and_b32 v4, 15, v1')
    a('v_lshrrev_b32 v5, 4, v1')
    a('v_and_b32 v10, 31, v1')
    a('v_lshrrev_b32 v11, 5, v1')
    a('v_lshrrev_b32 v6, 3, v1')
    a('v_lshlrev_b32 v8, 11, v6')
    a('v_lshlrev_b32 v6, 13, v6')
    a('v_and_b32 v7, 7, v1')
    a('v_lshl_add_u32 v6, v7, 4, v6')
    a('v_lshl_add_u32 v8, v7, 4, v8')
    a('s_lshl_b32 s62, s4, 17')
    a('s_lshl_b32 s63, s13, 11')
    a('s_add_u32 s62, s62, s63')
    a('s_lshl_b32 s63, s14, 21')
    a('s_add_u32 s62, s62, s63')
    a(f's_add_u32 s62, s62, {WS_KV}')
    a('s_lshl_b32 s63, s5, 7')
    a('s_add_u32 s62, s62, s63')
    a('s_add_u32 s63, s62, 0x10000')
    a('s_lshl_b32 s64, s12, 19')
    a('s_lshl_b32 s65, s5, 15')
    a('s_add_u32 s64, s64, s65')
    a('s_lshl_b32 s65, s4, 7')
    a('s_add_u32 s64, s64, s65')
    a('s_add_u32 s65, s64, 16384')
    a('s_sub_u32 s77, s64, 6144')
    a('s_cselect_b32 s77, 0x40000000, s77')
    a('s_lshl_b32 s79, s4, 9')
    a('v_lshlrev_b32 v9, 4, v10')
    a('s_lshl_b32 s67, s15, 12')
    a('s_lshl_b32 s70, s15, 1')
    a('s_and_b32 s70, s70, 0xfffffffc')
    a('s_lshl_b32 s68, s3, 4')
    a('s_lshl_b32 s69, s13, 2')
    a('s_add_u32 s68, s68, s69')
    a('s_lshl_b32 s69, s68, 11')
    a('s_mul_i32 s66, s12, 4608')
    a(f's_add_u32 s66, s66, {L_P0}')
    a(f's_mov_b32 s6, {WS_EPOCH}')
    a('s_mov_b32 m0, s66')
    a('s_waitcnt lgkmcnt(0)')
    stamp('karg')
    if WSOFF:
        a(f's_add_u32 s{S_WS}, s{S_WS}, {WSOFF}')
        a(f's_addc_u32 s{S_WS + 1}, s{S_WS + 1}, 0')
    a(f's_load_dword s8, s[{S_WS}:{S_WS + 1}], s6')
    a('s_load_dword s9, s[10:11], s70')
    KR, VR, SKR = 16, 28, 36

    GL = 96
    a('s_cmp_eq_u32 s14, 0')
    a('s_cbranch_scc1 ld_kv')
    a(f's_add_u32 s{S_H}, s{S_H}, s67')
    a(f's_addc_u32 s{S_H + 1}, s{S_H + 1}, 0')
    a('s_barrier')
    for i in range(4):
        a(f'buffer_load_dwordx4 v[{GL + 6 * i}:{GL + 6 * i + 3}], v2, s[{S_H}:{S_H + 3}], 0 offen offset:{1024 * i} nt')
    if opt('hipos', 0):
        a(f's_waitcnt vmcnt({4 - opt("hipos", 0)})')
    a('ld_kv:')
    a(f'buffer_load_dwordx4 v[{SKR}:{SKR + 3}], v9, s[{S_SK}:{S_SK + 3}], s79 offen')
    a('s_mov_b64 exec, 0xffffff')
    a(f'buffer_load_dwordx4 v8, s[{S_K}:{S_K + 3}], s77 offen nt lds')
    a('s_mov_b64 exec, -1')
    for (sr, so, lo) in ((S_K, 64, 384), (S_K, 65, 1408), (S_V, 64, 2432), (S_V, 65, 3456)):
        a(f's_add_u32 m0, s66, {lo}')
        a(f'buffer_load_dwordx4 v8, s[{sr}:{sr + 3}], s{so} offen nt lds')
    a('s_cmp_eq_u32 s14, 0')
    a('s_cbranch_scc0 ld_done')
    a('s_barrier')
    a('ld_done:')
    a(f's_mul_i32 s67, s13, {CS}')
    a('s_mov_b32 s74, 0x05040100')
    a('s_mov_b32 s75, 0x07060302')
    a('v_lshlrev_b32 v92, 10, v11')
    a('v_lshl_add_u32 v92, v10, 2, v92')
    a('v_add_u32 v92, s66, v92')
    a('v_add_u32 v93, 1024, v92')
    a('v_add_u32 v94, 2432, v92')
    a('v_lshrrev_b32 v8, 1, v10')
    a('v_mul_u32_u24 v8, 144, v8')
    a('v_and_b32 v9, 1, v10')
    a('v_lshl_add_u32 v8, v9, 6, v8')
    a('v_sub_u32 v9, 1, v11')
    a('v_lshl_add_u32 v8, v9, 4, v8')
    a('v_add_u32 v8, s66, v8')
    a('v_lshrrev_b32 v9, 3, v1')
    a('v_mul_u32_u24 v9, 144, v9')
    a('v_lshl_add_u32 v9, v7, 4, v9')
    a('v_add_u32 v9, s66, v9')
    a('v_add_u32 v160, s67, v2')
    a('v_and_b32 v161, 3, v1')
    a(f'v_mul_u32_u24 v161, {GS}, v161')
    a('v_bfe_u32 v162, v1, 2, 2')
    a('v_lshl_add_u32 v161, v162, 3, v161')
    a('v_lshl_add_u32 v161, v5, 4, v161')
    a('v_add_u32 v161, s67, v161')
    a(f's_add_u32 s60, s67, {UOFF + 480}')
    a('v_lshlrev_b32 v163, 5, v4')
    a('v_sub_u32 v162, s60, v163')
    a('v_lshl_add_u32 v162, v5, 4, v162')
    a('v_lshl_add_u32 v163, v5, 3, v163')
    a('s_lshl_b32 s60, s13, 12')
    a(f's_add_u32 s60, s60, {L_YL}')
    a('v_add_u32 v163, s60, v163')
    a('v_bfe_u32 v165, v1, 1, 2')
    a(f'v_mul_u32_u24 v165, {CS}, v165')
    a('v_and_b32 v166, 1, v1')
    a('v_lshl_add_u32 v165, v166, 4, v165')
    a('v_lshrrev_b32 v166, 3, v1')
    a('v_lshlrev_b32 v166, 5, v166')
    a('v_sub_u32 v165, v165, v166')
    a('s_lshl_b32 s60, s12, 9')
    a(f's_sub_u32 s60, {UOFF + 4064 - 256}, s60')
    a('v_add_u32 v165, s60, v165')
    a('s_lshl_b32 s78, s2, 13')
    a('s_lshl_b32 s60, s13, 11')
    a('s_add_u32 s78, s78, s60')
    a('s_lshl_b32 s60, s14, 21')
    a('s_add_u32 s78, s78, s60')
    a(f's_add_u32 s78, s78, {WS_KV}')
    a('v_lshl_add_u32 v166, v5, 3, v4')
    a('v_sub_u32 v166, 15, v166')
    a('v_and_b32 v167, 1, v166')
    a('v_lshlrev_b32 v167, 4, v167')
    a('v_ashrrev_i32 v166, 1, v166')
    a(f'v_mul_u32_u24 v150, {GS}, v1')
    a('v_add_u32 v150, s67, v150')
    a('v_lshlrev_b32 v245, 7, v4')
    a('v_bfe_u32 v248, v1, 3, 2')
    a('v_lshlrev_b32 v248, 13, v248')
    a('v_lshl_add_u32 v248, v7, 7, v248')
    a('v_lshlrev_b32 v251, 4, v0')
    a(f'v_lshrrev_b32 v{VG8}, 3, v0')
    a(f'v_lshlrev_b32 v{VG8}, 3, v{VG8}')
    a(f'v_mul_u32_u24 v{VXA}, {2 * RS}, v7')
    a(f'v_add_u32 v{VXA}, v{VXA}, v{VG8}')
    a(f'v_add_u32 v{VXA}, {L_YT}, v{VXA}')
    a(f'v_add_u32 v{VWA}, {L_W}, v{VG8}')
    a(f'v_lshlrev_b32 v{VSA}, 5, v7')
    a(f'v_add_u32 v{VSA}, {L_ST}, v{VSA}')
    a(f'v_bfe_u32 v{VKL}, v1, 3, 1')
    a(f'v_lshl_add_u32 v{VKL}, v7, 1, v{VKL}')
    a(f'v_mul_u32_u24 v{VPR}, {PS}, v{VKL}')
    a(f'v_lshl_add_u32 v{VPR}, v5, 6, v{VPR}')
    a(f'v_lshl_add_u32 v{VPW}, v7, 1, v11')
    a(f'v_mul_u32_u24 v{VPW}, {PS}, v{VPW}')
    a('v_and_b32 v3, 1, v5')
    a(f'v_lshl_add_u32 v{VPW}, v3, 4, v{VPW}')
    a('s_lshl_b32 s60, s12, 5')
    a(f'v_add_u32 v{VPW}, s60, v{VPW}')
    a('s_lshl_b32 s60, s3, 4')
    a('s_sub_u32 s60, 2047, s60')
    a(f'v_sub_u32 v{VKL}, s60, v{VKL}')
    a(f's_mul_i32 s60, s13, {4 * RS}')
    a(f's_add_u32 s60, s60, {L_YT}')
    a(f'v_add_u32 v{VRA}, s60, v2')
    a(f'v_lshrrev_b32 v{VBIT}, 3, v1')
    a(f'v_lshlrev_b32 v{VBIT}, v{VBIT}, 1')
    a('v_and_b32 v253, 255, v0')
    a('v_lshlrev_b32 v253, 3, v253')
    a('v_lshlrev_b32 v237, 1, v253')
    a('v_lshlrev_b32 v247, 12, v5')
    a('v_lshl_add_u32 v247, v4, 4, v247')
    a('s_mov_b64 exec, 0xf')
    a('ds_write_b128 v150, v[144:147]')
    a('s_mov_b64 exec, 0x3fffffff')
    a(f'ds_write_b128 v160, v[144:147] offset:{UOFF + 4096}')
    a('s_mov_b64 exec, -1')
    WFp, KF, O, PKD = 40, 48, 70, 86
    a('s_waitcnt lgkmcnt(0)')
    a('s_add_u32 s8, s8, 0x9e3779b9')
    a('s_or_b32 s8, s8, 1')
    a('s_and_b32 s61, s15, 1')
    a('s_lshl_b32 s61, s61, 4')
    a('s_lshr_b32 s9, s9, s61')
    a('s_and_b32 s9, s9, 0xffff')
    a('v_lshlrev_b32 v167, v167, s9')
    for r in range(4):
        a(f'v_cmp_eq_u32 vcc, {r}, v166')
        a(f'v_cndmask_b32 v{168 + r}, 0, v167, vcc')
    a('s_lshl_b32 s64, s4, 11')
    a(f's_add_u32 s64, s64, {WS_FA}')
    a('s_lshl_b32 s65, s2, 7')
    a(f's_add_u32 s7, s65, {WS_FB}')
    a(f's_add_u32 s65, s65, {WS_FA}')
    a('v_mov_b32 v13, s8')
    a('v_mov_b32 v14, 0')
    a(f's_add_u32 s10, s65, {WS_FA2 - WS_FA}')
    a('s_cmp_eq_u32 s12, 0')
    a('s_cselect_b32 s60, s10, 0x40000000')
    a('s_mov_b64 exec, 0xff')
    a(f'buffer_store_dwordx4 v[144:147], v2, {WSR}, s60 offen')
    a('s_mov_b64 exec, -1')
    XV = 1
    a('s_lshl_b32 s60, s12, 2')
    a('s_add_u32 s64, s64, s60')
    a('s_add_u32 s65, s65, s60')
    a('s_add_u32 s10, s10, s60')
    a(f's_add_u32 s11, s64, {WS_FA2 - WS_FA}')
    if DYN:
        a('s_memrealtime s[4:5]')
    a('s_cmp_eq_u32 s14, 0')
    a('s_cbranch_scc1 p0')
    LATER = 6 + XV
    a(f's_waitcnt vmcnt({LATER + 3})')
    a(f'v_readlane_b32 s76, v{GL}, 0')
    a(f'v_readlane_b32 s77, v{GL + 1}, 0')
    a('s_lshl_b32 s70, s76, 16')
    a('s_lshr_b32 s61, s76, 16')
    a('s_lshl_b32 s71, s77, 16')
    a('s_or_b32 s61, s61, s71')
    a('v_writelane_b32 v149, s70, 0')
    a('v_writelane_b32 v149, s76, 1')
    a('v_writelane_b32 v149, s61, 2')
    a('v_writelane_b32 v149, s77, 3')
    a('v_writelane_b32 v148, s70, 2')
    a('v_writelane_b32 v148, s76, 3')
    a('s_mov_b64 exec, 0xf')
    a('ds_write_b128 v150, v[146:149] offset:16')
    a('s_mov_b64 exec, -1')
    for i in range(4):
        w = GL + 6 * i
        a(f'v_mov_b32_dpp v{w + 4}, v{w} wave_shl:1 row_mask:0xf bank_mask:0xf bound_ctrl:0')
        a(f'v_mov_b32_dpp v{w + 5}, v{w + 1} wave_shl:1 row_mask:0xf bank_mask:0xf bound_ctrl:0')
        if i < 3:
            a(f's_waitcnt vmcnt({LATER + 2 - i})')
            a(f'v_readlane_b32 s70, v{w + 6}, 0')
            a(f'v_readlane_b32 s71, v{w + 7}, 0')
            a(f'v_writelane_b32 v{w + 4}, s70, 63')
            a(f'v_writelane_b32 v{w + 5}, s71, 63')
        ta, tb, tc = 176 + 12 * i, 180 + 12 * i, 184 + 12 * i
        a(f'ds_write_b128 v160, v[{w + 2}:{w + 5}] offset:{32 + 1024 * i + 3 * GS}')
        for j in range(4):
            a(f'v_alignbit_b32 v{ta + j}, v{w + j + 1}, v{w + j}, 16')
        a(f'ds_write_b128 v160, v[{ta}:{ta + 3}] offset:{32 + 1024 * i + 0 * GS}')
        for j in range(4):
            a(f'v_alignbit_b32 v{tb + j}, v{w + j + 2}, v{w + j + 1}, 16')
        a(f'ds_write_b128 v160, v[{tb}:{tb + 3}] offset:{32 + 1024 * i + 2 * GS}')
        for j in range(4):
            a(f'v_mov_b32 v{tc + j}, v{w + j + 1}')
        a(f'ds_write_b128 v160, v[{tc}:{tc + 3}] offset:{32 + 1024 * i + 1 * GS}')
    lds_inc(20)
    a(f'v_add_u32 v239, {L_W}, v2')
    a('v_and_b32 v244, 1, v5')
    a('v_lshl_add_u32 v244, v244, 1, v11')
    a('v_lshlrev_b32 v244, 4, v244')
    a('s_lshl_b32 s60, s13, 6')
    a(f's_add_u32 s60, s60, {L_ST}')
    a('v_add_u32 v244, s60, v244')
    a('s_waitcnt lgkmcnt(0)')
    for p in range(4):
        a(f'v_mov_b32 v{YR[0] + 4 * p}, -1')
    a('s_lshl_b32 s60, s13, 5')
    a(f's_add_u32 s60, s60, {L_X}')
    a('v_mov_b32 v201, s60')
    a(f'v_mul_u32_u24 v203, {RP}, v4')
    a('v_lshl_add_u32 v203, v5, 5, v203')
    a(f's_mul_i32 s60, s13, {16 * RP}')
    a('v_add_u32 v203, s60, v203')
    a(f'v_mul_u32_u24 v205, {RP}, v5')
    a('v_lshl_add_u32 v205, v4, 4, v205')
    a(f's_mul_i32 s60, s13, {4 * RP}')
    a('v_add_u32 v205, s60, v205')
    stamp('gdone')
    a('p0:')
    a(f's_waitcnt vmcnt({5 + XV})')
    for jj in range(2):
        unpack(WFp + 0 + jj, WFp + 2 + jj, SKR + 2 * jj)
        unpack(WFp + 4 + jj, WFp + 6 + jj, SKR + 2 * jj + 1)
    a(f's_waitcnt vmcnt({2 + XV})')
    stamp('kdata')
    for r in range(0, 8, 2):
        a(f'ds_read2_b32 v[{KR + r}:{KR + r + 1}], v92 offset0:{32 * r} offset1:{32 * r + 32}')
    a(f'ds_read2_b32 v[{KR + 8}:{KR + 9}], v93 offset0:0 offset1:32')
    a(f'ds_read_b32 v{KR + 10}, v93 offset:256')
    a(f's_waitcnt vmcnt({0 + XV})')
    for r in range(0, 8, 2):
        a(f'ds_read2_b32 v[{VR + r}:{VR + r + 1}], v94 offset0:{32 * r} offset1:{32 * r + 32}')
    for r in range(11):
        if r % 2 == 0:
            a(f's_waitcnt lgkmcnt({9 - r // 2})')
        unpack(KF + 2 * r, KF + 2 * r + 1, KR + r)
    for t in range(4):
        tap = 3 - t
        for r in range(8):
            if t == 0:
                pk('mul', O + 2 * r, KF + 2 * (r + t), WFp + 2 * tap)
            else:
                pk('fma', O + 2 * r, KF + 2 * (r + t), WFp + 2 * tap, O + 2 * r)
    a('s_waitcnt lgkmcnt(0)')
    for r in range(8):
        unpack(KF + 2 * r, KF + 2 * r + 1, VR + r)
    for r in range(8):
        pk('mul', O + 2 * r, O + 2 * r, KF + 2 * r)
    for jj in range(2):
        d = PKD + 2 + 4 * jj
        for m in range(4):
            a(f'v_cvt_pk_bf16_f32 v{d + m}, v{O + 2 * (7 - 2 * m) + jj}, v{O + 2 * (6 - 2 * m) + jj}')
        a(f'ds_write_b128 v8, v[{d}:{d + 3}] offset:{32 * jj}')
    a('s_waitcnt lgkmcnt(0)')
    a('ds_read_b128 v[16:19], v9')
    a(f'ds_read_b128 v[20:23], v9 offset:{8 * 144}')
    a('s_waitcnt lgkmcnt(1)')
    a(f'buffer_store_dwordx4 v[16:19], v6, {KVR}, s62 offen sc1')
    a('s_waitcnt lgkmcnt(0)')
    a(f'buffer_store_dwordx4 v[20:23], v6, {KVR}, s63 offen sc1')
    stamp('kvst')
    UP = 120
    a('s_waitcnt vmcnt(0)')
    stamp('kvack')
    a('s_mov_b64 exec, 1')
    a(f'buffer_store_dword v13, v14, {WSR}, s10 offen')
    a(f'buffer_store_dword v13, v14, {WSR}, s65 offen sc1')
    a('s_mov_b64 exec, 0xffff')
    a('s_mov_b32 s61, 0')
    a('fa2_again:')
    a(f'buffer_load_dword v246, v245, {WSR}, s11 offen sc1')
    a('s_add_u32 s61, s61, 1')
    a('s_waitcnt vmcnt(0)')
    a('v_cmp_ne_u32 vcc, s8, v246')
    a('s_cbranch_vccz fa_ok')
    a('s_mov_b64 exec, vcc')
    if opt('fa2sleep', 0):
        a(f's_sleep {opt("fa2sleep", 0)}')
    a(f's_cmp_lt_u32 s61, {DUAL}')
    a('s_cbranch_scc1 fa2_again')
    retry_loop('fa', [f'buffer_load_dword v246, v245, {WSR}, s64 offen sc1'], lambda: a('v_cmp_ne_u32 vcc, s8, v246'), sleep=opt('fasleep', 1))
    stamp('faok')
    for q in range(2):
        a(f'buffer_load_dwordx4 v[{UP + 4 * q}:{UP + 4 * q + 3}], v2, {KVR}, s78 offen offset:{1024 * q}{KVL}')
    a('s_cmp_eq_u32 s14, 0')
    a('s_cbranch_scc0 helper')

    ACC = 16
    FA_ = [48, 196]
    FB_ = [80, 112]

    def readsA(s, c):
        out = []
        for j in range(8):
            out.append(f'ds_read_b64 v[{s + 4 * j}:{s + 4 * j + 1}], v161 offset:{64 * (8 * j + c)}')
            out.append(f'ds_read_b64 v[{s + 4 * j + 2}:{s + 4 * j + 3}], v161 offset:{64 * (8 * j + c) + 8}')
        return out

    def readsB(s, c):
        return [f'ds_read_b128 v[{s + 4 * z}:{s + 4 * z + 3}], v162 offset:{64 * (56 - (8 * z - c))}' for z in range(8)]

    def y_fill():
        a('v_bfe_u32 v182, v0, 3, 5')
        a('v_lshlrev_b32 v182, 15, v182')
        a('v_lshl_add_u32 v182, v7, 4, v182')
        a('s_lshl_b32 s62, s2, 7')
        for q in range(4):
            a(f'buffer_store_dwordx4 v[240:243], v182, {XBR}, s62 offen sc1')
            if q < 3:
                a('s_add_u32 s62, s62, 0x100000')

    lds_spin('g4', 20, 4, 153)
    for r in readsA(FA_[0], 0):
        a(r)
    for q in range(2):
        a(f's_waitcnt vmcnt({1 - q})')
        a(f'ds_write_b128 v165, v[{UP + 4 * q}:{UP + 4 * q + 3}] offset:{256 - 256 * q}')
    lds_inc(12)
    stamp('u0')
    if FILLBY == 1 and opt('fst', -1) < 0:
        y_fill()
    lds_spin('u4', 12, 4, 153)
    stamp('mf0')
    for r in readsB(FB_[0], 0)[:4]:
        a(r)

    def mfma(w, A, B, init=False):
        c = '0' if init else f'v[{ACC + 4 * w}:{ACC + 4 * w + 3}]'
        a(f'v_mfma_f32_16x16x32_bf16 v[{ACC + 4 * w}:{ACC + 4 * w + 3}], v[{A}:{A + 3}], v[{B}:{B + 3}], {c}')

    def ystage(w):
        E = 172 + 2 * (w & 3)
        return [f'v_cvt_pk_bf16_f32 v{E}, v{ACC + 4 * w}, v{ACC + 4 * w + 1}',
                f'v_cvt_pk_bf16_f32 v{E + 1}, v{ACC + 4 * w + 2}, v{ACC + 4 * w + 3}',
                f'ds_write_b64 v163, v[{E}:{E + 1}] offset:{512 * w}']

    gsetup = ['v_lshlrev_b32 v180, 2, v0', f'v_add_u32 v180, {L_YL}, v180', 'v_add_u32 v181, 0x2000, v180',
              'v_lshrrev_b32 v182, 3, v0', 'v_lshlrev_b32 v182, 15, v182', 'v_lshl_add_u32 v182, v7, 4, v182',
              's_lshl_b32 s62, s2, 7', 's_add_u32 s63, s62, 0x100000', 's_add_u32 s64, s62, 0x200000', 's_add_u32 s65, s62, 0x300000',
              's_lshl_b32 s6, s12, 10', f's_add_u32 s6, s6, {WS_FB}',
              's_bitcmp0_b32 s2, 0', 's_cselect_b32 s66, s69, 0x40000000', 's_cselect_b32 s70, 0, 0x40000000', 's_cselect_b32 s71, s6, 0x40000000']
    WR2 = 152

    def gather(p0_, sregs, GR, GP):
        rd, out = [], []
        for ch in range(4):
            base = 180 + (ch >> 1)
            rd.append(f'ds_read2st64_b32 v[{GR + 2 * ch}:{GR + 2 * ch + 1}], v{base} offset0:{16 * (ch & 1) + 4 * p0_} offset1:{16 * (ch & 1) + 4 * p0_ + 4}')
        for p in range(2):
            g = GP + 4 * p
            out.append(f'v_perm_b32 v{g}, v{GR + 2 + p}, v{GR + p}, s74')
            out.append(f'v_perm_b32 v{g + 1}, v{GR + 6 + p}, v{GR + 4 + p}, s74')
            out.append(f'v_perm_b32 v{g + 2}, v{GR + 2 + p}, v{GR + p}, s75')
            out.append(f'v_perm_b32 v{g + 3}, v{GR + 6 + p}, v{GR + 4 + p}, s75')
            out.append(f'buffer_store_dwordx4 v[{g}:{g + 3}], v182, {XBR}, s{sregs[p]} offen sc1')
        return rd, out

    fbload = f'buffer_load_dword v249, v248, {WSR}, s6 offen sc1'
    PY = YR[0]
    YM = 16

    GM = 48

    def y_setup(regs=True):
        for p in range(4):
            a(f's_mov_b64 s[{YM + 2 * p}:{YM + 2 * p + 1}], -1')
            if regs:
                a(f'v_mov_b32 v{PY + 4 * p}, -1')
        a('s_lshl_b32 s24, s3, 15')
        for p in range(1, 4):
            a(f's_add_u32 s{24 + p}, s24, {8192 * p}')
        a('s_mov_b64 s[0:1], -1')

    def fb_check():
        lab = a.newlabel('fbk')
        a('s_cmp_eq_u32 s0, 0')
        a(f's_cbranch_scc1 {lab}')
        a('v_cmp_ne_u32 s[0:1], s8, v249')
        for p in range(4):
            a(f's_lshr_b32 s9, s0, {8 * p}')
            a(f'v_and_b32 v250, s9, v{VBIT}')
            a(f'v_cmp_eq_u32 s[{GM + 2 * p}:{GM + 2 * p + 1}], 0, v250')
        a(f'{lab}:')

    def y_issue():
        lab = a.newlabel('yf')
        a('s_mov_b32 exec_lo, s0')
        a('s_mov_b32 exec_hi, 0')
        a(f's_cbranch_execz {lab}')
        a(fbload)
        a(f'{lab}:')
        for p in range(4):
            lab = a.newlabel('yi')
            a(f's_and_b64 exec, s[{YM + 2 * p}:{YM + 2 * p + 1}], s[{GM + 2 * p}:{GM + 2 * p + 1}]')
            a(f's_cbranch_execz {lab}')
            a(f'buffer_load_dwordx4 v[{PY + 4 * p}:{PY + 4 * p + 3}], v251, {XBR}, s{24 + p} offen sc1')
            a(f'{lab}:')
        a('s_mov_b64 exec, -1')

    def y_check():
        a('s_waitcnt vmcnt(0)')
        fb_check()
        for p in range(4):
            a(f'v_max3_u32 v250, v{PY + 4 * p}, v{PY + 4 * p + 1}, v{PY + 4 * p + 2}')
            a(f'v_max_u32 v250, v250, v{PY + 4 * p + 3}')
            a(f'v_cmp_eq_u32 s[{YM + 2 * p}:{YM + 2 * p + 1}], -1, v250')
        a(f's_or_b64 s[28:29], s[{YM}:{YM + 1}], s[{YM + 2}:{YM + 3}]')
        a(f's_or_b64 s[30:31], s[{YM + 4}:{YM + 5}], s[{YM + 6}:{YM + 7}]')
        a('s_or_b64 s[28:29], s[28:29], s[30:31]')

    AC = [116, 122]
    ST = [128, 132]
    TY = 68

    def prep_a():
        lds_spin(a.newlabel('xr'), 12, 8, 3)
        RX, RW = 76, 92
        for r in range(2):
            for p in range(4):
                a(f'ds_read_b64 v[{RX + 8 * r + 2 * p}:{RX + 8 * r + 2 * p + 1}], v{VXA} offset:{512 * p + RS * r}')
        for p in range(4):
            a(f'ds_read_b64 v[{RW + 2 * p}:{RW + 2 * p + 1}], v{VWA} offset:{512 * p}')
        for i in range(0, 12, 2):
            a(f'v_mov_b64 v[{AC[0] + i}:{AC[0] + i + 1}], 0')
        a('s_mov_b32 s72, 0')
        for r in range(2):
            a(f's_waitcnt lgkmcnt({8 - 4 * r})')
            for i in range(8):
                unpack(XP[r] + 2 * i, XP[r] + 2 * i + 1, RX + 8 * r + i)
        a('s_waitcnt lgkmcnt(0)')
        for i in range(8):
            unpack(WF + 2 * i, WF + 2 * i + 1, RW + i)

    def prep_b():
        lds_spin(a.newlabel('xs'), 28, 4, 3)
        for r in range(2):
            a(f'ds_read_b128 v[{ST[r]}:{ST[r] + 3}], v{VSA} offset:{16 * r}')
        a(f'ds_read_b32 v3, v{VC} offset:{L_SW - L_CNT}')
        for r in range(2):
            a(f's_waitcnt lgkmcnt({2 - r})')
            for i in range(8):
                pk('fma', N[r] + 2 * i, XP[r] + 2 * i, ST[r] + 2, ST[r])
        a('s_waitcnt lgkmcnt(0)')
        a('v_readfirstlane_b32 s71, v3')
        stamp('lnx')

    def y_fold():
        for p in range(4):
            lab = a.newlabel('yd')
            a(f's_bitcmp1_b32 s72, {p}')
            a(f's_cbranch_scc1 {lab}')
            a(f's_cmp_eq_u64 s[{YM + 2 * p}:{YM + 2 * p + 1}], 0')
            a(f's_cbranch_scc0 {lab}')
            a(f's_bitset1_b32 s72, {p}')
            for i in range(4):
                unpack(TY + 2 * i, TY + 2 * i + 1, PY + 4 * p + i)
            for i in range(4):
                e = XP[i >> 1] + 4 * p + 2 * (i & 1)
                pk('fma', e, TY + 2 * i, N[i >> 1] + 4 * p + 2 * (i & 1), e)
            for k in range(2):
                for r in range(2):
                    e = XP[r] + 4 * p + 2 * k
                    pk('add', AC[r], AC[r], e)
                    pk('fma', AC[r] + 2, e, e, AC[r] + 2)
                    pk('fma', AC[r] + 4, e, WF + 4 * p + 2 * k, AC[r] + 4)
            a(f'{lab}:')

    def spread(pairs):
        out, left = [], list(pairs)
        while left:
            cnt = {}
            for q in left:
                cnt[q[0]] = cnt.get(q[0], 0) + 1
            recent = [q[0] for q in out[-2:]]
            cand = [q for q in left if q[0] not in recent] or [q for q in left if q[0] != recent[-1]] or left
            mx = max(cnt[q[0]] for q in cand)
            pick = cand[0] if 2 * mx <= len(left) - 1 else [q for q in cand if cnt[q[0]] == mx][0]
            out.append(pick)
            left.remove(pick)
        return out

    def stage_reads(st):
        sa, sb = FA_[st & 1], FB_[st & 1]
        if st < 8:
            return readsB(sb, st)[:4] + readsA(sa, st)
        out = []
        for hf in range(2):
            c = 2 * (st - 8) + hf
            out += readsB(sb + 16 * hf - 16, c)[4:] + readsA(sa + 16 * hf, c)[:8]
        return out

    NST = 12
    for st in range(NST):
        sa, sb = FA_[st & 1], FB_[st & 1]
        a('s_waitcnt lgkmcnt(0)')
        if st == 7:
            a('v_readfirstlane_b32 s60, v164')
            a('s_cmp_ge_u32 s60, 4')
            a('s_cbranch_scc1 uhi_go')
            lds_spin('uhi', 0, 4, 164)
            stamp('uhi')
        if st == FLC and FILLBY:
            a('s_waitcnt vmcnt(0)')
            a('s_mov_b64 exec, 1')
            a(f'ds_add_rtn_u32 v12, v{VC}, v{V1} offset:4')
            a(f'ds_add_u32 v{VC}, v{V1} offset:8')
            a('s_mov_b64 exec, -1')
            stamp('fillB')
        if st == FLC + 1 and FILLBY:
            a('s_mov_b64 exec, 1')
            a('v_cmp_eq_u32 vcc, 3, v12')
            a('v_cndmask_b32 v14, -16, v14, vcc')
            a(f'buffer_store_dword v13, v14, {WSR}, s7 offen sc1')
            a('s_mov_b64 exec, -1')
        fill = stage_reads(st + 1) if st + 1 < NST else []
        if st == 6:
            fill = fill + [f'ds_read_b32 v164, v{VC} offset:0']
        if st == FBC:
            fill = [f'ds_write_b32 v{VC}, v{V1} offset:24'] + fill
        if st == opt('fbc2', 10):
            fill = [fbload.replace('s6 ', 's71 ')] + fill
        if st == opt('fst', -1):
            assert st >= 1
            fill = [f'buffer_store_dwordx4 v[240:243], v182, {XBR}, s{62 + q} offen sc1' for q in range(4)] + fill
        if st == 0:
            fill = fill + gsetup[:12]
        if st == 1:
            for l in gsetup[12:]:
                a(l)
        if st in (8, 9):
            for w in (2 * (st - 8), 2 * (st - 8) + 1):
                fill = fill + ystage(w)
        if st < 8:
            pairs = [(n + z, sa + 4 * n, sb + 4 * z) for n in range(8) for z in range(min(4, 8 - n))]
            if st == 0:
                pairs = [(z, 168, sb + 4 * z) for z in range(4)] + pairs
        else:
            pairs = []
            for hf in range(2):
                pairs += [(n + z, sa + 16 * hf + 4 * n, sb + 16 * hf + 4 * (z - 4)) for n in range(4) for z in range(4, 8 - n)]
            if st == 8:
                pairs = [(z, 168, sb + 4 * (z - 4)) for z in range(4, 8)] + pairs
        order = spread(pairs)
        seen = set() if st == 0 else set(range(8))
        last = {q[0]: i for i, q in enumerate(order)}
        pend = []
        nper = -(-len(fill) // (len(order) - (4 if st >= 7 else 0)))
        for i, (w, A, B) in enumerate(order):
            mfma(w, A, B, w not in seen)
            seen.add(w)
            for _ in range(nper):
                if fill:
                    a(fill.pop(0))
            if st == NST - 1:
                if last[w] == i:
                    pend.append([w, 0])
                for q in pend:
                    q[1] += 1
                if pend and pend[0][1] > 3:
                    for l in ystage(pend.pop(0)[0]):
                        a(l)
        assert not fill
    for w0, _ in pend:
        for l in ystage(w0):
            a(l)
    stamp('s1end')
    if opt('cprio', 1):
        a('s_setprio 2')
    lds_inc(8)
    lds_spin('c2', 8, 8, 166)
    if GXL and DWHO:
        a('s_and_b32 s60, s2, 1')
        a('s_cmp_lt_u32 s3, 112')
        a('s_cselect_b32 s60, s60, 0')
        a('s_cmp_eq_u32 s60, 0')
        a('s_cbranch_scc1 ib_go')
        lds_spin('ib', 28, 4, 166)
    (r0, o0), (r1, o1) = gather(0, (62, 63), 184, 196), gather(2, (64, 65), 164, 204)
    for l in r0 + r1 + ['s_waitcnt lgkmcnt(4)'] + o0 + ['s_waitcnt lgkmcnt(0)'] + o1:
        a(l)
    stamp('yst')
    if opt('cprio', 1):
        a('s_setprio 0')
    lds_inc(8)
    a('s_bitcmp0_b32 s2, 0')
    a('s_cbranch_scc0 conv_ffn')
    a('s_waitcnt vmcnt(4)')
    y_setup()
    fb_check()
    y_issue()
    prep_a()
    prep_b()
    a('s_branch rows')

    a('helper:')
    for q in range(2):
        a(f's_waitcnt vmcnt({1 - q})')
        a(f'ds_write_b128 v165, v[{UP + 4 * q}:{UP + 4 * q + 3}] offset:{256 - 256 * q}')
    lds_inc(0)
    stamp('u0')
    if FILLBY == 0:
        lds_spin('uw', UWOFF, 4, 28)
        y_fill()

    def fb_publish():
        if FILLBY:
            return
        a('s_mov_b64 exec, 1')
        a(f'ds_add_rtn_u32 v12, v{VC}, v{V1} offset:4')
        a(f'ds_add_u32 v{VC}, v{V1} offset:8')
        a('s_waitcnt lgkmcnt(0)')
        a('v_cmp_eq_u32 vcc, 3, v12')
        a('v_cndmask_b32 v14, -16, v14, vcc')
        a(f'buffer_store_dword v13, v14, {WSR}, s7 offen sc1')
        a('s_mov_b64 exec, -1')
        stamp('fillB')
    if FILLBY:
        lds_spin('uw', UWOFF, 4, 28)
    a('s_lshl_b32 s61, s3, 12')
    a('s_bitcmp0_b32 s2, 0')
    a('s_cbranch_scc0 helper_ffn')
    a(f's_add_u32 s62, s61, {WS_CAND}')
    a(f's_add_u32 s63, s61, {WS_PART}')
    a(f's_add_u32 s79, s61, {WS_GX}')
    DW = 156
    DSP = opt('dsp', 1)

    def d_base():
        if DSP:
            a('s_lshr_b32 s78, s3, 4')
            a('s_lshl_b32 s78, s78, 20')
            a('s_and_b32 s60, s3, 15')
            a('s_lshl_b32 s60, s60, 14')
            a('s_add_u32 s78, s78, s60')
        else:
            a('s_lshl_b32 s78, s3, 16')

    def d_list(DW):
        return [[f'buffer_load_dwordx2 v[{DW + 2 * r}:{DW + 2 * r + 1}], v253, s[{S_D}:{S_D + 3}], s78 offen offset:{(r & 1) * 2048} nt']
                + ([f's_add_u32 s78, s78, {4096 + (262144 - 16384 if DSP and r % 8 == 7 else 0)}'] if r & 1 else []) for r in range(32)]
    d_base()
    dl = d_list(DW)
    XH, WH = 68, 100
    stamp('xiss')
    a('s_lshl_b32 s60, s3, 15')
    a('s_lshl_b32 s61, s13, 13')
    a('s_add_u32 s60, s60, s61')
    a('s_add_u32 s61, s60, 4096')
    for i in range(8):
        a(f'buffer_load_dwordx4 v[{XH + 4 * i}:{XH + 4 * i + 3}], v2, s[{S_Q}:{S_Q + 3}], s{60 + (i >> 2)} offen offset:{1024 * (i & 3)} nt')
    for i in range(2):
        a(f'buffer_load_dwordx4 v[{WH + 4 * i}:{WH + 4 * i + 3}], v2, s[{S_WR}:{S_WR + 3}], 0 offen offset:{1024 * i}')
    if not FILLBY:
        a('s_waitcnt vmcnt(10)')
        fb_publish()
    a(f'buffer_store_dwordx4 v[240:243], v237, {WSR}, s62 offen sc1')
    a(f'buffer_store_dwordx4 v[240:243], v237, {WSR}, s63 offen sc1')
    a(f'buffer_store_dwordx4 v[240:243], v237, {WSR}, s79 offen sc1')
    NL = 3 + (0 if FILLBY else 1)
    if GXL and not DWHO:
        a(f's_add_u32 s60, s79, {WS_GX2 - WS_GX}')
        a(f'buffer_store_dwordx4 v[240:243], v237, {WSR}, s60 offen')
        NL += 1
    a('s_mov_b32 s72, 0x3f803f80')
    a('s_mov_b32 s73, 0x3a800000')
    a('s_lshl_b32 s6, s12, 10')
    a(f's_add_u32 s6, s6, {WS_FB}')
    y_setup(False)
    XLATE = opt('xlate', 1)

    def x_to_lds(waits):
        for r in range(4):
            if waits:
                a(f's_waitcnt vmcnt({NL + 2 + 6 - 2 * r})')
            for hf in range(2):
                a(f'ds_write_b128 v{VRA}, v[{XH + 8 * r + 4 * hf}:{XH + 8 * r + 4 * hf + 3}] offset:{RS * r + 1024 * hf}')
        if waits:
            a(f's_waitcnt vmcnt({NL})')
        for hf in range(2):
            a(f'ds_write_b128 v239, v[{WH + 4 * hf}:{WH + 4 * hf + 3}] offset:{1024 * hf}')
        lds_inc(12)
    if not XLATE:
        lds_spin('cp0', 12, 4, 28)
        x_to_lds(True)
    elif opt('dafterx', 1):
        a(f's_waitcnt vmcnt({NL})')
    stamp('xarr')
    lds_spin('late', 24, 1, 3, sleep=LSLEEP)
    a(fbload)
    if DYN:
        a('s_memrealtime s[60:61]')
        a('s_waitcnt lgkmcnt(0)')
        a('s_sub_u32 s60, s60, s4')
        a(f's_cmp_lt_u32 s60, {DYN}')
        a('s_cselect_b32 s5, 1, 0')
        a('s_cbranch_scc1 d_early')
        a('s_waitcnt vmcnt(0)')
        a('s_branch d_early_done')
        a('d_early:')
    for r in range(DEARLY):
        for l in dl[r]:
            a(l)
    stamp('dearly')
    a(f's_waitcnt vmcnt({DEARLY})')
    a('d_early_done:')
    S1, S2, SW = 36, 40, 44

    def stats_a():
        for i in range(8):
            for r in range(4):
                x = XH + 8 * r + i
                a(f'v_dot2_f32_bf16 v{S1 + r}, v{x}, s72, {"0" if i == 0 else "v%d" % (S1 + r)}')
                a(f'v_dot2_f32_bf16 v{S2 + r}, v{x}, v{x}, {"0" if i == 0 else "v%d" % (S2 + r)}')
            a(f'v_dot2_f32_bf16 v{SW}, v{WH + i}, s72, {"0" if i == 0 else "v%d" % SW}')
    if opt('stearly', 1):
        lds_spin('mf0', 8, 8, 3)
        stats_a()
    lds_spin('mf1', 8, 8, 3)
    if XLATE:
        x_to_lds(False)
    fb_check()
    lds_spin('mf', 8, opt('mfcnt', 12), 3)
    y_issue()
    if not opt('stearly', 1):
        stats_a()
    for b in (S1, S2):
        a(f'v_permlane32_swap_b32 v{b}, v{b + 1}')
        a(f'v_permlane32_swap_b32 v{b + 2}, v{b + 3}')
    for b in (S1, S2):
        a(f'v_add_f32 v{b}, v{b}, v{b + 1}')
        a(f'v_add_f32 v{b + 2}, v{b + 2}, v{b + 3}')
    for b in (S1, S2):
        a(f'v_permlane16_swap_b32 v{b}, v{b + 2}')
    for b in (S1, S2):
        a(f'v_add_f32 v{b}, v{b}, v{b + 2}')
    for sh in (1, 2, 4, 8):
        for v in (S1, S2, SW):
            a(f'v_add_f32_dpp v{v}, v{v}, v{v} row_shr:{sh} row_mask:0xf bank_mask:0xf bound_ctrl:0')
    a(f'v_add_f32_dpp v{SW}, v{SW}, v{SW} row_bcast:15 row_mask:0xa bank_mask:0xf')
    a(f'v_mul_f32 v{S1}, s73, v{S1}')
    a(f'v_add_f32_dpp v{SW}, v{SW}, v{SW} row_bcast:31 row_mask:0xc bank_mask:0xf')
    a(f'v_mul_f32 v{S1 + 1}, v{S1}, v{S1}')
    a(f'v_fma_f32 v{S2}, v{S2}, s73, -v{S1 + 1}')
    a(f'v_max_f32 v{S2}, 0, v{S2}')
    rnd(S1, S1)
    rnd(S2, S2)
    a(f'v_add_f32 v{S2}, 0x3727c5ac, v{S2}')
    rnd(S2, S2)
    a(f'v_sqrt_f32 v{S2}, v{S2}')
    rnd(S2, S2)
    a(f'v_rcp_f32 v50, v{S2}')
    a(f'v_rcp_f32 v51, v{S2}')
    a(f'v_mul_f32 v48, -v{S1}, v50')
    a(f'v_mul_f32 v49, -v{S1}, v50')
    a('s_mov_b32 exec_lo, 0x80008000')
    a('s_mov_b32 exec_hi, 0x80008000')
    a('ds_write_b128 v244, v[48:51]')
    a('s_mov_b32 exec_lo, 0')
    a('s_mov_b32 exec_hi, 0x80000000')
    a(f'ds_write_b32 v{VC}, v{SW} offset:{L_SW - L_CNT}')
    lds_inc(28)
    stamp('pre')
    prep_a()
    prep_b()

    a('rows:')
    a('s_mov_b32 s61, 0')
    a('py_top:')
    y_check()
    a('s_cbranch_scc0 py_ok')
    a('s_add_u32 s61, s61, 1')
    a(f's_cmp_ge_u32 s61, {POLL_MAX}')
    a('s_cbranch_scc1 py_give')
    if YSLEEP:
        a(f's_sleep {YSLEEP}')
    y_issue()
    y_fold()
    a('s_branch py_top')
    a('py_give:')
    for p in range(4):
        a(f's_mov_b64 s[{YM + 2 * p}:{YM + 2 * p + 1}], 0')
    a('py_ok:')
    stamp('ypoll')
    y_fold()
    H = XP
    a('s_mov_b32 s73, 0x3a800000')
    Q = TY
    for r in range(2):
        for k in range(3):
            d = Q + k if r == 0 else Q + 4 + k
            a(f'v_add_f32 v{d}, v{AC[r] + 2 * k}, v{AC[r] + 2 * k + 1}')
    for k in range(3):
        a(f'v_permlane32_swap_b32 v{Q + k}, v{Q + 4 + k}')
    for k in range(3):
        a(f'v_add_f32 v{Q + k}, v{Q + k}, v{Q + 4 + k}')
    for k in range(3):
        a(f'v_add_f32_dpp v{Q + k}, v{Q + k}, v{Q + k} row_ror:8 row_mask:0xf bank_mask:0xf')
    a('s_mov_b32 exec_lo, 0x00ff00ff')
    a('s_mov_b32 exec_hi, 0x00ff00ff')
    a(f'ds_write_b128 v{VPW}, v[{Q}:{Q + 3}]')
    a('s_mov_b64 exec, -1')
    a('s_lshl_b32 s60, s3, 7')
    a(f's_add_u32 s60, s60, {WS_KEYS}')
    a('s_cmp_eq_u32 s12, 0')
    a('s_cselect_b32 s60, s60, 0x40000000')
    if opt('prio', 1):
        a('s_cbranch_scc0 no_prio')
        a('s_setprio 3')
        a('no_prio:')
    a('s_waitcnt lgkmcnt(0)')
    a('s_barrier')
    R = 76
    for i in range(4):
        a(f'ds_read_b128 v[{R + 4 * i}:{R + 4 * i + 3}], v{VPR} offset:{16 * i}')
    stamp('bar2')
    A = AC[0]
    a(f'v_mov_b32 v{A + 7}, s8')
    a(f'v_mov_b32 v{A + 5}, 0')
    a('s_waitcnt lgkmcnt(2)')
    pk('add', R, R, R + 4)
    a(f'v_add_f32 v{R + 2}, v{R + 2}, v{R + 6}')
    a('s_waitcnt lgkmcnt(0)')
    pk('add', R + 8, R + 8, R + 12)
    a(f'v_add_f32 v{R + 10}, v{R + 10}, v{R + 14}')
    pk('add', R, R, R + 8)
    a(f'v_add_f32 v{R + 2}, v{R + 2}, v{R + 10}')
    for sw in ('v_permlane32_swap_b32', 'v_permlane16_swap_b32'):
        for k in range(3):
            a(f'v_mov_b32 v{R + 4 + k}, v{R + k}')
        for k in range(3):
            a(f'{sw} v{R + k}, v{R + 4 + k}')
        pk('add', R, R, R + 4)
        a(f'v_add_f32 v{R + 2}, v{R + 2}, v{R + 6}')
    M, V = R + 8, R + 9
    a(f'v_mul_f32 v{R}, s73, v{R}')
    a(f'v_mul_f32 v{R + 3}, v{R}, v{R}')
    a(f'v_fma_f32 v{V}, v{R + 1}, s73, -v{R + 3}')
    rnd(M, R)
    a(f'v_max_f32 v{V}, 0, v{V}')
    rnd(V, V)
    a(f'v_fma_f32 v{R + 2}, -v{M}, s71, v{R + 2}')
    a(f'v_add_f32 v{V}, 0x3727c5ac, v{V}')
    rnd(V, V)
    a(f'v_sqrt_f32 v{V}, v{V}')
    rnd(V, V)
    a(f'v_rcp_f32 v{V}, v{V}')
    a(f'v_mul_f32 v{R + 2}, v{R + 2}, v{V}')
    rnd(R + 2, R + 2)
    a(f'v_ashrrev_i32 v{R + 3}, 31, v{R + 2}')
    a(f'v_and_b32 v{R + 3}, 0x7fff0000, v{R + 3}')
    a(f'v_xor_b32 v{R + 2}, 0x80000000, v{R + 2}')
    a(f'v_xor_b32 v{R + 2}, v{R + 2}, v{R + 3}')
    a(f'v_or_b32 v{A + 6}, v{R + 2}, v{VKL}')
    for sh in (1, 2, 4, 8):
        a(f'v_max_u32_dpp v{A + 6}, v{A + 6}, v{A + 6} row_ror:{sh} row_mask:0xf bank_mask:0xf')
    a('s_mov_b64 exec, 1')
    a(f'buffer_store_dwordx2 v[{A + 6}:{A + 7}], v{A + 5}, {WSR}, s60 offen sc1')
    a('s_mov_b64 exec, -1')
    stamp('key')
    if opt('prio', 1):
        a('s_setprio 0')
    a(f'v_readfirstlane_b32 s76, v{A + 6}')
    DMID = opt('dmid', 0)

    def down_loads(r0, r1):
        r1 = min(r1, 32)
        if r1 <= r0 or DWHO:
            return
        lab = a.newlabel('nodl')
        a('s_cmp_eq_u32 s14, 0')
        a(f's_cbranch_scc1 {lab}')
        for r in range(r0, r1):
            for l in dl[r]:
                a(l)
        a(f'{lab}:')
    if not DYN:
        down_loads(DEARLY, DEARLY + DMID)
    a(f'v_mul_f32 v{M}, -v{M}, v{V}')
    HS = [R + 12, R + 16]
    a(f'v_mov_b32_dpp v{R + 11}, v{V} row_ror:8 row_mask:0xf bank_mask:0xf')
    a(f'v_mov_b32_dpp v{R + 10}, v{M} row_ror:8 row_mask:0xf bank_mask:0xf')
    a('s_mov_b32 vcc_lo, 0xff00ff00')
    a('s_mov_b32 vcc_hi, 0xff00ff00')
    for k in range(4):
        own, oth = M + (k >> 1), R + 10 + (k >> 1)
        a(f'v_cndmask_b32 v{HS[0] + k}, v{own}, v{oth}, vcc')
        a(f'v_cndmask_b32 v{HS[1] + k}, v{oth}, v{own}, vcc')
    a('s_lshl_b32 s77, s3, 12')
    a(f's_add_u32 s77, s77, {WS_CAND}')
    a('s_not_b32 s64, s76')
    a('s_bfe_u32 s65, s64, 0x30001')
    a('s_mov_b32 s66, 0x01010101')
    a('s_lshl_b32 s66, s66, s65')
    a('s_mov_b32 s67, s66')
    OUTR = [124, 132]

    def cand_row(r):
        a('s_mov_b64 exec, s[66:67]')
        for i in range(8):
            pk('fma', N[0] + 2 * i, H[r] + 2 * i, HS[r] + 2, HS[r])
        for i in range(8):
            a(f'v_cvt_pk_bf16_f32 v{YR[0] + i}, v{N[0] + 2 * i}, v{N[0] + 2 * i + 1}')
        for p in range(4):
            a(f'buffer_store_dwordx2 v[{YR[0] + 2 * p}:{YR[0] + 2 * p + 1}], v{VG8}, {WSR}, s77 offen offset:{512 * p} sc1')
        for i in range(8):
            a(f'v_cvt_pk_bf16_f32 v{WF + i}, v{H[r] + 2 * i}, v{H[r] + 2 * i + 1}')

    a('s_bitcmp1_b32 s64, 0')
    a('s_cbranch_scc1 order10')
    cand_row(0)
    a('s_branch cand_done')
    a('order10:')
    cand_row(1)
    a('cand_done:')
    stamp('cand')
    for p in range(4):
        a(f'ds_write_b64 v{VG8}, v[{WF + 2 * p}:{WF + 2 * p + 1}] offset:{L_H + 512 * p}')
    a('s_mov_b64 exec, -1')
    assert not DYN
    D2 = DEARLY + DMID + opt('dmid2', 8)
    down_loads(DEARLY + DMID, D2)
    EXACT = opt('exact', 0)
    if not EXACT:
        for r in range(2):
            a(f'v_add_f32 v{HS[r] + 2}, 1.0, v{HS[r] + 2}')
            a(f'v_add_f32 v{HS[r] + 3}, 1.0, v{HS[r] + 3}')
    for r in range(2):
        if EXACT:
            for i in range(16):
                rnd(H[r] + i, H[r] + i)
            for i in range(8):
                pk('fma', N[0] + 2 * i, H[r] + 2 * i, HS[r] + 2, HS[r])
            for i in range(16):
                rnd(N[0] + i, N[0] + i)
            for i in range(8):
                pk('add', H[r] + 2 * i, H[r] + 2 * i, N[0] + 2 * i)
        else:
            for i in range(8):
                pk('fma', H[r] + 2 * i, H[r] + 2 * i, HS[r] + 2, HS[r])
        for i in range(8):
            a(f'v_cvt_pk_bf16_f32 v{N[1] + 8 * r + i}, v{H[r] + 2 * i}, v{H[r] + 2 * i + 1}')
        for p in range(4):
            a(f'ds_write_b64 v{VXA}, v[{N[1] + 8 * r + 2 * p}:{N[1] + 8 * r + 2 * p + 1}] offset:{512 * p + RS * r}')
    lds_inc(28)
    a('s_cmp_eq_u32 s14, 0')
    a('s_cbranch_scc0 ffn2')
    a('s_and_b32 s64, s64, 15')
    a(f's_mul_i32 s60, s64, {RS}')
    a(f's_add_u32 s60, s60, {L_YT}')
    a('v_add_u32 v3, s60, v2')
    a('s_lshl_b32 s65, s3, 4')
    a('s_add_u32 s64, s64, s65')
    a('s_lshl_b32 s65, s64, 11')
    lds_spin('o8', 28, 12, 68)
    a('s_cmp_eq_u32 s12, 0')
    a('s_cbranch_scc0 no_cand_h')
    for hf in range(2):
        a(f'ds_read_b128 v[{68 + 4 * hf}:{71 + 4 * hf}], v3 offset:{1024 * hf}')
    for hf in range(2):
        a(f'ds_read_b128 v[{WF + 4 * hf}:{WF + 4 * hf + 3}], v2 offset:{L_H + 1024 * hf}')
    for hf in range(2):
        a(f's_waitcnt lgkmcnt({3 - hf})')
        a(f'buffer_store_dwordx4 v[{68 + 4 * hf}:{71 + 4 * hf}], v2, {XBR}, s65 offen offset:{1024 * hf} sc1')
    a('s_waitcnt vmcnt(0) lgkmcnt(0)')
    a(f'buffer_store_dwordx4 v[{WF}:{WF + 3}], v2, {WSR}, s77 offen offset:2048 sc1')
    a(f'buffer_store_dwordx4 v[{WF + 4}:{WF + 7}], v2, {WSR}, s77 offen offset:3072 sc1')
    a('no_cand_h:')
    for i in range(8):
        a(f'ds_read_b128 v[{4 + 4 * i}:{7 + 4 * i}], v{VRA} offset:{RS * (i >> 1) + 1024 * (i & 1)}')
    OE, OM = opt('oearly', 0), opt('omid', 0)
    a('s_waitcnt lgkmcnt(0)')
    for r in range(4):
        if r == OE and OM and not DWHO:
            a('s_cmp_lt_u32 s3, 112')
            a('s_cbranch_scc0 dr_go')
            lds_spin('dr', 16, 4, 68)
        if r == OE + OM and not DWHO:
            a('s_cmp_lt_u32 s3, 112')
            a('s_cbranch_scc0 dp_go')
            lds_spin('dp', 16, 8, 68, sleep=2)
        a('s_cmp_eq_u32 s68, s64')
        a('s_cselect_b32 s60, 0x40000000, s69')
        for hf in range(2):
            i = 2 * r + hf
            a(f'buffer_store_dwordx4 v[{4 + 4 * i}:{7 + 4 * i}], v2, {XBR}, s60 offen offset:{1024 * hf} sc1')
        if r < 3:
            a('s_add_u32 s68, s68, 1')
            a('s_add_u32 s69, s69, 2048')
    a('s_branch main_fl')
    TT = 8

    def d_perm(DW, ps):
        for p in ps:
            for k in range(2):
                lo, hi = DW + 2 * (8 * (p >> 2) + (p & 3)) + k, DW + 2 * (8 * (p >> 2) + (p & 3) + 4) + k
                t = 48 + k
                a(f'v_perm_b32 v{t}, v{hi}, v{lo}, s74')
                a(f'v_perm_b32 v{hi}, v{hi}, v{lo}, s75')
                a(f'v_mov_b32 v{lo}, v{t}')

    def gx_loads():
        for q in range(4):
            a(f'buffer_load_dwordx4 v[{52 + 4 * q}:{52 + 4 * q + 3}], v2, {WSR}, s62 offen offset:{1024 * q} sc1')

    def ffn2(DW, issued):
        P = 52
        a('s_mov_b32 s61, 0')
        if issued:
            a('s_branch pg_chk')
        a('pg_again:')
        gx_loads()
        a('pg_chk:')
        a('s_waitcnt vmcnt(0)')
        sentinel_check(range(P, P + 16), P + 16)
        a('s_cbranch_vccz pg_ok')
        a('s_add_u32 s61, s61, 1')
        a(f's_cmp_ge_u32 s61, {POLL_MAX}')
        a('s_cbranch_scc1 pg_ok')
        a('s_mov_b64 exec, vcc')
        a(f's_cmp_lt_u32 s61, {GXL}')
        a('s_cselect_b32 s62, s63, s79')
        if opt('gxsleep', 1):
            a(f's_sleep {opt("gxsleep", 1)}')
        a('s_branch pg_again')
        a('pg_ok:')
        a('s_mov_b64 exec, -1')
        stamp('gxpoll')
        pk('add', P, P, P + 4)
        pk('add', P + 2, P + 2, P + 6)
        pk('add', P + 8, P + 8, P + 12)
        pk('add', P + 10, P + 10, P + 14)
        pk('add', P, P, P + 8)
        pk('add', P + 2, P + 2, P + 10)
        a(f'v_permlane32_swap_b32 v{P}, v{P + 2}')
        a(f'v_permlane32_swap_b32 v{P + 1}, v{P + 3}')
        pk('add', P, P, P + 2)
        a(f'v_permlane16_swap_b32 v{P}, v{P + 1}')
        a(f'v_add_f32 v{TT}, v{P}, v{P + 1}')
        rnd(TT, TT)
        a(f'v_mul_f32 v{TT + 2}, 0xbfb8aa3b, v{TT}')
        a(f'v_mov_b32_dpp v{TT + 3}, v{TT} row_ror:8 row_mask:0xf bank_mask:0xf')
        a(f'v_exp_f32 v{TT + 2}, v{TT + 2}')
        a(f'v_add_f32 v{TT + 2}, 1.0, v{TT + 2}')
        a(f'v_rcp_f32 v{TT + 2}, v{TT + 2}')
        a(f'v_mul_f32 v{TT}, v{TT}, v{TT + 2}')
        rnd(TT, TT)
        a(f'v_mul_f32 v{TT}, v{TT}, v{TT + 3}')
        a(f'v_mov_b32_dpp v{TT + 1}, v{TT} row_shr:1 row_mask:0xf bank_mask:0xf bound_ctrl:0')
        a(f'v_cvt_pk_bf16_f32 v{TT}, v{TT + 1}, v{TT}')
        for p in range(16):
            a(f'v_readlane_b32 s{S_K + p}, v{TT}, {16 * (p & 3) + 2 * (p >> 2) + 1}')
        AC2 = 24
        for p in range(16):
            for c in range(4):
                r = DW + 2 * (8 * (p >> 2) + (p & 3) + 4 * (c & 1)) + (c >> 1)
                h = AC2 + 4 * (p & 1) + c
                src2 = '0' if p < 2 else f'v{h}'
                a(f'v_dot2_f32_bf16 v{h}, v{r}, s{S_K + p}, {src2}')
        pk('add', AC2, AC2, AC2 + 4)
        pk('add', AC2 + 2, AC2 + 2, AC2 + 6)
        a(f'buffer_store_dwordx4 v[{AC2}:{AC2 + 3}], v237, {WSR}, s77 offen sc1')
        stamp('pst')

    a('ffn2:')
    if DWHO:
        a('s_branch main_fl')
    else:
        a('s_cmp_lt_u32 s3, 112')
        a('s_cbranch_scc0 main_fl')
        for r in range(min(D2, 32), 32):
            for l in dl[r]:
                a(l)
        a('s_lshl_b32 s77, s3, 12')
        a(f's_add_u32 s77, s77, {WS_PART}')
        a(f's_add_u32 s63, s79, {WS_GX2 - WS_GX}')
        a(f's_mov_b32 s62, s{63 if GXL else 79}')
        for aa in range(4):
            a(f's_waitcnt vmcnt({24 - 8 * aa})')
            if aa == 3:
                lds_inc(16)
                stamp('dready')
                gx_loads()
            d_perm(DW, range(4 * aa, 4 * aa + 4))
        ffn2(DW, True)
        lds_inc(16)
        a('s_branch main_fl')

    a('helper_ffn:')
    a('s_cmp_lt_u32 s3, 112')
    a('s_cbranch_scc1 ffn_go')
    a('s_waitcnt vmcnt(0)')
    fb_publish()
    a('s_branch red_wait')
    a('ffn_go:')
    GW = 64
    a('s_and_b32 s76, s3, 15')
    a('s_lshl_b32 s77, s76, 2')
    a('s_add_u32 s77, s77, s13')
    a(f's_mul_i32 s77, s77, {16 * 7168}')
    a('s_lshr_b32 s78, s3, 4')
    a('s_lshl_b32 s60, s78, 10')
    a('s_add_u32 s77, s77, s60')
    a('s_lshl_b32 s78, s78, 2')
    a('s_add_u32 s78, s78, s13')
    a('s_lshl_b32 s78, s78, 14')
    a('s_lshl_b32 s60, s76, 8')
    a('s_add_u32 s78, s78, s60')
    a(f's_add_u32 s78, s78, {WS_GX}')
    a(f's_add_u32 s79, s78, {WS_GX2 - WS_GX}')
    if GXL and DWHO:
        a(f's_add_u32 s60, s61, {WS_GX2}')
        a(f'buffer_store_dwordx4 v[240:243], v237, {WSR}, s60 offen')
    assert DSP
    stamp('uw')
    steps = []
    for i in range(16):
        for m, sr in ((0, S_G), (1, S_U)):
            r = GW + 64 * m + 4 * i
            steps.append([f'buffer_load_dwordx4 v[{r}:{r + 3}], v2, s[{sr}:{sr + 3}], s77 offen nt'])
        steps[-1].append('s_add_u32 s77, s77, 7168')
    FBK = opt('fbk', 2)
    for k, stp in enumerate(steps):
        if k == PAUSE:
            stamp('pause')
            lds_spin('late2', 24, 1, 28, sleep=LSLEEP)
            lds_spin('yw', 8, 12, 28)
            if opt('rsleep', 0):
                a(f's_sleep {opt("rsleep", 0)}')
        for l in stp:
            a(l)
        if k >= DEPTH - 1 and k < PAUSE:
            a(f's_waitcnt vmcnt({DEPTH - 1})')
        if k == DEPTH - 1 and GXL and DWHO:
            lds_inc(28)
        if k == FBK - 1 and not FILLBY:
            a(f's_waitcnt vmcnt({FBK})')
            fb_publish()
    assert DEPTH <= PAUSE < 32
    if DWHO:
        lds_inc(16)
    for i2 in range(8):
        a(f's_waitcnt vmcnt({max(0, min(63, 32 - 4 * (i2 + 1)))})')
        for m in range(2):
            for k in range(4):
                lo, hi = GW + 64 * m + 8 * i2 + k, GW + 64 * m + 8 * i2 + 4 + k
                t = 32 + (k & 3)
                a(f'v_perm_b32 v{t}, v{hi}, v{lo}, s74')
                a(f'v_perm_b32 v{hi}, v{hi}, v{lo}, s75')
                a(f'v_mov_b32 v{lo}, v{t}')
    stamp('wready')
    a('s_cmp_eq_u32 s13, 0')
    a('s_cbranch_scc0 f2_bar')
    a('v_lshlrev_b32 v6, 2, v1')
    a(f'v_add_u32 v7, {L_X}, v6')
    if opt('kdelay', 0):
        a(f's_sleep {opt("kdelay", 0)}')
    key_poll(65)
    stamp('gkey')
    a('s_and_b32 s66, s65, 0xffff')
    a('s_sub_u32 s66, 2047, s66')
    a('s_lshr_b32 s66, s66, 4')
    a('s_lshl_b32 s66, s66, 12')
    a('s_lshl_b32 s60, s76, 7')
    a('s_add_u32 s66, s66, s60')
    a(f's_add_u32 s66, s66, {WS_CAND}')
    a('s_mov_b32 exec_hi, 0')
    retry_loop('px', [f'buffer_load_dword v8, v6, {WSR}, s66 offen sc1'], lambda: a('v_cmp_eq_u32 vcc, -1, v8'), sleep=1, mask='0xffffffff')
    a('ds_write_b32 v7, v8')
    a('s_mov_b64 exec, -1')
    a('s_waitcnt lgkmcnt(0)')
    a('f2_bar:')
    a('s_barrier')
    XS, AC = 36, 44
    stamp('ffn0')
    a(f'ds_read_b128 v[{XS}:{XS + 3}], v201')
    a(f'ds_read_b128 v[{XS + 4}:{XS + 7}], v201 offset:16')
    for p in range(8):
        if p % 4 == 0:
            a(f's_waitcnt lgkmcnt({1 - p // 4})')
        for m in range(2):
            for c in range(8):
                r = GW + 64 * m + 8 * p + 4 * (c & 1) + (c >> 1)
                i = AC + 8 * m + c
                src2 = '0' if p == 0 else f'v{i}'
                a(f'v_dot2_f32_bf16 v{i}, v{r}, v{XS + p}, {src2}')
    for q in range(4):
        a(f'ds_write_b128 v203, v[{AC + 4 * q}:{AC + 4 * q + 3}] offset:{128 * (q >> 1) + 16 * (q & 1)}')
    a('s_waitcnt lgkmcnt(0)')
    a('s_barrier')
    for q in range(4):
        a(f'ds_read_b128 v[{8 + 4 * q}:{11 + 4 * q}], v205 offset:{16 * RP * q}')
    a('s_waitcnt lgkmcnt(2)')
    pk('add', 8, 8, 12)
    pk('add', 10, 10, 14)
    a('s_waitcnt lgkmcnt(0)')
    pk('add', 16, 16, 20)
    pk('add', 18, 18, 22)
    pk('add', 8, 8, 16)
    pk('add', 10, 10, 18)
    if GXL:
        a(f'buffer_store_dwordx4 v[8:11], v247, {WSR}, s79 offen')
    a(f'buffer_store_dwordx4 v[8:11], v247, {WSR}, s78 offen sc1')
    stamp('gxst')
    a('s_branch main_fl')

    a('conv_ffn:')
    a('s_cmp_lt_u32 s3, 112')
    a('s_cbranch_scc0 red_conv')
    if DWHO:
        DW2 = 80
        lds_spin('gu', 16, 4, 8)
        d_base()
        for stp in d_list(DW2):
            for l in stp:
                a(l)
        a('v_lshlrev_b32 v237, 1, v253')
        a('s_lshl_b32 s77, s3, 12')
        a(f's_add_u32 s79, s77, {WS_GX}')
        a(f's_add_u32 s77, s77, {WS_PART}')
        a(f's_add_u32 s63, s79, {WS_GX2 - WS_GX}')
        a(f's_mov_b32 s62, s{63 if GXL else 79}')
        for aa in range(4):
            a(f's_waitcnt vmcnt({24 - 8 * aa})')
            d_perm(DW2, range(4 * aa, 4 * aa + 4))
        stamp('dready')
        a('s_barrier')
        a('s_barrier')
        ffn2(DW2, False)
    a('s_branch main_fl')

    a('red_conv:')
    a('s_cmp_eq_u32 s12, 0')
    a('s_cbranch_scc0 red_wait')
    if opt('rdelay', 0):
        a(f's_sleep {opt("rdelay", 0)}')
    key_poll(71)
    a('s_sub_u32 s76, s3, 112')
    a('s_and_b32 s72, s71, 0xffff')
    a('s_sub_u32 s72, 2047, s72')
    a('s_lshr_b32 s73, s72, 4')
    a('s_lshl_b32 s73, s73, 12')
    a('s_lshl_b32 s60, s76, 7')
    a('s_add_u32 s73, s73, s60')
    a(f's_add_u32 s73, s73, {WS_CAND}')
    a('s_lshl_b32 s72, s72, 11')
    a('s_add_u32 s72, s72, s60')
    a('v_and_b32 v6, 31, v0')
    a('v_lshlrev_b32 v6, 2, v6')
    a('s_cmp_eq_u32 s76, 0')
    a(f's_cselect_b32 s60, {WS_EPOCH}, 0x40000000')
    a('v_mov_b32 v49, s8')
    a('v_mov_b32 v50, 0')
    a('s_mov_b64 exec, 1')
    a(f'buffer_store_dword v49, v50, {WSR}, s60 offen')
    a('s_mov_b64 exec, -1')
    loads = [f'buffer_load_dword v{40 + p}, v6, {WSR}, s73 offen offset:{2048 * p} sc1' for p in range(2)]
    poll_loop('ph', loads, (40, 41), 42)
    a('s_and_b32 s60, s71, 0xffff0000')
    a('s_xor_b32 s61, s60, 0x80000000')
    a('s_xor_b32 s62, s60, 0xffff0000')
    a('s_cmp_lt_i32 s60, 0')
    a('s_cselect_b32 s60, s61, s62')
    a('v_mov_b32 v42, 0xbfb8aa3b')
    a('v_mul_f32 v42, s60, v42')
    a('v_exp_f32 v42, v42')
    a('v_add_f32 v42, 1.0, v42')
    a('v_rcp_f32 v42, v42')
    rnd(42, 42)
    unpack(44, 45, 40)
    unpack(46, 47, 41)
    a('red_wait:')
    a(f's_add_u32 s{S_G}, s{S_WS}, {WS_PART}')
    a(f's_addc_u32 s{S_G + 1}, s{S_WS + 1}, 0')
    a(f's_mov_b32 s{S_G + 2}, {112 * 4096}')
    a('s_sub_u32 s76, s3, 112')
    a('v_and_b32 v4, 15, v0')
    a('v_lshrrev_b32 v5, 4, v0')
    a('v_lshlrev_b32 v5, 12, v5')
    a('v_lshl_add_u32 v5, v4, 4, v5')
    a('s_lshl_b32 s64, s76, 8')
    a(f's_add_u32 s65, s64, {32 * 4096}')
    a(f's_add_u32 s66, s64, {64 * 4096}')
    a(f's_add_u32 s67, s64, {96 * 4096}')
    a('v_lshrrev_b32 v7, 4, v1')
    a('v_lshl_add_u32 v7, v4, 2, v7')
    a('v_lshlrev_b32 v7, 2, v7')
    a('s_lshl_b32 s60, s12, 8')
    a(f's_add_u32 s60, s60, {L_RED}')
    a('v_add_u32 v7, s60, v7')
    a('v_lshlrev_b32 v48, 3, v1')
    a(f'v_add_u32 v48, {L_RED}, v48')
    a('s_barrier')
    a(f's_sleep {opt("finsleep", 30)}')
    P = 8
    loads = [f'buffer_load_dwordx4 v[{P + 4 * r}:{P + 4 * r + 3}], v5, s[{S_G}:{S_G + 3}], s{64 + r} offen sc1' for r in range(4)]
    poll_loop('pp', loads, range(P, P + 16), 24)
    stamp('ppoll')
    pk('add', P, P, P + 4)
    pk('add', P + 2, P + 2, P + 6)
    pk('add', P + 8, P + 8, P + 12)
    pk('add', P + 10, P + 10, P + 14)
    pk('add', P, P, P + 8)
    pk('add', P + 2, P + 2, P + 10)
    a(f'v_permlane32_swap_b32 v{P}, v{P + 2}')
    a(f'v_permlane32_swap_b32 v{P + 1}, v{P + 3}')
    pk('add', P, P, P + 2)
    a(f'v_permlane16_swap_b32 v{P}, v{P + 1}')
    a(f'v_add_f32 v{P}, v{P}, v{P + 1}')
    a(f'ds_write_b32 v7, v{P}')
    a('s_waitcnt lgkmcnt(0)')
    a('s_barrier')
    a('s_cmp_eq_u32 s12, 0')
    a('s_cbranch_scc0 main_fl')
    a('s_mov_b32 exec_hi, 0')
    for q in range(8):
        a(f'ds_read_b64 v[{P + 2 * q}:{P + 2 * q + 1}], v48 offset:{256 * q}')
    a('s_waitcnt lgkmcnt(0)')
    for q in range(4):
        pk('add', P + 4 * q, P + 4 * q, P + 4 * q + 2)
    pk('add', P, P, P + 4)
    pk('add', P + 8, P + 8, P + 12)
    pk('add', P, P, P + 8)
    rnd(P, P)
    rnd(P + 1, P + 1)
    a(f'v_mul_f32 v{P}, v{P}, v42')
    a(f'v_mul_f32 v{P + 1}, v{P + 1}, v42')
    rnd(P, P)
    rnd(P + 1, P + 1)
    pk('add', P, P, 44)
    rnd(P, P)
    rnd(P + 1, P + 1)
    pk('add', P, P, 46)
    a(f'v_cvt_pk_bf16_f32 v{P}, v{P}, v{P + 1}')
    a(f'buffer_store_dword v{P}, v6, {XBR}, s72 offen')
    a('main_fl:')
    if opt('dbg', 0):
        a('s_waitcnt vmcnt(0) lgkmcnt(0)')
        stamp(7)
        a('s_mov_b64 s[96:97], s[100:101]')
        a('s_mov_b32 s98, 256')
        a('s_mov_b32 s99, 0x00020000')
        a('s_lshl_b32 s60, s2, 3')
        a('s_add_u32 s60, s60, s12')
        a('s_mov_b32 s61, 0x40000000')
        a(f's_cmp_eq_u32 s60, {225 * 8}')
        a('s_cselect_b32 s61, 0, s61')
        a(f's_cmp_eq_u32 s60, {opt("dbg", 0) * 8 + opt("dbgw", 0)}')
        a('s_cselect_b32 s61, 32, s61')
        a('s_mov_b64 exec, 1')
        a('v_mov_b32 v1, 0')
        a('s_waitcnt lgkmcnt(0)')
        for i in range(8):
            a(f's_sub_u32 s60, s{80 + 2 * i}, s80')
            a(f's_cmp_eq_u32 s{80 + 2 * i}, 0')
            a('s_cselect_b32 s60, 0, s60')
            a('v_mov_b32 v2, s60')
            a(f'buffer_store_dword v2, v1, s[96:99], s61 offen offset:{4 * i}')
    else:
        stamp_flush(S_WS, 7, 0)
    a('main_done:')
    a('s_endpgm')
    return kernel_desc(KN, 256, 102 if STAMPS else 80)


launch = '; @launch grid=(256,1,1) block=(512,1,1) lds=%d\n' % MAIN_LDS
finish(launch, [k_main()])
```

```python
from common import *
import common
STAMPS = common.STAMPS

WS_KEYS = 0
WS_EPOCH = 32 * 1024
WS_GX = 1536 * 1024
WS_FA = 128 * 1024
WS_FB = 192 * 1024
WS_FA2 = 64 * 1024
WS_CAND = 262144
WS_PART = 1 << 20
WS_GX2 = 6 << 20
WS_KV = 2 << 20
WS_SIZE = 7 << 20
WSOFF = opt('wsoff', 0) << 20
common.WS_STAMP -= WSOFF
POLL_MAX = 1 << 16
KN = NAME + '_kernel'

DEPTH = opt('depth', 7)
XPOS = opt('xpos', 4)
UWOFF = opt('uwoff', 0)
FLC = opt('flc', 3)
FBC = opt('fbc', 10)
YSLEEP = opt('ysleep', 1)
CODEPF = opt('codepf', 6)
DEARLY = opt('dearly', 0)
DWHO = opt('dwho', 0)
GXL = opt('gxl', 40)
DYN = opt('dyn', 0)
LSLEEP = opt('lsleep', 6)
FILLBY = opt('fillby', 1)
DUAL = opt('dual', 12)
KVS = '' if opt('l2kv', 0) else ' sc1'
KVL = {0: ' sc1', 1: ' sc0', 2: ''}[opt('kvl', 0)]
FAL = {0: ' sc1', 1: ' sc0', 2: ''}[opt('fal', 0)]
PAUSE = opt('pause', 20)

GS = 4160
UOFF = 4 * GS
CS = 21312
L_YL = 4 * CS
RS = 2064
L_YT = L_YL + 16384
L_P0 = L_YL
L_W = L_YT + 16 * RS
L_ST = L_W + 2048
L_PART = 0
PS = 272
RP = 272
L_H = 8192
L_CNT = L_ST + 272
L_GKEY = L_CNT + 28
L_SW = L_CNT + 32
L_X = L_CNT + 48
L_RED = L_X + 1024
MAIN_LDS = L_RED + 4096

S_K, S_V, S_SK, S_H, S_WS, S_Q, S_WR, S_OUT, S_G, S_U, S_D = 16, 20, 24, 28, 32, 36, 40, 44, 48, 52, 56
WSR = f's[{S_WS}:{S_WS + 3}]'
XBR = f's[{S_OUT}:{S_OUT + 3}]'
KVR = WSR
VC, V1 = 254, 255


def sentinel_check(regs, tmp):
    rs = list(regs)
    cur = rs.pop(0)
    while rs:
        if len(rs) >= 2:
            a(f'v_max3_u32 v{tmp}, v{cur}, v{rs[0]}, v{rs[1]}')
            rs = rs[2:]
        else:
            a(f'v_max_u32 v{tmp}, v{cur}, v{rs[0]}')
            rs = rs[1:]
        cur = tmp
    a(f'v_cmp_eq_u32 vcc, -1, v{cur}')


def retry_loop(name, loads, check, sleep=2, issued=False, mask='-1'):
    a('s_mov_b32 s61, 0')
    if issued:
        a(f's_branch {name}_chk')
    a(f'{name}_again:')
    for l in loads:
        a(l)
    a(f'{name}_chk:')
    a('s_waitcnt vmcnt(0)')
    check()
    a(f's_cbranch_vccz {name}_ok')
    a('s_add_u32 s61, s61, 1')
    a(f's_cmp_ge_u32 s61, {POLL_MAX}')
    a(f's_cbranch_scc1 {name}_ok')
    a('s_mov_b64 exec, vcc')
    a(f's_sleep {sleep}')
    a(f's_branch {name}_again')
    a(f'{name}_ok:')
    a(f's_mov_b64 exec, {mask}')


def poll_loop(name, loads, regs, tmp, sleep=2, issued=False):
    retry_loop(name, loads, lambda: sentinel_check(regs, tmp), sleep, issued)


def lds_spin(name, off, want, vt, sleep=1):
    a('s_mov_b32 s61, 0')
    a(f'{name}_spin:')
    a(f'ds_read_b32 v{vt}, v{VC} offset:{off}')
    a('s_add_u32 s61, s61, 1')
    a('s_waitcnt lgkmcnt(0)')
    a(f'v_readfirstlane_b32 s60, v{vt}')
    a(f's_cmp_ge_u32 s60, {want}')
    a(f's_cbranch_scc1 {name}_go')
    a(f's_cmp_ge_u32 s61, {1 << 22}')
    a(f's_cbranch_scc1 {name}_go')
    a(f's_sleep {sleep}')
    a(f's_branch {name}_spin')
    a(f'{name}_go:')


def lds_inc(off):
    a('s_mov_b64 exec, 1')
    a(f'ds_add_u32 v{VC}, v{V1} offset:{off}')
    a('s_mov_b64 exec, -1')


XP = [4, 20]
N = [36, 52]
T = [68, 84]
WF = 100
MV = [116, 120]
AA = [124, 132]
YR = [140, 148]
XR = 36
VG8, VXA, VWA, VSA, VKL, VPR, VPW, VRA, VBIT = range(228, 237)


def ln_x(xr, wr):
    for r in range(2):
        for i in range(8):
            unpack(XP[r] + 2 * i, XP[r] + 2 * i + 1, xr + 8 * r + i)
    for i in range(8):
        unpack(WF + 2 * i, WF + 2 * i + 1, wr + i)
    srcs = [(XP[0], T[0]), (XP[1], T[0] + 8), (WF, T[1])]
    for i in range(4):
        for (sx, t) in srcs:
            pk('add', t + 2 * i, sx + 4 * i, sx + 4 * i + 2)
    for (_, b) in srcs:
        pk('add', b, b, b + 2)
        pk('add', b + 4, b + 4, b + 6)
    for (_, b) in srcs:
        pk('add', b, b, b + 4)
    for (_, b) in srcs:
        a(f'v_add_f32 v{b}, v{b}, v{b + 1}')
    K = T[1] + 8
    a(f'v_mov_b32 v{K}, 0x3a800000')
    wave_reduce('v_add_f32', [b for _, b in srcs])
    a(f'v_readlane_b32 s60, v{T[0]}, 63')
    a(f'v_readlane_b32 s62, v{T[0] + 8}, 63')
    a(f'v_readlane_b32 s71, v{T[1]}, 63')
    for r in range(2):
        M, V = MV[r], MV[r] + 2
        a(f'v_mul_f32 v{V}, s{60 + 2 * r}, v{K}')
    for r in range(2):
        M, V = MV[r], MV[r] + 2
        rnd(M, V)
        rnd(M + 1, V)
        a(f'v_sub_f32 v{V}, v{V}, v{M}')
        a(f'v_readfirstlane_b32 s{72 + r}, v{M}')
    for r in range(2):
        for i in range(8):
            pk('add', XP[r] + 2 * i, XP[r] + 2 * i, MV[r], mods='neg_lo:[0,1] neg_hi:[0,1]')
    for i in range(8):
        for r in range(2):
            if i == 0:
                pk('mul', AA[r], XP[r], XP[r])
            else:
                pk('fma', AA[r], XP[r] + 2 * i, XP[r] + 2 * i, AA[r])
    for r in range(2):
        a(f'v_add_f32 v{AA[r]}, v{AA[r]}, v{AA[r] + 1}')
        a(f'v_mul_f32 v{MV[r] + 2}, v{MV[r] + 2}, v{MV[r] + 2}')
    wave_reduce('v_add_f32', AA)
    for r in range(2):
        a(f'v_readlane_b32 s{60 + 2 * r}, v{AA[r]}, 63')
    for step in range(8):
        for r in range(2):
            V = MV[r] + 2
            if step == 0:
                a(f'v_fma_f32 v{V}, s{60 + 2 * r}, v{K}, -v{V}')
            elif step in (1, 3, 5):
                rnd(V, V)
            elif step == 2:
                a(f'v_add_f32 v{V}, 0x3727c5ac, v{V}')
            elif step == 4:
                a(f'v_sqrt_f32 v{V}, v{V}')
            elif step == 6:
                a(f'v_rcp_f32 v{V + 1}, v{V}')
            else:
                a(f'v_rcp_f32 v{V}, v{V}')
    for r in range(2):
        for i in range(16):
            rnd(N[r] + i, XP[r] + i)
    for r in range(2):
        for i in range(8):
            pk('mul', N[r] + 2 * i, N[r] + 2 * i, MV[r] + 2)
    for r in range(2):
        for i in range(16):
            rnd(N[r] + i, N[r] + i)


def key_poll(dst):
    a('v_lshlrev_b32 v4, 7, v1')
    a(f's_mov_b32 s65, {WS_KEYS}')
    a(f's_mov_b32 s66, {WS_KEYS + 8192}')
    if opt('kcan', 1):
        a('s_lshl_b32 s62, s3, 7')
        a(f's_add_u32 s62, s62, {WS_KEYS + 4}')
        a('s_mov_b64 exec, 1')
        retry_loop(a.newlabel('kc'), [f'buffer_load_dword v8, v4, {WSR}, s62 offen sc1'], lambda: a('v_cmp_ne_u32 vcc, s8, v8'), sleep=opt('kcsleep', 2))
        stamp('kcan')
    loads = [f'buffer_load_dwordx2 v[{16 + 2 * p}:{17 + 2 * p}], v4, {WSR}, s{65 + p} offen sc1' for p in range(2)]

    def chk():
        a('v_xor_b32 v8, s8, v17')
        a('v_xor_b32 v9, s8, v19')
        a('v_max_u32 v12, v16, v18')
        a('v_or_b32 v8, v8, v9')
        a('v_cmp_ne_u32 vcc, 0, v8')
    retry_loop(a.newlabel('pk'), loads, chk, sleep=opt('ksleep', 2))
    wave_reduce('v_max_u32', 12)
    a(f'v_readlane_b32 s{dst}, v12, 63')


def k_main():
    kernel_begin(a, KN)
    a('s_cmp_ge_u32 s2, 256')
    a('s_cbranch_scc1 main_done')
    stamp_begin(0)
    if opt('dbg', 0):
        a('s_load_dwordx2 s[100:101], s[0:1], 96')
    for sr, off in ((S_WS, 104), (S_K, 8), (S_V, 16), (S_SK, 24), (S_H, 32), (10, 40), (S_Q, 0), (S_WR, 56), (S_OUT, 88), (S_G, 64), (S_U, 72), (S_D, 80)):
        a(f's_load_dwordx2 s[{sr}:{sr + 1}], s[0:1], {off}')
    if CODEPF:
        a('s_getpc_b64 s[4:5]')
        a('pc0:')
        a('s_mov_b32 s6, main_done-pc0')
        a('s_mov_b32 s7, 0x00020000')
        a('s_lshr_b32 s3, s2, 3')
        a(f's_mul_i32 s3, s3, {CODEPF * 128}')
        a('v_lshlrev_b32 v3, 7, v0')
        a(f'v_cmp_gt_u32 vcc, {CODEPF}, v0')
        a('s_and_saveexec_b64 s[60:61], vcc')
        a('s_cbranch_execz no_codepf')
        a('buffer_load_dword v252, v3, s[4:7], s3 offen')
        a('no_codepf:')
        a('s_mov_b64 exec, -1')
    a('s_lshr_b32 s5, s2, 4')
    a('s_and_b32 s4, s2, 7')
    a('s_lshl_b32 s4, s4, 1')
    a('s_bfe_u32 s6, s2, 0x10003')
    a('s_or_b32 s4, s4, s6')
    a('s_lshl_b32 s2, s4, 4')
    a('s_or_b32 s2, s2, s5')
    a('v_lshrrev_b32 v3, 6, v0')
    a('v_and_b32 v1, 63, v0')
    a('v_readfirstlane_b32 s12, v3')
    a('v_lshlrev_b32 v2, 4, v1')
    a(f'v_mov_b32 v{VC}, {L_CNT}')
    a(f'v_mov_b32 v{V1}, 1')
    for r in range(6):
        a(f'v_mov_b32 v{144 + r}, 0')
    for r in range(4):
        a(f'v_mov_b32 v{240 + r}, -1')
    a('s_cmp_eq_u32 s12, 0')
    a('s_cbranch_scc0 no_cnt_init')
    a('s_mov_b64 exec, 1')
    a(f'ds_write_b128 v{VC}, v[144:147]')
    a(f'ds_write_b128 v{VC}, v[144:147] offset:16')
    a('s_mov_b64 exec, -1')
    a('no_cnt_init:')
    for sr, n in ((S_WS, WS_SIZE), (S_K, MB4), (S_V, MB4), (S_SK, 8192), (S_H, 4096), (S_Q, MB4), (S_WR, 2048), (S_OUT, MB4),
                  (S_G, 1024 * 7168), (S_U, 1024 * 7168), (S_D, 3584 * 2048)):
        a(f's_mov_b32 s{sr + 2}, {n}')
        a(f's_mov_b32 s{sr + 3}, 0x00020000')
    a('s_and_b32 s13, s12, 3')
    if opt('gmix', 1):
        a('s_and_b32 s14, s12, 1')
        a('s_xor_b32 s4, s4, s14')
    a('s_lshr_b32 s14, s12, 2')
    a('s_lshl_b32 s15, s2, 2')
    a('s_add_u32 s15, s15, s13')
    a('s_lshr_b32 s3, s2, 1')
    a('v_and_b32 v4, 15, v1')
    a('v_lshrrev_b32 v5, 4, v1')
    a('v_and_b32 v10, 31, v1')
    a('v_lshrrev_b32 v11, 5, v1')
    a('v_lshrrev_b32 v6, 3, v1')
    a('v_lshlrev_b32 v8, 11, v6')
    a('v_lshlrev_b32 v6, 13, v6')
    a('v_and_b32 v7, 7, v1')
    a('v_lshl_add_u32 v6, v7, 4, v6')
    a('v_lshl_add_u32 v8, v7, 4, v8')
    a('s_lshl_b32 s62, s4, 17')
    a('s_lshl_b32 s63, s13, 11')
    a('s_add_u32 s62, s62, s63')
    a('s_lshl_b32 s63, s14, 21')
    a('s_add_u32 s62, s62, s63')
    a(f's_add_u32 s62, s62, {WS_KV}')
    a('s_lshl_b32 s63, s5, 7')
    a('s_add_u32 s62, s62, s63')
    a('s_add_u32 s63, s62, 0x10000')
    a('s_lshl_b32 s64, s12, 19')
    a('s_lshl_b32 s65, s5, 15')
    a('s_add_u32 s64, s64, s65')
    a('s_lshl_b32 s65, s4, 7')
    a('s_add_u32 s64, s64, s65')
    a('s_add_u32 s65, s64, 16384')
    a('s_sub_u32 s77, s64, 6144')
    a('s_cselect_b32 s77, 0x40000000, s77')
    a('s_lshl_b32 s79, s4, 9')
    a('v_lshlrev_b32 v9, 4, v10')
    a('s_lshl_b32 s67, s15, 12')
    a('s_lshl_b32 s70, s15, 1')
    a('s_and_b32 s70, s70, 0xfffffffc')
    a('s_lshl_b32 s68, s3, 4')
    a('s_lshl_b32 s69, s13, 2')
    a('s_add_u32 s68, s68, s69')
    a('s_lshl_b32 s69, s68, 11')
    a('s_mul_i32 s66, s12, 4608')
    a(f's_add_u32 s66, s66, {L_P0}')
    a(f's_mov_b32 s6, {WS_EPOCH}')
    a('s_mov_b32 m0, s66')
    a('s_waitcnt lgkmcnt(0)')
    stamp('karg')
    if WSOFF:
        a(f's_add_u32 s{S_WS}, s{S_WS}, {WSOFF}')
        a(f's_addc_u32 s{S_WS + 1}, s{S_WS + 1}, 0')
    a(f's_load_dword s8, s[{S_WS}:{S_WS + 1}], s6')
    a('s_load_dword s9, s[10:11], s70')
    KR, VR, SKR = 16, 28, 36

    GL = 96
    a('s_cmp_eq_u32 s14, 0')
    a('s_cbranch_scc1 ld_kv')
    a(f's_add_u32 s{S_H}, s{S_H}, s67')
    a(f's_addc_u32 s{S_H + 1}, s{S_H + 1}, 0')
    a('s_barrier')
    for i in range(4):
        a(f'buffer_load_dwordx4 v[{GL + 6 * i}:{GL + 6 * i + 3}], v2, s[{S_H}:{S_H + 3}], 0 offen offset:{1024 * i} nt')
    if opt('hipos', 0):
        a(f's_waitcnt vmcnt({4 - opt("hipos", 0)})')
    a('ld_kv:')
    a(f'buffer_load_dwordx4 v[{SKR}:{SKR + 3}], v9, s[{S_SK}:{S_SK + 3}], s79 offen')
    a('s_mov_b64 exec, 0xffffff')
    a(f'buffer_load_dwordx4 v8, s[{S_K}:{S_K + 3}], s77 offen nt lds')
    a('s_mov_b64 exec, -1')
    for (sr, so, lo) in ((S_K, 64, 384), (S_K, 65, 1408), (S_V, 64, 2432), (S_V, 65, 3456)):
        a(f's_add_u32 m0, s66, {lo}')
        a(f'buffer_load_dwordx4 v8, s[{sr}:{sr + 3}], s{so} offen nt lds')
    a('s_cmp_eq_u32 s14, 0')
    a('s_cbranch_scc0 ld_done')
    a('s_barrier')
    a('ld_done:')
    a(f's_mul_i32 s67, s13, {CS}')
    a('s_mov_b32 s74, 0x05040100')
    a('s_mov_b32 s75, 0x07060302')
    a('v_lshlrev_b32 v92, 10, v11')
    a('v_lshl_add_u32 v92, v10, 2, v92')
    a('v_add_u32 v92, s66, v92')
    a('v_add_u32 v93, 1024, v92')
    a('v_add_u32 v94, 2432, v92')
    a('v_lshrrev_b32 v8, 1, v10')
    a('v_mul_u32_u24 v8, 144, v8')
    a('v_and_b32 v9, 1, v10')
    a('v_lshl_add_u32 v8, v9, 6, v8')
    a('v_sub_u32 v9, 1, v11')
    a('v_lshl_add_u32 v8, v9, 4, v8')
    a('v_add_u32 v8, s66, v8')
    a('v_lshrrev_b32 v9, 3, v1')
    a('v_mul_u32_u24 v9, 144, v9')
    a('v_lshl_add_u32 v9, v7, 4, v9')
    a('v_add_u32 v9, s66, v9')
    a('v_add_u32 v160, s67, v2')
    a('v_and_b32 v161, 3, v1')
    a(f'v_mul_u32_u24 v161, {GS}, v161')
    a('v_bfe_u32 v162, v1, 2, 2')
    a('v_lshl_add_u32 v161, v162, 3, v161')
    a('v_lshl_add_u32 v161, v5, 4, v161')
    a('v_add_u32 v161, s67, v161')
    a(f's_add_u32 s60, s67, {UOFF + 480}')
    a('v_lshlrev_b32 v163, 5, v4')
    a('v_sub_u32 v162, s60, v163')
    a('v_lshl_add_u32 v162, v5, 4, v162')
    a('v_lshl_add_u32 v163, v5, 3, v163')
    a('s_lshl_b32 s60, s13, 12')
    a(f's_add_u32 s60, s60, {L_YL}')
    a('v_add_u32 v163, s60, v163')
    a('v_bfe_u32 v165, v1, 1, 2')
    a(f'v_mul_u32_u24 v165, {CS}, v165')
    a('v_and_b32 v166, 1, v1')
    a('v_lshl_add_u32 v165, v166, 4, v165')
    a('v_lshrrev_b32 v166, 3, v1')
    a('v_lshlrev_b32 v166, 5, v166')
    a('v_sub_u32 v165, v165, v166')
    a('s_lshl_b32 s60, s12, 9')
    a(f's_sub_u32 s60, {UOFF + 4064 - 256}, s60')
    a('v_add_u32 v165, s60, v165')
    a('s_lshl_b32 s78, s2, 13')
    a('s_lshl_b32 s60, s13, 11')
    a('s_add_u32 s78, s78, s60')
    a('s_lshl_b32 s60, s14, 21')
    a('s_add_u32 s78, s78, s60')
    a(f's_add_u32 s78, s78, {WS_KV}')
    a('v_lshl_add_u32 v166, v5, 3, v4')
    a('v_sub_u32 v166, 15, v166')
    a('v_and_b32 v167, 1, v166')
    a('v_lshlrev_b32 v167, 4, v167')
    a('v_ashrrev_i32 v166, 1, v166')
    a(f'v_mul_u32_u24 v150, {GS}, v1')
    a('v_add_u32 v150, s67, v150')
    a('v_lshlrev_b32 v245, 7, v4')
    a('v_bfe_u32 v248, v1, 3, 2')
    a('v_lshlrev_b32 v248, 13, v248')
    a('v_lshl_add_u32 v248, v7, 7, v248')
    a('v_lshlrev_b32 v251, 4, v0')
    a(f'v_lshrrev_b32 v{VG8}, 3, v0')
    a(f'v_lshlrev_b32 v{VG8}, 3, v{VG8}')
    a(f'v_mul_u32_u24 v{VXA}, {2 * RS}, v7')
    a(f'v_add_u32 v{VXA}, v{VXA}, v{VG8}')
    a(f'v_add_u32 v{VXA}, {L_YT}, v{VXA}')
    a(f'v_add_u32 v{VWA}, {L_W}, v{VG8}')
    a(f'v_lshlrev_b32 v{VSA}, 5, v7')
    a(f'v_add_u32 v{VSA}, {L_ST}, v{VSA}')
    a(f'v_bfe_u32 v{VKL}, v1, 3, 1')
    a(f'v_lshl_add_u32 v{VKL}, v7, 1, v{VKL}')
    a(f'v_mul_u32_u24 v{VPR}, {PS}, v{VKL}')
    a(f'v_lshl_add_u32 v{VPR}, v5, 6, v{VPR}')
    a(f'v_lshl_add_u32 v{VPW}, v7, 1, v11')
    a(f'v_mul_u32_u24 v{VPW}, {PS}, v{VPW}')
    a('v_and_b32 v3, 1, v5')
    a(f'v_lshl_add_u32 v{VPW}, v3, 4, v{VPW}')
    a('s_lshl_b32 s60, s12, 5')
    a(f'v_add_u32 v{VPW}, s60, v{VPW}')
    a('s_lshl_b32 s60, s3, 4')
    a('s_sub_u32 s60, 2047, s60')
    a(f'v_sub_u32 v{VKL}, s60, v{VKL}')
    a(f's_mul_i32 s60, s13, {4 * RS}')
    a(f's_add_u32 s60, s60, {L_YT}')
    a(f'v_add_u32 v{VRA}, s60, v2')
    a(f'v_lshrrev_b32 v{VBIT}, 3, v1')
    a(f'v_lshlrev_b32 v{VBIT}, v{VBIT}, 1')
    a('v_and_b32 v253, 255, v0')
    a('v_lshlrev_b32 v253, 3, v253')
    a('v_lshlrev_b32 v237, 1, v253')
    a('v_lshlrev_b32 v247, 12, v5')
    a('v_lshl_add_u32 v247, v4, 4, v247')
    a('s_mov_b64 exec, 0xf')
    a('ds_write_b128 v150, v[144:147]')
    a('s_mov_b64 exec, 0x3fffffff')
    a(f'ds_write_b128 v160, v[144:147] offset:{UOFF + 4096}')
    a('s_mov_b64 exec, -1')
    WFp, KF, O, PKD = 40, 48, 70, 86
    a('s_waitcnt lgkmcnt(0)')
    a('s_add_u32 s8, s8, 0x9e3779b9')
    a('s_or_b32 s8, s8, 1')
    a('s_and_b32 s61, s15, 1')
    a('s_lshl_b32 s61, s61, 4')
    a('s_lshr_b32 s9, s9, s61')
    a('s_and_b32 s9, s9, 0xffff')
    a('v_lshlrev_b32 v167, v167, s9')
    for r in range(4):
        a(f'v_cmp_eq_u32 vcc, {r}, v166')
        a(f'v_cndmask_b32 v{168 + r}, 0, v167, vcc')
    a('s_lshl_b32 s64, s4, 11')
    a(f's_add_u32 s64, s64, {WS_FA}')
    a('s_lshl_b32 s65, s2, 7')
    a(f's_add_u32 s7, s65, {WS_FB}')
    a(f's_add_u32 s65, s65, {WS_FA}')
    a('v_mov_b32 v13, s8')
    a('v_mov_b32 v14, 0')
    a(f's_add_u32 s10, s65, {WS_FA2 - WS_FA}')
    a('s_cmp_eq_u32 s12, 0')
    a('s_cselect_b32 s60, s10, 0x40000000')
    a('s_mov_b64 exec, 0xff')
    a(f'buffer_store_dwordx4 v[144:147], v2, {WSR}, s60 offen')
    a('s_mov_b64 exec, -1')
    XV = 1
    a('s_lshl_b32 s60, s12, 2')
    a('s_add_u32 s64, s64, s60')
    a('s_add_u32 s65, s65, s60')
    a('s_add_u32 s10, s10, s60')
    a(f's_add_u32 s11, s64, {WS_FA2 - WS_FA}')
    if DYN:
        a('s_memrealtime s[4:5]')
    a('s_cmp_eq_u32 s14, 0')
    a('s_cbranch_scc1 p0')
    LATER = 6 + XV
    a(f's_waitcnt vmcnt({LATER + 3})')
    a(f'v_readlane_b32 s76, v{GL}, 0')
    a(f'v_readlane_b32 s77, v{GL + 1}, 0')
    a('s_lshl_b32 s70, s76, 16')
    a('s_lshr_b32 s61, s76, 16')
    a('s_lshl_b32 s71, s77, 16')
    a('s_or_b32 s61, s61, s71')
    a('v_writelane_b32 v149, s70, 0')
    a('v_writelane_b32 v149, s76, 1')
    a('v_writelane_b32 v149, s61, 2')
    a('v_writelane_b32 v149, s77, 3')
    a('v_writelane_b32 v148, s70, 2')
    a('v_writelane_b32 v148, s76, 3')
    a('s_mov_b64 exec, 0xf')
    a('ds_write_b128 v150, v[146:149] offset:16')
    a('s_mov_b64 exec, -1')
    for i in range(4):
        w = GL + 6 * i
        a(f'v_mov_b32_dpp v{w + 4}, v{w} wave_shl:1 row_mask:0xf bank_mask:0xf bound_ctrl:0')
        a(f'v_mov_b32_dpp v{w + 5}, v{w + 1} wave_shl:1 row_mask:0xf bank_mask:0xf bound_ctrl:0')
        if i < 3:
            a(f's_waitcnt vmcnt({LATER + 2 - i})')
            a(f'v_readlane_b32 s70, v{w + 6}, 0')
            a(f'v_readlane_b32 s71, v{w + 7}, 0')
            a(f'v_writelane_b32 v{w + 4}, s70, 63')
            a(f'v_writelane_b32 v{w + 5}, s71, 63')
        ta, tb, tc = 176 + 12 * i, 180 + 12 * i, 184 + 12 * i
        a(f'ds_write_b128 v160, v[{w + 2}:{w + 5}] offset:{32 + 1024 * i + 3 * GS}')
        for j in range(4):
            a(f'v_alignbit_b32 v{ta + j}, v{w + j + 1}, v{w + j}, 16')
        a(f'ds_write_b128 v160, v[{ta}:{ta + 3}] offset:{32 + 1024 * i + 0 * GS}')
        for j in range(4):
            a(f'v_alignbit_b32 v{tb + j}, v{w + j + 2}, v{w + j + 1}, 16')
        a(f'ds_write_b128 v160, v[{tb}:{tb + 3}] offset:{32 + 1024 * i + 2 * GS}')
        for j in range(4):
            a(f'v_mov_b32 v{tc + j}, v{w + j + 1}')
        a(f'ds_write_b128 v160, v[{tc}:{tc + 3}] offset:{32 + 1024 * i + 1 * GS}')
    lds_inc(20)
    a(f'v_add_u32 v239, {L_W}, v2')
    a('v_and_b32 v244, 1, v5')
    a('v_lshl_add_u32 v244, v244, 1, v11')
    a('v_lshlrev_b32 v244, 4, v244')
    a('s_lshl_b32 s60, s13, 6')
    a(f's_add_u32 s60, s60, {L_ST}')
    a('v_add_u32 v244, s60, v244')
    a('s_waitcnt lgkmcnt(0)')
    for p in range(4):
        a(f'v_mov_b32 v{YR[0] + 4 * p}, -1')
    a('s_lshl_b32 s60, s13, 5')
    a(f's_add_u32 s60, s60, {L_X}')
    a('v_mov_b32 v201, s60')
    a(f'v_mul_u32_u24 v203, {RP}, v4')
    a('v_lshl_add_u32 v203, v5, 5, v203')
    a(f's_mul_i32 s60, s13, {16 * RP}')
    a('v_add_u32 v203, s60, v203')
    a(f'v_mul_u32_u24 v205, {RP}, v5')
    a('v_lshl_add_u32 v205, v4, 4, v205')
    a(f's_mul_i32 s60, s13, {4 * RP}')
    a('v_add_u32 v205, s60, v205')
    stamp('gdone')
    a('p0:')
    a(f's_waitcnt vmcnt({5 + XV})')
    for jj in range(2):
        unpack(WFp + 0 + jj, WFp + 2 + jj, SKR + 2 * jj)
        unpack(WFp + 4 + jj, WFp + 6 + jj, SKR + 2 * jj + 1)
    a(f's_waitcnt vmcnt({2 + XV})')
    stamp('kdata')
    for r in range(0, 8, 2):
        a(f'ds_read2_b32 v[{KR + r}:{KR + r + 1}], v92 offset0:{32 * r} offset1:{32 * r + 32}')
    a(f'ds_read2_b32 v[{KR + 8}:{KR + 9}], v93 offset0:0 offset1:32')
    a(f'ds_read_b32 v{KR + 10}, v93 offset:256')
    a(f's_waitcnt vmcnt({0 + XV})')
    for r in range(0, 8, 2):
        a(f'ds_read2_b32 v[{VR + r}:{VR + r + 1}], v94 offset0:{32 * r} offset1:{32 * r + 32}')
    for r in range(11):
        if r % 2 == 0:
            a(f's_waitcnt lgkmcnt({9 - r // 2})')
        unpack(KF + 2 * r, KF + 2 * r + 1, KR + r)
    for t in range(4):
        tap = 3 - t
        for r in range(8):
            if t == 0:
                pk('mul', O + 2 * r, KF + 2 * (r + t), WFp + 2 * tap)
            else:
                pk('fma', O + 2 * r, KF + 2 * (r + t), WFp + 2 * tap, O + 2 * r)
    a('s_waitcnt lgkmcnt(0)')
    for r in range(8):
        unpack(KF + 2 * r, KF + 2 * r + 1, VR + r)
    for r in range(8):
        pk('mul', O + 2 * r, O + 2 * r, KF + 2 * r)
    for jj in range(2):
        d = PKD + 2 + 4 * jj
        for m in range(4):
            a(f'v_cvt_pk_bf16_f32 v{d + m}, v{O + 2 * (7 - 2 * m) + jj}, v{O + 2 * (6 - 2 * m) + jj}')
        a(f'ds_write_b128 v8, v[{d}:{d + 3}] offset:{32 * jj}')
    a('s_waitcnt lgkmcnt(0)')
    a('ds_read_b128 v[16:19], v9')
    a(f'ds_read_b128 v[20:23], v9 offset:{8 * 144}')
    a('s_waitcnt lgkmcnt(1)')
    a(f'buffer_store_dwordx4 v[16:19], v6, {KVR}, s62 offen sc1')
    a('s_waitcnt lgkmcnt(0)')
    a(f'buffer_store_dwordx4 v[20:23], v6, {KVR}, s63 offen sc1')
    stamp('kvst')
    UP = 120
    a('s_waitcnt vmcnt(0)')
    stamp('kvack')
    a('s_mov_b64 exec, 1')
    a(f'buffer_store_dword v13, v14, {WSR}, s10 offen')
    a(f'buffer_store_dword v13, v14, {WSR}, s65 offen sc1')
    a('s_mov_b64 exec, 0xffff')
    a('s_mov_b32 s61, 0')
    a('fa2_again:')
    a(f'buffer_load_dword v246, v245, {WSR}, s11 offen sc1')
    a('s_add_u32 s61, s61, 1')
    a('s_waitcnt vmcnt(0)')
    a('v_cmp_ne_u32 vcc, s8, v246')
    a('s_cbranch_vccz fa_ok')
    a('s_mov_b64 exec, vcc')
    if opt('fa2sleep', 0):
        a(f's_sleep {opt("fa2sleep", 0)}')
    a(f's_cmp_lt_u32 s61, {DUAL}')
    a('s_cbranch_scc1 fa2_again')
    retry_loop('fa', [f'buffer_load_dword v246, v245, {WSR}, s64 offen sc1'], lambda: a('v_cmp_ne_u32 vcc, s8, v246'), sleep=opt('fasleep', 1))
    stamp('faok')
    for q in range(2):
        a(f'buffer_load_dwordx4 v[{UP + 4 * q}:{UP + 4 * q + 3}], v2, {KVR}, s78 offen offset:{1024 * q}{KVL}')
    a('s_cmp_eq_u32 s14, 0')
    a('s_cbranch_scc0 helper')

    ACC = 16
    FA_ = [48, 196]
    FB_ = [80, 112]

    def readsA(s, c):
        out = []
        for j in range(8):
            out.append(f'ds_read_b64 v[{s + 4 * j}:{s + 4 * j + 1}], v161 offset:{64 * (8 * j + c)}')
            out.append(f'ds_read_b64 v[{s + 4 * j + 2}:{s + 4 * j + 3}], v161 offset:{64 * (8 * j + c) + 8}')
        return out

    def readsB(s, c):
        return [f'ds_read_b128 v[{s + 4 * z}:{s + 4 * z + 3}], v162 offset:{64 * (56 - (8 * z - c))}' for z in range(8)]

    def y_fill():
        a('v_bfe_u32 v182, v0, 3, 5')
        a('v_lshlrev_b32 v182, 15, v182')
        a('v_lshl_add_u32 v182, v7, 4, v182')
        a('s_lshl_b32 s62, s2, 7')
        for q in range(4):
            a(f'buffer_store_dwordx4 v[240:243], v182, {XBR}, s62 offen sc1')
            if q < 3:
                a('s_add_u32 s62, s62, 0x100000')

    lds_spin('g4', 20, 4, 153)
    for r in readsA(FA_[0], 0):
        a(r)
    for q in range(2):
        a(f's_waitcnt vmcnt({1 - q})')
        a(f'ds_write_b128 v165, v[{UP + 4 * q}:{UP + 4 * q + 3}] offset:{256 - 256 * q}')
    lds_inc(12)
    stamp('u0')
    if FILLBY == 1 and opt('fst', -1) < 0:
        y_fill()
    lds_spin('u4', 12, 4, 153)
    stamp('mf0')
    for r in readsB(FB_[0], 0)[:4]:
        a(r)

    def mfma(w, A, B, init=False):
        c = '0' if init else f'v[{ACC + 4 * w}:{ACC + 4 * w + 3}]'
        a(f'v_mfma_f32_16x16x32_bf16 v[{ACC + 4 * w}:{ACC + 4 * w + 3}], v[{A}:{A + 3}], v[{B}:{B + 3}], {c}')

    def ystage(w):
        E = 172 + 2 * (w & 3)
        return [f'v_cvt_pk_bf16_f32 v{E}, v{ACC + 4 * w}, v{ACC + 4 * w + 1}',
                f'v_cvt_pk_bf16_f32 v{E + 1}, v{ACC + 4 * w + 2}, v{ACC + 4 * w + 3}',
                f'ds_write_b64 v163, v[{E}:{E + 1}] offset:{512 * w}']

    gsetup = ['v_lshlrev_b32 v180, 2, v0', f'v_add_u32 v180, {L_YL}, v180', 'v_add_u32 v181, 0x2000, v180',
              'v_lshrrev_b32 v182, 3, v0', 'v_lshlrev_b32 v182, 15, v182', 'v_lshl_add_u32 v182, v7, 4, v182',
              's_lshl_b32 s62, s2, 7', 's_add_u32 s63, s62, 0x100000', 's_add_u32 s64, s62, 0x200000', 's_add_u32 s65, s62, 0x300000',
              's_lshl_b32 s6, s12, 10', f's_add_u32 s6, s6, {WS_FB}',
              's_bitcmp0_b32 s2, 0', 's_cselect_b32 s66, s69, 0x40000000', 's_cselect_b32 s70, 0, 0x40000000', 's_cselect_b32 s71, s6, 0x40000000']
    WR2 = 152

    def gather(p0_, sregs, GR, GP):
        rd, out = [], []
        for ch in range(4):
            base = 180 + (ch >> 1)
            rd.append(f'ds_read2st64_b32 v[{GR + 2 * ch}:{GR + 2 * ch + 1}], v{base} offset0:{16 * (ch & 1) + 4 * p0_} offset1:{16 * (ch & 1) + 4 * p0_ + 4}')
        for p in range(2):
            g = GP + 4 * p
            out.append(f'v_perm_b32 v{g}, v{GR + 2 + p}, v{GR + p}, s74')
            out.append(f'v_perm_b32 v{g + 1}, v{GR + 6 + p}, v{GR + 4 + p}, s74')
            out.append(f'v_perm_b32 v{g + 2}, v{GR + 2 + p}, v{GR + p}, s75')
            out.append(f'v_perm_b32 v{g + 3}, v{GR + 6 + p}, v{GR + 4 + p}, s75')
            out.append(f'buffer_store_dwordx4 v[{g}:{g + 3}], v182, {XBR}, s{sregs[p]} offen sc1')
        return rd, out

    fbload = f'buffer_load_dword v249, v248, {WSR}, s6 offen sc1'
    PY = YR[0]
    YM = 16

    GM = 48

    def y_setup(regs=True):
        for p in range(4):
            a(f's_mov_b64 s[{YM + 2 * p}:{YM + 2 * p + 1}], -1')
            if regs:
                a(f'v_mov_b32 v{PY + 4 * p}, -1')
        a('s_lshl_b32 s24, s3, 15')
        for p in range(1, 4):
            a(f's_add_u32 s{24 + p}, s24, {8192 * p}')
        a('s_mov_b64 s[0:1], -1')

    def fb_check():
        lab = a.newlabel('fbk')
        a('s_cmp_eq_u32 s0, 0')
        a(f's_cbranch_scc1 {lab}')
        a('v_cmp_ne_u32 s[0:1], s8, v249')
        for p in range(4):
            a(f's_lshr_b32 s9, s0, {8 * p}')
            a(f'v_and_b32 v250, s9, v{VBIT}')
            a(f'v_cmp_eq_u32 s[{GM + 2 * p}:{GM + 2 * p + 1}], 0, v250')
        a(f'{lab}:')

    def y_issue():
        lab = a.newlabel('yf')
        a('s_mov_b32 exec_lo, s0')
        a('s_mov_b32 exec_hi, 0')
        a(f's_cbranch_execz {lab}')
        a(fbload)
        a(f'{lab}:')
        for p in range(4):
            lab = a.newlabel('yi')
            a(f's_and_b64 exec, s[{YM + 2 * p}:{YM + 2 * p + 1}], s[{GM + 2 * p}:{GM + 2 * p + 1}]')
            a(f's_cbranch_execz {lab}')
            a(f'buffer_load_dwordx4 v[{PY + 4 * p}:{PY + 4 * p + 3}], v251, {XBR}, s{24 + p} offen sc1')
            a(f'{lab}:')
        a('s_mov_b64 exec, -1')

    def y_check():
        a('s_waitcnt vmcnt(0)')
        fb_check()
        for p in range(4):
            a(f'v_max3_u32 v250, v{PY + 4 * p}, v{PY + 4 * p + 1}, v{PY + 4 * p + 2}')
            a(f'v_max_u32 v250, v250, v{PY + 4 * p + 3}')
            a(f'v_cmp_eq_u32 s[{YM + 2 * p}:{YM + 2 * p + 1}], -1, v250')
        a(f's_or_b64 s[28:29], s[{YM}:{YM + 1}], s[{YM + 2}:{YM + 3}]')
        a(f's_or_b64 s[30:31], s[{YM + 4}:{YM + 5}], s[{YM + 6}:{YM + 7}]')
        a('s_or_b64 s[28:29], s[28:29], s[30:31]')

    AC = [116, 122]
    ST = [128, 132]
    TY = 68

    def prep_a():
        lds_spin(a.newlabel('xr'), 12, 8, 3)
        RX, RW = 76, 92
        for r in range(2):
            for p in range(4):
                a(f'ds_read_b64 v[{RX + 8 * r + 2 * p}:{RX + 8 * r + 2 * p + 1}], v{VXA} offset:{512 * p + RS * r}')
        for p in range(4):
            a(f'ds_read_b64 v[{RW + 2 * p}:{RW + 2 * p + 1}], v{VWA} offset:{512 * p}')
        for i in range(0, 12, 2):
            a(f'v_mov_b64 v[{AC[0] + i}:{AC[0] + i + 1}], 0')
        a('s_mov_b32 s72, 0')
        for r in range(2):
            a(f's_waitcnt lgkmcnt({8 - 4 * r})')
            for i in range(8):
                unpack(XP[r] + 2 * i, XP[r] + 2 * i + 1, RX + 8 * r + i)
        a('s_waitcnt lgkmcnt(0)')
        for i in range(8):
            unpack(WF + 2 * i, WF + 2 * i + 1, RW + i)

    def prep_b():
        lds_spin(a.newlabel('xs'), 28, 4, 3)
        for r in range(2):
            a(f'ds_read_b128 v[{ST[r]}:{ST[r] + 3}], v{VSA} offset:{16 * r}')
        a(f'ds_read_b32 v3, v{VC} offset:{L_SW - L_CNT}')
        for r in range(2):
            a(f's_waitcnt lgkmcnt({2 - r})')
            for i in range(8):
                pk('fma', N[r] + 2 * i, XP[r] + 2 * i, ST[r] + 2, ST[r])
        a('s_waitcnt lgkmcnt(0)')
        a('v_readfirstlane_b32 s71, v3')
        stamp('lnx')

    def y_fold():
        for p in range(4):
            lab = a.newlabel('yd')
            a(f's_bitcmp1_b32 s72, {p}')
            a(f's_cbranch_scc1 {lab}')
            a(f's_cmp_eq_u64 s[{YM + 2 * p}:{YM + 2 * p + 1}], 0')
            a(f's_cbranch_scc0 {lab}')
            a(f's_bitset1_b32 s72, {p}')
            for i in range(4):
                unpack(TY + 2 * i, TY + 2 * i + 1, PY + 4 * p + i)
            for i in range(4):
                e = XP[i >> 1] + 4 * p + 2 * (i & 1)
                pk('fma', e, TY + 2 * i, N[i >> 1] + 4 * p + 2 * (i & 1), e)
            for k in range(2):
                for r in range(2):
                    e = XP[r] + 4 * p + 2 * k
                    pk('add', AC[r], AC[r], e)
                    pk('fma', AC[r] + 2, e, e, AC[r] + 2)
                    pk('fma', AC[r] + 4, e, WF + 4 * p + 2 * k, AC[r] + 4)
            a(f'{lab}:')

    def spread(pairs):
        out, left = [], list(pairs)
        while left:
            cnt = {}
            for q in left:
                cnt[q[0]] = cnt.get(q[0], 0) + 1
            recent = [q[0] for q in out[-2:]]
            cand = [q for q in left if q[0] not in recent] or [q for q in left if q[0] != recent[-1]] or left
            mx = max(cnt[q[0]] for q in cand)
            pick = cand[0] if 2 * mx <= len(left) - 1 else [q for q in cand if cnt[q[0]] == mx][0]
            out.append(pick)
            left.remove(pick)
        return out

    def stage_reads(st):
        sa, sb = FA_[st & 1], FB_[st & 1]
        if st < 8:
            return readsB(sb, st)[:4] + readsA(sa, st)
        out = []
        for hf in range(2):
            c = 2 * (st - 8) + hf
            out += readsB(sb + 16 * hf - 16, c)[4:] + readsA(sa + 16 * hf, c)[:8]
        return out

    NST = 12
    for st in range(NST):
        sa, sb = FA_[st & 1], FB_[st & 1]
        a('s_waitcnt lgkmcnt(0)')
        if st == 7:
            a('v_readfirstlane_b32 s60, v164')
            a('s_cmp_ge_u32 s60, 4')
            a('s_cbranch_scc1 uhi_go')
            lds_spin('uhi', 0, 4, 164)
            stamp('uhi')
        if st == FLC and FILLBY:
            a('s_waitcnt vmcnt(0)')
            a('s_mov_b64 exec, 1')
            a(f'ds_add_rtn_u32 v12, v{VC}, v{V1} offset:4')
            a(f'ds_add_u32 v{VC}, v{V1} offset:8')
            a('s_mov_b64 exec, -1')
            stamp('fillB')
        if st == FLC + 1 and FILLBY:
            a('s_mov_b64 exec, 1')
            a('v_cmp_eq_u32 vcc, 3, v12')
            a('v_cndmask_b32 v14, -16, v14, vcc')
            a(f'buffer_store_dword v13, v14, {WSR}, s7 offen sc1')
            a('s_mov_b64 exec, -1')
        fill = stage_reads(st + 1) if st + 1 < NST else []
        if st == 6:
            fill = fill + [f'ds_read_b32 v164, v{VC} offset:0']
        if st == FBC:
            fill = [f'ds_write_b32 v{VC}, v{V1} offset:24'] + fill
        if st == opt('fbc2', 10):
            fill = [fbload.replace('s6 ', 's71 ')] + fill
        if st == opt('fst', -1):
            assert st >= 1
            fill = [f'buffer_store_dwordx4 v[240:243], v182, {XBR}, s{62 + q} offen sc1' for q in range(4)] + fill
        if st == 0:
            fill = fill + gsetup[:12]
        if st == 1:
            for l in gsetup[12:]:
                a(l)
        if st in (8, 9):
            for w in (2 * (st - 8), 2 * (st - 8) + 1):
                fill = fill + ystage(w)
        if st < 8:
            pairs = [(n + z, sa + 4 * n, sb + 4 * z) for n in range(8) for z in range(min(4, 8 - n))]
            if st == 0:
                pairs = [(z, 168, sb + 4 * z) for z in range(4)] + pairs
        else:
            pairs = []
            for hf in range(2):
                pairs += [(n + z, sa + 16 * hf + 4 * n, sb + 16 * hf + 4 * (z - 4)) for n in range(4) for z in range(4, 8 - n)]
            if st == 8:
                pairs = [(z, 168, sb + 4 * (z - 4)) for z in range(4, 8)] + pairs
        order = spread(pairs)
        seen = set() if st == 0 else set(range(8))
        last = {q[0]: i for i, q in enumerate(order)}
        pend = []
        nper = -(-len(fill) // (len(order) - (4 if st >= 7 else 0)))
        for i, (w, A, B) in enumerate(order):
            mfma(w, A, B, w not in seen)
            seen.add(w)
            for _ in range(nper):
                if fill:
                    a(fill.pop(0))
            if st == NST - 1:
                if last[w] == i:
                    pend.append([w, 0])
                for q in pend:
                    q[1] += 1
                if pend and pend[0][1] > 3:
                    for l in ystage(pend.pop(0)[0]):
                        a(l)
        assert not fill
    for w0, _ in pend:
        for l in ystage(w0):
            a(l)
    stamp('s1end')
    if opt('cprio', 1):
        a('s_setprio 2')
    lds_inc(8)
    lds_spin('c2', 8, 8, 166)
    if GXL and DWHO:
        a('s_and_b32 s60, s2, 1')
        a('s_cmp_lt_u32 s3, 112')
        a('s_cselect_b32 s60, s60, 0')
        a('s_cmp_eq_u32 s60, 0')
        a('s_cbranch_scc1 ib_go')
        lds_spin('ib', 28, 4, 166)
    (r0, o0), (r1, o1) = gather(0, (62, 63), 184, 196), gather(2, (64, 65), 164, 204)
    for l in r0 + r1 + ['s_waitcnt lgkmcnt(4)'] + o0 + ['s_waitcnt lgkmcnt(0)'] + o1:
        a(l)
    stamp('yst')
    if opt('cprio', 1):
        a('s_setprio 0')
    lds_inc(8)
    a('s_bitcmp0_b32 s2, 0')
    a('s_cbranch_scc0 conv_ffn')
    a('s_waitcnt vmcnt(4)')
    y_setup()
    fb_check()
    y_issue()
    prep_a()
    prep_b()
    a('s_branch rows')

    a('helper:')
    for q in range(2):
        a(f's_waitcnt vmcnt({1 - q})')
        a(f'ds_write_b128 v165, v[{UP + 4 * q}:{UP + 4 * q + 3}] offset:{256 - 256 * q}')
    lds_inc(0)
    stamp('u0')
    if FILLBY == 0:
        lds_spin('uw', UWOFF, 4, 28)
        y_fill()

    def fb_publish():
        if FILLBY:
            return
        a('s_mov_b64 exec, 1')
        a(f'ds_add_rtn_u32 v12, v{VC}, v{V1} offset:4')
        a(f'ds_add_u32 v{VC}, v{V1} offset:8')
        a('s_waitcnt lgkmcnt(0)')
        a('v_cmp_eq_u32 vcc, 3, v12')
        a('v_cndmask_b32 v14, -16, v14, vcc')
        a(f'buffer_store_dword v13, v14, {WSR}, s7 offen sc1')
        a('s_mov_b64 exec, -1')
        stamp('fillB')
    if FILLBY:
        lds_spin('uw', UWOFF, 4, 28)
    a('s_lshl_b32 s61, s3, 12')
    a('s_bitcmp0_b32 s2, 0')
    a('s_cbranch_scc0 helper_ffn')
    a(f's_add_u32 s62, s61, {WS_CAND}')
    a(f's_add_u32 s63, s61, {WS_PART}')
    a(f's_add_u32 s79, s61, {WS_GX}')
    DW = 156
    DSP = opt('dsp', 1)

    def d_base():
        if DSP:
            a('s_lshr_b32 s78, s3, 4')
            a('s_lshl_b32 s78, s78, 20')
            a('s_and_b32 s60, s3, 15')
            a('s_lshl_b32 s60, s60, 14')
            a('s_add_u32 s78, s78, s60')
        else:
            a('s_lshl_b32 s78, s3, 16')

    def d_list(DW):
        return [[f'buffer_load_dwordx2 v[{DW + 2 * r}:{DW + 2 * r + 1}], v253, s[{S_D}:{S_D + 3}], s78 offen offset:{(r & 1) * 2048} nt']
                + ([f's_add_u32 s78, s78, {4096 + (262144 - 16384 if DSP and r % 8 == 7 else 0)}'] if r & 1 else []) for r in range(32)]
    d_base()
    dl = d_list(DW)
    XH, WH = 68, 100
    stamp('xiss')
    a('s_lshl_b32 s60, s3, 15')
    a('s_lshl_b32 s61, s13, 13')
    a('s_add_u32 s60, s60, s61')
    a('s_add_u32 s61, s60, 4096')
    for i in range(8):
        a(f'buffer_load_dwordx4 v[{XH + 4 * i}:{XH + 4 * i + 3}], v2, s[{S_Q}:{S_Q + 3}], s{60 + (i >> 2)} offen offset:{1024 * (i & 3)} nt')
    for i in range(2):
        a(f'buffer_load_dwordx4 v[{WH + 4 * i}:{WH + 4 * i + 3}], v2, s[{S_WR}:{S_WR + 3}], 0 offen offset:{1024 * i}')
    if not FILLBY:
        a('s_waitcnt vmcnt(10)')
        fb_publish()
    a(f'buffer_store_dwordx4 v[240:243], v237, {WSR}, s62 offen sc1')
    a(f'buffer_store_dwordx4 v[240:243], v237, {WSR}, s63 offen sc1')
    a(f'buffer_store_dwordx4 v[240:243], v237, {WSR}, s79 offen sc1')
    NL = 3 + (0 if FILLBY else 1)
    if GXL and not DWHO:
        a(f's_add_u32 s60, s79, {WS_GX2 - WS_GX}')
        a(f'buffer_store_dwordx4 v[240:243], v237, {WSR}, s60 offen')
        NL += 1
    a('s_mov_b32 s72, 0x3f803f80')
    a('s_mov_b32 s73, 0x3a800000')
    a('s_lshl_b32 s6, s12, 10')
    a(f's_add_u32 s6, s6, {WS_FB}')
    y_setup(False)
    XLATE = opt('xlate', 1)

    def x_to_lds(waits):
        for r in range(4):
            if waits:
                a(f's_waitcnt vmcnt({NL + 2 + 6 - 2 * r})')
            for hf in range(2):
                a(f'ds_write_b128 v{VRA}, v[{XH + 8 * r + 4 * hf}:{XH + 8 * r + 4 * hf + 3}] offset:{RS * r + 1024 * hf}')
        if waits:
            a(f's_waitcnt vmcnt({NL})')
        for hf in range(2):
            a(f'ds_write_b128 v239, v[{WH + 4 * hf}:{WH + 4 * hf + 3}] offset:{1024 * hf}')
        lds_inc(12)
    if not XLATE:
        lds_spin('cp0', 12, 4, 28)
        x_to_lds(True)
    elif opt('dafterx', 1):
        a(f's_waitcnt vmcnt({NL})')
    stamp('xarr')
    lds_spin('late', 24, 1, 3, sleep=LSLEEP)
    a(fbload)
    if DYN:
        a('s_memrealtime s[60:61]')
        a('s_waitcnt lgkmcnt(0)')
        a('s_sub_u32 s60, s60, s4')
        a(f's_cmp_lt_u32 s60, {DYN}')
        a('s_cselect_b32 s5, 1, 0')
        a('s_cbranch_scc1 d_early')
        a('s_waitcnt vmcnt(0)')
        a('s_branch d_early_done')
        a('d_early:')
    for r in range(DEARLY):
        for l in dl[r]:
            a(l)
    stamp('dearly')
    a(f's_waitcnt vmcnt({DEARLY})')
    a('d_early_done:')
    S1, S2, SW = 36, 40, 44

    def stats_a():
        for i in range(8):
            for r in range(4):
                x = XH + 8 * r + i
                a(f'v_dot2_f32_bf16 v{S1 + r}, v{x}, s72, {"0" if i == 0 else "v%d" % (S1 + r)}')
                a(f'v_dot2_f32_bf16 v{S2 + r}, v{x}, v{x}, {"0" if i == 0 else "v%d" % (S2 + r)}')
            a(f'v_dot2_f32_bf16 v{SW}, v{WH + i}, s72, {"0" if i == 0 else "v%d" % SW}')
    if opt('stearly', 1):
        lds_spin('mf0', 8, 8, 3)
        stats_a()
    lds_spin('mf1', 8, 8, 3)
    if XLATE:
        x_to_lds(False)
    fb_check()
    lds_spin('mf', 8, opt('mfcnt', 12), 3)
    y_issue()
    if not opt('stearly', 1):
        stats_a()
    for b in (S1, S2):
        a(f'v_permlane32_swap_b32 v{b}, v{b + 1}')
        a(f'v_permlane32_swap_b32 v{b + 2}, v{b + 3}')
    for b in (S1, S2):
        a(f'v_add_f32 v{b}, v{b}, v{b + 1}')
        a(f'v_add_f32 v{b + 2}, v{b + 2}, v{b + 3}')
    for b in (S1, S2):
        a(f'v_permlane16_swap_b32 v{b}, v{b + 2}')
    for b in (S1, S2):
        a(f'v_add_f32 v{b}, v{b}, v{b + 2}')
    for sh in (1, 2, 4, 8):
        for v in (S1, S2, SW):
            a(f'v_add_f32_dpp v{v}, v{v}, v{v} row_shr:{sh} row_mask:0xf bank_mask:0xf bound_ctrl:0')
    a(f'v_add_f32_dpp v{SW}, v{SW}, v{SW} row_bcast:15 row_mask:0xa bank_mask:0xf')
    a(f'v_mul_f32 v{S1}, s73, v{S1}')
    a(f'v_add_f32_dpp v{SW}, v{SW}, v{SW} row_bcast:31 row_mask:0xc bank_mask:0xf')
    a(f'v_mul_f32 v{S1 + 1}, v{S1}, v{S1}')
    a(f'v_fma_f32 v{S2}, v{S2}, s73, -v{S1 + 1}')
    a(f'v_max_f32 v{S2}, 0, v{S2}')
    rnd(S1, S1)
    rnd(S2, S2)
    a(f'v_add_f32 v{S2}, 0x3727c5ac, v{S2}')
    rnd(S2, S2)
    a(f'v_sqrt_f32 v{S2}, v{S2}')
    rnd(S2, S2)
    a(f'v_rcp_f32 v50, v{S2}')
    a(f'v_rcp_f32 v51, v{S2}')
    a(f'v_mul_f32 v48, -v{S1}, v50')
    a(f'v_mul_f32 v49, -v{S1}, v50')
    a('s_mov_b32 exec_lo, 0x80008000')
    a('s_mov_b32 exec_hi, 0x80008000')
    a('ds_write_b128 v244, v[48:51]')
    a('s_mov_b32 exec_lo, 0')
    a('s_mov_b32 exec_hi, 0x80000000')
    a(f'ds_write_b32 v{VC}, v{SW} offset:{L_SW - L_CNT}')
    lds_inc(28)
    stamp('pre')
    prep_a()
    prep_b()

    a('rows:')
    a('s_mov_b32 s61, 0')
    a('py_top:')
    y_check()
    a('s_cbranch_scc0 py_ok')
    a('s_add_u32 s61, s61, 1')
    a(f's_cmp_ge_u32 s61, {POLL_MAX}')
    a('s_cbranch_scc1 py_give')
    if YSLEEP:
        a(f's_sleep {YSLEEP}')
    y_issue()
    y_fold()
    a('s_branch py_top')
    a('py_give:')
    for p in range(4):
        a(f's_mov_b64 s[{YM + 2 * p}:{YM + 2 * p + 1}], 0')
    a('py_ok:')
    stamp('ypoll')
    y_fold()
    H = XP
    a('s_mov_b32 s73, 0x3a800000')
    Q = TY
    for r in range(2):
        for k in range(3):
            d = Q + k if r == 0 else Q + 4 + k
            a(f'v_add_f32 v{d}, v{AC[r] + 2 * k}, v{AC[r] + 2 * k + 1}')
    for k in range(3):
        a(f'v_permlane32_swap_b32 v{Q + k}, v{Q + 4 + k}')
    for k in range(3):
        a(f'v_add_f32 v{Q + k}, v{Q + k}, v{Q + 4 + k}')
    for k in range(3):
        a(f'v_add_f32_dpp v{Q + k}, v{Q + k}, v{Q + k} row_ror:8 row_mask:0xf bank_mask:0xf')
    a('s_mov_b32 exec_lo, 0x00ff00ff')
    a('s_mov_b32 exec_hi, 0x00ff00ff')
    a(f'ds_write_b128 v{VPW}, v[{Q}:{Q + 3}]')
    a('s_mov_b64 exec, -1')
    a('s_lshl_b32 s60, s3, 7')
    a(f's_add_u32 s60, s60, {WS_KEYS}')
    a('s_cmp_eq_u32 s12, 0')
    a('s_cselect_b32 s60, s60, 0x40000000')
    if opt('prio', 1):
        a('s_cbranch_scc0 no_prio')
        a('s_setprio 3')
        a('no_prio:')
    a('s_waitcnt lgkmcnt(0)')
    a('s_barrier')
    R = 76
    for i in range(4):
        a(f'ds_read_b128 v[{R + 4 * i}:{R + 4 * i + 3}], v{VPR} offset:{16 * i}')
    stamp('bar2')
    A = AC[0]
    a(f'v_mov_b32 v{A + 7}, s8')
    a(f'v_mov_b32 v{A + 5}, 0')
    a('s_waitcnt lgkmcnt(2)')
    pk('add', R, R, R + 4)
    a(f'v_add_f32 v{R + 2}, v{R + 2}, v{R + 6}')
    a('s_waitcnt lgkmcnt(0)')
    pk('add', R + 8, R + 8, R + 12)
    a(f'v_add_f32 v{R + 10}, v{R + 10}, v{R + 14}')
    pk('add', R, R, R + 8)
    a(f'v_add_f32 v{R + 2}, v{R + 2}, v{R + 10}')
    for sw in ('v_permlane32_swap_b32', 'v_permlane16_swap_b32'):
        for k in range(3):
            a(f'v_mov_b32 v{R + 4 + k}, v{R + k}')
        for k in range(3):
            a(f'{sw} v{R + k}, v{R + 4 + k}')
        pk('add', R, R, R + 4)
        a(f'v_add_f32 v{R + 2}, v{R + 2}, v{R + 6}')
    M, V = R + 8, R + 9
    a(f'v_mul_f32 v{R}, s73, v{R}')
    a(f'v_mul_f32 v{R + 3}, v{R}, v{R}')
    a(f'v_fma_f32 v{V}, v{R + 1}, s73, -v{R + 3}')
    rnd(M, R)
    a(f'v_max_f32 v{V}, 0, v{V}')
    rnd(V, V)
    a(f'v_fma_f32 v{R + 2}, -v{M}, s71, v{R + 2}')
    a(f'v_add_f32 v{V}, 0x3727c5ac, v{V}')
    rnd(V, V)
    a(f'v_sqrt_f32 v{V}, v{V}')
    rnd(V, V)
    a(f'v_rcp_f32 v{V}, v{V}')
    a(f'v_mul_f32 v{R + 2}, v{R + 2}, v{V}')
    rnd(R + 2, R + 2)
    a(f'v_ashrrev_i32 v{R + 3}, 31, v{R + 2}')
    a(f'v_and_b32 v{R + 3}, 0x7fff0000, v{R + 3}')
    a(f'v_xor_b32 v{R + 2}, 0x80000000, v{R + 2}')
    a(f'v_xor_b32 v{R + 2}, v{R + 2}, v{R + 3}')
    a(f'v_or_b32 v{A + 6}, v{R + 2}, v{VKL}')
    for sh in (1, 2, 4, 8):
        a(f'v_max_u32_dpp v{A + 6}, v{A + 6}, v{A + 6} row_ror:{sh} row_mask:0xf bank_mask:0xf')
    a('s_mov_b64 exec, 1')
    a(f'buffer_store_dwordx2 v[{A + 6}:{A + 7}], v{A + 5}, {WSR}, s60 offen sc1')
    a('s_mov_b64 exec, -1')
    stamp('key')
    if opt('prio', 1):
        a('s_setprio 0')
    a(f'v_readfirstlane_b32 s76, v{A + 6}')
    DMID = opt('dmid', 0)

    def down_loads(r0, r1):
        r1 = min(r1, 32)
        if r1 <= r0 or DWHO:
            return
        lab = a.newlabel('nodl')
        a('s_cmp_eq_u32 s14, 0')
        a(f's_cbranch_scc1 {lab}')
        for r in range(r0, r1):
            for l in dl[r]:
                a(l)
        a(f'{lab}:')
    if not DYN:
        down_loads(DEARLY, DEARLY + DMID)
    a(f'v_mul_f32 v{M}, -v{M}, v{V}')
    HS = [R + 12, R + 16]
    a(f'v_mov_b32_dpp v{R + 11}, v{V} row_ror:8 row_mask:0xf bank_mask:0xf')
    a(f'v_mov_b32_dpp v{R + 10}, v{M} row_ror:8 row_mask:0xf bank_mask:0xf')
    a('s_mov_b32 vcc_lo, 0xff00ff00')
    a('s_mov_b32 vcc_hi, 0xff00ff00')
    for k in range(4):
        own, oth = M + (k >> 1), R + 10 + (k >> 1)
        a(f'v_cndmask_b32 v{HS[0] + k}, v{own}, v{oth}, vcc')
        a(f'v_cndmask_b32 v{HS[1] + k}, v{oth}, v{own}, vcc')
    a('s_lshl_b32 s77, s3, 12')
    a(f's_add_u32 s77, s77, {WS_CAND}')
    a('s_not_b32 s64, s76')
    a('s_bfe_u32 s65, s64, 0x30001')
    a('s_mov_b32 s66, 0x01010101')
    a('s_lshl_b32 s66, s66, s65')
    a('s_mov_b32 s67, s66')
    OUTR = [124, 132]

    def cand_row(r):
        a('s_mov_b64 exec, s[66:67]')
        for i in range(8):
            pk('fma', N[0] + 2 * i, H[r] + 2 * i, HS[r] + 2, HS[r])
        for i in range(8):
            a(f'v_cvt_pk_bf16_f32 v{YR[0] + i}, v{N[0] + 2 * i}, v{N[0] + 2 * i + 1}')
        for p in range(4):
            a(f'buffer_store_dwordx2 v[{YR[0] + 2 * p}:{YR[0] + 2 * p + 1}], v{VG8}, {WSR}, s77 offen offset:{512 * p} sc1')
        for i in range(8):
            a(f'v_cvt_pk_bf16_f32 v{WF + i}, v{H[r] + 2 * i}, v{H[r] + 2 * i + 1}')

    a('s_bitcmp1_b32 s64, 0')
    a('s_cbranch_scc1 order10')
    cand_row(0)
    a('s_branch cand_done')
    a('order10:')
    cand_row(1)
    a('cand_done:')
    stamp('cand')
    for p in range(4):
        a(f'ds_write_b64 v{VG8}, v[{WF + 2 * p}:{WF + 2 * p + 1}] offset:{L_H + 512 * p}')
    a('s_mov_b64 exec, -1')
    assert not DYN
    D2 = DEARLY + DMID + opt('dmid2', 8)
    down_loads(DEARLY + DMID, D2)
    EXACT = opt('exact', 0)
    if not EXACT:
        for r in range(2):
            a(f'v_add_f32 v{HS[r] + 2}, 1.0, v{HS[r] + 2}')
            a(f'v_add_f32 v{HS[r] + 3}, 1.0, v{HS[r] + 3}')
    for r in range(2):
        if EXACT:
            for i in range(16):
                rnd(H[r] + i, H[r] + i)
            for i in range(8):
                pk('fma', N[0] + 2 * i, H[r] + 2 * i, HS[r] + 2, HS[r])
            for i in range(16):
                rnd(N[0] + i, N[0] + i)
            for i in range(8):
                pk('add', H[r] + 2 * i, H[r] + 2 * i, N[0] + 2 * i)
        else:
            for i in range(8):
                pk('fma', H[r] + 2 * i, H[r] + 2 * i, HS[r] + 2, HS[r])
        for i in range(8):
            a(f'v_cvt_pk_bf16_f32 v{N[1] + 8 * r + i}, v{H[r] + 2 * i}, v{H[r] + 2 * i + 1}')
        for p in range(4):
            a(f'ds_write_b64 v{VXA}, v[{N[1] + 8 * r + 2 * p}:{N[1] + 8 * r + 2 * p + 1}] offset:{512 * p + RS * r}')
    lds_inc(28)
    a('s_cmp_eq_u32 s14, 0')
    a('s_cbranch_scc0 ffn2')
    a('s_and_b32 s64, s64, 15')
    a(f's_mul_i32 s60, s64, {RS}')
    a(f's_add_u32 s60, s60, {L_YT}')
    a('v_add_u32 v3, s60, v2')
    a('s_lshl_b32 s65, s3, 4')
    a('s_add_u32 s64, s64, s65')
    a('s_lshl_b32 s65, s64, 11')
    lds_spin('o8', 28, 12, 68)
    a('s_cmp_eq_u32 s12, 0')
    a('s_cbranch_scc0 no_cand_h')
    for hf in range(2):
        a(f'ds_read_b128 v[{68 + 4 * hf}:{71 + 4 * hf}], v3 offset:{1024 * hf}')
    for hf in range(2):
        a(f'ds_read_b128 v[{WF + 4 * hf}:{WF + 4 * hf + 3}], v2 offset:{L_H + 1024 * hf}')
    for hf in range(2):
        a(f's_waitcnt lgkmcnt({3 - hf})')
        a(f'buffer_store_dwordx4 v[{68 + 4 * hf}:{71 + 4 * hf}], v2, {XBR}, s65 offen offset:{1024 * hf} sc1')
    a('s_waitcnt vmcnt(0) lgkmcnt(0)')
    a(f'buffer_store_dwordx4 v[{WF}:{WF + 3}], v2, {WSR}, s77 offen offset:2048 sc1')
    a(f'buffer_store_dwordx4 v[{WF + 4}:{WF + 7}], v2, {WSR}, s77 offen offset:3072 sc1')
    a('no_cand_h:')
    for i in range(8):
        a(f'ds_read_b128 v[{4 + 4 * i}:{7 + 4 * i}], v{VRA} offset:{RS * (i >> 1) + 1024 * (i & 1)}')
    OE, OM = opt('oearly', 0), opt('omid', 0)
    a('s_waitcnt lgkmcnt(0)')
    for r in range(4):
        if r == OE and OM and not DWHO:
            a('s_cmp_lt_u32 s3, 112')
            a('s_cbranch_scc0 dr_go')
            lds_spin('dr', 16, 4, 68)
        if r == OE + OM and not DWHO:
            a('s_cmp_lt_u32 s3, 112')
            a('s_cbranch_scc0 dp_go')
            lds_spin('dp', 16, 8, 68, sleep=2)
        a('s_cmp_eq_u32 s68, s64')
        a('s_cselect_b32 s60, 0x40000000, s69')
        for hf in range(2):
            i = 2 * r + hf
            a(f'buffer_store_dwordx4 v[{4 + 4 * i}:{7 + 4 * i}], v2, {XBR}, s60 offen offset:{1024 * hf} sc1')
        if r < 3:
            a('s_add_u32 s68, s68, 1')
            a('s_add_u32 s69, s69, 2048')
    a('s_branch main_fl')
    TT = 8

    def d_perm(DW, ps):
        for p in ps:
            for k in range(2):
                lo, hi = DW + 2 * (8 * (p >> 2) + (p & 3)) + k, DW + 2 * (8 * (p >> 2) + (p & 3) + 4) + k
                t = 48 + k
                a(f'v_perm_b32 v{t}, v{hi}, v{lo}, s74')
                a(f'v_perm_b32 v{hi}, v{hi}, v{lo}, s75')
                a(f'v_mov_b32 v{lo}, v{t}')

    def gx_loads():
        for q in range(4):
            a(f'buffer_load_dwordx4 v[{52 + 4 * q}:{52 + 4 * q + 3}], v2, {WSR}, s62 offen offset:{1024 * q} sc1')

    def ffn2(DW, issued):
        P = 52
        a('s_mov_b32 s61, 0')
        if issued:
            a('s_branch pg_chk')
        a('pg_again:')
        gx_loads()
        a('pg_chk:')
        a('s_waitcnt vmcnt(0)')
        sentinel_check(range(P, P + 16), P + 16)
        a('s_cbranch_vccz pg_ok')
        a('s_add_u32 s61, s61, 1')
        a(f's_cmp_ge_u32 s61, {POLL_MAX}')
        a('s_cbranch_scc1 pg_ok')
        a('s_mov_b64 exec, vcc')
        a(f's_cmp_lt_u32 s61, {GXL}')
        a('s_cselect_b32 s62, s63, s79')
        if opt('gxsleep', 1):
            a(f's_sleep {opt("gxsleep", 1)}')
        a('s_branch pg_again')
        a('pg_ok:')
        a('s_mov_b64 exec, -1')
        stamp('gxpoll')
        pk('add', P, P, P + 4)
        pk('add', P + 2, P + 2, P + 6)
        pk('add', P + 8, P + 8, P + 12)
        pk('add', P + 10, P + 10, P + 14)
        pk('add', P, P, P + 8)
        pk('add', P + 2, P + 2, P + 10)
        a(f'v_permlane32_swap_b32 v{P}, v{P + 2}')
        a(f'v_permlane32_swap_b32 v{P + 1}, v{P + 3}')
        pk('add', P, P, P + 2)
        a(f'v_permlane16_swap_b32 v{P}, v{P + 1}')
        a(f'v_add_f32 v{TT}, v{P}, v{P + 1}')
        rnd(TT, TT)
        a(f'v_mul_f32 v{TT + 2}, 0xbfb8aa3b, v{TT}')
        a(f'v_mov_b32_dpp v{TT + 3}, v{TT} row_ror:8 row_mask:0xf bank_mask:0xf')
        a(f'v_exp_f32 v{TT + 2}, v{TT + 2}')
        a(f'v_add_f32 v{TT + 2}, 1.0, v{TT + 2}')
        a(f'v_rcp_f32 v{TT + 2}, v{TT + 2}')
        a(f'v_mul_f32 v{TT}, v{TT}, v{TT + 2}')
        rnd(TT, TT)
        a(f'v_mul_f32 v{TT}, v{TT}, v{TT + 3}')
        a(f'v_mov_b32_dpp v{TT + 1}, v{TT} row_shr:1 row_mask:0xf bank_mask:0xf bound_ctrl:0')
        a(f'v_cvt_pk_bf16_f32 v{TT}, v{TT + 1}, v{TT}')
        for p in range(16):
            a(f'v_readlane_b32 s{S_K + p}, v{TT}, {16 * (p & 3) + 2 * (p >> 2) + 1}')
        AC2 = 24
        for p in range(16):
            for c in range(4):
                r = DW + 2 * (8 * (p >> 2) + (p & 3) + 4 * (c & 1)) + (c >> 1)
                h = AC2 + 4 * (p & 1) + c
                src2 = '0' if p < 2 else f'v{h}'
                a(f'v_dot2_f32_bf16 v{h}, v{r}, s{S_K + p}, {src2}')
        pk('add', AC2, AC2, AC2 + 4)
        pk('add', AC2 + 2, AC2 + 2, AC2 + 6)
        a(f'buffer_store_dwordx4 v[{AC2}:{AC2 + 3}], v237, {WSR}, s77 offen sc1')
        stamp('pst')

    a('ffn2:')
    if DWHO:
        a('s_branch main_fl')
    else:
        a('s_cmp_lt_u32 s3, 112')
        a('s_cbranch_scc0 main_fl')
        for r in range(min(D2, 32), 32):
            for l in dl[r]:
                a(l)
        a('s_lshl_b32 s77, s3, 12')
        a(f's_add_u32 s77, s77, {WS_PART}')
        a(f's_add_u32 s63, s79, {WS_GX2 - WS_GX}')
        a(f's_mov_b32 s62, s{63 if GXL else 79}')
        for aa in range(4):
            a(f's_waitcnt vmcnt({24 - 8 * aa})')
            if aa == 3:
                lds_inc(16)
                stamp('dready')
                gx_loads()
            d_perm(DW, range(4 * aa, 4 * aa + 4))
        ffn2(DW, True)
        lds_inc(16)
        a('s_branch main_fl')

    a('helper_ffn:')
    a('s_cmp_lt_u32 s3, 112')
    a('s_cbranch_scc1 ffn_go')
    a('s_waitcnt vmcnt(0)')
    fb_publish()
    a('s_branch red_wait')
    a('ffn_go:')
    GW = 64
    a('s_and_b32 s76, s3, 15')
    a('s_lshl_b32 s77, s76, 2')
    a('s_add_u32 s77, s77, s13')
    a(f's_mul_i32 s77, s77, {16 * 7168}')
    a('s_lshr_b32 s78, s3, 4')
    a('s_lshl_b32 s60, s78, 10')
    a('s_add_u32 s77, s77, s60')
    a('s_lshl_b32 s78, s78, 2')
    a('s_add_u32 s78, s78, s13')
    a('s_lshl_b32 s78, s78, 14')
    a('s_lshl_b32 s60, s76, 8')
    a('s_add_u32 s78, s78, s60')
    a(f's_add_u32 s78, s78, {WS_GX}')
    a(f's_add_u32 s79, s78, {WS_GX2 - WS_GX}')
    if GXL and DWHO:
        a(f's_add_u32 s60, s61, {WS_GX2}')
        a(f'buffer_store_dwordx4 v[240:243], v237, {WSR}, s60 offen')
    assert DSP
    stamp('uw')
    steps = []
    for i in range(16):
        for m, sr in ((0, S_G), (1, S_U)):
            r = GW + 64 * m + 4 * i
            steps.append([f'buffer_load_dwordx4 v[{r}:{r + 3}], v2, s[{sr}:{sr + 3}], s77 offen nt'])
        steps[-1].append('s_add_u32 s77, s77, 7168')
    FBK = opt('fbk', 2)
    for k, stp in enumerate(steps):
        if k == PAUSE:
            stamp('pause')
            lds_spin('late2', 24, 1, 28, sleep=LSLEEP)
            lds_spin('yw', 8, 12, 28)
            if opt('rsleep', 0):
                a(f's_sleep {opt("rsleep", 0)}')
        for l in stp:
            a(l)
        if k >= DEPTH - 1 and k < PAUSE:
            a(f's_waitcnt vmcnt({DEPTH - 1})')
        if k == DEPTH - 1 and GXL and DWHO:
            lds_inc(28)
        if k == FBK - 1 and not FILLBY:
            a(f's_waitcnt vmcnt({FBK})')
            fb_publish()
    assert DEPTH <= PAUSE < 32
    if DWHO:
        lds_inc(16)
    for i2 in range(8):
        a(f's_waitcnt vmcnt({max(0, min(63, 32 - 4 * (i2 + 1)))})')
        for m in range(2):
            for k in range(4):
                lo, hi = GW + 64 * m + 8 * i2 + k, GW + 64 * m + 8 * i2 + 4 + k
                t = 32 + (k & 3)
                a(f'v_perm_b32 v{t}, v{hi}, v{lo}, s74')
                a(f'v_perm_b32 v{hi}, v{hi}, v{lo}, s75')
                a(f'v_mov_b32 v{lo}, v{t}')
    stamp('wready')
    a('s_cmp_eq_u32 s13, 0')
    a('s_cbranch_scc0 f2_bar')
    a('v_lshlrev_b32 v6, 2, v1')
    a(f'v_add_u32 v7, {L_X}, v6')
    if opt('kdelay', 0):
        a(f's_sleep {opt("kdelay", 0)}')
    key_poll(65)
    stamp('gkey')
    a('s_and_b32 s66, s65, 0xffff')
    a('s_sub_u32 s66, 2047, s66')
    a('s_lshr_b32 s66, s66, 4')
    a('s_lshl_b32 s66, s66, 12')
    a('s_lshl_b32 s60, s76, 7')
    a('s_add_u32 s66, s66, s60')
    a(f's_add_u32 s66, s66, {WS_CAND}')
    a('s_mov_b32 exec_hi, 0')
    retry_loop('px', [f'buffer_load_dword v8, v6, {WSR}, s66 offen sc1'], lambda: a('v_cmp_eq_u32 vcc, -1, v8'), sleep=1, mask='0xffffffff')
    a('ds_write_b32 v7, v8')
    a('s_mov_b64 exec, -1')
    a('s_waitcnt lgkmcnt(0)')
    a('f2_bar:')
    a('s_barrier')
    XS, AC = 36, 44
    stamp('ffn0')
    a(f'ds_read_b128 v[{XS}:{XS + 3}], v201')
    a(f'ds_read_b128 v[{XS + 4}:{XS + 7}], v201 offset:16')
    for p in range(8):
        if p % 4 == 0:
            a(f's_waitcnt lgkmcnt({1 - p // 4})')
        for m in range(2):
            for c in range(8):
                r = GW + 64 * m + 8 * p + 4 * (c & 1) + (c >> 1)
                i = AC + 8 * m + c
                src2 = '0' if p == 0 else f'v{i}'
                a(f'v_dot2_f32_bf16 v{i}, v{r}, v{XS + p}, {src2}')
    for q in range(4):
        a(f'ds_write_b128 v203, v[{AC + 4 * q}:{AC + 4 * q + 3}] offset:{128 * (q >> 1) + 16 * (q & 1)}')
    a('s_waitcnt lgkmcnt(0)')
    a('s_barrier')
    for q in range(4):
        a(f'ds_read_b128 v[{8 + 4 * q}:{11 + 4 * q}], v205 offset:{16 * RP * q}')
    a('s_waitcnt lgkmcnt(2)')
    pk('add', 8, 8, 12)
    pk('add', 10, 10, 14)
    a('s_waitcnt lgkmcnt(0)')
    pk('add', 16, 16, 20)
    pk('add', 18, 18, 22)
    pk('add', 8, 8, 16)
    pk('add', 10, 10, 18)
    if GXL:
        a(f'buffer_store_dwordx4 v[8:11], v247, {WSR}, s79 offen')
    a(f'buffer_store_dwordx4 v[8:11], v247, {WSR}, s78 offen sc1')
    stamp('gxst')
    a('s_branch main_fl')

    a('conv_ffn:')
    a('s_cmp_lt_u32 s3, 112')
    a('s_cbranch_scc0 red_conv')
    if DWHO:
        DW2 = 80
        lds_spin('gu', 16, 4, 8)
        d_base()
        for stp in d_list(DW2):
            for l in stp:
                a(l)
        a('v_lshlrev_b32 v237, 1, v253')
        a('s_lshl_b32 s77, s3, 12')
        a(f's_add_u32 s79, s77, {WS_GX}')
        a(f's_add_u32 s77, s77, {WS_PART}')
        a(f's_add_u32 s63, s79, {WS_GX2 - WS_GX}')
        a(f's_mov_b32 s62, s{63 if GXL else 79}')
        for aa in range(4):
            a(f's_waitcnt vmcnt({24 - 8 * aa})')
            d_perm(DW2, range(4 * aa, 4 * aa + 4))
        stamp('dready')
        a('s_barrier')
        a('s_barrier')
        ffn2(DW2, False)
    a('s_branch main_fl')

    a('red_conv:')
    a('s_cmp_eq_u32 s12, 0')
    a('s_cbranch_scc0 red_wait')
    if opt('rdelay', 0):
        a(f's_sleep {opt("rdelay", 0)}')
    key_poll(71)
    a('s_sub_u32 s76, s3, 112')
    a('s_and_b32 s72, s71, 0xffff')
    a('s_sub_u32 s72, 2047, s72')
    a('s_lshr_b32 s73, s72, 4')
    a('s_lshl_b32 s73, s73, 12')
    a('s_lshl_b32 s60, s76, 7')
    a('s_add_u32 s73, s73, s60')
    a(f's_add_u32 s73, s73, {WS_CAND}')
    a('s_lshl_b32 s72, s72, 11')
    a('s_add_u32 s72, s72, s60')
    a('v_and_b32 v6, 31, v0')
    a('v_lshlrev_b32 v6, 2, v6')
    a('s_cmp_eq_u32 s76, 0')
    a(f's_cselect_b32 s60, {WS_EPOCH}, 0x40000000')
    a('v_mov_b32 v49, s8')
    a('v_mov_b32 v50, 0')
    a('s_mov_b64 exec, 1')
    a(f'buffer_store_dword v49, v50, {WSR}, s60 offen')
    a('s_mov_b64 exec, -1')
    loads = [f'buffer_load_dword v{40 + p}, v6, {WSR}, s73 offen offset:{2048 * p} sc1' for p in range(2)]
    poll_loop('ph', loads, (40, 41), 42)
    a('s_and_b32 s60, s71, 0xffff0000')
    a('s_xor_b32 s61, s60, 0x80000000')
    a('s_xor_b32 s62, s60, 0xffff0000')
    a('s_cmp_lt_i32 s60, 0')
    a('s_cselect_b32 s60, s61, s62')
    a('v_mov_b32 v42, 0xbfb8aa3b')
    a('v_mul_f32 v42, s60, v42')
    a('v_exp_f32 v42, v42')
    a('v_add_f32 v42, 1.0, v42')
    a('v_rcp_f32 v42, v42')
    rnd(42, 42)
    unpack(44, 45, 40)
    unpack(46, 47, 41)
    a('red_wait:')
    a(f's_add_u32 s{S_G}, s{S_WS}, {WS_PART}')
    a(f's_addc_u32 s{S_G + 1}, s{S_WS + 1}, 0')
    a(f's_mov_b32 s{S_G + 2}, {112 * 4096}')
    a('s_sub_u32 s76, s3, 112')
    a('v_and_b32 v4, 15, v0')
    a('v_lshrrev_b32 v5, 4, v0')
    a('v_lshlrev_b32 v5, 12, v5')
    a('v_lshl_add_u32 v5, v4, 4, v5')
    a('s_lshl_b32 s64, s76, 8')
    a(f's_add_u32 s65, s64, {32 * 4096}')
    a(f's_add_u32 s66, s64, {64 * 4096}')
    a(f's_add_u32 s67, s64, {96 * 4096}')
    a('v_lshrrev_b32 v7, 4, v1')
    a('v_lshl_add_u32 v7, v4, 2, v7')
    a('v_lshlrev_b32 v7, 2, v7')
    a('s_lshl_b32 s60, s12, 8')
    a(f's_add_u32 s60, s60, {L_RED}')
    a('v_add_u32 v7, s60, v7')
    a('v_lshlrev_b32 v48, 3, v1')
    a(f'v_add_u32 v48, {L_RED}, v48')
    a('s_barrier')
    a(f's_sleep {opt("finsleep", 30)}')
    P = 8
    loads = [f'buffer_load_dwordx4 v[{P + 4 * r}:{P + 4 * r + 3}], v5, s[{S_G}:{S_G + 3}], s{64 + r} offen sc1' for r in range(4)]
    poll_loop('pp', loads, range(P, P + 16), 24)
    stamp('ppoll')
    pk('add', P, P, P + 4)
    pk('add', P + 2, P + 2, P + 6)
    pk('add', P + 8, P + 8, P + 12)
    pk('add', P + 10, P + 10, P + 14)
    pk('add', P, P, P + 8)
    pk('add', P + 2, P + 2, P + 10)
    a(f'v_permlane32_swap_b32 v{P}, v{P + 2}')
    a(f'v_permlane32_swap_b32 v{P + 1}, v{P + 3}')
    pk('add', P, P, P + 2)
    a(f'v_permlane16_swap_b32 v{P}, v{P + 1}')
    a(f'v_add_f32 v{P}, v{P}, v{P + 1}')
    a(f'ds_write_b32 v7, v{P}')
    a('s_waitcnt lgkmcnt(0)')
    a('s_barrier')
    a('s_cmp_eq_u32 s12, 0')
    a('s_cbranch_scc0 main_fl')
    a('s_mov_b32 exec_hi, 0')
    for q in range(8):
        a(f'ds_read_b64 v[{P + 2 * q}:{P + 2 * q + 1}], v48 offset:{256 * q}')
    a('s_waitcnt lgkmcnt(0)')
    for q in range(4):
        pk('add', P + 4 * q, P + 4 * q, P + 4 * q + 2)
    pk('add', P, P, P + 4)
    pk('add', P + 8, P + 8, P + 12)
    pk('add', P, P, P + 8)
    rnd(P, P)
    rnd(P + 1, P + 1)
    a(f'v_mul_f32 v{P}, v{P}, v42')
    a(f'v_mul_f32 v{P + 1}, v{P + 1}, v42')
    rnd(P, P)
    rnd(P + 1, P + 1)
    pk('add', P, P, 44)
    rnd(P, P)
    rnd(P + 1, P + 1)
    pk('add', P, P, 46)
    a(f'v_cvt_pk_bf16_f32 v{P}, v{P}, v{P + 1}')
    a(f'buffer_store_dword v{P}, v6, {XBR}, s72 offen')
    a('main_fl:')
    if opt('dbg', 0) == 999:
        a('s_waitcnt vmcnt(0) lgkmcnt(0)')
        stamp(7)
        a('s_mov_b64 s[96:97], s[100:101]')
        a('s_mov_b32 s98, 256')
        a('s_mov_b32 s99, 0x00020000')
        a('s_mov_b64 exec, 1')
        a('v_mov_b32 v1, 0')
        a('s_waitcnt lgkmcnt(0)')
        for i in range(8):
            a(f's_and_b32 s60, s{80 + 2 * i}, 0xffffff')
            a('s_xor_b32 s61, s60, 0xffffff')
            a(f's_cmp_eq_u32 s{80 + 2 * i}, 0')
            a('s_cselect_b32 s61, 0, s61')
            a('v_mov_b32 v2, s60')
            a('v_mov_b32 v3, s61')
            a(f'buffer_atomic_umax v2, v1, s[96:99], 0 offen offset:{4 * i} sc1')
            a(f'buffer_atomic_umax v3, v1, s[96:99], 0 offen offset:{32 + 4 * i} sc1')
    elif opt('dbg', 0):
        a('s_waitcnt vmcnt(0) lgkmcnt(0)')
        stamp(7)
        a('s_mov_b64 s[96:97], s[100:101]')
        a('s_mov_b32 s98, 256')
        a('s_mov_b32 s99, 0x00020000')
        a('s_lshl_b32 s60, s2, 3')
        a('s_add_u32 s60, s60, s12')
        a('s_mov_b32 s61, 0x40000000')
        a(f's_cmp_eq_u32 s60, {225 * 8}')
        a('s_cselect_b32 s61, 0, s61')
        a(f's_cmp_eq_u32 s60, {opt("dbg", 0) * 8 + opt("dbgw", 0)}')
        a('s_cselect_b32 s61, 32, s61')
        a('s_mov_b64 exec, 1')
        a('v_mov_b32 v1, 0')
        a('s_waitcnt lgkmcnt(0)')
        for i in range(8):
            a(f's_sub_u32 s60, s{80 + 2 * i}, s80')
            a(f's_cmp_eq_u32 s{80 + 2 * i}, 0')
            a('s_cselect_b32 s60, 0, s60')
            a('v_mov_b32 v2, s60')
            a(f'buffer_store_dword v2, v1, s[96:99], s61 offen offset:{4 * i}')
    else:
        stamp_flush(S_WS, 7, 0)
    a('main_done:')
    a('s_endpgm')
    return kernel_desc(KN, 256, 102 if STAMPS else 80)


launch = '; @launch grid=(256,1,1) block=(512,1,1) lds=%d\n' % MAIN_LDS
finish(launch, [k_main()])
```

```python
from common import *
import common
STAMPS = common.STAMPS

WS_KEYS = 0
WS_EPOCH = 32 * 1024
WS_GX = 1536 * 1024
WS_FA = 128 * 1024
WS_FB = 192 * 1024
WS_FA2 = 64 * 1024
WS_CAND = 262144
WS_PART = 1 << 20
WS_GX2 = 6 << 20
WS_KV = 2 << 20
WS_SIZE = 7 << 20
SH = 12
if opt('reuse', 0):
    SH = 14
    WS_CAND, WS_PART, WS_GX, WS_GX2 = WS_KV, WS_KV + 4096, WS_KV + (2 << 20), WS_KV + (2 << 20) + 4096
WSOFF = opt('wsoff', 0) << 20
common.WS_STAMP -= WSOFF
POLL_MAX = 1 << 16
KN = NAME + '_kernel'

DEPTH = opt('depth', 7)
XPOS = opt('xpos', 4)
UWOFF = opt('uwoff', 0)
FLC = opt('flc', 3)
FBC = opt('fbc', 10)
YSLEEP = opt('ysleep', 1)
CODEPF = opt('codepf', 6)
DEARLY = opt('dearly', 0)
YLO = opt('ylo', 1)
DWHO = opt('dwho', 0)
GXL = opt('gxl', 40)
DYN = opt('dyn', 0)
LSLEEP = opt('lsleep', 6)
FILLBY = opt('fillby', 1)
DUAL = opt('dual', 12)
KVS = '' if opt('l2kv', 0) else ' sc1'
KVL = {0: ' sc1', 1: ' sc0', 2: ''}[opt('kvl', 0)]
FAL = {0: ' sc1', 1: ' sc0', 2: ''}[opt('fal', 0)]
PAUSE = opt('pause', 20)

GS = 4160
UOFF = 4 * GS
CS = 21312
L_YL = 4 * CS
RS = 2064
L_YT = L_YL + 16384
L_P0 = L_YL
L_W = L_YT + 16 * RS
L_ST = L_W + 2048
L_PART = 0
PS = 272
RP = 272
L_H = 8192
L_CNT = L_ST + 272
L_GKEY = L_CNT + 28
L_SW = L_CNT + 48
L_X = L_CNT + 64
L_RED = L_X + 1024
MAIN_LDS = L_RED + 4096

S_K, S_V, S_SK, S_H, S_WS, S_Q, S_WR, S_OUT, S_G, S_U, S_D = 16, 20, 24, 28, 32, 36, 40, 44, 48, 52, 56
WSR = f's[{S_WS}:{S_WS + 3}]'
XBR = f's[{S_OUT}:{S_OUT + 3}]'
KVR = WSR
VC, V1 = 254, 255


def sentinel_check(regs, tmp):
    rs = list(regs)
    cur = rs.pop(0)
    while rs:
        if len(rs) >= 2:
            a(f'v_max3_u32 v{tmp}, v{cur}, v{rs[0]}, v{rs[1]}')
            rs = rs[2:]
        else:
            a(f'v_max_u32 v{tmp}, v{cur}, v{rs[0]}')
            rs = rs[1:]
        cur = tmp
    a(f'v_cmp_eq_u32 vcc, -1, v{cur}')


def retry_loop(name, loads, check, sleep=2, issued=False, mask='-1'):
    a('s_mov_b32 s61, 0')
    if issued:
        a(f's_branch {name}_chk')
    a(f'{name}_again:')
    for l in loads:
        a(l)
    a(f'{name}_chk:')
    a('s_waitcnt vmcnt(0)')
    check()
    a(f's_cbranch_vccz {name}_ok')
    a('s_add_u32 s61, s61, 1')
    a(f's_cmp_ge_u32 s61, {POLL_MAX}')
    a(f's_cbranch_scc1 {name}_ok')
    a('s_mov_b64 exec, vcc')
    a(f's_sleep {sleep}')
    a(f's_branch {name}_again')
    a(f'{name}_ok:')
    a(f's_mov_b64 exec, {mask}')


def poll_loop(name, loads, regs, tmp, sleep=2, issued=False):
    retry_loop(name, loads, lambda: sentinel_check(regs, tmp), sleep, issued)


def lds_spin(name, off, want, vt, sleep=1):
    a('s_mov_b32 s61, 0')
    a(f'{name}_spin:')
    a(f'ds_read_b32 v{vt}, v{VC} offset:{off}')
    a('s_add_u32 s61, s61, 1')
    a('s_waitcnt lgkmcnt(0)')
    a(f'v_readfirstlane_b32 s60, v{vt}')
    a(f's_cmp_ge_u32 s60, {want}')
    a(f's_cbranch_scc1 {name}_go')
    a(f's_cmp_ge_u32 s61, {1 << 22}')
    a(f's_cbranch_scc1 {name}_go')
    a(f's_sleep {sleep}')
    a(f's_branch {name}_spin')
    a(f'{name}_go:')


def lds_inc(off):
    a('s_mov_b64 exec, 1')
    a(f'ds_add_u32 v{VC}, v{V1} offset:{off}')
    a('s_mov_b64 exec, -1')


XP = [4, 20]
N = [36, 52]
T = [68, 84]
WF = 100
MV = [116, 120]
AA = [124, 132]
YR = [140, 148]
XR = 36
VG8, VXA, VWA, VSA, VKL, VPR, VPW, VRA, VBIT = range(228, 237)


def ln_x(xr, wr):
    for r in range(2):
        for i in range(8):
            unpack(XP[r] + 2 * i, XP[r] + 2 * i + 1, xr + 8 * r + i)
    for i in range(8):
        unpack(WF + 2 * i, WF + 2 * i + 1, wr + i)
    srcs = [(XP[0], T[0]), (XP[1], T[0] + 8), (WF, T[1])]
    for i in range(4):
        for (sx, t) in srcs:
            pk('add', t + 2 * i, sx + 4 * i, sx + 4 * i + 2)
    for (_, b) in srcs:
        pk('add', b, b, b + 2)
        pk('add', b + 4, b + 4, b + 6)
    for (_, b) in srcs:
        pk('add', b, b, b + 4)
    for (_, b) in srcs:
        a(f'v_add_f32 v{b}, v{b}, v{b + 1}')
    K = T[1] + 8
    a(f'v_mov_b32 v{K}, 0x3a800000')
    wave_reduce('v_add_f32', [b for _, b in srcs])
    a(f'v_readlane_b32 s60, v{T[0]}, 63')
    a(f'v_readlane_b32 s62, v{T[0] + 8}, 63')
    a(f'v_readlane_b32 s71, v{T[1]}, 63')
    for r in range(2):
        M, V = MV[r], MV[r] + 2
        a(f'v_mul_f32 v{V}, s{60 + 2 * r}, v{K}')
    for r in range(2):
        M, V = MV[r], MV[r] + 2
        rnd(M, V)
        rnd(M + 1, V)
        a(f'v_sub_f32 v{V}, v{V}, v{M}')
        a(f'v_readfirstlane_b32 s{72 + r}, v{M}')
    for r in range(2):
        for i in range(8):
            pk('add', XP[r] + 2 * i, XP[r] + 2 * i, MV[r], mods='neg_lo:[0,1] neg_hi:[0,1]')
    for i in range(8):
        for r in range(2):
            if i == 0:
                pk('mul', AA[r], XP[r], XP[r])
            else:
                pk('fma', AA[r], XP[r] + 2 * i, XP[r] + 2 * i, AA[r])
    for r in range(2):
        a(f'v_add_f32 v{AA[r]}, v{AA[r]}, v{AA[r] + 1}')
        a(f'v_mul_f32 v{MV[r] + 2}, v{MV[r] + 2}, v{MV[r] + 2}')
    wave_reduce('v_add_f32', AA)
    for r in range(2):
        a(f'v_readlane_b32 s{60 + 2 * r}, v{AA[r]}, 63')
    for step in range(8):
        for r in range(2):
            V = MV[r] + 2
            if step == 0:
                a(f'v_fma_f32 v{V}, s{60 + 2 * r}, v{K}, -v{V}')
            elif step in (1, 3, 5):
                rnd(V, V)
            elif step == 2:
                a(f'v_add_f32 v{V}, 0x3727c5ac, v{V}')
            elif step == 4:
                a(f'v_sqrt_f32 v{V}, v{V}')
            elif step == 6:
                a(f'v_rcp_f32 v{V + 1}, v{V}')
            else:
                a(f'v_rcp_f32 v{V}, v{V}')
    for r in range(2):
        for i in range(16):
            rnd(N[r] + i, XP[r] + i)
    for r in range(2):
        for i in range(8):
            pk('mul', N[r] + 2 * i, N[r] + 2 * i, MV[r] + 2)
    for r in range(2):
        for i in range(16):
            rnd(N[r] + i, N[r] + i)


def key_poll(dst):
    a('v_lshlrev_b32 v4, 7, v1')
    a(f's_mov_b32 s65, {WS_KEYS}')
    a(f's_mov_b32 s66, {WS_KEYS + 8192}')
    if opt('kcan', 1):
        a('s_lshl_b32 s62, s3, 7')
        a(f's_add_u32 s62, s62, {WS_KEYS + 4}')
        a('s_mov_b64 exec, 1')
        retry_loop(a.newlabel('kc'), [f'buffer_load_dword v8, v4, {WSR}, s62 offen sc1'], lambda: a('v_cmp_ne_u32 vcc, s8, v8'), sleep=opt('kcsleep', 2))
        stamp('kcan')
    loads = [f'buffer_load_dwordx2 v[{16 + 2 * p}:{17 + 2 * p}], v4, {WSR}, s{65 + p} offen sc1' for p in range(2)]

    def chk():
        a('v_xor_b32 v8, s8, v17')
        a('v_xor_b32 v9, s8, v19')
        a('v_max_u32 v12, v16, v18')
        a('v_or_b32 v8, v8, v9')
        a('v_cmp_ne_u32 vcc, 0, v8')
    retry_loop(a.newlabel('pk'), loads, chk, sleep=opt('ksleep', 2))
    wave_reduce('v_max_u32', 12)
    a(f'v_readlane_b32 s{dst}, v12, 63')


def k_main():
    kernel_begin(a, KN)
    a('s_cmp_ge_u32 s2, 256')
    a('s_cbranch_scc1 main_done')
    stamp_begin(0)
    if opt('dbg', 0):
        a('s_load_dwordx2 s[100:101], s[0:1], 96')
    for sr, off in ((S_WS, 104), (S_K, 8), (S_V, 16), (S_SK, 24), (S_H, 32), (10, 40), (S_Q, 0), (S_WR, 56), (S_OUT, 88), (S_G, 64), (S_U, 72), (S_D, 80)):
        a(f's_load_dwordx2 s[{sr}:{sr + 1}], s[0:1], {off}')
    if CODEPF:
        a('s_getpc_b64 s[4:5]')
        a('pc0:')
        a('s_mov_b32 s6, main_done-pc0')
        a('s_mov_b32 s7, 0x00020000')
        a('s_lshr_b32 s3, s2, 3')
        a(f's_mul_i32 s3, s3, {CODEPF * 128}')
        a('v_lshlrev_b32 v3, 7, v0')
        a(f'v_cmp_gt_u32 vcc, {CODEPF}, v0')
        a('s_and_saveexec_b64 s[60:61], vcc')
        a('s_cbranch_execz no_codepf')
        a('buffer_load_dword v252, v3, s[4:7], s3 offen')
        a('no_codepf:')
        a('s_mov_b64 exec, -1')
    a('s_lshr_b32 s5, s2, 4')
    a('s_and_b32 s4, s2, 7')
    a('s_lshl_b32 s4, s4, 1')
    a('s_bfe_u32 s6, s2, 0x10003')
    a('s_or_b32 s4, s4, s6')
    a('s_lshl_b32 s2, s4, 4')
    a('s_or_b32 s2, s2, s5')
    a('v_lshrrev_b32 v3, 6, v0')
    a('v_and_b32 v1, 63, v0')
    a('v_readfirstlane_b32 s12, v3')
    a('v_lshlrev_b32 v2, 4, v1')
    a(f'v_mov_b32 v{VC}, {L_CNT}')
    a(f'v_mov_b32 v{V1}, 1')
    for r in range(6):
        a(f'v_mov_b32 v{144 + r}, 0')
    for r in range(4):
        a(f'v_mov_b32 v{240 + r}, -1')
    a('s_cmp_eq_u32 s12, 0')
    a('s_cbranch_scc0 no_cnt_init')
    a('s_mov_b64 exec, 1')
    a(f'ds_write_b128 v{VC}, v[144:147]')
    a(f'ds_write_b128 v{VC}, v[144:147] offset:16')
    a(f'ds_write_b128 v{VC}, v[144:147] offset:32')
    a('s_mov_b64 exec, -1')
    a('no_cnt_init:')
    for sr, n in ((S_WS, WS_SIZE), (S_K, MB4), (S_V, MB4), (S_SK, 8192), (S_H, 4096), (S_Q, MB4), (S_WR, 2048), (S_OUT, MB4),
                  (S_G, 1024 * 7168), (S_U, 1024 * 7168), (S_D, 3584 * 2048)):
        a(f's_mov_b32 s{sr + 2}, {n}')
        a(f's_mov_b32 s{sr + 3}, 0x00020000')
    a('s_and_b32 s13, s12, 3')
    if opt('gmix', 1):
        a('s_and_b32 s14, s12, 1')
        a('s_xor_b32 s4, s4, s14')
    a('s_lshr_b32 s14, s12, 2')
    a('s_lshl_b32 s15, s2, 2')
    a('s_add_u32 s15, s15, s13')
    a('s_lshr_b32 s3, s2, 1')
    a('v_and_b32 v4, 15, v1')
    a('v_lshrrev_b32 v5, 4, v1')
    a('v_and_b32 v10, 31, v1')
    a('v_lshrrev_b32 v11, 5, v1')
    a('v_lshrrev_b32 v6, 3, v1')
    a('v_lshlrev_b32 v8, 11, v6')
    a('v_lshlrev_b32 v6, 13, v6')
    a('v_and_b32 v7, 7, v1')
    a('v_lshl_add_u32 v6, v7, 4, v6')
    a('v_lshl_add_u32 v8, v7, 4, v8')
    a('s_lshl_b32 s62, s4, 17')
    a('s_lshl_b32 s63, s13, 11')
    a('s_add_u32 s62, s62, s63')
    a('s_lshl_b32 s63, s14, 21')
    a('s_add_u32 s62, s62, s63')
    a(f's_add_u32 s62, s62, {WS_KV}')
    a('s_lshl_b32 s63, s5, 7')
    a('s_add_u32 s62, s62, s63')
    a('s_add_u32 s63, s62, 0x10000')
    a('s_lshl_b32 s64, s12, 19')
    a('s_lshl_b32 s65, s5, 15')
    a('s_add_u32 s64, s64, s65')
    a('s_lshl_b32 s65, s4, 7')
    a('s_add_u32 s64, s64, s65')
    a('s_add_u32 s65, s64, 16384')
    a('s_sub_u32 s77, s64, 6144')
    a('s_cselect_b32 s77, 0x40000000, s77')
    a('s_lshl_b32 s79, s4, 9')
    a('v_lshlrev_b32 v9, 4, v10')
    a('s_lshl_b32 s67, s15, 12')
    a('s_lshl_b32 s70, s15, 1')
    a('s_and_b32 s70, s70, 0xfffffffc')
    a('s_lshl_b32 s68, s3, 4')
    a('s_lshl_b32 s69, s13, 2')
    a('s_add_u32 s68, s68, s69')
    a('s_lshl_b32 s69, s68, 11')
    a('s_mul_i32 s66, s12, 4608')
    a(f's_add_u32 s66, s66, {L_P0}')
    a(f's_mov_b32 s6, {WS_EPOCH}')
    a('s_mov_b32 m0, s66')
    a('s_waitcnt lgkmcnt(0)')
    stamp('karg')
    if WSOFF:
        a(f's_add_u32 s{S_WS}, s{S_WS}, {WSOFF}')
        a(f's_addc_u32 s{S_WS + 1}, s{S_WS + 1}, 0')
    a(f's_load_dword s8, s[{S_WS}:{S_WS + 1}], s6')
    a('s_load_dword s9, s[10:11], s70')
    KR, VR, SKR = 16, 28, 36

    GL = 96
    a('s_cmp_eq_u32 s14, 0')
    a('s_cbranch_scc1 ld_kv')
    a(f's_add_u32 s{S_H}, s{S_H}, s67')
    a(f's_addc_u32 s{S_H + 1}, s{S_H + 1}, 0')
    a('s_barrier')
    for i in range(4):
        a(f'buffer_load_dwordx4 v[{GL + 6 * i}:{GL + 6 * i + 3}], v2, s[{S_H}:{S_H + 3}], 0 offen offset:{1024 * i} nt')
    if opt('hipos', 0) >= 8:
        lds_spin('kvq', 32, opt('hipos', 0) - 4, 3)
    elif opt('hipos', 0):
        a(f's_waitcnt vmcnt({4 - opt("hipos", 0)})')
    a('ld_kv:')
    a(f'buffer_load_dwordx4 v[{SKR}:{SKR + 3}], v9, s[{S_SK}:{S_SK + 3}], s79 offen')
    a('s_mov_b64 exec, 0xffffff')
    a(f'buffer_load_dwordx4 v8, s[{S_K}:{S_K + 3}], s77 offen nt lds')
    a('s_mov_b64 exec, -1')
    for (sr, so, lo) in ((S_K, 64, 384), (S_K, 65, 1408), (S_V, 64, 2432), (S_V, 65, 3456)):
        a(f's_add_u32 m0, s66, {lo}')
        a(f'buffer_load_dwordx4 v8, s[{sr}:{sr + 3}], s{so} offen nt lds')
    a('s_cmp_eq_u32 s14, 0')
    a('s_cbranch_scc0 ld_done')
    a('s_barrier')
    a('ld_done:')
    a(f's_mul_i32 s67, s13, {CS}')
    a('s_mov_b32 s74, 0x05040100')
    a('s_mov_b32 s75, 0x07060302')
    a('v_lshlrev_b32 v92, 10, v11')
    a('v_lshl_add_u32 v92, v10, 2, v92')
    a('v_add_u32 v92, s66, v92')
    a('v_add_u32 v93, 1024, v92')
    a('v_add_u32 v94, 2432, v92')
    a('v_lshrrev_b32 v8, 1, v10')
    a('v_mul_u32_u24 v8, 144, v8')
    a('v_and_b32 v9, 1, v10')
    a('v_lshl_add_u32 v8, v9, 6, v8')
    a('v_sub_u32 v9, 1, v11')
    a('v_lshl_add_u32 v8, v9, 4, v8')
    a('v_add_u32 v8, s66, v8')
    a('v_lshrrev_b32 v9, 3, v1')
    a('v_mul_u32_u24 v9, 144, v9')
    a('v_lshl_add_u32 v9, v7, 4, v9')
    a('v_add_u32 v9, s66, v9')
    a('v_add_u32 v160, s67, v2')
    a('v_and_b32 v161, 3, v1')
    a(f'v_mul_u32_u24 v161, {GS}, v161')
    a('v_bfe_u32 v162, v1, 2, 2')
    a('v_lshl_add_u32 v161, v162, 3, v161')
    a('v_lshl_add_u32 v161, v5, 4, v161')
    a('v_add_u32 v161, s67, v161')
    a(f's_add_u32 s60, s67, {UOFF + 480}')
    a('v_lshlrev_b32 v163, 5, v4')
    a('v_sub_u32 v162, s60, v163')
    a('v_lshl_add_u32 v162, v5, 4, v162')
    a('v_lshl_add_u32 v163, v5, 3, v163')
    a('s_lshl_b32 s60, s13, 12')
    a(f's_add_u32 s60, s60, {L_YL}')
    a('v_add_u32 v163, s60, v163')
    a('v_bfe_u32 v165, v1, 1, 2')
    a(f'v_mul_u32_u24 v165, {CS}, v165')
    a('v_and_b32 v166, 1, v1')
    a('v_lshl_add_u32 v165, v166, 4, v165')
    a('v_lshrrev_b32 v166, 3, v1')
    a('v_lshlrev_b32 v166, 5, v166')
    a('v_sub_u32 v165, v165, v166')
    a('s_lshl_b32 s60, s12, 9')
    a(f's_sub_u32 s60, {UOFF + 4064 - 256}, s60')
    a('v_add_u32 v165, s60, v165')
    a('s_lshl_b32 s78, s2, 13')
    a('s_lshl_b32 s60, s13, 11')
    a('s_add_u32 s78, s78, s60')
    a('s_lshl_b32 s60, s14, 21')
    a('s_add_u32 s78, s78, s60')
    a(f's_add_u32 s78, s78, {WS_KV}')
    a('v_lshl_add_u32 v166, v5, 3, v4')
    a('v_sub_u32 v166, 15, v166')
    a('v_and_b32 v167, 1, v166')
    a('v_lshlrev_b32 v167, 4, v167')
    a('v_ashrrev_i32 v166, 1, v166')
    a(f'v_mul_u32_u24 v150, {GS}, v1')
    a('v_add_u32 v150, s67, v150')
    a('v_lshlrev_b32 v245, 7, v4')
    a('v_bfe_u32 v248, v1, 3, 2')
    a('v_lshlrev_b32 v248, 13, v248')
    a('v_lshl_add_u32 v248, v7, 7, v248')
    a('v_lshlrev_b32 v251, 4, v0')
    a(f'v_lshrrev_b32 v{VG8}, 3, v0')
    a(f'v_lshlrev_b32 v{VG8}, 3, v{VG8}')
    a(f'v_mul_u32_u24 v{VXA}, {2 * RS}, v7')
    a(f'v_add_u32 v{VXA}, v{VXA}, v{VG8}')
    a(f'v_add_u32 v{VXA}, {L_YT}, v{VXA}')
    a(f'v_add_u32 v{VWA}, {L_W}, v{VG8}')
    a(f'v_lshlrev_b32 v{VSA}, 5, v7')
    a(f'v_add_u32 v{VSA}, {L_ST}, v{VSA}')
    a(f'v_bfe_u32 v{VKL}, v1, 3, 1')
    a(f'v_lshl_add_u32 v{VKL}, v7, 1, v{VKL}')
    a(f'v_mul_u32_u24 v{VPR}, {PS}, v{VKL}')
    a(f'v_lshl_add_u32 v{VPR}, v5, 6, v{VPR}')
    a(f'v_lshl_add_u32 v{VPW}, v7, 1, v11')
    a(f'v_mul_u32_u24 v{VPW}, {PS}, v{VPW}')
    a('v_and_b32 v3, 1, v5')
    a(f'v_lshl_add_u32 v{VPW}, v3, 4, v{VPW}')
    a('s_lshl_b32 s60, s12, 5')
    a(f'v_add_u32 v{VPW}, s60, v{VPW}')
    a('s_lshl_b32 s60, s3, 4')
    a('s_sub_u32 s60, 2047, s60')
    a(f'v_sub_u32 v{VKL}, s60, v{VKL}')
    a(f's_mul_i32 s60, s13, {4 * RS}')
    a(f's_add_u32 s60, s60, {L_YT}')
    a(f'v_add_u32 v{VRA}, s60, v2')
    a(f'v_lshrrev_b32 v{VBIT}, 3, v1')
    a(f'v_lshlrev_b32 v{VBIT}, v{VBIT}, 1')
    a('v_and_b32 v253, 255, v0')
    a('v_lshlrev_b32 v253, 3, v253')
    a('v_lshlrev_b32 v237, 1, v253')
    a(f'v_lshlrev_b32 v247, {SH}, v5')
    a('v_lshl_add_u32 v247, v4, 4, v247')
    a('s_mov_b64 exec, 0xf')
    a('ds_write_b128 v150, v[144:147]')
    a('s_mov_b64 exec, 0x3fffffff')
    a(f'ds_write_b128 v160, v[144:147] offset:{UOFF + 4096}')
    a('s_mov_b64 exec, -1')
    WFp, KF, O, PKD = 40, 48, 70, 86
    a('s_waitcnt lgkmcnt(0)')
    a('s_add_u32 s8, s8, 0x9e3779b9')
    a('s_or_b32 s8, s8, 1')
    a('s_and_b32 s61, s15, 1')
    a('s_lshl_b32 s61, s61, 4')
    a('s_lshr_b32 s9, s9, s61')
    a('s_and_b32 s9, s9, 0xffff')
    a('v_lshlrev_b32 v167, v167, s9')
    for r in range(4):
        a(f'v_cmp_eq_u32 vcc, {r}, v166')
        a(f'v_cndmask_b32 v{168 + r}, 0, v167, vcc')
    a('s_lshl_b32 s64, s4, 11')
    a(f's_add_u32 s64, s64, {WS_FA}')
    a('s_lshl_b32 s65, s2, 7')
    a(f's_add_u32 s7, s65, {WS_FB}')
    a(f's_add_u32 s65, s65, {WS_FA}')
    a('v_mov_b32 v13, s8')
    a('v_mov_b32 v14, 0')
    a(f's_add_u32 s10, s65, {WS_FA2 - WS_FA}')
    a('s_cmp_eq_u32 s12, 0')
    a('s_cselect_b32 s60, s10, 0x40000000')
    a('s_mov_b64 exec, 0xff')
    a(f'buffer_store_dwordx4 v[144:147], v2, {WSR}, s60 offen')
    a('s_mov_b64 exec, -1')
    XV = 1
    a('s_lshl_b32 s60, s12, 2')
    a('s_add_u32 s64, s64, s60')
    a('s_add_u32 s65, s65, s60')
    a('s_add_u32 s10, s10, s60')
    a(f's_add_u32 s11, s64, {WS_FA2 - WS_FA}')
    if DYN:
        a('s_memrealtime s[4:5]')
    a('s_cmp_eq_u32 s14, 0')
    a('s_cbranch_scc1 p0')
    LATER = 6 + XV
    a(f's_waitcnt vmcnt({LATER + 3})')
    a(f'v_readlane_b32 s76, v{GL}, 0')
    a(f'v_readlane_b32 s77, v{GL + 1}, 0')
    a('s_lshl_b32 s70, s76, 16')
    a('s_lshr_b32 s61, s76, 16')
    a('s_lshl_b32 s71, s77, 16')
    a('s_or_b32 s61, s61, s71')
    a('v_writelane_b32 v149, s70, 0')
    a('v_writelane_b32 v149, s76, 1')
    a('v_writelane_b32 v149, s61, 2')
    a('v_writelane_b32 v149, s77, 3')
    a('v_writelane_b32 v148, s70, 2')
    a('v_writelane_b32 v148, s76, 3')
    a('s_mov_b64 exec, 0xf')
    a('ds_write_b128 v150, v[146:149] offset:16')
    a('s_mov_b64 exec, -1')
    for i in range(4):
        w = GL + 6 * i
        a(f'v_mov_b32_dpp v{w + 4}, v{w} wave_shl:1 row_mask:0xf bank_mask:0xf bound_ctrl:0')
        a(f'v_mov_b32_dpp v{w + 5}, v{w + 1} wave_shl:1 row_mask:0xf bank_mask:0xf bound_ctrl:0')
        if i < 3:
            a(f's_waitcnt vmcnt({LATER + 2 - i})')
            a(f'v_readlane_b32 s70, v{w + 6}, 0')
            a(f'v_readlane_b32 s71, v{w + 7}, 0')
            a(f'v_writelane_b32 v{w + 4}, s70, 63')
            a(f'v_writelane_b32 v{w + 5}, s71, 63')
        ta, tb, tc = 176 + 12 * i, 180 + 12 * i, 184 + 12 * i
        a(f'ds_write_b128 v160, v[{w + 2}:{w + 5}] offset:{32 + 1024 * i + 3 * GS}')
        for j in range(4):
            a(f'v_alignbit_b32 v{ta + j}, v{w + j + 1}, v{w + j}, 16')
        a(f'ds_write_b128 v160, v[{ta}:{ta + 3}] offset:{32 + 1024 * i + 0 * GS}')
        for j in range(4):
            a(f'v_alignbit_b32 v{tb + j}, v{w + j + 2}, v{w + j + 1}, 16')
        a(f'ds_write_b128 v160, v[{tb}:{tb + 3}] offset:{32 + 1024 * i + 2 * GS}')
        for j in range(4):
            a(f'v_mov_b32 v{tc + j}, v{w + j + 1}')
        a(f'ds_write_b128 v160, v[{tc}:{tc + 3}] offset:{32 + 1024 * i + 1 * GS}')
    lds_inc(20)
    a(f'v_add_u32 v239, {L_W}, v2')
    a('v_and_b32 v244, 1, v5')
    a('v_lshl_add_u32 v244, v244, 1, v11')
    a('v_lshlrev_b32 v244, 4, v244')
    a('s_lshl_b32 s60, s13, 6')
    a(f's_add_u32 s60, s60, {L_ST}')
    a('v_add_u32 v244, s60, v244')
    a('s_waitcnt lgkmcnt(0)')
    for p in range(4):
        a(f'v_mov_b32 v{YR[0] + 4 * p}, -1')
    a('s_lshl_b32 s60, s13, 5')
    a(f's_add_u32 s60, s60, {L_X}')
    a('v_mov_b32 v201, s60')
    a(f'v_mul_u32_u24 v203, {RP}, v4')
    a('v_lshl_add_u32 v203, v5, 5, v203')
    a(f's_mul_i32 s60, s13, {16 * RP}')
    a('v_add_u32 v203, s60, v203')
    a(f'v_mul_u32_u24 v205, {RP}, v5')
    a('v_lshl_add_u32 v205, v4, 4, v205')
    a(f's_mul_i32 s60, s13, {4 * RP}')
    a('v_add_u32 v205, s60, v205')
    stamp('gdone')
    a('p0:')
    a(f's_waitcnt vmcnt({5 + XV})')
    for jj in range(2):
        unpack(WFp + 0 + jj, WFp + 2 + jj, SKR + 2 * jj)
        unpack(WFp + 4 + jj, WFp + 6 + jj, SKR + 2 * jj + 1)
    a(f's_waitcnt vmcnt({2 + XV})')
    stamp('kdata')
    for r in range(0, 8, 2):
        a(f'ds_read2_b32 v[{KR + r}:{KR + r + 1}], v92 offset0:{32 * r} offset1:{32 * r + 32}')
    a(f'ds_read2_b32 v[{KR + 8}:{KR + 9}], v93 offset0:0 offset1:32')
    a(f'ds_read_b32 v{KR + 10}, v93 offset:256')
    a(f's_waitcnt vmcnt({0 + XV})')
    for r in range(0, 8, 2):
        a(f'ds_read2_b32 v[{VR + r}:{VR + r + 1}], v94 offset0:{32 * r} offset1:{32 * r + 32}')
    for r in range(11):
        if r % 2 == 0:
            a(f's_waitcnt lgkmcnt({9 - r // 2})')
        unpack(KF + 2 * r, KF + 2 * r + 1, KR + r)
    for t in range(4):
        tap = 3 - t
        for r in range(8):
            if t == 0:
                pk('mul', O + 2 * r, KF + 2 * (r + t), WFp + 2 * tap)
            else:
                pk('fma', O + 2 * r, KF + 2 * (r + t), WFp + 2 * tap, O + 2 * r)
    a('s_waitcnt lgkmcnt(0)')
    for r in range(8):
        unpack(KF + 2 * r, KF + 2 * r + 1, VR + r)
    for r in range(8):
        pk('mul', O + 2 * r, O + 2 * r, KF + 2 * r)
    for jj in range(2):
        d = PKD + 2 + 4 * jj
        for m in range(4):
            a(f'v_cvt_pk_bf16_f32 v{d + m}, v{O + 2 * (7 - 2 * m) + jj}, v{O + 2 * (6 - 2 * m) + jj}')
        a(f'ds_write_b128 v8, v[{d}:{d + 3}] offset:{32 * jj}')
    a('s_waitcnt lgkmcnt(0)')
    if opt('hhold', 0):
        a('s_cmp_eq_u32 s14, 0')
        a('s_cbranch_scc1 hh_go')
        lds_spin('hh', 32, opt('hhold', 0), 3)
    a('ds_read_b128 v[16:19], v9')
    a(f'ds_read_b128 v[20:23], v9 offset:{8 * 144}')
    a('s_waitcnt lgkmcnt(1)')
    a(f'buffer_store_dwordx4 v[16:19], v6, {KVR}, s62 offen sc1')
    a('s_waitcnt lgkmcnt(0)')
    a(f'buffer_store_dwordx4 v[20:23], v6, {KVR}, s63 offen sc1')
    stamp('kvst')
    if opt('hipos', 0) == 8:
        lds_inc(32)
    UP = 120
    a('s_waitcnt vmcnt(0)')
    stamp('kvack')
    a('s_mov_b64 exec, 1')
    a(f'buffer_store_dword v13, v14, {WSR}, s10 offen')
    FL2 = opt('fl2', 1)
    if not FL2:
        a(f'buffer_store_dword v13, v14, {WSR}, s65 offen sc1')
    EX, EF = opt('ex', 0), opt('ef', 0)
    GW, XH = 64, 68

    def gu_base():
        a('s_and_b32 s76, s3, 15')
        a('s_lshl_b32 s77, s76, 2')
        a('s_add_u32 s77, s77, s13')
        a(f's_mul_i32 s77, s77, {16 * 7168}')
        a('s_lshr_b32 s60, s3, 4')
        a('s_lshl_b32 s60, s60, 10')
        a('s_add_u32 s77, s77, s60')
    steps = []
    for i in range(16):
        for m, sr in ((0, S_G), (1, S_U)):
            r = GW + 64 * m + 4 * i
            steps.append([f'buffer_load_dwordx4 v[{r}:{r + 3}], v2, s[{sr}:{sr + 3}], s77 offen nt'])
        steps[-1].append('s_add_u32 s77, s77, 7168')

    def x_load(i):
        a(f'buffer_load_dwordx4 v[{XH + 4 * i}:{XH + 4 * i + 3}], v2, s[{S_Q}:{S_Q + 3}], s{69 + (i >> 2)} offen offset:{1024 * (i & 3)} nt')
    if EX or EF:
        a('s_mov_b64 exec, -1')
        a('s_cmp_eq_u32 s14, 0')
        a('s_cbranch_scc1 early_done')
        gu_base()
        a('s_add_u32 s70, s69, 4096')
        lds_spin('eh', 32, 4, 3)
        a('s_bitcmp0_b32 s2, 0')
        a('s_cbranch_scc0 early_ffn')
        for i in range(EX):
            x_load(i)
        a('s_branch early_done')
        a('early_ffn:')
        a('s_cmp_lt_u32 s3, 112')
        a('s_cbranch_scc0 early_done')
        for k in range(EF):
            for l in steps[k]:
                a(l)
        a('early_done:')
    a('s_mov_b64 exec, 0xffff')
    a('s_mov_b32 s61, 0')
    a('fa2_again:')
    a(f'buffer_load_dword v246, v245, {WSR}, s11 offen sc1')
    a('s_add_u32 s61, s61, 1')
    a('s_waitcnt vmcnt(0)')
    a('v_cmp_ne_u32 vcc, s8, v246')
    a('s_cbranch_vccz fa_ok')
    a('s_mov_b64 exec, vcc')
    if opt('fa2sleep', 0):
        a(f's_sleep {opt("fa2sleep", 0)}')
    a(f's_cmp_lt_u32 s61, {DUAL}')
    a('s_cbranch_scc1 fa2_again')
    if FL2:
        a(f'buffer_store_dword v13, v14, {WSR}, s65 offen sc1')
    retry_loop('fa', [f'buffer_load_dword v246, v245, {WSR}, s64 offen sc1'], lambda: a('v_cmp_ne_u32 vcc, s8, v246'), sleep=opt('fasleep', 1))
    stamp('faok')
    for q in range(2):
        a(f'buffer_load_dwordx4 v[{UP + 4 * q}:{UP + 4 * q + 3}], v2, {KVR}, s78 offen offset:{1024 * q}{KVL}')
    if FL2:
        a('s_mov_b64 exec, 1')
        a(f'buffer_store_dword v13, v14, {WSR}, s65 offen sc1')
        a('s_mov_b64 exec, -1')
    a('s_cmp_eq_u32 s14, 0')
    a('s_cbranch_scc0 helper')

    ACC = 16
    FA_ = [48, 196]
    FB_ = [80, 112]

    def readsA(s, c):
        out = []
        for j in range(8):
            out.append(f'ds_read_b64 v[{s + 4 * j}:{s + 4 * j + 1}], v161 offset:{64 * (8 * j + c)}')
            out.append(f'ds_read_b64 v[{s + 4 * j + 2}:{s + 4 * j + 3}], v161 offset:{64 * (8 * j + c) + 8}')
        return out

    def readsB(s, c):
        return [f'ds_read_b128 v[{s + 4 * z}:{s + 4 * z + 3}], v162 offset:{64 * (56 - (8 * z - c))}' for z in range(8)]

    def y_fill():
        a('v_bfe_u32 v182, v0, 3, 5')
        a('v_lshlrev_b32 v182, 15, v182')
        a('v_lshl_add_u32 v182, v7, 4, v182')
        a('s_lshl_b32 s62, s2, 7')
        for q in range(4):
            a(f'buffer_store_dwordx4 v[240:243], v182, {XBR}, s62 offen sc1')
            if q < 3:
                a('s_add_u32 s62, s62, 0x100000')

    if opt('hhold', 0) or EX or EF:
        lds_inc(32)
    lds_spin('g4', 20, 4, 153)
    for r in readsA(FA_[0], 0):
        a(r)
    for q in range(2):
        a(f's_waitcnt vmcnt({1 - q + FL2})')
        a(f'ds_write_b128 v165, v[{UP + 4 * q}:{UP + 4 * q + 3}] offset:{256 - 256 * q}')
    lds_inc(12)
    stamp('u0')
    if FILLBY == 1 and opt('fst', -1) < 0:
        y_fill()
    lds_spin('u4', 12, 4, 153)
    stamp('mf0')
    for r in readsB(FB_[0], 0)[:4]:
        a(r)

    def mfma(w, A, B, init=False):
        c = '0' if init else f'v[{ACC + 4 * w}:{ACC + 4 * w + 3}]'
        a(f'v_mfma_f32_16x16x32_bf16 v[{ACC + 4 * w}:{ACC + 4 * w + 3}], v[{A}:{A + 3}], v[{B}:{B + 3}], {c}')

    def ystage(w):
        E = 172 + 2 * (w & 3)
        return [f'v_cvt_pk_bf16_f32 v{E}, v{ACC + 4 * w}, v{ACC + 4 * w + 1}',
                f'v_cvt_pk_bf16_f32 v{E + 1}, v{ACC + 4 * w + 2}, v{ACC + 4 * w + 3}',
                f'ds_write_b64 v163, v[{E}:{E + 1}] offset:{512 * w}']

    gsetup = ['v_lshlrev_b32 v180, 2, v0', f'v_add_u32 v180, {L_YL}, v180', 'v_add_u32 v181, 0x2000, v180',
              'v_lshrrev_b32 v182, 3, v0', 'v_lshlrev_b32 v182, 15, v182', 'v_lshl_add_u32 v182, v7, 4, v182',
              's_lshl_b32 s62, s2, 7', 's_add_u32 s63, s62, 0x100000', 's_add_u32 s64, s62, 0x200000', 's_add_u32 s65, s62, 0x300000',
              's_lshl_b32 s6, s12, 10', f's_add_u32 s6, s6, {WS_FB}',
              's_bitcmp0_b32 s2, 0', 's_cselect_b32 s66, s69, 0x40000000', 's_cselect_b32 s70, 0, 0x40000000', 's_cselect_b32 s71, s6, 0x40000000']
    WR2 = 152

    def gather(p0_, sregs, GR, GP):
        rd, out = [], []
        for ch in range(4):
            base = 180 + (ch >> 1)
            rd.append(f'ds_read2st64_b32 v[{GR + 2 * ch}:{GR + 2 * ch + 1}], v{base} offset0:{16 * (ch & 1) + 4 * p0_} offset1:{16 * (ch & 1) + 4 * p0_ + 4}')
        for p in range(2):
            g = GP + 4 * p
            out.append(f'v_perm_b32 v{g}, v{GR + 2 + p}, v{GR + p}, s74')
            out.append(f'v_perm_b32 v{g + 1}, v{GR + 6 + p}, v{GR + 4 + p}, s74')
            out.append(f'v_perm_b32 v{g + 2}, v{GR + 2 + p}, v{GR + p}, s75')
            out.append(f'v_perm_b32 v{g + 3}, v{GR + 6 + p}, v{GR + 4 + p}, s75')
            out.append(f'buffer_store_dwordx4 v[{g}:{g + 3}], v182, {XBR}, s{sregs[p]} offen sc1')
        return rd, out

    fbload = f'buffer_load_dword v249, v248, {WSR}, s6 offen sc1'
    PY = YR[0]
    YM = 16

    GM = 48

    def y_setup(regs=True):
        for p in range(4):
            a(f's_mov_b64 s[{YM + 2 * p}:{YM + 2 * p + 1}], -1')
            if regs:
                a(f'v_mov_b32 v{PY + 4 * p}, -1')
        a('s_lshl_b32 s24, s3, 15')
        for p in range(1, 4):
            a(f's_add_u32 s{24 + p}, s24, {8192 * p}')
        a('s_mov_b64 s[0:1], -1')

    def fb_check():
        lab = a.newlabel('fbk')
        a('s_cmp_eq_u32 s0, 0')
        a(f's_cbranch_scc1 {lab}')
        a('v_cmp_ne_u32 s[0:1], s8, v249')
        for p in range(4):
            a(f's_lshr_b32 s9, s0, {8 * p}')
            a(f'v_and_b32 v250, s9, v{VBIT}')
            a(f'v_cmp_eq_u32 s[{GM + 2 * p}:{GM + 2 * p + 1}], 0, v250')
        a(f'{lab}:')

    def y_issue():
        lab = a.newlabel('yf')
        a('s_mov_b32 exec_lo, s0')
        a('s_mov_b32 exec_hi, 0')
        a(f's_cbranch_execz {lab}')
        a(fbload)
        a(f'{lab}:')
        for p in range(4):
            lab = a.newlabel('yi')
            a(f's_and_b64 exec, s[{YM + 2 * p}:{YM + 2 * p + 1}], s[{GM + 2 * p}:{GM + 2 * p + 1}]')
            a(f's_cbranch_execz {lab}')
            a(f'buffer_load_dwordx4 v[{PY + 4 * p}:{PY + 4 * p + 3}], v251, {XBR}, s{24 + p} offen sc1')
            a(f'{lab}:')
        a('s_mov_b64 exec, -1')

    def y_check():
        a('s_waitcnt vmcnt(0)')
        fb_check()
        for p in range(4):
            a(f'v_max3_u32 v250, v{PY + 4 * p}, v{PY + 4 * p + 1}, v{PY + 4 * p + 2}')
            a(f'v_max_u32 v250, v250, v{PY + 4 * p + 3}')
            a(f'v_cmp_eq_u32 s[{YM + 2 * p}:{YM + 2 * p + 1}], -1, v250')
        a(f's_or_b64 s[28:29], s[{YM}:{YM + 1}], s[{YM + 2}:{YM + 3}]')
        a(f's_or_b64 s[30:31], s[{YM + 4}:{YM + 5}], s[{YM + 6}:{YM + 7}]')
        a('s_or_b64 s[28:29], s[28:29], s[30:31]')

    AC = [116, 122]
    ST = [128, 132]
    TY = 68

    def prep_a():
        lds_spin(a.newlabel('xr'), 12, 8, 3)
        RX, RW = 76, 92
        for r in range(2):
            for p in range(4):
                a(f'ds_read_b64 v[{RX + 8 * r + 2 * p}:{RX + 8 * r + 2 * p + 1}], v{VXA} offset:{512 * p + RS * r}')
        for p in range(4):
            a(f'ds_read_b64 v[{RW + 2 * p}:{RW + 2 * p + 1}], v{VWA} offset:{512 * p}')
        for i in range(0, 12, 2):
            a(f'v_mov_b64 v[{AC[0] + i}:{AC[0] + i + 1}], 0')
        a('s_mov_b32 s72, 0')
        for r in range(2):
            a(f's_waitcnt lgkmcnt({8 - 4 * r})')
            for i in range(8):
                unpack(XP[r] + 2 * i, XP[r] + 2 * i + 1, RX + 8 * r + i)
        a('s_waitcnt lgkmcnt(0)')
        for i in range(8):
            unpack(WF + 2 * i, WF + 2 * i + 1, RW + i)

    def prep_b():
        lds_spin(a.newlabel('xs'), 28, 4, 3)
        for r in range(2):
            a(f'ds_read_b128 v[{ST[r]}:{ST[r] + 3}], v{VSA} offset:{16 * r}')
        a(f'ds_read_b32 v3, v{VC} offset:{L_SW - L_CNT}')
        for r in range(2):
            a(f's_waitcnt lgkmcnt({2 - r})')
            for i in range(8):
                pk('fma', N[r] + 2 * i, XP[r] + 2 * i, ST[r] + 2, ST[r])
        a('s_waitcnt lgkmcnt(0)')
        a('v_readfirstlane_b32 s71, v3')
        stamp('lnx')

    def y_fold():
        for p in range(4):
            lab = a.newlabel('yd')
            a(f's_bitcmp1_b32 s72, {p}')
            a(f's_cbranch_scc1 {lab}')
            a(f's_cmp_eq_u64 s[{YM + 2 * p}:{YM + 2 * p + 1}], 0')
            a(f's_cbranch_scc0 {lab}')
            a(f's_bitset1_b32 s72, {p}')
            for i in range(4):
                unpack(TY + 2 * i, TY + 2 * i + 1, PY + 4 * p + i)
            for i in range(4):
                e = XP[i >> 1] + 4 * p + 2 * (i & 1)
                pk('fma', e, TY + 2 * i, N[i >> 1] + 4 * p + 2 * (i & 1), e)
            for k in range(2):
                for r in range(2):
                    e = XP[r] + 4 * p + 2 * k
                    pk('add', AC[r], AC[r], e)
                    pk('fma', AC[r] + 2, e, e, AC[r] + 2)
                    pk('fma', AC[r] + 4, e, WF + 4 * p + 2 * k, AC[r] + 4)
            a(f'{lab}:')

    def spread(pairs, low_first=False):
        out, left = [], list(pairs)
        if low_first:
            left.sort(key=lambda q: q[0])

        def feasible(rest, prev):
            cnt = {}
            for q in rest:
                cnt[q[0]] = cnt.get(q[0], 0) + 1
            n = len(rest)
            return all(c <= (n + 1) // 2 - (1 if (w == prev and n % 2 == 1) else 0) for w, c in cnt.items())
        while left:
            recent = [q[0] for q in out[-2:]]
            pick = None
            for avoid in (recent, recent[-1:]):
                for q in left:
                    if q[0] in avoid:
                        continue
                    rest = list(left)
                    rest.remove(q)
                    if feasible(rest, q[0]):
                        pick = q
                        break
                if pick:
                    break
            assert pick
            out.append(pick)
            left.remove(pick)
        return out

    def stage_reads(st):
        sa, sb = FA_[st & 1], FB_[st & 1]
        if st < 8:
            return readsB(sb, st)[:4] + readsA(sa, st)
        out = []
        for hf in range(2):
            c = 2 * (st - 8) + hf
            out += readsB(sb + 16 * hf - 16, c)[4:] + readsA(sa + 16 * hf, c)[:8]
        return out

    NST = 12
    for st in range(NST):
        sa, sb = FA_[st & 1], FB_[st & 1]
        a('s_waitcnt lgkmcnt(0)')
        if st == 7:
            a('v_readfirstlane_b32 s60, v164')
            a('s_cmp_ge_u32 s60, 4')
            a('s_cbranch_scc1 uhi_go')
            lds_spin('uhi', 0, 4, 164)
            stamp('uhi')
        if st == FLC and FILLBY:
            a('s_waitcnt vmcnt(0)')
            a('s_mov_b64 exec, 1')
            a(f'ds_add_rtn_u32 v12, v{VC}, v{V1} offset:4')
            a(f'ds_add_u32 v{VC}, v{V1} offset:8')
            a('s_mov_b64 exec, -1')
            stamp('fillB')
        if st == FLC + 1 and FILLBY:
            a('s_mov_b64 exec, 1')
            a('v_cmp_eq_u32 vcc, 3, v12')
            a('v_cndmask_b32 v14, -16, v14, vcc')
            a(f'buffer_store_dword v13, v14, {WSR}, s7 offen sc1')
            a('s_mov_b64 exec, -1')
        fill = stage_reads(st + 1) if st + 1 < NST else []
        if st == 6:
            fill = fill + [f'ds_read_b32 v164, v{VC} offset:0']
        if st == FBC:
            fill = [f'ds_write_b32 v{VC}, v{V1} offset:24'] + fill
        if st == opt('fbc2', 10):
            fill = [fbload.replace('s6 ', 's71 ')] + fill
        if st == opt('fst', -1):
            assert st >= 1
            fill = [f'buffer_store_dwordx4 v[240:243], v182, {XBR}, s{62 + q} offen sc1' for q in range(4)] + fill
        if st == 0:
            fill = fill + gsetup[:12]
        if st == 1:
            for l in gsetup[12:]:
                a(l)
        if st in (8, 9) and not YLO:
            for w in (2 * (st - 8), 2 * (st - 8) + 1):
                fill = fill + ystage(w)
        if YLO:
            rlo, olo = gather(0, (62, 63), 184, 144)
            if st == 8:
                lds_inc(20)
                fill = fill + [f'ds_read_b32 v164, v{VC} offset:20']
            if st == 9:
                a('v_readfirstlane_b32 s60, v164')
                a('s_cmp_ge_u32 s60, 8')
                a('s_cbranch_scc1 ylo_go')
                lds_spin('ylo', 20, 8, 164)
                fill = rlo + fill
            if st == 10:
                fill = olo + fill
        if st < 8:
            pairs = [(n + z, sa + 4 * n, sb + 4 * z) for n in range(8) for z in range(min(4, 8 - n))]
            if st == 0:
                pairs = [(z, 168, sb + 4 * z) for z in range(4)] + pairs
        else:
            pairs = []
            for hf in range(2):
                pairs += [(n + z, sa + 16 * hf + 4 * n, sb + 16 * hf + 4 * (z - 4)) for n in range(4) for z in range(4, 8 - n)]
            if st == 8:
                pairs = [(z, 168, sb + 4 * (z - 4)) for z in range(4, 8)] + pairs
        order = spread(pairs, st in (7, NST - 1))
        seen = set() if st == 0 else set(range(8))
        last = {q[0]: i for i, q in enumerate(order)}
        pend = []
        nper = -(-len(fill) // (len(order) - (4 if st >= 7 else 0)))
        for i, (w, A, B) in enumerate(order):
            mfma(w, A, B, w not in seen)
            seen.add(w)
            for _ in range(nper):
                if fill:
                    a(fill.pop(0))
            if st == NST - 1 or (st == 7 and YLO):
                if last[w] == i and (st != 7 or w < 4):
                    pend.append([w, 0])
                for q in pend:
                    q[1] += 1
                if pend and pend[0][1] > 3:
                    for l in ystage(pend.pop(0)[0]):
                        a(l)
        assert not fill
        assert st == NST - 1 or not pend
    for w0, _ in pend:
        for l in ystage(w0):
            a(l)
    stamp('s1end')
    if opt('cprio', 1):
        a('s_setprio 2')
    lds_inc(8)
    lds_spin('c2', 8, 8, 166)
    if GXL and DWHO:
        a('s_and_b32 s60, s2, 1')
        a('s_cmp_lt_u32 s3, 112')
        a('s_cselect_b32 s60, s60, 0')
        a('s_cmp_eq_u32 s60, 0')
        a('s_cbranch_scc1 ib_go')
        lds_spin('ib', 28, 4, 166)
    (r0, o0), (r1, o1) = gather(0, (62, 63), 184, 196), gather(2, (64, 65), 164, 204)
    if YLO:
        tail = r1 + ['s_waitcnt lgkmcnt(0)'] + o1
    else:
        tail = r0 + r1 + ['s_waitcnt lgkmcnt(4)'] + o0 + ['s_waitcnt lgkmcnt(0)'] + o1
    for l in tail:
        a(l)
    stamp('yst')
    if opt('cprio', 1):
        a('s_setprio 0')
    lds_inc(8)
    a('s_bitcmp0_b32 s2, 0')
    a('s_cbranch_scc0 conv_ffn')
    a(f's_waitcnt vmcnt({2 if YLO else 4})')
    y_setup()
    fb_check()
    YF = opt('yfirst', 0)
    if YF:
        a('s_cmp_lt_u32 s3, 64')
        a('s_cbranch_scc0 yf_skip')
    y_issue()
    a('yf_skip:')
    prep_a()
    prep_b()
    a('s_branch rows')

    a('helper:')
    for q in range(2):
        a(f's_waitcnt vmcnt({1 - q + FL2})')
        a(f'ds_write_b128 v165, v[{UP + 4 * q}:{UP + 4 * q + 3}] offset:{256 - 256 * q}')
    lds_inc(0)
    stamp('u0')
    if FILLBY == 0:
        lds_spin('uw', UWOFF, 4, 28)
        y_fill()

    def fb_publish():
        if FILLBY:
            return
        a('s_mov_b64 exec, 1')
        a(f'ds_add_rtn_u32 v12, v{VC}, v{V1} offset:4')
        a(f'ds_add_u32 v{VC}, v{V1} offset:8')
        a('s_waitcnt lgkmcnt(0)')
        a('v_cmp_eq_u32 vcc, 3, v12')
        a('v_cndmask_b32 v14, -16, v14, vcc')
        a(f'buffer_store_dword v13, v14, {WSR}, s7 offen sc1')
        a('s_mov_b64 exec, -1')
        stamp('fillB')
    if FILLBY:
        lds_spin('uw', UWOFF, 4, 28)
    a(f's_lshl_b32 s61, s3, {SH}')
    a('s_bitcmp0_b32 s2, 0')
    a('s_cbranch_scc0 helper_ffn')
    a(f's_add_u32 s62, s61, {WS_CAND}')
    a(f's_add_u32 s63, s61, {WS_PART}')
    a(f's_add_u32 s79, s61, {WS_GX}')
    DW = 156
    DSP = opt('dsp', 1)

    def d_base():
        if DSP:
            a('s_lshr_b32 s78, s3, 4')
            a('s_lshl_b32 s78, s78, 20')
            a('s_and_b32 s60, s3, 15')
            a('s_lshl_b32 s60, s60, 14')
            a('s_add_u32 s78, s78, s60')
        else:
            a('s_lshl_b32 s78, s3, 16')

    def d_list(DW):
        return [[f'buffer_load_dwordx2 v[{DW + 2 * r}:{DW + 2 * r + 1}], v253, s[{S_D}:{S_D + 3}], s78 offen offset:{(r & 1) * 2048} nt']
                + ([f's_add_u32 s78, s78, {4096 + (262144 - 16384 if DSP and r % 8 == 7 else 0)}'] if r & 1 else []) for r in range(32)]
    d_base()
    dl = d_list(DW)
    XH, WH = 68, 100
    stamp('xiss')
    a('s_add_u32 s70, s69, 4096')
    for i in range(EX, 8):
        x_load(i)
    for i in range(2):
        a(f'buffer_load_dwordx4 v[{WH + 4 * i}:{WH + 4 * i + 3}], v2, s[{S_WR}:{S_WR + 3}], 0 offen offset:{1024 * i}')
    if not FILLBY:
        a('s_waitcnt vmcnt(10)')
        fb_publish()
    if opt('reuse', 0):
        assert not DWHO
        lds_spin('ru0', 0, 4, 3)
        lds_spin('ru1', 12, 4, 3)
    a(f'buffer_store_dwordx4 v[240:243], v237, {WSR}, s62 offen sc1')
    a(f'buffer_store_dwordx4 v[240:243], v237, {WSR}, s63 offen sc1')
    a(f'buffer_store_dwordx4 v[240:243], v237, {WSR}, s79 offen sc1')
    NL = 3 + (0 if FILLBY else 1)
    if GXL and not DWHO:
        a(f's_add_u32 s60, s79, {WS_GX2 - WS_GX}')
        a(f'buffer_store_dwordx4 v[240:243], v237, {WSR}, s60 offen')
        NL += 1
    a('s_mov_b32 s72, 0x3f803f80')
    a('s_mov_b32 s73, 0x3a800000')
    a('s_lshl_b32 s6, s12, 10')
    a(f's_add_u32 s6, s6, {WS_FB}')
    y_setup(False)
    XLATE = opt('xlate', 1)

    def x_to_lds(waits):
        for r in range(4):
            if waits:
                a(f's_waitcnt vmcnt({NL + 2 + 6 - 2 * r})')
            for hf in range(2):
                a(f'ds_write_b128 v{VRA}, v[{XH + 8 * r + 4 * hf}:{XH + 8 * r + 4 * hf + 3}] offset:{RS * r + 1024 * hf}')
        if waits:
            a(f's_waitcnt vmcnt({NL})')
        for hf in range(2):
            a(f'ds_write_b128 v239, v[{WH + 4 * hf}:{WH + 4 * hf + 3}] offset:{1024 * hf}')
        lds_inc(12)
    if not XLATE:
        lds_spin('cp0', 12, 4, 28)
        x_to_lds(True)
    elif opt('dafterx', 1):
        a(f's_waitcnt vmcnt({NL})')
    stamp('xarr')
    lds_spin('late', 24, 1, 3, sleep=LSLEEP)
    a(fbload)
    if DYN:
        a('s_memrealtime s[60:61]')
        a('s_waitcnt lgkmcnt(0)')
        a('s_sub_u32 s60, s60, s4')
        a(f's_cmp_lt_u32 s60, {DYN}')
        a('s_cselect_b32 s5, 1, 0')
        a('s_cbranch_scc1 d_early')
        a('s_waitcnt vmcnt(0)')
        a('s_branch d_early_done')
        a('d_early:')
    for r in range(DEARLY):
        for l in dl[r]:
            a(l)
    stamp('dearly')
    assert opt('dafterx', 1) and opt('stearly', 2) == 2
    a('d_early_done:')
    stamp('fbarr')
    S1, S2, SW = 36, 40, 44

    def stats_a():
        for i in range(8):
            for r in range(4):
                x = XH + 8 * r + i
                a(f'v_dot2_f32_bf16 v{S1 + r}, v{x}, s72, {"0" if i == 0 else "v%d" % (S1 + r)}')
                a(f'v_dot2_f32_bf16 v{S2 + r}, v{x}, v{x}, {"0" if i == 0 else "v%d" % (S2 + r)}')
            a(f'v_dot2_f32_bf16 v{SW}, v{WH + i}, s72, {"0" if i == 0 else "v%d" % SW}')
    STE = opt('stearly', 2)
    lds_spin('mf1', 8, 8, 3)
    stamp('mf1')
    if opt('sprio', 1):
        a(f's_setprio {opt("sprio", 1)}')
    if XLATE:
        x_to_lds(False)
    if STE:
        stats_a()
    if STE < 2:
        fb_check()
        lds_spin('mf', 8, opt('mfcnt', 12), 3)
        y_issue()
    if not STE:
        stats_a()
    for b in (S1, S2):
        a(f'v_permlane32_swap_b32 v{b}, v{b + 1}')
        a(f'v_permlane32_swap_b32 v{b + 2}, v{b + 3}')
    for b in (S1, S2):
        a(f'v_add_f32 v{b}, v{b}, v{b + 1}')
        a(f'v_add_f32 v{b + 2}, v{b + 2}, v{b + 3}')
    for b in (S1, S2):
        a(f'v_permlane16_swap_b32 v{b}, v{b + 2}')
    for b in (S1, S2):
        a(f'v_add_f32 v{b}, v{b}, v{b + 2}')
    for sh in (1, 2, 4, 8):
        for v in (S1, S2, SW):
            a(f'v_add_f32_dpp v{v}, v{v}, v{v} row_shr:{sh} row_mask:0xf bank_mask:0xf bound_ctrl:0')
    a(f'v_add_f32_dpp v{SW}, v{SW}, v{SW} row_bcast:15 row_mask:0xa bank_mask:0xf')
    a(f'v_mul_f32 v{S1}, s73, v{S1}')
    a(f'v_add_f32_dpp v{SW}, v{SW}, v{SW} row_bcast:31 row_mask:0xc bank_mask:0xf')
    a(f'v_mul_f32 v{S1 + 1}, v{S1}, v{S1}')
    a(f'v_fma_f32 v{S2}, v{S2}, s73, -v{S1 + 1}')
    a(f'v_max_f32 v{S2}, 0, v{S2}')
    rnd(S1, S1)
    rnd(S2, S2)
    a(f'v_add_f32 v{S2}, 0x3727c5ac, v{S2}')
    rnd(S2, S2)
    a(f'v_sqrt_f32 v{S2}, v{S2}')
    rnd(S2, S2)
    a(f'v_rcp_f32 v50, v{S2}')
    a(f'v_rcp_f32 v51, v{S2}')
    a(f'v_mul_f32 v48, -v{S1}, v50')
    a(f'v_mul_f32 v49, -v{S1}, v50')
    a('s_mov_b32 exec_lo, 0x80008000')
    a('s_mov_b32 exec_hi, 0x80008000')
    a('ds_write_b128 v244, v[48:51]')
    a('s_mov_b32 exec_lo, 0')
    a('s_mov_b32 exec_hi, 0x80000000')
    a(f'ds_write_b32 v{VC}, v{SW} offset:{L_SW - L_CNT}')
    lds_inc(28)
    stamp('pre')
    if opt('sprio', 1):
        a('s_setprio 0')
    if STE == 2:
        a(f's_waitcnt vmcnt({DEARLY})')
        fb_check()
        lds_spin('mf', 8, opt('mfcnt', 12), 3)
        if YF:
            a('s_cmp_lt_u32 s3, 64')
            a('s_cbranch_scc0 yf_skip2')
        y_issue()
        a('yf_skip2:')
    prep_a()
    prep_b()

    a('rows:')
    if YF > 1:
        a('s_cmp_lt_u32 s3, 64')
        a('s_cbranch_scc1 yf_skip3')
        a(f's_sleep {YF}')
        a('yf_skip3:')
    a('s_mov_b32 s61, 0')
    a('py_top:')
    y_check()
    a('s_cbranch_scc0 py_ok')
    a('s_add_u32 s61, s61, 1')
    a(f's_cmp_ge_u32 s61, {POLL_MAX}')
    a('s_cbranch_scc1 py_give')
    if YSLEEP:
        a(f's_sleep {YSLEEP}')
    y_issue()
    y_fold()
    a('s_branch py_top')
    a('py_give:')
    for p in range(4):
        a(f's_mov_b64 s[{YM + 2 * p}:{YM + 2 * p + 1}], 0')
    a('py_ok:')
    stamp('ypoll')
    y_fold()
    H = XP
    a('s_mov_b32 s73, 0x3a800000')
    Q = TY
    for r in range(2):
        for k in range(3):
            d = Q + k if r == 0 else Q + 4 + k
            a(f'v_add_f32 v{d}, v{AC[r] + 2 * k}, v{AC[r] + 2 * k + 1}')
    for k in range(3):
        a(f'v_permlane32_swap_b32 v{Q + k}, v{Q + 4 + k}')
    for k in range(3):
        a(f'v_add_f32 v{Q + k}, v{Q + k}, v{Q + 4 + k}')
    for k in range(3):
        a(f'v_add_f32_dpp v{Q + k}, v{Q + k}, v{Q + k} row_ror:8 row_mask:0xf bank_mask:0xf')
    a('s_mov_b32 exec_lo, 0x00ff00ff')
    a('s_mov_b32 exec_hi, 0x00ff00ff')
    a(f'ds_write_b128 v{VPW}, v[{Q}:{Q + 3}]')
    a('s_mov_b64 exec, -1')
    a('s_lshl_b32 s60, s3, 7')
    a(f's_add_u32 s60, s60, {WS_KEYS}')
    a('s_cmp_eq_u32 s12, 0')
    a('s_cselect_b32 s60, s60, 0x40000000')
    if opt('prio', 1):
        a('s_cbranch_scc0 no_prio')
        a('s_setprio 3')
        a('no_prio:')
    a('s_waitcnt lgkmcnt(0)')
    a('s_barrier')
    R = 76
    for i in range(4):
        a(f'ds_read_b128 v[{R + 4 * i}:{R + 4 * i + 3}], v{VPR} offset:{16 * i}')
    stamp('bar2')
    A = AC[0]
    a(f'v_mov_b32 v{A + 7}, s8')
    a(f'v_mov_b32 v{A + 5}, 0')
    a('s_waitcnt lgkmcnt(2)')
    pk('add', R, R, R + 4)
    a(f'v_add_f32 v{R + 2}, v{R + 2}, v{R + 6}')
    a('s_waitcnt lgkmcnt(0)')
    pk('add', R + 8, R + 8, R + 12)
    a(f'v_add_f32 v{R + 10}, v{R + 10}, v{R + 14}')
    pk('add', R, R, R + 8)
    a(f'v_add_f32 v{R + 2}, v{R + 2}, v{R + 10}')
    for sw in ('v_permlane32_swap_b32', 'v_permlane16_swap_b32'):
        for k in range(3):
            a(f'v_mov_b32 v{R + 4 + k}, v{R + k}')
        for k in range(3):
            a(f'{sw} v{R + k}, v{R + 4 + k}')
        pk('add', R, R, R + 4)
        a(f'v_add_f32 v{R + 2}, v{R + 2}, v{R + 6}')
    M, V = R + 8, R + 9
    a(f'v_mul_f32 v{R}, s73, v{R}')
    a(f'v_mul_f32 v{R + 3}, v{R}, v{R}')
    a(f'v_fma_f32 v{V}, v{R + 1}, s73, -v{R + 3}')
    rnd(M, R)
    a(f'v_max_f32 v{V}, 0, v{V}')
    rnd(V, V)
    a(f'v_fma_f32 v{R + 2}, -v{M}, s71, v{R + 2}')
    a(f'v_add_f32 v{V}, 0x3727c5ac, v{V}')
    rnd(V, V)
    a(f'v_sqrt_f32 v{V}, v{V}')
    rnd(V, V)
    a(f'v_rcp_f32 v{V}, v{V}')
    a(f'v_mul_f32 v{R + 2}, v{R + 2}, v{V}')
    rnd(R + 2, R + 2)
    a(f'v_ashrrev_i32 v{R + 3}, 31, v{R + 2}')
    a(f'v_and_b32 v{R + 3}, 0x7fff0000, v{R + 3}')
    a(f'v_xor_b32 v{R + 2}, 0x80000000, v{R + 2}')
    a(f'v_xor_b32 v{R + 2}, v{R + 2}, v{R + 3}')
    a(f'v_or_b32 v{A + 6}, v{R + 2}, v{VKL}')
    for sh in (1, 2, 4, 8):
        a(f'v_max_u32_dpp v{A + 6}, v{A + 6}, v{A + 6} row_ror:{sh} row_mask:0xf bank_mask:0xf')
    a('s_mov_b64 exec, 1')
    a(f'buffer_store_dwordx2 v[{A + 6}:{A + 7}], v{A + 5}, {WSR}, s60 offen sc1')
    a('s_mov_b64 exec, -1')
    stamp('key')
    if opt('prio', 1):
        a('s_setprio 0')
    a(f'v_readfirstlane_b32 s76, v{A + 6}')
    DMID = opt('dmid', 0)

    def down_loads(r0, r1):
        r1 = min(r1, 32)
        if r1 <= r0 or DWHO:
            return
        lab = a.newlabel('nodl')
        a('s_cmp_eq_u32 s14, 0')
        a(f's_cbranch_scc1 {lab}')
        for r in range(r0, r1):
            for l in dl[r]:
                a(l)
        a(f'{lab}:')
    if not DYN:
        down_loads(DEARLY, DEARLY + DMID)
    a(f'v_mul_f32 v{M}, -v{M}, v{V}')
    HS = [R + 12, R + 16]
    a(f'v_mov_b32_dpp v{R + 11}, v{V} row_ror:8 row_mask:0xf bank_mask:0xf')
    a(f'v_mov_b32_dpp v{R + 10}, v{M} row_ror:8 row_mask:0xf bank_mask:0xf')
    a('s_mov_b32 vcc_lo, 0xff00ff00')
    a('s_mov_b32 vcc_hi, 0xff00ff00')
    for k in range(4):
        own, oth = M + (k >> 1), R + 10 + (k >> 1)
        a(f'v_cndmask_b32 v{HS[0] + k}, v{own}, v{oth}, vcc')
        a(f'v_cndmask_b32 v{HS[1] + k}, v{oth}, v{own}, vcc')
    a(f's_lshl_b32 s77, s3, {SH}')
    a(f's_add_u32 s77, s77, {WS_CAND}')
    a('s_not_b32 s64, s76')
    a('s_bfe_u32 s65, s64, 0x30001')
    a('s_mov_b32 s66, 0x01010101')
    a('s_lshl_b32 s66, s66, s65')
    a('s_mov_b32 s67, s66')
    OUTR = [124, 132]

    def cand_row(r):
        a('s_mov_b64 exec, s[66:67]')
        for i in range(8):
            pk('fma', N[0] + 2 * i, H[r] + 2 * i, HS[r] + 2, HS[r])
        for i in range(8):
            a(f'v_cvt_pk_bf16_f32 v{YR[0] + i}, v{N[0] + 2 * i}, v{N[0] + 2 * i + 1}')
        for p in range(4):
            a(f'buffer_store_dwordx2 v[{YR[0] + 2 * p}:{YR[0] + 2 * p + 1}], v{VG8}, {WSR}, s77 offen offset:{512 * p} sc1')
        for i in range(8):
            a(f'v_cvt_pk_bf16_f32 v{WF + i}, v{H[r] + 2 * i}, v{H[r] + 2 * i + 1}')

    a('s_bitcmp1_b32 s64, 0')
    a('s_cbranch_scc1 order10')
    cand_row(0)
    a('s_branch cand_done')
    a('order10:')
    cand_row(1)
    a('cand_done:')
    stamp('cand')
    for p in range(4):
        a(f'ds_write_b64 v{VG8}, v[{WF + 2 * p}:{WF + 2 * p + 1}] offset:{L_H + 512 * p}')
    a('s_mov_b64 exec, -1')
    assert not DYN
    D2 = DEARLY + DMID + opt('dmid2', 8)
    down_loads(DEARLY + DMID, D2)
    EXACT = opt('exact', 0)
    if not EXACT:
        for r in range(2):
            a(f'v_add_f32 v{HS[r] + 2}, 1.0, v{HS[r] + 2}')
            a(f'v_add_f32 v{HS[r] + 3}, 1.0, v{HS[r] + 3}')
    for r in range(2):
        if EXACT:
            for i in range(16):
                rnd(H[r] + i, H[r] + i)
            for i in range(8):
                pk('fma', N[0] + 2 * i, H[r] + 2 * i, HS[r] + 2, HS[r])
            for i in range(16):
                rnd(N[0] + i, N[0] + i)
            for i in range(8):
                pk('add', H[r] + 2 * i, H[r] + 2 * i, N[0] + 2 * i)
        else:
            for i in range(8):
                pk('fma', H[r] + 2 * i, H[r] + 2 * i, HS[r] + 2, HS[r])
        for i in range(8):
            a(f'v_cvt_pk_bf16_f32 v{N[1] + 8 * r + i}, v{H[r] + 2 * i}, v{H[r] + 2 * i + 1}')
        for p in range(4):
            a(f'ds_write_b64 v{VXA}, v[{N[1] + 8 * r + 2 * p}:{N[1] + 8 * r + 2 * p + 1}] offset:{512 * p + RS * r}')
    lds_inc(28)
    a('s_cmp_eq_u32 s14, 0')
    a('s_cbranch_scc0 ffn2')
    a('s_and_b32 s64, s64, 15')
    a(f's_mul_i32 s60, s64, {RS}')
    a(f's_add_u32 s60, s60, {L_YT}')
    a('v_add_u32 v3, s60, v2')
    a('s_lshl_b32 s65, s3, 4')
    a('s_add_u32 s64, s64, s65')
    a('s_lshl_b32 s65, s64, 11')
    lds_spin('o8', 28, 12, 68)
    a('s_cmp_eq_u32 s12, 0')
    a('s_cbranch_scc0 no_cand_h')
    for hf in range(2):
        a(f'ds_read_b128 v[{68 + 4 * hf}:{71 + 4 * hf}], v3 offset:{1024 * hf}')
    for hf in range(2):
        a(f'ds_read_b128 v[{WF + 4 * hf}:{WF + 4 * hf + 3}], v2 offset:{L_H + 1024 * hf}')
    for hf in range(2):
        a(f's_waitcnt lgkmcnt({3 - hf})')
        a(f'buffer_store_dwordx4 v[{68 + 4 * hf}:{71 + 4 * hf}], v2, {XBR}, s65 offen offset:{1024 * hf} sc1')
    a('s_waitcnt vmcnt(0) lgkmcnt(0)')
    a(f'buffer_store_dwordx4 v[{WF}:{WF + 3}], v2, {WSR}, s77 offen offset:2048 sc1')
    a(f'buffer_store_dwordx4 v[{WF + 4}:{WF + 7}], v2, {WSR}, s77 offen offset:3072 sc1')
    a('no_cand_h:')
    for i in range(8):
        a(f'ds_read_b128 v[{4 + 4 * i}:{7 + 4 * i}], v{VRA} offset:{RS * (i >> 1) + 1024 * (i & 1)}')
    OE, OM = opt('oearly', 0), opt('omid', 0)
    a('s_waitcnt lgkmcnt(0)')
    for r in range(4):
        if r == OE and OM and not DWHO:
            a('s_cmp_lt_u32 s3, 112')
            a('s_cbranch_scc0 dr_go')
            lds_spin('dr', 16, 4, 68)
        if r == OE + OM and not DWHO:
            a('s_cmp_lt_u32 s3, 112')
            a('s_cbranch_scc0 dp_go')
            lds_spin('dp', 16, 8, 68, sleep=2)
            if opt('osleep', 0):
                a(f's_sleep {opt("osleep", 0)}')
        a('s_cmp_eq_u32 s68, s64')
        a('s_cselect_b32 s60, 0x40000000, s69')
        for hf in range(2):
            i = 2 * r + hf
            a(f'buffer_store_dwordx4 v[{4 + 4 * i}:{7 + 4 * i}], v2, {XBR}, s60 offen offset:{1024 * hf} sc1')
        if r < 3:
            a('s_add_u32 s68, s68, 1')
            a('s_add_u32 s69, s69, 2048')
    a('s_branch main_fl')
    TT = 8

    def d_perm(DW, ps):
        for p in ps:
            for k in range(2):
                lo, hi = DW + 2 * (8 * (p >> 2) + (p & 3)) + k, DW + 2 * (8 * (p >> 2) + (p & 3) + 4) + k
                t = 48 + k
                a(f'v_perm_b32 v{t}, v{hi}, v{lo}, s74')
                a(f'v_perm_b32 v{hi}, v{hi}, v{lo}, s75')
                a(f'v_mov_b32 v{lo}, v{t}')

    def gx_loads():
        for q in range(4):
            a(f'buffer_load_dwordx4 v[{52 + 4 * q}:{52 + 4 * q + 3}], v2, {WSR}, s62 offen offset:{1024 * q} sc1')

    def ffn2(DW, issued):
        P = 52
        a('s_mov_b32 s61, 0')
        if issued:
            a('s_branch pg_chk')
        a('pg_again:')
        gx_loads()
        a('pg_chk:')
        a('s_waitcnt vmcnt(0)')
        sentinel_check(range(P, P + 16), P + 16)
        a('s_cbranch_vccz pg_ok')
        a('s_add_u32 s61, s61, 1')
        a(f's_cmp_ge_u32 s61, {POLL_MAX}')
        a('s_cbranch_scc1 pg_ok')
        a('s_mov_b64 exec, vcc')
        a(f's_cmp_lt_u32 s61, {GXL}')
        a('s_cselect_b32 s62, s63, s79')
        if opt('gxsleep', 1):
            a(f's_sleep {opt("gxsleep", 1)}')
        a('s_branch pg_again')
        a('pg_ok:')
        a('s_mov_b64 exec, -1')
        stamp('gxpoll')
        pk('add', P, P, P + 4)
        pk('add', P + 2, P + 2, P + 6)
        pk('add', P + 8, P + 8, P + 12)
        pk('add', P + 10, P + 10, P + 14)
        pk('add', P, P, P + 8)
        pk('add', P + 2, P + 2, P + 10)
        a(f'v_permlane32_swap_b32 v{P}, v{P + 2}')
        a(f'v_permlane32_swap_b32 v{P + 1}, v{P + 3}')
        pk('add', P, P, P + 2)
        a(f'v_permlane16_swap_b32 v{P}, v{P + 1}')
        a(f'v_add_f32 v{TT}, v{P}, v{P + 1}')
        rnd(TT, TT)
        a(f'v_mul_f32 v{TT + 2}, 0xbfb8aa3b, v{TT}')
        a(f'v_mov_b32_dpp v{TT + 3}, v{TT} row_ror:8 row_mask:0xf bank_mask:0xf')
        a(f'v_exp_f32 v{TT + 2}, v{TT + 2}')
        a(f'v_add_f32 v{TT + 2}, 1.0, v{TT + 2}')
        a(f'v_rcp_f32 v{TT + 2}, v{TT + 2}')
        a(f'v_mul_f32 v{TT}, v{TT}, v{TT + 2}')
        rnd(TT, TT)
        a(f'v_mul_f32 v{TT}, v{TT}, v{TT + 3}')
        a(f'v_mov_b32_dpp v{TT + 1}, v{TT} row_shr:1 row_mask:0xf bank_mask:0xf bound_ctrl:0')
        a(f'v_cvt_pk_bf16_f32 v{TT}, v{TT + 1}, v{TT}')
        for p in range(16):
            a(f'v_readlane_b32 s{S_K + p}, v{TT}, {16 * (p & 3) + 2 * (p >> 2) + 1}')
        AC2 = 24
        for p in range(16):
            for c in range(4):
                r = DW + 2 * (8 * (p >> 2) + (p & 3) + 4 * (c & 1)) + (c >> 1)
                h = AC2 + 4 * (p & 1) + c
                src2 = '0' if p < 2 else f'v{h}'
                a(f'v_dot2_f32_bf16 v{h}, v{r}, s{S_K + p}, {src2}')
        pk('add', AC2, AC2, AC2 + 4)
        pk('add', AC2 + 2, AC2 + 2, AC2 + 6)
        a(f'buffer_store_dwordx4 v[{AC2}:{AC2 + 3}], v237, {WSR}, s77 offen sc1')
        stamp('pst')

    a('ffn2:')
    if DWHO:
        a('s_branch main_fl')
    else:
        a('s_cmp_lt_u32 s3, 112')
        a('s_cbranch_scc0 main_fl')
        for r in range(min(D2, 32), 32):
            for l in dl[r]:
                a(l)
        a(f's_lshl_b32 s77, s3, {SH}')
        a(f's_add_u32 s77, s77, {WS_PART}')
        a(f's_add_u32 s63, s79, {WS_GX2 - WS_GX}')
        a(f's_mov_b32 s62, s{63 if GXL else 79}')
        for aa in range(4):
            a(f's_waitcnt vmcnt({24 - 8 * aa})')
            if aa == 3:
                lds_inc(16)
                stamp('dready')
                gx_loads()
            d_perm(DW, range(4 * aa, 4 * aa + 4))
        ffn2(DW, True)
        lds_inc(16)
        a('s_branch main_fl')

    a('helper_ffn:')
    a('s_cmp_lt_u32 s3, 112')
    a('s_cbranch_scc1 ffn_go')
    a('s_waitcnt vmcnt(0)')
    fb_publish()
    a('s_branch red_wait')
    a('ffn_go:')
    GW = 64
    if not (EX or EF):
        gu_base()
    a('s_lshr_b32 s78, s3, 4')
    a('s_lshl_b32 s78, s78, 2')
    a('s_add_u32 s78, s78, s13')
    a(f's_lshl_b32 s78, s78, {SH + 2}')
    a('s_lshl_b32 s60, s76, 8')
    a('s_add_u32 s78, s78, s60')
    a(f's_add_u32 s78, s78, {WS_GX}')
    a(f's_add_u32 s79, s78, {WS_GX2 - WS_GX}')
    if GXL and DWHO:
        a(f's_add_u32 s60, s61, {WS_GX2}')
        a(f'buffer_store_dwordx4 v[240:243], v237, {WSR}, s60 offen')
    assert DSP
    stamp('uw')
    FBK = opt('fbk', 2)
    for k, stp in enumerate(steps):
        if k < EF:
            continue
        if k == PAUSE:
            stamp('pause')
            lds_spin('late2', 24, 1, 28, sleep=LSLEEP)
            lds_spin('yw', 8, 12, 28)
            if opt('rsleep', 0):
                a(f's_sleep {opt("rsleep", 0)}')
        for l in stp:
            a(l)
        if k >= EF + DEPTH - 1 and k < PAUSE:
            a(f's_waitcnt vmcnt({DEPTH - 1})')
        if PAUSE <= k < PAUSE + opt('slow', 0):
            a(f's_waitcnt vmcnt({opt("depth2", 2) - 1})')
        if k == DEPTH - 1 and GXL and DWHO:
            lds_inc(28)
        if k == FBK - 1 and not FILLBY:
            a(f's_waitcnt vmcnt({FBK})')
            fb_publish()
    assert DEPTH <= PAUSE < 32
    if DWHO:
        lds_inc(16)
    for i2 in range(8):
        a(f's_waitcnt vmcnt({max(0, min(63, 32 - 4 * (i2 + 1)))})')
        for m in range(2):
            for k in range(4):
                lo, hi = GW + 64 * m + 8 * i2 + k, GW + 64 * m + 8 * i2 + 4 + k
                t = 32 + (k & 3)
                a(f'v_perm_b32 v{t}, v{hi}, v{lo}, s74')
                a(f'v_perm_b32 v{hi}, v{hi}, v{lo}, s75')
                a(f'v_mov_b32 v{lo}, v{t}')
    stamp('wready')
    KCONV = opt('kconv', 1)

    def fetch_token():
        a('v_lshlrev_b32 v6, 2, v1')
        a(f'v_add_u32 v7, {L_X}, v6')
        if opt('kdelay', 0):
            a(f's_sleep {opt("kdelay", 0)}')
        if not opt('spec', 1):
            key_poll(65)
            stamp('gkey')
            a('s_and_b32 s66, s65, 0xffff')
            a('s_sub_u32 s66, 2047, s66')
            a('s_lshr_b32 s66, s66, 4')
            a(f's_lshl_b32 s66, s66, {SH}')
            a('s_lshl_b32 s60, s76, 7')
            a('s_add_u32 s66, s66, s60')
            a(f's_add_u32 s66, s66, {WS_CAND}')
            a('s_mov_b32 exec_hi, 0')
            retry_loop('px', [f'buffer_load_dword v8, v6, {WSR}, s66 offen sc1'], lambda: a('v_cmp_eq_u32 vcc, -1, v8'), sleep=1, mask='0xffffffff')
        else:
            a('v_lshlrev_b32 v4, 7, v1')
            a(f's_mov_b32 s64, {WS_KEYS + 8192}')
            a('s_lshl_b32 s63, s76, 7')
            a(f's_add_u32 s63, s63, {WS_CAND}')
            a(f's_and_b32 s62, s3, {opt("canmask", 63)}')
            a('s_lshl_b32 s62, s62, 7')
            a(f's_add_u32 s62, s62, {WS_KEYS + 4}')
            a('s_mov_b64 exec, 1')
            retry_loop('kc2', [f'buffer_load_dword v8, v4, {WSR}, s62 offen sc1'], lambda: a('v_cmp_ne_u32 vcc, s8, v8'), sleep=opt('kcsleep', 2))
            stamp('kcan')
            kl = [f'buffer_load_dwordx2 v[16:17], v4, {WSR}, {WS_KEYS} offen sc1', f'buffer_load_dwordx2 v[18:19], v4, {WSR}, s64 offen sc1']

            def cand_addr():
                a('s_not_b32 s66, s65')
                a('s_bfe_u32 s66, s66, 0x70004')
                a(f's_lshl_b32 s66, s66, {SH}')
                a('s_add_u32 s66, s66, s63')
            for l in kl:
                a(l)
            a('s_mov_b32 s67, 0')
            a('s_mov_b32 s61, 0')
            a('v_mov_b32 v8, -1')
            a('ks_chk:')
            a('s_waitcnt vmcnt(0)')
            a('v_cmp_eq_u32 vcc, s8, v17')
            a('v_cmp_eq_u32 s[70:71], s8, v19')
            a('v_cndmask_b32 v12, 0, v16, vcc')
            a('v_cndmask_b32 v9, 0, v18, s[70:71]')
            a('s_nand_b64 s[70:71], s[70:71], vcc')
            a('v_max_u32 v12, v12, v9')
            a('s_cbranch_scc0 ks_all')
            a('s_add_u32 s61, s61, 1')
            a(f's_cmp_ge_u32 s61, {POLL_MAX}')
            a('s_cbranch_scc1 ks_all')
            a('s_mov_b64 exec, s[70:71]')
            for l in kl:
                a(l)
            a('s_mov_b64 exec, -1')
            wave_reduce('v_max_u32', 12)
            a('v_readlane_b32 s65, v12, 63')
            a('s_mov_b32 s67, s65')
            cand_addr()
            a('s_mov_b32 exec_hi, 0')
            a(f'buffer_load_dword v8, v6, {WSR}, s66 offen sc1')
            a('s_mov_b64 exec, -1')
            a('s_branch ks_chk')
            a('ks_all:')
            wave_reduce('v_max_u32', 12)
            a('v_readlane_b32 s65, v12, 63')
            stamp('gkey')
            cand_addr()
            a('s_mov_b32 exec_hi, 0')
            a('s_cmp_eq_u32 s65, s67')
            a('s_cbranch_scc1 px_chk')
            retry_loop('px', [f'buffer_load_dword v8, v6, {WSR}, s66 offen sc1'], lambda: a('v_cmp_eq_u32 vcc, -1, v8'), sleep=1, mask='0xffffffff')
        a('ds_write_b32 v7, v8')
        a('s_mov_b64 exec, -1')
        a('s_waitcnt lgkmcnt(0)')
    if not KCONV:
        a('s_cmp_eq_u32 s13, 0')
        a('s_cbranch_scc0 f2_bar')
        fetch_token()
    a('f2_bar:')
    a('s_barrier')
    XS, AC = 36, 44
    stamp('ffn0')
    a(f'ds_read_b128 v[{XS}:{XS + 3}], v201')
    a(f'ds_read_b128 v[{XS + 4}:{XS + 7}], v201 offset:16')
    for p in range(8):
        if p % 4 == 0:
            a(f's_waitcnt lgkmcnt({1 - p // 4})')
        for m in range(2):
            for c in range(8):
                r = GW + 64 * m + 8 * p + 4 * (c & 1) + (c >> 1)
                i = AC + 8 * m + c
                src2 = '0' if p == 0 else f'v{i}'
                a(f'v_dot2_f32_bf16 v{i}, v{r}, v{XS + p}, {src2}')
    for q in range(4):
        a(f'ds_write_b128 v203, v[{AC + 4 * q}:{AC + 4 * q + 3}] offset:{128 * (q >> 1) + 16 * (q & 1)}')
    a('s_waitcnt lgkmcnt(0)')
    a('s_barrier')
    for q in range(4):
        a(f'ds_read_b128 v[{8 + 4 * q}:{11 + 4 * q}], v205 offset:{16 * RP * q}')
    a('s_waitcnt lgkmcnt(2)')
    pk('add', 8, 8, 12)
    pk('add', 10, 10, 14)
    a('s_waitcnt lgkmcnt(0)')
    pk('add', 16, 16, 20)
    pk('add', 18, 18, 22)
    pk('add', 8, 8, 16)
    pk('add', 10, 10, 18)
    if GXL:
        a(f'buffer_store_dwordx4 v[8:11], v247, {WSR}, s79 offen')
    a(f'buffer_store_dwordx4 v[8:11], v247, {WSR}, s78 offen sc1')
    stamp('gxst')
    a('s_branch main_fl')

    a('conv_ffn:')
    a('s_cmp_lt_u32 s3, 112')
    a('s_cbranch_scc0 red_conv')
    if KCONV:
        assert not DWHO
        a('s_cmp_eq_u32 s12, 0')
        a('s_cbranch_scc0 main_fl')
        a('s_and_b32 s76, s3, 15')
        fetch_token()
        a('s_barrier')
    if DWHO:
        DW2 = 80
        lds_spin('gu', 16, 4, 8)
        d_base()
        for stp in d_list(DW2):
            for l in stp:
                a(l)
        a('v_lshlrev_b32 v237, 1, v253')
        a(f's_lshl_b32 s77, s3, {SH}')
        a(f's_add_u32 s79, s77, {WS_GX}')
        a(f's_add_u32 s77, s77, {WS_PART}')
        a(f's_add_u32 s63, s79, {WS_GX2 - WS_GX}')
        a(f's_mov_b32 s62, s{63 if GXL else 79}')
        for aa in range(4):
            a(f's_waitcnt vmcnt({24 - 8 * aa})')
            d_perm(DW2, range(4 * aa, 4 * aa + 4))
        stamp('dready')
        a('s_barrier')
        a('s_barrier')
        ffn2(DW2, False)
    a('s_branch main_fl')

    a('red_conv:')
    a('s_cmp_eq_u32 s12, 0')
    a('s_cbranch_scc0 red_wait')
    if opt('rdelay', 0):
        a(f's_sleep {opt("rdelay", 0)}')
    key_poll(71)
    a('s_sub_u32 s76, s3, 112')
    a('s_and_b32 s72, s71, 0xffff')
    a('s_sub_u32 s72, 2047, s72')
    a('s_lshr_b32 s73, s72, 4')
    a(f's_lshl_b32 s73, s73, {SH}')
    a('s_lshl_b32 s60, s76, 7')
    a('s_add_u32 s73, s73, s60')
    a(f's_add_u32 s73, s73, {WS_CAND}')
    a('s_lshl_b32 s72, s72, 11')
    a('s_add_u32 s72, s72, s60')
    a('v_and_b32 v6, 31, v0')
    a('v_lshlrev_b32 v6, 2, v6')
    a('s_cmp_eq_u32 s76, 0')
    a(f's_cselect_b32 s60, {WS_EPOCH}, 0x40000000')
    a('v_mov_b32 v49, s8')
    a('v_mov_b32 v50, 0')
    a('s_mov_b64 exec, 1')
    a(f'buffer_store_dword v49, v50, {WSR}, s60 offen')
    a('s_mov_b64 exec, -1')
    loads = [f'buffer_load_dword v{40 + p}, v6, {WSR}, s73 offen offset:{2048 * p} sc1' for p in range(2)]
    poll_loop('ph', loads, (40, 41), 42)
    a('s_and_b32 s60, s71, 0xffff0000')
    a('s_xor_b32 s61, s60, 0x80000000')
    a('s_xor_b32 s62, s60, 0xffff0000')
    a('s_cmp_lt_i32 s60, 0')
    a('s_cselect_b32 s60, s61, s62')
    a('v_mov_b32 v42, 0xbfb8aa3b')
    a('v_mul_f32 v42, s60, v42')
    a('v_exp_f32 v42, v42')
    a('v_add_f32 v42, 1.0, v42')
    a('v_rcp_f32 v42, v42')
    rnd(42, 42)
    unpack(44, 45, 40)
    unpack(46, 47, 41)
    a('red_wait:')
    a(f's_add_u32 s{S_G}, s{S_WS}, {WS_PART}')
    a(f's_addc_u32 s{S_G + 1}, s{S_WS + 1}, 0')
    a(f's_mov_b32 s{S_G + 2}, {112 << SH}')
    a('s_sub_u32 s76, s3, 112')
    a('v_and_b32 v4, 15, v0')
    a('v_lshrrev_b32 v5, 4, v0')
    a(f'v_lshlrev_b32 v5, {SH}, v5')
    a('v_lshl_add_u32 v5, v4, 4, v5')
    a('s_lshl_b32 s64, s76, 8')
    a(f's_add_u32 s65, s64, {32 << SH}')
    a(f's_add_u32 s66, s64, {64 << SH}')
    a(f's_add_u32 s67, s64, {96 << SH}')
    a('v_lshrrev_b32 v7, 4, v1')
    a('v_lshl_add_u32 v7, v4, 2, v7')
    a('v_lshlrev_b32 v7, 2, v7')
    a('s_lshl_b32 s60, s12, 8')
    a(f's_add_u32 s60, s60, {L_RED}')
    a('v_add_u32 v7, s60, v7')
    a('v_lshlrev_b32 v48, 3, v1')
    a(f'v_add_u32 v48, {L_RED}, v48')
    a('s_barrier')
    if opt('finsleep', 30):
        a(f's_sleep {opt("finsleep", 30)}')
    P = 8
    loads = [f'buffer_load_dwordx4 v[{P + 4 * r}:{P + 4 * r + 3}], v5, s[{S_G}:{S_G + 3}], s{64 + r} offen sc1' for r in range(4)]
    poll_loop('pp', loads, range(P, P + 16), 24)
    stamp('ppoll')
    pk('add', P, P, P + 4)
    pk('add', P + 2, P + 2, P + 6)
    pk('add', P + 8, P + 8, P + 12)
    pk('add', P + 10, P + 10, P + 14)
    pk('add', P, P, P + 8)
    pk('add', P + 2, P + 2, P + 10)
    a(f'v_permlane32_swap_b32 v{P}, v{P + 2}')
    a(f'v_permlane32_swap_b32 v{P + 1}, v{P + 3}')
    pk('add', P, P, P + 2)
    a(f'v_permlane16_swap_b32 v{P}, v{P + 1}')
    a(f'v_add_f32 v{P}, v{P}, v{P + 1}')
    a(f'ds_write_b32 v7, v{P}')
    a('s_waitcnt lgkmcnt(0)')
    a('s_barrier')
    a('s_cmp_eq_u32 s12, 0')
    a('s_cbranch_scc0 main_fl')
    a('s_mov_b32 exec_hi, 0')
    for q in range(8):
        a(f'ds_read_b64 v[{P + 2 * q}:{P + 2 * q + 1}], v48 offset:{256 * q}')
    a('s_waitcnt lgkmcnt(0)')
    for q in range(4):
        pk('add', P + 4 * q, P + 4 * q, P + 4 * q + 2)
    pk('add', P, P, P + 4)
    pk('add', P + 8, P + 8, P + 12)
    pk('add', P, P, P + 8)
    rnd(P, P)
    rnd(P + 1, P + 1)
    a(f'v_mul_f32 v{P}, v{P}, v42')
    a(f'v_mul_f32 v{P + 1}, v{P + 1}, v42')
    rnd(P, P)
    rnd(P + 1, P + 1)
    pk('add', P, P, 44)
    rnd(P, P)
    rnd(P + 1, P + 1)
    pk('add', P, P, 46)
    a(f'v_cvt_pk_bf16_f32 v{P}, v{P}, v{P + 1}')
    a(f'buffer_store_dword v{P}, v6, {XBR}, s72 offen')
    a('main_fl:')
    if opt('dbg', 0) == 999:
        a('s_waitcnt vmcnt(0) lgkmcnt(0)')
        stamp(7)
        a('s_mov_b64 s[96:97], s[100:101]')
        a('s_mov_b32 s98, 256')
        a('s_mov_b32 s99, 0x00020000')
        a('s_mov_b64 exec, 1')
        a('v_mov_b32 v1, 0')
        a('s_waitcnt lgkmcnt(0)')
        for i in range(8):
            a(f's_and_b32 s60, s{80 + 2 * i}, 0xffffff')
            a('s_xor_b32 s61, s60, 0xffffff')
            a(f's_cmp_eq_u32 s{80 + 2 * i}, 0')
            a('s_cselect_b32 s61, 0, s61')
            a('v_mov_b32 v2, s60')
            a('v_mov_b32 v3, s61')
            a(f'buffer_atomic_umax v2, v1, s[96:99], 0 offen offset:{4 * i} sc1')
            a(f'buffer_atomic_umax v3, v1, s[96:99], 0 offen offset:{32 + 4 * i} sc1')
    elif opt('dbg', 0):
        a('s_waitcnt vmcnt(0) lgkmcnt(0)')
        stamp(7)
        a('s_mov_b64 s[96:97], s[100:101]')
        a('s_mov_b32 s98, 256')
        a('s_mov_b32 s99, 0x00020000')
        a('s_lshl_b32 s60, s2, 3')
        a('s_add_u32 s60, s60, s12')
        a('s_mov_b32 s61, 0x40000000')
        a(f's_cmp_eq_u32 s60, {225 * 8}')
        a('s_cselect_b32 s61, 0, s61')
        a(f's_cmp_eq_u32 s60, {opt("dbg", 0) * 8 + opt("dbgw", 0)}')
        a('s_cselect_b32 s61, 32, s61')
        a('s_mov_b64 exec, 1')
        a('v_mov_b32 v1, 0')
        a('s_waitcnt lgkmcnt(0)')
        for i in range(8):
            a(f's_sub_u32 s60, s{80 + 2 * i}, s80')
            a(f's_cmp_eq_u32 s{80 + 2 * i}, 0')
            a('s_cselect_b32 s60, 0, s60')
            a('v_mov_b32 v2, s60')
            a(f'buffer_store_dword v2, v1, s[96:99], s61 offen offset:{4 * i}')
    else:
        stamp_flush(S_WS, 7, 0)
    a('main_done:')
    a('s_endpgm')
    return kernel_desc(KN, 256, 102 if STAMPS else 80)


launch = '; @launch grid=(256,1,1) block=(512,1,1) lds=%d\n' % MAIN_LDS
finish(launch, [k_main()])
```

```python
from common import *
import common
STAMPS = common.STAMPS

WS_KEYS = 0
WS_EPOCH = 32 * 1024
WS_GX = 1536 * 1024
WS_FA = 128 * 1024
WS_FB = 192 * 1024
WS_FA2 = 64 * 1024
WS_CAND = 262144
WS_PART = 1 << 20
WS_GX2 = 6 << 20
WS_KV = 2 << 20
WS_SIZE = 7 << 20
SH = 12
if opt('reuse', 0):
    SH = 14
    WS_CAND, WS_PART, WS_GX, WS_GX2 = WS_KV, WS_KV + 4096, WS_KV + (2 << 20), WS_KV + (2 << 20) + 4096
WSOFF = opt('wsoff', 0) << 20
common.WS_STAMP -= WSOFF
POLL_MAX = 1 << 16
KN = NAME + '_kernel'

DEPTH = opt('depth', 7)
XPOS = opt('xpos', 4)
UWOFF = opt('uwoff', 0)
FLC = opt('flc', 3)
FBC = opt('fbc', 10)
YSLEEP = opt('ysleep', 1)
CODEPF = opt('codepf', 6)
DEARLY = opt('dearly', 0)
YLO = opt('ylo', 1)
DWHO = opt('dwho', 0)
GXL = opt('gxl', 40)
DYN = opt('dyn', 0)
LSLEEP = opt('lsleep', 6)
FILLBY = opt('fillby', 1)
DUAL = opt('dual', 12)
KVS = '' if opt('l2kv', 0) else ' sc1'
KVL = {0: ' sc1', 1: ' sc0', 2: ''}[opt('kvl', 0)]
FAL = {0: ' sc1', 1: ' sc0', 2: ''}[opt('fal', 0)]
PAUSE = opt('pause', 20)

GS = 4160
UOFF = 4 * GS
CS = 21312
L_YL = 4 * CS
RS = 2064
L_YT = L_YL + 16384
L_P0 = L_YL
L_W = L_YT + 16 * RS
L_ST = L_W + 2048
L_PART = 0
PS = 272
RP = 272
L_H = 8192
L_CNT = L_ST + 272
L_GKEY = L_CNT + 28
L_SW = L_CNT + 48
L_X = L_CNT + 64
L_RED = L_X + 1024
MAIN_LDS = L_RED + 4096

S_K, S_V, S_SK, S_H, S_WS, S_Q, S_WR, S_OUT, S_G, S_U, S_D = 16, 20, 24, 28, 32, 36, 40, 44, 48, 52, 56
WSR = f's[{S_WS}:{S_WS + 3}]'
XBR = f's[{S_OUT}:{S_OUT + 3}]'
KVR = WSR
VC, V1 = 254, 255


def sentinel_check(regs, tmp):
    rs = list(regs)
    cur = rs.pop(0)
    while rs:
        if len(rs) >= 2:
            a(f'v_max3_u32 v{tmp}, v{cur}, v{rs[0]}, v{rs[1]}')
            rs = rs[2:]
        else:
            a(f'v_max_u32 v{tmp}, v{cur}, v{rs[0]}')
            rs = rs[1:]
        cur = tmp
    a(f'v_cmp_eq_u32 vcc, -1, v{cur}')


def retry_loop(name, loads, check, sleep=2, issued=False, mask='-1'):
    a('s_mov_b32 s61, 0')
    if issued:
        a(f's_branch {name}_chk')
    a(f'{name}_again:')
    for l in loads:
        a(l)
    a(f'{name}_chk:')
    a('s_waitcnt vmcnt(0)')
    check()
    a(f's_cbranch_vccz {name}_ok')
    a('s_add_u32 s61, s61, 1')
    a(f's_cmp_ge_u32 s61, {POLL_MAX}')
    a(f's_cbranch_scc1 {name}_ok')
    a('s_mov_b64 exec, vcc')
    a(f's_sleep {sleep}')
    a(f's_branch {name}_again')
    a(f'{name}_ok:')
    a(f's_mov_b64 exec, {mask}')


def poll_loop(name, loads, regs, tmp, sleep=2, issued=False):
    retry_loop(name, loads, lambda: sentinel_check(regs, tmp), sleep, issued)


def lds_spin(name, off, want, vt, sleep=1):
    a('s_mov_b32 s61, 0')
    a(f'{name}_spin:')
    a(f'ds_read_b32 v{vt}, v{VC} offset:{off}')
    a('s_add_u32 s61, s61, 1')
    a('s_waitcnt lgkmcnt(0)')
    a(f'v_readfirstlane_b32 s60, v{vt}')
    a(f's_cmp_ge_u32 s60, {want}')
    a(f's_cbranch_scc1 {name}_go')
    a(f's_cmp_ge_u32 s61, {1 << 22}')
    a(f's_cbranch_scc1 {name}_go')
    a(f's_sleep {sleep}')
    a(f's_branch {name}_spin')
    a(f'{name}_go:')


def lds_inc(off):
    a('s_mov_b64 exec, 1')
    a(f'ds_add_u32 v{VC}, v{V1} offset:{off}')
    a('s_mov_b64 exec, -1')


XP = [4, 20]
N = [36, 52]
T = [68, 84]
WF = 100
MV = [116, 120]
AA = [124, 132]
YR = [140, 148]
XR = 36
VG8, VXA, VWA, VSA, VKL, VPR, VPW, VRA, VBIT = range(228, 237)


def ln_x(xr, wr):
    for r in range(2):
        for i in range(8):
            unpack(XP[r] + 2 * i, XP[r] + 2 * i + 1, xr + 8 * r + i)
    for i in range(8):
        unpack(WF + 2 * i, WF + 2 * i + 1, wr + i)
    srcs = [(XP[0], T[0]), (XP[1], T[0] + 8), (WF, T[1])]
    for i in range(4):
        for (sx, t) in srcs:
            pk('add', t + 2 * i, sx + 4 * i, sx + 4 * i + 2)
    for (_, b) in srcs:
        pk('add', b, b, b + 2)
        pk('add', b + 4, b + 4, b + 6)
    for (_, b) in srcs:
        pk('add', b, b, b + 4)
    for (_, b) in srcs:
        a(f'v_add_f32 v{b}, v{b}, v{b + 1}')
    K = T[1] + 8
    a(f'v_mov_b32 v{K}, 0x3a800000')
    wave_reduce('v_add_f32', [b for _, b in srcs])
    a(f'v_readlane_b32 s60, v{T[0]}, 63')
    a(f'v_readlane_b32 s62, v{T[0] + 8}, 63')
    a(f'v_readlane_b32 s71, v{T[1]}, 63')
    for r in range(2):
        M, V = MV[r], MV[r] + 2
        a(f'v_mul_f32 v{V}, s{60 + 2 * r}, v{K}')
    for r in range(2):
        M, V = MV[r], MV[r] + 2
        rnd(M, V)
        rnd(M + 1, V)
        a(f'v_sub_f32 v{V}, v{V}, v{M}')
        a(f'v_readfirstlane_b32 s{72 + r}, v{M}')
    for r in range(2):
        for i in range(8):
            pk('add', XP[r] + 2 * i, XP[r] + 2 * i, MV[r], mods='neg_lo:[0,1] neg_hi:[0,1]')
    for i in range(8):
        for r in range(2):
            if i == 0:
                pk('mul', AA[r], XP[r], XP[r])
            else:
                pk('fma', AA[r], XP[r] + 2 * i, XP[r] + 2 * i, AA[r])
    for r in range(2):
        a(f'v_add_f32 v{AA[r]}, v{AA[r]}, v{AA[r] + 1}')
        a(f'v_mul_f32 v{MV[r] + 2}, v{MV[r] + 2}, v{MV[r] + 2}')
    wave_reduce('v_add_f32', AA)
    for r in range(2):
        a(f'v_readlane_b32 s{60 + 2 * r}, v{AA[r]}, 63')
    for step in range(8):
        for r in range(2):
            V = MV[r] + 2
            if step == 0:
                a(f'v_fma_f32 v{V}, s{60 + 2 * r}, v{K}, -v{V}')
            elif step in (1, 3, 5):
                rnd(V, V)
            elif step == 2:
                a(f'v_add_f32 v{V}, 0x3727c5ac, v{V}')
            elif step == 4:
                a(f'v_sqrt_f32 v{V}, v{V}')
            elif step == 6:
                a(f'v_rcp_f32 v{V + 1}, v{V}')
            else:
                a(f'v_rcp_f32 v{V}, v{V}')
    for r in range(2):
        for i in range(16):
            rnd(N[r] + i, XP[r] + i)
    for r in range(2):
        for i in range(8):
            pk('mul', N[r] + 2 * i, N[r] + 2 * i, MV[r] + 2)
    for r in range(2):
        for i in range(16):
            rnd(N[r] + i, N[r] + i)


def key_poll(dst):
    a('v_lshlrev_b32 v4, 7, v1')
    a(f's_mov_b32 s65, {WS_KEYS}')
    a(f's_mov_b32 s66, {WS_KEYS + 8192}')
    if opt('kcan', 1):
        a('s_lshl_b32 s62, s3, 7')
        a(f's_add_u32 s62, s62, {WS_KEYS + 4}')
        a('s_mov_b64 exec, 1')
        retry_loop(a.newlabel('kc'), [f'buffer_load_dword v8, v4, {WSR}, s62 offen sc1'], lambda: a('v_cmp_ne_u32 vcc, s8, v8'), sleep=opt('kcsleep', 2))
        stamp('kcan')
    loads = [f'buffer_load_dwordx2 v[{16 + 2 * p}:{17 + 2 * p}], v4, {WSR}, s{65 + p} offen sc1' for p in range(2)]

    def chk():
        a('v_xor_b32 v8, s8, v17')
        a('v_xor_b32 v9, s8, v19')
        a('v_max_u32 v12, v16, v18')
        a('v_or_b32 v8, v8, v9')
        a('v_cmp_ne_u32 vcc, 0, v8')
    retry_loop(a.newlabel('pk'), loads, chk, sleep=opt('ksleep', 2))
    wave_reduce('v_max_u32', 12)
    a(f'v_readlane_b32 s{dst}, v12, 63')


def k_main():
    kernel_begin(a, KN)
    a('s_cmp_ge_u32 s2, 256')
    a('s_cbranch_scc1 main_done')
    stamp_begin(0)
    if opt('dbg', 0):
        a('s_load_dwordx2 s[100:101], s[0:1], 96')
    for sr, off in ((S_WS, 104), (S_K, 8), (S_V, 16), (S_SK, 24), (S_H, 32), (10, 40), (S_Q, 0), (S_WR, 56), (S_OUT, 88), (S_G, 64), (S_U, 72), (S_D, 80)):
        a(f's_load_dwordx2 s[{sr}:{sr + 1}], s[0:1], {off}')
    if CODEPF:
        a('s_getpc_b64 s[4:5]')
        a('pc0:')
        a('s_mov_b32 s6, main_done-pc0')
        a('s_mov_b32 s7, 0x00020000')
        a('s_lshr_b32 s3, s2, 3')
        a(f's_mul_i32 s3, s3, {CODEPF * 128}')
        a('v_lshlrev_b32 v3, 7, v0')
        a(f'v_cmp_gt_u32 vcc, {CODEPF}, v0')
        a('s_and_saveexec_b64 s[60:61], vcc')
        a('s_cbranch_execz no_codepf')
        a('buffer_load_dword v252, v3, s[4:7], s3 offen')
        a('no_codepf:')
        a('s_mov_b64 exec, -1')
    a('s_lshr_b32 s5, s2, 4')
    a('s_and_b32 s4, s2, 7')
    a('s_lshl_b32 s4, s4, 1')
    a('s_bfe_u32 s6, s2, 0x10003')
    a('s_or_b32 s4, s4, s6')
    a('s_lshl_b32 s2, s4, 4')
    a('s_or_b32 s2, s2, s5')
    a('v_lshrrev_b32 v3, 6, v0')
    a('v_and_b32 v1, 63, v0')
    a('v_readfirstlane_b32 s12, v3')
    a('v_lshlrev_b32 v2, 4, v1')
    a(f'v_mov_b32 v{VC}, {L_CNT}')
    a(f'v_mov_b32 v{V1}, 1')
    for r in range(6):
        a(f'v_mov_b32 v{144 + r}, 0')
    for r in range(4):
        a(f'v_mov_b32 v{240 + r}, -1')
    a('s_cmp_eq_u32 s12, 0')
    a('s_cbranch_scc0 no_cnt_init')
    a('s_mov_b64 exec, 1')
    a(f'ds_write_b128 v{VC}, v[144:147]')
    a(f'ds_write_b128 v{VC}, v[144:147] offset:16')
    a(f'ds_write_b128 v{VC}, v[144:147] offset:32')
    a('s_mov_b64 exec, -1')
    a('no_cnt_init:')
    for sr, n in ((S_WS, WS_SIZE), (S_K, MB4), (S_V, MB4), (S_SK, 8192), (S_H, 4096), (S_Q, MB4), (S_WR, 2048), (S_OUT, MB4),
                  (S_G, 1024 * 7168), (S_U, 1024 * 7168), (S_D, 3584 * 2048)):
        a(f's_mov_b32 s{sr + 2}, {n}')
        a(f's_mov_b32 s{sr + 3}, 0x00020000')
    a('s_and_b32 s13, s12, 3')
    if opt('gmix', 1):
        a('s_and_b32 s14, s12, 1')
        a('s_xor_b32 s4, s4, s14')
    a('s_lshr_b32 s14, s12, 2')
    a('s_lshl_b32 s15, s2, 2')
    a('s_add_u32 s15, s15, s13')
    a('s_lshr_b32 s3, s2, 1')
    a('v_and_b32 v4, 15, v1')
    a('v_lshrrev_b32 v5, 4, v1')
    a('v_and_b32 v10, 31, v1')
    a('v_lshrrev_b32 v11, 5, v1')
    a('v_lshrrev_b32 v6, 3, v1')
    a('v_lshlrev_b32 v8, 11, v6')
    a('v_lshlrev_b32 v6, 13, v6')
    a('v_and_b32 v7, 7, v1')
    a('v_lshl_add_u32 v6, v7, 4, v6')
    a('v_lshl_add_u32 v8, v7, 4, v8')
    a('s_lshl_b32 s62, s4, 17')
    a('s_lshl_b32 s63, s13, 11')
    a('s_add_u32 s62, s62, s63')
    a('s_lshl_b32 s63, s14, 21')
    a('s_add_u32 s62, s62, s63')
    a(f's_add_u32 s62, s62, {WS_KV}')
    a('s_lshl_b32 s63, s5, 7')
    a('s_add_u32 s62, s62, s63')
    a('s_add_u32 s63, s62, 0x10000')
    a('s_lshl_b32 s64, s12, 19')
    a('s_lshl_b32 s65, s5, 15')
    a('s_add_u32 s64, s64, s65')
    a('s_lshl_b32 s65, s4, 7')
    a('s_add_u32 s64, s64, s65')
    a('s_add_u32 s65, s64, 16384')
    a('s_sub_u32 s77, s64, 6144')
    a('s_cselect_b32 s77, 0x40000000, s77')
    a('s_lshl_b32 s79, s4, 9')
    a('v_lshlrev_b32 v9, 4, v10')
    a('s_lshl_b32 s67, s15, 12')
    a('s_lshl_b32 s70, s15, 1')
    a('s_and_b32 s70, s70, 0xfffffffc')
    a('s_lshl_b32 s68, s3, 4')
    a('s_lshl_b32 s69, s13, 2')
    a('s_add_u32 s68, s68, s69')
    a('s_lshl_b32 s69, s68, 11')
    a('s_mul_i32 s66, s12, 4608')
    a(f's_add_u32 s66, s66, {L_P0}')
    a(f's_mov_b32 s6, {WS_EPOCH}')
    a('s_mov_b32 m0, s66')
    a('s_waitcnt lgkmcnt(0)')
    stamp('karg')
    if WSOFF:
        a(f's_add_u32 s{S_WS}, s{S_WS}, {WSOFF}')
        a(f's_addc_u32 s{S_WS + 1}, s{S_WS + 1}, 0')
    a(f's_load_dword s8, s[{S_WS}:{S_WS + 1}], s6')
    a('s_load_dword s9, s[10:11], s70')
    KR, VR, SKR = 16, 28, 36

    GL = 96
    a('s_cmp_eq_u32 s14, 0')
    a('s_cbranch_scc1 ld_kv')
    a(f's_add_u32 s{S_H}, s{S_H}, s67')
    a(f's_addc_u32 s{S_H + 1}, s{S_H + 1}, 0')
    a('s_barrier')
    for i in range(4):
        a(f'buffer_load_dwordx4 v[{GL + 6 * i}:{GL + 6 * i + 3}], v2, s[{S_H}:{S_H + 3}], 0 offen offset:{1024 * i} nt')
    if opt('hipos', 0) >= 8:
        lds_spin('kvq', 32, opt('hipos', 0) - 4, 3)
    elif opt('hipos', 0):
        a(f's_waitcnt vmcnt({4 - opt("hipos", 0)})')
    a('ld_kv:')
    a(f'buffer_load_dwordx4 v[{SKR}:{SKR + 3}], v9, s[{S_SK}:{S_SK + 3}], s79 offen')
    a('s_mov_b64 exec, 0xffffff')
    a(f'buffer_load_dwordx4 v8, s[{S_K}:{S_K + 3}], s77 offen nt lds')
    a('s_mov_b64 exec, -1')
    for (sr, so, lo) in ((S_K, 64, 384), (S_K, 65, 1408), (S_V, 64, 2432), (S_V, 65, 3456)):
        a(f's_add_u32 m0, s66, {lo}')
        a(f'buffer_load_dwordx4 v8, s[{sr}:{sr + 3}], s{so} offen nt lds')
    a('s_cmp_eq_u32 s14, 0')
    a('s_cbranch_scc0 ld_done')
    a('s_barrier')
    a('ld_done:')
    a(f's_mul_i32 s67, s13, {CS}')
    a('s_mov_b32 s74, 0x05040100')
    a('s_mov_b32 s75, 0x07060302')
    a('v_lshlrev_b32 v92, 10, v11')
    a('v_lshl_add_u32 v92, v10, 2, v92')
    a('v_add_u32 v92, s66, v92')
    a('v_add_u32 v93, 1024, v92')
    a('v_add_u32 v94, 2432, v92')
    a('v_lshrrev_b32 v8, 1, v10')
    a('v_mul_u32_u24 v8, 144, v8')
    a('v_and_b32 v9, 1, v10')
    a('v_lshl_add_u32 v8, v9, 6, v8')
    a('v_sub_u32 v9, 1, v11')
    a('v_lshl_add_u32 v8, v9, 4, v8')
    a('v_add_u32 v8, s66, v8')
    a('v_lshrrev_b32 v9, 3, v1')
    a('v_mul_u32_u24 v9, 144, v9')
    a('v_lshl_add_u32 v9, v7, 4, v9')
    a('v_add_u32 v9, s66, v9')
    a('v_add_u32 v160, s67, v2')
    a('v_and_b32 v161, 3, v1')
    a(f'v_mul_u32_u24 v161, {GS}, v161')
    a('v_bfe_u32 v162, v1, 2, 2')
    a('v_lshl_add_u32 v161, v162, 3, v161')
    a('v_lshl_add_u32 v161, v5, 4, v161')
    a('v_add_u32 v161, s67, v161')
    a(f's_add_u32 s60, s67, {UOFF + 480}')
    a('v_lshlrev_b32 v163, 5, v4')
    a('v_sub_u32 v162, s60, v163')
    a('v_lshl_add_u32 v162, v5, 4, v162')
    a('v_lshl_add_u32 v163, v5, 3, v163')
    a('s_lshl_b32 s60, s13, 12')
    a(f's_add_u32 s60, s60, {L_YL}')
    a('v_add_u32 v163, s60, v163')
    a('v_bfe_u32 v165, v1, 1, 2')
    a(f'v_mul_u32_u24 v165, {CS}, v165')
    a('v_and_b32 v166, 1, v1')
    a('v_lshl_add_u32 v165, v166, 4, v165')
    a('v_lshrrev_b32 v166, 3, v1')
    a('v_lshlrev_b32 v166, 5, v166')
    a('v_sub_u32 v165, v165, v166')
    a('s_lshl_b32 s60, s12, 9')
    a(f's_sub_u32 s60, {UOFF + 4064 - 256}, s60')
    a('v_add_u32 v165, s60, v165')
    a('s_lshl_b32 s78, s2, 13')
    a('s_lshl_b32 s60, s13, 11')
    a('s_add_u32 s78, s78, s60')
    a('s_lshl_b32 s60, s14, 21')
    a('s_add_u32 s78, s78, s60')
    a(f's_add_u32 s78, s78, {WS_KV}')
    a('v_lshl_add_u32 v166, v5, 3, v4')
    a('v_sub_u32 v166, 15, v166')
    a('v_and_b32 v167, 1, v166')
    a('v_lshlrev_b32 v167, 4, v167')
    a('v_ashrrev_i32 v166, 1, v166')
    a(f'v_mul_u32_u24 v150, {GS}, v1')
    a('v_add_u32 v150, s67, v150')
    a('v_lshlrev_b32 v245, 7, v4')
    a('v_bfe_u32 v248, v1, 3, 2')
    a('v_lshlrev_b32 v248, 13, v248')
    a('v_lshl_add_u32 v248, v7, 7, v248')
    a('v_lshlrev_b32 v251, 4, v0')
    a(f'v_lshrrev_b32 v{VG8}, 3, v0')
    a(f'v_lshlrev_b32 v{VG8}, 3, v{VG8}')
    a(f'v_mul_u32_u24 v{VXA}, {2 * RS}, v7')
    a(f'v_add_u32 v{VXA}, v{VXA}, v{VG8}')
    a(f'v_add_u32 v{VXA}, {L_YT}, v{VXA}')
    a(f'v_add_u32 v{VWA}, {L_W}, v{VG8}')
    a(f'v_lshlrev_b32 v{VSA}, 5, v7')
    a(f'v_add_u32 v{VSA}, {L_ST}, v{VSA}')
    a(f'v_bfe_u32 v{VKL}, v1, 3, 1')
    a(f'v_lshl_add_u32 v{VKL}, v7, 1, v{VKL}')
    a(f'v_mul_u32_u24 v{VPR}, {PS}, v{VKL}')
    a(f'v_lshl_add_u32 v{VPR}, v5, 6, v{VPR}')
    a(f'v_lshl_add_u32 v{VPW}, v7, 1, v11')
    a(f'v_mul_u32_u24 v{VPW}, {PS}, v{VPW}')
    a('v_and_b32 v3, 1, v5')
    a(f'v_lshl_add_u32 v{VPW}, v3, 4, v{VPW}')
    a('s_lshl_b32 s60, s12, 5')
    a(f'v_add_u32 v{VPW}, s60, v{VPW}')
    a('s_lshl_b32 s60, s3, 4')
    a('s_sub_u32 s60, 2047, s60')
    a(f'v_sub_u32 v{VKL}, s60, v{VKL}')
    a(f's_mul_i32 s60, s13, {4 * RS}')
    a(f's_add_u32 s60, s60, {L_YT}')
    a(f'v_add_u32 v{VRA}, s60, v2')
    a(f'v_lshrrev_b32 v{VBIT}, 3, v1')
    a(f'v_lshlrev_b32 v{VBIT}, v{VBIT}, 1')
    a('v_and_b32 v253, 255, v0')
    a('v_lshlrev_b32 v253, 3, v253')
    a('v_lshlrev_b32 v237, 1, v253')
    a(f'v_lshlrev_b32 v247, {SH}, v5')
    a('v_lshl_add_u32 v247, v4, 4, v247')
    a('s_mov_b64 exec, 0xf')
    a('ds_write_b128 v150, v[144:147]')
    a('s_mov_b64 exec, 0x3fffffff')
    a(f'ds_write_b128 v160, v[144:147] offset:{UOFF + 4096}')
    a('s_mov_b64 exec, -1')
    WFp, KF, O, PKD = 40, 48, 70, 86
    a('s_waitcnt lgkmcnt(0)')
    a('s_add_u32 s8, s8, 0x9e3779b9')
    a('s_or_b32 s8, s8, 1')
    a('s_and_b32 s61, s15, 1')
    a('s_lshl_b32 s61, s61, 4')
    a('s_lshr_b32 s9, s9, s61')
    a('s_and_b32 s9, s9, 0xffff')
    a('v_lshlrev_b32 v167, v167, s9')
    for r in range(4):
        a(f'v_cmp_eq_u32 vcc, {r}, v166')
        a(f'v_cndmask_b32 v{168 + r}, 0, v167, vcc')
    a('s_lshl_b32 s64, s4, 11')
    a(f's_add_u32 s64, s64, {WS_FA}')
    a('s_lshl_b32 s65, s2, 7')
    a(f's_add_u32 s7, s65, {WS_FB}')
    a(f's_add_u32 s65, s65, {WS_FA}')
    a('v_mov_b32 v13, s8')
    a('v_mov_b32 v14, 0')
    a(f's_add_u32 s10, s65, {WS_FA2 - WS_FA}')
    a('s_cmp_eq_u32 s12, 0')
    a('s_cselect_b32 s60, s10, 0x40000000')
    a('s_mov_b64 exec, 0xff')
    a(f'buffer_store_dwordx4 v[144:147], v2, {WSR}, s60 offen')
    a('s_mov_b64 exec, -1')
    XV = 1
    a('s_lshl_b32 s60, s12, 2')
    a('s_add_u32 s64, s64, s60')
    a('s_add_u32 s65, s65, s60')
    a('s_add_u32 s10, s10, s60')
    a(f's_add_u32 s11, s64, {WS_FA2 - WS_FA}')
    if DYN:
        a('s_memrealtime s[4:5]')
    a('s_cmp_eq_u32 s14, 0')
    a('s_cbranch_scc1 p0')
    LATER = 6 + XV
    a(f's_waitcnt vmcnt({LATER + 3})')
    a(f'v_readlane_b32 s76, v{GL}, 0')
    a(f'v_readlane_b32 s77, v{GL + 1}, 0')
    a('s_lshl_b32 s70, s76, 16')
    a('s_lshr_b32 s61, s76, 16')
    a('s_lshl_b32 s71, s77, 16')
    a('s_or_b32 s61, s61, s71')
    a('v_writelane_b32 v149, s70, 0')
    a('v_writelane_b32 v149, s76, 1')
    a('v_writelane_b32 v149, s61, 2')
    a('v_writelane_b32 v149, s77, 3')
    a('v_writelane_b32 v148, s70, 2')
    a('v_writelane_b32 v148, s76, 3')
    a('s_mov_b64 exec, 0xf')
    a('ds_write_b128 v150, v[146:149] offset:16')
    a('s_mov_b64 exec, -1')
    for i in range(4):
        w = GL + 6 * i
        a(f'v_mov_b32_dpp v{w + 4}, v{w} wave_shl:1 row_mask:0xf bank_mask:0xf bound_ctrl:0')
        a(f'v_mov_b32_dpp v{w + 5}, v{w + 1} wave_shl:1 row_mask:0xf bank_mask:0xf bound_ctrl:0')
        if i < 3:
            a(f's_waitcnt vmcnt({LATER + 2 - i})')
            a(f'v_readlane_b32 s70, v{w + 6}, 0')
            a(f'v_readlane_b32 s71, v{w + 7}, 0')
            a(f'v_writelane_b32 v{w + 4}, s70, 63')
            a(f'v_writelane_b32 v{w + 5}, s71, 63')
        ta, tb, tc = 176 + 12 * i, 180 + 12 * i, 184 + 12 * i
        a(f'ds_write_b128 v160, v[{w + 2}:{w + 5}] offset:{32 + 1024 * i + 3 * GS}')
        for j in range(4):
            a(f'v_alignbit_b32 v{ta + j}, v{w + j + 1}, v{w + j}, 16')
        a(f'ds_write_b128 v160, v[{ta}:{ta + 3}] offset:{32 + 1024 * i + 0 * GS}')
        for j in range(4):
            a(f'v_alignbit_b32 v{tb + j}, v{w + j + 2}, v{w + j + 1}, 16')
        a(f'ds_write_b128 v160, v[{tb}:{tb + 3}] offset:{32 + 1024 * i + 2 * GS}')
        for j in range(4):
            a(f'v_mov_b32 v{tc + j}, v{w + j + 1}')
        a(f'ds_write_b128 v160, v[{tc}:{tc + 3}] offset:{32 + 1024 * i + 1 * GS}')
    lds_inc(20)
    a(f'v_add_u32 v239, {L_W}, v2')
    a('v_and_b32 v244, 1, v5')
    a('v_lshl_add_u32 v244, v244, 1, v11')
    a('v_lshlrev_b32 v244, 4, v244')
    a('s_lshl_b32 s60, s13, 6')
    a(f's_add_u32 s60, s60, {L_ST}')
    a('v_add_u32 v244, s60, v244')
    a('s_waitcnt lgkmcnt(0)')
    for p in range(4):
        a(f'v_mov_b32 v{YR[0] + 4 * p}, -1')
    a('s_lshl_b32 s60, s13, 5')
    a(f's_add_u32 s60, s60, {L_X}')
    a('v_mov_b32 v201, s60')
    a(f'v_mul_u32_u24 v203, {RP}, v4')
    a('v_lshl_add_u32 v203, v5, 5, v203')
    a(f's_mul_i32 s60, s13, {16 * RP}')
    a('v_add_u32 v203, s60, v203')
    a(f'v_mul_u32_u24 v205, {RP}, v5')
    a('v_lshl_add_u32 v205, v4, 4, v205')
    a(f's_mul_i32 s60, s13, {4 * RP}')
    a('v_add_u32 v205, s60, v205')
    stamp('gdone')
    a('p0:')
    a(f's_waitcnt vmcnt({5 + XV})')
    for jj in range(2):
        unpack(WFp + 0 + jj, WFp + 2 + jj, SKR + 2 * jj)
        unpack(WFp + 4 + jj, WFp + 6 + jj, SKR + 2 * jj + 1)
    a(f's_waitcnt vmcnt({2 + XV})')
    stamp('kdata')
    for r in range(0, 8, 2):
        a(f'ds_read2_b32 v[{KR + r}:{KR + r + 1}], v92 offset0:{32 * r} offset1:{32 * r + 32}')
    a(f'ds_read2_b32 v[{KR + 8}:{KR + 9}], v93 offset0:0 offset1:32')
    a(f'ds_read_b32 v{KR + 10}, v93 offset:256')
    a(f's_waitcnt vmcnt({0 + XV})')
    for r in range(0, 8, 2):
        a(f'ds_read2_b32 v[{VR + r}:{VR + r + 1}], v94 offset0:{32 * r} offset1:{32 * r + 32}')
    for r in range(11):
        if r % 2 == 0:
            a(f's_waitcnt lgkmcnt({9 - r // 2})')
        unpack(KF + 2 * r, KF + 2 * r + 1, KR + r)
    for t in range(4):
        tap = 3 - t
        for r in range(8):
            if t == 0:
                pk('mul', O + 2 * r, KF + 2 * (r + t), WFp + 2 * tap)
            else:
                pk('fma', O + 2 * r, KF + 2 * (r + t), WFp + 2 * tap, O + 2 * r)
    a('s_waitcnt lgkmcnt(0)')
    for r in range(8):
        unpack(KF + 2 * r, KF + 2 * r + 1, VR + r)
    for r in range(8):
        pk('mul', O + 2 * r, O + 2 * r, KF + 2 * r)
    for jj in range(2):
        d = PKD + 2 + 4 * jj
        for m in range(4):
            a(f'v_cvt_pk_bf16_f32 v{d + m}, v{O + 2 * (7 - 2 * m) + jj}, v{O + 2 * (6 - 2 * m) + jj}')
        a(f'ds_write_b128 v8, v[{d}:{d + 3}] offset:{32 * jj}')
    a('s_waitcnt lgkmcnt(0)')
    if opt('hhold', 0):
        a('s_cmp_eq_u32 s14, 0')
        a('s_cbranch_scc1 hh_go')
        lds_spin('hh', 32, opt('hhold', 0), 3)
    a('ds_read_b128 v[16:19], v9')
    a(f'ds_read_b128 v[20:23], v9 offset:{8 * 144}')
    a('s_waitcnt lgkmcnt(1)')
    a(f'buffer_store_dwordx4 v[16:19], v6, {KVR}, s62 offen sc1')
    a('s_waitcnt lgkmcnt(0)')
    a(f'buffer_store_dwordx4 v[20:23], v6, {KVR}, s63 offen sc1')
    stamp('kvst')
    if opt('hipos', 0) == 8:
        lds_inc(32)
    UP = 120
    a('s_waitcnt vmcnt(0)')
    stamp('kvack')
    a('s_mov_b64 exec, 1')
    a(f'buffer_store_dword v13, v14, {WSR}, s10 offen')
    FL2 = opt('fl2', 1)
    if not FL2:
        a(f'buffer_store_dword v13, v14, {WSR}, s65 offen sc1')
    EX, EF = opt('ex', 0), opt('ef', 0)
    GW, XH = 64, 68

    def gu_base():
        a('s_and_b32 s76, s3, 15')
        a('s_lshl_b32 s77, s76, 2')
        a('s_add_u32 s77, s77, s13')
        a(f's_mul_i32 s77, s77, {16 * 7168}')
        a('s_lshr_b32 s60, s3, 4')
        a('s_lshl_b32 s60, s60, 10')
        a('s_add_u32 s77, s77, s60')
    steps = []
    for i in range(16):
        for m, sr in ((0, S_G), (1, S_U)):
            r = GW + 64 * m + 4 * i
            steps.append([f'buffer_load_dwordx4 v[{r}:{r + 3}], v2, s[{sr}:{sr + 3}], s77 offen nt'])
        steps[-1].append('s_add_u32 s77, s77, 7168')

    def x_load(i):
        a(f'buffer_load_dwordx4 v[{XH + 4 * i}:{XH + 4 * i + 3}], v2, s[{S_Q}:{S_Q + 3}], s{69 + (i >> 2)} offen offset:{1024 * (i & 3)} nt')
    if EX or EF:
        a('s_mov_b64 exec, -1')
        a('s_cmp_eq_u32 s14, 0')
        a('s_cbranch_scc1 early_done')
        gu_base()
        a('s_add_u32 s70, s69, 4096')
        lds_spin('eh', 32, 4, 3)
        a('s_bitcmp0_b32 s2, 0')
        a('s_cbranch_scc0 early_ffn')
        for i in range(EX):
            x_load(i)
        a('s_branch early_done')
        a('early_ffn:')
        a('s_cmp_lt_u32 s3, 112')
        a('s_cbranch_scc0 early_done')
        for k in range(EF):
            for l in steps[k]:
                a(l)
        a('early_done:')
    a('s_mov_b64 exec, 0xffff')
    a('s_mov_b32 s61, 0')
    a('fa2_again:')
    a(f'buffer_load_dword v246, v245, {WSR}, s11 offen sc1')
    a('s_add_u32 s61, s61, 1')
    a('s_waitcnt vmcnt(0)')
    a('v_cmp_ne_u32 vcc, s8, v246')
    a('s_cbranch_vccz fa_ok')
    a('s_mov_b64 exec, vcc')
    if opt('fa2sleep', 0):
        a(f's_sleep {opt("fa2sleep", 0)}')
    a(f's_cmp_lt_u32 s61, {DUAL}')
    a('s_cbranch_scc1 fa2_again')
    if FL2:
        a(f'buffer_store_dword v13, v14, {WSR}, s65 offen sc1')
    retry_loop('fa', [f'buffer_load_dword v246, v245, {WSR}, s64 offen sc1'], lambda: a('v_cmp_ne_u32 vcc, s8, v246'), sleep=opt('fasleep', 1))
    stamp('faok')
    for q in range(2):
        a(f'buffer_load_dwordx4 v[{UP + 4 * q}:{UP + 4 * q + 3}], v2, {KVR}, s78 offen offset:{1024 * q}{KVL}')
    if FL2:
        a('s_mov_b64 exec, 1')
        a(f'buffer_store_dword v13, v14, {WSR}, s65 offen sc1')
        a('s_mov_b64 exec, -1')
    a('s_cmp_eq_u32 s14, 0')
    a('s_cbranch_scc0 helper')

    ACC = 16
    FA_ = [48, 196]
    FB_ = [80, 112]

    def readsA(s, c):
        out = []
        for j in range(8):
            out.append(f'ds_read_b64 v[{s + 4 * j}:{s + 4 * j + 1}], v161 offset:{64 * (8 * j + c)}')
            out.append(f'ds_read_b64 v[{s + 4 * j + 2}:{s + 4 * j + 3}], v161 offset:{64 * (8 * j + c) + 8}')
        return out

    def readsB(s, c):
        return [f'ds_read_b128 v[{s + 4 * z}:{s + 4 * z + 3}], v162 offset:{64 * (56 - (8 * z - c))}' for z in range(8)]

    def y_fill():
        a('v_bfe_u32 v182, v0, 3, 5')
        a('v_lshlrev_b32 v182, 15, v182')
        a('v_lshl_add_u32 v182, v7, 4, v182')
        a('s_lshl_b32 s62, s2, 7')
        for q in range(4):
            a(f'buffer_store_dwordx4 v[240:243], v182, {XBR}, s62 offen sc1')
            if q < 3:
                a('s_add_u32 s62, s62, 0x100000')

    if opt('hhold', 0) or EX or EF:
        lds_inc(32)
    lds_spin('g4', 20, 4, 153)
    for r in readsA(FA_[0], 0):
        a(r)
    for q in range(2):
        a(f's_waitcnt vmcnt({1 - q + FL2})')
        a(f'ds_write_b128 v165, v[{UP + 4 * q}:{UP + 4 * q + 3}] offset:{256 - 256 * q}')
    lds_inc(12)
    stamp('u0')
    if FILLBY == 1 and opt('fst', -1) < 0:
        y_fill()
    lds_spin('u4', 12, 4, 153)
    stamp('mf0')
    for r in readsB(FB_[0], 0)[:4]:
        a(r)

    def mfma(w, A, B, init=False):
        c = '0' if init else f'v[{ACC + 4 * w}:{ACC + 4 * w + 3}]'
        a(f'v_mfma_f32_16x16x32_bf16 v[{ACC + 4 * w}:{ACC + 4 * w + 3}], v[{A}:{A + 3}], v[{B}:{B + 3}], {c}')

    def ystage(w):
        E = 172 + 2 * (w & 3)
        return [f'v_cvt_pk_bf16_f32 v{E}, v{ACC + 4 * w}, v{ACC + 4 * w + 1}',
                f'v_cvt_pk_bf16_f32 v{E + 1}, v{ACC + 4 * w + 2}, v{ACC + 4 * w + 3}',
                f'ds_write_b64 v163, v[{E}:{E + 1}] offset:{512 * w}']

    gsetup = ['v_lshlrev_b32 v180, 2, v0', f'v_add_u32 v180, {L_YL}, v180', 'v_add_u32 v181, 0x2000, v180',
              'v_lshrrev_b32 v182, 3, v0', 'v_lshlrev_b32 v182, 15, v182', 'v_lshl_add_u32 v182, v7, 4, v182',
              's_lshl_b32 s62, s2, 7', 's_add_u32 s63, s62, 0x100000', 's_add_u32 s64, s62, 0x200000', 's_add_u32 s65, s62, 0x300000',
              's_lshl_b32 s6, s12, 10', f's_add_u32 s6, s6, {WS_FB}',
              's_bitcmp0_b32 s2, 0', 's_cselect_b32 s66, s69, 0x40000000', 's_cselect_b32 s70, 0, 0x40000000', 's_cselect_b32 s71, s6, 0x40000000']
    WR2 = 152

    def gather(p0_, sregs, GR, GP):
        rd, out = [], []
        for ch in range(4):
            base = 180 + (ch >> 1)
            rd.append(f'ds_read2st64_b32 v[{GR + 2 * ch}:{GR + 2 * ch + 1}], v{base} offset0:{16 * (ch & 1) + 4 * p0_} offset1:{16 * (ch & 1) + 4 * p0_ + 4}')
        for p in range(2):
            g = GP + 4 * p
            out.append(f'v_perm_b32 v{g}, v{GR + 2 + p}, v{GR + p}, s74')
            out.append(f'v_perm_b32 v{g + 1}, v{GR + 6 + p}, v{GR + 4 + p}, s74')
            out.append(f'v_perm_b32 v{g + 2}, v{GR + 2 + p}, v{GR + p}, s75')
            out.append(f'v_perm_b32 v{g + 3}, v{GR + 6 + p}, v{GR + 4 + p}, s75')
            out.append(f'buffer_store_dwordx4 v[{g}:{g + 3}], v182, {XBR}, s{sregs[p]} offen sc1')
        return rd, out

    fbload = f'buffer_load_dword v249, v248, {WSR}, s6 offen sc1'
    PY = YR[0]
    YM = 16

    GM = 48

    def y_setup(regs=True):
        for p in range(4):
            a(f's_mov_b64 s[{YM + 2 * p}:{YM + 2 * p + 1}], -1')
            if regs:
                a(f'v_mov_b32 v{PY + 4 * p}, -1')
        a('s_lshl_b32 s24, s3, 15')
        for p in range(1, 4):
            a(f's_add_u32 s{24 + p}, s24, {8192 * p}')
        a('s_mov_b64 s[0:1], -1')

    def fb_check():
        lab = a.newlabel('fbk')
        a('s_cmp_eq_u32 s0, 0')
        a(f's_cbranch_scc1 {lab}')
        a('v_cmp_ne_u32 s[0:1], s8, v249')
        for p in range(4):
            a(f's_lshr_b32 s9, s0, {8 * p}')
            a(f'v_and_b32 v250, s9, v{VBIT}')
            a(f'v_cmp_eq_u32 s[{GM + 2 * p}:{GM + 2 * p + 1}], 0, v250')
        a(f'{lab}:')

    def y_issue():
        lab = a.newlabel('yf')
        a('s_mov_b32 exec_lo, s0')
        a('s_mov_b32 exec_hi, 0')
        a(f's_cbranch_execz {lab}')
        a(fbload)
        a(f'{lab}:')
        for p in range(4):
            lab = a.newlabel('yi')
            a(f's_and_b64 exec, s[{YM + 2 * p}:{YM + 2 * p + 1}], s[{GM + 2 * p}:{GM + 2 * p + 1}]')
            a(f's_cbranch_execz {lab}')
            a(f'buffer_load_dwordx4 v[{PY + 4 * p}:{PY + 4 * p + 3}], v251, {XBR}, s{24 + p} offen sc1')
            a(f'{lab}:')
        a('s_mov_b64 exec, -1')

    def y_check():
        a('s_waitcnt vmcnt(0)')
        fb_check()
        for p in range(4):
            a(f'v_max3_u32 v250, v{PY + 4 * p}, v{PY + 4 * p + 1}, v{PY + 4 * p + 2}')
            a(f'v_max_u32 v250, v250, v{PY + 4 * p + 3}')
            a(f'v_cmp_eq_u32 s[{YM + 2 * p}:{YM + 2 * p + 1}], -1, v250')
        a(f's_or_b64 s[28:29], s[{YM}:{YM + 1}], s[{YM + 2}:{YM + 3}]')
        a(f's_or_b64 s[30:31], s[{YM + 4}:{YM + 5}], s[{YM + 6}:{YM + 7}]')
        a('s_or_b64 s[28:29], s[28:29], s[30:31]')

    AC = [116, 122]
    ST = [128, 132]
    TY = 68

    def prep_a():
        lds_spin(a.newlabel('xr'), 12, 8, 3)
        RX, RW = 76, 92
        for r in range(2):
            for p in range(4):
                a(f'ds_read_b64 v[{RX + 8 * r + 2 * p}:{RX + 8 * r + 2 * p + 1}], v{VXA} offset:{512 * p + RS * r}')
        for p in range(4):
            a(f'ds_read_b64 v[{RW + 2 * p}:{RW + 2 * p + 1}], v{VWA} offset:{512 * p}')
        for i in range(0, 12, 2):
            a(f'v_mov_b64 v[{AC[0] + i}:{AC[0] + i + 1}], 0')
        a('s_mov_b32 s72, 0')
        for r in range(2):
            a(f's_waitcnt lgkmcnt({8 - 4 * r})')
            for i in range(8):
                unpack(XP[r] + 2 * i, XP[r] + 2 * i + 1, RX + 8 * r + i)
        a('s_waitcnt lgkmcnt(0)')
        for i in range(8):
            unpack(WF + 2 * i, WF + 2 * i + 1, RW + i)

    def prep_b():
        lds_spin(a.newlabel('xs'), 28, 4, 3)
        for r in range(2):
            a(f'ds_read_b128 v[{ST[r]}:{ST[r] + 3}], v{VSA} offset:{16 * r}')
        a(f'ds_read_b32 v3, v{VC} offset:{L_SW - L_CNT}')
        for r in range(2):
            a(f's_waitcnt lgkmcnt({2 - r})')
            for i in range(8):
                pk('fma', N[r] + 2 * i, XP[r] + 2 * i, ST[r] + 2, ST[r])
        a('s_waitcnt lgkmcnt(0)')
        a('v_readfirstlane_b32 s71, v3')
        stamp('lnx')

    def y_fold():
        for p in range(4):
            lab = a.newlabel('yd')
            a(f's_bitcmp1_b32 s72, {p}')
            a(f's_cbranch_scc1 {lab}')
            a(f's_cmp_eq_u64 s[{YM + 2 * p}:{YM + 2 * p + 1}], 0')
            a(f's_cbranch_scc0 {lab}')
            a(f's_bitset1_b32 s72, {p}')
            for i in range(4):
                unpack(TY + 2 * i, TY + 2 * i + 1, PY + 4 * p + i)
            for i in range(4):
                e = XP[i >> 1] + 4 * p + 2 * (i & 1)
                pk('fma', e, TY + 2 * i, N[i >> 1] + 4 * p + 2 * (i & 1), e)
            for k in range(2):
                for r in range(2):
                    e = XP[r] + 4 * p + 2 * k
                    pk('add', AC[r], AC[r], e)
                    pk('fma', AC[r] + 2, e, e, AC[r] + 2)
                    pk('fma', AC[r] + 4, e, WF + 4 * p + 2 * k, AC[r] + 4)
            a(f'{lab}:')

    def spread(pairs, low_first=False):
        out, left = [], list(pairs)
        if low_first:
            left.sort(key=lambda q: q[0])

        def feasible(rest, prev):
            cnt = {}
            for q in rest:
                cnt[q[0]] = cnt.get(q[0], 0) + 1
            n = len(rest)
            return all(c <= (n + 1) // 2 - (1 if (w == prev and n % 2 == 1) else 0) for w, c in cnt.items())
        while left:
            recent = [q[0] for q in out[-2:]]
            pick = None
            for avoid in (recent, recent[-1:]):
                for q in left:
                    if q[0] in avoid:
                        continue
                    rest = list(left)
                    rest.remove(q)
                    if feasible(rest, q[0]):
                        pick = q
                        break
                if pick:
                    break
            assert pick
            out.append(pick)
            left.remove(pick)
        return out

    def stage_reads(st):
        sa, sb = FA_[st & 1], FB_[st & 1]
        if st < 8:
            return readsB(sb, st)[:4] + readsA(sa, st)
        out = []
        for hf in range(2):
            c = 2 * (st - 8) + hf
            out += readsB(sb + 16 * hf - 16, c)[4:] + readsA(sa + 16 * hf, c)[:8]
        return out

    NST = 12
    for st in range(NST):
        sa, sb = FA_[st & 1], FB_[st & 1]
        a('s_waitcnt lgkmcnt(0)')
        if st == 7:
            a('v_readfirstlane_b32 s60, v164')
            a('s_cmp_ge_u32 s60, 4')
            a('s_cbranch_scc1 uhi_go')
            lds_spin('uhi', 0, 4, 164)
            stamp('uhi')
        if st == FLC and FILLBY:
            a('s_waitcnt vmcnt(0)')
            a('s_mov_b64 exec, 1')
            a(f'ds_add_rtn_u32 v12, v{VC}, v{V1} offset:4')
            a(f'ds_add_u32 v{VC}, v{V1} offset:8')
            a('s_mov_b64 exec, -1')
            stamp('fillB')
        if st == FLC + 1 and FILLBY:
            a('s_mov_b64 exec, 1')
            a('v_cmp_eq_u32 vcc, 3, v12')
            a('v_cndmask_b32 v14, -16, v14, vcc')
            a(f'buffer_store_dword v13, v14, {WSR}, s7 offen sc1')
            a('s_mov_b64 exec, -1')
        fill = stage_reads(st + 1) if st + 1 < NST else []
        if st == 6:
            fill = fill + [f'ds_read_b32 v164, v{VC} offset:0']
        if st == FBC:
            fill = [f'ds_write_b32 v{VC}, v{V1} offset:24'] + fill
        if st == opt('fbc2', 10):
            fill = [fbload.replace('s6 ', 's71 ')] + fill
        if st == opt('fst', -1):
            assert st >= 1
            fill = [f'buffer_store_dwordx4 v[240:243], v182, {XBR}, s{62 + q} offen sc1' for q in range(4)] + fill
        if st == 0:
            fill = fill + gsetup[:12]
        if st == 1:
            for l in gsetup[12:]:
                a(l)
        if st in (8, 9) and not YLO:
            for w in (2 * (st - 8), 2 * (st - 8) + 1):
                fill = fill + ystage(w)
        if YLO:
            rlo, olo = gather(0, (62, 63), 184, 144)
            if st == 8:
                lds_inc(20)
                fill = fill + [f'ds_read_b32 v164, v{VC} offset:20']
            if st == 9:
                a('v_readfirstlane_b32 s60, v164')
                a('s_cmp_ge_u32 s60, 8')
                a('s_cbranch_scc1 ylo_go')
                lds_spin('ylo', 20, 8, 164)
                fill = rlo + fill
            if st == 10:
                fill = olo + fill
        if st < 8:
            pairs = [(n + z, sa + 4 * n, sb + 4 * z) for n in range(8) for z in range(min(4, 8 - n))]
            if st == 0:
                pairs = [(z, 168, sb + 4 * z) for z in range(4)] + pairs
        else:
            pairs = []
            for hf in range(2):
                pairs += [(n + z, sa + 16 * hf + 4 * n, sb + 16 * hf + 4 * (z - 4)) for n in range(4) for z in range(4, 8 - n)]
            if st == 8:
                pairs = [(z, 168, sb + 4 * (z - 4)) for z in range(4, 8)] + pairs
        order = spread(pairs, st in (7, NST - 1))
        seen = set() if st == 0 else set(range(8))
        last = {q[0]: i for i, q in enumerate(order)}
        pend = []
        nper = -(-len(fill) // (len(order) - (4 if st >= 7 else 0)))
        for i, (w, A, B) in enumerate(order):
            mfma(w, A, B, w not in seen)
            seen.add(w)
            for _ in range(nper):
                if fill:
                    a(fill.pop(0))
            if st == NST - 1 or (st == 7 and YLO):
                if last[w] == i and (st != 7 or w < 4):
                    pend.append([w, 0])
                for q in pend:
                    q[1] += 1
                if pend and pend[0][1] > 3:
                    for l in ystage(pend.pop(0)[0]):
                        a(l)
        assert not fill
        assert st == NST - 1 or not pend
    for w0, _ in pend:
        for l in ystage(w0):
            a(l)
    stamp('s1end')
    if opt('cprio', 1):
        a('s_setprio 2')
    lds_inc(8)
    lds_spin('c2', 8, 8, 166)
    if GXL and DWHO:
        a('s_and_b32 s60, s2, 1')
        a('s_cmp_lt_u32 s3, 112')
        a('s_cselect_b32 s60, s60, 0')
        a('s_cmp_eq_u32 s60, 0')
        a('s_cbranch_scc1 ib_go')
        lds_spin('ib', 28, 4, 166)
    (r0, o0), (r1, o1) = gather(0, (62, 63), 184, 196), gather(2, (64, 65), 164, 204)
    if YLO:
        tail = r1 + ['s_waitcnt lgkmcnt(0)'] + o1
    else:
        tail = r0 + r1 + ['s_waitcnt lgkmcnt(4)'] + o0 + ['s_waitcnt lgkmcnt(0)'] + o1
    for l in tail:
        a(l)
    stamp('yst')
    if opt('cprio', 1):
        a('s_setprio 0')
    lds_inc(8)
    a('s_bitcmp0_b32 s2, 0')
    a('s_cbranch_scc0 conv_ffn')
    a(f's_waitcnt vmcnt({2 if YLO else 4})')
    y_setup()
    fb_check()
    YF = opt('yfirst', 0)
    if YF:
        a('s_cmp_lt_u32 s3, 64')
        a('s_cbranch_scc0 yf_skip')
    y_issue()
    a('yf_skip:')
    prep_a()
    prep_b()
    a('s_branch rows')

    a('helper:')
    for q in range(2):
        a(f's_waitcnt vmcnt({1 - q + FL2})')
        a(f'ds_write_b128 v165, v[{UP + 4 * q}:{UP + 4 * q + 3}] offset:{256 - 256 * q}')
    lds_inc(0)
    stamp('u0')
    if FILLBY == 0:
        lds_spin('uw', UWOFF, 4, 28)
        y_fill()

    def fb_publish():
        if FILLBY:
            return
        a('s_mov_b64 exec, 1')
        a(f'ds_add_rtn_u32 v12, v{VC}, v{V1} offset:4')
        a(f'ds_add_u32 v{VC}, v{V1} offset:8')
        a('s_waitcnt lgkmcnt(0)')
        a('v_cmp_eq_u32 vcc, 3, v12')
        a('v_cndmask_b32 v14, -16, v14, vcc')
        a(f'buffer_store_dword v13, v14, {WSR}, s7 offen sc1')
        a('s_mov_b64 exec, -1')
        stamp('fillB')
    if FILLBY:
        lds_spin('uw', UWOFF, 4, 28)
    a(f's_lshl_b32 s61, s3, {SH}')
    a('s_bitcmp0_b32 s2, 0')
    a('s_cbranch_scc0 helper_ffn')
    a(f's_add_u32 s62, s61, {WS_CAND}')
    a(f's_add_u32 s63, s61, {WS_PART}')
    a(f's_add_u32 s79, s61, {WS_GX}')
    DW = 156
    DSP = opt('dsp', 1)

    def d_base():
        if DSP:
            a('s_lshr_b32 s78, s3, 4')
            a('s_lshl_b32 s78, s78, 20')
            a('s_and_b32 s60, s3, 15')
            a('s_lshl_b32 s60, s60, 14')
            a('s_add_u32 s78, s78, s60')
        else:
            a('s_lshl_b32 s78, s3, 16')

    def d_list(DW):
        return [[f'buffer_load_dwordx2 v[{DW + 2 * r}:{DW + 2 * r + 1}], v253, s[{S_D}:{S_D + 3}], s78 offen offset:{(r & 1) * 2048} nt']
                + ([f's_add_u32 s78, s78, {4096 + (262144 - 16384 if DSP and r % 8 == 7 else 0)}'] if r & 1 else []) for r in range(32)]
    d_base()
    dl = d_list(DW)
    XH, WH = 68, 100
    stamp('xiss')
    a('s_add_u32 s70, s69, 4096')
    for i in range(EX, 8):
        x_load(i)
    for i in range(2):
        a(f'buffer_load_dwordx4 v[{WH + 4 * i}:{WH + 4 * i + 3}], v2, s[{S_WR}:{S_WR + 3}], 0 offen offset:{1024 * i}')
    if not FILLBY:
        a('s_waitcnt vmcnt(10)')
        fb_publish()
    if opt('reuse', 0):
        assert not DWHO
        lds_spin('ru0', 0, 4, 3)
        lds_spin('ru1', 12, 4, 3)
    a(f'buffer_store_dwordx4 v[240:243], v237, {WSR}, s62 offen sc1')
    a(f'buffer_store_dwordx4 v[240:243], v237, {WSR}, s63 offen sc1')
    a(f'buffer_store_dwordx4 v[240:243], v237, {WSR}, s79 offen sc1')
    NL = 3 + (0 if FILLBY else 1)
    if GXL and not DWHO:
        a(f's_add_u32 s60, s79, {WS_GX2 - WS_GX}')
        a(f'buffer_store_dwordx4 v[240:243], v237, {WSR}, s60 offen')
        NL += 1
    a('s_mov_b32 s72, 0x3f803f80')
    a('s_mov_b32 s73, 0x3a800000')
    a('s_lshl_b32 s6, s12, 10')
    a(f's_add_u32 s6, s6, {WS_FB}')
    y_setup(False)
    XLATE = opt('xlate', 1)

    def x_to_lds(waits):
        for r in range(4):
            if waits:
                a(f's_waitcnt vmcnt({NL + 2 + 6 - 2 * r})')
            for hf in range(2):
                a(f'ds_write_b128 v{VRA}, v[{XH + 8 * r + 4 * hf}:{XH + 8 * r + 4 * hf + 3}] offset:{RS * r + 1024 * hf}')
        if waits:
            a(f's_waitcnt vmcnt({NL})')
        for hf in range(2):
            a(f'ds_write_b128 v239, v[{WH + 4 * hf}:{WH + 4 * hf + 3}] offset:{1024 * hf}')
        lds_inc(12)
    if not XLATE:
        lds_spin('cp0', 12, 4, 28)
        x_to_lds(True)
    elif opt('dafterx', 1):
        a(f's_waitcnt vmcnt({NL})')
    stamp('xarr')
    lds_spin('late', 24, 1, 3, sleep=LSLEEP)
    a(fbload)
    if DYN:
        a('s_memrealtime s[60:61]')
        a('s_waitcnt lgkmcnt(0)')
        a('s_sub_u32 s60, s60, s4')
        a(f's_cmp_lt_u32 s60, {DYN}')
        a('s_cselect_b32 s5, 1, 0')
        a('s_cbranch_scc1 d_early')
        a('s_waitcnt vmcnt(0)')
        a('s_branch d_early_done')
        a('d_early:')
    for r in range(DEARLY):
        for l in dl[r]:
            a(l)
    stamp('dearly')
    assert opt('dafterx', 1) and opt('stearly', 2) == 2
    a('d_early_done:')
    stamp('fbarr')
    S1, S2, SW = 36, 40, 44

    def stats_a():
        for i in range(8):
            for r in range(4):
                x = XH + 8 * r + i
                a(f'v_dot2_f32_bf16 v{S1 + r}, v{x}, s72, {"0" if i == 0 else "v%d" % (S1 + r)}')
                a(f'v_dot2_f32_bf16 v{S2 + r}, v{x}, v{x}, {"0" if i == 0 else "v%d" % (S2 + r)}')
            a(f'v_dot2_f32_bf16 v{SW}, v{WH + i}, s72, {"0" if i == 0 else "v%d" % SW}')
    STE = opt('stearly', 2)
    lds_spin('mf1', 8, 8, 3)
    stamp('mf1')
    if opt('sprio', 1):
        a(f's_setprio {opt("sprio", 1)}')
    if XLATE:
        x_to_lds(False)
    if STE:
        stats_a()
    if STE < 2:
        fb_check()
        lds_spin('mf', 8, opt('mfcnt', 12), 3)
        y_issue()
    if not STE:
        stats_a()
    for b in (S1, S2):
        a(f'v_permlane32_swap_b32 v{b}, v{b + 1}')
        a(f'v_permlane32_swap_b32 v{b + 2}, v{b + 3}')
    for b in (S1, S2):
        a(f'v_add_f32 v{b}, v{b}, v{b + 1}')
        a(f'v_add_f32 v{b + 2}, v{b + 2}, v{b + 3}')
    for b in (S1, S2):
        a(f'v_permlane16_swap_b32 v{b}, v{b + 2}')
    for b in (S1, S2):
        a(f'v_add_f32 v{b}, v{b}, v{b + 2}')
    for sh in (1, 2, 4, 8):
        for v in (S1, S2, SW):
            a(f'v_add_f32_dpp v{v}, v{v}, v{v} row_shr:{sh} row_mask:0xf bank_mask:0xf bound_ctrl:0')
    a(f'v_add_f32_dpp v{SW}, v{SW}, v{SW} row_bcast:15 row_mask:0xa bank_mask:0xf')
    a(f'v_mul_f32 v{S1}, s73, v{S1}')
    a(f'v_add_f32_dpp v{SW}, v{SW}, v{SW} row_bcast:31 row_mask:0xc bank_mask:0xf')
    a(f'v_mul_f32 v{S1 + 1}, v{S1}, v{S1}')
    a(f'v_fma_f32 v{S2}, v{S2}, s73, -v{S1 + 1}')
    a(f'v_max_f32 v{S2}, 0, v{S2}')
    rnd(S1, S1)
    rnd(S2, S2)
    a(f'v_add_f32 v{S2}, 0x3727c5ac, v{S2}')
    rnd(S2, S2)
    a(f'v_sqrt_f32 v{S2}, v{S2}')
    rnd(S2, S2)
    a(f'v_rcp_f32 v50, v{S2}')
    a(f'v_rcp_f32 v51, v{S2}')
    a(f'v_mul_f32 v48, -v{S1}, v50')
    a(f'v_mul_f32 v49, -v{S1}, v50')
    a('s_mov_b32 exec_lo, 0x80008000')
    a('s_mov_b32 exec_hi, 0x80008000')
    a('ds_write_b128 v244, v[48:51]')
    a('s_mov_b32 exec_lo, 0')
    a('s_mov_b32 exec_hi, 0x80000000')
    a(f'ds_write_b32 v{VC}, v{SW} offset:{L_SW - L_CNT}')
    lds_inc(28)
    stamp('pre')
    if opt('sprio', 1):
        a('s_setprio 0')
    if STE == 2:
        a(f's_waitcnt vmcnt({DEARLY})')
        fb_check()
        lds_spin('mf', 8, opt('mfcnt', 12), 3)
        if YF:
            a('s_cmp_lt_u32 s3, 64')
            a('s_cbranch_scc0 yf_skip2')
        y_issue()
        a('yf_skip2:')
    prep_a()
    prep_b()

    a('rows:')
    if YF > 1:
        a('s_cmp_lt_u32 s3, 64')
        a('s_cbranch_scc1 yf_skip3')
        a(f's_sleep {YF}')
        a('yf_skip3:')
    a('s_mov_b32 s61, 0')
    a('py_top:')
    y_check()
    a('s_cbranch_scc0 py_ok')
    a('s_add_u32 s61, s61, 1')
    a(f's_cmp_ge_u32 s61, {POLL_MAX}')
    a('s_cbranch_scc1 py_give')
    if YSLEEP:
        a(f's_sleep {YSLEEP}')
    y_issue()
    y_fold()
    a('s_branch py_top')
    a('py_give:')
    for p in range(4):
        a(f's_mov_b64 s[{YM + 2 * p}:{YM + 2 * p + 1}], 0')
    a('py_ok:')
    stamp('ypoll')
    y_fold()
    H = XP
    a('s_mov_b32 s73, 0x3a800000')
    Q = TY
    for r in range(2):
        for k in range(3):
            d = Q + k if r == 0 else Q + 4 + k
            a(f'v_add_f32 v{d}, v{AC[r] + 2 * k}, v{AC[r] + 2 * k + 1}')
    for k in range(3):
        a(f'v_permlane32_swap_b32 v{Q + k}, v{Q + 4 + k}')
    for k in range(3):
        a(f'v_add_f32 v{Q + k}, v{Q + k}, v{Q + 4 + k}')
    for k in range(3):
        a(f'v_add_f32_dpp v{Q + k}, v{Q + k}, v{Q + k} row_ror:8 row_mask:0xf bank_mask:0xf')
    a('s_mov_b32 exec_lo, 0x00ff00ff')
    a('s_mov_b32 exec_hi, 0x00ff00ff')
    a(f'ds_write_b128 v{VPW}, v[{Q}:{Q + 3}]')
    a('s_mov_b64 exec, -1')
    a('s_lshl_b32 s60, s3, 7')
    a(f's_add_u32 s60, s60, {WS_KEYS}')
    a('s_cmp_eq_u32 s12, 0')
    a('s_cselect_b32 s60, s60, 0x40000000')
    if opt('prio', 1):
        a('s_cbranch_scc0 no_prio')
        a('s_setprio 3')
        a('no_prio:')
    a('s_waitcnt lgkmcnt(0)')
    a('s_barrier')
    R = 76
    for i in range(4):
        a(f'ds_read_b128 v[{R + 4 * i}:{R + 4 * i + 3}], v{VPR} offset:{16 * i}')
    stamp('bar2')
    A = AC[0]
    a(f'v_mov_b32 v{A + 7}, s8')
    a(f'v_mov_b32 v{A + 5}, 0')
    a('s_waitcnt lgkmcnt(2)')
    pk('add', R, R, R + 4)
    a(f'v_add_f32 v{R + 2}, v{R + 2}, v{R + 6}')
    a('s_waitcnt lgkmcnt(0)')
    pk('add', R + 8, R + 8, R + 12)
    a(f'v_add_f32 v{R + 10}, v{R + 10}, v{R + 14}')
    pk('add', R, R, R + 8)
    a(f'v_add_f32 v{R + 2}, v{R + 2}, v{R + 10}')
    for sw in ('v_permlane32_swap_b32', 'v_permlane16_swap_b32'):
        for k in range(3):
            a(f'v_mov_b32 v{R + 4 + k}, v{R + k}')
        for k in range(3):
            a(f'{sw} v{R + k}, v{R + 4 + k}')
        pk('add', R, R, R + 4)
        a(f'v_add_f32 v{R + 2}, v{R + 2}, v{R + 6}')
    M, V = R + 8, R + 9
    a(f'v_mul_f32 v{R}, s73, v{R}')
    a(f'v_mul_f32 v{R + 3}, v{R}, v{R}')
    a(f'v_fma_f32 v{V}, v{R + 1}, s73, -v{R + 3}')
    rnd(M, R)
    a(f'v_max_f32 v{V}, 0, v{V}')
    rnd(V, V)
    a(f'v_fma_f32 v{R + 2}, -v{M}, s71, v{R + 2}')
    a(f'v_add_f32 v{V}, 0x3727c5ac, v{V}')
    rnd(V, V)
    a(f'v_sqrt_f32 v{V}, v{V}')
    rnd(V, V)
    a(f'v_rcp_f32 v{V}, v{V}')
    a(f'v_mul_f32 v{R + 2}, v{R + 2}, v{V}')
    rnd(R + 2, R + 2)
    a(f'v_ashrrev_i32 v{R + 3}, 31, v{R + 2}')
    a(f'v_and_b32 v{R + 3}, 0x7fff0000, v{R + 3}')
    a(f'v_xor_b32 v{R + 2}, 0x80000000, v{R + 2}')
    a(f'v_xor_b32 v{R + 2}, v{R + 2}, v{R + 3}')
    a(f'v_or_b32 v{A + 6}, v{R + 2}, v{VKL}')
    for sh in (1, 2, 4, 8):
        a(f'v_max_u32_dpp v{A + 6}, v{A + 6}, v{A + 6} row_ror:{sh} row_mask:0xf bank_mask:0xf')
    if opt('diag', 0):
        a('s_mov_b64 exec, 1')
        a(f'v_mov_b32 v{R + 4}, s80')
        a(f'v_mov_b32 v{R + 5}, s82')
        a(f'buffer_store_dwordx2 v[{R + 4}:{R + 5}], v{A + 5}, {WSR}, s60 offen offset:8 sc1')
    a('s_mov_b64 exec, 1')
    a(f'buffer_store_dwordx2 v[{A + 6}:{A + 7}], v{A + 5}, {WSR}, s60 offen sc1')
    a('s_mov_b64 exec, -1')
    stamp('key')
    if opt('prio', 1):
        a('s_setprio 0')
    a(f'v_readfirstlane_b32 s76, v{A + 6}')
    DMID = opt('dmid', 0)

    def down_loads(r0, r1):
        r1 = min(r1, 32)
        if r1 <= r0 or DWHO:
            return
        lab = a.newlabel('nodl')
        a('s_cmp_eq_u32 s14, 0')
        a(f's_cbranch_scc1 {lab}')
        for r in range(r0, r1):
            for l in dl[r]:
                a(l)
        a(f'{lab}:')
    if not DYN:
        down_loads(DEARLY, DEARLY + DMID)
    a(f'v_mul_f32 v{M}, -v{M}, v{V}')
    HS = [R + 12, R + 16]
    a(f'v_mov_b32_dpp v{R + 11}, v{V} row_ror:8 row_mask:0xf bank_mask:0xf')
    a(f'v_mov_b32_dpp v{R + 10}, v{M} row_ror:8 row_mask:0xf bank_mask:0xf')
    a('s_mov_b32 vcc_lo, 0xff00ff00')
    a('s_mov_b32 vcc_hi, 0xff00ff00')
    for k in range(4):
        own, oth = M + (k >> 1), R + 10 + (k >> 1)
        a(f'v_cndmask_b32 v{HS[0] + k}, v{own}, v{oth}, vcc')
        a(f'v_cndmask_b32 v{HS[1] + k}, v{oth}, v{own}, vcc')
    a(f's_lshl_b32 s77, s3, {SH}')
    a(f's_add_u32 s77, s77, {WS_CAND}')
    a('s_not_b32 s64, s76')
    a('s_bfe_u32 s65, s64, 0x30001')
    a('s_mov_b32 s66, 0x01010101')
    a('s_lshl_b32 s66, s66, s65')
    a('s_mov_b32 s67, s66')
    OUTR = [124, 132]

    def cand_row(r):
        a('s_mov_b64 exec, s[66:67]')
        for i in range(8):
            pk('fma', N[0] + 2 * i, H[r] + 2 * i, HS[r] + 2, HS[r])
        for i in range(8):
            a(f'v_cvt_pk_bf16_f32 v{YR[0] + i}, v{N[0] + 2 * i}, v{N[0] + 2 * i + 1}')
        for p in range(4):
            a(f'buffer_store_dwordx2 v[{YR[0] + 2 * p}:{YR[0] + 2 * p + 1}], v{VG8}, {WSR}, s77 offen offset:{512 * p} sc1')
        for i in range(8):
            a(f'v_cvt_pk_bf16_f32 v{WF + i}, v{H[r] + 2 * i}, v{H[r] + 2 * i + 1}')

    a('s_bitcmp1_b32 s64, 0')
    a('s_cbranch_scc1 order10')
    cand_row(0)
    a('s_branch cand_done')
    a('order10:')
    cand_row(1)
    a('cand_done:')
    stamp('cand')
    for p in range(4):
        a(f'ds_write_b64 v{VG8}, v[{WF + 2 * p}:{WF + 2 * p + 1}] offset:{L_H + 512 * p}')
    a('s_mov_b64 exec, -1')
    assert not DYN
    D2 = DEARLY + DMID + opt('dmid2', 8)
    down_loads(DEARLY + DMID, D2)
    EXACT = opt('exact', 0)
    if not EXACT:
        for r in range(2):
            a(f'v_add_f32 v{HS[r] + 2}, 1.0, v{HS[r] + 2}')
            a(f'v_add_f32 v{HS[r] + 3}, 1.0, v{HS[r] + 3}')
    for r in range(2):
        if EXACT:
            for i in range(16):
                rnd(H[r] + i, H[r] + i)
            for i in range(8):
                pk('fma', N[0] + 2 * i, H[r] + 2 * i, HS[r] + 2, HS[r])
            for i in range(16):
                rnd(N[0] + i, N[0] + i)
            for i in range(8):
                pk('add', H[r] + 2 * i, H[r] + 2 * i, N[0] + 2 * i)
        else:
            for i in range(8):
                pk('fma', H[r] + 2 * i, H[r] + 2 * i, HS[r] + 2, HS[r])
        for i in range(8):
            a(f'v_cvt_pk_bf16_f32 v{N[1] + 8 * r + i}, v{H[r] + 2 * i}, v{H[r] + 2 * i + 1}')
        for p in range(4):
            a(f'ds_write_b64 v{VXA}, v[{N[1] + 8 * r + 2 * p}:{N[1] + 8 * r + 2 * p + 1}] offset:{512 * p + RS * r}')
    lds_inc(28)
    a('s_cmp_eq_u32 s14, 0')
    a('s_cbranch_scc0 ffn2')
    a('s_and_b32 s64, s64, 15')
    a(f's_mul_i32 s60, s64, {RS}')
    a(f's_add_u32 s60, s60, {L_YT}')
    a('v_add_u32 v3, s60, v2')
    a('s_lshl_b32 s65, s3, 4')
    a('s_add_u32 s64, s64, s65')
    a('s_lshl_b32 s65, s64, 11')
    lds_spin('o8', 28, 12, 68)
    a('s_cmp_eq_u32 s12, 0')
    a('s_cbranch_scc0 no_cand_h')
    for hf in range(2):
        a(f'ds_read_b128 v[{68 + 4 * hf}:{71 + 4 * hf}], v3 offset:{1024 * hf}')
    for hf in range(2):
        a(f'ds_read_b128 v[{WF + 4 * hf}:{WF + 4 * hf + 3}], v2 offset:{L_H + 1024 * hf}')
    for hf in range(2):
        a(f's_waitcnt lgkmcnt({3 - hf})')
        a(f'buffer_store_dwordx4 v[{68 + 4 * hf}:{71 + 4 * hf}], v2, {XBR}, s65 offen offset:{1024 * hf} sc1')
    a('s_waitcnt vmcnt(0) lgkmcnt(0)')
    a(f'buffer_store_dwordx4 v[{WF}:{WF + 3}], v2, {WSR}, s77 offen offset:2048 sc1')
    a(f'buffer_store_dwordx4 v[{WF + 4}:{WF + 7}], v2, {WSR}, s77 offen offset:3072 sc1')
    a('no_cand_h:')
    for i in range(8):
        a(f'ds_read_b128 v[{4 + 4 * i}:{7 + 4 * i}], v{VRA} offset:{RS * (i >> 1) + 1024 * (i & 1)}')
    OE, OM = opt('oearly', 0), opt('omid', 0)
    a('s_waitcnt lgkmcnt(0)')
    for r in range(4):
        if r == OE and OM and not DWHO:
            a('s_cmp_lt_u32 s3, 112')
            a('s_cbranch_scc0 dr_go')
            lds_spin('dr', 16, 4, 68)
        if r == OE + OM and not DWHO:
            a('s_cmp_lt_u32 s3, 112')
            a('s_cbranch_scc0 dp_go')
            lds_spin('dp', 16, 8, 68, sleep=2)
            if opt('osleep', 0):
                a(f's_sleep {opt("osleep", 0)}')
        a('s_cmp_eq_u32 s68, s64')
        a('s_cselect_b32 s60, 0x40000000, s69')
        for hf in range(2):
            i = 2 * r + hf
            a(f'buffer_store_dwordx4 v[{4 + 4 * i}:{7 + 4 * i}], v2, {XBR}, s60 offen offset:{1024 * hf} sc1')
        if r < 3:
            a('s_add_u32 s68, s68, 1')
            a('s_add_u32 s69, s69, 2048')
    a('s_branch main_fl')
    TT = 8

    def d_perm(DW, ps):
        for p in ps:
            for k in range(2):
                lo, hi = DW + 2 * (8 * (p >> 2) + (p & 3)) + k, DW + 2 * (8 * (p >> 2) + (p & 3) + 4) + k
                t = 48 + k
                a(f'v_perm_b32 v{t}, v{hi}, v{lo}, s74')
                a(f'v_perm_b32 v{hi}, v{hi}, v{lo}, s75')
                a(f'v_mov_b32 v{lo}, v{t}')

    def gx_loads():
        for q in range(4):
            a(f'buffer_load_dwordx4 v[{52 + 4 * q}:{52 + 4 * q + 3}], v2, {WSR}, s62 offen offset:{1024 * q} sc1')

    def ffn2(DW, issued):
        P = 52
        a('s_mov_b32 s61, 0')
        if issued:
            a('s_branch pg_chk')
        a('pg_again:')
        gx_loads()
        a('pg_chk:')
        a('s_waitcnt vmcnt(0)')
        sentinel_check(range(P, P + 16), P + 16)
        a('s_cbranch_vccz pg_ok')
        a('s_add_u32 s61, s61, 1')
        a(f's_cmp_ge_u32 s61, {POLL_MAX}')
        a('s_cbranch_scc1 pg_ok')
        a('s_mov_b64 exec, vcc')
        a(f's_cmp_lt_u32 s61, {GXL}')
        a('s_cselect_b32 s62, s63, s79')
        if opt('gxsleep', 1):
            a(f's_sleep {opt("gxsleep", 1)}')
        a('s_branch pg_again')
        a('pg_ok:')
        a('s_mov_b64 exec, -1')
        stamp('gxpoll')
        pk('add', P, P, P + 4)
        pk('add', P + 2, P + 2, P + 6)
        pk('add', P + 8, P + 8, P + 12)
        pk('add', P + 10, P + 10, P + 14)
        pk('add', P, P, P + 8)
        pk('add', P + 2, P + 2, P + 10)
        a(f'v_permlane32_swap_b32 v{P}, v{P + 2}')
        a(f'v_permlane32_swap_b32 v{P + 1}, v{P + 3}')
        pk('add', P, P, P + 2)
        a(f'v_permlane16_swap_b32 v{P}, v{P + 1}')
        a(f'v_add_f32 v{TT}, v{P}, v{P + 1}')
        rnd(TT, TT)
        a(f'v_mul_f32 v{TT + 2}, 0xbfb8aa3b, v{TT}')
        a(f'v_mov_b32_dpp v{TT + 3}, v{TT} row_ror:8 row_mask:0xf bank_mask:0xf')
        a(f'v_exp_f32 v{TT + 2}, v{TT + 2}')
        a(f'v_add_f32 v{TT + 2}, 1.0, v{TT + 2}')
        a(f'v_rcp_f32 v{TT + 2}, v{TT + 2}')
        a(f'v_mul_f32 v{TT}, v{TT}, v{TT + 2}')
        rnd(TT, TT)
        a(f'v_mul_f32 v{TT}, v{TT}, v{TT + 3}')
        a(f'v_mov_b32_dpp v{TT + 1}, v{TT} row_shr:1 row_mask:0xf bank_mask:0xf bound_ctrl:0')
        a(f'v_cvt_pk_bf16_f32 v{TT}, v{TT + 1}, v{TT}')
        for p in range(16):
            a(f'v_readlane_b32 s{S_K + p}, v{TT}, {16 * (p & 3) + 2 * (p >> 2) + 1}')
        AC2 = 24
        for p in range(16):
            for c in range(4):
                r = DW + 2 * (8 * (p >> 2) + (p & 3) + 4 * (c & 1)) + (c >> 1)
                h = AC2 + 4 * (p & 1) + c
                src2 = '0' if p < 2 else f'v{h}'
                a(f'v_dot2_f32_bf16 v{h}, v{r}, s{S_K + p}, {src2}')
        pk('add', AC2, AC2, AC2 + 4)
        pk('add', AC2 + 2, AC2 + 2, AC2 + 6)
        a(f'buffer_store_dwordx4 v[{AC2}:{AC2 + 3}], v237, {WSR}, s77 offen sc1')
        stamp('pst')

    a('ffn2:')
    if DWHO:
        a('s_branch main_fl')
    else:
        a('s_cmp_lt_u32 s3, 112')
        a('s_cbranch_scc0 main_fl')
        for r in range(min(D2, 32), 32):
            for l in dl[r]:
                a(l)
        a(f's_lshl_b32 s77, s3, {SH}')
        a(f's_add_u32 s77, s77, {WS_PART}')
        a(f's_add_u32 s63, s79, {WS_GX2 - WS_GX}')
        a(f's_mov_b32 s62, s{63 if GXL else 79}')
        for aa in range(4):
            a(f's_waitcnt vmcnt({24 - 8 * aa})')
            if aa == 3:
                lds_inc(16)
                stamp('dready')
                gx_loads()
            d_perm(DW, range(4 * aa, 4 * aa + 4))
        ffn2(DW, True)
        lds_inc(16)
        a('s_branch main_fl')

    a('helper_ffn:')
    a('s_cmp_lt_u32 s3, 112')
    a('s_cbranch_scc1 ffn_go')
    a('s_waitcnt vmcnt(0)')
    fb_publish()
    a('s_branch red_wait')
    a('ffn_go:')
    GW = 64
    if not (EX or EF):
        gu_base()
    a('s_lshr_b32 s78, s3, 4')
    a('s_lshl_b32 s78, s78, 2')
    a('s_add_u32 s78, s78, s13')
    a(f's_lshl_b32 s78, s78, {SH + 2}')
    a('s_lshl_b32 s60, s76, 8')
    a('s_add_u32 s78, s78, s60')
    a(f's_add_u32 s78, s78, {WS_GX}')
    a(f's_add_u32 s79, s78, {WS_GX2 - WS_GX}')
    if GXL and DWHO:
        a(f's_add_u32 s60, s61, {WS_GX2}')
        a(f'buffer_store_dwordx4 v[240:243], v237, {WSR}, s60 offen')
    assert DSP
    stamp('uw')
    FBK = opt('fbk', 2)
    for k, stp in enumerate(steps):
        if k < EF:
            continue
        if k == PAUSE:
            stamp('pause')
            lds_spin('late2', 24, 1, 28, sleep=LSLEEP)
            lds_spin('yw', 8, 12, 28)
            if opt('rsleep', 0):
                a(f's_sleep {opt("rsleep", 0)}')
        for l in stp:
            a(l)
        if k >= EF + DEPTH - 1 and k < PAUSE:
            a(f's_waitcnt vmcnt({DEPTH - 1})')
        if PAUSE <= k < PAUSE + opt('slow', 0):
            a(f's_waitcnt vmcnt({opt("depth2", 2) - 1})')
        if k == DEPTH - 1 and GXL and DWHO:
            lds_inc(28)
        if k == FBK - 1 and not FILLBY:
            a(f's_waitcnt vmcnt({FBK})')
            fb_publish()
    assert DEPTH <= PAUSE < 32
    if DWHO:
        lds_inc(16)
    for i2 in range(8):
        a(f's_waitcnt vmcnt({max(0, min(63, 32 - 4 * (i2 + 1)))})')
        for m in range(2):
            for k in range(4):
                lo, hi = GW + 64 * m + 8 * i2 + k, GW + 64 * m + 8 * i2 + 4 + k
                t = 32 + (k & 3)
                a(f'v_perm_b32 v{t}, v{hi}, v{lo}, s74')
                a(f'v_perm_b32 v{hi}, v{hi}, v{lo}, s75')
                a(f'v_mov_b32 v{lo}, v{t}')
    stamp('wready')
    KCONV = opt('kconv', 1)

    def fetch_token():
        a('v_lshlrev_b32 v6, 2, v1')
        a(f'v_add_u32 v7, {L_X}, v6')
        if opt('kdelay', 0):
            a(f's_sleep {opt("kdelay", 0)}')
        if not opt('spec', 1):
            key_poll(65)
            stamp('gkey')
            a('s_and_b32 s66, s65, 0xffff')
            a('s_sub_u32 s66, 2047, s66')
            a('s_lshr_b32 s66, s66, 4')
            a(f's_lshl_b32 s66, s66, {SH}')
            a('s_lshl_b32 s60, s76, 7')
            a('s_add_u32 s66, s66, s60')
            a(f's_add_u32 s66, s66, {WS_CAND}')
            a('s_mov_b32 exec_hi, 0')
            retry_loop('px', [f'buffer_load_dword v8, v6, {WSR}, s66 offen sc1'], lambda: a('v_cmp_eq_u32 vcc, -1, v8'), sleep=1, mask='0xffffffff')
        else:
            a('v_lshlrev_b32 v4, 7, v1')
            a(f's_mov_b32 s64, {WS_KEYS + 8192}')
            a('s_lshl_b32 s63, s76, 7')
            a(f's_add_u32 s63, s63, {WS_CAND}')
            a(f's_and_b32 s62, s3, {opt("canmask", 63)}')
            a('s_lshl_b32 s62, s62, 7')
            a(f's_add_u32 s62, s62, {WS_KEYS + 4}')
            a('s_mov_b64 exec, 1')
            retry_loop('kc2', [f'buffer_load_dword v8, v4, {WSR}, s62 offen sc1'], lambda: a('v_cmp_ne_u32 vcc, s8, v8'), sleep=opt('kcsleep', 2))
            stamp('kcan')
            kl = [f'buffer_load_dwordx2 v[16:17], v4, {WSR}, {WS_KEYS} offen sc1', f'buffer_load_dwordx2 v[18:19], v4, {WSR}, s64 offen sc1']

            def cand_addr():
                a('s_not_b32 s66, s65')
                a('s_bfe_u32 s66, s66, 0x70004')
                a(f's_lshl_b32 s66, s66, {SH}')
                a('s_add_u32 s66, s66, s63')
            for l in kl:
                a(l)
            a('s_mov_b32 s67, 0')
            a('s_mov_b32 s61, 0')
            a('v_mov_b32 v8, -1')
            a('ks_chk:')
            a('s_waitcnt vmcnt(0)')
            a('v_cmp_eq_u32 vcc, s8, v17')
            a('v_cmp_eq_u32 s[70:71], s8, v19')
            a('v_cndmask_b32 v12, 0, v16, vcc')
            a('v_cndmask_b32 v9, 0, v18, s[70:71]')
            a('s_nand_b64 s[70:71], s[70:71], vcc')
            a('v_max_u32 v12, v12, v9')
            a('s_cbranch_scc0 ks_all')
            a('s_add_u32 s61, s61, 1')
            a(f's_cmp_ge_u32 s61, {POLL_MAX}')
            a('s_cbranch_scc1 ks_all')
            a('s_mov_b64 exec, s[70:71]')
            for l in kl:
                a(l)
            a('s_mov_b64 exec, -1')
            wave_reduce('v_max_u32', 12)
            a('v_readlane_b32 s65, v12, 63')
            a('s_mov_b32 s67, s65')
            cand_addr()
            a('s_mov_b32 exec_hi, 0')
            a(f'buffer_load_dword v8, v6, {WSR}, s66 offen sc1')
            a('s_mov_b64 exec, -1')
            a('s_branch ks_chk')
            a('ks_all:')
            wave_reduce('v_max_u32', 12)
            a('v_readlane_b32 s65, v12, 63')
            stamp('gkey')
            cand_addr()
            a('s_mov_b32 exec_hi, 0')
            a('s_cmp_eq_u32 s65, s67')
            a('s_cbranch_scc1 px_chk')
            retry_loop('px', [f'buffer_load_dword v8, v6, {WSR}, s66 offen sc1'], lambda: a('v_cmp_eq_u32 vcc, -1, v8'), sleep=1, mask='0xffffffff')
        a('ds_write_b32 v7, v8')
        a('s_mov_b64 exec, -1')
        a('s_waitcnt lgkmcnt(0)')
    if not KCONV:
        a('s_cmp_eq_u32 s13, 0')
        a('s_cbranch_scc0 f2_bar')
        fetch_token()
    a('f2_bar:')
    a('s_barrier')
    XS, AC = 36, 44
    stamp('ffn0')
    a(f'ds_read_b128 v[{XS}:{XS + 3}], v201')
    a(f'ds_read_b128 v[{XS + 4}:{XS + 7}], v201 offset:16')
    for p in range(8):
        if p % 4 == 0:
            a(f's_waitcnt lgkmcnt({1 - p // 4})')
        for m in range(2):
            for c in range(8):
                r = GW + 64 * m + 8 * p + 4 * (c & 1) + (c >> 1)
                i = AC + 8 * m + c
                src2 = '0' if p == 0 else f'v{i}'
                a(f'v_dot2_f32_bf16 v{i}, v{r}, v{XS + p}, {src2}')
    for q in range(4):
        a(f'ds_write_b128 v203, v[{AC + 4 * q}:{AC + 4 * q + 3}] offset:{128 * (q >> 1) + 16 * (q & 1)}')
    a('s_waitcnt lgkmcnt(0)')
    a('s_barrier')
    for q in range(4):
        a(f'ds_read_b128 v[{8 + 4 * q}:{11 + 4 * q}], v205 offset:{16 * RP * q}')
    a('s_waitcnt lgkmcnt(2)')
    pk('add', 8, 8, 12)
    pk('add', 10, 10, 14)
    a('s_waitcnt lgkmcnt(0)')
    pk('add', 16, 16, 20)
    pk('add', 18, 18, 22)
    pk('add', 8, 8, 16)
    pk('add', 10, 10, 18)
    if GXL:
        a(f'buffer_store_dwordx4 v[8:11], v247, {WSR}, s79 offen')
    a(f'buffer_store_dwordx4 v[8:11], v247, {WSR}, s78 offen sc1')
    stamp('gxst')
    a('s_branch main_fl')

    a('conv_ffn:')
    a('s_cmp_lt_u32 s3, 112')
    a('s_cbranch_scc0 red_conv')
    if KCONV:
        assert not DWHO
        a('s_cmp_eq_u32 s12, 0')
        a('s_cbranch_scc0 main_fl')
        a('s_and_b32 s76, s3, 15')
        fetch_token()
        a('s_barrier')
    if DWHO:
        DW2 = 80
        lds_spin('gu', 16, 4, 8)
        d_base()
        for stp in d_list(DW2):
            for l in stp:
                a(l)
        a('v_lshlrev_b32 v237, 1, v253')
        a(f's_lshl_b32 s77, s3, {SH}')
        a(f's_add_u32 s79, s77, {WS_GX}')
        a(f's_add_u32 s77, s77, {WS_PART}')
        a(f's_add_u32 s63, s79, {WS_GX2 - WS_GX}')
        a(f's_mov_b32 s62, s{63 if GXL else 79}')
        for aa in range(4):
            a(f's_waitcnt vmcnt({24 - 8 * aa})')
            d_perm(DW2, range(4 * aa, 4 * aa + 4))
        stamp('dready')
        a('s_barrier')
        a('s_barrier')
        ffn2(DW2, False)
    a('s_branch main_fl')

    a('red_conv:')
    a('s_cmp_eq_u32 s12, 0')
    a('s_cbranch_scc0 red_wait')
    if opt('rdelay', 0):
        a(f's_sleep {opt("rdelay", 0)}')
    key_poll(71)
    a('s_sub_u32 s76, s3, 112')
    a('s_and_b32 s72, s71, 0xffff')
    a('s_sub_u32 s72, 2047, s72')
    a('s_lshr_b32 s73, s72, 4')
    a(f's_lshl_b32 s73, s73, {SH}')
    a('s_lshl_b32 s60, s76, 7')
    a('s_add_u32 s73, s73, s60')
    a(f's_add_u32 s73, s73, {WS_CAND}')
    a('s_lshl_b32 s72, s72, 11')
    a('s_add_u32 s72, s72, s60')
    a('v_and_b32 v6, 31, v0')
    a('v_lshlrev_b32 v6, 2, v6')
    a('s_cmp_eq_u32 s76, 0')
    a(f's_cselect_b32 s60, {WS_EPOCH}, 0x40000000')
    a('v_mov_b32 v49, s8')
    a('v_mov_b32 v50, 0')
    a('s_mov_b64 exec, 1')
    a(f'buffer_store_dword v49, v50, {WSR}, s60 offen')
    a('s_mov_b64 exec, -1')
    loads = [f'buffer_load_dword v{40 + p}, v6, {WSR}, s73 offen offset:{2048 * p} sc1' for p in range(2)]
    poll_loop('ph', loads, (40, 41), 42)
    a('s_and_b32 s60, s71, 0xffff0000')
    a('s_xor_b32 s61, s60, 0x80000000')
    a('s_xor_b32 s62, s60, 0xffff0000')
    a('s_cmp_lt_i32 s60, 0')
    a('s_cselect_b32 s60, s61, s62')
    a('v_mov_b32 v42, 0xbfb8aa3b')
    a('v_mul_f32 v42, s60, v42')
    a('v_exp_f32 v42, v42')
    a('v_add_f32 v42, 1.0, v42')
    a('v_rcp_f32 v42, v42')
    rnd(42, 42)
    unpack(44, 45, 40)
    unpack(46, 47, 41)
    a('red_wait:')
    a(f's_add_u32 s{S_G}, s{S_WS}, {WS_PART}')
    a(f's_addc_u32 s{S_G + 1}, s{S_WS + 1}, 0')
    a(f's_mov_b32 s{S_G + 2}, {112 << SH}')
    a('s_sub_u32 s76, s3, 112')
    a('v_and_b32 v4, 15, v0')
    a('v_lshrrev_b32 v5, 4, v0')
    a(f'v_lshlrev_b32 v5, {SH}, v5')
    a('v_lshl_add_u32 v5, v4, 4, v5')
    a('s_lshl_b32 s64, s76, 8')
    a(f's_add_u32 s65, s64, {32 << SH}')
    a(f's_add_u32 s66, s64, {64 << SH}')
    a(f's_add_u32 s67, s64, {96 << SH}')
    a('v_lshrrev_b32 v7, 4, v1')
    a('v_lshl_add_u32 v7, v4, 2, v7')
    a('v_lshlrev_b32 v7, 2, v7')
    a('s_lshl_b32 s60, s12, 8')
    a(f's_add_u32 s60, s60, {L_RED}')
    a('v_add_u32 v7, s60, v7')
    a('v_lshlrev_b32 v48, 3, v1')
    a(f'v_add_u32 v48, {L_RED}, v48')
    a('s_barrier')
    if opt('finsleep', 30):
        a(f's_sleep {opt("finsleep", 30)}')
    P = 8
    loads = [f'buffer_load_dwordx4 v[{P + 4 * r}:{P + 4 * r + 3}], v5, s[{S_G}:{S_G + 3}], s{64 + r} offen sc1' for r in range(4)]
    poll_loop('pp', loads, range(P, P + 16), 24)
    stamp('ppoll')
    pk('add', P, P, P + 4)
    pk('add', P + 2, P + 2, P + 6)
    pk('add', P + 8, P + 8, P + 12)
    pk('add', P + 10, P + 10, P + 14)
    pk('add', P, P, P + 8)
    pk('add', P + 2, P + 2, P + 10)
    a(f'v_permlane32_swap_b32 v{P}, v{P + 2}')
    a(f'v_permlane32_swap_b32 v{P + 1}, v{P + 3}')
    pk('add', P, P, P + 2)
    a(f'v_permlane16_swap_b32 v{P}, v{P + 1}')
    a(f'v_add_f32 v{P}, v{P}, v{P + 1}')
    a(f'ds_write_b32 v7, v{P}')
    a('s_waitcnt lgkmcnt(0)')
    a('s_barrier')
    a('s_cmp_eq_u32 s12, 0')
    a('s_cbranch_scc0 main_fl')
    a('s_mov_b32 exec_hi, 0')
    for q in range(8):
        a(f'ds_read_b64 v[{P + 2 * q}:{P + 2 * q + 1}], v48 offset:{256 * q}')
    a('s_waitcnt lgkmcnt(0)')
    for q in range(4):
        pk('add', P + 4 * q, P + 4 * q, P + 4 * q + 2)
    pk('add', P, P, P + 4)
    pk('add', P + 8, P + 8, P + 12)
    pk('add', P, P, P + 8)
    rnd(P, P)
    rnd(P + 1, P + 1)
    a(f'v_mul_f32 v{P}, v{P}, v42')
    a(f'v_mul_f32 v{P + 1}, v{P + 1}, v42')
    rnd(P, P)
    rnd(P + 1, P + 1)
    pk('add', P, P, 44)
    rnd(P, P)
    rnd(P + 1, P + 1)
    pk('add', P, P, 46)
    a(f'v_cvt_pk_bf16_f32 v{P}, v{P}, v{P + 1}')
    a(f'buffer_store_dword v{P}, v6, {XBR}, s72 offen')
    if opt('diag', 0):
        a('s_mov_b64 exec, -1')
        a('s_cmp_eq_u32 s76, 0')
        a('s_cbranch_scc0 main_done')
        a('v_lshlrev_b32 v4, 7, v1')
        a(f's_mov_b32 s64, {WS_KEYS + 8192}')
        a(f'buffer_load_dwordx2 v[8:9], v4, {WSR}, {WS_KEYS} offen offset:8 sc1')
        a(f'buffer_load_dwordx2 v[10:11], v4, {WSR}, s64 offen offset:8 sc1')
        a('s_memrealtime s[62:63]')
        a('s_waitcnt vmcnt(0) lgkmcnt(0)')
        for r in range(8, 12):
            a(f'v_sub_u32 v{r}, s62, v{r}')
        a('v_max_u32 v12, v8, v10')
        a('v_min_u32 v13, v8, v10')
        a('v_min_u32 v14, v9, v11')
        a('v_not_b32 v13, v13')
        a('v_not_b32 v14, v14')
        wave_reduce('v_max_u32', [12, 13, 14])
        a('v_readlane_b32 s64, v12, 63')
        a('v_readlane_b32 s65, v13, 63')
        a('v_readlane_b32 s66, v14, 63')
        a('s_not_b32 s65, s65')
        a('s_not_b32 s66, s66')
        d = opt('diag', 0)
        if d == 1:
            a('s_sub_u32 s64, s64, s65')
        if d == 3:
            a('s_sub_u32 s64, s64, s66')
        a(f's_mul_i32 s64, s64, {opt("diagk", 10)}')
        a('s_min_u32 s64, s64, 100000')
        a('diag_spin:')
        a('s_memrealtime s[66:67]')
        a('s_waitcnt lgkmcnt(0)')
        a('s_sub_u32 s66, s66, s62')
        a('s_cmp_lt_u32 s66, s64')
        a('s_cbranch_scc1 diag_spin')
        a('s_branch main_done')
    a('main_fl:')
    if opt('diag', 0):
        a('s_branch main_done')
    if opt('dbg', 0) == 999:
        a('s_waitcnt vmcnt(0) lgkmcnt(0)')
        stamp(7)
        a('s_mov_b64 s[96:97], s[100:101]')
        a('s_mov_b32 s98, 256')
        a('s_mov_b32 s99, 0x00020000')
        a('s_mov_b64 exec, 1')
        a('v_mov_b32 v1, 0')
        a('s_waitcnt lgkmcnt(0)')
        for i in range(8):
            a(f's_and_b32 s60, s{80 + 2 * i}, 0xffffff')
            a('s_xor_b32 s61, s60, 0xffffff')
            a(f's_cmp_eq_u32 s{80 + 2 * i}, 0')
            a('s_cselect_b32 s61, 0, s61')
            a('v_mov_b32 v2, s60')
            a('v_mov_b32 v3, s61')
            a(f'buffer_atomic_umax v2, v1, s[96:99], 0 offen offset:{4 * i} sc1')
            a(f'buffer_atomic_umax v3, v1, s[96:99], 0 offen offset:{32 + 4 * i} sc1')
    elif opt('dbg', 0):
        a('s_waitcnt vmcnt(0) lgkmcnt(0)')
        stamp(7)
        a('s_mov_b64 s[96:97], s[100:101]')
        a('s_mov_b32 s98, 256')
        a('s_mov_b32 s99, 0x00020000')
        a('s_lshl_b32 s60, s2, 3')
        a('s_add_u32 s60, s60, s12')
        a('s_mov_b32 s61, 0x40000000')
        a(f's_cmp_eq_u32 s60, {225 * 8}')
        a('s_cselect_b32 s61, 0, s61')
        a(f's_cmp_eq_u32 s60, {opt("dbg", 0) * 8 + opt("dbgw", 0)}')
        a('s_cselect_b32 s61, 32, s61')
        a('s_mov_b64 exec, 1')
        a('v_mov_b32 v1, 0')
        a('s_waitcnt lgkmcnt(0)')
        for i in range(8):
            a(f's_sub_u32 s60, s{80 + 2 * i}, s80')
            a(f's_cmp_eq_u32 s{80 + 2 * i}, 0')
            a('s_cselect_b32 s60, 0, s60')
            a('v_mov_b32 v2, s60')
            a(f'buffer_store_dword v2, v1, s[96:99], s61 offen offset:{4 * i}')
    else:
        stamp_flush(S_WS, 7, 0)
    a('main_done:')
    a('s_endpgm')
    return kernel_desc(KN, 256, 102 if STAMPS else 80)


launch = '; @launch grid=(256,1,1) block=(512,1,1) lds=%d\n' % MAIN_LDS
finish(launch, [k_main()])
```

```python
from common import *
import common
STAMPS = common.STAMPS

WS_KEYS = 0
WS_EPOCH = 32 * 1024
WS_GX = 1536 * 1024
WS_FA = 128 * 1024
WS_FB = 192 * 1024
WS_FA2 = 64 * 1024
WS_CAND = 262144
WS_PART = 1 << 20
WS_GX2 = 6 << 20
WS_KV = 2 << 20
WS_SIZE = 7 << 20
SH = 12
if opt('reuse', 0):
    SH = 14
    WS_CAND, WS_PART, WS_GX, WS_GX2 = WS_KV, WS_KV + 4096, WS_KV + (2 << 20), WS_KV + (2 << 20) + 4096
WSOFF = opt('wsoff', 0) << 20
common.WS_STAMP -= WSOFF
POLL_MAX = 1 << 16
KN = NAME + '_kernel'

DEPTH = opt('depth', 7)
XPOS = opt('xpos', 4)
UWOFF = opt('uwoff', 0)
FLC = opt('flc', 3)
FBC = opt('fbc', 10)
YSLEEP = opt('ysleep', 1)
CODEPF = opt('codepf', 6)
DEARLY = opt('dearly', 0)
CPERM = opt('cperm', 1)
RSW = opt('rsw', 64)
YLO = opt('ylo', 1)
DWHO = opt('dwho', 0)
GXL = opt('gxl', 40)
DYN = opt('dyn', 0)
LSLEEP = opt('lsleep', 6)
FILLBY = opt('fillby', 1)
DUAL = opt('dual', 12)
KVS = '' if opt('l2kv', 0) else ' sc1'
KVL = {0: ' sc1', 1: ' sc0', 2: ''}[opt('kvl', 0)]
FAL = {0: ' sc1', 1: ' sc0', 2: ''}[opt('fal', 0)]
PAUSE = opt('pause', 20)

GS = 4160
UOFF = 4 * GS
CS = 21312
L_YL = 4 * CS
RS = 2064
L_YT = L_YL + 16384
L_P0 = L_YL
L_W = L_YT + 16 * RS
L_ST = L_W + 2048
L_PART = 0
PS = 272
RP = 272
L_H = 8192
L_CNT = L_ST + 272
L_GKEY = L_CNT + 28
L_SW = L_CNT + 48
L_X = L_CNT + 64
L_RED = L_X + 1024
MAIN_LDS = L_RED + 4096

S_K, S_V, S_SK, S_H, S_WS, S_Q, S_WR, S_OUT, S_G, S_U, S_D = 16, 20, 24, 28, 32, 36, 40, 44, 48, 52, 56
WSR = f's[{S_WS}:{S_WS + 3}]'
XBR = f's[{S_OUT}:{S_OUT + 3}]'
KVR = WSR
VC, V1 = 254, 255


def sentinel_check(regs, tmp):
    rs = list(regs)
    cur = rs.pop(0)
    while rs:
        if len(rs) >= 2:
            a(f'v_max3_u32 v{tmp}, v{cur}, v{rs[0]}, v{rs[1]}')
            rs = rs[2:]
        else:
            a(f'v_max_u32 v{tmp}, v{cur}, v{rs[0]}')
            rs = rs[1:]
        cur = tmp
    a(f'v_cmp_eq_u32 vcc, -1, v{cur}')


def retry_loop(name, loads, check, sleep=2, issued=False, mask='-1'):
    a('s_mov_b32 s61, 0')
    if issued:
        a(f's_branch {name}_chk')
    a(f'{name}_again:')
    for l in loads:
        a(l)
    a(f'{name}_chk:')
    a('s_waitcnt vmcnt(0)')
    check()
    a(f's_cbranch_vccz {name}_ok')
    a('s_add_u32 s61, s61, 1')
    a(f's_cmp_ge_u32 s61, {POLL_MAX}')
    a(f's_cbranch_scc1 {name}_ok')
    a('s_mov_b64 exec, vcc')
    a(f's_sleep {sleep}')
    a(f's_branch {name}_again')
    a(f'{name}_ok:')
    a(f's_mov_b64 exec, {mask}')


def poll_loop(name, loads, regs, tmp, sleep=2, issued=False):
    retry_loop(name, loads, lambda: sentinel_check(regs, tmp), sleep, issued)


def lds_spin(name, off, want, vt, sleep=1):
    a('s_mov_b32 s61, 0')
    a(f'{name}_spin:')
    a(f'ds_read_b32 v{vt}, v{VC} offset:{off}')
    a('s_add_u32 s61, s61, 1')
    a('s_waitcnt lgkmcnt(0)')
    a(f'v_readfirstlane_b32 s60, v{vt}')
    a(f's_cmp_ge_u32 s60, {want}')
    a(f's_cbranch_scc1 {name}_go')
    a(f's_cmp_ge_u32 s61, {1 << 22}')
    a(f's_cbranch_scc1 {name}_go')
    a(f's_sleep {sleep}')
    a(f's_branch {name}_spin')
    a(f'{name}_go:')


def lds_inc(off):
    a('s_mov_b64 exec, 1')
    a(f'ds_add_u32 v{VC}, v{V1} offset:{off}')
    a('s_mov_b64 exec, -1')


XP = [4, 20]
N = [36, 52]
T = [68, 84]
WF = 100
MV = [116, 120]
AA = [124, 132]
YR = [140, 148]
XR = 36
VG8, VXA, VWA, VSA, VKL, VPR, VPW, VRA, VBIT = range(228, 237)


def ln_x(xr, wr):
    for r in range(2):
        for i in range(8):
            unpack(XP[r] + 2 * i, XP[r] + 2 * i + 1, xr + 8 * r + i)
    for i in range(8):
        unpack(WF + 2 * i, WF + 2 * i + 1, wr + i)
    srcs = [(XP[0], T[0]), (XP[1], T[0] + 8), (WF, T[1])]
    for i in range(4):
        for (sx, t) in srcs:
            pk('add', t + 2 * i, sx + 4 * i, sx + 4 * i + 2)
    for (_, b) in srcs:
        pk('add', b, b, b + 2)
        pk('add', b + 4, b + 4, b + 6)
    for (_, b) in srcs:
        pk('add', b, b, b + 4)
    for (_, b) in srcs:
        a(f'v_add_f32 v{b}, v{b}, v{b + 1}')
    K = T[1] + 8
    a(f'v_mov_b32 v{K}, 0x3a800000')
    wave_reduce('v_add_f32', [b for _, b in srcs])
    a(f'v_readlane_b32 s60, v{T[0]}, 63')
    a(f'v_readlane_b32 s62, v{T[0] + 8}, 63')
    a(f'v_readlane_b32 s71, v{T[1]}, 63')
    for r in range(2):
        M, V = MV[r], MV[r] + 2
        a(f'v_mul_f32 v{V}, s{60 + 2 * r}, v{K}')
    for r in range(2):
        M, V = MV[r], MV[r] + 2
        rnd(M, V)
        rnd(M + 1, V)
        a(f'v_sub_f32 v{V}, v{V}, v{M}')
        a(f'v_readfirstlane_b32 s{72 + r}, v{M}')
    for r in range(2):
        for i in range(8):
            pk('add', XP[r] + 2 * i, XP[r] + 2 * i, MV[r], mods='neg_lo:[0,1] neg_hi:[0,1]')
    for i in range(8):
        for r in range(2):
            if i == 0:
                pk('mul', AA[r], XP[r], XP[r])
            else:
                pk('fma', AA[r], XP[r] + 2 * i, XP[r] + 2 * i, AA[r])
    for r in range(2):
        a(f'v_add_f32 v{AA[r]}, v{AA[r]}, v{AA[r] + 1}')
        a(f'v_mul_f32 v{MV[r] + 2}, v{MV[r] + 2}, v{MV[r] + 2}')
    wave_reduce('v_add_f32', AA)
    for r in range(2):
        a(f'v_readlane_b32 s{60 + 2 * r}, v{AA[r]}, 63')
    for step in range(8):
        for r in range(2):
            V = MV[r] + 2
            if step == 0:
                a(f'v_fma_f32 v{V}, s{60 + 2 * r}, v{K}, -v{V}')
            elif step in (1, 3, 5):
                rnd(V, V)
            elif step == 2:
                a(f'v_add_f32 v{V}, 0x3727c5ac, v{V}')
            elif step == 4:
                a(f'v_sqrt_f32 v{V}, v{V}')
            elif step == 6:
                a(f'v_rcp_f32 v{V + 1}, v{V}')
            else:
                a(f'v_rcp_f32 v{V}, v{V}')
    for r in range(2):
        for i in range(16):
            rnd(N[r] + i, XP[r] + i)
    for r in range(2):
        for i in range(8):
            pk('mul', N[r] + 2 * i, N[r] + 2 * i, MV[r] + 2)
    for r in range(2):
        for i in range(16):
            rnd(N[r] + i, N[r] + i)


def key_poll(dst):
    a('v_lshlrev_b32 v4, 7, v1')
    a(f's_mov_b32 s65, {WS_KEYS}')
    a(f's_mov_b32 s66, {WS_KEYS + 8192}')
    if opt('kcan', 1):
        a('s_lshl_b32 s62, s3, 7')
        a(f's_add_u32 s62, s62, {WS_KEYS + 4}')
        a('s_mov_b64 exec, 1')
        retry_loop(a.newlabel('kc'), [f'buffer_load_dword v8, v4, {WSR}, s62 offen sc1'], lambda: a('v_cmp_ne_u32 vcc, s8, v8'), sleep=opt('kcsleep', 2))
        stamp('kcan')
    loads = [f'buffer_load_dwordx2 v[{16 + 2 * p}:{17 + 2 * p}], v4, {WSR}, s{65 + p} offen sc1' for p in range(2)]

    def chk():
        a('v_xor_b32 v8, s8, v17')
        a('v_xor_b32 v9, s8, v19')
        a('v_max_u32 v12, v16, v18')
        a('v_or_b32 v8, v8, v9')
        a('v_cmp_ne_u32 vcc, 0, v8')
    retry_loop(a.newlabel('pk'), loads, chk, sleep=opt('ksleep', 2))
    wave_reduce('v_max_u32', 12)
    a(f'v_readlane_b32 s{dst}, v12, 63')


def k_main():
    kernel_begin(a, KN)
    a('s_cmp_ge_u32 s2, 256')
    a('s_cbranch_scc1 main_done')
    stamp_begin(0)
    if opt('dbg', 0):
        a('s_load_dwordx2 s[100:101], s[0:1], 96')
    for sr, off in ((S_WS, 104), (S_K, 8), (S_V, 16), (S_SK, 24), (S_H, 32), (10, 40), (S_Q, 0), (S_WR, 56), (S_OUT, 88), (S_G, 64), (S_U, 72), (S_D, 80)):
        a(f's_load_dwordx2 s[{sr}:{sr + 1}], s[0:1], {off}')
    if CODEPF:
        a('s_getpc_b64 s[4:5]')
        a('pc0:')
        a('s_mov_b32 s6, main_done-pc0')
        a('s_mov_b32 s7, 0x00020000')
        a('s_lshr_b32 s3, s2, 3')
        a(f's_mul_i32 s3, s3, {CODEPF * 128}')
        a('v_lshlrev_b32 v3, 7, v0')
        a(f'v_cmp_gt_u32 vcc, {CODEPF}, v0')
        a('s_and_saveexec_b64 s[60:61], vcc')
        a('s_cbranch_execz no_codepf')
        a('buffer_load_dword v252, v3, s[4:7], s3 offen')
        a('no_codepf:')
        a('s_mov_b64 exec, -1')
    a('s_lshr_b32 s5, s2, 4')
    a('s_and_b32 s4, s2, 7')
    a('s_lshl_b32 s4, s4, 1')
    a('s_bfe_u32 s6, s2, 0x10003')
    a('s_or_b32 s4, s4, s6')
    a('s_lshl_b32 s2, s4, 4')
    a('s_or_b32 s2, s2, s5')
    a('v_lshrrev_b32 v3, 6, v0')
    a('v_and_b32 v1, 63, v0')
    a('v_readfirstlane_b32 s12, v3')
    a('v_lshlrev_b32 v2, 4, v1')
    a(f'v_mov_b32 v{VC}, {L_CNT}')
    a(f'v_mov_b32 v{V1}, 1')
    for r in range(6):
        a(f'v_mov_b32 v{144 + r}, 0')
    for r in range(4):
        a(f'v_mov_b32 v{240 + r}, -1')
    a('s_cmp_eq_u32 s12, 0')
    a('s_cbranch_scc0 no_cnt_init')
    a('s_mov_b64 exec, 1')
    a(f'ds_write_b128 v{VC}, v[144:147]')
    a(f'ds_write_b128 v{VC}, v[144:147] offset:16')
    a(f'ds_write_b128 v{VC}, v[144:147] offset:32')
    a('s_mov_b64 exec, -1')
    a('no_cnt_init:')
    for sr, n in ((S_WS, WS_SIZE), (S_K, MB4), (S_V, MB4), (S_SK, 8192), (S_H, 4096), (S_Q, MB4), (S_WR, 2048), (S_OUT, MB4),
                  (S_G, 1024 * 7168), (S_U, 1024 * 7168), (S_D, 3584 * 2048)):
        a(f's_mov_b32 s{sr + 2}, {n}')
        a(f's_mov_b32 s{sr + 3}, 0x00020000')
    a('s_and_b32 s13, s12, 3')
    if opt('gmix', 1):
        a('s_and_b32 s14, s12, 1')
        a('s_xor_b32 s4, s4, s14')
    a('s_lshr_b32 s14, s12, 2')
    if CPERM:
        a('s_bfe_u32 s15, s2, 0x20005')
        a('s_lshl_b32 s15, s15, 1')
        a('s_lshr_b32 s9, s2, 7')
        a('s_xor_b32 s9, s9, 1')
        a('s_or_b32 s15, s15, s9')
        a('s_and_b32 s9, s4, 1')
        a('s_lshl_b32 s7, s15, 1')
        a('s_or_b32 s7, s7, s9')
        a('s_lshl_b32 s15, s15, 5')
        a('s_and_b32 s9, s2, 31')
        a('s_or_b32 s15, s15, s9')
        a('s_lshl_b32 s15, s15, 2')
    else:
        a('s_mov_b32 s7, s4')
        a('s_lshl_b32 s15, s2, 2')
    a('s_add_u32 s15, s15, s13')
    a('s_lshr_b32 s3, s2, 1')
    a('v_and_b32 v4, 15, v1')
    a('v_lshrrev_b32 v5, 4, v1')
    a('v_and_b32 v10, 31, v1')
    a('v_lshrrev_b32 v11, 5, v1')
    a('v_lshrrev_b32 v6, 3, v1')
    a('v_lshlrev_b32 v8, 11, v6')
    a('v_lshlrev_b32 v6, 13, v6')
    a('v_and_b32 v7, 7, v1')
    a('v_lshl_add_u32 v6, v7, 4, v6')
    a('v_lshl_add_u32 v8, v7, 4, v8')
    a('s_lshl_b32 s62, s4, 17')
    a('s_lshl_b32 s63, s13, 11')
    a('s_add_u32 s62, s62, s63')
    a('s_lshl_b32 s63, s14, 21')
    a('s_add_u32 s62, s62, s63')
    a(f's_add_u32 s62, s62, {WS_KV}')
    a('s_lshl_b32 s63, s5, 7')
    a('s_add_u32 s62, s62, s63')
    a('s_add_u32 s63, s62, 0x10000')
    a('s_lshl_b32 s64, s12, 19')
    a('s_lshl_b32 s65, s5, 15')
    a('s_add_u32 s64, s64, s65')
    a('s_lshl_b32 s65, s7, 7')
    a('s_add_u32 s64, s64, s65')
    a('s_add_u32 s65, s64, 16384')
    a('s_sub_u32 s77, s64, 6144')
    a('s_cselect_b32 s77, 0x40000000, s77')
    a('s_lshl_b32 s79, s7, 9')
    a('v_lshlrev_b32 v9, 4, v10')
    a('s_lshl_b32 s67, s15, 12')
    a('s_lshl_b32 s70, s15, 1')
    a('s_and_b32 s70, s70, 0xfffffffc')
    a(f's_xor_b32 s68, s3, {RSW}')
    a('s_lshl_b32 s68, s68, 4')
    a('s_lshl_b32 s69, s13, 2')
    a('s_add_u32 s68, s68, s69')
    a('s_lshl_b32 s69, s68, 11')
    a('s_mul_i32 s66, s12, 4608')
    a(f's_add_u32 s66, s66, {L_P0}')
    a(f's_mov_b32 s6, {WS_EPOCH}')
    a('s_mov_b32 m0, s66')
    a('s_waitcnt lgkmcnt(0)')
    stamp('karg')
    if WSOFF:
        a(f's_add_u32 s{S_WS}, s{S_WS}, {WSOFF}')
        a(f's_addc_u32 s{S_WS + 1}, s{S_WS + 1}, 0')
    a(f's_load_dword s8, s[{S_WS}:{S_WS + 1}], s6')
    a('s_load_dword s9, s[10:11], s70')
    KR, VR, SKR = 16, 28, 36

    GL = 96
    a('s_cmp_eq_u32 s14, 0')
    a('s_cbranch_scc1 ld_kv')
    a(f's_add_u32 s{S_H}, s{S_H}, s67')
    a(f's_addc_u32 s{S_H + 1}, s{S_H + 1}, 0')
    a('s_barrier')
    for i in range(4):
        a(f'buffer_load_dwordx4 v[{GL + 6 * i}:{GL + 6 * i + 3}], v2, s[{S_H}:{S_H + 3}], 0 offen offset:{1024 * i} nt')
    if opt('hipos', 0) >= 8:
        lds_spin('kvq', 32, opt('hipos', 0) - 4, 3)
    elif opt('hipos', 0):
        a(f's_waitcnt vmcnt({4 - opt("hipos", 0)})')
    a('ld_kv:')
    a(f'buffer_load_dwordx4 v[{SKR}:{SKR + 3}], v9, s[{S_SK}:{S_SK + 3}], s79 offen')
    a('s_mov_b64 exec, 0xffffff')
    a(f'buffer_load_dwordx4 v8, s[{S_K}:{S_K + 3}], s77 offen nt lds')
    a('s_mov_b64 exec, -1')
    for (sr, so, lo) in ((S_K, 64, 384), (S_K, 65, 1408), (S_V, 64, 2432), (S_V, 65, 3456)):
        a(f's_add_u32 m0, s66, {lo}')
        a(f'buffer_load_dwordx4 v8, s[{sr}:{sr + 3}], s{so} offen nt lds')
    a('s_cmp_eq_u32 s14, 0')
    a('s_cbranch_scc0 ld_done')
    a('s_barrier')
    a('ld_done:')
    a(f's_mul_i32 s67, s13, {CS}')
    a('s_mov_b32 s74, 0x05040100')
    a('s_mov_b32 s75, 0x07060302')
    a('v_lshlrev_b32 v92, 10, v11')
    a('v_lshl_add_u32 v92, v10, 2, v92')
    a('v_add_u32 v92, s66, v92')
    a('v_add_u32 v93, 1024, v92')
    a('v_add_u32 v94, 2432, v92')
    a('v_lshrrev_b32 v8, 1, v10')
    a('v_mul_u32_u24 v8, 144, v8')
    a('v_and_b32 v9, 1, v10')
    a('v_lshl_add_u32 v8, v9, 6, v8')
    a('v_sub_u32 v9, 1, v11')
    a('v_lshl_add_u32 v8, v9, 4, v8')
    a('v_add_u32 v8, s66, v8')
    a('v_lshrrev_b32 v9, 3, v1')
    a('v_mul_u32_u24 v9, 144, v9')
    a('v_lshl_add_u32 v9, v7, 4, v9')
    a('v_add_u32 v9, s66, v9')
    a('v_add_u32 v160, s67, v2')
    a('v_and_b32 v161, 3, v1')
    a(f'v_mul_u32_u24 v161, {GS}, v161')
    a('v_bfe_u32 v162, v1, 2, 2')
    a('v_lshl_add_u32 v161, v162, 3, v161')
    a('v_lshl_add_u32 v161, v5, 4, v161')
    a('v_add_u32 v161, s67, v161')
    a(f's_add_u32 s60, s67, {UOFF + 480}')
    a('v_lshlrev_b32 v163, 5, v4')
    a('v_sub_u32 v162, s60, v163')
    a('v_lshl_add_u32 v162, v5, 4, v162')
    a('v_lshl_add_u32 v163, v5, 3, v163')
    a('s_lshl_b32 s60, s13, 12')
    a(f's_add_u32 s60, s60, {L_YL}')
    a('v_add_u32 v163, s60, v163')
    a('v_bfe_u32 v165, v1, 1, 2')
    a(f'v_mul_u32_u24 v165, {CS}, v165')
    a('v_and_b32 v166, 1, v1')
    a('v_lshl_add_u32 v165, v166, 4, v165')
    a('v_lshrrev_b32 v166, 3, v1')
    a('v_lshlrev_b32 v166, 5, v166')
    a('v_sub_u32 v165, v165, v166')
    a('s_lshl_b32 s60, s12, 9')
    a(f's_sub_u32 s60, {UOFF + 4064 - 256}, s60')
    a('v_add_u32 v165, s60, v165')
    a('s_lshl_b32 s78, s2, 13')
    a('s_lshl_b32 s60, s13, 11')
    a('s_add_u32 s78, s78, s60')
    a('s_lshl_b32 s60, s14, 21')
    a('s_add_u32 s78, s78, s60')
    a(f's_add_u32 s78, s78, {WS_KV}')
    a('v_lshl_add_u32 v166, v5, 3, v4')
    a('v_sub_u32 v166, 15, v166')
    a('v_and_b32 v167, 1, v166')
    a('v_lshlrev_b32 v167, 4, v167')
    a('v_ashrrev_i32 v166, 1, v166')
    a(f'v_mul_u32_u24 v150, {GS}, v1')
    a('v_add_u32 v150, s67, v150')
    a('v_lshlrev_b32 v245, 7, v4')
    a('v_bfe_u32 v248, v1, 3, 2')
    a('v_lshlrev_b32 v248, 13, v248')
    a('v_lshl_add_u32 v248, v7, 7, v248')
    a('v_lshlrev_b32 v251, 4, v0')
    a(f'v_lshrrev_b32 v{VG8}, 3, v0')
    a(f'v_lshlrev_b32 v{VG8}, 3, v{VG8}')
    a(f'v_mul_u32_u24 v{VXA}, {2 * RS}, v7')
    a(f'v_add_u32 v{VXA}, v{VXA}, v{VG8}')
    a(f'v_add_u32 v{VXA}, {L_YT}, v{VXA}')
    a(f'v_add_u32 v{VWA}, {L_W}, v{VG8}')
    a(f'v_lshlrev_b32 v{VSA}, 5, v7')
    a(f'v_add_u32 v{VSA}, {L_ST}, v{VSA}')
    a(f'v_bfe_u32 v{VKL}, v1, 3, 1')
    a(f'v_lshl_add_u32 v{VKL}, v7, 1, v{VKL}')
    a(f'v_mul_u32_u24 v{VPR}, {PS}, v{VKL}')
    a(f'v_lshl_add_u32 v{VPR}, v5, 6, v{VPR}')
    a(f'v_lshl_add_u32 v{VPW}, v7, 1, v11')
    a(f'v_mul_u32_u24 v{VPW}, {PS}, v{VPW}')
    a('v_and_b32 v3, 1, v5')
    a(f'v_lshl_add_u32 v{VPW}, v3, 4, v{VPW}')
    a('s_lshl_b32 s60, s12, 5')
    a(f'v_add_u32 v{VPW}, s60, v{VPW}')
    a(f's_xor_b32 s60, s3, {RSW}')
    a('s_lshl_b32 s60, s60, 4')
    a('s_sub_u32 s60, 2047, s60')
    a(f'v_sub_u32 v{VKL}, s60, v{VKL}')
    a(f's_mul_i32 s60, s13, {4 * RS}')
    a(f's_add_u32 s60, s60, {L_YT}')
    a(f'v_add_u32 v{VRA}, s60, v2')
    a(f'v_lshrrev_b32 v{VBIT}, 3, v1')
    a(f'v_lshlrev_b32 v{VBIT}, v{VBIT}, 1')
    a('v_and_b32 v253, 255, v0')
    a('v_lshlrev_b32 v253, 3, v253')
    a('v_lshlrev_b32 v237, 1, v253')
    a(f'v_lshlrev_b32 v247, {SH}, v5')
    a('v_lshl_add_u32 v247, v4, 4, v247')
    a('s_mov_b64 exec, 0xf')
    a('ds_write_b128 v150, v[144:147]')
    a('s_mov_b64 exec, 0x3fffffff')
    a(f'ds_write_b128 v160, v[144:147] offset:{UOFF + 4096}')
    a('s_mov_b64 exec, -1')
    WFp, KF, O, PKD = 40, 48, 70, 86
    a('s_waitcnt lgkmcnt(0)')
    a('s_add_u32 s8, s8, 0x9e3779b9')
    a('s_or_b32 s8, s8, 1')
    a('s_and_b32 s61, s15, 1')
    a('s_lshl_b32 s61, s61, 4')
    a('s_lshr_b32 s9, s9, s61')
    a('s_and_b32 s9, s9, 0xffff')
    a('v_lshlrev_b32 v167, v167, s9')
    for r in range(4):
        a(f'v_cmp_eq_u32 vcc, {r}, v166')
        a(f'v_cndmask_b32 v{168 + r}, 0, v167, vcc')
    a('s_lshl_b32 s64, s4, 11')
    a(f's_add_u32 s64, s64, {WS_FA}')
    a('s_lshl_b32 s65, s2, 7')
    a('s_lshr_b32 s15, s15, 2')
    a('s_lshl_b32 s15, s15, 7')
    a(f's_add_u32 s7, s15, {WS_FB}')
    a(f's_add_u32 s65, s65, {WS_FA}')
    a('v_mov_b32 v13, s8')
    a('v_mov_b32 v14, 0')
    a(f's_add_u32 s10, s65, {WS_FA2 - WS_FA}')
    a('s_cmp_eq_u32 s12, 0')
    a('s_cselect_b32 s60, s10, 0x40000000')
    a('s_mov_b64 exec, 0xff')
    a(f'buffer_store_dwordx4 v[144:147], v2, {WSR}, s60 offen')
    a('s_mov_b64 exec, -1')
    XV = 1
    a('s_lshl_b32 s60, s12, 2')
    a('s_add_u32 s64, s64, s60')
    a('s_add_u32 s65, s65, s60')
    a('s_add_u32 s10, s10, s60')
    a(f's_add_u32 s11, s64, {WS_FA2 - WS_FA}')
    if DYN:
        a('s_memrealtime s[4:5]')
    a('s_cmp_eq_u32 s14, 0')
    a('s_cbranch_scc1 p0')
    LATER = 6 + XV
    a(f's_waitcnt vmcnt({LATER + 3})')
    a(f'v_readlane_b32 s76, v{GL}, 0')
    a(f'v_readlane_b32 s77, v{GL + 1}, 0')
    a('s_lshl_b32 s70, s76, 16')
    a('s_lshr_b32 s61, s76, 16')
    a('s_lshl_b32 s71, s77, 16')
    a('s_or_b32 s61, s61, s71')
    a('v_writelane_b32 v149, s70, 0')
    a('v_writelane_b32 v149, s76, 1')
    a('v_writelane_b32 v149, s61, 2')
    a('v_writelane_b32 v149, s77, 3')
    a('v_writelane_b32 v148, s70, 2')
    a('v_writelane_b32 v148, s76, 3')
    a('s_mov_b64 exec, 0xf')
    a('ds_write_b128 v150, v[146:149] offset:16')
    a('s_mov_b64 exec, -1')
    for i in range(4):
        w = GL + 6 * i
        a(f'v_mov_b32_dpp v{w + 4}, v{w} wave_shl:1 row_mask:0xf bank_mask:0xf bound_ctrl:0')
        a(f'v_mov_b32_dpp v{w + 5}, v{w + 1} wave_shl:1 row_mask:0xf bank_mask:0xf bound_ctrl:0')
        if i < 3:
            a(f's_waitcnt vmcnt({LATER + 2 - i})')
            a(f'v_readlane_b32 s70, v{w + 6}, 0')
            a(f'v_readlane_b32 s71, v{w + 7}, 0')
            a(f'v_writelane_b32 v{w + 4}, s70, 63')
            a(f'v_writelane_b32 v{w + 5}, s71, 63')
        ta, tb, tc = 176 + 12 * i, 180 + 12 * i, 184 + 12 * i
        a(f'ds_write_b128 v160, v[{w + 2}:{w + 5}] offset:{32 + 1024 * i + 3 * GS}')
        for j in range(4):
            a(f'v_alignbit_b32 v{ta + j}, v{w + j + 1}, v{w + j}, 16')
        a(f'ds_write_b128 v160, v[{ta}:{ta + 3}] offset:{32 + 1024 * i + 0 * GS}')
        for j in range(4):
            a(f'v_alignbit_b32 v{tb + j}, v{w + j + 2}, v{w + j + 1}, 16')
        a(f'ds_write_b128 v160, v[{tb}:{tb + 3}] offset:{32 + 1024 * i + 2 * GS}')
        for j in range(4):
            a(f'v_mov_b32 v{tc + j}, v{w + j + 1}')
        a(f'ds_write_b128 v160, v[{tc}:{tc + 3}] offset:{32 + 1024 * i + 1 * GS}')
    lds_inc(20)
    a(f'v_add_u32 v239, {L_W}, v2')
    a('v_and_b32 v244, 1, v5')
    a('v_lshl_add_u32 v244, v244, 1, v11')
    a('v_lshlrev_b32 v244, 4, v244')
    a('s_lshl_b32 s60, s13, 6')
    a(f's_add_u32 s60, s60, {L_ST}')
    a('v_add_u32 v244, s60, v244')
    a('s_waitcnt lgkmcnt(0)')
    for p in range(4):
        a(f'v_mov_b32 v{YR[0] + 4 * p}, -1')
    a('s_lshl_b32 s60, s13, 5')
    a(f's_add_u32 s60, s60, {L_X}')
    a('v_mov_b32 v201, s60')
    a(f'v_mul_u32_u24 v203, {RP}, v4')
    a('v_lshl_add_u32 v203, v5, 5, v203')
    a(f's_mul_i32 s60, s13, {16 * RP}')
    a('v_add_u32 v203, s60, v203')
    a(f'v_mul_u32_u24 v205, {RP}, v5')
    a('v_lshl_add_u32 v205, v4, 4, v205')
    a(f's_mul_i32 s60, s13, {4 * RP}')
    a('v_add_u32 v205, s60, v205')
    stamp('gdone')
    a('p0:')
    a(f's_waitcnt vmcnt({5 + XV})')
    for jj in range(2):
        unpack(WFp + 0 + jj, WFp + 2 + jj, SKR + 2 * jj)
        unpack(WFp + 4 + jj, WFp + 6 + jj, SKR + 2 * jj + 1)
    a(f's_waitcnt vmcnt({2 + XV})')
    stamp('kdata')
    for r in range(0, 8, 2):
        a(f'ds_read2_b32 v[{KR + r}:{KR + r + 1}], v92 offset0:{32 * r} offset1:{32 * r + 32}')
    a(f'ds_read2_b32 v[{KR + 8}:{KR + 9}], v93 offset0:0 offset1:32')
    a(f'ds_read_b32 v{KR + 10}, v93 offset:256')
    a(f's_waitcnt vmcnt({0 + XV})')
    for r in range(0, 8, 2):
        a(f'ds_read2_b32 v[{VR + r}:{VR + r + 1}], v94 offset0:{32 * r} offset1:{32 * r + 32}')
    for r in range(11):
        if r % 2 == 0:
            a(f's_waitcnt lgkmcnt({9 - r // 2})')
        unpack(KF + 2 * r, KF + 2 * r + 1, KR + r)
    for t in range(4):
        tap = 3 - t
        for r in range(8):
            if t == 0:
                pk('mul', O + 2 * r, KF + 2 * (r + t), WFp + 2 * tap)
            else:
                pk('fma', O + 2 * r, KF + 2 * (r + t), WFp + 2 * tap, O + 2 * r)
    a('s_waitcnt lgkmcnt(0)')
    for r in range(8):
        unpack(KF + 2 * r, KF + 2 * r + 1, VR + r)
    for r in range(8):
        pk('mul', O + 2 * r, O + 2 * r, KF + 2 * r)
    for jj in range(2):
        d = PKD + 2 + 4 * jj
        for m in range(4):
            a(f'v_cvt_pk_bf16_f32 v{d + m}, v{O + 2 * (7 - 2 * m) + jj}, v{O + 2 * (6 - 2 * m) + jj}')
        a(f'ds_write_b128 v8, v[{d}:{d + 3}] offset:{32 * jj}')
    a('s_waitcnt lgkmcnt(0)')
    if opt('hhold', 0):
        a('s_cmp_eq_u32 s14, 0')
        a('s_cbranch_scc1 hh_go')
        lds_spin('hh', 32, opt('hhold', 0), 3)
    a('ds_read_b128 v[16:19], v9')
    a(f'ds_read_b128 v[20:23], v9 offset:{8 * 144}')
    a('s_waitcnt lgkmcnt(1)')
    a(f'buffer_store_dwordx4 v[16:19], v6, {KVR}, s62 offen sc1')
    a('s_waitcnt lgkmcnt(0)')
    a(f'buffer_store_dwordx4 v[20:23], v6, {KVR}, s63 offen sc1')
    stamp('kvst')
    if opt('hipos', 0) == 8:
        lds_inc(32)
    UP = 120
    a('s_waitcnt vmcnt(0)')
    stamp('kvack')
    a('s_mov_b64 exec, 1')
    a(f'buffer_store_dword v13, v14, {WSR}, s10 offen')
    FL2 = opt('fl2', 1)
    if not FL2:
        a(f'buffer_store_dword v13, v14, {WSR}, s65 offen sc1')
    EX, EF = opt('ex', 0), opt('ef', 0)
    GW, XH = 64, 68

    def gu_base():
        a('s_and_b32 s76, s3, 15')
        a('s_lshl_b32 s77, s76, 2')
        a('s_add_u32 s77, s77, s13')
        a(f's_mul_i32 s77, s77, {16 * 7168}')
        a('s_lshr_b32 s60, s3, 4')
        a('s_lshl_b32 s60, s60, 10')
        a('s_add_u32 s77, s77, s60')
    steps = []
    for i in range(16):
        for m, sr in ((0, S_G), (1, S_U)):
            r = GW + 64 * m + 4 * i
            steps.append([f'buffer_load_dwordx4 v[{r}:{r + 3}], v2, s[{sr}:{sr + 3}], s77 offen nt'])
        steps[-1].append('s_add_u32 s77, s77, 7168')

    def x_load(i):
        a(f'buffer_load_dwordx4 v[{XH + 4 * i}:{XH + 4 * i + 3}], v2, s[{S_Q}:{S_Q + 3}], s{69 + (i >> 2)} offen offset:{1024 * (i & 3)} nt')
    if EX or EF:
        a('s_mov_b64 exec, -1')
        a('s_cmp_eq_u32 s14, 0')
        a('s_cbranch_scc1 early_done')
        gu_base()
        a('s_add_u32 s70, s69, 4096')
        lds_spin('eh', 32, 4, 3)
        a('s_bitcmp0_b32 s2, 0')
        a('s_cbranch_scc0 early_ffn')
        for i in range(EX):
            x_load(i)
        a('s_branch early_done')
        a('early_ffn:')
        a('s_cmp_lt_u32 s3, 112')
        a('s_cbranch_scc0 early_done')
        for k in range(EF):
            for l in steps[k]:
                a(l)
        a('early_done:')
    a('s_mov_b64 exec, 0xffff')
    a('s_mov_b32 s61, 0')
    a('fa2_again:')
    a(f'buffer_load_dword v246, v245, {WSR}, s11 offen sc1')
    a('s_add_u32 s61, s61, 1')
    a('s_waitcnt vmcnt(0)')
    a('v_cmp_ne_u32 vcc, s8, v246')
    a('s_cbranch_vccz fa_ok')
    a('s_mov_b64 exec, vcc')
    if opt('fa2sleep', 0):
        a(f's_sleep {opt("fa2sleep", 0)}')
    a(f's_cmp_lt_u32 s61, {DUAL}')
    a('s_cbranch_scc1 fa2_again')
    if FL2:
        a(f'buffer_store_dword v13, v14, {WSR}, s65 offen sc1')
    retry_loop('fa', [f'buffer_load_dword v246, v245, {WSR}, s64 offen sc1'], lambda: a('v_cmp_ne_u32 vcc, s8, v246'), sleep=opt('fasleep', 1))
    stamp('faok')
    for q in range(2):
        a(f'buffer_load_dwordx4 v[{UP + 4 * q}:{UP + 4 * q + 3}], v2, {KVR}, s78 offen offset:{1024 * q}{KVL}')
    if FL2:
        a('s_mov_b64 exec, 1')
        a(f'buffer_store_dword v13, v14, {WSR}, s65 offen sc1')
        a('s_mov_b64 exec, -1')
    a('s_cmp_eq_u32 s14, 0')
    a('s_cbranch_scc0 helper')

    ACC = 16
    FA_ = [48, 196]
    FB_ = [80, 112]

    def readsA(s, c):
        out = []
        for j in range(8):
            out.append(f'ds_read_b64 v[{s + 4 * j}:{s + 4 * j + 1}], v161 offset:{64 * (8 * j + c)}')
            out.append(f'ds_read_b64 v[{s + 4 * j + 2}:{s + 4 * j + 3}], v161 offset:{64 * (8 * j + c) + 8}')
        return out

    def readsB(s, c):
        return [f'ds_read_b128 v[{s + 4 * z}:{s + 4 * z + 3}], v162 offset:{64 * (56 - (8 * z - c))}' for z in range(8)]

    def y_fill():
        a('v_bfe_u32 v182, v0, 3, 5')
        a('v_lshlrev_b32 v182, 15, v182')
        a('v_lshl_add_u32 v182, v7, 4, v182')
        a('s_mov_b32 s62, s15')
        for q in range(4):
            a(f'buffer_store_dwordx4 v[240:243], v182, {XBR}, s62 offen sc1')
            if q < 3:
                a('s_add_u32 s62, s62, 0x100000')

    if opt('hhold', 0) or EX or EF:
        lds_inc(32)
    lds_spin('g4', 20, 4, 153)
    for r in readsA(FA_[0], 0):
        a(r)
    for q in range(2):
        a(f's_waitcnt vmcnt({1 - q + FL2})')
        a(f'ds_write_b128 v165, v[{UP + 4 * q}:{UP + 4 * q + 3}] offset:{256 - 256 * q}')
    lds_inc(12)
    stamp('u0')
    if FILLBY == 1 and opt('fst', -1) < 0:
        y_fill()
    lds_spin('u4', 12, 4, 153)
    stamp('mf0')
    for r in readsB(FB_[0], 0)[:4]:
        a(r)

    def mfma(w, A, B, init=False):
        c = '0' if init else f'v[{ACC + 4 * w}:{ACC + 4 * w + 3}]'
        a(f'v_mfma_f32_16x16x32_bf16 v[{ACC + 4 * w}:{ACC + 4 * w + 3}], v[{A}:{A + 3}], v[{B}:{B + 3}], {c}')

    def ystage(w):
        E = 172 + 2 * (w & 3)
        return [f'v_cvt_pk_bf16_f32 v{E}, v{ACC + 4 * w}, v{ACC + 4 * w + 1}',
                f'v_cvt_pk_bf16_f32 v{E + 1}, v{ACC + 4 * w + 2}, v{ACC + 4 * w + 3}',
                f'ds_write_b64 v163, v[{E}:{E + 1}] offset:{512 * w}']

    gsetup = ['v_lshlrev_b32 v180, 2, v0', f'v_add_u32 v180, {L_YL}, v180', 'v_add_u32 v181, 0x2000, v180',
              'v_lshrrev_b32 v182, 3, v0', 'v_lshlrev_b32 v182, 15, v182', 'v_lshl_add_u32 v182, v7, 4, v182',
              's_mov_b32 s62, s15', 's_add_u32 s63, s62, 0x100000', 's_add_u32 s64, s62, 0x200000', 's_add_u32 s65, s62, 0x300000',
              's_lshl_b32 s6, s12, 10', f's_add_u32 s6, s6, {WS_FB}',
              's_bitcmp0_b32 s2, 0', 's_cselect_b32 s66, s69, 0x40000000', 's_cselect_b32 s70, 0, 0x40000000', 's_cselect_b32 s71, s6, 0x40000000']
    WR2 = 152

    def gather(p0_, sregs, GR, GP):
        rd, out = [], []
        for ch in range(4):
            base = 180 + (ch >> 1)
            rd.append(f'ds_read2st64_b32 v[{GR + 2 * ch}:{GR + 2 * ch + 1}], v{base} offset0:{16 * (ch & 1) + 4 * p0_} offset1:{16 * (ch & 1) + 4 * p0_ + 4}')
        for p in range(2):
            g = GP + 4 * p
            out.append(f'v_perm_b32 v{g}, v{GR + 2 + p}, v{GR + p}, s74')
            out.append(f'v_perm_b32 v{g + 1}, v{GR + 6 + p}, v{GR + 4 + p}, s74')
            out.append(f'v_perm_b32 v{g + 2}, v{GR + 2 + p}, v{GR + p}, s75')
            out.append(f'v_perm_b32 v{g + 3}, v{GR + 6 + p}, v{GR + 4 + p}, s75')
            out.append(f'buffer_store_dwordx4 v[{g}:{g + 3}], v182, {XBR}, s{sregs[p]} offen sc1')
        return rd, out

    fbload = f'buffer_load_dword v249, v248, {WSR}, s6 offen sc1'
    PY = YR[0]
    YM = 16

    GM = 48

    def y_setup(regs=True):
        for p in range(4):
            a(f's_mov_b64 s[{YM + 2 * p}:{YM + 2 * p + 1}], -1')
            if regs:
                a(f'v_mov_b32 v{PY + 4 * p}, -1')
        a(f's_xor_b32 s24, s3, {RSW}')
        a('s_lshl_b32 s24, s24, 15')
        for p in range(1, 4):
            a(f's_add_u32 s{24 + p}, s24, {8192 * p}')
        a('s_mov_b64 s[0:1], -1')

    def fb_check():
        lab = a.newlabel('fbk')
        a('s_cmp_eq_u32 s0, 0')
        a(f's_cbranch_scc1 {lab}')
        a('v_cmp_ne_u32 s[0:1], s8, v249')
        for p in range(4):
            a(f's_lshr_b32 s9, s0, {8 * p}')
            a(f'v_and_b32 v250, s9, v{VBIT}')
            a(f'v_cmp_eq_u32 s[{GM + 2 * p}:{GM + 2 * p + 1}], 0, v250')
        a(f'{lab}:')

    def y_issue():
        lab = a.newlabel('yf')
        a('s_mov_b32 exec_lo, s0')
        a('s_mov_b32 exec_hi, 0')
        a(f's_cbranch_execz {lab}')
        a(fbload)
        a(f'{lab}:')
        for p in range(4):
            lab = a.newlabel('yi')
            a(f's_and_b64 exec, s[{YM + 2 * p}:{YM + 2 * p + 1}], s[{GM + 2 * p}:{GM + 2 * p + 1}]')
            a(f's_cbranch_execz {lab}')
            a(f'buffer_load_dwordx4 v[{PY + 4 * p}:{PY + 4 * p + 3}], v251, {XBR}, s{24 + p} offen sc1')
            a(f'{lab}:')
        a('s_mov_b64 exec, -1')

    def y_check():
        a('s_waitcnt vmcnt(0)')
        fb_check()
        for p in range(4):
            a(f'v_max3_u32 v250, v{PY + 4 * p}, v{PY + 4 * p + 1}, v{PY + 4 * p + 2}')
            a(f'v_max_u32 v250, v250, v{PY + 4 * p + 3}')
            a(f'v_cmp_eq_u32 s[{YM + 2 * p}:{YM + 2 * p + 1}], -1, v250')
        a(f's_or_b64 s[28:29], s[{YM}:{YM + 1}], s[{YM + 2}:{YM + 3}]')
        a(f's_or_b64 s[30:31], s[{YM + 4}:{YM + 5}], s[{YM + 6}:{YM + 7}]')
        a('s_or_b64 s[28:29], s[28:29], s[30:31]')

    AC = [116, 122]
    ST = [128, 132]
    TY = 68

    def prep_a():
        lds_spin(a.newlabel('xr'), 12, 8, 3)
        RX, RW = 76, 92
        for r in range(2):
            for p in range(4):
                a(f'ds_read_b64 v[{RX + 8 * r + 2 * p}:{RX + 8 * r + 2 * p + 1}], v{VXA} offset:{512 * p + RS * r}')
        for p in range(4):
            a(f'ds_read_b64 v[{RW + 2 * p}:{RW + 2 * p + 1}], v{VWA} offset:{512 * p}')
        for i in range(0, 12, 2):
            a(f'v_mov_b64 v[{AC[0] + i}:{AC[0] + i + 1}], 0')
        a('s_mov_b32 s72, 0')
        for r in range(2):
            a(f's_waitcnt lgkmcnt({8 - 4 * r})')
            for i in range(8):
                unpack(XP[r] + 2 * i, XP[r] + 2 * i + 1, RX + 8 * r + i)
        a('s_waitcnt lgkmcnt(0)')
        for i in range(8):
            unpack(WF + 2 * i, WF + 2 * i + 1, RW + i)

    def prep_b():
        lds_spin(a.newlabel('xs'), 28, 4, 3)
        for r in range(2):
            a(f'ds_read_b128 v[{ST[r]}:{ST[r] + 3}], v{VSA} offset:{16 * r}')
        a(f'ds_read_b32 v3, v{VC} offset:{L_SW - L_CNT}')
        for r in range(2):
            a(f's_waitcnt lgkmcnt({2 - r})')
            for i in range(8):
                pk('fma', N[r] + 2 * i, XP[r] + 2 * i, ST[r] + 2, ST[r])
        a('s_waitcnt lgkmcnt(0)')
        a('v_readfirstlane_b32 s71, v3')
        stamp('lnx')

    def y_fold():
        for p in range(4):
            lab = a.newlabel('yd')
            a(f's_bitcmp1_b32 s72, {p}')
            a(f's_cbranch_scc1 {lab}')
            a(f's_cmp_eq_u64 s[{YM + 2 * p}:{YM + 2 * p + 1}], 0')
            a(f's_cbranch_scc0 {lab}')
            a(f's_bitset1_b32 s72, {p}')
            for i in range(4):
                unpack(TY + 2 * i, TY + 2 * i + 1, PY + 4 * p + i)
            for i in range(4):
                e = XP[i >> 1] + 4 * p + 2 * (i & 1)
                pk('fma', e, TY + 2 * i, N[i >> 1] + 4 * p + 2 * (i & 1), e)
            for k in range(2):
                for r in range(2):
                    e = XP[r] + 4 * p + 2 * k
                    pk('add', AC[r], AC[r], e)
                    pk('fma', AC[r] + 2, e, e, AC[r] + 2)
                    pk('fma', AC[r] + 4, e, WF + 4 * p + 2 * k, AC[r] + 4)
            a(f'{lab}:')

    def spread(pairs, low_first=False):
        out, left = [], list(pairs)
        if low_first:
            left.sort(key=lambda q: q[0])

        def feasible(rest, prev):
            cnt = {}
            for q in rest:
                cnt[q[0]] = cnt.get(q[0], 0) + 1
            n = len(rest)
            return all(c <= (n + 1) // 2 - (1 if (w == prev and n % 2 == 1) else 0) for w, c in cnt.items())
        while left:
            recent = [q[0] for q in out[-2:]]
            pick = None
            for avoid in (recent, recent[-1:]):
                for q in left:
                    if q[0] in avoid:
                        continue
                    rest = list(left)
                    rest.remove(q)
                    if feasible(rest, q[0]):
                        pick = q
                        break
                if pick:
                    break
            assert pick
            out.append(pick)
            left.remove(pick)
        return out

    def stage_reads(st):
        sa, sb = FA_[st & 1], FB_[st & 1]
        if st < 8:
            return readsB(sb, st)[:4] + readsA(sa, st)
        out = []
        for hf in range(2):
            c = 2 * (st - 8) + hf
            out += readsB(sb + 16 * hf - 16, c)[4:] + readsA(sa + 16 * hf, c)[:8]
        return out

    NST = 12
    for st in range(NST):
        sa, sb = FA_[st & 1], FB_[st & 1]
        a('s_waitcnt lgkmcnt(0)')
        if st == 7:
            a('v_readfirstlane_b32 s60, v164')
            a('s_cmp_ge_u32 s60, 4')
            a('s_cbranch_scc1 uhi_go')
            lds_spin('uhi', 0, 4, 164)
            stamp('uhi')
        if st == FLC and FILLBY:
            a('s_waitcnt vmcnt(0)')
            a('s_mov_b64 exec, 1')
            a(f'ds_add_rtn_u32 v12, v{VC}, v{V1} offset:4')
            a(f'ds_add_u32 v{VC}, v{V1} offset:8')
            a('s_mov_b64 exec, -1')
            stamp('fillB')
        if st == FLC + 1 and FILLBY:
            a('s_mov_b64 exec, 1')
            a('v_cmp_eq_u32 vcc, 3, v12')
            a('v_cndmask_b32 v14, -16, v14, vcc')
            a(f'buffer_store_dword v13, v14, {WSR}, s7 offen sc1')
            a('s_mov_b64 exec, -1')
        fill = stage_reads(st + 1) if st + 1 < NST else []
        if st == 6:
            fill = fill + [f'ds_read_b32 v164, v{VC} offset:0']
        if st == FBC:
            fill = [f'ds_write_b32 v{VC}, v{V1} offset:24'] + fill
        if st == opt('fbc2', 10):
            fill = [fbload.replace('s6 ', 's71 ')] + fill
        if st == opt('fst', -1):
            assert st >= 1
            fill = [f'buffer_store_dwordx4 v[240:243], v182, {XBR}, s{62 + q} offen sc1' for q in range(4)] + fill
        if st == 0:
            fill = fill + gsetup[:12]
        if st == 1:
            for l in gsetup[12:]:
                a(l)
        if st in (8, 9) and not YLO:
            for w in (2 * (st - 8), 2 * (st - 8) + 1):
                fill = fill + ystage(w)
        if YLO:
            rlo, olo = gather(0, (62, 63), 184, 144)
            if st == 8:
                lds_inc(20)
                fill = fill + [f'ds_read_b32 v164, v{VC} offset:20']
            if st == 9:
                a('v_readfirstlane_b32 s60, v164')
                a('s_cmp_ge_u32 s60, 8')
                a('s_cbranch_scc1 ylo_go')
                lds_spin('ylo', 20, 8, 164)
                fill = rlo + fill
            if st == 10:
                fill = olo + fill
        if st < 8:
            pairs = [(n + z, sa + 4 * n, sb + 4 * z) for n in range(8) for z in range(min(4, 8 - n))]
            if st == 0:
                pairs = [(z, 168, sb + 4 * z) for z in range(4)] + pairs
        else:
            pairs = []
            for hf in range(2):
                pairs += [(n + z, sa + 16 * hf + 4 * n, sb + 16 * hf + 4 * (z - 4)) for n in range(4) for z in range(4, 8 - n)]
            if st == 8:
                pairs = [(z, 168, sb + 4 * (z - 4)) for z in range(4, 8)] + pairs
        order = spread(pairs, st in (7, NST - 1))
        seen = set() if st == 0 else set(range(8))
        last = {q[0]: i for i, q in enumerate(order)}
        pend = []
        nper = -(-len(fill) // (len(order) - (4 if st >= 7 else 0)))
        for i, (w, A, B) in enumerate(order):
            mfma(w, A, B, w not in seen)
            seen.add(w)
            for _ in range(nper):
                if fill:
                    a(fill.pop(0))
            if st == NST - 1 or (st == 7 and YLO):
                if last[w] == i and (st != 7 or w < 4):
                    pend.append([w, 0])
                for q in pend:
                    q[1] += 1
                if pend and pend[0][1] > 3:
                    for l in ystage(pend.pop(0)[0]):
                        a(l)
        assert not fill
        assert st == NST - 1 or not pend
    for w0, _ in pend:
        for l in ystage(w0):
            a(l)
    stamp('s1end')
    if opt('cprio', 1):
        a('s_setprio 2')
    lds_inc(8)
    lds_spin('c2', 8, 8, 166)
    if GXL and DWHO:
        a('s_and_b32 s60, s2, 1')
        a('s_cmp_lt_u32 s3, 112')
        a('s_cselect_b32 s60, s60, 0')
        a('s_cmp_eq_u32 s60, 0')
        a('s_cbranch_scc1 ib_go')
        lds_spin('ib', 28, 4, 166)
    (r0, o0), (r1, o1) = gather(0, (62, 63), 184, 196), gather(2, (64, 65), 164, 204)
    if YLO:
        tail = r1 + ['s_waitcnt lgkmcnt(0)'] + o1
    else:
        tail = r0 + r1 + ['s_waitcnt lgkmcnt(4)'] + o0 + ['s_waitcnt lgkmcnt(0)'] + o1
    for l in tail:
        a(l)
    stamp('yst')
    if opt('cprio', 1):
        a('s_setprio 0')
    lds_inc(8)
    a('s_bitcmp0_b32 s2, 0')
    a('s_cbranch_scc0 conv_ffn')
    a(f's_waitcnt vmcnt({2 if YLO else 4})')
    y_setup()
    fb_check()
    YF = opt('yfirst', 0)
    if YF:
        a('s_cmp_lt_u32 s3, 64')
        a('s_cbranch_scc0 yf_skip')
    y_issue()
    a('yf_skip:')
    prep_a()
    prep_b()
    a('s_branch rows')

    a('helper:')
    for q in range(2):
        a(f's_waitcnt vmcnt({1 - q + FL2})')
        a(f'ds_write_b128 v165, v[{UP + 4 * q}:{UP + 4 * q + 3}] offset:{256 - 256 * q}')
    lds_inc(0)
    stamp('u0')
    if FILLBY == 0:
        lds_spin('uw', UWOFF, 4, 28)
        y_fill()

    def fb_publish():
        if FILLBY:
            return
        a('s_mov_b64 exec, 1')
        a(f'ds_add_rtn_u32 v12, v{VC}, v{V1} offset:4')
        a(f'ds_add_u32 v{VC}, v{V1} offset:8')
        a('s_waitcnt lgkmcnt(0)')
        a('v_cmp_eq_u32 vcc, 3, v12')
        a('v_cndmask_b32 v14, -16, v14, vcc')
        a(f'buffer_store_dword v13, v14, {WSR}, s7 offen sc1')
        a('s_mov_b64 exec, -1')
        stamp('fillB')
    if FILLBY:
        lds_spin('uw', UWOFF, 4, 28)
    a(f's_lshl_b32 s61, s3, {SH}')
    a('s_bitcmp0_b32 s2, 0')
    a('s_cbranch_scc0 helper_ffn')
    a(f's_add_u32 s62, s61, {WS_CAND}')
    a(f's_add_u32 s63, s61, {WS_PART}')
    a(f's_add_u32 s79, s61, {WS_GX}')
    DW = 156
    DSP = opt('dsp', 1)

    def d_base():
        if DSP:
            a('s_lshr_b32 s78, s3, 4')
            a('s_lshl_b32 s78, s78, 20')
            a('s_and_b32 s60, s3, 15')
            a('s_lshl_b32 s60, s60, 14')
            a('s_add_u32 s78, s78, s60')
        else:
            a('s_lshl_b32 s78, s3, 16')

    def d_list(DW):
        return [[f'buffer_load_dwordx2 v[{DW + 2 * r}:{DW + 2 * r + 1}], v253, s[{S_D}:{S_D + 3}], s78 offen offset:{(r & 1) * 2048} nt']
                + ([f's_add_u32 s78, s78, {4096 + (262144 - 16384 if DSP and r % 8 == 7 else 0)}'] if r & 1 else []) for r in range(32)]
    d_base()
    dl = d_list(DW)
    XH, WH = 68, 100
    stamp('xiss')
    a('s_add_u32 s70, s69, 4096')
    for i in range(EX, 8):
        x_load(i)
    for i in range(2):
        a(f'buffer_load_dwordx4 v[{WH + 4 * i}:{WH + 4 * i + 3}], v2, s[{S_WR}:{S_WR + 3}], 0 offen offset:{1024 * i}')
    if not FILLBY:
        a('s_waitcnt vmcnt(10)')
        fb_publish()
    if opt('reuse', 0):
        assert not DWHO
        lds_spin('ru0', 0, 4, 3)
        lds_spin('ru1', 12, 4, 3)
    a(f'buffer_store_dwordx4 v[240:243], v237, {WSR}, s62 offen sc1')
    a(f'buffer_store_dwordx4 v[240:243], v237, {WSR}, s63 offen sc1')
    a(f'buffer_store_dwordx4 v[240:243], v237, {WSR}, s79 offen sc1')
    NL = 3 + (0 if FILLBY else 1)
    if GXL and not DWHO:
        a(f's_add_u32 s60, s79, {WS_GX2 - WS_GX}')
        a(f'buffer_store_dwordx4 v[240:243], v237, {WSR}, s60 offen')
        NL += 1
    a('s_mov_b32 s72, 0x3f803f80')
    a('s_mov_b32 s73, 0x3a800000')
    a('s_lshl_b32 s6, s12, 10')
    a(f's_add_u32 s6, s6, {WS_FB}')
    y_setup(False)
    XLATE = opt('xlate', 1)

    def x_to_lds(waits):
        for r in range(4):
            if waits:
                a(f's_waitcnt vmcnt({NL + 2 + 6 - 2 * r})')
            for hf in range(2):
                a(f'ds_write_b128 v{VRA}, v[{XH + 8 * r + 4 * hf}:{XH + 8 * r + 4 * hf + 3}] offset:{RS * r + 1024 * hf}')
        if waits:
            a(f's_waitcnt vmcnt({NL})')
        for hf in range(2):
            a(f'ds_write_b128 v239, v[{WH + 4 * hf}:{WH + 4 * hf + 3}] offset:{1024 * hf}')
        lds_inc(12)
    if not XLATE:
        lds_spin('cp0', 12, 4, 28)
        x_to_lds(True)
    elif opt('dafterx', 1):
        a(f's_waitcnt vmcnt({NL})')
    stamp('xarr')
    lds_spin('late', 24, 1, 3, sleep=LSLEEP)
    a(fbload)
    if DYN:
        a('s_memrealtime s[60:61]')
        a('s_waitcnt lgkmcnt(0)')
        a('s_sub_u32 s60, s60, s4')
        a(f's_cmp_lt_u32 s60, {DYN}')
        a('s_cselect_b32 s5, 1, 0')
        a('s_cbranch_scc1 d_early')
        a('s_waitcnt vmcnt(0)')
        a('s_branch d_early_done')
        a('d_early:')
    for r in range(DEARLY):
        for l in dl[r]:
            a(l)
    stamp('dearly')
    assert opt('dafterx', 1) and opt('stearly', 2) == 2
    a('d_early_done:')
    stamp('fbarr')
    S1, S2, SW = 36, 40, 44

    def stats_a():
        for i in range(8):
            for r in range(4):
                x = XH + 8 * r + i
                a(f'v_dot2_f32_bf16 v{S1 + r}, v{x}, s72, {"0" if i == 0 else "v%d" % (S1 + r)}')
                a(f'v_dot2_f32_bf16 v{S2 + r}, v{x}, v{x}, {"0" if i == 0 else "v%d" % (S2 + r)}')
            a(f'v_dot2_f32_bf16 v{SW}, v{WH + i}, s72, {"0" if i == 0 else "v%d" % SW}')
    STE = opt('stearly', 2)
    lds_spin('mf1', 8, 8, 3)
    stamp('mf1')
    if opt('sprio', 1):
        a(f's_setprio {opt("sprio", 1)}')
    if XLATE:
        x_to_lds(False)
    if STE:
        stats_a()
    if STE < 2:
        fb_check()
        lds_spin('mf', 8, opt('mfcnt', 12), 3)
        y_issue()
    if not STE:
        stats_a()
    for b in (S1, S2):
        a(f'v_permlane32_swap_b32 v{b}, v{b + 1}')
        a(f'v_permlane32_swap_b32 v{b + 2}, v{b + 3}')
    for b in (S1, S2):
        a(f'v_add_f32 v{b}, v{b}, v{b + 1}')
        a(f'v_add_f32 v{b + 2}, v{b + 2}, v{b + 3}')
    for b in (S1, S2):
        a(f'v_permlane16_swap_b32 v{b}, v{b + 2}')
    for b in (S1, S2):
        a(f'v_add_f32 v{b}, v{b}, v{b + 2}')
    for sh in (1, 2, 4, 8):
        for v in (S1, S2, SW):
            a(f'v_add_f32_dpp v{v}, v{v}, v{v} row_shr:{sh} row_mask:0xf bank_mask:0xf bound_ctrl:0')
    a(f'v_add_f32_dpp v{SW}, v{SW}, v{SW} row_bcast:15 row_mask:0xa bank_mask:0xf')
    a(f'v_mul_f32 v{S1}, s73, v{S1}')
    a(f'v_add_f32_dpp v{SW}, v{SW}, v{SW} row_bcast:31 row_mask:0xc bank_mask:0xf')
    a(f'v_mul_f32 v{S1 + 1}, v{S1}, v{S1}')
    a(f'v_fma_f32 v{S2}, v{S2}, s73, -v{S1 + 1}')
    a(f'v_max_f32 v{S2}, 0, v{S2}')
    rnd(S1, S1)
    rnd(S2, S2)
    a(f'v_add_f32 v{S2}, 0x3727c5ac, v{S2}')
    rnd(S2, S2)
    a(f'v_sqrt_f32 v{S2}, v{S2}')
    rnd(S2, S2)
    a(f'v_rcp_f32 v50, v{S2}')
    a(f'v_rcp_f32 v51, v{S2}')
    a(f'v_mul_f32 v48, -v{S1}, v50')
    a(f'v_mul_f32 v49, -v{S1}, v50')
    a('s_mov_b32 exec_lo, 0x80008000')
    a('s_mov_b32 exec_hi, 0x80008000')
    a('ds_write_b128 v244, v[48:51]')
    a('s_mov_b32 exec_lo, 0')
    a('s_mov_b32 exec_hi, 0x80000000')
    a(f'ds_write_b32 v{VC}, v{SW} offset:{L_SW - L_CNT}')
    lds_inc(28)
    stamp('pre')
    if opt('sprio', 1):
        a('s_setprio 0')
    if STE == 2:
        a(f's_waitcnt vmcnt({DEARLY})')
        fb_check()
        lds_spin('mf', 8, opt('mfcnt', 12), 3)
        if YF:
            a('s_cmp_lt_u32 s3, 64')
            a('s_cbranch_scc0 yf_skip2')
        y_issue()
        a('yf_skip2:')
    prep_a()
    prep_b()

    a('rows:')
    if YF > 1:
        a('s_cmp_lt_u32 s3, 64')
        a('s_cbranch_scc1 yf_skip3')
        a(f's_sleep {YF}')
        a('yf_skip3:')
    a('s_mov_b32 s61, 0')
    a('py_top:')
    y_check()
    a('s_cbranch_scc0 py_ok')
    a('s_add_u32 s61, s61, 1')
    a(f's_cmp_ge_u32 s61, {POLL_MAX}')
    a('s_cbranch_scc1 py_give')
    if YSLEEP:
        a(f's_sleep {YSLEEP}')
    y_issue()
    y_fold()
    a('s_branch py_top')
    a('py_give:')
    for p in range(4):
        a(f's_mov_b64 s[{YM + 2 * p}:{YM + 2 * p + 1}], 0')
    a('py_ok:')
    stamp('ypoll')
    y_fold()
    H = XP
    a('s_mov_b32 s73, 0x3a800000')
    Q = TY
    for r in range(2):
        for k in range(3):
            d = Q + k if r == 0 else Q + 4 + k
            a(f'v_add_f32 v{d}, v{AC[r] + 2 * k}, v{AC[r] + 2 * k + 1}')
    for k in range(3):
        a(f'v_permlane32_swap_b32 v{Q + k}, v{Q + 4 + k}')
    for k in range(3):
        a(f'v_add_f32 v{Q + k}, v{Q + k}, v{Q + 4 + k}')
    for k in range(3):
        a(f'v_add_f32_dpp v{Q + k}, v{Q + k}, v{Q + k} row_ror:8 row_mask:0xf bank_mask:0xf')
    a('s_mov_b32 exec_lo, 0x00ff00ff')
    a('s_mov_b32 exec_hi, 0x00ff00ff')
    a(f'ds_write_b128 v{VPW}, v[{Q}:{Q + 3}]')
    a('s_mov_b64 exec, -1')
    a('s_lshl_b32 s60, s3, 7')
    a(f's_add_u32 s60, s60, {WS_KEYS}')
    a('s_cmp_eq_u32 s12, 0')
    a('s_cselect_b32 s60, s60, 0x40000000')
    if opt('prio', 1):
        a('s_cbranch_scc0 no_prio')
        a('s_setprio 3')
        a('no_prio:')
    a('s_waitcnt lgkmcnt(0)')
    a('s_barrier')
    R = 76
    for i in range(4):
        a(f'ds_read_b128 v[{R + 4 * i}:{R + 4 * i + 3}], v{VPR} offset:{16 * i}')
    stamp('bar2')
    A = AC[0]
    a(f'v_mov_b32 v{A + 7}, s8')
    a(f'v_mov_b32 v{A + 5}, 0')
    a('s_waitcnt lgkmcnt(2)')
    pk('add', R, R, R + 4)
    a(f'v_add_f32 v{R + 2}, v{R + 2}, v{R + 6}')
    a('s_waitcnt lgkmcnt(0)')
    pk('add', R + 8, R + 8, R + 12)
    a(f'v_add_f32 v{R + 10}, v{R + 10}, v{R + 14}')
    pk('add', R, R, R + 8)
    a(f'v_add_f32 v{R + 2}, v{R + 2}, v{R + 10}')
    for sw in ('v_permlane32_swap_b32', 'v_permlane16_swap_b32'):
        for k in range(3):
            a(f'v_mov_b32 v{R + 4 + k}, v{R + k}')
        for k in range(3):
            a(f'{sw} v{R + k}, v{R + 4 + k}')
        pk('add', R, R, R + 4)
        a(f'v_add_f32 v{R + 2}, v{R + 2}, v{R + 6}')
    M, V = R + 8, R + 9
    a(f'v_mul_f32 v{R}, s73, v{R}')
    a(f'v_mul_f32 v{R + 3}, v{R}, v{R}')
    a(f'v_fma_f32 v{V}, v{R + 1}, s73, -v{R + 3}')
    rnd(M, R)
    a(f'v_max_f32 v{V}, 0, v{V}')
    rnd(V, V)
    a(f'v_fma_f32 v{R + 2}, -v{M}, s71, v{R + 2}')
    a(f'v_add_f32 v{V}, 0x3727c5ac, v{V}')
    rnd(V, V)
    a(f'v_sqrt_f32 v{V}, v{V}')
    rnd(V, V)
    a(f'v_rcp_f32 v{V}, v{V}')
    a(f'v_mul_f32 v{R + 2}, v{R + 2}, v{V}')
    rnd(R + 2, R + 2)
    a(f'v_ashrrev_i32 v{R + 3}, 31, v{R + 2}')
    a(f'v_and_b32 v{R + 3}, 0x7fff0000, v{R + 3}')
    a(f'v_xor_b32 v{R + 2}, 0x80000000, v{R + 2}')
    a(f'v_xor_b32 v{R + 2}, v{R + 2}, v{R + 3}')
    a(f'v_or_b32 v{A + 6}, v{R + 2}, v{VKL}')
    for sh in (1, 2, 4, 8):
        a(f'v_max_u32_dpp v{A + 6}, v{A + 6}, v{A + 6} row_ror:{sh} row_mask:0xf bank_mask:0xf')
    if opt('diag', 0):
        a('s_mov_b64 exec, 1')
        a(f'v_mov_b32 v{R + 4}, s80')
        a(f'v_mov_b32 v{R + 5}, s82')
        a(f'buffer_store_dwordx2 v[{R + 4}:{R + 5}], v{A + 5}, {WSR}, s60 offen offset:8 sc1')
    a('s_mov_b64 exec, 1')
    a(f'buffer_store_dwordx2 v[{A + 6}:{A + 7}], v{A + 5}, {WSR}, s60 offen sc1')
    a('s_mov_b64 exec, -1')
    stamp('key')
    if opt('prio', 1):
        a('s_setprio 0')
    a(f'v_readfirstlane_b32 s76, v{A + 6}')
    DMID = opt('dmid', 0)

    def down_loads(r0, r1):
        r1 = min(r1, 32)
        if r1 <= r0 or DWHO:
            return
        lab = a.newlabel('nodl')
        a('s_cmp_eq_u32 s14, 0')
        a(f's_cbranch_scc1 {lab}')
        for r in range(r0, r1):
            for l in dl[r]:
                a(l)
        a(f'{lab}:')
    if not DYN:
        down_loads(DEARLY, DEARLY + DMID)
    a(f'v_mul_f32 v{M}, -v{M}, v{V}')
    HS = [R + 12, R + 16]
    a(f'v_mov_b32_dpp v{R + 11}, v{V} row_ror:8 row_mask:0xf bank_mask:0xf')
    a(f'v_mov_b32_dpp v{R + 10}, v{M} row_ror:8 row_mask:0xf bank_mask:0xf')
    a('s_mov_b32 vcc_lo, 0xff00ff00')
    a('s_mov_b32 vcc_hi, 0xff00ff00')
    for k in range(4):
        own, oth = M + (k >> 1), R + 10 + (k >> 1)
        a(f'v_cndmask_b32 v{HS[0] + k}, v{own}, v{oth}, vcc')
        a(f'v_cndmask_b32 v{HS[1] + k}, v{oth}, v{own}, vcc')
    a(f's_lshl_b32 s77, s3, {SH}')
    a(f's_add_u32 s77, s77, {WS_CAND}')
    a('s_not_b32 s64, s76')
    a('s_bfe_u32 s65, s64, 0x30001')
    a('s_mov_b32 s66, 0x01010101')
    a('s_lshl_b32 s66, s66, s65')
    a('s_mov_b32 s67, s66')
    OUTR = [124, 132]

    def cand_row(r):
        a('s_mov_b64 exec, s[66:67]')
        for i in range(8):
            pk('fma', N[0] + 2 * i, H[r] + 2 * i, HS[r] + 2, HS[r])
        for i in range(8):
            a(f'v_cvt_pk_bf16_f32 v{YR[0] + i}, v{N[0] + 2 * i}, v{N[0] + 2 * i + 1}')
        for p in range(4):
            a(f'buffer_store_dwordx2 v[{YR[0] + 2 * p}:{YR[0] + 2 * p + 1}], v{VG8}, {WSR}, s77 offen offset:{512 * p} sc1')
        for i in range(8):
            a(f'v_cvt_pk_bf16_f32 v{WF + i}, v{H[r] + 2 * i}, v{H[r] + 2 * i + 1}')

    a('s_bitcmp1_b32 s64, 0')
    a('s_cbranch_scc1 order10')
    cand_row(0)
    a('s_branch cand_done')
    a('order10:')
    cand_row(1)
    a('cand_done:')
    stamp('cand')
    for p in range(4):
        a(f'ds_write_b64 v{VG8}, v[{WF + 2 * p}:{WF + 2 * p + 1}] offset:{L_H + 512 * p}')
    a('s_mov_b64 exec, -1')
    assert not DYN
    D2 = DEARLY + DMID + opt('dmid2', 8)
    down_loads(DEARLY + DMID, D2)
    EXACT = opt('exact', 0)
    if not EXACT:
        for r in range(2):
            a(f'v_add_f32 v{HS[r] + 2}, 1.0, v{HS[r] + 2}')
            a(f'v_add_f32 v{HS[r] + 3}, 1.0, v{HS[r] + 3}')
    for r in range(2):
        if EXACT:
            for i in range(16):
                rnd(H[r] + i, H[r] + i)
            for i in range(8):
                pk('fma', N[0] + 2 * i, H[r] + 2 * i, HS[r] + 2, HS[r])
            for i in range(16):
                rnd(N[0] + i, N[0] + i)
            for i in range(8):
                pk('add', H[r] + 2 * i, H[r] + 2 * i, N[0] + 2 * i)
        else:
            for i in range(8):
                pk('fma', H[r] + 2 * i, H[r] + 2 * i, HS[r] + 2, HS[r])
        for i in range(8):
            a(f'v_cvt_pk_bf16_f32 v{N[1] + 8 * r + i}, v{H[r] + 2 * i}, v{H[r] + 2 * i + 1}')
        for p in range(4):
            a(f'ds_write_b64 v{VXA}, v[{N[1] + 8 * r + 2 * p}:{N[1] + 8 * r + 2 * p + 1}] offset:{512 * p + RS * r}')
    lds_inc(28)
    a('s_cmp_eq_u32 s14, 0')
    a('s_cbranch_scc0 ffn2')
    a('s_and_b32 s64, s64, 15')
    a(f's_mul_i32 s60, s64, {RS}')
    a(f's_add_u32 s60, s60, {L_YT}')
    a('v_add_u32 v3, s60, v2')
    a(f's_xor_b32 s65, s3, {RSW}')
    a('s_lshl_b32 s65, s65, 4')
    a('s_add_u32 s64, s64, s65')
    a('s_lshl_b32 s65, s64, 11')
    lds_spin('o8', 28, 12, 68)
    a('s_cmp_eq_u32 s12, 0')
    a('s_cbranch_scc0 no_cand_h')
    for hf in range(2):
        a(f'ds_read_b128 v[{68 + 4 * hf}:{71 + 4 * hf}], v3 offset:{1024 * hf}')
    for hf in range(2):
        a(f'ds_read_b128 v[{WF + 4 * hf}:{WF + 4 * hf + 3}], v2 offset:{L_H + 1024 * hf}')
    for hf in range(2):
        a(f's_waitcnt lgkmcnt({3 - hf})')
        a(f'buffer_store_dwordx4 v[{68 + 4 * hf}:{71 + 4 * hf}], v2, {XBR}, s65 offen offset:{1024 * hf} sc1')
    a('s_waitcnt vmcnt(0) lgkmcnt(0)')
    a(f'buffer_store_dwordx4 v[{WF}:{WF + 3}], v2, {WSR}, s77 offen offset:2048 sc1')
    a(f'buffer_store_dwordx4 v[{WF + 4}:{WF + 7}], v2, {WSR}, s77 offen offset:3072 sc1')
    a('no_cand_h:')
    for i in range(8):
        a(f'ds_read_b128 v[{4 + 4 * i}:{7 + 4 * i}], v{VRA} offset:{RS * (i >> 1) + 1024 * (i & 1)}')
    OE, OM = opt('oearly', 0), opt('omid', 0)
    a('s_waitcnt lgkmcnt(0)')
    for r in range(4):
        if r == OE and OM and not DWHO:
            a('s_cmp_lt_u32 s3, 112')
            a('s_cbranch_scc0 dr_go')
            lds_spin('dr', 16, 4, 68)
        if r == OE + OM and not DWHO:
            a('s_cmp_lt_u32 s3, 112')
            a('s_cbranch_scc0 dp_go')
            lds_spin('dp', 16, 8, 68, sleep=2)
            if opt('osleep', 0):
                a(f's_sleep {opt("osleep", 0)}')
        a('s_cmp_eq_u32 s68, s64')
        a('s_cselect_b32 s60, 0x40000000, s69')
        for hf in range(2):
            i = 2 * r + hf
            a(f'buffer_store_dwordx4 v[{4 + 4 * i}:{7 + 4 * i}], v2, {XBR}, s60 offen offset:{1024 * hf} sc1')
        if r < 3:
            a('s_add_u32 s68, s68, 1')
            a('s_add_u32 s69, s69, 2048')
    a('s_branch main_fl')
    TT = 8

    def d_perm(DW, ps):
        for p in ps:
            for k in range(2):
                lo, hi = DW + 2 * (8 * (p >> 2) + (p & 3)) + k, DW + 2 * (8 * (p >> 2) + (p & 3) + 4) + k
                t = 48 + k
                a(f'v_perm_b32 v{t}, v{hi}, v{lo}, s74')
                a(f'v_perm_b32 v{hi}, v{hi}, v{lo}, s75')
                a(f'v_mov_b32 v{lo}, v{t}')

    def gx_loads():
        for q in range(4):
            a(f'buffer_load_dwordx4 v[{52 + 4 * q}:{52 + 4 * q + 3}], v2, {WSR}, s62 offen offset:{1024 * q} sc1')

    def ffn2(DW, issued):
        P = 52
        a('s_mov_b32 s61, 0')
        if issued:
            a('s_branch pg_chk')
        a('pg_again:')
        gx_loads()
        a('pg_chk:')
        a('s_waitcnt vmcnt(0)')
        sentinel_check(range(P, P + 16), P + 16)
        a('s_cbranch_vccz pg_ok')
        a('s_add_u32 s61, s61, 1')
        a(f's_cmp_ge_u32 s61, {POLL_MAX}')
        a('s_cbranch_scc1 pg_ok')
        a('s_mov_b64 exec, vcc')
        a(f's_cmp_lt_u32 s61, {GXL}')
        a('s_cselect_b32 s62, s63, s79')
        if opt('gxsleep', 1):
            a(f's_sleep {opt("gxsleep", 1)}')
        a('s_branch pg_again')
        a('pg_ok:')
        a('s_mov_b64 exec, -1')
        stamp('gxpoll')
        pk('add', P, P, P + 4)
        pk('add', P + 2, P + 2, P + 6)
        pk('add', P + 8, P + 8, P + 12)
        pk('add', P + 10, P + 10, P + 14)
        pk('add', P, P, P + 8)
        pk('add', P + 2, P + 2, P + 10)
        a(f'v_permlane32_swap_b32 v{P}, v{P + 2}')
        a(f'v_permlane32_swap_b32 v{P + 1}, v{P + 3}')
        pk('add', P, P, P + 2)
        a(f'v_permlane16_swap_b32 v{P}, v{P + 1}')
        a(f'v_add_f32 v{TT}, v{P}, v{P + 1}')
        rnd(TT, TT)
        a(f'v_mul_f32 v{TT + 2}, 0xbfb8aa3b, v{TT}')
        a(f'v_mov_b32_dpp v{TT + 3}, v{TT} row_ror:8 row_mask:0xf bank_mask:0xf')
        a(f'v_exp_f32 v{TT + 2}, v{TT + 2}')
        a(f'v_add_f32 v{TT + 2}, 1.0, v{TT + 2}')
        a(f'v_rcp_f32 v{TT + 2}, v{TT + 2}')
        a(f'v_mul_f32 v{TT}, v{TT}, v{TT + 2}')
        rnd(TT, TT)
        a(f'v_mul_f32 v{TT}, v{TT}, v{TT + 3}')
        a(f'v_mov_b32_dpp v{TT + 1}, v{TT} row_shr:1 row_mask:0xf bank_mask:0xf bound_ctrl:0')
        a(f'v_cvt_pk_bf16_f32 v{TT}, v{TT + 1}, v{TT}')
        for p in range(16):
            a(f'v_readlane_b32 s{S_K + p}, v{TT}, {16 * (p & 3) + 2 * (p >> 2) + 1}')
        AC2 = 24
        for p in range(16):
            for c in range(4):
                r = DW + 2 * (8 * (p >> 2) + (p & 3) + 4 * (c & 1)) + (c >> 1)
                h = AC2 + 4 * (p & 1) + c
                src2 = '0' if p < 2 else f'v{h}'
                a(f'v_dot2_f32_bf16 v{h}, v{r}, s{S_K + p}, {src2}')
        pk('add', AC2, AC2, AC2 + 4)
        pk('add', AC2 + 2, AC2 + 2, AC2 + 6)
        a(f'buffer_store_dwordx4 v[{AC2}:{AC2 + 3}], v237, {WSR}, s77 offen sc1')
        stamp('pst')

    a('ffn2:')
    if DWHO:
        a('s_branch main_fl')
    else:
        a('s_cmp_lt_u32 s3, 112')
        a('s_cbranch_scc0 main_fl')
        for r in range(min(D2, 32), 32):
            for l in dl[r]:
                a(l)
        a(f's_lshl_b32 s77, s3, {SH}')
        a(f's_add_u32 s77, s77, {WS_PART}')
        a(f's_add_u32 s63, s79, {WS_GX2 - WS_GX}')
        a(f's_mov_b32 s62, s{63 if GXL else 79}')
        for aa in range(4):
            a(f's_waitcnt vmcnt({24 - 8 * aa})')
            if aa == 3:
                lds_inc(16)
                stamp('dready')
                gx_loads()
            d_perm(DW, range(4 * aa, 4 * aa + 4))
        ffn2(DW, True)
        lds_inc(16)
        a('s_branch main_fl')

    a('helper_ffn:')
    a('s_cmp_lt_u32 s3, 112')
    a('s_cbranch_scc1 ffn_go')
    a('s_waitcnt vmcnt(0)')
    fb_publish()
    a('s_branch red_wait')
    a('ffn_go:')
    GW = 64
    if not (EX or EF):
        gu_base()
    a('s_lshr_b32 s78, s3, 4')
    a('s_lshl_b32 s78, s78, 2')
    a('s_add_u32 s78, s78, s13')
    a(f's_lshl_b32 s78, s78, {SH + 2}')
    a('s_lshl_b32 s60, s76, 8')
    a('s_add_u32 s78, s78, s60')
    a(f's_add_u32 s78, s78, {WS_GX}')
    a(f's_add_u32 s79, s78, {WS_GX2 - WS_GX}')
    if GXL and DWHO:
        a(f's_add_u32 s60, s61, {WS_GX2}')
        a(f'buffer_store_dwordx4 v[240:243], v237, {WSR}, s60 offen')
    assert DSP
    stamp('uw')
    FBK = opt('fbk', 2)
    for k, stp in enumerate(steps):
        if k < EF:
            continue
        if k == PAUSE:
            stamp('pause')
            lds_spin('late2', 24, 1, 28, sleep=LSLEEP)
            lds_spin('yw', 8, 12, 28)
            if opt('rsleep', 0):
                a(f's_sleep {opt("rsleep", 0)}')
        for l in stp:
            a(l)
        if k >= EF + DEPTH - 1 and k < PAUSE:
            a(f's_waitcnt vmcnt({DEPTH - 1})')
        if PAUSE <= k < PAUSE + opt('slow', 0):
            a(f's_waitcnt vmcnt({opt("depth2", 2) - 1})')
        if k == DEPTH - 1 and GXL and DWHO:
            lds_inc(28)
        if k == FBK - 1 and not FILLBY:
            a(f's_waitcnt vmcnt({FBK})')
            fb_publish()
    assert DEPTH <= PAUSE < 32
    if DWHO:
        lds_inc(16)
    for i2 in range(8):
        a(f's_waitcnt vmcnt({max(0, min(63, 32 - 4 * (i2 + 1)))})')
        for m in range(2):
            for k in range(4):
                lo, hi = GW + 64 * m + 8 * i2 + k, GW + 64 * m + 8 * i2 + 4 + k
                t = 32 + (k & 3)
                a(f'v_perm_b32 v{t}, v{hi}, v{lo}, s74')
                a(f'v_perm_b32 v{hi}, v{hi}, v{lo}, s75')
                a(f'v_mov_b32 v{lo}, v{t}')
    stamp('wready')
    KCONV = opt('kconv', 1)

    def fetch_token():
        a('v_lshlrev_b32 v6, 2, v1')
        a(f'v_add_u32 v7, {L_X}, v6')
        if opt('kdelay', 0):
            a(f's_sleep {opt("kdelay", 0)}')
        if not opt('spec', 1):
            key_poll(65)
            stamp('gkey')
            a('s_and_b32 s66, s65, 0xffff')
            a('s_sub_u32 s66, 2047, s66')
            a('s_lshr_b32 s66, s66, 4')
            a(f's_xor_b32 s66, s66, {RSW}')
            a(f's_lshl_b32 s66, s66, {SH}')
            a('s_lshl_b32 s60, s76, 7')
            a('s_add_u32 s66, s66, s60')
            a(f's_add_u32 s66, s66, {WS_CAND}')
            a('s_mov_b32 exec_hi, 0')
            retry_loop('px', [f'buffer_load_dword v8, v6, {WSR}, s66 offen sc1'], lambda: a('v_cmp_eq_u32 vcc, -1, v8'), sleep=1, mask='0xffffffff')
        else:
            a('v_lshlrev_b32 v4, 7, v1')
            a(f's_mov_b32 s64, {WS_KEYS + 8192}')
            a('s_lshl_b32 s63, s76, 7')
            a(f's_add_u32 s63, s63, {WS_CAND}')
            a(f's_and_b32 s62, s3, {opt("canmask", 63)}')
            a('s_lshl_b32 s62, s62, 7')
            a(f's_add_u32 s62, s62, {WS_KEYS + 4}')
            a('s_mov_b64 exec, 1')
            retry_loop('kc2', [f'buffer_load_dword v8, v4, {WSR}, s62 offen sc1'], lambda: a('v_cmp_ne_u32 vcc, s8, v8'), sleep=opt('kcsleep', 2))
            stamp('kcan')
            kl = [f'buffer_load_dwordx2 v[16:17], v4, {WSR}, {WS_KEYS} offen sc1', f'buffer_load_dwordx2 v[18:19], v4, {WSR}, s64 offen sc1']

            def cand_addr():
                a('s_not_b32 s66, s65')
                a('s_bfe_u32 s66, s66, 0x70004')
                a(f's_xor_b32 s66, s66, {RSW}')
                a(f's_lshl_b32 s66, s66, {SH}')
                a('s_add_u32 s66, s66, s63')
            for l in kl:
                a(l)
            a('s_mov_b32 s67, 0')
            a('s_mov_b32 s61, 0')
            a('v_mov_b32 v8, -1')
            a('ks_chk:')
            a('s_waitcnt vmcnt(0)')
            a('v_cmp_eq_u32 vcc, s8, v17')
            a('v_cmp_eq_u32 s[70:71], s8, v19')
            a('v_cndmask_b32 v12, 0, v16, vcc')
            a('v_cndmask_b32 v9, 0, v18, s[70:71]')
            a('s_nand_b64 s[70:71], s[70:71], vcc')
            a('v_max_u32 v12, v12, v9')
            a('s_cbranch_scc0 ks_all')
            a('s_add_u32 s61, s61, 1')
            a(f's_cmp_ge_u32 s61, {POLL_MAX}')
            a('s_cbranch_scc1 ks_all')
            a('s_mov_b64 exec, s[70:71]')
            for l in kl:
                a(l)
            a('s_mov_b64 exec, -1')
            wave_reduce('v_max_u32', 12)
            a('v_readlane_b32 s65, v12, 63')
            a('s_mov_b32 s67, s65')
            cand_addr()
            a('s_mov_b32 exec_hi, 0')
            a(f'buffer_load_dword v8, v6, {WSR}, s66 offen sc1')
            a('s_mov_b64 exec, -1')
            a('s_branch ks_chk')
            a('ks_all:')
            wave_reduce('v_max_u32', 12)
            a('v_readlane_b32 s65, v12, 63')
            stamp('gkey')
            cand_addr()
            a('s_mov_b32 exec_hi, 0')
            a('s_cmp_eq_u32 s65, s67')
            a('s_cbranch_scc1 px_chk')
            retry_loop('px', [f'buffer_load_dword v8, v6, {WSR}, s66 offen sc1'], lambda: a('v_cmp_eq_u32 vcc, -1, v8'), sleep=1, mask='0xffffffff')
        a('ds_write_b32 v7, v8')
        a('s_mov_b64 exec, -1')
        a('s_waitcnt lgkmcnt(0)')
    if not KCONV:
        a('s_cmp_eq_u32 s13, 0')
        a('s_cbranch_scc0 f2_bar')
        fetch_token()
    a('f2_bar:')
    a('s_barrier')
    XS, AC = 36, 44
    stamp('ffn0')
    a(f'ds_read_b128 v[{XS}:{XS + 3}], v201')
    a(f'ds_read_b128 v[{XS + 4}:{XS + 7}], v201 offset:16')
    for p in range(8):
        if p % 4 == 0:
            a(f's_waitcnt lgkmcnt({1 - p // 4})')
        for m in range(2):
            for c in range(8):
                r = GW + 64 * m + 8 * p + 4 * (c & 1) + (c >> 1)
                i = AC + 8 * m + c
                src2 = '0' if p == 0 else f'v{i}'
                a(f'v_dot2_f32_bf16 v{i}, v{r}, v{XS + p}, {src2}')
    for q in range(4):
        a(f'ds_write_b128 v203, v[{AC + 4 * q}:{AC + 4 * q + 3}] offset:{128 * (q >> 1) + 16 * (q & 1)}')
    a('s_waitcnt lgkmcnt(0)')
    a('s_barrier')
    for q in range(4):
        a(f'ds_read_b128 v[{8 + 4 * q}:{11 + 4 * q}], v205 offset:{16 * RP * q}')
    a('s_waitcnt lgkmcnt(2)')
    pk('add', 8, 8, 12)
    pk('add', 10, 10, 14)
    a('s_waitcnt lgkmcnt(0)')
    pk('add', 16, 16, 20)
    pk('add', 18, 18, 22)
    pk('add', 8, 8, 16)
    pk('add', 10, 10, 18)
    if GXL:
        a(f'buffer_store_dwordx4 v[8:11], v247, {WSR}, s79 offen')
    a(f'buffer_store_dwordx4 v[8:11], v247, {WSR}, s78 offen sc1')
    stamp('gxst')
    a('s_branch main_fl')

    a('conv_ffn:')
    a('s_cmp_lt_u32 s3, 112')
    a('s_cbranch_scc0 red_conv')
    if KCONV:
        assert not DWHO
        a('s_cmp_eq_u32 s12, 0')
        a('s_cbranch_scc0 main_fl')
        a('s_and_b32 s76, s3, 15')
        fetch_token()
        a('s_barrier')
    if DWHO:
        DW2 = 80
        lds_spin('gu', 16, 4, 8)
        d_base()
        for stp in d_list(DW2):
            for l in stp:
                a(l)
        a('v_lshlrev_b32 v237, 1, v253')
        a(f's_lshl_b32 s77, s3, {SH}')
        a(f's_add_u32 s79, s77, {WS_GX}')
        a(f's_add_u32 s77, s77, {WS_PART}')
        a(f's_add_u32 s63, s79, {WS_GX2 - WS_GX}')
        a(f's_mov_b32 s62, s{63 if GXL else 79}')
        for aa in range(4):
            a(f's_waitcnt vmcnt({24 - 8 * aa})')
            d_perm(DW2, range(4 * aa, 4 * aa + 4))
        stamp('dready')
        a('s_barrier')
        a('s_barrier')
        ffn2(DW2, False)
    a('s_branch main_fl')

    a('red_conv:')
    a('s_cmp_eq_u32 s12, 0')
    a('s_cbranch_scc0 red_wait')
    if opt('rdelay', 0):
        a(f's_sleep {opt("rdelay", 0)}')
    key_poll(71)
    a('s_sub_u32 s76, s3, 112')
    a('s_and_b32 s72, s71, 0xffff')
    a('s_sub_u32 s72, 2047, s72')
    a('s_lshr_b32 s73, s72, 4')
    a(f's_xor_b32 s73, s73, {RSW}')
    a(f's_lshl_b32 s73, s73, {SH}')
    a('s_lshl_b32 s60, s76, 7')
    a('s_add_u32 s73, s73, s60')
    a(f's_add_u32 s73, s73, {WS_CAND}')
    a('s_lshl_b32 s72, s72, 11')
    a('s_add_u32 s72, s72, s60')
    a('v_and_b32 v6, 31, v0')
    a('v_lshlrev_b32 v6, 2, v6')
    a('s_cmp_eq_u32 s76, 0')
    a(f's_cselect_b32 s60, {WS_EPOCH}, 0x40000000')
    a('v_mov_b32 v49, s8')
    a('v_mov_b32 v50, 0')
    a('s_mov_b64 exec, 1')
    a(f'buffer_store_dword v49, v50, {WSR}, s60 offen')
    a('s_mov_b64 exec, -1')
    loads = [f'buffer_load_dword v{40 + p}, v6, {WSR}, s73 offen offset:{2048 * p} sc1' for p in range(2)]
    poll_loop('ph', loads, (40, 41), 42)
    a('s_and_b32 s60, s71, 0xffff0000')
    a('s_xor_b32 s61, s60, 0x80000000')
    a('s_xor_b32 s62, s60, 0xffff0000')
    a('s_cmp_lt_i32 s60, 0')
    a('s_cselect_b32 s60, s61, s62')
    a('v_mov_b32 v42, 0xbfb8aa3b')
    a('v_mul_f32 v42, s60, v42')
    a('v_exp_f32 v42, v42')
    a('v_add_f32 v42, 1.0, v42')
    a('v_rcp_f32 v42, v42')
    rnd(42, 42)
    unpack(44, 45, 40)
    unpack(46, 47, 41)
    a('red_wait:')
    a(f's_add_u32 s{S_G}, s{S_WS}, {WS_PART}')
    a(f's_addc_u32 s{S_G + 1}, s{S_WS + 1}, 0')
    a(f's_mov_b32 s{S_G + 2}, {112 << SH}')
    a('s_sub_u32 s76, s3, 112')
    a('v_and_b32 v4, 15, v0')
    a('v_lshrrev_b32 v5, 4, v0')
    a(f'v_lshlrev_b32 v5, {SH}, v5')
    a('v_lshl_add_u32 v5, v4, 4, v5')
    a('s_lshl_b32 s64, s76, 8')
    a(f's_add_u32 s65, s64, {32 << SH}')
    a(f's_add_u32 s66, s64, {64 << SH}')
    a(f's_add_u32 s67, s64, {96 << SH}')
    a('v_lshrrev_b32 v7, 4, v1')
    a('v_lshl_add_u32 v7, v4, 2, v7')
    a('v_lshlrev_b32 v7, 2, v7')
    a('s_lshl_b32 s60, s12, 8')
    a(f's_add_u32 s60, s60, {L_RED}')
    a('v_add_u32 v7, s60, v7')
    a('v_lshlrev_b32 v48, 3, v1')
    a(f'v_add_u32 v48, {L_RED}, v48')
    a('s_barrier')
    if opt('finsleep', 30):
        a(f's_sleep {opt("finsleep", 30)}')
    P = 8
    loads = [f'buffer_load_dwordx4 v[{P + 4 * r}:{P + 4 * r + 3}], v5, s[{S_G}:{S_G + 3}], s{64 + r} offen sc1' for r in range(4)]
    poll_loop('pp', loads, range(P, P + 16), 24)
    stamp('ppoll')
    pk('add', P, P, P + 4)
    pk('add', P + 2, P + 2, P + 6)
    pk('add', P + 8, P + 8, P + 12)
    pk('add', P + 10, P + 10, P + 14)
    pk('add', P, P, P + 8)
    pk('add', P + 2, P + 2, P + 10)
    a(f'v_permlane32_swap_b32 v{P}, v{P + 2}')
    a(f'v_permlane32_swap_b32 v{P + 1}, v{P + 3}')
    pk('add', P, P, P + 2)
    a(f'v_permlane16_swap_b32 v{P}, v{P + 1}')
    a(f'v_add_f32 v{P}, v{P}, v{P + 1}')
    a(f'ds_write_b32 v7, v{P}')
    a('s_waitcnt lgkmcnt(0)')
    a('s_barrier')
    a('s_cmp_eq_u32 s12, 0')
    a('s_cbranch_scc0 main_fl')
    a('s_mov_b32 exec_hi, 0')
    for q in range(8):
        a(f'ds_read_b64 v[{P + 2 * q}:{P + 2 * q + 1}], v48 offset:{256 * q}')
    a('s_waitcnt lgkmcnt(0)')
    for q in range(4):
        pk('add', P + 4 * q, P + 4 * q, P + 4 * q + 2)
    pk('add', P, P, P + 4)
    pk('add', P + 8, P + 8, P + 12)
    pk('add', P, P, P + 8)
    rnd(P, P)
    rnd(P + 1, P + 1)
    a(f'v_mul_f32 v{P}, v{P}, v42')
    a(f'v_mul_f32 v{P + 1}, v{P + 1}, v42')
    rnd(P, P)
    rnd(P + 1, P + 1)
    pk('add', P, P, 44)
    rnd(P, P)
    rnd(P + 1, P + 1)
    pk('add', P, P, 46)
    a(f'v_cvt_pk_bf16_f32 v{P}, v{P}, v{P + 1}')
    a(f'buffer_store_dword v{P}, v6, {XBR}, s72 offen')
    if opt('diag', 0):
        a('s_mov_b64 exec, -1')
        a('s_cmp_eq_u32 s76, 0')
        a('s_cbranch_scc0 main_done')
        a('v_lshlrev_b32 v4, 7, v1')
        a(f's_mov_b32 s64, {WS_KEYS + 8192}')
        a(f'buffer_load_dwordx2 v[8:9], v4, {WSR}, {WS_KEYS} offen offset:8 sc1')
        a(f'buffer_load_dwordx2 v[10:11], v4, {WSR}, s64 offen offset:8 sc1')
        a('s_memrealtime s[62:63]')
        a('s_waitcnt vmcnt(0) lgkmcnt(0)')
        for r in range(8, 12):
            a(f'v_sub_u32 v{r}, s62, v{r}')
        a('v_max_u32 v12, v8, v10')
        a('v_min_u32 v13, v8, v10')
        a('v_min_u32 v14, v9, v11')
        a('v_not_b32 v13, v13')
        a('v_not_b32 v14, v14')
        wave_reduce('v_max_u32', [12, 13, 14])
        a('v_readlane_b32 s64, v12, 63')
        a('v_readlane_b32 s65, v13, 63')
        a('v_readlane_b32 s66, v14, 63')
        a('s_not_b32 s65, s65')
        a('s_not_b32 s66, s66')
        d = opt('diag', 0)
        if d == 1:
            a('s_sub_u32 s64, s64, s65')
        if d == 3:
            a('s_sub_u32 s64, s64, s66')
        a(f's_mul_i32 s64, s64, {opt("diagk", 10)}')
        a('s_min_u32 s64, s64, 100000')
        a('diag_spin:')
        a('s_memrealtime s[66:67]')
        a('s_waitcnt lgkmcnt(0)')
        a('s_sub_u32 s66, s66, s62')
        a('s_cmp_lt_u32 s66, s64')
        a('s_cbranch_scc1 diag_spin')
        a('s_branch main_done')
    a('main_fl:')
    if opt('diag', 0):
        a('s_branch main_done')
    if opt('dbg', 0) == 999:
        a('s_waitcnt vmcnt(0) lgkmcnt(0)')
        stamp(7)
        a('s_mov_b64 s[96:97], s[100:101]')
        a('s_mov_b32 s98, 256')
        a('s_mov_b32 s99, 0x00020000')
        a('s_mov_b64 exec, 1')
        a('v_mov_b32 v1, 0')
        a('s_waitcnt lgkmcnt(0)')
        for i in range(8):
            a(f's_and_b32 s60, s{80 + 2 * i}, 0xffffff')
            a('s_xor_b32 s61, s60, 0xffffff')
            a(f's_cmp_eq_u32 s{80 + 2 * i}, 0')
            a('s_cselect_b32 s61, 0, s61')
            a('v_mov_b32 v2, s60')
            a('v_mov_b32 v3, s61')
            a(f'buffer_atomic_umax v2, v1, s[96:99], 0 offen offset:{4 * i} sc1')
            a(f'buffer_atomic_umax v3, v1, s[96:99], 0 offen offset:{32 + 4 * i} sc1')
    elif opt('dbg', 0):
        a('s_waitcnt vmcnt(0) lgkmcnt(0)')
        stamp(7)
        a('s_mov_b64 s[96:97], s[100:101]')
        a('s_mov_b32 s98, 256')
        a('s_mov_b32 s99, 0x00020000')
        a('s_lshl_b32 s60, s2, 3')
        a('s_add_u32 s60, s60, s12')
        a('s_mov_b32 s61, 0x40000000')
        a(f's_cmp_eq_u32 s60, {225 * 8}')
        a('s_cselect_b32 s61, 0, s61')
        a(f's_cmp_eq_u32 s60, {opt("dbg", 0) * 8 + opt("dbgw", 0)}')
        a('s_cselect_b32 s61, 32, s61')
        a('s_mov_b64 exec, 1')
        a('v_mov_b32 v1, 0')
        a('s_waitcnt lgkmcnt(0)')
        for i in range(8):
            a(f's_sub_u32 s60, s{80 + 2 * i}, s80')
            a(f's_cmp_eq_u32 s{80 + 2 * i}, 0')
            a('s_cselect_b32 s60, 0, s60')
            a('v_mov_b32 v2, s60')
            a(f'buffer_store_dword v2, v1, s[96:99], s61 offen offset:{4 * i}')
    else:
        stamp_flush(S_WS, 7, 0)
    a('main_done:')
    a('s_endpgm')
    return kernel_desc(KN, 256, 102 if STAMPS else 80)


launch = '; @launch grid=(256,1,1) block=(512,1,1) lds=%d\n' % MAIN_LDS
finish(launch, [k_main()])
```

```python
from common import *
import common
STAMPS = common.STAMPS

WS_KEYS = 0
WS_EPOCH = 32 * 1024
WS_GX = 1536 * 1024
WS_FA = 128 * 1024
WS_FB = 192 * 1024
WS_FA2 = 64 * 1024
WS_CAND = 262144
WS_PART = 1 << 20
WS_GX2 = 6 << 20
WS_KV = 2 << 20
WS_SIZE = 7 << 20
SH = 12
if opt('reuse', 0):
    SH = 14
    WS_CAND, WS_PART, WS_GX, WS_GX2 = WS_KV, WS_KV + 4096, WS_KV + (2 << 20), WS_KV + (2 << 20) + 4096
WSOFF = opt('wsoff', 0) << 20
common.WS_STAMP -= WSOFF
POLL_MAX = 1 << 16
KN = NAME + '_kernel'

DEPTH = opt('depth', 7)
XPOS = opt('xpos', 4)
UWOFF = opt('uwoff', 0)
FLC = opt('flc', 3)
FBC = opt('fbc', 10)
YSLEEP = opt('ysleep', 1)
CODEPF = opt('codepf', 6)
DEARLY = opt('dearly', 0)
CPERM = opt('cperm', 1)
RSW = opt('rsw', 64)
YLO = opt('ylo', 1)
DWHO = opt('dwho', 0)
GXL = opt('gxl', 40)
DYN = opt('dyn', 0)
LSLEEP = opt('lsleep', 6)
FILLBY = opt('fillby', 1)
DUAL = opt('dual', 12)
KVS = '' if opt('l2kv', 0) else ' sc1'
KVL = {0: ' sc1', 1: ' sc0', 2: ''}[opt('kvl', 0)]
FAL = {0: ' sc1', 1: ' sc0', 2: ''}[opt('fal', 0)]
PAUSE = opt('pause', 20)

GS = 4160
UOFF = 4 * GS
CS = 21312
L_YL = 4 * CS
RS = 2064
L_YT = L_YL + 16384
L_P0 = L_YL
L_W = L_YT + 16 * RS
L_ST = L_W + 2048
L_PART = 0
PS = 272
RP = 272
L_H = 8192
L_CNT = L_ST + 272
L_GKEY = L_CNT + 28
L_SW = L_CNT + 48
L_X = L_CNT + 64
L_RED = L_X + 1024
MAIN_LDS = L_RED + 4096

S_K, S_V, S_SK, S_H, S_WS, S_Q, S_WR, S_OUT, S_G, S_U, S_D = 16, 20, 24, 28, 32, 36, 40, 44, 48, 52, 56
WSR = f's[{S_WS}:{S_WS + 3}]'
XBR = f's[{S_OUT}:{S_OUT + 3}]'
KVR = WSR
VC, V1 = 254, 255


def sentinel_check(regs, tmp):
    rs = list(regs)
    cur = rs.pop(0)
    while rs:
        if len(rs) >= 2:
            a(f'v_max3_u32 v{tmp}, v{cur}, v{rs[0]}, v{rs[1]}')
            rs = rs[2:]
        else:
            a(f'v_max_u32 v{tmp}, v{cur}, v{rs[0]}')
            rs = rs[1:]
        cur = tmp
    a(f'v_cmp_eq_u32 vcc, -1, v{cur}')


def retry_loop(name, loads, check, sleep=2, issued=False, mask='-1'):
    a('s_mov_b32 s61, 0')
    if issued:
        a(f's_branch {name}_chk')
    a(f'{name}_again:')
    for l in loads:
        a(l)
    a(f'{name}_chk:')
    a('s_waitcnt vmcnt(0)')
    check()
    a(f's_cbranch_vccz {name}_ok')
    a('s_add_u32 s61, s61, 1')
    a(f's_cmp_ge_u32 s61, {POLL_MAX}')
    a(f's_cbranch_scc1 {name}_ok')
    a('s_mov_b64 exec, vcc')
    a(f's_sleep {sleep}')
    a(f's_branch {name}_again')
    a(f'{name}_ok:')
    a(f's_mov_b64 exec, {mask}')


def poll_loop(name, loads, regs, tmp, sleep=2, issued=False):
    retry_loop(name, loads, lambda: sentinel_check(regs, tmp), sleep, issued)


def lds_spin(name, off, want, vt, sleep=1):
    a('s_mov_b32 s61, 0')
    a(f'{name}_spin:')
    a(f'ds_read_b32 v{vt}, v{VC} offset:{off}')
    a('s_add_u32 s61, s61, 1')
    a('s_waitcnt lgkmcnt(0)')
    a(f'v_readfirstlane_b32 s60, v{vt}')
    a(f's_cmp_ge_u32 s60, {want}')
    a(f's_cbranch_scc1 {name}_go')
    a(f's_cmp_ge_u32 s61, {1 << 22}')
    a(f's_cbranch_scc1 {name}_go')
    a(f's_sleep {sleep}')
    a(f's_branch {name}_spin')
    a(f'{name}_go:')


def lds_inc(off):
    a('s_mov_b64 exec, 1')
    a(f'ds_add_u32 v{VC}, v{V1} offset:{off}')
    a('s_mov_b64 exec, -1')


XP = [4, 20]
N = [36, 52]
T = [68, 84]
WF = 100
MV = [116, 120]
AA = [124, 132]
YR = [140, 148]
XR = 36
VG8, VXA, VWA, VSA, VKL, VPR, VPW, VRA, VBIT = range(228, 237)


def ln_x(xr, wr):
    for r in range(2):
        for i in range(8):
            unpack(XP[r] + 2 * i, XP[r] + 2 * i + 1, xr + 8 * r + i)
    for i in range(8):
        unpack(WF + 2 * i, WF + 2 * i + 1, wr + i)
    srcs = [(XP[0], T[0]), (XP[1], T[0] + 8), (WF, T[1])]
    for i in range(4):
        for (sx, t) in srcs:
            pk('add', t + 2 * i, sx + 4 * i, sx + 4 * i + 2)
    for (_, b) in srcs:
        pk('add', b, b, b + 2)
        pk('add', b + 4, b + 4, b + 6)
    for (_, b) in srcs:
        pk('add', b, b, b + 4)
    for (_, b) in srcs:
        a(f'v_add_f32 v{b}, v{b}, v{b + 1}')
    K = T[1] + 8
    a(f'v_mov_b32 v{K}, 0x3a800000')
    wave_reduce('v_add_f32', [b for _, b in srcs])
    a(f'v_readlane_b32 s60, v{T[0]}, 63')
    a(f'v_readlane_b32 s62, v{T[0] + 8}, 63')
    a(f'v_readlane_b32 s71, v{T[1]}, 63')
    for r in range(2):
        M, V = MV[r], MV[r] + 2
        a(f'v_mul_f32 v{V}, s{60 + 2 * r}, v{K}')
    for r in range(2):
        M, V = MV[r], MV[r] + 2
        rnd(M, V)
        rnd(M + 1, V)
        a(f'v_sub_f32 v{V}, v{V}, v{M}')
        a(f'v_readfirstlane_b32 s{72 + r}, v{M}')
    for r in range(2):
        for i in range(8):
            pk('add', XP[r] + 2 * i, XP[r] + 2 * i, MV[r], mods='neg_lo:[0,1] neg_hi:[0,1]')
    for i in range(8):
        for r in range(2):
            if i == 0:
                pk('mul', AA[r], XP[r], XP[r])
            else:
                pk('fma', AA[r], XP[r] + 2 * i, XP[r] + 2 * i, AA[r])
    for r in range(2):
        a(f'v_add_f32 v{AA[r]}, v{AA[r]}, v{AA[r] + 1}')
        a(f'v_mul_f32 v{MV[r] + 2}, v{MV[r] + 2}, v{MV[r] + 2}')
    wave_reduce('v_add_f32', AA)
    for r in range(2):
        a(f'v_readlane_b32 s{60 + 2 * r}, v{AA[r]}, 63')
    for step in range(8):
        for r in range(2):
            V = MV[r] + 2
            if step == 0:
                a(f'v_fma_f32 v{V}, s{60 + 2 * r}, v{K}, -v{V}')
            elif step in (1, 3, 5):
                rnd(V, V)
            elif step == 2:
                a(f'v_add_f32 v{V}, 0x3727c5ac, v{V}')
            elif step == 4:
                a(f'v_sqrt_f32 v{V}, v{V}')
            elif step == 6:
                a(f'v_rcp_f32 v{V + 1}, v{V}')
            else:
                a(f'v_rcp_f32 v{V}, v{V}')
    for r in range(2):
        for i in range(16):
            rnd(N[r] + i, XP[r] + i)
    for r in range(2):
        for i in range(8):
            pk('mul', N[r] + 2 * i, N[r] + 2 * i, MV[r] + 2)
    for r in range(2):
        for i in range(16):
            rnd(N[r] + i, N[r] + i)


def key_poll(dst):
    a('v_lshlrev_b32 v4, 7, v1')
    a(f's_mov_b32 s65, {WS_KEYS}')
    a(f's_mov_b32 s66, {WS_KEYS + 8192}')
    if opt('kcan', 1):
        a('s_lshl_b32 s62, s3, 7')
        a(f's_add_u32 s62, s62, {WS_KEYS + 4}')
        a('s_mov_b64 exec, 1')
        retry_loop(a.newlabel('kc'), [f'buffer_load_dword v8, v4, {WSR}, s62 offen sc1'], lambda: a('v_cmp_ne_u32 vcc, s8, v8'), sleep=opt('kcsleep', 2))
        stamp('kcan')
    loads = [f'buffer_load_dwordx2 v[{16 + 2 * p}:{17 + 2 * p}], v4, {WSR}, s{65 + p} offen sc1' for p in range(2)]

    def chk():
        a('v_xor_b32 v8, s8, v17')
        a('v_xor_b32 v9, s8, v19')
        a('v_max_u32 v12, v16, v18')
        a('v_or_b32 v8, v8, v9')
        a('v_cmp_ne_u32 vcc, 0, v8')
    retry_loop(a.newlabel('pk'), loads, chk, sleep=opt('ksleep', 2))
    wave_reduce('v_max_u32', 12)
    a(f'v_readlane_b32 s{dst}, v12, 63')


def k_main():
    kernel_begin(a, KN)
    a('s_cmp_ge_u32 s2, 256')
    a('s_cbranch_scc1 main_done')
    stamp_begin(0)
    if opt('dbg', 0):
        a('s_load_dwordx2 s[100:101], s[0:1], 96')
    for sr, off in ((S_WS, 104), (S_K, 8), (S_V, 16), (S_SK, 24), (S_H, 32), (10, 40), (S_Q, 0), (S_WR, 56), (S_OUT, 88), (S_G, 64), (S_U, 72), (S_D, 80)):
        a(f's_load_dwordx2 s[{sr}:{sr + 1}], s[0:1], {off}')
    if CODEPF:
        a('s_getpc_b64 s[4:5]')
        a('pc0:')
        a('s_mov_b32 s6, main_done-pc0')
        a('s_mov_b32 s7, 0x00020000')
        a('s_lshr_b32 s3, s2, 3')
        a(f's_mul_i32 s3, s3, {CODEPF * 128}')
        a('v_lshlrev_b32 v3, 7, v0')
        a(f'v_cmp_gt_u32 vcc, {CODEPF}, v0')
        a('s_and_saveexec_b64 s[60:61], vcc')
        a('s_cbranch_execz no_codepf')
        a('buffer_load_dword v252, v3, s[4:7], s3 offen')
        a('no_codepf:')
        a('s_mov_b64 exec, -1')
    a('s_lshr_b32 s5, s2, 4')
    a('s_and_b32 s4, s2, 7')
    a('s_lshl_b32 s4, s4, 1')
    a('s_bfe_u32 s6, s2, 0x10003')
    a('s_or_b32 s4, s4, s6')
    a('s_lshl_b32 s2, s4, 4')
    a('s_or_b32 s2, s2, s5')
    a('v_lshrrev_b32 v3, 6, v0')
    a('v_and_b32 v1, 63, v0')
    a('v_readfirstlane_b32 s12, v3')
    a('v_lshlrev_b32 v2, 4, v1')
    a(f'v_mov_b32 v{VC}, {L_CNT}')
    a(f'v_mov_b32 v{V1}, 1')
    for r in range(6):
        a(f'v_mov_b32 v{144 + r}, 0')
    for r in range(4):
        a(f'v_mov_b32 v{240 + r}, -1')
    a('s_cmp_eq_u32 s12, 0')
    a('s_cbranch_scc0 no_cnt_init')
    a('s_mov_b64 exec, 1')
    a(f'ds_write_b128 v{VC}, v[144:147]')
    a(f'ds_write_b128 v{VC}, v[144:147] offset:16')
    a(f'ds_write_b128 v{VC}, v[144:147] offset:32')
    a('s_mov_b64 exec, -1')
    a('no_cnt_init:')
    for sr, n in ((S_WS, WS_SIZE), (S_K, MB4), (S_V, MB4), (S_SK, 8192), (S_H, 4096), (S_Q, MB4), (S_WR, 2048), (S_OUT, MB4),
                  (S_G, 1024 * 7168), (S_U, 1024 * 7168), (S_D, 3584 * 2048)):
        a(f's_mov_b32 s{sr + 2}, {n}')
        a(f's_mov_b32 s{sr + 3}, 0x00020000')
    a('s_and_b32 s13, s12, 3')
    if opt('gmix', 1):
        a('s_and_b32 s14, s12, 1')
        a('s_xor_b32 s4, s4, s14')
    a('s_lshr_b32 s14, s12, 2')
    if CPERM:
        a('s_bfe_u32 s15, s2, 0x20005')
        a('s_lshl_b32 s15, s15, 1')
        a('s_lshr_b32 s9, s2, 7')
        a('s_xor_b32 s9, s9, 1')
        a('s_or_b32 s15, s15, s9')
        a('s_and_b32 s9, s4, 1')
        a('s_lshl_b32 s7, s15, 1')
        a('s_or_b32 s7, s7, s9')
        a('s_lshl_b32 s15, s15, 5')
        a('s_and_b32 s9, s2, 31')
        a('s_or_b32 s15, s15, s9')
        a('s_lshl_b32 s15, s15, 2')
    else:
        a('s_mov_b32 s7, s4')
        a('s_lshl_b32 s15, s2, 2')
    a('s_add_u32 s15, s15, s13')
    a('s_lshr_b32 s3, s2, 1')
    a('v_and_b32 v4, 15, v1')
    a('v_lshrrev_b32 v5, 4, v1')
    a('v_and_b32 v10, 31, v1')
    a('v_lshrrev_b32 v11, 5, v1')
    a('v_lshrrev_b32 v6, 3, v1')
    a('v_lshlrev_b32 v8, 11, v6')
    a('v_lshlrev_b32 v6, 13, v6')
    a('v_and_b32 v7, 7, v1')
    a('v_lshl_add_u32 v6, v7, 4, v6')
    a('v_lshl_add_u32 v8, v7, 4, v8')
    a('s_lshl_b32 s62, s4, 17')
    a('s_lshl_b32 s63, s13, 11')
    a('s_add_u32 s62, s62, s63')
    a('s_lshl_b32 s63, s14, 21')
    a('s_add_u32 s62, s62, s63')
    a(f's_add_u32 s62, s62, {WS_KV}')
    a('s_lshl_b32 s63, s5, 7')
    a('s_add_u32 s62, s62, s63')
    a('s_add_u32 s63, s62, 0x10000')
    a('s_lshl_b32 s64, s12, 19')
    a('s_lshl_b32 s65, s5, 15')
    a('s_add_u32 s64, s64, s65')
    a('s_lshl_b32 s65, s7, 7')
    a('s_add_u32 s64, s64, s65')
    a('s_add_u32 s65, s64, 16384')
    a('s_sub_u32 s77, s64, 6144')
    a('s_cselect_b32 s77, 0x40000000, s77')
    a('s_lshl_b32 s79, s7, 9')
    a('v_lshlrev_b32 v9, 4, v10')
    a('s_lshl_b32 s67, s15, 12')
    a('s_lshl_b32 s70, s15, 1')
    a('s_and_b32 s70, s70, 0xfffffffc')
    a(f's_xor_b32 s68, s3, {RSW}')
    a('s_lshl_b32 s68, s68, 4')
    a('s_lshl_b32 s69, s13, 2')
    a('s_add_u32 s68, s68, s69')
    a('s_lshl_b32 s69, s68, 11')
    a('s_mul_i32 s66, s12, 4608')
    a(f's_add_u32 s66, s66, {L_P0}')
    a(f's_mov_b32 s6, {WS_EPOCH}')
    a('s_mov_b32 m0, s66')
    a('s_waitcnt lgkmcnt(0)')
    stamp('karg')
    if WSOFF:
        a(f's_add_u32 s{S_WS}, s{S_WS}, {WSOFF}')
        a(f's_addc_u32 s{S_WS + 1}, s{S_WS + 1}, 0')
    a(f's_load_dword s8, s[{S_WS}:{S_WS + 1}], s6')
    a('s_load_dword s9, s[10:11], s70')
    KR, VR, SKR = 16, 28, 36

    GL = 96
    a('s_cmp_eq_u32 s14, 0')
    a('s_cbranch_scc1 ld_kv')
    a(f's_add_u32 s{S_H}, s{S_H}, s67')
    a(f's_addc_u32 s{S_H + 1}, s{S_H + 1}, 0')
    a('s_barrier')
    for i in range(4):
        a(f'buffer_load_dwordx4 v[{GL + 6 * i}:{GL + 6 * i + 3}], v2, s[{S_H}:{S_H + 3}], 0 offen offset:{1024 * i} nt')
    if opt('hipos', 0) >= 8:
        lds_spin('kvq', 32, opt('hipos', 0) - 4, 3)
    elif opt('hipos', 0):
        a(f's_waitcnt vmcnt({4 - opt("hipos", 0)})')
    a('ld_kv:')
    a(f'buffer_load_dwordx4 v[{SKR}:{SKR + 3}], v9, s[{S_SK}:{S_SK + 3}], s79 offen')
    a('s_mov_b64 exec, 0xffffff')
    a(f'buffer_load_dwordx4 v8, s[{S_K}:{S_K + 3}], s77 offen nt lds')
    a('s_mov_b64 exec, -1')
    for (sr, so, lo) in ((S_K, 64, 384), (S_K, 65, 1408), (S_V, 64, 2432), (S_V, 65, 3456)):
        a(f's_add_u32 m0, s66, {lo}')
        a(f'buffer_load_dwordx4 v8, s[{sr}:{sr + 3}], s{so} offen nt lds')
    a('s_cmp_eq_u32 s14, 0')
    a('s_cbranch_scc0 ld_done')
    a('s_barrier')
    a('ld_done:')
    a(f's_mul_i32 s67, s13, {CS}')
    a('s_mov_b32 s74, 0x05040100')
    a('s_mov_b32 s75, 0x07060302')
    a('v_lshlrev_b32 v92, 10, v11')
    a('v_lshl_add_u32 v92, v10, 2, v92')
    a('v_add_u32 v92, s66, v92')
    a('v_add_u32 v93, 1024, v92')
    a('v_add_u32 v94, 2432, v92')
    a('v_lshrrev_b32 v8, 1, v10')
    a('v_mul_u32_u24 v8, 144, v8')
    a('v_and_b32 v9, 1, v10')
    a('v_lshl_add_u32 v8, v9, 6, v8')
    a('v_sub_u32 v9, 1, v11')
    a('v_lshl_add_u32 v8, v9, 4, v8')
    a('v_add_u32 v8, s66, v8')
    a('v_lshrrev_b32 v9, 3, v1')
    a('v_mul_u32_u24 v9, 144, v9')
    a('v_lshl_add_u32 v9, v7, 4, v9')
    a('v_add_u32 v9, s66, v9')
    a('v_add_u32 v160, s67, v2')
    a('v_and_b32 v161, 3, v1')
    a(f'v_mul_u32_u24 v161, {GS}, v161')
    a('v_bfe_u32 v162, v1, 2, 2')
    a('v_lshl_add_u32 v161, v162, 3, v161')
    a('v_lshl_add_u32 v161, v5, 4, v161')
    a('v_add_u32 v161, s67, v161')
    a(f's_add_u32 s60, s67, {UOFF + 480}')
    a('v_lshlrev_b32 v163, 5, v4')
    a('v_sub_u32 v162, s60, v163')
    a('v_lshl_add_u32 v162, v5, 4, v162')
    a('v_lshl_add_u32 v163, v5, 3, v163')
    a('s_lshl_b32 s60, s13, 12')
    a(f's_add_u32 s60, s60, {L_YL}')
    a('v_add_u32 v163, s60, v163')
    a('v_bfe_u32 v165, v1, 1, 2')
    a(f'v_mul_u32_u24 v165, {CS}, v165')
    a('v_and_b32 v166, 1, v1')
    a('v_lshl_add_u32 v165, v166, 4, v165')
    a('v_lshrrev_b32 v166, 3, v1')
    a('v_lshlrev_b32 v166, 5, v166')
    a('v_sub_u32 v165, v165, v166')
    a('s_lshl_b32 s60, s12, 9')
    a(f's_sub_u32 s60, {UOFF + 4064 - 256}, s60')
    a('v_add_u32 v165, s60, v165')
    a('s_lshl_b32 s78, s2, 13')
    a('s_lshl_b32 s60, s13, 11')
    a('s_add_u32 s78, s78, s60')
    a('s_lshl_b32 s60, s14, 21')
    a('s_add_u32 s78, s78, s60')
    a(f's_add_u32 s78, s78, {WS_KV}')
    a('v_lshl_add_u32 v166, v5, 3, v4')
    a('v_sub_u32 v166, 15, v166')
    a('v_and_b32 v167, 1, v166')
    a('v_lshlrev_b32 v167, 4, v167')
    a('v_ashrrev_i32 v166, 1, v166')
    a(f'v_mul_u32_u24 v150, {GS}, v1')
    a('v_add_u32 v150, s67, v150')
    a('v_lshlrev_b32 v245, 7, v4')
    a('v_bfe_u32 v248, v1, 3, 2')
    a('v_lshlrev_b32 v248, 13, v248')
    a('v_lshl_add_u32 v248, v7, 7, v248')
    a('v_lshlrev_b32 v251, 4, v0')
    a(f'v_lshrrev_b32 v{VG8}, 3, v0')
    a(f'v_lshlrev_b32 v{VG8}, 3, v{VG8}')
    a(f'v_mul_u32_u24 v{VXA}, {2 * RS}, v7')
    a(f'v_add_u32 v{VXA}, v{VXA}, v{VG8}')
    a(f'v_add_u32 v{VXA}, {L_YT}, v{VXA}')
    a(f'v_add_u32 v{VWA}, {L_W}, v{VG8}')
    a(f'v_lshlrev_b32 v{VSA}, 5, v7')
    a(f'v_add_u32 v{VSA}, {L_ST}, v{VSA}')
    a(f'v_bfe_u32 v{VKL}, v1, 3, 1')
    a(f'v_lshl_add_u32 v{VKL}, v7, 1, v{VKL}')
    a(f'v_mul_u32_u24 v{VPR}, {PS}, v{VKL}')
    a(f'v_lshl_add_u32 v{VPR}, v5, 6, v{VPR}')
    a(f'v_lshl_add_u32 v{VPW}, v7, 1, v11')
    a(f'v_mul_u32_u24 v{VPW}, {PS}, v{VPW}')
    a('v_and_b32 v3, 1, v5')
    a(f'v_lshl_add_u32 v{VPW}, v3, 4, v{VPW}')
    a('s_lshl_b32 s60, s12, 5')
    a(f'v_add_u32 v{VPW}, s60, v{VPW}')
    a(f's_xor_b32 s60, s3, {RSW}')
    a('s_lshl_b32 s60, s60, 4')
    a('s_sub_u32 s60, 2047, s60')
    a(f'v_sub_u32 v{VKL}, s60, v{VKL}')
    a(f's_mul_i32 s60, s13, {4 * RS}')
    a(f's_add_u32 s60, s60, {L_YT}')
    a(f'v_add_u32 v{VRA}, s60, v2')
    a(f'v_lshrrev_b32 v{VBIT}, 3, v1')
    a(f'v_lshlrev_b32 v{VBIT}, v{VBIT}, 1')
    a('v_and_b32 v253, 255, v0')
    a('v_lshlrev_b32 v253, 3, v253')
    a('v_lshlrev_b32 v237, 1, v253')
    a(f'v_lshlrev_b32 v247, {SH}, v5')
    a('v_lshl_add_u32 v247, v4, 4, v247')
    a('s_mov_b64 exec, 0xf')
    a('ds_write_b128 v150, v[144:147]')
    a('s_mov_b64 exec, 0x3fffffff')
    a(f'ds_write_b128 v160, v[144:147] offset:{UOFF + 4096}')
    a('s_mov_b64 exec, -1')
    WFp, KF, O, PKD = 40, 48, 70, 86
    a('s_waitcnt lgkmcnt(0)')
    a('s_add_u32 s8, s8, 0x9e3779b9')
    a('s_or_b32 s8, s8, 1')
    a('s_and_b32 s61, s15, 1')
    a('s_lshl_b32 s61, s61, 4')
    a('s_lshr_b32 s9, s9, s61')
    a('s_and_b32 s9, s9, 0xffff')
    a('v_lshlrev_b32 v167, v167, s9')
    for r in range(4):
        a(f'v_cmp_eq_u32 vcc, {r}, v166')
        a(f'v_cndmask_b32 v{168 + r}, 0, v167, vcc')
    a('s_lshl_b32 s64, s4, 11')
    a(f's_add_u32 s64, s64, {WS_FA}')
    a('s_lshl_b32 s65, s2, 7')
    a('s_lshr_b32 s15, s15, 2')
    a('s_lshl_b32 s15, s15, 7')
    a(f's_add_u32 s7, s15, {WS_FB}')
    a(f's_add_u32 s65, s65, {WS_FA}')
    a('v_mov_b32 v13, s8')
    a('v_mov_b32 v14, 0')
    a(f's_add_u32 s10, s65, {WS_FA2 - WS_FA}')
    a('s_cmp_eq_u32 s12, 0')
    a('s_cselect_b32 s60, s10, 0x40000000')
    a('s_mov_b64 exec, 0xff')
    a(f'buffer_store_dwordx4 v[144:147], v2, {WSR}, s60 offen')
    a('s_mov_b64 exec, -1')
    XV = 1
    a('s_lshl_b32 s60, s12, 2')
    a('s_add_u32 s64, s64, s60')
    a('s_add_u32 s65, s65, s60')
    a('s_add_u32 s10, s10, s60')
    a(f's_add_u32 s11, s64, {WS_FA2 - WS_FA}')
    if DYN:
        a('s_memrealtime s[4:5]')
    a('s_cmp_eq_u32 s14, 0')
    a('s_cbranch_scc1 p0')
    LATER = 6 + XV
    a(f's_waitcnt vmcnt({LATER + 3})')
    a(f'v_readlane_b32 s76, v{GL}, 0')
    a(f'v_readlane_b32 s77, v{GL + 1}, 0')
    a('s_lshl_b32 s70, s76, 16')
    a('s_lshr_b32 s61, s76, 16')
    a('s_lshl_b32 s71, s77, 16')
    a('s_or_b32 s61, s61, s71')
    a('v_writelane_b32 v149, s70, 0')
    a('v_writelane_b32 v149, s76, 1')
    a('v_writelane_b32 v149, s61, 2')
    a('v_writelane_b32 v149, s77, 3')
    a('v_writelane_b32 v148, s70, 2')
    a('v_writelane_b32 v148, s76, 3')
    a('s_mov_b64 exec, 0xf')
    a('ds_write_b128 v150, v[146:149] offset:16')
    a('s_mov_b64 exec, -1')
    for i in range(4):
        w = GL + 6 * i
        a(f'v_mov_b32_dpp v{w + 4}, v{w} wave_shl:1 row_mask:0xf bank_mask:0xf bound_ctrl:0')
        a(f'v_mov_b32_dpp v{w + 5}, v{w + 1} wave_shl:1 row_mask:0xf bank_mask:0xf bound_ctrl:0')
        if i < 3:
            a(f's_waitcnt vmcnt({LATER + 2 - i})')
            a(f'v_readlane_b32 s70, v{w + 6}, 0')
            a(f'v_readlane_b32 s71, v{w + 7}, 0')
            a(f'v_writelane_b32 v{w + 4}, s70, 63')
            a(f'v_writelane_b32 v{w + 5}, s71, 63')
        ta, tb, tc = 176 + 12 * i, 180 + 12 * i, 184 + 12 * i
        a(f'ds_write_b128 v160, v[{w + 2}:{w + 5}] offset:{32 + 1024 * i + 3 * GS}')
        for j in range(4):
            a(f'v_alignbit_b32 v{ta + j}, v{w + j + 1}, v{w + j}, 16')
        a(f'ds_write_b128 v160, v[{ta}:{ta + 3}] offset:{32 + 1024 * i + 0 * GS}')
        for j in range(4):
            a(f'v_alignbit_b32 v{tb + j}, v{w + j + 2}, v{w + j + 1}, 16')
        a(f'ds_write_b128 v160, v[{tb}:{tb + 3}] offset:{32 + 1024 * i + 2 * GS}')
        for j in range(4):
            a(f'v_mov_b32 v{tc + j}, v{w + j + 1}')
        a(f'ds_write_b128 v160, v[{tc}:{tc + 3}] offset:{32 + 1024 * i + 1 * GS}')
    lds_inc(20)
    a(f'v_add_u32 v239, {L_W}, v2')
    a('v_and_b32 v244, 1, v5')
    a('v_lshl_add_u32 v244, v244, 1, v11')
    a('v_lshlrev_b32 v244, 4, v244')
    a('s_lshl_b32 s60, s13, 6')
    a(f's_add_u32 s60, s60, {L_ST}')
    a('v_add_u32 v244, s60, v244')
    a('s_waitcnt lgkmcnt(0)')
    for p in range(4):
        a(f'v_mov_b32 v{YR[0] + 4 * p}, -1')
    a('s_lshl_b32 s60, s13, 5')
    a(f's_add_u32 s60, s60, {L_X}')
    a('v_mov_b32 v201, s60')
    a(f'v_mul_u32_u24 v203, {RP}, v4')
    a('v_lshl_add_u32 v203, v5, 5, v203')
    a(f's_mul_i32 s60, s13, {16 * RP}')
    a('v_add_u32 v203, s60, v203')
    a(f'v_mul_u32_u24 v205, {RP}, v5')
    a('v_lshl_add_u32 v205, v4, 4, v205')
    a(f's_mul_i32 s60, s13, {4 * RP}')
    a('v_add_u32 v205, s60, v205')
    stamp('gdone')
    a('p0:')
    a(f's_waitcnt vmcnt({5 + XV})')
    for jj in range(2):
        unpack(WFp + 0 + jj, WFp + 2 + jj, SKR + 2 * jj)
        unpack(WFp + 4 + jj, WFp + 6 + jj, SKR + 2 * jj + 1)
    a(f's_waitcnt vmcnt({2 + XV})')
    stamp('kdata')
    for r in range(0, 8, 2):
        a(f'ds_read2_b32 v[{KR + r}:{KR + r + 1}], v92 offset0:{32 * r} offset1:{32 * r + 32}')
    a(f'ds_read2_b32 v[{KR + 8}:{KR + 9}], v93 offset0:0 offset1:32')
    a(f'ds_read_b32 v{KR + 10}, v93 offset:256')
    a(f's_waitcnt vmcnt({0 + XV})')
    for r in range(0, 8, 2):
        a(f'ds_read2_b32 v[{VR + r}:{VR + r + 1}], v94 offset0:{32 * r} offset1:{32 * r + 32}')
    for r in range(11):
        if r % 2 == 0:
            a(f's_waitcnt lgkmcnt({9 - r // 2})')
        unpack(KF + 2 * r, KF + 2 * r + 1, KR + r)
    for t in range(4):
        tap = 3 - t
        for r in range(8):
            if t == 0:
                pk('mul', O + 2 * r, KF + 2 * (r + t), WFp + 2 * tap)
            else:
                pk('fma', O + 2 * r, KF + 2 * (r + t), WFp + 2 * tap, O + 2 * r)
    a('s_waitcnt lgkmcnt(0)')
    for r in range(8):
        unpack(KF + 2 * r, KF + 2 * r + 1, VR + r)
    for r in range(8):
        pk('mul', O + 2 * r, O + 2 * r, KF + 2 * r)
    for jj in range(2):
        d = PKD + 2 + 4 * jj
        for m in range(4):
            a(f'v_cvt_pk_bf16_f32 v{d + m}, v{O + 2 * (7 - 2 * m) + jj}, v{O + 2 * (6 - 2 * m) + jj}')
        a(f'ds_write_b128 v8, v[{d}:{d + 3}] offset:{32 * jj}')
    a('s_waitcnt lgkmcnt(0)')
    if opt('hhold', 0):
        a('s_cmp_eq_u32 s14, 0')
        a('s_cbranch_scc1 hh_go')
        lds_spin('hh', 32, opt('hhold', 0), 3)
    a('ds_read_b128 v[16:19], v9')
    a(f'ds_read_b128 v[20:23], v9 offset:{8 * 144}')
    a('s_waitcnt lgkmcnt(1)')
    a(f'buffer_store_dwordx4 v[16:19], v6, {KVR}, s62 offen sc1')
    a('s_waitcnt lgkmcnt(0)')
    a(f'buffer_store_dwordx4 v[20:23], v6, {KVR}, s63 offen sc1')
    stamp('kvst')
    if opt('hipos', 0) == 8:
        lds_inc(32)
    UP = 120
    a('s_waitcnt vmcnt(0)')
    stamp('kvack')
    a('s_mov_b64 exec, 1')
    a(f'buffer_store_dword v13, v14, {WSR}, s10 offen')
    FL2 = opt('fl2', 1)
    if not FL2:
        a(f'buffer_store_dword v13, v14, {WSR}, s65 offen sc1')
    EX, EF = opt('ex', 0), opt('ef', 0)
    GW, XH = 64, 68

    def gu_base():
        a('s_and_b32 s76, s3, 15')
        a('s_lshl_b32 s77, s76, 2')
        a('s_add_u32 s77, s77, s13')
        a(f's_mul_i32 s77, s77, {16 * 7168}')
        a('s_lshr_b32 s60, s3, 4')
        a('s_lshl_b32 s60, s60, 10')
        a('s_add_u32 s77, s77, s60')
    steps = []
    for i in range(16):
        for m, sr in ((0, S_G), (1, S_U)):
            r = GW + 64 * m + 4 * i
            steps.append([f'buffer_load_dwordx4 v[{r}:{r + 3}], v2, s[{sr}:{sr + 3}], s77 offen nt'])
        steps[-1].append('s_add_u32 s77, s77, 7168')

    def x_load(i):
        a(f'buffer_load_dwordx4 v[{XH + 4 * i}:{XH + 4 * i + 3}], v2, s[{S_Q}:{S_Q + 3}], s{69 + (i >> 2)} offen offset:{1024 * (i & 3)} nt')
    if EX or EF:
        a('s_mov_b64 exec, -1')
        a('s_cmp_eq_u32 s14, 0')
        a('s_cbranch_scc1 early_done')
        gu_base()
        a('s_add_u32 s70, s69, 4096')
        lds_spin('eh', 32, 4, 3)
        a('s_bitcmp0_b32 s2, 0')
        a('s_cbranch_scc0 early_ffn')
        for i in range(EX):
            x_load(i)
        a('s_branch early_done')
        a('early_ffn:')
        a('s_cmp_lt_u32 s3, 112')
        a('s_cbranch_scc0 early_done')
        for k in range(EF):
            for l in steps[k]:
                a(l)
        a('early_done:')
    a('s_mov_b64 exec, 0xffff')
    a('s_mov_b32 s61, 0')
    a('fa2_again:')
    a(f'buffer_load_dword v246, v245, {WSR}, s11 offen sc1')
    a('s_add_u32 s61, s61, 1')
    a('s_waitcnt vmcnt(0)')
    a('v_cmp_ne_u32 vcc, s8, v246')
    a('s_cbranch_vccz fa_ok')
    a('s_mov_b64 exec, vcc')
    if opt('fa2sleep', 0):
        a(f's_sleep {opt("fa2sleep", 0)}')
    a(f's_cmp_lt_u32 s61, {DUAL}')
    a('s_cbranch_scc1 fa2_again')
    if FL2:
        a(f'buffer_store_dword v13, v14, {WSR}, s65 offen sc1')
    retry_loop('fa', [f'buffer_load_dword v246, v245, {WSR}, s64 offen sc1'], lambda: a('v_cmp_ne_u32 vcc, s8, v246'), sleep=opt('fasleep', 1))
    stamp('faok')
    for q in range(2):
        a(f'buffer_load_dwordx4 v[{UP + 4 * q}:{UP + 4 * q + 3}], v2, {KVR}, s78 offen offset:{1024 * q}{KVL}')
    if FL2:
        a('s_mov_b64 exec, 1')
        a(f'buffer_store_dword v13, v14, {WSR}, s65 offen sc1')
        a('s_mov_b64 exec, -1')
    a('s_cmp_eq_u32 s14, 0')
    a('s_cbranch_scc0 helper')

    ACC = 16
    FA_ = [48, 196]
    FB_ = [80, 112]

    def readsA(s, c):
        out = []
        for j in range(8):
            out.append(f'ds_read_b64 v[{s + 4 * j}:{s + 4 * j + 1}], v161 offset:{64 * (8 * j + c)}')
            out.append(f'ds_read_b64 v[{s + 4 * j + 2}:{s + 4 * j + 3}], v161 offset:{64 * (8 * j + c) + 8}')
        return out

    def readsB(s, c):
        return [f'ds_read_b128 v[{s + 4 * z}:{s + 4 * z + 3}], v162 offset:{64 * (56 - (8 * z - c))}' for z in range(8)]

    def y_fill():
        a('v_bfe_u32 v182, v0, 3, 5')
        a('v_lshlrev_b32 v182, 15, v182')
        a('v_lshl_add_u32 v182, v7, 4, v182')
        a('s_mov_b32 s62, s15')
        for q in range(4):
            a(f'buffer_store_dwordx4 v[240:243], v182, {XBR}, s62 offen sc1')
            if q < 3:
                a('s_add_u32 s62, s62, 0x100000')

    if opt('hhold', 0) or EX or EF:
        lds_inc(32)
    lds_spin('g4', 20, 4, 153)
    for r in readsA(FA_[0], 0):
        a(r)
    for q in range(2):
        a(f's_waitcnt vmcnt({1 - q + FL2})')
        a(f'ds_write_b128 v165, v[{UP + 4 * q}:{UP + 4 * q + 3}] offset:{256 - 256 * q}')
    lds_inc(12)
    stamp('u0')
    if FILLBY == 1 and opt('fst', -1) < 0:
        y_fill()
    lds_spin('u4', 12, 4, 153)
    stamp('mf0')
    for r in readsB(FB_[0], 0)[:4]:
        a(r)

    def mfma(w, A, B, init=False):
        c = '0' if init else f'v[{ACC + 4 * w}:{ACC + 4 * w + 3}]'
        a(f'v_mfma_f32_16x16x32_bf16 v[{ACC + 4 * w}:{ACC + 4 * w + 3}], v[{A}:{A + 3}], v[{B}:{B + 3}], {c}')

    def ystage(w):
        E = 172 + 2 * (w & 3)
        return [f'v_cvt_pk_bf16_f32 v{E}, v{ACC + 4 * w}, v{ACC + 4 * w + 1}',
                f'v_cvt_pk_bf16_f32 v{E + 1}, v{ACC + 4 * w + 2}, v{ACC + 4 * w + 3}',
                f'ds_write_b64 v163, v[{E}:{E + 1}] offset:{512 * w}']

    gsetup = ['v_lshlrev_b32 v180, 2, v0', f'v_add_u32 v180, {L_YL}, v180', 'v_add_u32 v181, 0x2000, v180',
              'v_lshrrev_b32 v182, 3, v0', 'v_lshlrev_b32 v182, 15, v182', 'v_lshl_add_u32 v182, v7, 4, v182',
              's_mov_b32 s62, s15', 's_add_u32 s63, s62, 0x100000', 's_add_u32 s64, s62, 0x200000', 's_add_u32 s65, s62, 0x300000',
              's_lshl_b32 s6, s12, 10', f's_add_u32 s6, s6, {WS_FB}',
              's_bitcmp0_b32 s2, 0', 's_cselect_b32 s66, s69, 0x40000000', 's_cselect_b32 s70, 0, 0x40000000', 's_cselect_b32 s71, s6, 0x40000000']
    WR2 = 152

    def gather(p0_, sregs, GR, GP):
        rd, out = [], []
        for ch in range(4):
            base = 180 + (ch >> 1)
            rd.append(f'ds_read2st64_b32 v[{GR + 2 * ch}:{GR + 2 * ch + 1}], v{base} offset0:{16 * (ch & 1) + 4 * p0_} offset1:{16 * (ch & 1) + 4 * p0_ + 4}')
        for p in range(2):
            g = GP + 4 * p
            out.append(f'v_perm_b32 v{g}, v{GR + 2 + p}, v{GR + p}, s74')
            out.append(f'v_perm_b32 v{g + 1}, v{GR + 6 + p}, v{GR + 4 + p}, s74')
            out.append(f'v_perm_b32 v{g + 2}, v{GR + 2 + p}, v{GR + p}, s75')
            out.append(f'v_perm_b32 v{g + 3}, v{GR + 6 + p}, v{GR + 4 + p}, s75')
            out.append(f'buffer_store_dwordx4 v[{g}:{g + 3}], v182, {XBR}, s{sregs[p]} offen sc1')
        return rd, out

    fbload = f'buffer_load_dword v249, v248, {WSR}, s6 offen sc1'
    PY = YR[0]
    YM = 16

    GM = 48

    def y_setup(regs=True):
        for p in range(4):
            a(f's_mov_b64 s[{YM + 2 * p}:{YM + 2 * p + 1}], -1')
            if regs:
                a(f'v_mov_b32 v{PY + 4 * p}, -1')
        a(f's_xor_b32 s24, s3, {RSW}')
        a('s_lshl_b32 s24, s24, 15')
        for p in range(1, 4):
            a(f's_add_u32 s{24 + p}, s24, {8192 * p}')
        a('s_mov_b64 s[0:1], -1')

    def fb_check():
        lab = a.newlabel('fbk')
        a('s_cmp_eq_u32 s0, 0')
        a(f's_cbranch_scc1 {lab}')
        a('v_cmp_ne_u32 s[0:1], s8, v249')
        for p in range(4):
            a(f's_lshr_b32 s9, s0, {8 * p}')
            a(f'v_and_b32 v250, s9, v{VBIT}')
            a(f'v_cmp_eq_u32 s[{GM + 2 * p}:{GM + 2 * p + 1}], 0, v250')
        a(f'{lab}:')

    def y_issue():
        lab = a.newlabel('yf')
        a('s_mov_b32 exec_lo, s0')
        a('s_mov_b32 exec_hi, 0')
        a(f's_cbranch_execz {lab}')
        a(fbload)
        a(f'{lab}:')
        for p in range(4):
            lab = a.newlabel('yi')
            a(f's_and_b64 exec, s[{YM + 2 * p}:{YM + 2 * p + 1}], s[{GM + 2 * p}:{GM + 2 * p + 1}]')
            a(f's_cbranch_execz {lab}')
            a(f'buffer_load_dwordx4 v[{PY + 4 * p}:{PY + 4 * p + 3}], v251, {XBR}, s{24 + p} offen sc1')
            a(f'{lab}:')
        a('s_mov_b64 exec, -1')

    def y_check():
        a('s_waitcnt vmcnt(0)')
        fb_check()
        for p in range(4):
            a(f'v_max3_u32 v250, v{PY + 4 * p}, v{PY + 4 * p + 1}, v{PY + 4 * p + 2}')
            a(f'v_max_u32 v250, v250, v{PY + 4 * p + 3}')
            a(f'v_cmp_eq_u32 s[{YM + 2 * p}:{YM + 2 * p + 1}], -1, v250')
        a(f's_or_b64 s[28:29], s[{YM}:{YM + 1}], s[{YM + 2}:{YM + 3}]')
        a(f's_or_b64 s[30:31], s[{YM + 4}:{YM + 5}], s[{YM + 6}:{YM + 7}]')
        a('s_or_b64 s[28:29], s[28:29], s[30:31]')

    AC = [116, 122]
    ST = [128, 132]
    TY = 68

    def prep_a():
        lds_spin(a.newlabel('xr'), 12, 8, 3)
        RX, RW = 76, 92
        for r in range(2):
            for p in range(4):
                a(f'ds_read_b64 v[{RX + 8 * r + 2 * p}:{RX + 8 * r + 2 * p + 1}], v{VXA} offset:{512 * p + RS * r}')
        for p in range(4):
            a(f'ds_read_b64 v[{RW + 2 * p}:{RW + 2 * p + 1}], v{VWA} offset:{512 * p}')
        for i in range(0, 12, 2):
            a(f'v_mov_b64 v[{AC[0] + i}:{AC[0] + i + 1}], 0')
        a('s_mov_b32 s72, 0')
        for r in range(2):
            a(f's_waitcnt lgkmcnt({8 - 4 * r})')
            for i in range(8):
                unpack(XP[r] + 2 * i, XP[r] + 2 * i + 1, RX + 8 * r + i)
        a('s_waitcnt lgkmcnt(0)')
        for i in range(8):
            unpack(WF + 2 * i, WF + 2 * i + 1, RW + i)

    def prep_b():
        lds_spin(a.newlabel('xs'), 28, 4, 3)
        for r in range(2):
            a(f'ds_read_b128 v[{ST[r]}:{ST[r] + 3}], v{VSA} offset:{16 * r}')
        a(f'ds_read_b32 v3, v{VC} offset:{L_SW - L_CNT}')
        for r in range(2):
            a(f's_waitcnt lgkmcnt({2 - r})')
            for i in range(8):
                pk('fma', N[r] + 2 * i, XP[r] + 2 * i, ST[r] + 2, ST[r])
        a('s_waitcnt lgkmcnt(0)')
        a('v_readfirstlane_b32 s71, v3')
        stamp('lnx')

    def y_fold():
        for p in range(4):
            lab = a.newlabel('yd')
            a(f's_bitcmp1_b32 s72, {p}')
            a(f's_cbranch_scc1 {lab}')
            a(f's_cmp_eq_u64 s[{YM + 2 * p}:{YM + 2 * p + 1}], 0')
            a(f's_cbranch_scc0 {lab}')
            a(f's_bitset1_b32 s72, {p}')
            for i in range(4):
                unpack(TY + 2 * i, TY + 2 * i + 1, PY + 4 * p + i)
            for i in range(4):
                e = XP[i >> 1] + 4 * p + 2 * (i & 1)
                pk('fma', e, TY + 2 * i, N[i >> 1] + 4 * p + 2 * (i & 1), e)
            for k in range(2):
                for r in range(2):
                    e = XP[r] + 4 * p + 2 * k
                    pk('add', AC[r], AC[r], e)
                    pk('fma', AC[r] + 2, e, e, AC[r] + 2)
                    pk('fma', AC[r] + 4, e, WF + 4 * p + 2 * k, AC[r] + 4)
            a(f'{lab}:')

    def spread(pairs, low_first=False):
        out, left = [], list(pairs)
        if low_first:
            left.sort(key=lambda q: q[0])

        def feasible(rest, prev):
            cnt = {}
            for q in rest:
                cnt[q[0]] = cnt.get(q[0], 0) + 1
            n = len(rest)
            return all(c <= (n + 1) // 2 - (1 if (w == prev and n % 2 == 1) else 0) for w, c in cnt.items())
        while left:
            recent = [q[0] for q in out[-2:]]
            pick = None
            for avoid in (recent, recent[-1:]):
                for q in left:
                    if q[0] in avoid:
                        continue
                    rest = list(left)
                    rest.remove(q)
                    if feasible(rest, q[0]):
                        pick = q
                        break
                if pick:
                    break
            assert pick
            out.append(pick)
            left.remove(pick)
        return out

    def stage_reads(st):
        sa, sb = FA_[st & 1], FB_[st & 1]
        if st < 8:
            return readsB(sb, st)[:4] + readsA(sa, st)
        out = []
        for hf in range(2):
            c = 2 * (st - 8) + hf
            out += readsB(sb + 16 * hf - 16, c)[4:] + readsA(sa + 16 * hf, c)[:8]
        return out

    NST = 12
    for st in range(NST):
        sa, sb = FA_[st & 1], FB_[st & 1]
        a('s_waitcnt lgkmcnt(0)')
        if st == 7:
            a('v_readfirstlane_b32 s60, v164')
            a('s_cmp_ge_u32 s60, 4')
            a('s_cbranch_scc1 uhi_go')
            lds_spin('uhi', 0, 4, 164)
            stamp('uhi')
        if st == FLC and FILLBY:
            a('s_waitcnt vmcnt(0)')
            a('s_mov_b64 exec, 1')
            a(f'ds_add_rtn_u32 v12, v{VC}, v{V1} offset:4')
            a(f'ds_add_u32 v{VC}, v{V1} offset:8')
            a('s_mov_b64 exec, -1')
            stamp('fillB')
        if st == FLC + 1 and FILLBY:
            a('s_mov_b64 exec, 1')
            a('v_cmp_eq_u32 vcc, 3, v12')
            a('v_cndmask_b32 v14, -16, v14, vcc')
            a(f'buffer_store_dword v13, v14, {WSR}, s7 offen sc1')
            a('s_mov_b64 exec, -1')
        fill = stage_reads(st + 1) if st + 1 < NST else []
        if st == 6:
            fill = fill + [f'ds_read_b32 v164, v{VC} offset:0']
        if st == FBC:
            fill = [f'ds_write_b32 v{VC}, v{V1} offset:24'] + fill
        if st == opt('fbc2', 10):
            fill = [fbload.replace('s6 ', 's71 ')] + fill
        if st == opt('fst', -1):
            assert st >= 1
            fill = [f'buffer_store_dwordx4 v[240:243], v182, {XBR}, s{62 + q} offen sc1' for q in range(4)] + fill
        if st == 0:
            fill = fill + gsetup[:12]
        if st == 1:
            for l in gsetup[12:]:
                a(l)
        if st in (8, 9) and not YLO:
            for w in (2 * (st - 8), 2 * (st - 8) + 1):
                fill = fill + ystage(w)
        if YLO:
            rlo, olo = gather(0, (62, 63), 184, 144)
            if st == 8:
                lds_inc(20)
                fill = fill + [f'ds_read_b32 v164, v{VC} offset:20']
            if st == 9:
                a('v_readfirstlane_b32 s60, v164')
                a('s_cmp_ge_u32 s60, 8')
                a('s_cbranch_scc1 ylo_go')
                lds_spin('ylo', 20, 8, 164)
                fill = rlo + fill
            if st == 10:
                fill = olo + fill
        if st < 8:
            pairs = [(n + z, sa + 4 * n, sb + 4 * z) for n in range(8) for z in range(min(4, 8 - n))]
            if st == 0:
                pairs = [(z, 168, sb + 4 * z) for z in range(4)] + pairs
        else:
            pairs = []
            for hf in range(2):
                pairs += [(n + z, sa + 16 * hf + 4 * n, sb + 16 * hf + 4 * (z - 4)) for n in range(4) for z in range(4, 8 - n)]
            if st == 8:
                pairs = [(z, 168, sb + 4 * (z - 4)) for z in range(4, 8)] + pairs
        order = spread(pairs, st in (7, NST - 1))
        seen = set() if st == 0 else set(range(8))
        last = {q[0]: i for i, q in enumerate(order)}
        pend = []
        nper = -(-len(fill) // (len(order) - (4 if st >= 7 else 0)))
        for i, (w, A, B) in enumerate(order):
            mfma(w, A, B, w not in seen)
            seen.add(w)
            for _ in range(nper):
                if fill:
                    a(fill.pop(0))
            if st == NST - 1 or (st == 7 and YLO):
                if last[w] == i and (st != 7 or w < 4):
                    pend.append([w, 0])
                for q in pend:
                    q[1] += 1
                if pend and pend[0][1] > 3:
                    for l in ystage(pend.pop(0)[0]):
                        a(l)
        assert not fill
        assert st == NST - 1 or not pend
    for w0, _ in pend:
        for l in ystage(w0):
            a(l)
    stamp('s1end')
    if opt('cprio', 1):
        a('s_setprio 2')
    lds_inc(8)
    lds_spin('c2', 8, 8, 166)
    if GXL and DWHO:
        a('s_and_b32 s60, s2, 1')
        a('s_cmp_lt_u32 s3, 112')
        a('s_cselect_b32 s60, s60, 0')
        a('s_cmp_eq_u32 s60, 0')
        a('s_cbranch_scc1 ib_go')
        lds_spin('ib', 28, 4, 166)
    (r0, o0), (r1, o1) = gather(0, (62, 63), 184, 196), gather(2, (64, 65), 164, 204)
    if YLO:
        tail = r1 + ['s_waitcnt lgkmcnt(0)'] + o1
    else:
        tail = r0 + r1 + ['s_waitcnt lgkmcnt(4)'] + o0 + ['s_waitcnt lgkmcnt(0)'] + o1
    for l in tail:
        a(l)
    stamp('yst')
    if opt('cprio', 1):
        a('s_setprio 0')
    lds_inc(8)
    a('s_bitcmp0_b32 s2, 0')
    a('s_cbranch_scc0 conv_ffn')
    a(f's_waitcnt vmcnt({2 if YLO else 4})')
    y_setup()
    fb_check()
    YF = opt('yfirst', 0)
    if YF:
        a('s_cmp_lt_u32 s3, 64')
        a('s_cbranch_scc0 yf_skip')
    y_issue()
    a('yf_skip:')
    prep_a()
    prep_b()
    a('s_branch rows')

    a('helper:')
    for q in range(2):
        a(f's_waitcnt vmcnt({1 - q + FL2})')
        a(f'ds_write_b128 v165, v[{UP + 4 * q}:{UP + 4 * q + 3}] offset:{256 - 256 * q}')
    lds_inc(0)
    stamp('u0')
    if FILLBY == 0:
        lds_spin('uw', UWOFF, 4, 28)
        y_fill()

    def fb_publish():
        if FILLBY:
            return
        a('s_mov_b64 exec, 1')
        a(f'ds_add_rtn_u32 v12, v{VC}, v{V1} offset:4')
        a(f'ds_add_u32 v{VC}, v{V1} offset:8')
        a('s_waitcnt lgkmcnt(0)')
        a('v_cmp_eq_u32 vcc, 3, v12')
        a('v_cndmask_b32 v14, -16, v14, vcc')
        a(f'buffer_store_dword v13, v14, {WSR}, s7 offen sc1')
        a('s_mov_b64 exec, -1')
        stamp('fillB')
    if FILLBY:
        lds_spin('uw', UWOFF, 4, 28)
    a(f's_lshl_b32 s61, s3, {SH}')
    a('s_bitcmp0_b32 s2, 0')
    a('s_cbranch_scc0 helper_ffn')
    a(f's_add_u32 s62, s61, {WS_CAND}')
    a(f's_add_u32 s63, s61, {WS_PART}')
    a(f's_add_u32 s79, s61, {WS_GX}')
    DW = 156
    DSP = opt('dsp', 1)

    def d_base():
        if DSP:
            a('s_lshr_b32 s78, s3, 4')
            a('s_lshl_b32 s78, s78, 20')
            a('s_and_b32 s60, s3, 15')
            a('s_lshl_b32 s60, s60, 14')
            a('s_add_u32 s78, s78, s60')
        else:
            a('s_lshl_b32 s78, s3, 16')

    def d_list(DW):
        return [[f'buffer_load_dwordx2 v[{DW + 2 * r}:{DW + 2 * r + 1}], v253, s[{S_D}:{S_D + 3}], s78 offen offset:{(r & 1) * 2048} nt']
                + ([f's_add_u32 s78, s78, {4096 + (262144 - 16384 if DSP and r % 8 == 7 else 0)}'] if r & 1 else []) for r in range(32)]
    d_base()
    dl = d_list(DW)
    XH, WH = 68, 100
    stamp('xiss')
    a('s_add_u32 s70, s69, 4096')
    for i in range(EX, 8):
        x_load(i)
    for i in range(2):
        a(f'buffer_load_dwordx4 v[{WH + 4 * i}:{WH + 4 * i + 3}], v2, s[{S_WR}:{S_WR + 3}], 0 offen offset:{1024 * i}')
    if not FILLBY:
        a('s_waitcnt vmcnt(10)')
        fb_publish()
    if opt('reuse', 0):
        assert not DWHO
        lds_spin('ru0', 0, 4, 3)
        lds_spin('ru1', 12, 4, 3)
    a(f'buffer_store_dwordx4 v[240:243], v237, {WSR}, s62 offen sc1')
    a(f'buffer_store_dwordx4 v[240:243], v237, {WSR}, s63 offen sc1')
    a(f'buffer_store_dwordx4 v[240:243], v237, {WSR}, s79 offen sc1')
    NL = 3 + (0 if FILLBY else 1)
    if GXL and not DWHO:
        a(f's_add_u32 s60, s79, {WS_GX2 - WS_GX}')
        a(f'buffer_store_dwordx4 v[240:243], v237, {WSR}, s60 offen')
        NL += 1
    a('s_mov_b32 s72, 0x3f803f80')
    a('s_mov_b32 s73, 0x3a800000')
    a('s_lshl_b32 s6, s12, 10')
    a(f's_add_u32 s6, s6, {WS_FB}')
    y_setup(False)
    XLATE = opt('xlate', 1)

    def x_to_lds(waits):
        for r in range(4):
            if waits:
                a(f's_waitcnt vmcnt({NL + 2 + 6 - 2 * r})')
            for hf in range(2):
                a(f'ds_write_b128 v{VRA}, v[{XH + 8 * r + 4 * hf}:{XH + 8 * r + 4 * hf + 3}] offset:{RS * r + 1024 * hf}')
        if waits:
            a(f's_waitcnt vmcnt({NL})')
        for hf in range(2):
            a(f'ds_write_b128 v239, v[{WH + 4 * hf}:{WH + 4 * hf + 3}] offset:{1024 * hf}')
        lds_inc(12)
    if not XLATE:
        lds_spin('cp0', 12, 4, 28)
        x_to_lds(True)
    elif opt('dafterx', 1):
        a(f's_waitcnt vmcnt({NL})')
    stamp('xarr')
    lds_spin('late', 24, 1, 3, sleep=LSLEEP)
    a(fbload)
    if DYN:
        a('s_memrealtime s[60:61]')
        a('s_waitcnt lgkmcnt(0)')
        a('s_sub_u32 s60, s60, s4')
        a(f's_cmp_lt_u32 s60, {DYN}')
        a('s_cselect_b32 s5, 1, 0')
        a('s_cbranch_scc1 d_early')
        a('s_waitcnt vmcnt(0)')
        a('s_branch d_early_done')
        a('d_early:')
    for r in range(DEARLY):
        for l in dl[r]:
            a(l)
    stamp('dearly')
    assert opt('dafterx', 1) and opt('stearly', 2) == 2
    a('d_early_done:')
    stamp('fbarr')
    S1, S2, SW = 36, 40, 44

    def stats_a():
        for i in range(8):
            for r in range(4):
                x = XH + 8 * r + i
                a(f'v_dot2_f32_bf16 v{S1 + r}, v{x}, s72, {"0" if i == 0 else "v%d" % (S1 + r)}')
                a(f'v_dot2_f32_bf16 v{S2 + r}, v{x}, v{x}, {"0" if i == 0 else "v%d" % (S2 + r)}')
            a(f'v_dot2_f32_bf16 v{SW}, v{WH + i}, s72, {"0" if i == 0 else "v%d" % SW}')
    STE = opt('stearly', 2)
    lds_spin('mf1', 8, 8, 3)
    stamp('mf1')
    if opt('sprio', 1):
        a(f's_setprio {opt("sprio", 1)}')
    if XLATE:
        x_to_lds(False)
    if STE:
        stats_a()
    if STE < 2:
        fb_check()
        lds_spin('mf', 8, opt('mfcnt', 12), 3)
        y_issue()
    if not STE:
        stats_a()
    for b in (S1, S2):
        a(f'v_permlane32_swap_b32 v{b}, v{b + 1}')
        a(f'v_permlane32_swap_b32 v{b + 2}, v{b + 3}')
    for b in (S1, S2):
        a(f'v_add_f32 v{b}, v{b}, v{b + 1}')
        a(f'v_add_f32 v{b + 2}, v{b + 2}, v{b + 3}')
    for b in (S1, S2):
        a(f'v_permlane16_swap_b32 v{b}, v{b + 2}')
    for b in (S1, S2):
        a(f'v_add_f32 v{b}, v{b}, v{b + 2}')
    for sh in (1, 2, 4, 8):
        for v in (S1, S2, SW):
            a(f'v_add_f32_dpp v{v}, v{v}, v{v} row_shr:{sh} row_mask:0xf bank_mask:0xf bound_ctrl:0')
    a(f'v_add_f32_dpp v{SW}, v{SW}, v{SW} row_bcast:15 row_mask:0xa bank_mask:0xf')
    a(f'v_mul_f32 v{S1}, s73, v{S1}')
    a(f'v_add_f32_dpp v{SW}, v{SW}, v{SW} row_bcast:31 row_mask:0xc bank_mask:0xf')
    a(f'v_mul_f32 v{S1 + 1}, v{S1}, v{S1}')
    a(f'v_fma_f32 v{S2}, v{S2}, s73, -v{S1 + 1}')
    a(f'v_max_f32 v{S2}, 0, v{S2}')
    rnd(S1, S1)
    rnd(S2, S2)
    a(f'v_add_f32 v{S2}, 0x3727c5ac, v{S2}')
    rnd(S2, S2)
    a(f'v_sqrt_f32 v{S2}, v{S2}')
    rnd(S2, S2)
    a(f'v_rcp_f32 v50, v{S2}')
    a(f'v_rcp_f32 v51, v{S2}')
    a(f'v_mul_f32 v48, -v{S1}, v50')
    a(f'v_mul_f32 v49, -v{S1}, v50')
    a('s_mov_b32 exec_lo, 0x80008000')
    a('s_mov_b32 exec_hi, 0x80008000')
    a('ds_write_b128 v244, v[48:51]')
    a('s_mov_b32 exec_lo, 0')
    a('s_mov_b32 exec_hi, 0x80000000')
    a(f'ds_write_b32 v{VC}, v{SW} offset:{L_SW - L_CNT}')
    lds_inc(28)
    stamp('pre')
    if opt('sprio', 1):
        a('s_setprio 0')
    if STE == 2:
        a(f's_waitcnt vmcnt({DEARLY})')
        fb_check()
        lds_spin('mf', 8, opt('mfcnt', 12), 3)
        if YF:
            a('s_cmp_lt_u32 s3, 64')
            a('s_cbranch_scc0 yf_skip2')
        y_issue()
        a('yf_skip2:')
    prep_a()
    prep_b()

    a('rows:')
    if YF > 1:
        a('s_cmp_lt_u32 s3, 64')
        a('s_cbranch_scc1 yf_skip3')
        a(f's_sleep {YF}')
        a('yf_skip3:')
    a('s_mov_b32 s61, 0')
    a('py_top:')
    y_check()
    a('s_cbranch_scc0 py_ok')
    a('s_add_u32 s61, s61, 1')
    a(f's_cmp_ge_u32 s61, {POLL_MAX}')
    a('s_cbranch_scc1 py_give')
    if YSLEEP:
        a(f's_sleep {YSLEEP}')
    y_issue()
    y_fold()
    a('s_branch py_top')
    a('py_give:')
    for p in range(4):
        a(f's_mov_b64 s[{YM + 2 * p}:{YM + 2 * p + 1}], 0')
    a('py_ok:')
    stamp('ypoll')
    y_fold()
    H = XP
    a('s_mov_b32 s73, 0x3a800000')
    Q = TY
    for r in range(2):
        for k in range(3):
            d = Q + k if r == 0 else Q + 4 + k
            a(f'v_add_f32 v{d}, v{AC[r] + 2 * k}, v{AC[r] + 2 * k + 1}')
    for k in range(3):
        a(f'v_permlane32_swap_b32 v{Q + k}, v{Q + 4 + k}')
    for k in range(3):
        a(f'v_add_f32 v{Q + k}, v{Q + k}, v{Q + 4 + k}')
    for k in range(3):
        a(f'v_add_f32_dpp v{Q + k}, v{Q + k}, v{Q + k} row_ror:8 row_mask:0xf bank_mask:0xf')
    a('s_mov_b32 exec_lo, 0x00ff00ff')
    a('s_mov_b32 exec_hi, 0x00ff00ff')
    a(f'ds_write_b128 v{VPW}, v[{Q}:{Q + 3}]')
    a('s_mov_b64 exec, -1')
    a('s_lshl_b32 s60, s3, 7')
    a(f's_add_u32 s60, s60, {WS_KEYS}')
    a('s_cmp_eq_u32 s12, 0')
    a('s_cselect_b32 s60, s60, 0x40000000')
    if opt('prio', 1):
        a('s_cbranch_scc0 no_prio')
        a('s_setprio 3')
        a('no_prio:')
    a('s_waitcnt lgkmcnt(0)')
    a('s_barrier')
    R = 76
    for i in range(4):
        a(f'ds_read_b128 v[{R + 4 * i}:{R + 4 * i + 3}], v{VPR} offset:{16 * i}')
    stamp('bar2')
    A = AC[0]
    a(f'v_mov_b32 v{A + 7}, s8')
    a(f'v_mov_b32 v{A + 5}, 0')
    a('s_waitcnt lgkmcnt(2)')
    pk('add', R, R, R + 4)
    a(f'v_add_f32 v{R + 2}, v{R + 2}, v{R + 6}')
    a('s_waitcnt lgkmcnt(0)')
    pk('add', R + 8, R + 8, R + 12)
    a(f'v_add_f32 v{R + 10}, v{R + 10}, v{R + 14}')
    pk('add', R, R, R + 8)
    a(f'v_add_f32 v{R + 2}, v{R + 2}, v{R + 10}')
    for sw in ('v_permlane32_swap_b32', 'v_permlane16_swap_b32'):
        for k in range(3):
            a(f'v_mov_b32 v{R + 4 + k}, v{R + k}')
        for k in range(3):
            a(f'{sw} v{R + k}, v{R + 4 + k}')
        pk('add', R, R, R + 4)
        a(f'v_add_f32 v{R + 2}, v{R + 2}, v{R + 6}')
    M, V = R + 8, R + 9
    a(f'v_mul_f32 v{R}, s73, v{R}')
    a(f'v_mul_f32 v{R + 3}, v{R}, v{R}')
    a(f'v_fma_f32 v{V}, v{R + 1}, s73, -v{R + 3}')
    rnd(M, R)
    a(f'v_max_f32 v{V}, 0, v{V}')
    rnd(V, V)
    a(f'v_fma_f32 v{R + 2}, -v{M}, s71, v{R + 2}')
    a(f'v_add_f32 v{V}, 0x3727c5ac, v{V}')
    rnd(V, V)
    a(f'v_sqrt_f32 v{V}, v{V}')
    rnd(V, V)
    a(f'v_rcp_f32 v{V}, v{V}')
    a(f'v_mul_f32 v{R + 2}, v{R + 2}, v{V}')
    rnd(R + 2, R + 2)
    a(f'v_ashrrev_i32 v{R + 3}, 31, v{R + 2}')
    a(f'v_and_b32 v{R + 3}, 0x7fff0000, v{R + 3}')
    a(f'v_xor_b32 v{R + 2}, 0x80000000, v{R + 2}')
    a(f'v_xor_b32 v{R + 2}, v{R + 2}, v{R + 3}')
    a(f'v_or_b32 v{A + 6}, v{R + 2}, v{VKL}')
    for sh in (1, 2, 4, 8):
        a(f'v_max_u32_dpp v{A + 6}, v{A + 6}, v{A + 6} row_ror:{sh} row_mask:0xf bank_mask:0xf')
    if opt('diag', 0):
        a('s_mov_b64 exec, 1')
        a(f'v_mov_b32 v{R + 4}, s80')
        a(f'v_mov_b32 v{R + 5}, s82')
        a(f'buffer_store_dwordx2 v[{R + 4}:{R + 5}], v{A + 5}, {WSR}, s60 offen offset:8 sc1')
    a('s_mov_b64 exec, 1')
    a(f'buffer_store_dwordx2 v[{A + 6}:{A + 7}], v{A + 5}, {WSR}, s60 offen sc1')
    a('s_mov_b64 exec, -1')
    stamp('key')
    if opt('prio', 1):
        a('s_setprio 0')
    a(f'v_readfirstlane_b32 s76, v{A + 6}')
    DMID = opt('dmid', 0)

    def down_loads(r0, r1):
        r1 = min(r1, 32)
        if r1 <= r0 or DWHO:
            return
        lab = a.newlabel('nodl')
        a('s_cmp_eq_u32 s14, 0')
        a(f's_cbranch_scc1 {lab}')
        for r in range(r0, r1):
            for l in dl[r]:
                a(l)
        a(f'{lab}:')
    if not DYN:
        down_loads(DEARLY, DEARLY + DMID)
    a(f'v_mul_f32 v{M}, -v{M}, v{V}')
    HS = [R + 12, R + 16]
    a(f'v_mov_b32_dpp v{R + 11}, v{V} row_ror:8 row_mask:0xf bank_mask:0xf')
    a(f'v_mov_b32_dpp v{R + 10}, v{M} row_ror:8 row_mask:0xf bank_mask:0xf')
    a('s_mov_b32 vcc_lo, 0xff00ff00')
    a('s_mov_b32 vcc_hi, 0xff00ff00')
    for k in range(4):
        own, oth = M + (k >> 1), R + 10 + (k >> 1)
        a(f'v_cndmask_b32 v{HS[0] + k}, v{own}, v{oth}, vcc')
        a(f'v_cndmask_b32 v{HS[1] + k}, v{oth}, v{own}, vcc')
    a(f's_lshl_b32 s77, s3, {SH}')
    a(f's_add_u32 s77, s77, {WS_CAND}')
    a('s_not_b32 s64, s76')
    a('s_bfe_u32 s65, s64, 0x30001')
    a('s_mov_b32 s66, 0x01010101')
    a('s_lshl_b32 s66, s66, s65')
    a('s_mov_b32 s67, s66')
    OUTR = [124, 132]

    def cand_row(r):
        a('s_mov_b64 exec, s[66:67]')
        for i in range(8):
            pk('fma', N[0] + 2 * i, H[r] + 2 * i, HS[r] + 2, HS[r])
        for i in range(8):
            a(f'v_cvt_pk_bf16_f32 v{YR[0] + i}, v{N[0] + 2 * i}, v{N[0] + 2 * i + 1}')
        for p in range(4):
            a(f'buffer_store_dwordx2 v[{YR[0] + 2 * p}:{YR[0] + 2 * p + 1}], v{VG8}, {WSR}, s77 offen offset:{512 * p} sc1')
        for i in range(8):
            a(f'v_cvt_pk_bf16_f32 v{WF + i}, v{H[r] + 2 * i}, v{H[r] + 2 * i + 1}')

    a('s_bitcmp1_b32 s64, 0')
    a('s_cbranch_scc1 order10')
    cand_row(0)
    a('s_branch cand_done')
    a('order10:')
    cand_row(1)
    a('cand_done:')
    stamp('cand')
    for p in range(4):
        a(f'ds_write_b64 v{VG8}, v[{WF + 2 * p}:{WF + 2 * p + 1}] offset:{L_H + 512 * p}')
    a('s_mov_b64 exec, -1')
    assert not DYN
    D2 = DEARLY + DMID + opt('dmid2', 8)
    down_loads(DEARLY + DMID, D2)
    EXACT = opt('exact', 0)
    if not EXACT:
        for r in range(2):
            a(f'v_add_f32 v{HS[r] + 2}, 1.0, v{HS[r] + 2}')
            a(f'v_add_f32 v{HS[r] + 3}, 1.0, v{HS[r] + 3}')
    for r in range(2):
        if EXACT:
            for i in range(16):
                rnd(H[r] + i, H[r] + i)
            for i in range(8):
                pk('fma', N[0] + 2 * i, H[r] + 2 * i, HS[r] + 2, HS[r])
            for i in range(16):
                rnd(N[0] + i, N[0] + i)
            for i in range(8):
                pk('add', H[r] + 2 * i, H[r] + 2 * i, N[0] + 2 * i)
        else:
            for i in range(8):
                pk('fma', H[r] + 2 * i, H[r] + 2 * i, HS[r] + 2, HS[r])
        for i in range(8):
            a(f'v_cvt_pk_bf16_f32 v{N[1] + 8 * r + i}, v{H[r] + 2 * i}, v{H[r] + 2 * i + 1}')
        for p in range(4):
            a(f'ds_write_b64 v{VXA}, v[{N[1] + 8 * r + 2 * p}:{N[1] + 8 * r + 2 * p + 1}] offset:{512 * p + RS * r}')
    lds_inc(28)
    a('s_cmp_eq_u32 s14, 0')
    a('s_cbranch_scc0 ffn2')
    a('s_and_b32 s64, s64, 15')
    a(f's_mul_i32 s60, s64, {RS}')
    a(f's_add_u32 s60, s60, {L_YT}')
    a('v_add_u32 v3, s60, v2')
    a(f's_xor_b32 s65, s3, {RSW}')
    a('s_lshl_b32 s65, s65, 4')
    a('s_add_u32 s64, s64, s65')
    a('s_lshl_b32 s65, s64, 11')
    lds_spin('o8', 28, 12, 68)
    a('s_cmp_eq_u32 s12, 0')
    a('s_cbranch_scc0 no_cand_h')
    for hf in range(2):
        a(f'ds_read_b128 v[{68 + 4 * hf}:{71 + 4 * hf}], v3 offset:{1024 * hf}')
    for hf in range(2):
        a(f'ds_read_b128 v[{WF + 4 * hf}:{WF + 4 * hf + 3}], v2 offset:{L_H + 1024 * hf}')
    for hf in range(2):
        a(f's_waitcnt lgkmcnt({3 - hf})')
        a(f'buffer_store_dwordx4 v[{68 + 4 * hf}:{71 + 4 * hf}], v2, {XBR}, s65 offen offset:{1024 * hf} sc1')
    a('s_waitcnt vmcnt(0) lgkmcnt(0)')
    a(f'buffer_store_dwordx4 v[{WF}:{WF + 3}], v2, {WSR}, s77 offen offset:2048 sc1')
    a(f'buffer_store_dwordx4 v[{WF + 4}:{WF + 7}], v2, {WSR}, s77 offen offset:3072 sc1')
    a('no_cand_h:')
    for i in range(8):
        a(f'ds_read_b128 v[{4 + 4 * i}:{7 + 4 * i}], v{VRA} offset:{RS * (i >> 1) + 1024 * (i & 1)}')
    OE, OM = opt('oearly', 0), opt('omid', 0)
    a('s_waitcnt lgkmcnt(0)')
    for r in range(4):
        if r == OE and OM and not DWHO:
            a('s_cmp_lt_u32 s3, 112')
            a('s_cbranch_scc0 dr_go')
            lds_spin('dr', 16, 4, 68)
        if r == OE + OM and not DWHO:
            a('s_cmp_lt_u32 s3, 112')
            a('s_cbranch_scc0 dp_go')
            lds_spin('dp', 16, 8, 68, sleep=2)
            if opt('osleep', 0):
                a(f's_sleep {opt("osleep", 0)}')
        a('s_cmp_eq_u32 s68, s64')
        a('s_cselect_b32 s60, 0x40000000, s69')
        for hf in range(2):
            i = 2 * r + hf
            a(f'buffer_store_dwordx4 v[{4 + 4 * i}:{7 + 4 * i}], v2, {XBR}, s60 offen offset:{1024 * hf} sc1')
        if r < 3:
            a('s_add_u32 s68, s68, 1')
            a('s_add_u32 s69, s69, 2048')
    a('s_branch main_fl')
    TT = 8

    def d_perm(DW, ps):
        for p in ps:
            for k in range(2):
                lo, hi = DW + 2 * (8 * (p >> 2) + (p & 3)) + k, DW + 2 * (8 * (p >> 2) + (p & 3) + 4) + k
                t = 48 + k
                a(f'v_perm_b32 v{t}, v{hi}, v{lo}, s74')
                a(f'v_perm_b32 v{hi}, v{hi}, v{lo}, s75')
                a(f'v_mov_b32 v{lo}, v{t}')

    def gx_loads():
        for q in range(4):
            a(f'buffer_load_dwordx4 v[{52 + 4 * q}:{52 + 4 * q + 3}], v2, {WSR}, s62 offen offset:{1024 * q} sc1')

    def ffn2(DW, issued):
        P = 52
        a('s_mov_b32 s61, 0')
        if issued:
            a('s_branch pg_chk')
        a('pg_again:')
        gx_loads()
        a('pg_chk:')
        a('s_waitcnt vmcnt(0)')
        sentinel_check(range(P, P + 16), P + 16)
        a('s_cbranch_vccz pg_ok')
        a('s_add_u32 s61, s61, 1')
        a(f's_cmp_ge_u32 s61, {POLL_MAX}')
        a('s_cbranch_scc1 pg_ok')
        a('s_mov_b64 exec, vcc')
        a(f's_cmp_lt_u32 s61, {GXL}')
        a('s_cselect_b32 s62, s63, s79')
        if opt('gxsleep', 1):
            a(f's_sleep {opt("gxsleep", 1)}')
        a('s_branch pg_again')
        a('pg_ok:')
        a('s_mov_b64 exec, -1')
        stamp('gxpoll')
        pk('add', P, P, P + 4)
        pk('add', P + 2, P + 2, P + 6)
        pk('add', P + 8, P + 8, P + 12)
        pk('add', P + 10, P + 10, P + 14)
        pk('add', P, P, P + 8)
        pk('add', P + 2, P + 2, P + 10)
        a(f'v_permlane32_swap_b32 v{P}, v{P + 2}')
        a(f'v_permlane32_swap_b32 v{P + 1}, v{P + 3}')
        pk('add', P, P, P + 2)
        a(f'v_permlane16_swap_b32 v{P}, v{P + 1}')
        a(f'v_add_f32 v{TT}, v{P}, v{P + 1}')
        rnd(TT, TT)
        a(f'v_mul_f32 v{TT + 2}, 0xbfb8aa3b, v{TT}')
        a(f'v_mov_b32_dpp v{TT + 3}, v{TT} row_ror:8 row_mask:0xf bank_mask:0xf')
        a(f'v_exp_f32 v{TT + 2}, v{TT + 2}')
        a(f'v_add_f32 v{TT + 2}, 1.0, v{TT + 2}')
        a(f'v_rcp_f32 v{TT + 2}, v{TT + 2}')
        a(f'v_mul_f32 v{TT}, v{TT}, v{TT + 2}')
        rnd(TT, TT)
        a(f'v_mul_f32 v{TT}, v{TT}, v{TT + 3}')
        a(f'v_mov_b32_dpp v{TT + 1}, v{TT} row_shr:1 row_mask:0xf bank_mask:0xf bound_ctrl:0')
        a(f'v_cvt_pk_bf16_f32 v{TT}, v{TT + 1}, v{TT}')
        for p in range(16):
            a(f'v_readlane_b32 s{S_K + p}, v{TT}, {16 * (p & 3) + 2 * (p >> 2) + 1}')
        AC2 = 24
        for p in range(16):
            for c in range(4):
                r = DW + 2 * (8 * (p >> 2) + (p & 3) + 4 * (c & 1)) + (c >> 1)
                h = AC2 + 4 * (p & 1) + c
                src2 = '0' if p < 2 else f'v{h}'
                a(f'v_dot2_f32_bf16 v{h}, v{r}, s{S_K + p}, {src2}')
        pk('add', AC2, AC2, AC2 + 4)
        pk('add', AC2 + 2, AC2 + 2, AC2 + 6)
        a(f'buffer_store_dwordx4 v[{AC2}:{AC2 + 3}], v237, {WSR}, s77 offen sc1')
        stamp('pst')

    a('ffn2:')
    if DWHO:
        a('s_branch main_fl')
    else:
        a('s_cmp_lt_u32 s3, 112')
        a('s_cbranch_scc0 main_fl')
        for r in range(min(D2, 32), 32):
            for l in dl[r]:
                a(l)
        a(f's_lshl_b32 s77, s3, {SH}')
        a(f's_add_u32 s77, s77, {WS_PART}')
        a(f's_add_u32 s63, s79, {WS_GX2 - WS_GX}')
        a(f's_mov_b32 s62, s{63 if GXL else 79}')
        for aa in range(4):
            a(f's_waitcnt vmcnt({24 - 8 * aa})')
            if aa == 3:
                lds_inc(16)
                stamp('dready')
                gx_loads()
            d_perm(DW, range(4 * aa, 4 * aa + 4))
        ffn2(DW, True)
        lds_inc(16)
        a('s_branch main_fl')

    a('helper_ffn:')
    a('s_cmp_lt_u32 s3, 112')
    a('s_cbranch_scc1 ffn_go')
    a('s_waitcnt vmcnt(0)')
    fb_publish()
    a('s_branch red_wait')
    a('ffn_go:')
    GW = 64
    if not (EX or EF):
        gu_base()
    a('s_lshr_b32 s78, s3, 4')
    a('s_lshl_b32 s78, s78, 2')
    a('s_add_u32 s78, s78, s13')
    a(f's_lshl_b32 s78, s78, {SH + 2}')
    a('s_lshl_b32 s60, s76, 8')
    a('s_add_u32 s78, s78, s60')
    a(f's_add_u32 s78, s78, {WS_GX}')
    a(f's_add_u32 s79, s78, {WS_GX2 - WS_GX}')
    if GXL and DWHO:
        a(f's_add_u32 s60, s61, {WS_GX2}')
        a(f'buffer_store_dwordx4 v[240:243], v237, {WSR}, s60 offen')
    assert DSP
    stamp('uw')
    FBK = opt('fbk', 2)
    for k, stp in enumerate(steps):
        if k < EF:
            continue
        if k == PAUSE:
            stamp('pause')
            lds_spin('late2', 24, 1, 28, sleep=LSLEEP)
            lds_spin('yw', 8, 12, 28)
            if opt('rsleep', 0):
                a(f's_sleep {opt("rsleep", 0)}')
        for l in stp:
            a(l)
        if k >= EF + DEPTH - 1 and k < PAUSE:
            a(f's_waitcnt vmcnt({DEPTH - 1})')
        if PAUSE <= k < PAUSE + opt('slow', 0):
            a(f's_waitcnt vmcnt({opt("depth2", 2) - 1})')
        if k == DEPTH - 1 and GXL and DWHO:
            lds_inc(28)
        if k == FBK - 1 and not FILLBY:
            a(f's_waitcnt vmcnt({FBK})')
            fb_publish()
    assert DEPTH <= PAUSE < 32
    if DWHO:
        lds_inc(16)
    for i2 in range(8):
        a(f's_waitcnt vmcnt({max(0, min(63, 32 - 4 * (i2 + 1)))})')
        for m in range(2):
            for k in range(4):
                lo, hi = GW + 64 * m + 8 * i2 + k, GW + 64 * m + 8 * i2 + 4 + k
                t = 32 + (k & 3)
                a(f'v_perm_b32 v{t}, v{hi}, v{lo}, s74')
                a(f'v_perm_b32 v{hi}, v{hi}, v{lo}, s75')
                a(f'v_mov_b32 v{lo}, v{t}')
    stamp('wready')
    KCONV = opt('kconv', 1)

    def fetch_token():
        a('v_lshlrev_b32 v6, 2, v1')
        a(f'v_add_u32 v7, {L_X}, v6')
        if opt('kdelay', 0):
            a(f's_sleep {opt("kdelay", 0)}')
        if not opt('spec', 1):
            key_poll(65)
            stamp('gkey')
            a('s_and_b32 s66, s65, 0xffff')
            a('s_sub_u32 s66, 2047, s66')
            a('s_lshr_b32 s66, s66, 4')
            a(f's_xor_b32 s66, s66, {RSW}')
            a(f's_lshl_b32 s66, s66, {SH}')
            a('s_lshl_b32 s60, s76, 7')
            a('s_add_u32 s66, s66, s60')
            a(f's_add_u32 s66, s66, {WS_CAND}')
            a('s_mov_b32 exec_hi, 0')
            retry_loop('px', [f'buffer_load_dword v8, v6, {WSR}, s66 offen sc1'], lambda: a('v_cmp_eq_u32 vcc, -1, v8'), sleep=1, mask='0xffffffff')
        else:
            a('v_lshlrev_b32 v4, 7, v1')
            a(f's_mov_b32 s64, {WS_KEYS + 8192}')
            a('s_lshl_b32 s63, s76, 7')
            a(f's_add_u32 s63, s63, {WS_CAND}')
            a(f's_and_b32 s62, s3, {opt("canmask", 63)}')
            a('s_lshl_b32 s62, s62, 7')
            a(f's_add_u32 s62, s62, {WS_KEYS + 4}')
            a('s_mov_b64 exec, 1')
            retry_loop('kc2', [f'buffer_load_dword v8, v4, {WSR}, s62 offen sc1'], lambda: a('v_cmp_ne_u32 vcc, s8, v8'), sleep=opt('kcsleep', 2))
            stamp('kcan')
            kl = [f'buffer_load_dwordx2 v[16:17], v4, {WSR}, {WS_KEYS} offen sc1', f'buffer_load_dwordx2 v[18:19], v4, {WSR}, s64 offen sc1']

            def cand_addr():
                a('s_not_b32 s66, s65')
                a('s_bfe_u32 s66, s66, 0x70004')
                a(f's_xor_b32 s66, s66, {RSW}')
                a(f's_lshl_b32 s66, s66, {SH}')
                a('s_add_u32 s66, s66, s63')
            for l in kl:
                a(l)
            a('s_mov_b32 s67, 0')
            a('s_mov_b32 s61, 0')
            a('v_mov_b32 v8, -1')
            a('ks_chk:')
            a('s_waitcnt vmcnt(0)')
            a('v_cmp_eq_u32 vcc, s8, v17')
            a('v_cmp_eq_u32 s[70:71], s8, v19')
            a('v_cndmask_b32 v12, 0, v16, vcc')
            a('v_cndmask_b32 v9, 0, v18, s[70:71]')
            a('s_nand_b64 s[70:71], s[70:71], vcc')
            a('v_max_u32 v12, v12, v9')
            a('s_cbranch_scc0 ks_all')
            a('s_add_u32 s61, s61, 1')
            a(f's_cmp_ge_u32 s61, {POLL_MAX}')
            a('s_cbranch_scc1 ks_all')
            a('s_mov_b64 exec, s[70:71]')
            for l in kl:
                a(l)
            a('s_mov_b64 exec, -1')
            wave_reduce('v_max_u32', 12)
            a('v_readlane_b32 s65, v12, 63')
            a('s_mov_b32 s67, s65')
            cand_addr()
            a('s_mov_b32 exec_hi, 0')
            a(f'buffer_load_dword v8, v6, {WSR}, s66 offen sc1')
            a('s_mov_b64 exec, -1')
            a('s_branch ks_chk')
            a('ks_all:')
            wave_reduce('v_max_u32', 12)
            a('v_readlane_b32 s65, v12, 63')
            stamp('gkey')
            cand_addr()
            a('s_mov_b32 exec_hi, 0')
            a('s_cmp_eq_u32 s65, s67')
            a('s_cbranch_scc1 px_chk')
            retry_loop('px', [f'buffer_load_dword v8, v6, {WSR}, s66 offen sc1'], lambda: a('v_cmp_eq_u32 vcc, -1, v8'), sleep=1, mask='0xffffffff')
        a('ds_write_b32 v7, v8')
        a('s_mov_b64 exec, -1')
        a('s_waitcnt lgkmcnt(0)')
    if not KCONV:
        a('s_cmp_eq_u32 s13, 0')
        a('s_cbranch_scc0 f2_bar')
        fetch_token()
    a('f2_bar:')
    a('s_barrier')
    XS, AC = 36, 44
    stamp('ffn0')
    a(f'ds_read_b128 v[{XS}:{XS + 3}], v201')
    a(f'ds_read_b128 v[{XS + 4}:{XS + 7}], v201 offset:16')
    for p in range(8):
        if p % 4 == 0:
            a(f's_waitcnt lgkmcnt({1 - p // 4})')
        for m in range(2):
            for c in range(8):
                r = GW + 64 * m + 8 * p + 4 * (c & 1) + (c >> 1)
                i = AC + 8 * m + c
                src2 = '0' if p == 0 else f'v{i}'
                a(f'v_dot2_f32_bf16 v{i}, v{r}, v{XS + p}, {src2}')
    for q in range(4):
        a(f'ds_write_b128 v203, v[{AC + 4 * q}:{AC + 4 * q + 3}] offset:{128 * (q >> 1) + 16 * (q & 1)}')
    a('s_waitcnt lgkmcnt(0)')
    a('s_barrier')
    for q in range(4):
        a(f'ds_read_b128 v[{8 + 4 * q}:{11 + 4 * q}], v205 offset:{16 * RP * q}')
    a('s_waitcnt lgkmcnt(2)')
    pk('add', 8, 8, 12)
    pk('add', 10, 10, 14)
    a('s_waitcnt lgkmcnt(0)')
    pk('add', 16, 16, 20)
    pk('add', 18, 18, 22)
    pk('add', 8, 8, 16)
    pk('add', 10, 10, 18)
    if GXL:
        a(f'buffer_store_dwordx4 v[8:11], v247, {WSR}, s79 offen')
    a(f'buffer_store_dwordx4 v[8:11], v247, {WSR}, s78 offen sc1')
    stamp('gxst')
    a('s_branch main_fl')

    a('conv_ffn:')
    a('s_cmp_lt_u32 s3, 112')
    a('s_cbranch_scc0 red_conv')
    if KCONV:
        assert not DWHO
        a('s_cmp_eq_u32 s12, 0')
        a('s_cbranch_scc0 main_fl')
        a('s_and_b32 s76, s3, 15')
        fetch_token()
        a('s_barrier')
    if DWHO:
        DW2 = 80
        lds_spin('gu', 16, 4, 8)
        d_base()
        for stp in d_list(DW2):
            for l in stp:
                a(l)
        a('v_lshlrev_b32 v237, 1, v253')
        a(f's_lshl_b32 s77, s3, {SH}')
        a(f's_add_u32 s79, s77, {WS_GX}')
        a(f's_add_u32 s77, s77, {WS_PART}')
        a(f's_add_u32 s63, s79, {WS_GX2 - WS_GX}')
        a(f's_mov_b32 s62, s{63 if GXL else 79}')
        for aa in range(4):
            a(f's_waitcnt vmcnt({24 - 8 * aa})')
            d_perm(DW2, range(4 * aa, 4 * aa + 4))
        stamp('dready')
        a('s_barrier')
        a('s_barrier')
        ffn2(DW2, False)
    a('s_branch main_fl')

    a('red_conv:')
    a('s_cmp_eq_u32 s12, 0')
    a('s_cbranch_scc0 red_wait')
    if opt('rdelay', 0):
        a(f's_sleep {opt("rdelay", 0)}')
    key_poll(71)
    a('s_sub_u32 s76, s3, 112')
    a('s_and_b32 s72, s71, 0xffff')
    a('s_sub_u32 s72, 2047, s72')
    a('s_lshr_b32 s73, s72, 4')
    a(f's_xor_b32 s73, s73, {RSW}')
    a(f's_lshl_b32 s73, s73, {SH}')
    a('s_lshl_b32 s60, s76, 7')
    a('s_add_u32 s73, s73, s60')
    a(f's_add_u32 s73, s73, {WS_CAND}')
    a('s_lshl_b32 s72, s72, 11')
    a('s_add_u32 s72, s72, s60')
    a('v_and_b32 v6, 31, v0')
    a('v_lshlrev_b32 v6, 2, v6')
    a('s_cmp_eq_u32 s76, 0')
    a(f's_cselect_b32 s60, {WS_EPOCH}, 0x40000000')
    a('v_mov_b32 v49, s8')
    a('v_mov_b32 v50, 0')
    a('s_mov_b64 exec, 1')
    a(f'buffer_store_dword v49, v50, {WSR}, s60 offen')
    a('s_mov_b64 exec, -1')
    loads = [f'buffer_load_dword v{40 + p}, v6, {WSR}, s73 offen offset:{2048 * p} sc1' for p in range(2)]
    poll_loop('ph', loads, (40, 41), 42)
    a('s_and_b32 s60, s71, 0xffff0000')
    a('s_xor_b32 s61, s60, 0x80000000')
    a('s_xor_b32 s62, s60, 0xffff0000')
    a('s_cmp_lt_i32 s60, 0')
    a('s_cselect_b32 s60, s61, s62')
    a('v_mov_b32 v42, 0xbfb8aa3b')
    a('v_mul_f32 v42, s60, v42')
    a('v_exp_f32 v42, v42')
    a('v_add_f32 v42, 1.0, v42')
    a('v_rcp_f32 v42, v42')
    rnd(42, 42)
    unpack(44, 45, 40)
    unpack(46, 47, 41)
    a('red_wait:')
    a(f's_add_u32 s{S_G}, s{S_WS}, {WS_PART}')
    a(f's_addc_u32 s{S_G + 1}, s{S_WS + 1}, 0')
    a(f's_mov_b32 s{S_G + 2}, {112 << SH}')
    a('s_sub_u32 s76, s3, 112')
    a('v_and_b32 v4, 15, v0')
    a('v_lshrrev_b32 v5, 4, v0')
    a(f'v_lshlrev_b32 v5, {SH}, v5')
    a('v_lshl_add_u32 v5, v4, 4, v5')
    a('s_lshl_b32 s64, s76, 8')
    a(f's_add_u32 s65, s64, {32 << SH}')
    a(f's_add_u32 s66, s64, {64 << SH}')
    a(f's_add_u32 s67, s64, {96 << SH}')
    a('v_lshrrev_b32 v7, 4, v1')
    a('v_lshl_add_u32 v7, v4, 2, v7')
    a('v_lshlrev_b32 v7, 2, v7')
    a('s_lshl_b32 s60, s12, 8')
    a(f's_add_u32 s60, s60, {L_RED}')
    a('v_add_u32 v7, s60, v7')
    a('v_lshlrev_b32 v48, 3, v1')
    a(f'v_add_u32 v48, {L_RED}, v48')
    a('s_barrier')
    if opt('finsleep', 30):
        a(f's_sleep {opt("finsleep", 30)}')
    P = 8
    loads = [f'buffer_load_dwordx4 v[{P + 4 * r}:{P + 4 * r + 3}], v5, s[{S_G}:{S_G + 3}], s{64 + r} offen sc1' for r in range(4)]
    poll_loop('pp', loads, range(P, P + 16), 24)
    stamp('ppoll')
    pk('add', P, P, P + 4)
    pk('add', P + 2, P + 2, P + 6)
    pk('add', P + 8, P + 8, P + 12)
    pk('add', P + 10, P + 10, P + 14)
    pk('add', P, P, P + 8)
    pk('add', P + 2, P + 2, P + 10)
    a(f'v_permlane32_swap_b32 v{P}, v{P + 2}')
    a(f'v_permlane32_swap_b32 v{P + 1}, v{P + 3}')
    pk('add', P, P, P + 2)
    a(f'v_permlane16_swap_b32 v{P}, v{P + 1}')
    a(f'v_add_f32 v{P}, v{P}, v{P + 1}')
    a(f'ds_write_b32 v7, v{P}')
    a('s_waitcnt lgkmcnt(0)')
    a('s_barrier')
    a('s_cmp_eq_u32 s12, 0')
    a('s_cbranch_scc0 main_fl')
    a('s_mov_b32 exec_hi, 0')
    for q in range(8):
        a(f'ds_read_b64 v[{P + 2 * q}:{P + 2 * q + 1}], v48 offset:{256 * q}')
    a('s_waitcnt lgkmcnt(0)')
    for q in range(4):
        pk('add', P + 4 * q, P + 4 * q, P + 4 * q + 2)
    pk('add', P, P, P + 4)
    pk('add', P + 8, P + 8, P + 12)
    pk('add', P, P, P + 8)
    rnd(P, P)
    rnd(P + 1, P + 1)
    a(f'v_mul_f32 v{P}, v{P}, v42')
    a(f'v_mul_f32 v{P + 1}, v{P + 1}, v42')
    rnd(P, P)
    rnd(P + 1, P + 1)
    pk('add', P, P, 44)
    rnd(P, P)
    rnd(P + 1, P + 1)
    pk('add', P, P, 46)
    a(f'v_cvt_pk_bf16_f32 v{P}, v{P}, v{P + 1}')
    a(f'buffer_store_dword v{P}, v6, {XBR}, s72 offen')
    if opt('diag', 0):
        a('s_mov_b64 exec, -1')
        a('s_cmp_eq_u32 s76, 0')
        a('s_cbranch_scc0 main_done')
        a('v_lshlrev_b32 v4, 7, v1')
        a(f's_mov_b32 s64, {WS_KEYS + 8192}')
        a(f'buffer_load_dwordx2 v[8:9], v4, {WSR}, {WS_KEYS} offen offset:8 sc1')
        a(f'buffer_load_dwordx2 v[10:11], v4, {WSR}, s64 offen offset:8 sc1')
        a('s_memrealtime s[62:63]')
        a('s_waitcnt vmcnt(0) lgkmcnt(0)')
        for r in range(8, 12):
            a(f'v_sub_u32 v{r}, s62, v{r}')
        a('v_max_u32 v12, v8, v10')
        a('v_min_u32 v13, v8, v10')
        a('v_min_u32 v14, v9, v11')
        a('v_not_b32 v13, v13')
        a('v_not_b32 v14, v14')
        wave_reduce('v_max_u32', [12, 13, 14])
        a('v_readlane_b32 s64, v12, 63')
        a('v_readlane_b32 s65, v13, 63')
        a('v_readlane_b32 s66, v14, 63')
        a('s_not_b32 s65, s65')
        a('s_not_b32 s66, s66')
        d = opt('diag', 0)
        if d == 1:
            a('s_sub_u32 s64, s64, s65')
        if d == 3:
            a('s_sub_u32 s64, s64, s66')
        if d >= 10:
            x = d % 10
            a(f'v_readlane_b32 s65, v{(8 if x < 4 else 10) + (d >= 20)}, {16 * (x & 3) + 5}')
            a('s_sub_u32 s64, s64, s65')
        a(f's_mul_i32 s64, s64, {opt("diagk", 10)}')
        a('s_min_u32 s64, s64, 100000')
        a('diag_spin:')
        a('s_memrealtime s[66:67]')
        a('s_waitcnt lgkmcnt(0)')
        a('s_sub_u32 s66, s66, s62')
        a('s_cmp_lt_u32 s66, s64')
        a('s_cbranch_scc1 diag_spin')
        a('s_branch main_done')
    a('main_fl:')
    if opt('diag', 0):
        a('s_branch main_done')
    if opt('dbg', 0) == 999:
        a('s_waitcnt vmcnt(0) lgkmcnt(0)')
        stamp(7)
        a('s_mov_b64 s[96:97], s[100:101]')
        a('s_mov_b32 s98, 256')
        a('s_mov_b32 s99, 0x00020000')
        a('s_mov_b64 exec, 1')
        a('v_mov_b32 v1, 0')
        a('s_waitcnt lgkmcnt(0)')
        for i in range(8):
            a(f's_and_b32 s60, s{80 + 2 * i}, 0xffffff')
            a('s_xor_b32 s61, s60, 0xffffff')
            a(f's_cmp_eq_u32 s{80 + 2 * i}, 0')
            a('s_cselect_b32 s61, 0, s61')
            a('v_mov_b32 v2, s60')
            a('v_mov_b32 v3, s61')
            a(f'buffer_atomic_umax v2, v1, s[96:99], 0 offen offset:{4 * i} sc1')
            a(f'buffer_atomic_umax v3, v1, s[96:99], 0 offen offset:{32 + 4 * i} sc1')
    elif opt('dbg', 0):
        a('s_waitcnt vmcnt(0) lgkmcnt(0)')
        stamp(7)
        a('s_mov_b64 s[96:97], s[100:101]')
        a('s_mov_b32 s98, 256')
        a('s_mov_b32 s99, 0x00020000')
        a('s_lshl_b32 s60, s2, 3')
        a('s_add_u32 s60, s60, s12')
        a('s_mov_b32 s61, 0x40000000')
        a(f's_cmp_eq_u32 s60, {225 * 8}')
        a('s_cselect_b32 s61, 0, s61')
        a(f's_cmp_eq_u32 s60, {opt("dbg", 0) * 8 + opt("dbgw", 0)}')
        a('s_cselect_b32 s61, 32, s61')
        a('s_mov_b64 exec, 1')
        a('v_mov_b32 v1, 0')
        a('s_waitcnt lgkmcnt(0)')
        for i in range(8):
            a(f's_sub_u32 s60, s{80 + 2 * i}, s80')
            a(f's_cmp_eq_u32 s{80 + 2 * i}, 0')
            a('s_cselect_b32 s60, 0, s60')
            a('v_mov_b32 v2, s60')
            a(f'buffer_store_dword v2, v1, s[96:99], s61 offen offset:{4 * i}')
    else:
        stamp_flush(S_WS, 7, 0)
    a('main_done:')
    a('s_endpgm')
    return kernel_desc(KN, 256, 102 if STAMPS else 80)


launch = '; @launch grid=(256,1,1) block=(512,1,1) lds=%d\n' % MAIN_LDS
finish(launch, [k_main()])
```

```python
from common import *
import common
STAMPS = common.STAMPS

WS_KEYS = 0
WS_EPOCH = 32 * 1024
WS_GX = 1536 * 1024
WS_FA = 128 * 1024
WS_FB = 192 * 1024
WS_FA2 = 64 * 1024
WS_CAND = 262144
WS_PART = 1 << 20
WS_GX2 = 6 << 20
WS_KV = 2 << 20
WS_SIZE = 7 << 20
SH = 12
if opt('reuse', 0):
    SH = 14
    WS_CAND, WS_PART, WS_GX, WS_GX2 = WS_KV, WS_KV + 4096, WS_KV + (2 << 20), WS_KV + (2 << 20) + 4096
WSOFF = opt('wsoff', 0) << 20
common.WS_STAMP -= WSOFF
POLL_MAX = 1 << 16
KN = NAME + '_kernel'

DEPTH = opt('depth', 7)
XPOS = opt('xpos', 4)
UWOFF = opt('uwoff', 0)
FLC = opt('flc', 3)
FBC = opt('fbc', 12)
YSLEEP = opt('ysleep', 1)
CODEPF = opt('codepf', 6)
DEARLY = opt('dearly', 0)
CPERM = opt('cperm', 0)
RSW = opt('rsw', 0)
YLO = opt('ylo', 1)
DWHO = opt('dwho', 0)
GXL = opt('gxl', 40)
DYN = opt('dyn', 0)
LSLEEP = opt('lsleep', 6)
FILLBY = opt('fillby', 1)
DUAL = opt('dual', 12)
KVS = '' if opt('l2kv', 0) else ' sc1'
KVL = {0: ' sc1', 1: ' sc0', 2: ''}[opt('kvl', 0)]
FAL = {0: ' sc1', 1: ' sc0', 2: ''}[opt('fal', 0)]
PAUSE = opt('pause', 20)

GS = 4160
UOFF = 4 * GS
CS = 21312
L_YL = 4 * CS
RS = 2064
L_YT = L_YL + 16384
L_P0 = L_YL
L_W = L_YT + 16 * RS
L_ST = L_W + 2048
L_PART = 0
PS = 272
RP = 272
L_H = 8192
L_CNT = L_ST + 272
L_GKEY = L_CNT + 28
L_SW = L_CNT + 48
L_X = L_CNT + 64
L_RED = L_X + 1024
MAIN_LDS = L_RED + 4096

S_K, S_V, S_SK, S_H, S_WS, S_Q, S_WR, S_OUT, S_G, S_U, S_D = 16, 20, 24, 28, 32, 36, 40, 44, 48, 52, 56
WSR = f's[{S_WS}:{S_WS + 3}]'
XBR = f's[{S_OUT}:{S_OUT + 3}]'
KVR = WSR
VC, V1 = 254, 255


def sentinel_check(regs, tmp):
    rs = list(regs)
    cur = rs.pop(0)
    while rs:
        if len(rs) >= 2:
            a(f'v_max3_u32 v{tmp}, v{cur}, v{rs[0]}, v{rs[1]}')
            rs = rs[2:]
        else:
            a(f'v_max_u32 v{tmp}, v{cur}, v{rs[0]}')
            rs = rs[1:]
        cur = tmp
    a(f'v_cmp_eq_u32 vcc, -1, v{cur}')


def retry_loop(name, loads, check, sleep=2, issued=False, mask='-1'):
    a('s_mov_b32 s61, 0')
    if issued:
        a(f's_branch {name}_chk')
    a(f'{name}_again:')
    for l in loads:
        a(l)
    a(f'{name}_chk:')
    a('s_waitcnt vmcnt(0)')
    check()
    a(f's_cbranch_vccz {name}_ok')
    a('s_add_u32 s61, s61, 1')
    a(f's_cmp_ge_u32 s61, {POLL_MAX}')
    a(f's_cbranch_scc1 {name}_ok')
    a('s_mov_b64 exec, vcc')
    a(f's_sleep {sleep}')
    a(f's_branch {name}_again')
    a(f'{name}_ok:')
    a(f's_mov_b64 exec, {mask}')


def poll_loop(name, loads, regs, tmp, sleep=2, issued=False):
    retry_loop(name, loads, lambda: sentinel_check(regs, tmp), sleep, issued)


def lds_spin(name, off, want, vt, sleep=1):
    a('s_mov_b32 s61, 0')
    a(f'{name}_spin:')
    a(f'ds_read_b32 v{vt}, v{VC} offset:{off}')
    a('s_add_u32 s61, s61, 1')
    a('s_waitcnt lgkmcnt(0)')
    a(f'v_readfirstlane_b32 s60, v{vt}')
    a(f's_cmp_ge_u32 s60, {want}')
    a(f's_cbranch_scc1 {name}_go')
    a(f's_cmp_ge_u32 s61, {1 << 22}')
    a(f's_cbranch_scc1 {name}_go')
    a(f's_sleep {sleep}')
    a(f's_branch {name}_spin')
    a(f'{name}_go:')


def lds_inc(off):
    a('s_mov_b64 exec, 1')
    a(f'ds_add_u32 v{VC}, v{V1} offset:{off}')
    a('s_mov_b64 exec, -1')


XP = [4, 20]
N = [36, 52]
T = [68, 84]
WF = 100
MV = [116, 120]
AA = [124, 132]
YR = [140, 148]
XR = 36
VG8, VXA, VWA, VSA, VKL, VPR, VPW, VRA, VBIT = range(228, 237)


def ln_x(xr, wr):
    for r in range(2):
        for i in range(8):
            unpack(XP[r] + 2 * i, XP[r] + 2 * i + 1, xr + 8 * r + i)
    for i in range(8):
        unpack(WF + 2 * i, WF + 2 * i + 1, wr + i)
    srcs = [(XP[0], T[0]), (XP[1], T[0] + 8), (WF, T[1])]
    for i in range(4):
        for (sx, t) in srcs:
            pk('add', t + 2 * i, sx + 4 * i, sx + 4 * i + 2)
    for (_, b) in srcs:
        pk('add', b, b, b + 2)
        pk('add', b + 4, b + 4, b + 6)
    for (_, b) in srcs:
        pk('add', b, b, b + 4)
    for (_, b) in srcs:
        a(f'v_add_f32 v{b}, v{b}, v{b + 1}')
    K = T[1] + 8
    a(f'v_mov_b32 v{K}, 0x3a800000')
    wave_reduce('v_add_f32', [b for _, b in srcs])
    a(f'v_readlane_b32 s60, v{T[0]}, 63')
    a(f'v_readlane_b32 s62, v{T[0] + 8}, 63')
    a(f'v_readlane_b32 s71, v{T[1]}, 63')
    for r in range(2):
        M, V = MV[r], MV[r] + 2
        a(f'v_mul_f32 v{V}, s{60 + 2 * r}, v{K}')
    for r in range(2):
        M, V = MV[r], MV[r] + 2
        rnd(M, V)
        rnd(M + 1, V)
        a(f'v_sub_f32 v{V}, v{V}, v{M}')
        a(f'v_readfirstlane_b32 s{72 + r}, v{M}')
    for r in range(2):
        for i in range(8):
            pk('add', XP[r] + 2 * i, XP[r] + 2 * i, MV[r], mods='neg_lo:[0,1] neg_hi:[0,1]')
    for i in range(8):
        for r in range(2):
            if i == 0:
                pk('mul', AA[r], XP[r], XP[r])
            else:
                pk('fma', AA[r], XP[r] + 2 * i, XP[r] + 2 * i, AA[r])
    for r in range(2):
        a(f'v_add_f32 v{AA[r]}, v{AA[r]}, v{AA[r] + 1}')
        a(f'v_mul_f32 v{MV[r] + 2}, v{MV[r] + 2}, v{MV[r] + 2}')
    wave_reduce('v_add_f32', AA)
    for r in range(2):
        a(f'v_readlane_b32 s{60 + 2 * r}, v{AA[r]}, 63')
    for step in range(8):
        for r in range(2):
            V = MV[r] + 2
            if step == 0:
                a(f'v_fma_f32 v{V}, s{60 + 2 * r}, v{K}, -v{V}')
            elif step in (1, 3, 5):
                rnd(V, V)
            elif step == 2:
                a(f'v_add_f32 v{V}, 0x3727c5ac, v{V}')
            elif step == 4:
                a(f'v_sqrt_f32 v{V}, v{V}')
            elif step == 6:
                a(f'v_rcp_f32 v{V + 1}, v{V}')
            else:
                a(f'v_rcp_f32 v{V}, v{V}')
    for r in range(2):
        for i in range(16):
            rnd(N[r] + i, XP[r] + i)
    for r in range(2):
        for i in range(8):
            pk('mul', N[r] + 2 * i, N[r] + 2 * i, MV[r] + 2)
    for r in range(2):
        for i in range(16):
            rnd(N[r] + i, N[r] + i)


def key_poll(dst):
    a('v_lshlrev_b32 v4, 7, v1')
    a(f's_mov_b32 s65, {WS_KEYS}')
    a(f's_mov_b32 s66, {WS_KEYS + 8192}')
    if opt('kcan', 1):
        a('s_lshl_b32 s62, s3, 7')
        a(f's_add_u32 s62, s62, {WS_KEYS + 4}')
        a('s_mov_b64 exec, 1')
        retry_loop(a.newlabel('kc'), [f'buffer_load_dword v8, v4, {WSR}, s62 offen sc1'], lambda: a('v_cmp_ne_u32 vcc, s8, v8'), sleep=opt('kcsleep', 2))
        stamp('kcan')
    loads = [f'buffer_load_dwordx2 v[{16 + 2 * p}:{17 + 2 * p}], v4, {WSR}, s{65 + p} offen sc1' for p in range(2)]

    def chk():
        a('v_xor_b32 v8, s8, v17')
        a('v_xor_b32 v9, s8, v19')
        a('v_max_u32 v12, v16, v18')
        a('v_or_b32 v8, v8, v9')
        a('v_cmp_ne_u32 vcc, 0, v8')
    retry_loop(a.newlabel('pk'), loads, chk, sleep=opt('ksleep', 2))
    wave_reduce('v_max_u32', 12)
    a(f'v_readlane_b32 s{dst}, v12, 63')


def k_main():
    kernel_begin(a, KN)
    a('s_cmp_ge_u32 s2, 256')
    a('s_cbranch_scc1 main_done')
    stamp_begin(0)
    if opt('dbg', 0):
        a('s_load_dwordx2 s[100:101], s[0:1], 96')
    for sr, off in ((S_WS, 104), (S_K, 8), (S_V, 16), (S_SK, 24), (S_H, 32), (10, 40), (S_Q, 0), (S_WR, 56), (S_OUT, 88), (S_G, 64), (S_U, 72), (S_D, 80)):
        a(f's_load_dwordx2 s[{sr}:{sr + 1}], s[0:1], {off}')
    if CODEPF:
        a('s_getpc_b64 s[4:5]')
        a('pc0:')
        a('s_mov_b32 s6, main_done-pc0')
        a('s_mov_b32 s7, 0x00020000')
        a('s_lshr_b32 s3, s2, 3')
        a(f's_mul_i32 s3, s3, {CODEPF * 128}')
        a('v_lshlrev_b32 v3, 7, v0')
        a(f'v_cmp_gt_u32 vcc, {CODEPF}, v0')
        a('s_and_saveexec_b64 s[60:61], vcc')
        a('s_cbranch_execz no_codepf')
        a('buffer_load_dword v252, v3, s[4:7], s3 offen')
        a('no_codepf:')
        a('s_mov_b64 exec, -1')
    a('s_lshr_b32 s5, s2, 4')
    a(f's_add_u32 s4, s2, {opt("xrot", 0)}')
    a('s_and_b32 s4, s4, 7')
    a('s_lshl_b32 s4, s4, 1')
    a('s_bfe_u32 s6, s2, 0x10003')
    a('s_or_b32 s4, s4, s6')
    a('s_lshl_b32 s2, s4, 4')
    a('s_or_b32 s2, s2, s5')
    a('v_lshrrev_b32 v3, 6, v0')
    a('v_and_b32 v1, 63, v0')
    a('v_readfirstlane_b32 s12, v3')
    a('v_lshlrev_b32 v2, 4, v1')
    a(f'v_mov_b32 v{VC}, {L_CNT}')
    a(f'v_mov_b32 v{V1}, 1')
    for r in range(6):
        a(f'v_mov_b32 v{144 + r}, 0')
    for r in range(4):
        a(f'v_mov_b32 v{240 + r}, -1')
    a('s_cmp_eq_u32 s12, 0')
    a('s_cbranch_scc0 no_cnt_init')
    a('s_mov_b64 exec, 1')
    a(f'ds_write_b128 v{VC}, v[144:147]')
    a(f'ds_write_b128 v{VC}, v[144:147] offset:16')
    a(f'ds_write_b128 v{VC}, v[144:147] offset:32')
    a('s_mov_b64 exec, -1')
    a('no_cnt_init:')
    for sr, n in ((S_WS, WS_SIZE), (S_K, MB4), (S_V, MB4), (S_SK, 8192), (S_H, 4096), (S_Q, MB4), (S_WR, 2048), (S_OUT, MB4),
                  (S_G, 1024 * 7168), (S_U, 1024 * 7168), (S_D, 3584 * 2048)):
        a(f's_mov_b32 s{sr + 2}, {n}')
        a(f's_mov_b32 s{sr + 3}, 0x00020000')
    a('s_and_b32 s13, s12, 3')
    if opt('gmix', 1):
        a('s_and_b32 s14, s12, 1')
        a('s_xor_b32 s4, s4, s14')
    a('s_lshr_b32 s14, s12, 2')
    if CPERM:
        a('s_bfe_u32 s15, s2, 0x20005')
        a('s_lshl_b32 s15, s15, 1')
        a('s_lshr_b32 s9, s2, 7')
        a('s_xor_b32 s9, s9, 1')
        a('s_or_b32 s15, s15, s9')
        a('s_and_b32 s9, s4, 1')
        a('s_lshl_b32 s7, s15, 1')
        a('s_or_b32 s7, s7, s9')
        a('s_lshl_b32 s15, s15, 5')
        a('s_and_b32 s9, s2, 31')
        a('s_or_b32 s15, s15, s9')
        a('s_lshl_b32 s15, s15, 2')
    else:
        a(f's_xor_b32 s7, s4, {opt("cx", 0) << 1}')
        a(f's_xor_b32 s15, s2, {opt("cx", 0) << 5}')
        a('s_lshl_b32 s15, s15, 2')
    a('s_add_u32 s15, s15, s13')
    a('s_lshr_b32 s3, s2, 1')
    a('v_and_b32 v4, 15, v1')
    a('v_lshrrev_b32 v5, 4, v1')
    a('v_and_b32 v10, 31, v1')
    a('v_lshrrev_b32 v11, 5, v1')
    a('v_lshrrev_b32 v6, 3, v1')
    a('v_lshlrev_b32 v8, 11, v6')
    a('v_lshlrev_b32 v6, 13, v6')
    a('v_and_b32 v7, 7, v1')
    a('v_lshl_add_u32 v6, v7, 4, v6')
    a('v_lshl_add_u32 v8, v7, 4, v8')
    a('s_lshl_b32 s62, s4, 17')
    a('s_lshl_b32 s63, s13, 11')
    a('s_add_u32 s62, s62, s63')
    a('s_lshl_b32 s63, s14, 21')
    a('s_add_u32 s62, s62, s63')
    a(f's_add_u32 s62, s62, {WS_KV}')
    a('s_lshl_b32 s63, s5, 7')
    a('s_add_u32 s62, s62, s63')
    a('s_add_u32 s63, s62, 0x10000')
    a('s_lshl_b32 s64, s12, 19')
    a('s_lshl_b32 s65, s5, 15')
    a('s_add_u32 s64, s64, s65')
    a('s_lshl_b32 s65, s7, 7')
    a('s_add_u32 s64, s64, s65')
    a('s_add_u32 s65, s64, 16384')
    a('s_sub_u32 s77, s64, 6144')
    a('s_cselect_b32 s77, 0x40000000, s77')
    a('s_lshl_b32 s79, s7, 9')
    a('v_lshlrev_b32 v9, 4, v10')
    a('s_lshl_b32 s67, s15, 12')
    a('s_lshl_b32 s70, s15, 1')
    a('s_and_b32 s70, s70, 0xfffffffc')
    a(f's_xor_b32 s68, s3, {RSW}')
    a('s_lshl_b32 s68, s68, 4')
    a('s_lshl_b32 s69, s13, 2')
    a('s_add_u32 s68, s68, s69')
    a('s_lshl_b32 s69, s68, 11')
    a('s_mul_i32 s66, s12, 4608')
    a(f's_add_u32 s66, s66, {L_P0}')
    a(f's_mov_b32 s6, {WS_EPOCH}')
    a('s_mov_b32 m0, s66')
    a('s_waitcnt lgkmcnt(0)')
    stamp('karg')
    if WSOFF:
        a(f's_add_u32 s{S_WS}, s{S_WS}, {WSOFF}')
        a(f's_addc_u32 s{S_WS + 1}, s{S_WS + 1}, 0')
    a(f's_load_dword s8, s[{S_WS}:{S_WS + 1}], s6')
    a('s_load_dword s9, s[10:11], s70')
    KR, VR, SKR = 16, 28, 36

    GL = 96
    a('s_cmp_eq_u32 s14, 0')
    a('s_cbranch_scc1 ld_kv')
    a(f's_add_u32 s{S_H}, s{S_H}, s67')
    a(f's_addc_u32 s{S_H + 1}, s{S_H + 1}, 0')
    a('s_barrier')
    for i in range(4):
        a(f'buffer_load_dwordx4 v[{GL + 6 * i}:{GL + 6 * i + 3}], v2, s[{S_H}:{S_H + 3}], 0 offen offset:{1024 * i} nt')
    if opt('hipos', 0) >= 8:
        lds_spin('kvq', 32, opt('hipos', 0) - 4, 3)
    elif opt('hipos', 0):
        a(f's_waitcnt vmcnt({4 - opt("hipos", 0)})')
    a('ld_kv:')
    a(f'buffer_load_dwordx4 v[{SKR}:{SKR + 3}], v9, s[{S_SK}:{S_SK + 3}], s79 offen')
    a('s_mov_b64 exec, 0xffffff')
    a(f'buffer_load_dwordx4 v8, s[{S_K}:{S_K + 3}], s77 offen nt lds')
    a('s_mov_b64 exec, -1')
    for (sr, so, lo) in ((S_K, 64, 384), (S_K, 65, 1408), (S_V, 64, 2432), (S_V, 65, 3456)):
        a(f's_add_u32 m0, s66, {lo}')
        a(f'buffer_load_dwordx4 v8, s[{sr}:{sr + 3}], s{so} offen nt lds')
    a('s_cmp_eq_u32 s14, 0')
    a('s_cbranch_scc0 ld_done')
    a('s_barrier')
    a('ld_done:')
    a(f's_mul_i32 s67, s13, {CS}')
    a('s_mov_b32 s74, 0x05040100')
    a('s_mov_b32 s75, 0x07060302')
    a('v_lshlrev_b32 v92, 10, v11')
    a('v_lshl_add_u32 v92, v10, 2, v92')
    a('v_add_u32 v92, s66, v92')
    a('v_add_u32 v93, 1024, v92')
    a('v_add_u32 v94, 2432, v92')
    a('v_lshrrev_b32 v8, 1, v10')
    a('v_mul_u32_u24 v8, 144, v8')
    a('v_and_b32 v9, 1, v10')
    a('v_lshl_add_u32 v8, v9, 6, v8')
    a('v_sub_u32 v9, 1, v11')
    a('v_lshl_add_u32 v8, v9, 4, v8')
    a('v_add_u32 v8, s66, v8')
    a('v_lshrrev_b32 v9, 3, v1')
    a('v_mul_u32_u24 v9, 144, v9')
    a('v_lshl_add_u32 v9, v7, 4, v9')
    a('v_add_u32 v9, s66, v9')
    a('v_add_u32 v160, s67, v2')
    a('v_and_b32 v161, 3, v1')
    a(f'v_mul_u32_u24 v161, {GS}, v161')
    a('v_bfe_u32 v162, v1, 2, 2')
    a('v_lshl_add_u32 v161, v162, 3, v161')
    a('v_lshl_add_u32 v161, v5, 4, v161')
    a('v_add_u32 v161, s67, v161')
    a(f's_add_u32 s60, s67, {UOFF + 480}')
    a('v_lshlrev_b32 v163, 5, v4')
    a('v_sub_u32 v162, s60, v163')
    a('v_lshl_add_u32 v162, v5, 4, v162')
    a('v_lshl_add_u32 v163, v5, 3, v163')
    a('s_lshl_b32 s60, s13, 12')
    a(f's_add_u32 s60, s60, {L_YL}')
    a('v_add_u32 v163, s60, v163')
    a('v_bfe_u32 v165, v1, 1, 2')
    a(f'v_mul_u32_u24 v165, {CS}, v165')
    a('v_and_b32 v166, 1, v1')
    a('v_lshl_add_u32 v165, v166, 4, v165')
    a('v_lshrrev_b32 v166, 3, v1')
    a('v_lshlrev_b32 v166, 5, v166')
    a('v_sub_u32 v165, v165, v166')
    a('s_lshl_b32 s60, s12, 9')
    a(f's_sub_u32 s60, {UOFF + 4064 - 256}, s60')
    a('v_add_u32 v165, s60, v165')
    a('s_lshl_b32 s78, s2, 13')
    a('s_lshl_b32 s60, s13, 11')
    a('s_add_u32 s78, s78, s60')
    a('s_lshl_b32 s60, s14, 21')
    a('s_add_u32 s78, s78, s60')
    a(f's_add_u32 s78, s78, {WS_KV}')
    a('v_lshl_add_u32 v166, v5, 3, v4')
    a('v_sub_u32 v166, 15, v166')
    a('v_and_b32 v167, 1, v166')
    a('v_lshlrev_b32 v167, 4, v167')
    a('v_ashrrev_i32 v166, 1, v166')
    a(f'v_mul_u32_u24 v150, {GS}, v1')
    a('v_add_u32 v150, s67, v150')
    a('v_lshlrev_b32 v245, 7, v4')
    a('v_bfe_u32 v248, v1, 3, 2')
    a('v_lshlrev_b32 v248, 13, v248')
    a('v_lshl_add_u32 v248, v7, 7, v248')
    a('v_lshlrev_b32 v251, 4, v0')
    a(f'v_lshrrev_b32 v{VG8}, 3, v0')
    a(f'v_lshlrev_b32 v{VG8}, 3, v{VG8}')
    a(f'v_mul_u32_u24 v{VXA}, {2 * RS}, v7')
    a(f'v_add_u32 v{VXA}, v{VXA}, v{VG8}')
    a(f'v_add_u32 v{VXA}, {L_YT}, v{VXA}')
    a(f'v_add_u32 v{VWA}, {L_W}, v{VG8}')
    a(f'v_lshlrev_b32 v{VSA}, 5, v7')
    a(f'v_add_u32 v{VSA}, {L_ST}, v{VSA}')
    a(f'v_bfe_u32 v{VKL}, v1, 3, 1')
    a(f'v_lshl_add_u32 v{VKL}, v7, 1, v{VKL}')
    a(f'v_mul_u32_u24 v{VPR}, {PS}, v{VKL}')
    a(f'v_lshl_add_u32 v{VPR}, v5, 6, v{VPR}')
    a(f'v_lshl_add_u32 v{VPW}, v7, 1, v11')
    a(f'v_mul_u32_u24 v{VPW}, {PS}, v{VPW}')
    a('v_and_b32 v3, 1, v5')
    a(f'v_lshl_add_u32 v{VPW}, v3, 4, v{VPW}')
    a('s_lshl_b32 s60, s12, 5')
    a(f'v_add_u32 v{VPW}, s60, v{VPW}')
    a(f's_xor_b32 s60, s3, {RSW}')
    a('s_lshl_b32 s60, s60, 4')
    a('s_sub_u32 s60, 2047, s60')
    a(f'v_sub_u32 v{VKL}, s60, v{VKL}')
    a(f's_mul_i32 s60, s13, {4 * RS}')
    a(f's_add_u32 s60, s60, {L_YT}')
    a(f'v_add_u32 v{VRA}, s60, v2')
    a(f'v_lshrrev_b32 v{VBIT}, 3, v1')
    a(f'v_lshlrev_b32 v{VBIT}, v{VBIT}, 1')
    a('v_and_b32 v253, 255, v0')
    a('v_lshlrev_b32 v253, 3, v253')
    a('v_lshlrev_b32 v237, 1, v253')
    a(f'v_lshlrev_b32 v247, {SH}, v5')
    a('v_lshl_add_u32 v247, v4, 4, v247')
    a('s_mov_b64 exec, 0xf')
    a('ds_write_b128 v150, v[144:147]')
    a('s_mov_b64 exec, 0x3fffffff')
    a(f'ds_write_b128 v160, v[144:147] offset:{UOFF + 4096}')
    a('s_mov_b64 exec, -1')
    WFp, KF, O, PKD = 40, 48, 70, 86
    a('s_waitcnt lgkmcnt(0)')
    a('s_add_u32 s8, s8, 0x9e3779b9')
    a('s_or_b32 s8, s8, 1')
    a('s_and_b32 s61, s15, 1')
    a('s_lshl_b32 s61, s61, 4')
    a('s_lshr_b32 s9, s9, s61')
    a('s_and_b32 s9, s9, 0xffff')
    a('v_lshlrev_b32 v167, v167, s9')
    for r in range(4):
        a(f'v_cmp_eq_u32 vcc, {r}, v166')
        a(f'v_cndmask_b32 v{168 + r}, 0, v167, vcc')
    a('s_lshl_b32 s64, s4, 11')
    a(f's_add_u32 s64, s64, {WS_FA}')
    a('s_lshl_b32 s65, s2, 7')
    a('s_lshr_b32 s15, s15, 2')
    a('s_lshl_b32 s15, s15, 7')
    a(f's_add_u32 s7, s15, {WS_FB}')
    a('s_lshl_b32 s60, s13, 2')
    a('s_add_u32 s7, s7, s60')
    a('s_bfe_u32 s60, s3, 0x20003')
    a('s_lshl_b32 s60, s60, 2')
    a('v_add_u32 v248, s60, v248')
    a(f's_add_u32 s65, s65, {WS_FA}')
    a('v_mov_b32 v13, s8')
    a('v_mov_b32 v14, 0')
    a(f's_add_u32 s10, s65, {WS_FA2 - WS_FA}')
    a('s_cmp_eq_u32 s12, 0')
    a('s_cselect_b32 s60, s10, 0x40000000')
    a('s_mov_b64 exec, 0xff')
    a(f'buffer_store_dwordx4 v[144:147], v2, {WSR}, s60 offen')
    a('s_mov_b64 exec, -1')
    XV = 1
    a('s_lshl_b32 s60, s12, 2')
    a('s_add_u32 s64, s64, s60')
    a('s_add_u32 s65, s65, s60')
    a('s_add_u32 s10, s10, s60')
    a(f's_add_u32 s11, s64, {WS_FA2 - WS_FA}')
    if DYN:
        a('s_memrealtime s[4:5]')
    a('s_cmp_eq_u32 s14, 0')
    a('s_cbranch_scc1 p0')
    LATER = 6 + XV
    a(f's_waitcnt vmcnt({LATER + 3})')
    a(f'v_readlane_b32 s76, v{GL}, 0')
    a(f'v_readlane_b32 s77, v{GL + 1}, 0')
    a('s_lshl_b32 s70, s76, 16')
    a('s_lshr_b32 s61, s76, 16')
    a('s_lshl_b32 s71, s77, 16')
    a('s_or_b32 s61, s61, s71')
    a('v_writelane_b32 v149, s70, 0')
    a('v_writelane_b32 v149, s76, 1')
    a('v_writelane_b32 v149, s61, 2')
    a('v_writelane_b32 v149, s77, 3')
    a('v_writelane_b32 v148, s70, 2')
    a('v_writelane_b32 v148, s76, 3')
    a('s_mov_b64 exec, 0xf')
    a('ds_write_b128 v150, v[146:149] offset:16')
    a('s_mov_b64 exec, -1')
    for i in range(4):
        w = GL + 6 * i
        a(f'v_mov_b32_dpp v{w + 4}, v{w} wave_shl:1 row_mask:0xf bank_mask:0xf bound_ctrl:0')
        a(f'v_mov_b32_dpp v{w + 5}, v{w + 1} wave_shl:1 row_mask:0xf bank_mask:0xf bound_ctrl:0')
        if i < 3:
            a(f's_waitcnt vmcnt({LATER + 2 - i})')
            a(f'v_readlane_b32 s70, v{w + 6}, 0')
            a(f'v_readlane_b32 s71, v{w + 7}, 0')
            a(f'v_writelane_b32 v{w + 4}, s70, 63')
            a(f'v_writelane_b32 v{w + 5}, s71, 63')
        ta, tb, tc = 176 + 12 * i, 180 + 12 * i, 184 + 12 * i
        a(f'ds_write_b128 v160, v[{w + 2}:{w + 5}] offset:{32 + 1024 * i + 3 * GS}')
        for j in range(4):
            a(f'v_alignbit_b32 v{ta + j}, v{w + j + 1}, v{w + j}, 16')
        a(f'ds_write_b128 v160, v[{ta}:{ta + 3}] offset:{32 + 1024 * i + 0 * GS}')
        for j in range(4):
            a(f'v_alignbit_b32 v{tb + j}, v{w + j + 2}, v{w + j + 1}, 16')
        a(f'ds_write_b128 v160, v[{tb}:{tb + 3}] offset:{32 + 1024 * i + 2 * GS}')
        for j in range(4):
            a(f'v_mov_b32 v{tc + j}, v{w + j + 1}')
        a(f'ds_write_b128 v160, v[{tc}:{tc + 3}] offset:{32 + 1024 * i + 1 * GS}')
    lds_inc(20)
    a(f'v_add_u32 v239, {L_W}, v2')
    a('v_and_b32 v244, 1, v5')
    a('v_lshl_add_u32 v244, v244, 1, v11')
    a('v_lshlrev_b32 v244, 4, v244')
    a('s_lshl_b32 s60, s13, 6')
    a(f's_add_u32 s60, s60, {L_ST}')
    a('v_add_u32 v244, s60, v244')
    a('s_waitcnt lgkmcnt(0)')
    for p in range(4):
        a(f'v_mov_b32 v{YR[0] + 4 * p}, -1')
    a('s_lshl_b32 s60, s13, 5')
    a(f's_add_u32 s60, s60, {L_X}')
    a('v_mov_b32 v201, s60')
    a(f'v_mul_u32_u24 v203, {RP}, v4')
    a('v_lshl_add_u32 v203, v5, 5, v203')
    a(f's_mul_i32 s60, s13, {16 * RP}')
    a('v_add_u32 v203, s60, v203')
    a(f'v_mul_u32_u24 v205, {RP}, v5')
    a('v_lshl_add_u32 v205, v4, 4, v205')
    a(f's_mul_i32 s60, s13, {4 * RP}')
    a('v_add_u32 v205, s60, v205')
    stamp('gdone')
    a('p0:')
    a(f's_waitcnt vmcnt({5 + XV})')
    for jj in range(2):
        unpack(WFp + 0 + jj, WFp + 2 + jj, SKR + 2 * jj)
        unpack(WFp + 4 + jj, WFp + 6 + jj, SKR + 2 * jj + 1)
    a(f's_waitcnt vmcnt({2 + XV})')
    stamp('kdata')
    for r in range(0, 8, 2):
        a(f'ds_read2_b32 v[{KR + r}:{KR + r + 1}], v92 offset0:{32 * r} offset1:{32 * r + 32}')
    a(f'ds_read2_b32 v[{KR + 8}:{KR + 9}], v93 offset0:0 offset1:32')
    a(f'ds_read_b32 v{KR + 10}, v93 offset:256')
    a(f's_waitcnt vmcnt({0 + XV})')
    for r in range(0, 8, 2):
        a(f'ds_read2_b32 v[{VR + r}:{VR + r + 1}], v94 offset0:{32 * r} offset1:{32 * r + 32}')
    for r in range(11):
        if r % 2 == 0:
            a(f's_waitcnt lgkmcnt({9 - r // 2})')
        unpack(KF + 2 * r, KF + 2 * r + 1, KR + r)
    for t in range(4):
        tap = 3 - t
        for r in range(8):
            if t == 0:
                pk('mul', O + 2 * r, KF + 2 * (r + t), WFp + 2 * tap)
            else:
                pk('fma', O + 2 * r, KF + 2 * (r + t), WFp + 2 * tap, O + 2 * r)
    a('s_waitcnt lgkmcnt(0)')
    for r in range(8):
        unpack(KF + 2 * r, KF + 2 * r + 1, VR + r)
    for r in range(8):
        pk('mul', O + 2 * r, O + 2 * r, KF + 2 * r)
    for jj in range(2):
        d = PKD + 2 + 4 * jj
        for m in range(4):
            a(f'v_cvt_pk_bf16_f32 v{d + m}, v{O + 2 * (7 - 2 * m) + jj}, v{O + 2 * (6 - 2 * m) + jj}')
        a(f'ds_write_b128 v8, v[{d}:{d + 3}] offset:{32 * jj}')
    a('s_waitcnt lgkmcnt(0)')
    if opt('hhold', 0):
        a('s_cmp_eq_u32 s14, 0')
        a('s_cbranch_scc1 hh_go')
        lds_spin('hh', 32, opt('hhold', 0), 3)
    a('ds_read_b128 v[16:19], v9')
    a(f'ds_read_b128 v[20:23], v9 offset:{8 * 144}')
    a('s_waitcnt lgkmcnt(1)')
    a(f'buffer_store_dwordx4 v[16:19], v6, {KVR}, s62 offen sc1')
    a('s_waitcnt lgkmcnt(0)')
    a(f'buffer_store_dwordx4 v[20:23], v6, {KVR}, s63 offen sc1')
    stamp('kvst')
    if opt('hipos', 0) == 8:
        lds_inc(32)
    UP = 120
    a('s_waitcnt vmcnt(0)')
    stamp('kvack')
    a('s_mov_b64 exec, 1')
    a(f'buffer_store_dword v13, v14, {WSR}, s10 offen')
    FL2 = opt('fl2', 1)
    if not FL2:
        a(f'buffer_store_dword v13, v14, {WSR}, s65 offen sc1')
    EX, EF = opt('ex', 0), opt('ef', 0)
    GW, XH = 64, 68

    def gu_base():
        a('s_and_b32 s76, s3, 15')
        a('s_lshl_b32 s77, s76, 2')
        a('s_add_u32 s77, s77, s13')
        a(f's_mul_i32 s77, s77, {16 * 7168}')
        a('s_lshr_b32 s60, s3, 4')
        a('s_lshl_b32 s60, s60, 10')
        a('s_add_u32 s77, s77, s60')
    steps = []
    for i in range(16):
        for m, sr in ((0, S_G), (1, S_U)):
            r = GW + 64 * m + 4 * i
            steps.append([f'buffer_load_dwordx4 v[{r}:{r + 3}], v2, s[{sr}:{sr + 3}], s77 offen nt'])
        steps[-1].append('s_add_u32 s77, s77, 7168')

    def x_load(i):
        a(f'buffer_load_dwordx4 v[{XH + 4 * i}:{XH + 4 * i + 3}], v2, s[{S_Q}:{S_Q + 3}], s{69 + (i >> 2)} offen offset:{1024 * (i & 3)} nt')
    if EX or EF:
        a('s_mov_b64 exec, -1')
        a('s_cmp_eq_u32 s14, 0')
        a('s_cbranch_scc1 early_done')
        gu_base()
        a('s_add_u32 s70, s69, 4096')
        lds_spin('eh', 32, 4, 3)
        a('s_bitcmp0_b32 s2, 0')
        a('s_cbranch_scc0 early_ffn')
        for i in range(EX):
            x_load(i)
        a('s_branch early_done')
        a('early_ffn:')
        a('s_cmp_lt_u32 s3, 112')
        a('s_cbranch_scc0 early_done')
        for k in range(EF):
            for l in steps[k]:
                a(l)
        a('early_done:')
    a('s_mov_b64 exec, 0xffff')
    a('s_mov_b32 s61, 0')
    a('fa2_again:')
    a(f'buffer_load_dword v246, v245, {WSR}, s11 offen sc1')
    a('s_add_u32 s61, s61, 1')
    a('s_waitcnt vmcnt(0)')
    a('v_cmp_ne_u32 vcc, s8, v246')
    a('s_cbranch_vccz fa_ok')
    a('s_mov_b64 exec, vcc')
    if opt('fa2sleep', 0):
        a(f's_sleep {opt("fa2sleep", 0)}')
    a(f's_cmp_lt_u32 s61, {DUAL}')
    a('s_cbranch_scc1 fa2_again')
    if FL2:
        a(f'buffer_store_dword v13, v14, {WSR}, s65 offen sc1')
    retry_loop('fa', [f'buffer_load_dword v246, v245, {WSR}, s64 offen sc1'], lambda: a('v_cmp_ne_u32 vcc, s8, v246'), sleep=opt('fasleep', 1))
    stamp('faok')
    for q in range(2):
        a(f'buffer_load_dwordx4 v[{UP + 4 * q}:{UP + 4 * q + 3}], v2, {KVR}, s78 offen offset:{1024 * q}{KVL}')
    if FL2:
        a('s_mov_b64 exec, 1')
        a(f'buffer_store_dword v13, v14, {WSR}, s65 offen sc1')
        a('s_mov_b64 exec, -1')
    a('s_cmp_eq_u32 s14, 0')
    a('s_cbranch_scc0 helper')

    ACC = 16
    FA_ = [48, 196]
    FB_ = [80, 112]

    def readsA(s, c):
        out = []
        for j in range(8):
            out.append(f'ds_read_b64 v[{s + 4 * j}:{s + 4 * j + 1}], v161 offset:{64 * (8 * j + c)}')
            out.append(f'ds_read_b64 v[{s + 4 * j + 2}:{s + 4 * j + 3}], v161 offset:{64 * (8 * j + c) + 8}')
        return out

    def readsB(s, c):
        return [f'ds_read_b128 v[{s + 4 * z}:{s + 4 * z + 3}], v162 offset:{64 * (56 - (8 * z - c))}' for z in range(8)]

    def y_fill():
        a('v_bfe_u32 v182, v0, 3, 5')
        a('v_lshlrev_b32 v182, 15, v182')
        a('v_lshl_add_u32 v182, v7, 4, v182')
        a('s_mov_b32 s62, s15')
        for q in range(4):
            a(f'buffer_store_dwordx4 v[240:243], v182, {XBR}, s62 offen sc1')
            if q < 3:
                a('s_add_u32 s62, s62, 0x100000')

    if opt('hhold', 0) or EX or EF:
        lds_inc(32)
    lds_spin('g4', 20, 4, 153)
    for r in readsA(FA_[0], 0):
        a(r)
    for q in range(2):
        a(f's_waitcnt vmcnt({1 - q + FL2})')
        a(f'ds_write_b128 v165, v[{UP + 4 * q}:{UP + 4 * q + 3}] offset:{256 - 256 * q}')
    lds_inc(12)
    stamp('u0')
    if FILLBY == 1 and opt('fst', -1) < 0:
        y_fill()
    lds_spin('u4', 12, 4, 153)
    stamp('mf0')
    for r in readsB(FB_[0], 0)[:4]:
        a(r)

    def mfma(w, A, B, init=False):
        c = '0' if init else f'v[{ACC + 4 * w}:{ACC + 4 * w + 3}]'
        a(f'v_mfma_f32_16x16x32_bf16 v[{ACC + 4 * w}:{ACC + 4 * w + 3}], v[{A}:{A + 3}], v[{B}:{B + 3}], {c}')

    def ystage(w):
        E = 172 + 2 * (w & 3)
        return [f'v_cvt_pk_bf16_f32 v{E}, v{ACC + 4 * w}, v{ACC + 4 * w + 1}',
                f'v_cvt_pk_bf16_f32 v{E + 1}, v{ACC + 4 * w + 2}, v{ACC + 4 * w + 3}',
                f'ds_write_b64 v163, v[{E}:{E + 1}] offset:{512 * w}']

    gsetup = ['v_lshlrev_b32 v180, 2, v0', f'v_add_u32 v180, {L_YL}, v180', 'v_add_u32 v181, 0x2000, v180',
              'v_lshrrev_b32 v182, 3, v0', 'v_lshlrev_b32 v182, 15, v182', 'v_lshl_add_u32 v182, v7, 4, v182',
              's_mov_b32 s62, s15', 's_add_u32 s63, s62, 0x100000', 's_add_u32 s64, s62, 0x200000', 's_add_u32 s65, s62, 0x300000',
              's_lshl_b32 s6, s12, 10', f's_add_u32 s6, s6, {WS_FB}',
              's_bitcmp0_b32 s2, 0', 's_cselect_b32 s66, s69, 0x40000000', 's_cselect_b32 s70, 0, 0x40000000', 's_cselect_b32 s71, s6, 0x40000000']
    WR2 = 152

    def gather(p0_, sregs, GR, GP):
        rd, out = [], []
        for p in range(2):
            g = GR + 4 * p
            for hf in range(2):
                rd.append(f'ds_read2st64_b32 v[{g + 2 * hf}:{g + 2 * hf + 1}], v{180 + hf} offset0:{4 * (p0_ + p)} offset1:{16 + 4 * (p0_ + p)}')
            out.append(f'buffer_store_dwordx4 v[{g}:{g + 3}], v182, {XBR}, s{sregs[p]} offen sc1')
        return rd, out

    fbload = f'buffer_load_dword v249, v248, {WSR}, s6 offen sc1'
    PY = YR[0]
    YM = 16

    GM = 48

    def y_setup(regs=True):
        for p in range(4):
            a(f's_mov_b64 s[{YM + 2 * p}:{YM + 2 * p + 1}], -1')
            if regs:
                a(f'v_mov_b32 v{PY + 4 * p}, -1')
        a(f's_xor_b32 s24, s3, {RSW}')
        a('s_lshl_b32 s24, s24, 15')
        for p in range(1, 4):
            a(f's_add_u32 s{24 + p}, s24, {8192 * p}')
        a('s_mov_b64 s[0:1], -1')

    def fb_check():
        lab = a.newlabel('fbk')
        a('s_cmp_eq_u32 s0, 0')
        a(f's_cbranch_scc1 {lab}')
        a('v_cmp_ne_u32 s[0:1], s8, v249')
        for p in range(4):
            a(f's_lshr_b32 s9, s0, {8 * p}')
            a(f'v_and_b32 v250, s9, v{VBIT}')
            a(f'v_cmp_eq_u32 s[{GM + 2 * p}:{GM + 2 * p + 1}], 0, v250')
        a(f'{lab}:')

    def y_issue():
        lab = a.newlabel('yf')
        a('s_mov_b32 exec_lo, s0')
        a('s_mov_b32 exec_hi, 0')
        a(f's_cbranch_execz {lab}')
        a(fbload)
        a(f'{lab}:')
        for p in range(4):
            lab = a.newlabel('yi')
            a(f's_and_b64 exec, s[{YM + 2 * p}:{YM + 2 * p + 1}], s[{GM + 2 * p}:{GM + 2 * p + 1}]')
            a(f's_cbranch_execz {lab}')
            a(f'buffer_load_dwordx4 v[{PY + 4 * p}:{PY + 4 * p + 3}], v251, {XBR}, s{24 + p} offen sc1')
            a(f'{lab}:')
        a('s_mov_b64 exec, -1')

    def y_check():
        a('s_waitcnt vmcnt(0)')
        fb_check()
        for p in range(4):
            a(f'v_max3_u32 v250, v{PY + 4 * p}, v{PY + 4 * p + 1}, v{PY + 4 * p + 2}')
            a(f'v_max_u32 v250, v250, v{PY + 4 * p + 3}')
            a(f'v_cmp_eq_u32 s[{YM + 2 * p}:{YM + 2 * p + 1}], -1, v250')
        a(f's_or_b64 s[28:29], s[{YM}:{YM + 1}], s[{YM + 2}:{YM + 3}]')
        a(f's_or_b64 s[30:31], s[{YM + 4}:{YM + 5}], s[{YM + 6}:{YM + 7}]')
        a('s_or_b64 s[28:29], s[28:29], s[30:31]')

    AC = [116, 122]
    ST = [128, 132]
    TY = 68

    def prep_a():
        lds_spin(a.newlabel('xr'), 12, 8, 3)
        RX, RW = 76, 92
        for r in range(2):
            for p in range(4):
                a(f'ds_read_b64 v[{RX + 8 * r + 2 * p}:{RX + 8 * r + 2 * p + 1}], v{VXA} offset:{512 * p + RS * r}')
        for p in range(4):
            a(f'ds_read_b64 v[{RW + 2 * p}:{RW + 2 * p + 1}], v{VWA} offset:{512 * p}')
        for i in range(0, 12, 2):
            a(f'v_mov_b64 v[{AC[0] + i}:{AC[0] + i + 1}], 0')
        a('s_mov_b32 s72, 0')
        for r in range(2):
            a(f's_waitcnt lgkmcnt({8 - 4 * r})')
            for i in range(8):
                unpack(XP[r] + 2 * i, XP[r] + 2 * i + 1, RX + 8 * r + i)
        a('s_waitcnt lgkmcnt(0)')
        for i in range(8):
            unpack(WF + 2 * i, WF + 2 * i + 1, RW + i)

    def prep_b():
        lds_spin(a.newlabel('xs'), 28, 4, 3)
        for r in range(2):
            a(f'ds_read_b128 v[{ST[r]}:{ST[r] + 3}], v{VSA} offset:{16 * r}')
        a(f'ds_read_b32 v3, v{VC} offset:{L_SW - L_CNT}')
        for r in range(2):
            a(f's_waitcnt lgkmcnt({2 - r})')
            for i in range(8):
                pk('fma', N[r] + 2 * i, XP[r] + 2 * i, ST[r] + 2, ST[r])
        a('s_waitcnt lgkmcnt(0)')
        a('v_readfirstlane_b32 s71, v3')
        stamp('lnx')

    def y_fold():
        for p in range(4):
            lab = a.newlabel('yd')
            a(f's_bitcmp1_b32 s72, {p}')
            a(f's_cbranch_scc1 {lab}')
            a(f's_cmp_eq_u64 s[{YM + 2 * p}:{YM + 2 * p + 1}], 0')
            a(f's_cbranch_scc0 {lab}')
            a(f's_bitset1_b32 s72, {p}')
            for i in range(4):
                unpack(TY + i, TY + 4 + i, PY + 4 * p + i)
            for i in range(4):
                e = XP[i >> 1] + 4 * p + 2 * (i & 1)
                pk('fma', e, TY + 2 * i, N[i >> 1] + 4 * p + 2 * (i & 1), e)
            for k in range(2):
                for r in range(2):
                    e = XP[r] + 4 * p + 2 * k
                    pk('add', AC[r], AC[r], e)
                    pk('fma', AC[r] + 2, e, e, AC[r] + 2)
                    pk('fma', AC[r] + 4, e, WF + 4 * p + 2 * k, AC[r] + 4)
            a(f'{lab}:')

    def spread(pairs, low_first=False):
        out, left = [], list(pairs)
        if low_first:
            left.sort(key=lambda q: q[0])

        def feasible(rest, prev):
            cnt = {}
            for q in rest:
                cnt[q[0]] = cnt.get(q[0], 0) + 1
            n = len(rest)
            return all(c <= (n + 1) // 2 - (1 if (w == prev and n % 2 == 1) else 0) for w, c in cnt.items())
        while left:
            recent = [q[0] for q in out[-2:]]
            pick = None
            for avoid in (recent, recent[-1:]):
                for q in left:
                    if q[0] in avoid:
                        continue
                    rest = list(left)
                    rest.remove(q)
                    if feasible(rest, q[0]):
                        pick = q
                        break
                if pick:
                    break
            assert pick
            out.append(pick)
            left.remove(pick)
        return out

    assert YLO and FILLBY == 1 and opt('fst', -1) < 0
    cnt = {'n': 0}
    mark = {}
    late_code = []

    def em(item):
        if isinstance(item, list):
            for q in item:
                em(q)
        elif isinstance(item, tuple):
            if item[0] == 'mark':
                mark[item[1]] = cnt['n']
            elif item[0] == 'wait':
                a(f's_waitcnt lgkmcnt({min(15, cnt["n"] - mark[item[1]])})')
            else:
                _, name, off, want = item
                a('v_readfirstlane_b32 s60, v164')
                a(f's_cmp_ge_u32 s60, {want}')
                a.raw(f'    s_cbranch_scc0 {name}_slow')
                a.raw(f'{name}_back:')
                late_code.append((name, off, want))
        else:
            a(item)
            if item.startswith('ds_'):
                cnt['n'] += 1

    def bufB(c):
        return FA_[(c >> 1) & 1] + 16 * (c & 1), FB_[(c >> 1) & 1] + 16 * (c & 1)

    def rdA(c):
        return readsA(bufB(c)[0], c)[:8]

    def rdB(c):
        return readsB(bufB(c)[1] - 16, c)[4:]

    def one_lane(*ins):
        return ['s_mov_b64 exec, 1'] + list(ins) + ['s_mov_b64 exec, -1']

    rlo, olo = gather(0, (62, 63), 184, 144)
    mark['s0'] = 0
    seen = set()
    prev = None
    for st in range(16):
        em(('wait', f's{st}'))
        stamp(f'st{st}')
        slots = {}

        def put(items, first, per):
            for k, it in enumerate(items):
                slots.setdefault(first + k // per, []).append(it)
        if st < 8:
            sa, sb = FA_[st & 1], FB_[st & 1]
            pairs = [(n + z, sa + 4 * n, sb + 4 * z) for n in range(8) for z in range(min(4, 8 - n))]
            if st == 0:
                pairs = [(z, 168, sb + 4 * z) for z in range(4)] + pairs
            order = spread(pairs, st == 7)
        else:
            c = st - 8
            sa, sb = bufB(c)
            byw = {w: [(w, sa + 4 * n, sb + 4 * (w - n - 4)) for n in range(w - 3)] for w in range(4, 8)}
            seq = [7, 4, 7, 5, 6, 5, 7, 6, 7, 6]
            if c == 0:
                for z in range(4, 8):
                    byw[z].append((z, 168, sb + 4 * (z - 4)))
                seq = [4, 7, 5, 6] + seq
            order = [byw[w].pop() for w in seq]
        if st < 7:
            nx = FA_[(st + 1) & 1], FB_[(st + 1) & 1]
            rd = readsB(nx[1], st + 1)[:4] + readsA(nx[0], st + 1)
            rd[-1] = [rd[-1], ('mark', f's{st + 1}')]
            put(rd, 0, 1)
        if st == 0:
            put(gsetup[:12], 20, 2)
            put([gsetup[12:]], 27, 1)
        if st == FLC:
            put([['s_waitcnt vmcnt(0)'] + one_lane(f'buffer_store_dword v13, v14, {WSR}, s7 offen sc1')], 22, 1)
        if st == 7:
            put([[f'ds_read_b32 v164, v{VC} offset:0', ('mark', 'uc')]] + rdA(0) + rdA(1), 0, 2)
            put([[('wait', 'uc'), ('check', 'uhi', 0, 4)]], 9, 1)
            b0, b1 = rdB(0), rdB(1)
            b0[-1] = [b0[-1], ('mark', 's8')]
            b1[-1] = [b1[-1], ('mark', 's9')]
            put(b0 + b1, 10, 2)
            put(ystage(0) + ystage(1) + ystage(2), 14, 1)
            put(ystage(3), 23, 1)
        if 8 <= st < 14:
            rd = rdB(st - 6) + rdA(st - 6)
            rd[-1] = [rd[-1], ('mark', f's{st + 2}')]
            put(rd[:4], 1, 2)
            put(rd[4:], 2 if st > 8 else 3, 1)
        YG = opt('yg', 10)
        if st == 8:
            put([one_lane(f'ds_add_u32 v{VC}, v{V1} offset:20')], 0, 1)
        if st == YG - 1:
            put([[f'ds_read_b32 v164, v{VC} offset:20', ('mark', 'yc')]], 4, 1)
        if st == YG:
            put([[('wait', 'yc'), ('check', 'ylo', 20, 8)]], 0, 1)
            rl = list(rlo)
            rl[-1] = [rl[-1], ('mark', 'yg')]
            put(rl, 3, 1)
        if st == YG + 1:
            put([[('wait', 'yg'), olo[0]], olo[1]], 2, 1)
        if st == FBC:
            put([f'ds_write_b32 v{VC}, v{V1} offset:24'], 0, 1)
        if st == opt('fbc2', 14):
            put([fbload.replace('s6 ', 's71 ')], 0, 1)
        assert max(slots, default=0) < len(order), (st, max(slots), len(order))
        for i, (w, A, B) in enumerate(order):
            assert w != prev
            prev = w
            mfma(w, A, B, w not in seen)
            seen.add(w)
            for it in slots.get(i, []):
                em(it)
            if opt('mslack', 0) and i % opt('mslack', 0) == opt('mslack', 0) - 1 and opt('ms0', 0) <= st < opt('ms1', 16):
                a(f's_nop {opt("mnop", 5)}')
    for w in (4, 5, 7, 6):
        for l in ystage(w):
            a(l)
    stamp('s1end')
    if opt('cprio', 1):
        a('s_setprio 2')
    lds_inc(8)
    lds_spin('c2', 8, 4, 166)
    if GXL and DWHO:
        a('s_and_b32 s60, s2, 1')
        a('s_cmp_lt_u32 s3, 112')
        a('s_cselect_b32 s60, s60, 0')
        a('s_cmp_eq_u32 s60, 0')
        a('s_cbranch_scc1 ib_go')
        lds_spin('ib', 28, 4, 166)
    (r0, o0), (r1, o1) = gather(0, (62, 63), 184, 196), gather(2, (64, 65), 164, 204)
    if YLO:
        tail = r1 + ['s_waitcnt lgkmcnt(2)', o1[0], 's_waitcnt lgkmcnt(0)', o1[1]]
    else:
        tail = r0 + r1 + ['s_waitcnt lgkmcnt(4)'] + o0 + ['s_waitcnt lgkmcnt(0)'] + o1
    for l in tail:
        a(l)
    stamp('yst')
    if opt('cprio', 1):
        a('s_setprio 0')
    lds_inc(8)
    a('s_bitcmp0_b32 s2, 0')
    a('s_cbranch_scc0 conv_ffn')
    a('s_waitcnt vmcnt(2)')
    y_setup()
    fb_check()
    YF = opt('yfirst', 0)
    if YF:
        a('s_cmp_lt_u32 s3, 64')
        a('s_cbranch_scc0 yf_skip')
    y_issue()
    a('yf_skip:')
    prep_a()
    prep_b()
    a('s_branch rows')
    for name, off, want in late_code:
        a(f'{name}_slow:')
        a('s_nop 7')
        lds_spin(name, off, want, 164)
        a(f's_branch {name}_back')

    a('helper:')
    for q in range(2):
        a(f's_waitcnt vmcnt({1 - q + FL2})')
        a(f'ds_write_b128 v165, v[{UP + 4 * q}:{UP + 4 * q + 3}] offset:{256 - 256 * q}')
    lds_inc(0)
    stamp('u0')
    if FILLBY == 0:
        lds_spin('uw', UWOFF, 4, 28)
        y_fill()

    def fb_publish():
        if FILLBY:
            return
        a('s_mov_b64 exec, 1')
        a(f'ds_add_rtn_u32 v12, v{VC}, v{V1} offset:4')
        a(f'ds_add_u32 v{VC}, v{V1} offset:8')
        a('s_waitcnt lgkmcnt(0)')
        a('v_cmp_eq_u32 vcc, 3, v12')
        a('v_cndmask_b32 v14, -16, v14, vcc')
        a(f'buffer_store_dword v13, v14, {WSR}, s7 offen sc1')
        a('s_mov_b64 exec, -1')
        stamp('fillB')
    if FILLBY:
        lds_spin('uw', UWOFF, 4, 28)
    a(f's_lshl_b32 s61, s3, {SH}')
    a('s_bitcmp0_b32 s2, 0')
    a('s_cbranch_scc0 helper_ffn')
    a(f's_add_u32 s62, s61, {WS_CAND}')
    a(f's_add_u32 s63, s61, {WS_PART}')
    a(f's_add_u32 s79, s61, {WS_GX}')
    DW = 156
    DSP = opt('dsp', 1)

    def d_base():
        if DSP:
            a('s_lshr_b32 s78, s3, 4')
            a('s_lshl_b32 s78, s78, 20')
            a('s_and_b32 s60, s3, 15')
            a('s_lshl_b32 s60, s60, 14')
            a('s_add_u32 s78, s78, s60')
        else:
            a('s_lshl_b32 s78, s3, 16')

    def d_list(DW):
        return [[f'buffer_load_dwordx2 v[{DW + 2 * r}:{DW + 2 * r + 1}], v253, s[{S_D}:{S_D + 3}], s78 offen offset:{(r & 1) * 2048} nt']
                + ([f's_add_u32 s78, s78, {4096 + (262144 - 16384 if DSP and r % 8 == 7 else 0)}'] if r & 1 else []) for r in range(32)]
    d_base()
    dl = d_list(DW)
    XH, WH = 68, 100
    stamp('xiss')
    a('s_add_u32 s70, s69, 4096')
    for i in range(EX, 8):
        x_load(i)
    for i in range(2):
        a(f'buffer_load_dwordx4 v[{WH + 4 * i}:{WH + 4 * i + 3}], v2, s[{S_WR}:{S_WR + 3}], 0 offen offset:{1024 * i}')
    if not FILLBY:
        a('s_waitcnt vmcnt(10)')
        fb_publish()
    if opt('reuse', 0):
        assert not DWHO
        lds_spin('ru0', 0, 4, 3)
        lds_spin('ru1', 12, 4, 3)
    a(f'buffer_store_dwordx4 v[240:243], v237, {WSR}, s62 offen sc1')
    a(f'buffer_store_dwordx4 v[240:243], v237, {WSR}, s63 offen sc1')
    a(f'buffer_store_dwordx4 v[240:243], v237, {WSR}, s79 offen sc1')
    NL = 3 + (0 if FILLBY else 1)
    if GXL and not DWHO:
        a(f's_add_u32 s60, s79, {WS_GX2 - WS_GX}')
        a(f'buffer_store_dwordx4 v[240:243], v237, {WSR}, s60 offen')
        NL += 1
    a('s_mov_b32 s72, 0x3f803f80')
    a('s_mov_b32 s73, 0x3a800000')
    a('s_lshl_b32 s6, s12, 10')
    a(f's_add_u32 s6, s6, {WS_FB}')
    y_setup(False)
    XLATE = opt('xlate', 1)

    def x_to_lds(waits):
        for r in range(4):
            if waits:
                a(f's_waitcnt vmcnt({NL + 2 + 6 - 2 * r})')
            for hf in range(2):
                a(f'ds_write_b128 v{VRA}, v[{XH + 8 * r + 4 * hf}:{XH + 8 * r + 4 * hf + 3}] offset:{RS * r + 1024 * hf}')
        if waits:
            a(f's_waitcnt vmcnt({NL})')
        for hf in range(2):
            a(f'ds_write_b128 v239, v[{WH + 4 * hf}:{WH + 4 * hf + 3}] offset:{1024 * hf}')
        lds_inc(12)
    if not XLATE:
        lds_spin('cp0', 12, 4, 28)
        x_to_lds(True)
    elif opt('dafterx', 1):
        a(f's_waitcnt vmcnt({NL})')
    stamp('xarr')
    S1, S2, SW = 36, 40, 44

    def stats_a():
        for i in range(8):
            for r in range(4):
                x = XH + 8 * r + i
                a(f'v_dot2_f32_bf16 v{S1 + r}, v{x}, s72, {"0" if i == 0 else "v%d" % (S1 + r)}')
                a(f'v_dot2_f32_bf16 v{S2 + r}, v{x}, v{x}, {"0" if i == 0 else "v%d" % (S2 + r)}')
            a(f'v_dot2_f32_bf16 v{SW}, v{WH + i}, s72, {"0" if i == 0 else "v%d" % SW}')
    def stats_b():
        for b in (S1, S2):
            a(f'v_permlane32_swap_b32 v{b}, v{b + 1}')
            a(f'v_permlane32_swap_b32 v{b + 2}, v{b + 3}')
        for b in (S1, S2):
            a(f'v_add_f32 v{b}, v{b}, v{b + 1}')
            a(f'v_add_f32 v{b + 2}, v{b + 2}, v{b + 3}')
        for b in (S1, S2):
            a(f'v_permlane16_swap_b32 v{b}, v{b + 2}')
        for b in (S1, S2):
            a(f'v_add_f32 v{b}, v{b}, v{b + 2}')
        for sh in (1, 2, 4, 8):
            for v in (S1, S2, SW):
                a(f'v_add_f32_dpp v{v}, v{v}, v{v} row_shr:{sh} row_mask:0xf bank_mask:0xf bound_ctrl:0')
        a(f'v_add_f32_dpp v{SW}, v{SW}, v{SW} row_bcast:15 row_mask:0xa bank_mask:0xf')
        a(f'v_mul_f32 v{S1}, s73, v{S1}')
        a(f'v_add_f32_dpp v{SW}, v{SW}, v{SW} row_bcast:31 row_mask:0xc bank_mask:0xf')
        a(f'v_mul_f32 v{S1 + 1}, v{S1}, v{S1}')
        a(f'v_fma_f32 v{S2}, v{S2}, s73, -v{S1 + 1}')
        a(f'v_max_f32 v{S2}, 0, v{S2}')
        rnd(S1, S1)
        rnd(S2, S2)
        a(f'v_add_f32 v{S2}, 0x3727c5ac, v{S2}')
        rnd(S2, S2)
        a(f'v_sqrt_f32 v{S2}, v{S2}')
        rnd(S2, S2)
        a(f'v_rcp_f32 v50, v{S2}')
        a(f'v_rcp_f32 v51, v{S2}')
        a(f'v_mul_f32 v48, -v{S1}, v50')
        a(f'v_mul_f32 v49, -v{S1}, v50')
        a('s_mov_b32 exec_lo, 0x80008000')
        a('s_mov_b32 exec_hi, 0x80008000')
        a('ds_write_b128 v244, v[48:51]')
        a('s_mov_b32 exec_lo, 0')
        a('s_mov_b32 exec_hi, 0x80000000')
        a(f'ds_write_b32 v{VC}, v{SW} offset:{L_SW - L_CNT}')
        lds_inc(28)
    STMF = opt('stmf', 0)
    if STMF:
        if opt('hprio', 3):
            a(f's_setprio {opt("hprio", 3)}')
        stats_a()
        if STMF == 2:
            stats_b()
        a('s_setprio 0')
        stamp('stdone')
    lds_spin('late', 24, 1, 3, sleep=LSLEEP)
    a(fbload)
    if DYN:
        a('s_memrealtime s[60:61]')
        a('s_waitcnt lgkmcnt(0)')
        a('s_sub_u32 s60, s60, s4')
        a(f's_cmp_lt_u32 s60, {DYN}')
        a('s_cselect_b32 s5, 1, 0')
        a('s_cbranch_scc1 d_early')
        a('s_waitcnt vmcnt(0)')
        a('s_branch d_early_done')
        a('d_early:')
    for r in range(DEARLY):
        for l in dl[r]:
            a(l)
    stamp('dearly')
    assert opt('dafterx', 1) and opt('stearly', 2) == 2
    a('d_early_done:')
    stamp('fbarr')
    STE = opt('stearly', 2)
    lds_spin('mf1', 8, 4, 3)
    stamp('mf1')
    if opt('sprio', 1):
        a(f's_setprio {opt("sprio", 1)}')
    if XLATE:
        x_to_lds(False)
    if STE and not STMF:
        stats_a()
    if STE < 2:
        fb_check()
        lds_spin('mf', 8, opt('mfcnt', 8), 3)
        y_issue()
    if not STE:
        stats_a()
    if STMF < 2:
        stats_b()
    stamp('pre')
    if opt('sprio', 1):
        a('s_setprio 0')
    if STE == 2:
        a(f's_waitcnt vmcnt({DEARLY})')
        fb_check()
        lds_spin('mf', 8, opt('mfcnt', 8), 3)
        if YF:
            a('s_cmp_lt_u32 s3, 64')
            a('s_cbranch_scc0 yf_skip2')
        y_issue()
        a('yf_skip2:')
    prep_a()
    prep_b()

    a('rows:')
    if YF > 1:
        a('s_cmp_lt_u32 s3, 64')
        a('s_cbranch_scc1 yf_skip3')
        a(f's_sleep {YF}')
        a('yf_skip3:')
    a('s_mov_b32 s61, 0')
    a('py_top:')
    y_check()
    a('s_cbranch_scc0 py_ok')
    a('s_add_u32 s61, s61, 1')
    a(f's_cmp_ge_u32 s61, {POLL_MAX}')
    a('s_cbranch_scc1 py_give')
    if YSLEEP:
        a(f's_sleep {YSLEEP}')
    y_issue()
    y_fold()
    a('s_branch py_top')
    a('py_give:')
    for p in range(4):
        a(f's_mov_b64 s[{YM + 2 * p}:{YM + 2 * p + 1}], 0')
    a('py_ok:')
    stamp('ypoll')
    y_fold()
    H = XP
    a('s_mov_b32 s73, 0x3a800000')
    Q = TY
    for r in range(2):
        for k in range(3):
            d = Q + k if r == 0 else Q + 4 + k
            a(f'v_add_f32 v{d}, v{AC[r] + 2 * k}, v{AC[r] + 2 * k + 1}')
    for k in range(3):
        a(f'v_permlane32_swap_b32 v{Q + k}, v{Q + 4 + k}')
    for k in range(3):
        a(f'v_add_f32 v{Q + k}, v{Q + k}, v{Q + 4 + k}')
    for k in range(3):
        a(f'v_add_f32_dpp v{Q + k}, v{Q + k}, v{Q + k} row_ror:8 row_mask:0xf bank_mask:0xf')
    a('s_mov_b32 exec_lo, 0x00ff00ff')
    a('s_mov_b32 exec_hi, 0x00ff00ff')
    a(f'ds_write_b128 v{VPW}, v[{Q}:{Q + 3}]')
    a('s_mov_b64 exec, -1')
    a('s_lshl_b32 s60, s3, 7')
    a(f's_add_u32 s60, s60, {WS_KEYS}')
    a('s_cmp_eq_u32 s12, 0')
    a('s_cselect_b32 s60, s60, 0x40000000')
    if opt('prio', 1):
        a('s_cbranch_scc0 no_prio')
        a('s_setprio 3')
        a('no_prio:')
    a('s_waitcnt lgkmcnt(0)')
    a('s_barrier')
    R = 76
    for i in range(4):
        a(f'ds_read_b128 v[{R + 4 * i}:{R + 4 * i + 3}], v{VPR} offset:{16 * i}')
    stamp('bar2')
    A = AC[0]
    a(f'v_mov_b32 v{A + 7}, s8')
    a(f'v_mov_b32 v{A + 5}, 0')
    a('s_waitcnt lgkmcnt(2)')
    pk('add', R, R, R + 4)
    a(f'v_add_f32 v{R + 2}, v{R + 2}, v{R + 6}')
    a('s_waitcnt lgkmcnt(0)')
    pk('add', R + 8, R + 8, R + 12)
    a(f'v_add_f32 v{R + 10}, v{R + 10}, v{R + 14}')
    pk('add', R, R, R + 8)
    a(f'v_add_f32 v{R + 2}, v{R + 2}, v{R + 10}')
    for sw in ('v_permlane32_swap_b32', 'v_permlane16_swap_b32'):
        for k in range(3):
            a(f'v_mov_b32 v{R + 4 + k}, v{R + k}')
        for k in range(3):
            a(f'{sw} v{R + k}, v{R + 4 + k}')
        pk('add', R, R, R + 4)
        a(f'v_add_f32 v{R + 2}, v{R + 2}, v{R + 6}')
    M, V = R + 8, R + 9
    a(f'v_mul_f32 v{R}, s73, v{R}')
    a(f'v_mul_f32 v{R + 3}, v{R}, v{R}')
    a(f'v_fma_f32 v{V}, v{R + 1}, s73, -v{R + 3}')
    rnd(M, R)
    a(f'v_max_f32 v{V}, 0, v{V}')
    rnd(V, V)
    a(f'v_fma_f32 v{R + 2}, -v{M}, s71, v{R + 2}')
    a(f'v_add_f32 v{V}, 0x3727c5ac, v{V}')
    rnd(V, V)
    a(f'v_sqrt_f32 v{V}, v{V}')
    rnd(V, V)
    a(f'v_rcp_f32 v{V}, v{V}')
    a(f'v_mul_f32 v{R + 2}, v{R + 2}, v{V}')
    rnd(R + 2, R + 2)
    a(f'v_ashrrev_i32 v{R + 3}, 31, v{R + 2}')
    a(f'v_and_b32 v{R + 3}, 0x7fff0000, v{R + 3}')
    a(f'v_xor_b32 v{R + 2}, 0x80000000, v{R + 2}')
    a(f'v_xor_b32 v{R + 2}, v{R + 2}, v{R + 3}')
    a(f'v_or_b32 v{A + 6}, v{R + 2}, v{VKL}')
    for sh in (1, 2, 4, 8):
        a(f'v_max_u32_dpp v{A + 6}, v{A + 6}, v{A + 6} row_ror:{sh} row_mask:0xf bank_mask:0xf')
    if opt('diag', 0):
        a('s_mov_b64 exec, 1')
        a(f'v_mov_b32 v{R + 4}, s80')
        a(f'v_mov_b32 v{R + 5}, s82')
        a(f'buffer_store_dwordx2 v[{R + 4}:{R + 5}], v{A + 5}, {WSR}, s60 offen offset:8 sc1')
    a('s_mov_b64 exec, 1')
    a(f'buffer_store_dwordx2 v[{A + 6}:{A + 7}], v{A + 5}, {WSR}, s60 offen sc1')
    a('s_mov_b64 exec, -1')
    stamp('key')
    if opt('prio', 1):
        a('s_setprio 0')
    a(f'v_readfirstlane_b32 s76, v{A + 6}')
    DMID = opt('dmid', 0)

    def down_loads(r0, r1):
        r1 = min(r1, 32)
        if r1 <= r0 or DWHO:
            return
        lab = a.newlabel('nodl')
        a('s_cmp_eq_u32 s14, 0')
        a(f's_cbranch_scc1 {lab}')
        for r in range(r0, r1):
            for l in dl[r]:
                a(l)
        a(f'{lab}:')
    if not DYN:
        down_loads(DEARLY, DEARLY + DMID)
    a(f'v_mul_f32 v{M}, -v{M}, v{V}')
    HS = [R + 12, R + 16]
    a(f'v_mov_b32_dpp v{R + 11}, v{V} row_ror:8 row_mask:0xf bank_mask:0xf')
    a(f'v_mov_b32_dpp v{R + 10}, v{M} row_ror:8 row_mask:0xf bank_mask:0xf')
    a('s_mov_b32 vcc_lo, 0xff00ff00')
    a('s_mov_b32 vcc_hi, 0xff00ff00')
    for k in range(4):
        own, oth = M + (k >> 1), R + 10 + (k >> 1)
        a(f'v_cndmask_b32 v{HS[0] + k}, v{own}, v{oth}, vcc')
        a(f'v_cndmask_b32 v{HS[1] + k}, v{oth}, v{own}, vcc')
    a(f's_lshl_b32 s77, s3, {SH}')
    a(f's_add_u32 s77, s77, {WS_CAND}')
    a('s_not_b32 s64, s76')
    a('s_bfe_u32 s65, s64, 0x30001')
    a('s_mov_b32 s66, 0x01010101')
    a('s_lshl_b32 s66, s66, s65')
    a('s_mov_b32 s67, s66')
    OUTR = [124, 132]

    def cand_row(r):
        a('s_mov_b64 exec, s[66:67]')
        for i in range(8):
            pk('fma', N[0] + 2 * i, H[r] + 2 * i, HS[r] + 2, HS[r])
        for i in range(8):
            a(f'v_cvt_pk_bf16_f32 v{YR[0] + i}, v{N[0] + 2 * i}, v{N[0] + 2 * i + 1}')
        for p in range(4):
            a(f'buffer_store_dwordx2 v[{YR[0] + 2 * p}:{YR[0] + 2 * p + 1}], v{VG8}, {WSR}, s77 offen offset:{512 * p} sc1')
        for i in range(8):
            a(f'v_cvt_pk_bf16_f32 v{WF + i}, v{H[r] + 2 * i}, v{H[r] + 2 * i + 1}')

    a('s_bitcmp1_b32 s64, 0')
    a('s_cbranch_scc1 order10')
    cand_row(0)
    a('s_branch cand_done')
    a('order10:')
    cand_row(1)
    a('cand_done:')
    stamp('cand')
    for p in range(4):
        a(f'ds_write_b64 v{VG8}, v[{WF + 2 * p}:{WF + 2 * p + 1}] offset:{L_H + 512 * p}')
    a('s_mov_b64 exec, -1')
    assert not DYN
    D2 = DEARLY + DMID + opt('dmid2', 8)
    down_loads(DEARLY + DMID, D2)
    EXACT = opt('exact', 0)
    if not EXACT:
        for r in range(2):
            a(f'v_add_f32 v{HS[r] + 2}, 1.0, v{HS[r] + 2}')
            a(f'v_add_f32 v{HS[r] + 3}, 1.0, v{HS[r] + 3}')
    for r in range(2):
        if EXACT:
            for i in range(16):
                rnd(H[r] + i, H[r] + i)
            for i in range(8):
                pk('fma', N[0] + 2 * i, H[r] + 2 * i, HS[r] + 2, HS[r])
            for i in range(16):
                rnd(N[0] + i, N[0] + i)
            for i in range(8):
                pk('add', H[r] + 2 * i, H[r] + 2 * i, N[0] + 2 * i)
        else:
            for i in range(8):
                pk('fma', H[r] + 2 * i, H[r] + 2 * i, HS[r] + 2, HS[r])
        for i in range(8):
            a(f'v_cvt_pk_bf16_f32 v{N[1] + 8 * r + i}, v{H[r] + 2 * i}, v{H[r] + 2 * i + 1}')
        for p in range(4):
            a(f'ds_write_b64 v{VXA}, v[{N[1] + 8 * r + 2 * p}:{N[1] + 8 * r + 2 * p + 1}] offset:{512 * p + RS * r}')
    lds_inc(28)
    a('s_cmp_eq_u32 s14, 0')
    a('s_cbranch_scc0 ffn2')
    a('s_and_b32 s64, s64, 15')
    a(f's_mul_i32 s60, s64, {RS}')
    a(f's_add_u32 s60, s60, {L_YT}')
    a('v_add_u32 v3, s60, v2')
    a(f's_xor_b32 s65, s3, {RSW}')
    a('s_lshl_b32 s65, s65, 4')
    a('s_add_u32 s64, s64, s65')
    a('s_lshl_b32 s65, s64, 11')
    lds_spin('o8', 28, 12, 68)
    a('s_cmp_eq_u32 s12, 0')
    a('s_cbranch_scc0 no_cand_h')
    for hf in range(2):
        a(f'ds_read_b128 v[{68 + 4 * hf}:{71 + 4 * hf}], v3 offset:{1024 * hf}')
    for hf in range(2):
        a(f'ds_read_b128 v[{WF + 4 * hf}:{WF + 4 * hf + 3}], v2 offset:{L_H + 1024 * hf}')
    for hf in range(2):
        a(f's_waitcnt lgkmcnt({3 - hf})')
        a(f'buffer_store_dwordx4 v[{68 + 4 * hf}:{71 + 4 * hf}], v2, {XBR}, s65 offen offset:{1024 * hf} sc1')
    a('s_waitcnt vmcnt(0) lgkmcnt(0)')
    a(f'buffer_store_dwordx4 v[{WF}:{WF + 3}], v2, {WSR}, s77 offen offset:2048 sc1')
    a(f'buffer_store_dwordx4 v[{WF + 4}:{WF + 7}], v2, {WSR}, s77 offen offset:3072 sc1')
    a('no_cand_h:')
    for i in range(8):
        a(f'ds_read_b128 v[{4 + 4 * i}:{7 + 4 * i}], v{VRA} offset:{RS * (i >> 1) + 1024 * (i & 1)}')
    OE, OM = opt('oearly', 0), opt('omid', 0)
    a('s_waitcnt lgkmcnt(0)')
    for r in range(4):
        if r == OE and OM and not DWHO:
            a('s_cmp_lt_u32 s3, 112')
            a('s_cbranch_scc0 dr_go')
            lds_spin('dr', 16, 4, 68)
        if r == OE + OM and not DWHO:
            a('s_cmp_lt_u32 s3, 112')
            a('s_cbranch_scc0 dp_go')
            lds_spin('dp', 16, 8, 68, sleep=2)
            if opt('osleep', 0):
                a(f's_sleep {opt("osleep", 0)}')
        a('s_cmp_eq_u32 s68, s64')
        a('s_cselect_b32 s60, 0x40000000, s69')
        for hf in range(2):
            i = 2 * r + hf
            a(f'buffer_store_dwordx4 v[{4 + 4 * i}:{7 + 4 * i}], v2, {XBR}, s60 offen offset:{1024 * hf} sc1')
        if r < 3:
            a('s_add_u32 s68, s68, 1')
            a('s_add_u32 s69, s69, 2048')
    a('s_branch main_fl')
    TT = 8

    def d_perm(DW, ps):
        for p in ps:
            for k in range(2):
                lo, hi = DW + 2 * (8 * (p >> 2) + (p & 3)) + k, DW + 2 * (8 * (p >> 2) + (p & 3) + 4) + k
                t = 48 + k
                a(f'v_perm_b32 v{t}, v{hi}, v{lo}, s74')
                a(f'v_perm_b32 v{hi}, v{hi}, v{lo}, s75')
                a(f'v_mov_b32 v{lo}, v{t}')

    def gx_loads():
        for q in range(4):
            a(f'buffer_load_dwordx4 v[{52 + 4 * q}:{52 + 4 * q + 3}], v2, {WSR}, s62 offen offset:{1024 * q} sc1')

    def ffn2(DW, issued):
        P = 52
        a('s_mov_b32 s61, 0')
        if issued:
            a('s_branch pg_chk')
        a('pg_again:')
        gx_loads()
        a('pg_chk:')
        a('s_waitcnt vmcnt(0)')
        sentinel_check(range(P, P + 16), P + 16)
        a('s_cbranch_vccz pg_ok')
        a('s_add_u32 s61, s61, 1')
        a(f's_cmp_ge_u32 s61, {POLL_MAX}')
        a('s_cbranch_scc1 pg_ok')
        a('s_mov_b64 exec, vcc')
        a(f's_cmp_lt_u32 s61, {GXL}')
        a('s_cselect_b32 s62, s63, s79')
        if opt('gxsleep', 1):
            a(f's_sleep {opt("gxsleep", 1)}')
        a('s_branch pg_again')
        a('pg_ok:')
        a('s_mov_b64 exec, -1')
        stamp('gxpoll')
        pk('add', P, P, P + 4)
        pk('add', P + 2, P + 2, P + 6)
        pk('add', P + 8, P + 8, P + 12)
        pk('add', P + 10, P + 10, P + 14)
        pk('add', P, P, P + 8)
        pk('add', P + 2, P + 2, P + 10)
        a(f'v_permlane32_swap_b32 v{P}, v{P + 2}')
        a(f'v_permlane32_swap_b32 v{P + 1}, v{P + 3}')
        pk('add', P, P, P + 2)
        a(f'v_permlane16_swap_b32 v{P}, v{P + 1}')
        a(f'v_add_f32 v{TT}, v{P}, v{P + 1}')
        rnd(TT, TT)
        a(f'v_mul_f32 v{TT + 2}, 0xbfb8aa3b, v{TT}')
        a(f'v_mov_b32_dpp v{TT + 3}, v{TT} row_ror:8 row_mask:0xf bank_mask:0xf')
        a(f'v_exp_f32 v{TT + 2}, v{TT + 2}')
        a(f'v_add_f32 v{TT + 2}, 1.0, v{TT + 2}')
        a(f'v_rcp_f32 v{TT + 2}, v{TT + 2}')
        a(f'v_mul_f32 v{TT}, v{TT}, v{TT + 2}')
        rnd(TT, TT)
        a(f'v_mul_f32 v{TT}, v{TT}, v{TT + 3}')
        a(f'v_mov_b32_dpp v{TT + 1}, v{TT} row_shr:1 row_mask:0xf bank_mask:0xf bound_ctrl:0')
        a(f'v_cvt_pk_bf16_f32 v{TT}, v{TT + 1}, v{TT}')
        for p in range(16):
            a(f'v_readlane_b32 s{S_K + p}, v{TT}, {16 * (p & 3) + 2 * (p >> 2) + 1}')
        AC2 = 24
        for p in range(16):
            for c in range(4):
                r = DW + 2 * (8 * (p >> 2) + (p & 3) + 4 * (c & 1)) + (c >> 1)
                h = AC2 + 4 * (p & 1) + c
                src2 = '0' if p < 2 else f'v{h}'
                a(f'v_dot2_f32_bf16 v{h}, v{r}, s{S_K + p}, {src2}')
        pk('add', AC2, AC2, AC2 + 4)
        pk('add', AC2 + 2, AC2 + 2, AC2 + 6)
        a(f'buffer_store_dwordx4 v[{AC2}:{AC2 + 3}], v237, {WSR}, s77 offen sc1')
        stamp('pst')

    a('ffn2:')
    if DWHO:
        a('s_branch main_fl')
    else:
        a('s_cmp_lt_u32 s3, 112')
        a('s_cbranch_scc0 main_fl')
        for r in range(min(D2, 32), 32):
            for l in dl[r]:
                a(l)
        a(f's_lshl_b32 s77, s3, {SH}')
        a(f's_add_u32 s77, s77, {WS_PART}')
        a(f's_add_u32 s63, s79, {WS_GX2 - WS_GX}')
        a(f's_mov_b32 s62, s{63 if GXL else 79}')
        for aa in range(4):
            a(f's_waitcnt vmcnt({24 - 8 * aa})')
            if aa == 3:
                lds_inc(16)
                stamp('dready')
                gx_loads()
            d_perm(DW, range(4 * aa, 4 * aa + 4))
        ffn2(DW, True)
        lds_inc(16)
        a('s_branch main_fl')

    a('helper_ffn:')
    a('s_cmp_lt_u32 s3, 112')
    a('s_cbranch_scc1 ffn_go')
    a('s_waitcnt vmcnt(0)')
    fb_publish()
    a('s_branch red_wait')
    a('ffn_go:')
    GW = 64
    if not (EX or EF):
        gu_base()
    a('s_lshr_b32 s78, s3, 4')
    a('s_lshl_b32 s78, s78, 2')
    a('s_add_u32 s78, s78, s13')
    a(f's_lshl_b32 s78, s78, {SH + 2}')
    a('s_lshl_b32 s60, s76, 8')
    a('s_add_u32 s78, s78, s60')
    a(f's_add_u32 s78, s78, {WS_GX}')
    a(f's_add_u32 s79, s78, {WS_GX2 - WS_GX}')
    if GXL and DWHO:
        a(f's_add_u32 s60, s61, {WS_GX2}')
        a(f'buffer_store_dwordx4 v[240:243], v237, {WSR}, s60 offen')
    assert DSP
    stamp('uw')
    FBK = opt('fbk', 2)
    for k, stp in enumerate(steps):
        if k < EF:
            continue
        if k == PAUSE:
            stamp('pause')
            lds_spin('late2', 24, 1, 28, sleep=LSLEEP)
            lds_spin('yw', 8, 8, 28)
            if opt('rsleep', 0):
                a(f's_sleep {opt("rsleep", 0)}')
        for l in stp:
            a(l)
        if k >= EF + DEPTH - 1 and k < PAUSE:
            a(f's_waitcnt vmcnt({DEPTH - 1})')
        if PAUSE <= k < PAUSE + opt('slow', 0):
            a(f's_waitcnt vmcnt({opt("depth2", 2) - 1})')
        if k == DEPTH - 1 and GXL and DWHO:
            lds_inc(28)
        if k == FBK - 1 and not FILLBY:
            a(f's_waitcnt vmcnt({FBK})')
            fb_publish()
    assert DEPTH <= PAUSE < 32
    if DWHO:
        lds_inc(16)
    for i2 in range(8):
        a(f's_waitcnt vmcnt({max(0, min(63, 32 - 4 * (i2 + 1)))})')
        for m in range(2):
            for k in range(4):
                lo, hi = GW + 64 * m + 8 * i2 + k, GW + 64 * m + 8 * i2 + 4 + k
                t = 32 + (k & 3)
                a(f'v_perm_b32 v{t}, v{hi}, v{lo}, s74')
                a(f'v_perm_b32 v{hi}, v{hi}, v{lo}, s75')
                a(f'v_mov_b32 v{lo}, v{t}')
    stamp('wready')
    KCONV = opt('kconv', 1)

    def fetch_token():
        a('v_lshlrev_b32 v6, 2, v1')
        a(f'v_add_u32 v7, {L_X}, v6')
        if opt('kdelay', 0):
            a(f's_sleep {opt("kdelay", 0)}')
        if not opt('spec', 1):
            key_poll(65)
            stamp('gkey')
            a('s_and_b32 s66, s65, 0xffff')
            a('s_sub_u32 s66, 2047, s66')
            a('s_lshr_b32 s66, s66, 4')
            a(f's_xor_b32 s66, s66, {RSW}')
            a(f's_lshl_b32 s66, s66, {SH}')
            a('s_lshl_b32 s60, s76, 7')
            a('s_add_u32 s66, s66, s60')
            a(f's_add_u32 s66, s66, {WS_CAND}')
            a('s_mov_b32 exec_hi, 0')
            retry_loop('px', [f'buffer_load_dword v8, v6, {WSR}, s66 offen sc1'], lambda: a('v_cmp_eq_u32 vcc, -1, v8'), sleep=1, mask='0xffffffff')
        else:
            a('v_lshlrev_b32 v4, 7, v1')
            a(f's_mov_b32 s64, {WS_KEYS + 8192}')
            a('s_lshl_b32 s63, s76, 7')
            a(f's_add_u32 s63, s63, {WS_CAND}')
            a(f's_and_b32 s62, s3, {opt("canmask", 63)}')
            a('s_lshl_b32 s62, s62, 7')
            a(f's_add_u32 s62, s62, {WS_KEYS + 4}')
            a('s_mov_b64 exec, 1')
            retry_loop('kc2', [f'buffer_load_dword v8, v4, {WSR}, s62 offen sc1'], lambda: a('v_cmp_ne_u32 vcc, s8, v8'), sleep=opt('kcsleep', 2))
            stamp('kcan')
            kl = [f'buffer_load_dwordx2 v[16:17], v4, {WSR}, {WS_KEYS} offen sc1', f'buffer_load_dwordx2 v[18:19], v4, {WSR}, s64 offen sc1']

            def cand_addr():
                a('s_not_b32 s66, s65')
                a('s_bfe_u32 s66, s66, 0x70004')
                a(f's_xor_b32 s66, s66, {RSW}')
                a(f's_lshl_b32 s66, s66, {SH}')
                a('s_add_u32 s66, s66, s63')
            for l in kl:
                a(l)
            a('s_mov_b32 s67, 0')
            a('s_mov_b32 s61, 0')
            a('v_mov_b32 v8, -1')
            a('ks_chk:')
            a('s_waitcnt vmcnt(0)')
            a('v_cmp_eq_u32 vcc, s8, v17')
            a('v_cmp_eq_u32 s[70:71], s8, v19')
            a('v_cndmask_b32 v12, 0, v16, vcc')
            a('v_cndmask_b32 v9, 0, v18, s[70:71]')
            a('s_nand_b64 s[70:71], s[70:71], vcc')
            a('v_max_u32 v12, v12, v9')
            a('s_cbranch_scc0 ks_all')
            a('s_add_u32 s61, s61, 1')
            a(f's_cmp_ge_u32 s61, {POLL_MAX}')
            a('s_cbranch_scc1 ks_all')
            a('s_mov_b64 exec, s[70:71]')
            for l in kl:
                a(l)
            a('s_mov_b64 exec, -1')
            wave_reduce('v_max_u32', 12)
            a('v_readlane_b32 s65, v12, 63')
            a('s_mov_b32 s67, s65')
            cand_addr()
            a('s_mov_b32 exec_hi, 0')
            a(f'buffer_load_dword v8, v6, {WSR}, s66 offen sc1')
            a('s_mov_b64 exec, -1')
            a('s_branch ks_chk')
            a('ks_all:')
            wave_reduce('v_max_u32', 12)
            a('v_readlane_b32 s65, v12, 63')
            stamp('gkey')
            cand_addr()
            a('s_mov_b32 exec_hi, 0')
            a('s_cmp_eq_u32 s65, s67')
            a('s_cbranch_scc1 px_chk')
            retry_loop('px', [f'buffer_load_dword v8, v6, {WSR}, s66 offen sc1'], lambda: a('v_cmp_eq_u32 vcc, -1, v8'), sleep=1, mask='0xffffffff')
        a('ds_write_b32 v7, v8')
        a('s_mov_b64 exec, -1')
        a('s_waitcnt lgkmcnt(0)')
    if not KCONV:
        a('s_cmp_eq_u32 s13, 0')
        a('s_cbranch_scc0 f2_bar')
        fetch_token()
    a('f2_bar:')
    a('s_barrier')
    XS, AC = 36, 44
    stamp('ffn0')
    a(f'ds_read_b128 v[{XS}:{XS + 3}], v201')
    a(f'ds_read_b128 v[{XS + 4}:{XS + 7}], v201 offset:16')
    for p in range(8):
        if p % 4 == 0:
            a(f's_waitcnt lgkmcnt({1 - p // 4})')
        for m in range(2):
            for c in range(8):
                r = GW + 64 * m + 8 * p + 4 * (c & 1) + (c >> 1)
                i = AC + 8 * m + c
                src2 = '0' if p == 0 else f'v{i}'
                a(f'v_dot2_f32_bf16 v{i}, v{r}, v{XS + p}, {src2}')
    for q in range(4):
        a(f'ds_write_b128 v203, v[{AC + 4 * q}:{AC + 4 * q + 3}] offset:{128 * (q >> 1) + 16 * (q & 1)}')
    a('s_waitcnt lgkmcnt(0)')
    a('s_barrier')
    for q in range(4):
        a(f'ds_read_b128 v[{8 + 4 * q}:{11 + 4 * q}], v205 offset:{16 * RP * q}')
    a('s_waitcnt lgkmcnt(2)')
    pk('add', 8, 8, 12)
    pk('add', 10, 10, 14)
    a('s_waitcnt lgkmcnt(0)')
    pk('add', 16, 16, 20)
    pk('add', 18, 18, 22)
    pk('add', 8, 8, 16)
    pk('add', 10, 10, 18)
    if GXL:
        a(f'buffer_store_dwordx4 v[8:11], v247, {WSR}, s79 offen')
    a(f'buffer_store_dwordx4 v[8:11], v247, {WSR}, s78 offen sc1')
    stamp('gxst')
    a('s_branch main_fl')

    a('conv_ffn:')
    a('s_cmp_lt_u32 s3, 112')
    a('s_cbranch_scc0 red_conv')
    if KCONV:
        assert not DWHO
        a('s_cmp_eq_u32 s12, 0')
        a('s_cbranch_scc0 main_fl')
        a('s_and_b32 s76, s3, 15')
        fetch_token()
        a('s_barrier')
    if DWHO:
        DW2 = 80
        lds_spin('gu', 16, 4, 8)
        d_base()
        for stp in d_list(DW2):
            for l in stp:
                a(l)
        a('v_lshlrev_b32 v237, 1, v253')
        a(f's_lshl_b32 s77, s3, {SH}')
        a(f's_add_u32 s79, s77, {WS_GX}')
        a(f's_add_u32 s77, s77, {WS_PART}')
        a(f's_add_u32 s63, s79, {WS_GX2 - WS_GX}')
        a(f's_mov_b32 s62, s{63 if GXL else 79}')
        for aa in range(4):
            a(f's_waitcnt vmcnt({24 - 8 * aa})')
            d_perm(DW2, range(4 * aa, 4 * aa + 4))
        stamp('dready')
        a('s_barrier')
        a('s_barrier')
        ffn2(DW2, False)
    a('s_branch main_fl')

    a('red_conv:')
    a('s_cmp_eq_u32 s12, 0')
    a('s_cbranch_scc0 red_wait')
    if opt('rdelay', 0):
        a(f's_sleep {opt("rdelay", 0)}')
    key_poll(71)
    a('s_sub_u32 s76, s3, 112')
    a('s_and_b32 s72, s71, 0xffff')
    a('s_sub_u32 s72, 2047, s72')
    a('s_lshr_b32 s73, s72, 4')
    a(f's_xor_b32 s73, s73, {RSW}')
    a(f's_lshl_b32 s73, s73, {SH}')
    a('s_lshl_b32 s60, s76, 7')
    a('s_add_u32 s73, s73, s60')
    a(f's_add_u32 s73, s73, {WS_CAND}')
    a('s_lshl_b32 s72, s72, 11')
    a('s_add_u32 s72, s72, s60')
    a('v_and_b32 v6, 31, v0')
    a('v_lshlrev_b32 v6, 2, v6')
    a('s_cmp_eq_u32 s76, 0')
    a(f's_cselect_b32 s60, {WS_EPOCH}, 0x40000000')
    a('v_mov_b32 v49, s8')
    a('v_mov_b32 v50, 0')
    a('s_mov_b64 exec, 1')
    a(f'buffer_store_dword v49, v50, {WSR}, s60 offen')
    a('s_mov_b64 exec, -1')
    loads = [f'buffer_load_dword v{40 + p}, v6, {WSR}, s73 offen offset:{2048 * p} sc1' for p in range(2)]
    poll_loop('ph', loads, (40, 41), 42)
    a('s_and_b32 s60, s71, 0xffff0000')
    a('s_xor_b32 s61, s60, 0x80000000')
    a('s_xor_b32 s62, s60, 0xffff0000')
    a('s_cmp_lt_i32 s60, 0')
    a('s_cselect_b32 s60, s61, s62')
    a('v_mov_b32 v42, 0xbfb8aa3b')
    a('v_mul_f32 v42, s60, v42')
    a('v_exp_f32 v42, v42')
    a('v_add_f32 v42, 1.0, v42')
    a('v_rcp_f32 v42, v42')
    rnd(42, 42)
    unpack(44, 45, 40)
    unpack(46, 47, 41)
    a('red_wait:')
    a(f's_add_u32 s{S_G}, s{S_WS}, {WS_PART}')
    a(f's_addc_u32 s{S_G + 1}, s{S_WS + 1}, 0')
    a(f's_mov_b32 s{S_G + 2}, {112 << SH}')
    a('s_sub_u32 s76, s3, 112')
    a('v_and_b32 v4, 15, v0')
    a('v_lshrrev_b32 v5, 4, v0')
    a(f'v_lshlrev_b32 v5, {SH}, v5')
    a('v_lshl_add_u32 v5, v4, 4, v5')
    a('s_lshl_b32 s64, s76, 8')
    a(f's_add_u32 s65, s64, {32 << SH}')
    a(f's_add_u32 s66, s64, {64 << SH}')
    a(f's_add_u32 s67, s64, {96 << SH}')
    a('v_lshrrev_b32 v7, 4, v1')
    a('v_lshl_add_u32 v7, v4, 2, v7')
    a('v_lshlrev_b32 v7, 2, v7')
    a('s_lshl_b32 s60, s12, 8')
    a(f's_add_u32 s60, s60, {L_RED}')
    a('v_add_u32 v7, s60, v7')
    a('v_lshlrev_b32 v48, 3, v1')
    a(f'v_add_u32 v48, {L_RED}, v48')
    a('s_barrier')
    if opt('finsleep', 30):
        a(f's_sleep {opt("finsleep", 30)}')
    P = 8
    loads = [f'buffer_load_dwordx4 v[{P + 4 * r}:{P + 4 * r + 3}], v5, s[{S_G}:{S_G + 3}], s{64 + r} offen sc1' for r in range(4)]
    poll_loop('pp', loads, range(P, P + 16), 24)
    stamp('ppoll')
    pk('add', P, P, P + 4)
    pk('add', P + 2, P + 2, P + 6)
    pk('add', P + 8, P + 8, P + 12)
    pk('add', P + 10, P + 10, P + 14)
    pk('add', P, P, P + 8)
    pk('add', P + 2, P + 2, P + 10)
    a(f'v_permlane32_swap_b32 v{P}, v{P + 2}')
    a(f'v_permlane32_swap_b32 v{P + 1}, v{P + 3}')
    pk('add', P, P, P + 2)
    a(f'v_permlane16_swap_b32 v{P}, v{P + 1}')
    a(f'v_add_f32 v{P}, v{P}, v{P + 1}')
    a(f'ds_write_b32 v7, v{P}')
    a('s_waitcnt lgkmcnt(0)')
    a('s_barrier')
    a('s_cmp_eq_u32 s12, 0')
    a('s_cbranch_scc0 main_fl')
    a('s_mov_b32 exec_hi, 0')
    for q in range(8):
        a(f'ds_read_b64 v[{P + 2 * q}:{P + 2 * q + 1}], v48 offset:{256 * q}')
    a('s_waitcnt lgkmcnt(0)')
    for q in range(4):
        pk('add', P + 4 * q, P + 4 * q, P + 4 * q + 2)
    pk('add', P, P, P + 4)
    pk('add', P + 8, P + 8, P + 12)
    pk('add', P, P, P + 8)
    rnd(P, P)
    rnd(P + 1, P + 1)
    a(f'v_mul_f32 v{P}, v{P}, v42')
    a(f'v_mul_f32 v{P + 1}, v{P + 1}, v42')
    rnd(P, P)
    rnd(P + 1, P + 1)
    pk('add', P, P, 44)
    rnd(P, P)
    rnd(P + 1, P + 1)
    pk('add', P, P, 46)
    a(f'v_cvt_pk_bf16_f32 v{P}, v{P}, v{P + 1}')
    a(f'buffer_store_dword v{P}, v6, {XBR}, s72 offen')
    if opt('diag', 0):
        a('s_mov_b64 exec, -1')
        a('s_cmp_eq_u32 s76, 0')
        a('s_cbranch_scc0 main_done')
        a('v_lshlrev_b32 v4, 7, v1')
        a(f's_mov_b32 s64, {WS_KEYS + 8192}')
        a(f'buffer_load_dwordx2 v[8:9], v4, {WSR}, {WS_KEYS} offen offset:8 sc1')
        a(f'buffer_load_dwordx2 v[10:11], v4, {WSR}, s64 offen offset:8 sc1')
        a('s_memrealtime s[62:63]')
        a('s_waitcnt vmcnt(0) lgkmcnt(0)')
        for r in range(8, 12):
            a(f'v_sub_u32 v{r}, s62, v{r}')
        a('v_max_u32 v12, v8, v10')
        a('v_min_u32 v13, v8, v10')
        a('v_min_u32 v14, v9, v11')
        a('v_not_b32 v13, v13')
        a('v_not_b32 v14, v14')
        wave_reduce('v_max_u32', [12, 13, 14])
        a('v_readlane_b32 s64, v12, 63')
        a('v_readlane_b32 s65, v13, 63')
        a('v_readlane_b32 s66, v14, 63')
        a('s_not_b32 s65, s65')
        a('s_not_b32 s66, s66')
        d = opt('diag', 0)
        if d == 1:
            a('s_sub_u32 s64, s64, s65')
        if d == 3:
            a('s_sub_u32 s64, s64, s66')
        if d >= 10:
            x = d % 10
            a(f'v_readlane_b32 s65, v{(8 if x < 4 else 10) + (d >= 20)}, {16 * (x & 3) + 5}')
            a('s_sub_u32 s64, s64, s65')
        a(f's_mul_i32 s64, s64, {opt("diagk", 10)}')
        a('s_min_u32 s64, s64, 100000')
        a('diag_spin:')
        a('s_memrealtime s[66:67]')
        a('s_waitcnt lgkmcnt(0)')
        a('s_sub_u32 s66, s66, s62')
        a('s_cmp_lt_u32 s66, s64')
        a('s_cbranch_scc1 diag_spin')
        a('s_branch main_done')
    a('main_fl:')
    if opt('diag', 0):
        a('s_branch main_done')
    if opt('dbg', 0) == 999:
        a('s_waitcnt vmcnt(0) lgkmcnt(0)')
        stamp(7)
        a('s_mov_b64 s[96:97], s[100:101]')
        a('s_mov_b32 s98, 256')
        a('s_mov_b32 s99, 0x00020000')
        a('s_mov_b64 exec, 1')
        a('v_mov_b32 v1, 0')
        a('s_waitcnt lgkmcnt(0)')
        for i in range(8):
            a(f's_and_b32 s60, s{80 + 2 * i}, 0xffffff')
            a('s_xor_b32 s61, s60, 0xffffff')
            a(f's_cmp_eq_u32 s{80 + 2 * i}, 0')
            a('s_cselect_b32 s61, 0, s61')
            a('v_mov_b32 v2, s60')
            a('v_mov_b32 v3, s61')
            a(f'buffer_atomic_umax v2, v1, s[96:99], 0 offen offset:{4 * i} sc1')
            a(f'buffer_atomic_umax v3, v1, s[96:99], 0 offen offset:{32 + 4 * i} sc1')
    elif opt('dbg', 0):
        a('s_waitcnt vmcnt(0) lgkmcnt(0)')
        stamp(7)
        a('s_mov_b64 s[96:97], s[100:101]')
        a('s_mov_b32 s98, 256')
        a('s_mov_b32 s99, 0x00020000')
        a('s_lshl_b32 s60, s2, 3')
        a('s_add_u32 s60, s60, s12')
        a('s_mov_b32 s61, 0x40000000')
        a(f's_cmp_eq_u32 s60, {225 * 8}')
        a('s_cselect_b32 s61, 0, s61')
        a(f's_cmp_eq_u32 s60, {opt("dbg", 0) * 8 + opt("dbgw", 0)}')
        a('s_cselect_b32 s61, 32, s61')
        a('s_mov_b64 exec, 1')
        a('v_mov_b32 v1, 0')
        a('s_waitcnt lgkmcnt(0)')
        for i in range(8):
            a(f's_sub_u32 s60, s{80 + 2 * i}, s80')
            a(f's_cmp_eq_u32 s{80 + 2 * i}, 0')
            a('s_cselect_b32 s60, 0, s60')
            a('v_mov_b32 v2, s60')
            a(f'buffer_store_dword v2, v1, s[96:99], s61 offen offset:{4 * i}')
    else:
        stamp_flush(S_WS, 7, 0)
    a('main_done:')
    a('s_endpgm')
    return kernel_desc(KN, 256, 102 if STAMPS else 80)


launch = '; @launch grid=(256,1,1) block=(512,1,1) lds=%d\n' % MAIN_LDS
finish(launch, [k_main()])
```

```python
from common import *
import common
STAMPS = common.STAMPS

WS_KEYS = 0
WS_EPOCH = 32 * 1024
WS_GX = 1536 * 1024
WS_FA = 128 * 1024
WS_FB = 192 * 1024
WS_FA2 = 64 * 1024
WS_CAND = 262144
WS_PART = 1 << 20
WS_GX2 = 6 << 20
WS_KV = 2 << 20
WS_SIZE = 7 << 20
SH = 12
if opt('reuse', 0):
    SH = 14
    WS_CAND, WS_PART, WS_GX, WS_GX2 = WS_KV, WS_KV + 4096, WS_KV + (2 << 20), WS_KV + (2 << 20) + 4096
WSOFF = opt('wsoff', 0) << 20
common.WS_STAMP -= WSOFF
POLL_MAX = 1 << 16
KN = NAME + '_kernel'

DEPTH = opt('depth', 7)
XPOS = opt('xpos', 4)
UWOFF = opt('uwoff', 0)
FLC = opt('flc', 3)
FBC = opt('fbc', 12)
YSLEEP = opt('ysleep', 1)
CODEPF = opt('codepf', 6)
DEARLY = opt('dearly', 0)
CPERM = opt('cperm', 0)
RSW = opt('rsw', 0)
YLO = opt('ylo', 1)
DWHO = opt('dwho', 0)
GXL = opt('gxl', 40)
DYN = opt('dyn', 0)
LSLEEP = opt('lsleep', 6)
FILLBY = opt('fillby', 1)
DUAL = opt('dual', 12)
KVS = '' if opt('l2kv', 0) else ' sc1'
KVL = {0: ' sc1', 1: ' sc0', 2: ''}[opt('kvl', 0)]
FAL = {0: ' sc1', 1: ' sc0', 2: ''}[opt('fal', 0)]
PAUSE = opt('pause', 20)

GS = 4160
UOFF = 4 * GS
CS = 21312
L_YL = 4 * CS
RS = 2064
L_YT = L_YL + 16384
L_P0 = L_YL
L_W = L_YT + 16 * RS
L_ST = L_W + 2048
L_PART = 0
PS = 272
RP = 272
L_H = 8192
L_CNT = L_ST + 272
L_GKEY = L_CNT + 28
L_SW = L_CNT + 48
L_X = L_CNT + 64
L_RED = L_X + 1024
MAIN_LDS = L_RED + 4096

S_K, S_V, S_SK, S_H, S_WS, S_Q, S_WR, S_OUT, S_G, S_U, S_D = 16, 20, 24, 28, 32, 36, 40, 44, 48, 52, 56
WSR = f's[{S_WS}:{S_WS + 3}]'
XBR = f's[{S_OUT}:{S_OUT + 3}]'
KVR = WSR
VC, V1 = 254, 255


def sentinel_check(regs, tmp):
    rs = list(regs)
    cur = rs.pop(0)
    while rs:
        if len(rs) >= 2:
            a(f'v_max3_u32 v{tmp}, v{cur}, v{rs[0]}, v{rs[1]}')
            rs = rs[2:]
        else:
            a(f'v_max_u32 v{tmp}, v{cur}, v{rs[0]}')
            rs = rs[1:]
        cur = tmp
    a(f'v_cmp_eq_u32 vcc, -1, v{cur}')


def retry_loop(name, loads, check, sleep=2, issued=False, mask='-1'):
    a('s_mov_b32 s61, 0')
    if issued:
        a(f's_branch {name}_chk')
    a(f'{name}_again:')
    for l in loads:
        a(l)
    a(f'{name}_chk:')
    a('s_waitcnt vmcnt(0)')
    check()
    a(f's_cbranch_vccz {name}_ok')
    a('s_add_u32 s61, s61, 1')
    a(f's_cmp_ge_u32 s61, {POLL_MAX}')
    a(f's_cbranch_scc1 {name}_ok')
    a('s_mov_b64 exec, vcc')
    a(f's_sleep {sleep}')
    a(f's_branch {name}_again')
    a(f'{name}_ok:')
    a(f's_mov_b64 exec, {mask}')


def poll_loop(name, loads, regs, tmp, sleep=2, issued=False):
    retry_loop(name, loads, lambda: sentinel_check(regs, tmp), sleep, issued)


def lds_spin(name, off, want, vt, sleep=1):
    a('s_mov_b32 s61, 0')
    a(f'{name}_spin:')
    a(f'ds_read_b32 v{vt}, v{VC} offset:{off}')
    a('s_add_u32 s61, s61, 1')
    a('s_waitcnt lgkmcnt(0)')
    a(f'v_readfirstlane_b32 s60, v{vt}')
    a(f's_cmp_ge_u32 s60, {want}')
    a(f's_cbranch_scc1 {name}_go')
    a(f's_cmp_ge_u32 s61, {1 << 22}')
    a(f's_cbranch_scc1 {name}_go')
    a(f's_sleep {sleep}')
    a(f's_branch {name}_spin')
    a(f'{name}_go:')


def lds_inc(off):
    a('s_mov_b64 exec, 1')
    a(f'ds_add_u32 v{VC}, v{V1} offset:{off}')
    a('s_mov_b64 exec, -1')


XP = [4, 20]
N = [36, 52]
T = [68, 84]
WF = 100
MV = [116, 120]
AA = [124, 132]
YR = [140, 148]
XR = 36
VG8, VXA, VWA, VSA, VKL, VPR, VPW, VRA, VBIT = range(228, 237)


def ln_x(xr, wr):
    for r in range(2):
        for i in range(8):
            unpack(XP[r] + 2 * i, XP[r] + 2 * i + 1, xr + 8 * r + i)
    for i in range(8):
        unpack(WF + 2 * i, WF + 2 * i + 1, wr + i)
    srcs = [(XP[0], T[0]), (XP[1], T[0] + 8), (WF, T[1])]
    for i in range(4):
        for (sx, t) in srcs:
            pk('add', t + 2 * i, sx + 4 * i, sx + 4 * i + 2)
    for (_, b) in srcs:
        pk('add', b, b, b + 2)
        pk('add', b + 4, b + 4, b + 6)
    for (_, b) in srcs:
        pk('add', b, b, b + 4)
    for (_, b) in srcs:
        a(f'v_add_f32 v{b}, v{b}, v{b + 1}')
    K = T[1] + 8
    a(f'v_mov_b32 v{K}, 0x3a800000')
    wave_reduce('v_add_f32', [b for _, b in srcs])
    a(f'v_readlane_b32 s60, v{T[0]}, 63')
    a(f'v_readlane_b32 s62, v{T[0] + 8}, 63')
    a(f'v_readlane_b32 s71, v{T[1]}, 63')
    for r in range(2):
        M, V = MV[r], MV[r] + 2
        a(f'v_mul_f32 v{V}, s{60 + 2 * r}, v{K}')
    for r in range(2):
        M, V = MV[r], MV[r] + 2
        rnd(M, V)
        rnd(M + 1, V)
        a(f'v_sub_f32 v{V}, v{V}, v{M}')
        a(f'v_readfirstlane_b32 s{72 + r}, v{M}')
    for r in range(2):
        for i in range(8):
            pk('add', XP[r] + 2 * i, XP[r] + 2 * i, MV[r], mods='neg_lo:[0,1] neg_hi:[0,1]')
    for i in range(8):
        for r in range(2):
            if i == 0:
                pk('mul', AA[r], XP[r], XP[r])
            else:
                pk('fma', AA[r], XP[r] + 2 * i, XP[r] + 2 * i, AA[r])
    for r in range(2):
        a(f'v_add_f32 v{AA[r]}, v{AA[r]}, v{AA[r] + 1}')
        a(f'v_mul_f32 v{MV[r] + 2}, v{MV[r] + 2}, v{MV[r] + 2}')
    wave_reduce('v_add_f32', AA)
    for r in range(2):
        a(f'v_readlane_b32 s{60 + 2 * r}, v{AA[r]}, 63')
    for step in range(8):
        for r in range(2):
            V = MV[r] + 2
            if step == 0:
                a(f'v_fma_f32 v{V}, s{60 + 2 * r}, v{K}, -v{V}')
            elif step in (1, 3, 5):
                rnd(V, V)
            elif step == 2:
                a(f'v_add_f32 v{V}, 0x3727c5ac, v{V}')
            elif step == 4:
                a(f'v_sqrt_f32 v{V}, v{V}')
            elif step == 6:
                a(f'v_rcp_f32 v{V + 1}, v{V}')
            else:
                a(f'v_rcp_f32 v{V}, v{V}')
    for r in range(2):
        for i in range(16):
            rnd(N[r] + i, XP[r] + i)
    for r in range(2):
        for i in range(8):
            pk('mul', N[r] + 2 * i, N[r] + 2 * i, MV[r] + 2)
    for r in range(2):
        for i in range(16):
            rnd(N[r] + i, N[r] + i)


def key_poll(dst):
    a('v_lshlrev_b32 v4, 7, v1')
    a(f's_mov_b32 s65, {WS_KEYS}')
    a(f's_mov_b32 s66, {WS_KEYS + 8192}')
    if opt('kcan', 1):
        a('s_lshl_b32 s62, s3, 7')
        a(f's_add_u32 s62, s62, {WS_KEYS + 4}')
        a('s_mov_b64 exec, 1')
        retry_loop(a.newlabel('kc'), [f'buffer_load_dword v8, v4, {WSR}, s62 offen sc1'], lambda: a('v_cmp_ne_u32 vcc, s8, v8'), sleep=opt('kcsleep', 2))
        stamp('kcan')
    loads = [f'buffer_load_dwordx2 v[{16 + 2 * p}:{17 + 2 * p}], v4, {WSR}, s{65 + p} offen sc1' for p in range(2)]

    def chk():
        a('v_xor_b32 v8, s8, v17')
        a('v_xor_b32 v9, s8, v19')
        a('v_max_u32 v12, v16, v18')
        a('v_or_b32 v8, v8, v9')
        a('v_cmp_ne_u32 vcc, 0, v8')
    retry_loop(a.newlabel('pk'), loads, chk, sleep=opt('ksleep', 2))
    wave_reduce('v_max_u32', 12)
    a(f'v_readlane_b32 s{dst}, v12, 63')


def k_main():
    kernel_begin(a, KN)
    a('s_cmp_ge_u32 s2, 256')
    a('s_cbranch_scc1 main_done')
    stamp_begin(0)
    if opt('dbg', 0):
        a('s_load_dwordx2 s[100:101], s[0:1], 96')
    for sr, off in ((S_WS, 104), (S_K, 8), (S_V, 16), (S_SK, 24), (S_H, 32), (10, 40), (S_Q, 0), (S_WR, 56), (S_OUT, 88), (S_G, 64), (S_U, 72), (S_D, 80)):
        a(f's_load_dwordx2 s[{sr}:{sr + 1}], s[0:1], {off}')
    if CODEPF:
        a('s_getpc_b64 s[4:5]')
        a('pc0:')
        a('s_mov_b32 s6, main_done-pc0')
        a('s_mov_b32 s7, 0x00020000')
        a('s_lshr_b32 s3, s2, 3')
        a(f's_mul_i32 s3, s3, {CODEPF * 128}')
        a('v_lshlrev_b32 v3, 7, v0')
        a(f'v_cmp_gt_u32 vcc, {CODEPF}, v0')
        a('s_and_saveexec_b64 s[60:61], vcc')
        a('s_cbranch_execz no_codepf')
        a('buffer_load_dword v252, v3, s[4:7], s3 offen')
        a('no_codepf:')
        a('s_mov_b64 exec, -1')
    if opt('scramble', 0) == 1:
        a('s_lshl_b32 s5, s2, 3')
        a('s_lshr_b32 s2, s2, 5')
        a('s_or_b32 s2, s2, s5')
        a('s_and_b32 s2, s2, 255')
    if opt('scramble', 0) == 2:
        a('s_lshr_b32 s5, s2, 1')
        a('s_cmp_eq_u32 s5, 21')
        a('s_cselect_b32 s5, 1, 0')
        a('s_xor_b32 s2, s2, s5')
    a('s_lshr_b32 s5, s2, 4')
    a(f's_add_u32 s4, s2, {opt("xrot", 0)}')
    a('s_and_b32 s4, s4, 7')
    a('s_lshl_b32 s4, s4, 1')
    a('s_bfe_u32 s6, s2, 0x10003')
    a('s_or_b32 s4, s4, s6')
    a('s_lshl_b32 s2, s4, 4')
    a('s_or_b32 s2, s2, s5')
    a('v_lshrrev_b32 v3, 6, v0')
    a('v_and_b32 v1, 63, v0')
    a('v_readfirstlane_b32 s12, v3')
    a('v_lshlrev_b32 v2, 4, v1')
    a(f'v_mov_b32 v{VC}, {L_CNT}')
    a(f'v_mov_b32 v{V1}, 1')
    for r in range(6):
        a(f'v_mov_b32 v{144 + r}, 0')
    for r in range(4):
        a(f'v_mov_b32 v{240 + r}, -1')
    a('s_cmp_eq_u32 s12, 0')
    a('s_cbranch_scc0 no_cnt_init')
    a('s_mov_b64 exec, 1')
    a(f'ds_write_b128 v{VC}, v[144:147]')
    a(f'ds_write_b128 v{VC}, v[144:147] offset:16')
    a(f'ds_write_b128 v{VC}, v[144:147] offset:32')
    a('s_mov_b64 exec, -1')
    a('no_cnt_init:')
    for sr, n in ((S_WS, WS_SIZE), (S_K, MB4), (S_V, MB4), (S_SK, 8192), (S_H, 4096), (S_Q, 0 if opt('free', 0) & 4 else MB4), (S_WR, 2048), (S_OUT, MB4),
                  (S_G, 0 if opt('free', 0) & 1 else 1024 * 7168), (S_U, 0 if opt('free', 0) & 1 else 1024 * 7168), (S_D, 0 if opt('free', 0) & 2 else 3584 * 2048)):
        a(f's_mov_b32 s{sr + 2}, {n}')
        a(f's_mov_b32 s{sr + 3}, 0x00020000')
    a('s_and_b32 s13, s12, 3')
    if opt('gmix', 1):
        a('s_and_b32 s14, s12, 1')
        a('s_xor_b32 s4, s4, s14')
    a('s_lshr_b32 s14, s12, 2')
    if CPERM:
        a('s_bfe_u32 s15, s2, 0x20005')
        a('s_lshl_b32 s15, s15, 1')
        a('s_lshr_b32 s9, s2, 7')
        a('s_xor_b32 s9, s9, 1')
        a('s_or_b32 s15, s15, s9')
        a('s_and_b32 s9, s4, 1')
        a('s_lshl_b32 s7, s15, 1')
        a('s_or_b32 s7, s7, s9')
        a('s_lshl_b32 s15, s15, 5')
        a('s_and_b32 s9, s2, 31')
        a('s_or_b32 s15, s15, s9')
        a('s_lshl_b32 s15, s15, 2')
    else:
        a(f's_xor_b32 s7, s4, {opt("cx", 0) << 1}')
        a(f's_xor_b32 s15, s2, {opt("cx", 0) << 5}')
        a('s_lshl_b32 s15, s15, 2')
    a('s_add_u32 s15, s15, s13')
    a('s_lshr_b32 s3, s2, 1')
    a('v_and_b32 v4, 15, v1')
    a('v_lshrrev_b32 v5, 4, v1')
    a('v_and_b32 v10, 31, v1')
    a('v_lshrrev_b32 v11, 5, v1')
    a('v_lshrrev_b32 v6, 3, v1')
    a('v_lshlrev_b32 v8, 11, v6')
    a('v_lshlrev_b32 v6, 13, v6')
    a('v_and_b32 v7, 7, v1')
    a('v_lshl_add_u32 v6, v7, 4, v6')
    a('v_lshl_add_u32 v8, v7, 4, v8')
    a('s_lshl_b32 s62, s4, 17')
    a('s_lshl_b32 s63, s13, 11')
    a('s_add_u32 s62, s62, s63')
    a('s_lshl_b32 s63, s14, 21')
    a('s_add_u32 s62, s62, s63')
    a(f's_add_u32 s62, s62, {WS_KV}')
    a('s_lshl_b32 s63, s5, 7')
    a('s_add_u32 s62, s62, s63')
    a('s_add_u32 s63, s62, 0x10000')
    a('s_lshl_b32 s64, s12, 19')
    a('s_lshl_b32 s65, s5, 15')
    a('s_add_u32 s64, s64, s65')
    a('s_lshl_b32 s65, s7, 7')
    a('s_add_u32 s64, s64, s65')
    a('s_add_u32 s65, s64, 16384')
    a('s_sub_u32 s77, s64, 6144')
    a('s_cselect_b32 s77, 0x40000000, s77')
    a('s_lshl_b32 s79, s7, 9')
    a('v_lshlrev_b32 v9, 4, v10')
    a('s_lshl_b32 s67, s15, 12')
    a('s_lshl_b32 s70, s15, 1')
    a('s_and_b32 s70, s70, 0xfffffffc')
    a(f's_xor_b32 s68, s3, {RSW}')
    a('s_lshl_b32 s68, s68, 4')
    a('s_lshl_b32 s69, s13, 2')
    a('s_add_u32 s68, s68, s69')
    a('s_lshl_b32 s69, s68, 11')
    a('s_mul_i32 s66, s12, 4608')
    a(f's_add_u32 s66, s66, {L_P0}')
    a(f's_mov_b32 s6, {WS_EPOCH}')
    a('s_mov_b32 m0, s66')
    a('s_waitcnt lgkmcnt(0)')
    stamp('karg')
    if WSOFF:
        a(f's_add_u32 s{S_WS}, s{S_WS}, {WSOFF}')
        a(f's_addc_u32 s{S_WS + 1}, s{S_WS + 1}, 0')
    a(f's_load_dword s8, s[{S_WS}:{S_WS + 1}], s6')
    a('s_load_dword s9, s[10:11], s70')
    KR, VR, SKR = 16, 28, 36

    GL = 96
    a('s_cmp_eq_u32 s14, 0')
    a('s_cbranch_scc1 ld_kv')
    a(f's_add_u32 s{S_H}, s{S_H}, s67')
    a(f's_addc_u32 s{S_H + 1}, s{S_H + 1}, 0')
    a('s_barrier')
    for i in range(4):
        a(f'buffer_load_dwordx4 v[{GL + 6 * i}:{GL + 6 * i + 3}], v2, s[{S_H}:{S_H + 3}], 0 offen offset:{1024 * i} nt')
    if opt('hipos', 0) >= 8:
        lds_spin('kvq', 32, opt('hipos', 0) - 4, 3)
    elif opt('hipos', 0):
        a(f's_waitcnt vmcnt({4 - opt("hipos", 0)})')
    a('ld_kv:')
    a(f'buffer_load_dwordx4 v[{SKR}:{SKR + 3}], v9, s[{S_SK}:{S_SK + 3}], s79 offen')
    a('s_mov_b64 exec, 0xffffff')
    a(f'buffer_load_dwordx4 v8, s[{S_K}:{S_K + 3}], s77 offen nt lds')
    a('s_mov_b64 exec, -1')
    for (sr, so, lo) in ((S_K, 64, 384), (S_K, 65, 1408), (S_V, 64, 2432), (S_V, 65, 3456)):
        a(f's_add_u32 m0, s66, {lo}')
        a(f'buffer_load_dwordx4 v8, s[{sr}:{sr + 3}], s{so} offen nt lds')
    a('s_cmp_eq_u32 s14, 0')
    a('s_cbranch_scc0 ld_done')
    a('s_barrier')
    a('ld_done:')
    a(f's_mul_i32 s67, s13, {CS}')
    a('s_mov_b32 s74, 0x05040100')
    a('s_mov_b32 s75, 0x07060302')
    a('v_lshlrev_b32 v92, 10, v11')
    a('v_lshl_add_u32 v92, v10, 2, v92')
    a('v_add_u32 v92, s66, v92')
    a('v_add_u32 v93, 1024, v92')
    a('v_add_u32 v94, 2432, v92')
    a('v_lshrrev_b32 v8, 1, v10')
    a('v_mul_u32_u24 v8, 144, v8')
    a('v_and_b32 v9, 1, v10')
    a('v_lshl_add_u32 v8, v9, 6, v8')
    a('v_sub_u32 v9, 1, v11')
    a('v_lshl_add_u32 v8, v9, 4, v8')
    a('v_add_u32 v8, s66, v8')
    a('v_lshrrev_b32 v9, 3, v1')
    a('v_mul_u32_u24 v9, 144, v9')
    a('v_lshl_add_u32 v9, v7, 4, v9')
    a('v_add_u32 v9, s66, v9')
    a('v_add_u32 v160, s67, v2')
    a('v_and_b32 v161, 3, v1')
    a(f'v_mul_u32_u24 v161, {GS}, v161')
    a('v_bfe_u32 v162, v1, 2, 2')
    a('v_lshl_add_u32 v161, v162, 3, v161')
    a('v_lshl_add_u32 v161, v5, 4, v161')
    a('v_add_u32 v161, s67, v161')
    a(f's_add_u32 s60, s67, {UOFF + 480}')
    a('v_lshlrev_b32 v163, 5, v4')
    a('v_sub_u32 v162, s60, v163')
    a('v_lshl_add_u32 v162, v5, 4, v162')
    a('v_lshl_add_u32 v163, v5, 3, v163')
    a('s_lshl_b32 s60, s13, 12')
    a(f's_add_u32 s60, s60, {L_YL}')
    a('v_add_u32 v163, s60, v163')
    a('v_bfe_u32 v165, v1, 1, 2')
    a(f'v_mul_u32_u24 v165, {CS}, v165')
    a('v_and_b32 v166, 1, v1')
    a('v_lshl_add_u32 v165, v166, 4, v165')
    a('v_lshrrev_b32 v166, 3, v1')
    a('v_lshlrev_b32 v166, 5, v166')
    a('v_sub_u32 v165, v165, v166')
    a('s_lshl_b32 s60, s12, 9')
    a(f's_sub_u32 s60, {UOFF + 4064 - 256}, s60')
    a('v_add_u32 v165, s60, v165')
    a('s_lshl_b32 s78, s2, 13')
    a('s_lshl_b32 s60, s13, 11')
    a('s_add_u32 s78, s78, s60')
    a('s_lshl_b32 s60, s14, 21')
    a('s_add_u32 s78, s78, s60')
    a(f's_add_u32 s78, s78, {WS_KV}')
    a('v_lshl_add_u32 v166, v5, 3, v4')
    a('v_sub_u32 v166, 15, v166')
    a('v_and_b32 v167, 1, v166')
    a('v_lshlrev_b32 v167, 4, v167')
    a('v_ashrrev_i32 v166, 1, v166')
    a(f'v_mul_u32_u24 v150, {GS}, v1')
    a('v_add_u32 v150, s67, v150')
    a('v_lshlrev_b32 v245, 7, v4')
    a('v_bfe_u32 v248, v1, 3, 2')
    a('v_lshlrev_b32 v248, 13, v248')
    a('v_lshl_add_u32 v248, v7, 7, v248')
    a('v_lshlrev_b32 v251, 4, v0')
    a(f'v_lshrrev_b32 v{VG8}, 3, v0')
    a(f'v_lshlrev_b32 v{VG8}, 3, v{VG8}')
    a(f'v_mul_u32_u24 v{VXA}, {2 * RS}, v7')
    a(f'v_add_u32 v{VXA}, v{VXA}, v{VG8}')
    a(f'v_add_u32 v{VXA}, {L_YT}, v{VXA}')
    a(f'v_add_u32 v{VWA}, {L_W}, v{VG8}')
    a(f'v_lshlrev_b32 v{VSA}, 5, v7')
    a(f'v_add_u32 v{VSA}, {L_ST}, v{VSA}')
    a(f'v_bfe_u32 v{VKL}, v1, 3, 1')
    a(f'v_lshl_add_u32 v{VKL}, v7, 1, v{VKL}')
    a(f'v_mul_u32_u24 v{VPR}, {PS}, v{VKL}')
    a(f'v_lshl_add_u32 v{VPR}, v5, 6, v{VPR}')
    a(f'v_lshl_add_u32 v{VPW}, v7, 1, v11')
    a(f'v_mul_u32_u24 v{VPW}, {PS}, v{VPW}')
    a('v_and_b32 v3, 1, v5')
    a(f'v_lshl_add_u32 v{VPW}, v3, 4, v{VPW}')
    a('s_lshl_b32 s60, s12, 5')
    a(f'v_add_u32 v{VPW}, s60, v{VPW}')
    a(f's_xor_b32 s60, s3, {RSW}')
    a('s_lshl_b32 s60, s60, 4')
    a('s_sub_u32 s60, 2047, s60')
    a(f'v_sub_u32 v{VKL}, s60, v{VKL}')
    a(f's_mul_i32 s60, s13, {4 * RS}')
    a(f's_add_u32 s60, s60, {L_YT}')
    a(f'v_add_u32 v{VRA}, s60, v2')
    a(f'v_lshrrev_b32 v{VBIT}, 3, v1')
    a(f'v_lshlrev_b32 v{VBIT}, v{VBIT}, 1')
    a('v_and_b32 v253, 255, v0')
    a('v_lshlrev_b32 v253, 3, v253')
    a('v_lshlrev_b32 v237, 1, v253')
    a(f'v_lshlrev_b32 v247, {SH}, v5')
    a('v_lshl_add_u32 v247, v4, 4, v247')
    a('s_mov_b64 exec, 0xf')
    a('ds_write_b128 v150, v[144:147]')
    a('s_mov_b64 exec, 0x3fffffff')
    a(f'ds_write_b128 v160, v[144:147] offset:{UOFF + 4096}')
    a('s_mov_b64 exec, -1')
    WFp, KF, O, PKD = 40, 48, 70, 86
    a('s_waitcnt lgkmcnt(0)')
    a('s_add_u32 s8, s8, 0x9e3779b9')
    a('s_or_b32 s8, s8, 1')
    a('s_and_b32 s61, s15, 1')
    a('s_lshl_b32 s61, s61, 4')
    a('s_lshr_b32 s9, s9, s61')
    a('s_and_b32 s9, s9, 0xffff')
    a('v_lshlrev_b32 v167, v167, s9')
    for r in range(4):
        a(f'v_cmp_eq_u32 vcc, {r}, v166')
        a(f'v_cndmask_b32 v{168 + r}, 0, v167, vcc')
    a('s_lshl_b32 s64, s4, 11')
    a(f's_add_u32 s64, s64, {WS_FA}')
    a('s_lshl_b32 s65, s2, 7')
    a('s_lshr_b32 s15, s15, 2')
    a('s_lshl_b32 s15, s15, 7')
    a(f's_add_u32 s7, s15, {WS_FB}')
    a('s_lshl_b32 s60, s13, 2')
    a('s_add_u32 s7, s7, s60')
    a('s_bfe_u32 s60, s3, 0x20003')
    a('s_lshl_b32 s60, s60, 2')
    a('v_add_u32 v248, s60, v248')
    a(f's_add_u32 s65, s65, {WS_FA}')
    a('v_mov_b32 v13, s8')
    a('v_mov_b32 v14, 0')
    a(f's_add_u32 s10, s65, {WS_FA2 - WS_FA}')
    a('s_cmp_eq_u32 s12, 0')
    a('s_cselect_b32 s60, s10, 0x40000000')
    a('s_mov_b64 exec, 0xff')
    a(f'buffer_store_dwordx4 v[144:147], v2, {WSR}, s60 offen')
    a('s_mov_b64 exec, -1')
    XV = 1
    a('s_lshl_b32 s60, s12, 2')
    a('s_add_u32 s64, s64, s60')
    a('s_add_u32 s65, s65, s60')
    a('s_add_u32 s10, s10, s60')
    a(f's_add_u32 s11, s64, {WS_FA2 - WS_FA}')
    if DYN:
        a('s_memrealtime s[4:5]')
    a('s_cmp_eq_u32 s14, 0')
    a('s_cbranch_scc1 p0')
    LATER = 6 + XV
    a(f's_waitcnt vmcnt({LATER + 3})')
    a(f'v_readlane_b32 s76, v{GL}, 0')
    a(f'v_readlane_b32 s77, v{GL + 1}, 0')
    a('s_lshl_b32 s70, s76, 16')
    a('s_lshr_b32 s61, s76, 16')
    a('s_lshl_b32 s71, s77, 16')
    a('s_or_b32 s61, s61, s71')
    a('v_writelane_b32 v149, s70, 0')
    a('v_writelane_b32 v149, s76, 1')
    a('v_writelane_b32 v149, s61, 2')
    a('v_writelane_b32 v149, s77, 3')
    a('v_writelane_b32 v148, s70, 2')
    a('v_writelane_b32 v148, s76, 3')
    a('s_mov_b64 exec, 0xf')
    a('ds_write_b128 v150, v[146:149] offset:16')
    a('s_mov_b64 exec, -1')
    for i in range(4):
        w = GL + 6 * i
        a(f'v_mov_b32_dpp v{w + 4}, v{w} wave_shl:1 row_mask:0xf bank_mask:0xf bound_ctrl:0')
        a(f'v_mov_b32_dpp v{w + 5}, v{w + 1} wave_shl:1 row_mask:0xf bank_mask:0xf bound_ctrl:0')
        if i < 3:
            a(f's_waitcnt vmcnt({LATER + 2 - i})')
            a(f'v_readlane_b32 s70, v{w + 6}, 0')
            a(f'v_readlane_b32 s71, v{w + 7}, 0')
            a(f'v_writelane_b32 v{w + 4}, s70, 63')
            a(f'v_writelane_b32 v{w + 5}, s71, 63')
        ta, tb, tc = 176 + 12 * i, 180 + 12 * i, 184 + 12 * i
        a(f'ds_write_b128 v160, v[{w + 2}:{w + 5}] offset:{32 + 1024 * i + 3 * GS}')
        for j in range(4):
            a(f'v_alignbit_b32 v{ta + j}, v{w + j + 1}, v{w + j}, 16')
        a(f'ds_write_b128 v160, v[{ta}:{ta + 3}] offset:{32 + 1024 * i + 0 * GS}')
        for j in range(4):
            a(f'v_alignbit_b32 v{tb + j}, v{w + j + 2}, v{w + j + 1}, 16')
        a(f'ds_write_b128 v160, v[{tb}:{tb + 3}] offset:{32 + 1024 * i + 2 * GS}')
        for j in range(4):
            a(f'v_mov_b32 v{tc + j}, v{w + j + 1}')
        a(f'ds_write_b128 v160, v[{tc}:{tc + 3}] offset:{32 + 1024 * i + 1 * GS}')
    lds_inc(20)
    a(f'v_add_u32 v239, {L_W}, v2')
    a('v_and_b32 v244, 1, v5')
    a('v_lshl_add_u32 v244, v244, 1, v11')
    a('v_lshlrev_b32 v244, 4, v244')
    a('s_lshl_b32 s60, s13, 6')
    a(f's_add_u32 s60, s60, {L_ST}')
    a('v_add_u32 v244, s60, v244')
    a('s_waitcnt lgkmcnt(0)')
    for p in range(4):
        a(f'v_mov_b32 v{YR[0] + 4 * p}, -1')
    a('s_lshl_b32 s60, s13, 5')
    a(f's_add_u32 s60, s60, {L_X}')
    a('v_mov_b32 v201, s60')
    a(f'v_mul_u32_u24 v203, {RP}, v4')
    a('v_lshl_add_u32 v203, v5, 5, v203')
    a(f's_mul_i32 s60, s13, {16 * RP}')
    a('v_add_u32 v203, s60, v203')
    a(f'v_mul_u32_u24 v205, {RP}, v5')
    a('v_lshl_add_u32 v205, v4, 4, v205')
    a(f's_mul_i32 s60, s13, {4 * RP}')
    a('v_add_u32 v205, s60, v205')
    stamp('gdone')
    a('p0:')
    a(f's_waitcnt vmcnt({5 + XV})')
    for jj in range(2):
        unpack(WFp + 0 + jj, WFp + 2 + jj, SKR + 2 * jj)
        unpack(WFp + 4 + jj, WFp + 6 + jj, SKR + 2 * jj + 1)
    a(f's_waitcnt vmcnt({2 + XV})')
    stamp('kdata')
    for r in range(0, 8, 2):
        a(f'ds_read2_b32 v[{KR + r}:{KR + r + 1}], v92 offset0:{32 * r} offset1:{32 * r + 32}')
    a(f'ds_read2_b32 v[{KR + 8}:{KR + 9}], v93 offset0:0 offset1:32')
    a(f'ds_read_b32 v{KR + 10}, v93 offset:256')
    a(f's_waitcnt vmcnt({0 + XV})')
    for r in range(0, 8, 2):
        a(f'ds_read2_b32 v[{VR + r}:{VR + r + 1}], v94 offset0:{32 * r} offset1:{32 * r + 32}')
    for r in range(11):
        if r % 2 == 0:
            a(f's_waitcnt lgkmcnt({9 - r // 2})')
        unpack(KF + 2 * r, KF + 2 * r + 1, KR + r)
    for t in range(4):
        tap = 3 - t
        for r in range(8):
            if t == 0:
                pk('mul', O + 2 * r, KF + 2 * (r + t), WFp + 2 * tap)
            else:
                pk('fma', O + 2 * r, KF + 2 * (r + t), WFp + 2 * tap, O + 2 * r)
    a('s_waitcnt lgkmcnt(0)')
    for r in range(8):
        unpack(KF + 2 * r, KF + 2 * r + 1, VR + r)
    for r in range(8):
        pk('mul', O + 2 * r, O + 2 * r, KF + 2 * r)
    for jj in range(2):
        d = PKD + 2 + 4 * jj
        for m in range(4):
            a(f'v_cvt_pk_bf16_f32 v{d + m}, v{O + 2 * (7 - 2 * m) + jj}, v{O + 2 * (6 - 2 * m) + jj}')
        a(f'ds_write_b128 v8, v[{d}:{d + 3}] offset:{32 * jj}')
    a('s_waitcnt lgkmcnt(0)')
    if opt('hhold', 0):
        a('s_cmp_eq_u32 s14, 0')
        a('s_cbranch_scc1 hh_go')
        lds_spin('hh', 32, opt('hhold', 0), 3)
    a('ds_read_b128 v[16:19], v9')
    a(f'ds_read_b128 v[20:23], v9 offset:{8 * 144}')
    a('s_waitcnt lgkmcnt(1)')
    a(f'buffer_store_dwordx4 v[16:19], v6, {KVR}, s62 offen sc1')
    a('s_waitcnt lgkmcnt(0)')
    a(f'buffer_store_dwordx4 v[20:23], v6, {KVR}, s63 offen sc1')
    stamp('kvst')
    if opt('hipos', 0) == 8:
        lds_inc(32)
    UP = 120
    a('s_waitcnt vmcnt(0)')
    stamp('kvack')
    a('s_mov_b64 exec, 1')
    a(f'buffer_store_dword v13, v14, {WSR}, s10 offen')
    FL2 = opt('fl2', 1)
    if not FL2:
        a(f'buffer_store_dword v13, v14, {WSR}, s65 offen sc1')
    EX, EF = opt('ex', 0), opt('ef', 0)
    GW, XH = 64, 68

    def gu_base():
        a('s_and_b32 s76, s3, 15')
        a('s_lshl_b32 s77, s76, 2')
        a('s_add_u32 s77, s77, s13')
        a(f's_mul_i32 s77, s77, {16 * 7168}')
        a('s_lshr_b32 s60, s3, 4')
        a('s_lshl_b32 s60, s60, 10')
        a('s_add_u32 s77, s77, s60')
    steps = []
    for i in range(16):
        for m, sr in ((0, S_G), (1, S_U)):
            r = GW + 64 * m + 4 * i
            steps.append([f'buffer_load_dwordx4 v[{r}:{r + 3}], v2, s[{sr}:{sr + 3}], s77 offen nt'])
        steps[-1].append('s_add_u32 s77, s77, 7168')

    def x_load(i):
        a(f'buffer_load_dwordx4 v[{XH + 4 * i}:{XH + 4 * i + 3}], v2, s[{S_Q}:{S_Q + 3}], s{69 + (i >> 2)} offen offset:{1024 * (i & 3)} nt')
    if EX or EF:
        a('s_mov_b64 exec, -1')
        a('s_cmp_eq_u32 s14, 0')
        a('s_cbranch_scc1 early_done')
        gu_base()
        a('s_add_u32 s70, s69, 4096')
        lds_spin('eh', 32, 4, 3)
        a('s_bitcmp0_b32 s2, 0')
        a('s_cbranch_scc0 early_ffn')
        for i in range(EX):
            x_load(i)
        a('s_branch early_done')
        a('early_ffn:')
        a('s_cmp_lt_u32 s3, 112')
        a('s_cbranch_scc0 early_done')
        for k in range(EF):
            for l in steps[k]:
                a(l)
        a('early_done:')
    a('s_mov_b64 exec, 0xffff')
    a('s_mov_b32 s61, 0')
    a('fa2_again:')
    a(f'buffer_load_dword v246, v245, {WSR}, s11 offen sc1')
    a('s_add_u32 s61, s61, 1')
    a('s_waitcnt vmcnt(0)')
    a('v_cmp_ne_u32 vcc, s8, v246')
    a('s_cbranch_vccz fa_ok')
    a('s_mov_b64 exec, vcc')
    if opt('fa2sleep', 0):
        a(f's_sleep {opt("fa2sleep", 0)}')
    a(f's_cmp_lt_u32 s61, {DUAL}')
    a('s_cbranch_scc1 fa2_again')
    if FL2:
        a(f'buffer_store_dword v13, v14, {WSR}, s65 offen sc1')
    retry_loop('fa', [f'buffer_load_dword v246, v245, {WSR}, s64 offen sc1'], lambda: a('v_cmp_ne_u32 vcc, s8, v246'), sleep=opt('fasleep', 1))
    stamp('faok')
    for q in range(2):
        a(f'buffer_load_dwordx4 v[{UP + 4 * q}:{UP + 4 * q + 3}], v2, {KVR}, s78 offen offset:{1024 * q}{KVL}')
    if FL2:
        a('s_mov_b64 exec, 1')
        a(f'buffer_store_dword v13, v14, {WSR}, s65 offen sc1')
        a('s_mov_b64 exec, -1')
    a('s_cmp_eq_u32 s14, 0')
    a('s_cbranch_scc0 helper')

    ACC = 16
    FA_ = [48, 196]
    FB_ = [80, 112]

    def readsA(s, c):
        out = []
        for j in range(8):
            out.append(f'ds_read_b64 v[{s + 4 * j}:{s + 4 * j + 1}], v161 offset:{64 * (8 * j + c)}')
            out.append(f'ds_read_b64 v[{s + 4 * j + 2}:{s + 4 * j + 3}], v161 offset:{64 * (8 * j + c) + 8}')
        return out

    def readsB(s, c):
        return [f'ds_read_b128 v[{s + 4 * z}:{s + 4 * z + 3}], v162 offset:{64 * (56 - (8 * z - c))}' for z in range(8)]

    def y_fill():
        a('v_bfe_u32 v182, v0, 3, 5')
        a('v_lshlrev_b32 v182, 15, v182')
        a('v_lshl_add_u32 v182, v7, 4, v182')
        a('s_mov_b32 s62, s15')
        for q in range(4):
            a(f'buffer_store_dwordx4 v[240:243], v182, {XBR}, s62 offen sc1')
            if q < 3:
                a('s_add_u32 s62, s62, 0x100000')

    if opt('hhold', 0) or EX or EF:
        lds_inc(32)
    lds_spin('g4', 20, 4, 153)
    for r in readsA(FA_[0], 0):
        a(r)
    for q in range(2):
        a(f's_waitcnt vmcnt({1 - q + FL2})')
        a(f'ds_write_b128 v165, v[{UP + 4 * q}:{UP + 4 * q + 3}] offset:{256 - 256 * q}')
    lds_inc(12)
    stamp('u0')
    if FILLBY == 1 and opt('fst', -1) < 0:
        y_fill()
    lds_spin('u4', 12, 4, 153)
    stamp('mf0')
    for r in readsB(FB_[0], 0)[:4]:
        a(r)

    def mfma(w, A, B, init=False):
        c = '0' if init else f'v[{ACC + 4 * w}:{ACC + 4 * w + 3}]'
        a(f'v_mfma_f32_16x16x32_bf16 v[{ACC + 4 * w}:{ACC + 4 * w + 3}], v[{A}:{A + 3}], v[{B}:{B + 3}], {c}')

    def ystage(w):
        E = 172 + 2 * (w & 3)
        return [f'v_cvt_pk_bf16_f32 v{E}, v{ACC + 4 * w}, v{ACC + 4 * w + 1}',
                f'v_cvt_pk_bf16_f32 v{E + 1}, v{ACC + 4 * w + 2}, v{ACC + 4 * w + 3}',
                f'ds_write_b64 v163, v[{E}:{E + 1}] offset:{512 * w}']

    gsetup = ['v_lshlrev_b32 v180, 2, v0', f'v_add_u32 v180, {L_YL}, v180', 'v_add_u32 v181, 0x2000, v180',
              'v_lshrrev_b32 v182, 3, v0', 'v_lshlrev_b32 v182, 15, v182', 'v_lshl_add_u32 v182, v7, 4, v182',
              's_mov_b32 s62, s15', 's_add_u32 s63, s62, 0x100000', 's_add_u32 s64, s62, 0x200000', 's_add_u32 s65, s62, 0x300000',
              's_lshl_b32 s6, s12, 10', f's_add_u32 s6, s6, {WS_FB}',
              's_bitcmp0_b32 s2, 0', 's_cselect_b32 s66, s69, 0x40000000', 's_cselect_b32 s70, 0, 0x40000000', 's_cselect_b32 s71, s6, 0x40000000']
    WR2 = 152

    def gather(p0_, sregs, GR, GP):
        rd, out = [], []
        for p in range(2):
            g = GR + 4 * p
            for hf in range(2):
                rd.append(f'ds_read2st64_b32 v[{g + 2 * hf}:{g + 2 * hf + 1}], v{180 + hf} offset0:{4 * (p0_ + p)} offset1:{16 + 4 * (p0_ + p)}')
            out.append(f'buffer_store_dwordx4 v[{g}:{g + 3}], v182, {XBR}, s{sregs[p]} offen sc1')
        return rd, out

    fbload = f'buffer_load_dword v249, v248, {WSR}, s6 offen sc1'
    PY = YR[0]
    YM = 16

    GM = 48

    def y_setup(regs=True):
        for p in range(4):
            a(f's_mov_b64 s[{YM + 2 * p}:{YM + 2 * p + 1}], -1')
            if regs:
                a(f'v_mov_b32 v{PY + 4 * p}, -1')
        a(f's_xor_b32 s24, s3, {RSW}')
        a('s_lshl_b32 s24, s24, 15')
        for p in range(1, 4):
            a(f's_add_u32 s{24 + p}, s24, {8192 * p}')
        a('s_mov_b64 s[0:1], -1')

    def fb_check():
        lab = a.newlabel('fbk')
        a('s_cmp_eq_u32 s0, 0')
        a(f's_cbranch_scc1 {lab}')
        a('v_cmp_ne_u32 s[0:1], s8, v249')
        for p in range(4):
            a(f's_lshr_b32 s9, s0, {8 * p}')
            a(f'v_and_b32 v250, s9, v{VBIT}')
            a(f'v_cmp_eq_u32 s[{GM + 2 * p}:{GM + 2 * p + 1}], 0, v250')
        a(f'{lab}:')

    def y_issue():
        lab = a.newlabel('yf')
        a('s_mov_b32 exec_lo, s0')
        a('s_mov_b32 exec_hi, 0')
        a(f's_cbranch_execz {lab}')
        a(fbload)
        a(f'{lab}:')
        for p in range(4):
            lab = a.newlabel('yi')
            a(f's_and_b64 exec, s[{YM + 2 * p}:{YM + 2 * p + 1}], s[{GM + 2 * p}:{GM + 2 * p + 1}]')
            a(f's_cbranch_execz {lab}')
            a(f'buffer_load_dwordx4 v[{PY + 4 * p}:{PY + 4 * p + 3}], v251, {XBR}, s{24 + p} offen sc1')
            a(f'{lab}:')
        a('s_mov_b64 exec, -1')

    def y_check():
        a('s_waitcnt vmcnt(0)')
        fb_check()
        for p in range(4):
            a(f'v_max3_u32 v250, v{PY + 4 * p}, v{PY + 4 * p + 1}, v{PY + 4 * p + 2}')
            a(f'v_max_u32 v250, v250, v{PY + 4 * p + 3}')
            a(f'v_cmp_eq_u32 s[{YM + 2 * p}:{YM + 2 * p + 1}], -1, v250')
        a(f's_or_b64 s[28:29], s[{YM}:{YM + 1}], s[{YM + 2}:{YM + 3}]')
        a(f's_or_b64 s[30:31], s[{YM + 4}:{YM + 5}], s[{YM + 6}:{YM + 7}]')
        a('s_or_b64 s[28:29], s[28:29], s[30:31]')

    AC = [116, 122]
    ST = [128, 132]
    TY = 68

    def prep_a():
        lds_spin(a.newlabel('xr'), 12, 8, 3)
        RX, RW = 76, 92
        for r in range(2):
            for p in range(4):
                a(f'ds_read_b64 v[{RX + 8 * r + 2 * p}:{RX + 8 * r + 2 * p + 1}], v{VXA} offset:{512 * p + RS * r}')
        for p in range(4):
            a(f'ds_read_b64 v[{RW + 2 * p}:{RW + 2 * p + 1}], v{VWA} offset:{512 * p}')
        for i in range(0, 12, 2):
            a(f'v_mov_b64 v[{AC[0] + i}:{AC[0] + i + 1}], 0')
        a('s_mov_b32 s72, 0')
        for r in range(2):
            a(f's_waitcnt lgkmcnt({8 - 4 * r})')
            for i in range(8):
                unpack(XP[r] + 2 * i, XP[r] + 2 * i + 1, RX + 8 * r + i)
        a('s_waitcnt lgkmcnt(0)')
        for i in range(8):
            unpack(WF + 2 * i, WF + 2 * i + 1, RW + i)

    def prep_b():
        lds_spin(a.newlabel('xs'), 28, 4, 3)
        for r in range(2):
            a(f'ds_read_b128 v[{ST[r]}:{ST[r] + 3}], v{VSA} offset:{16 * r}')
        a(f'ds_read_b32 v3, v{VC} offset:{L_SW - L_CNT}')
        for r in range(2):
            a(f's_waitcnt lgkmcnt({2 - r})')
            for i in range(8):
                pk('fma', N[r] + 2 * i, XP[r] + 2 * i, ST[r] + 2, ST[r])
        a('s_waitcnt lgkmcnt(0)')
        a('v_readfirstlane_b32 s71, v3')
        stamp('lnx')

    def y_fold():
        for p in range(4):
            lab = a.newlabel('yd')
            a(f's_bitcmp1_b32 s72, {p}')
            a(f's_cbranch_scc1 {lab}')
            a(f's_cmp_eq_u64 s[{YM + 2 * p}:{YM + 2 * p + 1}], 0')
            a(f's_cbranch_scc0 {lab}')
            a(f's_bitset1_b32 s72, {p}')
            for i in range(4):
                unpack(TY + i, TY + 4 + i, PY + 4 * p + i)
            for i in range(4):
                e = XP[i >> 1] + 4 * p + 2 * (i & 1)
                pk('fma', e, TY + 2 * i, N[i >> 1] + 4 * p + 2 * (i & 1), e)
            for k in range(2):
                for r in range(2):
                    e = XP[r] + 4 * p + 2 * k
                    pk('add', AC[r], AC[r], e)
                    pk('fma', AC[r] + 2, e, e, AC[r] + 2)
                    pk('fma', AC[r] + 4, e, WF + 4 * p + 2 * k, AC[r] + 4)
            a(f'{lab}:')

    def spread(pairs, low_first=False):
        out, left = [], list(pairs)
        if low_first:
            left.sort(key=lambda q: q[0])

        def feasible(rest, prev):
            cnt = {}
            for q in rest:
                cnt[q[0]] = cnt.get(q[0], 0) + 1
            n = len(rest)
            return all(c <= (n + 1) // 2 - (1 if (w == prev and n % 2 == 1) else 0) for w, c in cnt.items())
        while left:
            recent = [q[0] for q in out[-2:]]
            pick = None
            for avoid in (recent, recent[-1:]):
                for q in left:
                    if q[0] in avoid:
                        continue
                    rest = list(left)
                    rest.remove(q)
                    if feasible(rest, q[0]):
                        pick = q
                        break
                if pick:
                    break
            assert pick
            out.append(pick)
            left.remove(pick)
        return out

    assert YLO and FILLBY == 1 and opt('fst', -1) < 0
    cnt = {'n': 0}
    mark = {}
    late_code = []

    def em(item):
        if isinstance(item, list):
            for q in item:
                em(q)
        elif isinstance(item, tuple):
            if item[0] == 'mark':
                mark[item[1]] = cnt['n']
            elif item[0] == 'wait':
                a(f's_waitcnt lgkmcnt({min(15, cnt["n"] - mark[item[1]])})')
            else:
                _, name, off, want = item
                a('v_readfirstlane_b32 s60, v164')
                a(f's_cmp_ge_u32 s60, {want}')
                a.raw(f'    s_cbranch_scc0 {name}_slow')
                a.raw(f'{name}_back:')
                late_code.append((name, off, want))
        else:
            a(item)
            if item.startswith('ds_'):
                cnt['n'] += 1

    def bufB(c):
        return FA_[(c >> 1) & 1] + 16 * (c & 1), FB_[(c >> 1) & 1] + 16 * (c & 1)

    def rdA(c):
        return readsA(bufB(c)[0], c)[:8]

    def rdB(c):
        return readsB(bufB(c)[1] - 16, c)[4:]

    def one_lane(*ins):
        return ['s_mov_b64 exec, 1'] + list(ins) + ['s_mov_b64 exec, -1']

    rlo, olo = gather(0, (62, 63), 184, 144)
    mark['s0'] = 0
    seen = set()
    prev = None
    for st in range(16):
        em(('wait', f's{st}'))
        stamp(f'st{st}')
        slots = {}

        def put(items, first, per):
            for k, it in enumerate(items):
                slots.setdefault(first + k // per, []).append(it)
        if st < 8:
            sa, sb = FA_[st & 1], FB_[st & 1]
            pairs = [(n + z, sa + 4 * n, sb + 4 * z) for n in range(8) for z in range(min(4, 8 - n))]
            if st == 0:
                pairs = [(z, 168, sb + 4 * z) for z in range(4)] + pairs
            order = spread(pairs, st == 7)
        else:
            c = st - 8
            sa, sb = bufB(c)
            byw = {w: [(w, sa + 4 * n, sb + 4 * (w - n - 4)) for n in range(w - 3)] for w in range(4, 8)}
            seq = [7, 4, 7, 5, 6, 5, 7, 6, 7, 6]
            if c == 0:
                for z in range(4, 8):
                    byw[z].append((z, 168, sb + 4 * (z - 4)))
                seq = [4, 7, 5, 6] + seq
            order = [byw[w].pop() for w in seq]
        if st < 7:
            nx = FA_[(st + 1) & 1], FB_[(st + 1) & 1]
            rd = readsB(nx[1], st + 1)[:4] + readsA(nx[0], st + 1)
            rd[-1] = [rd[-1], ('mark', f's{st + 1}')]
            put(rd, 0, 1)
        if st == 0:
            put(gsetup[:12], 20, 2)
            put([gsetup[12:]], 27, 1)
        if st == FLC:
            put([['s_waitcnt vmcnt(0)'] + one_lane(f'buffer_store_dword v13, v14, {WSR}, s7 offen sc1')], 22, 1)
        if st == 7:
            put([[f'ds_read_b32 v164, v{VC} offset:0', ('mark', 'uc')]] + rdA(0) + rdA(1), 0, 2)
            put([[('wait', 'uc'), ('check', 'uhi', 0, 4)]], 9, 1)
            b0, b1 = rdB(0), rdB(1)
            b0[-1] = [b0[-1], ('mark', 's8')]
            b1[-1] = [b1[-1], ('mark', 's9')]
            put(b0 + b1, 10, 2)
            put(ystage(0) + ystage(1) + ystage(2), 14, 1)
            put(ystage(3), 23, 1)
        if 8 <= st < 14:
            rd = rdB(st - 6) + rdA(st - 6)
            rd[-1] = [rd[-1], ('mark', f's{st + 2}')]
            put(rd[:4], 1, 2)
            put(rd[4:], 2 if st > 8 else 3, 1)
        YG = opt('yg', 10)
        if st == 8:
            put([one_lane(f'ds_add_u32 v{VC}, v{V1} offset:20')], 0, 1)
        if st == YG - 1:
            put([[f'ds_read_b32 v164, v{VC} offset:20', ('mark', 'yc')]], 4, 1)
        if st == YG:
            put([[('wait', 'yc'), ('check', 'ylo', 20, 8)]], 0, 1)
            rl = list(rlo)
            rl[-1] = [rl[-1], ('mark', 'yg')]
            put(rl, 3, 1)
        if st == YG + 1:
            put([[('wait', 'yg'), olo[0]], olo[1]], 2, 1)
        if st == FBC:
            put([f'ds_write_b32 v{VC}, v{V1} offset:24'], 0, 1)
        if st == opt('fbc2', 14):
            put([fbload.replace('s6 ', 's71 ')], 0, 1)
        assert max(slots, default=0) < len(order), (st, max(slots), len(order))
        for i, (w, A, B) in enumerate(order):
            assert w != prev
            prev = w
            mfma(w, A, B, w not in seen)
            seen.add(w)
            for it in slots.get(i, []):
                em(it)
            if opt('mslack', 0) and i % opt('mslack', 0) == opt('mslack', 0) - 1 and opt('ms0', 0) <= st < opt('ms1', 16):
                a(f's_nop {opt("mnop", 5)}')
    for w in (4, 5, 7, 6):
        for l in ystage(w):
            a(l)
    stamp('s1end')
    if opt('cprio', 1):
        a('s_setprio 2')
    lds_inc(8)
    lds_spin('c2', 8, 4, 166)
    if GXL and DWHO:
        a('s_and_b32 s60, s2, 1')
        a('s_cmp_lt_u32 s3, 112')
        a('s_cselect_b32 s60, s60, 0')
        a('s_cmp_eq_u32 s60, 0')
        a('s_cbranch_scc1 ib_go')
        lds_spin('ib', 28, 4, 166)
    (r0, o0), (r1, o1) = gather(0, (62, 63), 184, 196), gather(2, (64, 65), 164, 204)
    if YLO:
        tail = r1 + ['s_waitcnt lgkmcnt(2)', o1[0], 's_waitcnt lgkmcnt(0)', o1[1]]
    else:
        tail = r0 + r1 + ['s_waitcnt lgkmcnt(4)'] + o0 + ['s_waitcnt lgkmcnt(0)'] + o1
    for l in tail:
        a(l)
    stamp('yst')
    if opt('cprio', 1):
        a('s_setprio 0')
    lds_inc(8)
    a('s_bitcmp0_b32 s2, 0')
    a('s_cbranch_scc0 conv_ffn')
    a('s_waitcnt vmcnt(2)')
    y_setup()
    fb_check()
    YF = opt('yfirst', 0)
    if YF:
        a('s_cmp_lt_u32 s3, 64')
        a('s_cbranch_scc0 yf_skip')
    y_issue()
    a('yf_skip:')
    prep_a()
    prep_b()
    a('s_branch rows')
    for name, off, want in late_code:
        a(f'{name}_slow:')
        a('s_nop 7')
        lds_spin(name, off, want, 164)
        a(f's_branch {name}_back')

    a('helper:')
    for q in range(2):
        a(f's_waitcnt vmcnt({1 - q + FL2})')
        a(f'ds_write_b128 v165, v[{UP + 4 * q}:{UP + 4 * q + 3}] offset:{256 - 256 * q}')
    lds_inc(0)
    stamp('u0')
    if FILLBY == 0:
        lds_spin('uw', UWOFF, 4, 28)
        y_fill()

    def fb_publish():
        if FILLBY:
            return
        a('s_mov_b64 exec, 1')
        a(f'ds_add_rtn_u32 v12, v{VC}, v{V1} offset:4')
        a(f'ds_add_u32 v{VC}, v{V1} offset:8')
        a('s_waitcnt lgkmcnt(0)')
        a('v_cmp_eq_u32 vcc, 3, v12')
        a('v_cndmask_b32 v14, -16, v14, vcc')
        a(f'buffer_store_dword v13, v14, {WSR}, s7 offen sc1')
        a('s_mov_b64 exec, -1')
        stamp('fillB')
    if FILLBY:
        lds_spin('uw', UWOFF, 4, 28)
    a(f's_lshl_b32 s61, s3, {SH}')
    a('s_bitcmp0_b32 s2, 0')
    a('s_cbranch_scc0 helper_ffn')
    a(f's_add_u32 s62, s61, {WS_CAND}')
    a(f's_add_u32 s63, s61, {WS_PART}')
    a(f's_add_u32 s79, s61, {WS_GX}')
    DW = 156
    DSP = opt('dsp', 1)

    def d_base():
        if DSP:
            a('s_lshr_b32 s78, s3, 4')
            a('s_lshl_b32 s78, s78, 20')
            a('s_and_b32 s60, s3, 15')
            a('s_lshl_b32 s60, s60, 14')
            a('s_add_u32 s78, s78, s60')
        else:
            a('s_lshl_b32 s78, s3, 16')

    def d_list(DW):
        return [[f'buffer_load_dwordx2 v[{DW + 2 * r}:{DW + 2 * r + 1}], v253, s[{S_D}:{S_D + 3}], s78 offen offset:{(r & 1) * 2048} nt']
                + ([f's_add_u32 s78, s78, {4096 + (262144 - 16384 if DSP and r % 8 == 7 else 0)}'] if r & 1 else []) for r in range(32)]
    d_base()
    dl = d_list(DW)
    XH, WH = 68, 100
    stamp('xiss')
    a('s_add_u32 s70, s69, 4096')
    for i in range(EX, 8):
        x_load(i)
    for i in range(2):
        a(f'buffer_load_dwordx4 v[{WH + 4 * i}:{WH + 4 * i + 3}], v2, s[{S_WR}:{S_WR + 3}], 0 offen offset:{1024 * i}')
    if not FILLBY:
        a('s_waitcnt vmcnt(10)')
        fb_publish()
    if opt('reuse', 0):
        assert not DWHO
        lds_spin('ru0', 0, 4, 3)
        lds_spin('ru1', 12, 4, 3)
    a(f'buffer_store_dwordx4 v[240:243], v237, {WSR}, s62 offen sc1')
    a(f'buffer_store_dwordx4 v[240:243], v237, {WSR}, s63 offen sc1')
    a(f'buffer_store_dwordx4 v[240:243], v237, {WSR}, s79 offen sc1')
    NL = 3 + (0 if FILLBY else 1)
    if GXL and not DWHO:
        a(f's_add_u32 s60, s79, {WS_GX2 - WS_GX}')
        a(f'buffer_store_dwordx4 v[240:243], v237, {WSR}, s60 offen')
        NL += 1
    a('s_mov_b32 s72, 0x3f803f80')
    a('s_mov_b32 s73, 0x3a800000')
    a('s_lshl_b32 s6, s12, 10')
    a(f's_add_u32 s6, s6, {WS_FB}')
    y_setup(False)
    XLATE = opt('xlate', 1)

    def x_to_lds(waits):
        for r in range(4):
            if waits:
                a(f's_waitcnt vmcnt({NL + 2 + 6 - 2 * r})')
            for hf in range(2):
                a(f'ds_write_b128 v{VRA}, v[{XH + 8 * r + 4 * hf}:{XH + 8 * r + 4 * hf + 3}] offset:{RS * r + 1024 * hf}')
        if waits:
            a(f's_waitcnt vmcnt({NL})')
        for hf in range(2):
            a(f'ds_write_b128 v239, v[{WH + 4 * hf}:{WH + 4 * hf + 3}] offset:{1024 * hf}')
        lds_inc(12)
    if not XLATE:
        lds_spin('cp0', 12, 4, 28)
        x_to_lds(True)
    elif opt('dafterx', 1):
        a(f's_waitcnt vmcnt({NL})')
    stamp('xarr')
    S1, S2, SW = 36, 40, 44

    def stats_a():
        for i in range(8):
            for r in range(4):
                x = XH + 8 * r + i
                a(f'v_dot2_f32_bf16 v{S1 + r}, v{x}, s72, {"0" if i == 0 else "v%d" % (S1 + r)}')
                a(f'v_dot2_f32_bf16 v{S2 + r}, v{x}, v{x}, {"0" if i == 0 else "v%d" % (S2 + r)}')
            a(f'v_dot2_f32_bf16 v{SW}, v{WH + i}, s72, {"0" if i == 0 else "v%d" % SW}')
    def stats_b():
        for b in (S1, S2):
            a(f'v_permlane32_swap_b32 v{b}, v{b + 1}')
            a(f'v_permlane32_swap_b32 v{b + 2}, v{b + 3}')
        for b in (S1, S2):
            a(f'v_add_f32 v{b}, v{b}, v{b + 1}')
            a(f'v_add_f32 v{b + 2}, v{b + 2}, v{b + 3}')
        for b in (S1, S2):
            a(f'v_permlane16_swap_b32 v{b}, v{b + 2}')
        for b in (S1, S2):
            a(f'v_add_f32 v{b}, v{b}, v{b + 2}')
        for sh in (1, 2, 4, 8):
            for v in (S1, S2, SW):
                a(f'v_add_f32_dpp v{v}, v{v}, v{v} row_shr:{sh} row_mask:0xf bank_mask:0xf bound_ctrl:0')
        a(f'v_add_f32_dpp v{SW}, v{SW}, v{SW} row_bcast:15 row_mask:0xa bank_mask:0xf')
        a(f'v_mul_f32 v{S1}, s73, v{S1}')
        a(f'v_add_f32_dpp v{SW}, v{SW}, v{SW} row_bcast:31 row_mask:0xc bank_mask:0xf')
        a(f'v_mul_f32 v{S1 + 1}, v{S1}, v{S1}')
        a(f'v_fma_f32 v{S2}, v{S2}, s73, -v{S1 + 1}')
        a(f'v_max_f32 v{S2}, 0, v{S2}')
        rnd(S1, S1)
        rnd(S2, S2)
        a(f'v_add_f32 v{S2}, 0x3727c5ac, v{S2}')
        rnd(S2, S2)
        a(f'v_sqrt_f32 v{S2}, v{S2}')
        rnd(S2, S2)
        a(f'v_rcp_f32 v50, v{S2}')
        a(f'v_rcp_f32 v51, v{S2}')
        a(f'v_mul_f32 v48, -v{S1}, v50')
        a(f'v_mul_f32 v49, -v{S1}, v50')
        a('s_mov_b32 exec_lo, 0x80008000')
        a('s_mov_b32 exec_hi, 0x80008000')
        a('ds_write_b128 v244, v[48:51]')
        a('s_mov_b32 exec_lo, 0')
        a('s_mov_b32 exec_hi, 0x80000000')
        a(f'ds_write_b32 v{VC}, v{SW} offset:{L_SW - L_CNT}')
        lds_inc(28)
    STMF = opt('stmf', 0)
    if STMF:
        if opt('hprio', 3):
            a(f's_setprio {opt("hprio", 3)}')
        stats_a()
        if STMF == 2:
            stats_b()
        a('s_setprio 0')
        stamp('stdone')
    lds_spin('late', 24, 1, 3, sleep=LSLEEP)
    a(fbload)
    if DYN:
        a('s_memrealtime s[60:61]')
        a('s_waitcnt lgkmcnt(0)')
        a('s_sub_u32 s60, s60, s4')
        a(f's_cmp_lt_u32 s60, {DYN}')
        a('s_cselect_b32 s5, 1, 0')
        a('s_cbranch_scc1 d_early')
        a('s_waitcnt vmcnt(0)')
        a('s_branch d_early_done')
        a('d_early:')
    for r in range(DEARLY):
        for l in dl[r]:
            a(l)
    stamp('dearly')
    assert opt('dafterx', 1)
    a('d_early_done:')
    stamp('fbarr')
    STE = opt('stearly', 2)
    lds_spin('mf1', 8, 4, 3)
    stamp('mf1')
    if opt('sprio', 1):
        a(f's_setprio {opt("sprio", 1)}')
    if XLATE:
        x_to_lds(False)
    if STE and not STMF:
        stats_a()
    if STE < 2:
        a(f's_waitcnt vmcnt({DEARLY})')
        fb_check()
        lds_spin('mf', 8, opt('mfcnt', 8), 3)
        y_issue()
    if not STE:
        stats_a()
    if STMF < 2:
        stats_b()
    stamp('pre')
    if opt('sprio', 1):
        a('s_setprio 0')
    if STE == 2:
        a(f's_waitcnt vmcnt({DEARLY})')
        fb_check()
        lds_spin('mf', 8, opt('mfcnt', 8), 3)
        if YF:
            a('s_cmp_lt_u32 s3, 64')
            a('s_cbranch_scc0 yf_skip2')
        y_issue()
        a('yf_skip2:')
    prep_a()
    prep_b()

    a('rows:')
    if YF > 1:
        a('s_cmp_lt_u32 s3, 64')
        a('s_cbranch_scc1 yf_skip3')
        a(f's_sleep {YF}')
        a('yf_skip3:')
    a('s_mov_b32 s61, 0')
    a('py_top:')
    y_check()
    a('s_cbranch_scc0 py_ok')
    a('s_add_u32 s61, s61, 1')
    a(f's_cmp_ge_u32 s61, {POLL_MAX}')
    a('s_cbranch_scc1 py_give')
    if YSLEEP:
        a(f's_sleep {YSLEEP}')
    y_issue()
    y_fold()
    a('s_branch py_top')
    a('py_give:')
    for p in range(4):
        a(f's_mov_b64 s[{YM + 2 * p}:{YM + 2 * p + 1}], 0')
    a('py_ok:')
    stamp('ypoll')
    y_fold()
    H = XP
    a('s_mov_b32 s73, 0x3a800000')
    Q = TY
    for r in range(2):
        for k in range(3):
            d = Q + k if r == 0 else Q + 4 + k
            a(f'v_add_f32 v{d}, v{AC[r] + 2 * k}, v{AC[r] + 2 * k + 1}')
    for k in range(3):
        a(f'v_permlane32_swap_b32 v{Q + k}, v{Q + 4 + k}')
    for k in range(3):
        a(f'v_add_f32 v{Q + k}, v{Q + k}, v{Q + 4 + k}')
    for k in range(3):
        a(f'v_add_f32_dpp v{Q + k}, v{Q + k}, v{Q + k} row_ror:8 row_mask:0xf bank_mask:0xf')
    a('s_mov_b32 exec_lo, 0x00ff00ff')
    a('s_mov_b32 exec_hi, 0x00ff00ff')
    a(f'ds_write_b128 v{VPW}, v[{Q}:{Q + 3}]')
    a('s_mov_b64 exec, -1')
    a('s_lshl_b32 s60, s3, 7')
    a(f's_add_u32 s60, s60, {WS_KEYS}')
    a('s_cmp_eq_u32 s12, 0')
    a('s_cselect_b32 s60, s60, 0x40000000')
    if opt('prio', 1):
        a('s_cbranch_scc0 no_prio')
        a('s_setprio 3')
        a('no_prio:')
    a('s_waitcnt lgkmcnt(0)')
    a('s_barrier')
    R = 76
    for i in range(4):
        a(f'ds_read_b128 v[{R + 4 * i}:{R + 4 * i + 3}], v{VPR} offset:{16 * i}')
    stamp('bar2')
    A = AC[0]
    a(f'v_mov_b32 v{A + 7}, s8')
    a(f'v_mov_b32 v{A + 5}, 0')
    a('s_waitcnt lgkmcnt(2)')
    pk('add', R, R, R + 4)
    a(f'v_add_f32 v{R + 2}, v{R + 2}, v{R + 6}')
    a('s_waitcnt lgkmcnt(0)')
    pk('add', R + 8, R + 8, R + 12)
    a(f'v_add_f32 v{R + 10}, v{R + 10}, v{R + 14}')
    pk('add', R, R, R + 8)
    a(f'v_add_f32 v{R + 2}, v{R + 2}, v{R + 10}')
    for sw in ('v_permlane32_swap_b32', 'v_permlane16_swap_b32'):
        for k in range(3):
            a(f'v_mov_b32 v{R + 4 + k}, v{R + k}')
        for k in range(3):
            a(f'{sw} v{R + k}, v{R + 4 + k}')
        pk('add', R, R, R + 4)
        a(f'v_add_f32 v{R + 2}, v{R + 2}, v{R + 6}')
    M, V = R + 8, R + 9
    a(f'v_mul_f32 v{R}, s73, v{R}')
    a(f'v_mul_f32 v{R + 3}, v{R}, v{R}')
    a(f'v_fma_f32 v{V}, v{R + 1}, s73, -v{R + 3}')
    rnd(M, R)
    a(f'v_max_f32 v{V}, 0, v{V}')
    rnd(V, V)
    a(f'v_fma_f32 v{R + 2}, -v{M}, s71, v{R + 2}')
    a(f'v_add_f32 v{V}, 0x3727c5ac, v{V}')
    rnd(V, V)
    a(f'v_sqrt_f32 v{V}, v{V}')
    rnd(V, V)
    a(f'v_rcp_f32 v{V}, v{V}')
    a(f'v_mul_f32 v{R + 2}, v{R + 2}, v{V}')
    rnd(R + 2, R + 2)
    a(f'v_ashrrev_i32 v{R + 3}, 31, v{R + 2}')
    a(f'v_and_b32 v{R + 3}, 0x7fff0000, v{R + 3}')
    a(f'v_xor_b32 v{R + 2}, 0x80000000, v{R + 2}')
    a(f'v_xor_b32 v{R + 2}, v{R + 2}, v{R + 3}')
    a(f'v_or_b32 v{A + 6}, v{R + 2}, v{VKL}')
    for sh in (1, 2, 4, 8):
        a(f'v_max_u32_dpp v{A + 6}, v{A + 6}, v{A + 6} row_ror:{sh} row_mask:0xf bank_mask:0xf')
    if opt('diag', 0):
        a('s_mov_b64 exec, 1')
        a(f'v_mov_b32 v{R + 4}, s80')
        a(f'v_mov_b32 v{R + 5}, s82')
        a(f'buffer_store_dwordx2 v[{R + 4}:{R + 5}], v{A + 5}, {WSR}, s60 offen offset:8 sc1')
    a('s_mov_b64 exec, 1')
    a(f'buffer_store_dwordx2 v[{A + 6}:{A + 7}], v{A + 5}, {WSR}, s60 offen sc1')
    a('s_mov_b64 exec, -1')
    stamp('key')
    if opt('prio', 1):
        a('s_setprio 0')
    a(f'v_readfirstlane_b32 s76, v{A + 6}')
    DMID = opt('dmid', 0)

    def down_loads(r0, r1):
        r1 = min(r1, 32)
        if r1 <= r0 or DWHO:
            return
        lab = a.newlabel('nodl')
        a('s_cmp_eq_u32 s14, 0')
        a(f's_cbranch_scc1 {lab}')
        for r in range(r0, r1):
            for l in dl[r]:
                a(l)
        a(f'{lab}:')
    if not DYN:
        down_loads(DEARLY, DEARLY + DMID)
    a(f'v_mul_f32 v{M}, -v{M}, v{V}')
    HS = [R + 12, R + 16]
    a(f'v_mov_b32_dpp v{R + 11}, v{V} row_ror:8 row_mask:0xf bank_mask:0xf')
    a(f'v_mov_b32_dpp v{R + 10}, v{M} row_ror:8 row_mask:0xf bank_mask:0xf')
    a('s_mov_b32 vcc_lo, 0xff00ff00')
    a('s_mov_b32 vcc_hi, 0xff00ff00')
    for k in range(4):
        own, oth = M + (k >> 1), R + 10 + (k >> 1)
        a(f'v_cndmask_b32 v{HS[0] + k}, v{own}, v{oth}, vcc')
        a(f'v_cndmask_b32 v{HS[1] + k}, v{oth}, v{own}, vcc')
    a(f's_lshl_b32 s77, s3, {SH}')
    a(f's_add_u32 s77, s77, {WS_CAND}')
    a('s_not_b32 s64, s76')
    a('s_bfe_u32 s65, s64, 0x30001')
    a('s_mov_b32 s66, 0x01010101')
    a('s_lshl_b32 s66, s66, s65')
    a('s_mov_b32 s67, s66')
    OUTR = [124, 132]

    def cand_row(r):
        a('s_mov_b64 exec, s[66:67]')
        for i in range(8):
            pk('fma', N[0] + 2 * i, H[r] + 2 * i, HS[r] + 2, HS[r])
        for i in range(8):
            a(f'v_cvt_pk_bf16_f32 v{YR[0] + i}, v{N[0] + 2 * i}, v{N[0] + 2 * i + 1}')
        for p in range(4):
            a(f'buffer_store_dwordx2 v[{YR[0] + 2 * p}:{YR[0] + 2 * p + 1}], v{VG8}, {WSR}, s77 offen offset:{512 * p} sc1')
        for i in range(8):
            a(f'v_cvt_pk_bf16_f32 v{WF + i}, v{H[r] + 2 * i}, v{H[r] + 2 * i + 1}')

    a('s_bitcmp1_b32 s64, 0')
    a('s_cbranch_scc1 order10')
    cand_row(0)
    a('s_branch cand_done')
    a('order10:')
    cand_row(1)
    a('cand_done:')
    stamp('cand')
    for p in range(4):
        a(f'ds_write_b64 v{VG8}, v[{WF + 2 * p}:{WF + 2 * p + 1}] offset:{L_H + 512 * p}')
    a('s_mov_b64 exec, -1')
    assert not DYN
    D2 = DEARLY + DMID + opt('dmid2', 8)
    down_loads(DEARLY + DMID, D2)
    EXACT = opt('exact', 0)
    if not EXACT:
        for r in range(2):
            a(f'v_add_f32 v{HS[r] + 2}, 1.0, v{HS[r] + 2}')
            a(f'v_add_f32 v{HS[r] + 3}, 1.0, v{HS[r] + 3}')
    for r in range(2):
        if EXACT:
            for i in range(16):
                rnd(H[r] + i, H[r] + i)
            for i in range(8):
                pk('fma', N[0] + 2 * i, H[r] + 2 * i, HS[r] + 2, HS[r])
            for i in range(16):
                rnd(N[0] + i, N[0] + i)
            for i in range(8):
                pk('add', H[r] + 2 * i, H[r] + 2 * i, N[0] + 2 * i)
        else:
            for i in range(8):
                pk('fma', H[r] + 2 * i, H[r] + 2 * i, HS[r] + 2, HS[r])
        for i in range(8):
            a(f'v_cvt_pk_bf16_f32 v{N[1] + 8 * r + i}, v{H[r] + 2 * i}, v{H[r] + 2 * i + 1}')
        for p in range(4):
            a(f'ds_write_b64 v{VXA}, v[{N[1] + 8 * r + 2 * p}:{N[1] + 8 * r + 2 * p + 1}] offset:{512 * p + RS * r}')
    lds_inc(28)
    a('s_cmp_eq_u32 s14, 0')
    a('s_cbranch_scc0 ffn2')
    a('s_and_b32 s64, s64, 15')
    a(f's_mul_i32 s60, s64, {RS}')
    a(f's_add_u32 s60, s60, {L_YT}')
    a('v_add_u32 v3, s60, v2')
    a(f's_xor_b32 s65, s3, {RSW}')
    a('s_lshl_b32 s65, s65, 4')
    a('s_add_u32 s64, s64, s65')
    a('s_lshl_b32 s65, s64, 11')
    lds_spin('o8', 28, 12, 68)
    a('s_cmp_eq_u32 s12, 0')
    a('s_cbranch_scc0 no_cand_h')
    for hf in range(2):
        a(f'ds_read_b128 v[{68 + 4 * hf}:{71 + 4 * hf}], v3 offset:{1024 * hf}')
    for hf in range(2):
        a(f'ds_read_b128 v[{WF + 4 * hf}:{WF + 4 * hf + 3}], v2 offset:{L_H + 1024 * hf}')
    for hf in range(2):
        a(f's_waitcnt lgkmcnt({3 - hf})')
        a(f'buffer_store_dwordx4 v[{68 + 4 * hf}:{71 + 4 * hf}], v2, {XBR}, s65 offen offset:{1024 * hf} sc1')
    a('s_waitcnt vmcnt(0) lgkmcnt(0)')
    a(f'buffer_store_dwordx4 v[{WF}:{WF + 3}], v2, {WSR}, s77 offen offset:2048 sc1')
    a(f'buffer_store_dwordx4 v[{WF + 4}:{WF + 7}], v2, {WSR}, s77 offen offset:3072 sc1')
    a('no_cand_h:')
    for i in range(8):
        a(f'ds_read_b128 v[{4 + 4 * i}:{7 + 4 * i}], v{VRA} offset:{RS * (i >> 1) + 1024 * (i & 1)}')
    OE, OM = opt('oearly', 0), opt('omid', 0)
    a('s_waitcnt lgkmcnt(0)')
    for r in range(4):
        if r == OE and OM and not DWHO:
            a('s_cmp_lt_u32 s3, 112')
            a('s_cbranch_scc0 dr_go')
            lds_spin('dr', 16, 4, 68)
        if r == OE + OM and not DWHO:
            a('s_cmp_lt_u32 s3, 112')
            a('s_cbranch_scc0 dp_go')
            lds_spin('dp', 16, 8, 68, sleep=2)
            if opt('osleep', 0):
                a(f's_sleep {opt("osleep", 0)}')
        a('s_cmp_eq_u32 s68, s64')
        a('s_cselect_b32 s60, 0x40000000, s69')
        for hf in range(2):
            i = 2 * r + hf
            a(f'buffer_store_dwordx4 v[{4 + 4 * i}:{7 + 4 * i}], v2, {XBR}, s60 offen offset:{1024 * hf} sc1')
        if r < 3:
            a('s_add_u32 s68, s68, 1')
            a('s_add_u32 s69, s69, 2048')
    a('s_branch main_fl')
    TT = 8

    def d_perm(DW, ps):
        for p in ps:
            for k in range(2):
                lo, hi = DW + 2 * (8 * (p >> 2) + (p & 3)) + k, DW + 2 * (8 * (p >> 2) + (p & 3) + 4) + k
                t = 48 + k
                a(f'v_perm_b32 v{t}, v{hi}, v{lo}, s74')
                a(f'v_perm_b32 v{hi}, v{hi}, v{lo}, s75')
                a(f'v_mov_b32 v{lo}, v{t}')

    def gx_loads():
        for q in range(4):
            a(f'buffer_load_dwordx4 v[{52 + 4 * q}:{52 + 4 * q + 3}], v2, {WSR}, s62 offen offset:{1024 * q} sc1')

    def ffn2(DW, issued):
        P = 52
        a('s_mov_b32 s61, 0')
        if issued:
            a('s_branch pg_chk')
        a('pg_again:')
        gx_loads()
        a('pg_chk:')
        a('s_waitcnt vmcnt(0)')
        sentinel_check(range(P, P + 16), P + 16)
        a('s_cbranch_vccz pg_ok')
        a('s_add_u32 s61, s61, 1')
        a(f's_cmp_ge_u32 s61, {POLL_MAX}')
        a('s_cbranch_scc1 pg_ok')
        a('s_mov_b64 exec, vcc')
        a(f's_cmp_lt_u32 s61, {GXL}')
        a('s_cselect_b32 s62, s63, s79')
        if opt('gxsleep', 1):
            a(f's_sleep {opt("gxsleep", 1)}')
        a('s_branch pg_again')
        a('pg_ok:')
        a('s_mov_b64 exec, -1')
        stamp('gxpoll')
        pk('add', P, P, P + 4)
        pk('add', P + 2, P + 2, P + 6)
        pk('add', P + 8, P + 8, P + 12)
        pk('add', P + 10, P + 10, P + 14)
        pk('add', P, P, P + 8)
        pk('add', P + 2, P + 2, P + 10)
        a(f'v_permlane32_swap_b32 v{P}, v{P + 2}')
        a(f'v_permlane32_swap_b32 v{P + 1}, v{P + 3}')
        pk('add', P, P, P + 2)
        a(f'v_permlane16_swap_b32 v{P}, v{P + 1}')
        a(f'v_add_f32 v{TT}, v{P}, v{P + 1}')
        rnd(TT, TT)
        a(f'v_mul_f32 v{TT + 2}, 0xbfb8aa3b, v{TT}')
        a(f'v_mov_b32_dpp v{TT + 3}, v{TT} row_ror:8 row_mask:0xf bank_mask:0xf')
        a(f'v_exp_f32 v{TT + 2}, v{TT + 2}')
        a(f'v_add_f32 v{TT + 2}, 1.0, v{TT + 2}')
        a(f'v_rcp_f32 v{TT + 2}, v{TT + 2}')
        a(f'v_mul_f32 v{TT}, v{TT}, v{TT + 2}')
        rnd(TT, TT)
        a(f'v_mul_f32 v{TT}, v{TT}, v{TT + 3}')
        a(f'v_mov_b32_dpp v{TT + 1}, v{TT} row_shr:1 row_mask:0xf bank_mask:0xf bound_ctrl:0')
        a(f'v_cvt_pk_bf16_f32 v{TT}, v{TT + 1}, v{TT}')
        for p in range(16):
            a(f'v_readlane_b32 s{S_K + p}, v{TT}, {16 * (p & 3) + 2 * (p >> 2) + 1}')
        AC2 = 24
        for p in range(16):
            for c in range(4):
                r = DW + 2 * (8 * (p >> 2) + (p & 3) + 4 * (c & 1)) + (c >> 1)
                h = AC2 + 4 * (p & 1) + c
                src2 = '0' if p < 2 else f'v{h}'
                a(f'v_dot2_f32_bf16 v{h}, v{r}, s{S_K + p}, {src2}')
        pk('add', AC2, AC2, AC2 + 4)
        pk('add', AC2 + 2, AC2 + 2, AC2 + 6)
        a(f'buffer_store_dwordx4 v[{AC2}:{AC2 + 3}], v237, {WSR}, s77 offen sc1')
        stamp('pst')

    a('ffn2:')
    if DWHO:
        a('s_branch main_fl')
    else:
        a('s_cmp_lt_u32 s3, 112')
        a('s_cbranch_scc0 main_fl')
        for r in range(min(D2, 32), 32):
            for l in dl[r]:
                a(l)
        a(f's_lshl_b32 s77, s3, {SH}')
        a(f's_add_u32 s77, s77, {WS_PART}')
        a(f's_add_u32 s63, s79, {WS_GX2 - WS_GX}')
        a(f's_mov_b32 s62, s{63 if GXL else 79}')
        for aa in range(4):
            a(f's_waitcnt vmcnt({24 - 8 * aa})')
            if aa == 3:
                lds_inc(16)
                stamp('dready')
                gx_loads()
            d_perm(DW, range(4 * aa, 4 * aa + 4))
        ffn2(DW, True)
        lds_inc(16)
        a('s_branch main_fl')

    a('helper_ffn:')
    a('s_cmp_lt_u32 s3, 112')
    a('s_cbranch_scc1 ffn_go')
    a('s_waitcnt vmcnt(0)')
    fb_publish()
    a('s_branch red_wait')
    a('ffn_go:')
    GW = 64
    if not (EX or EF):
        gu_base()
    a('s_lshr_b32 s78, s3, 4')
    a('s_lshl_b32 s78, s78, 2')
    a('s_add_u32 s78, s78, s13')
    a(f's_lshl_b32 s78, s78, {SH + 2}')
    a('s_lshl_b32 s60, s76, 8')
    a('s_add_u32 s78, s78, s60')
    a(f's_add_u32 s78, s78, {WS_GX}')
    a(f's_add_u32 s79, s78, {WS_GX2 - WS_GX}')
    if GXL and DWHO:
        a(f's_add_u32 s60, s61, {WS_GX2}')
        a(f'buffer_store_dwordx4 v[240:243], v237, {WSR}, s60 offen')
    assert DSP
    stamp('uw')
    FBK = opt('fbk', 2)
    for k, stp in enumerate(steps):
        if k < EF:
            continue
        if k == PAUSE:
            stamp('pause')
            lds_spin('late2', 24, 1, 28, sleep=LSLEEP)
            lds_spin('yw', 8, 8, 28)
            if opt('rsleep', 0):
                a(f's_sleep {opt("rsleep", 0)}')
        for l in stp:
            a(l)
        if k >= EF + DEPTH - 1 and k < PAUSE:
            a(f's_waitcnt vmcnt({DEPTH - 1})')
        if PAUSE <= k < PAUSE + opt('slow', 0):
            a(f's_waitcnt vmcnt({opt("depth2", 2) - 1})')
        if k == DEPTH - 1 and GXL and DWHO:
            lds_inc(28)
        if k == FBK - 1 and not FILLBY:
            a(f's_waitcnt vmcnt({FBK})')
            fb_publish()
    assert DEPTH <= PAUSE < 32
    if DWHO:
        lds_inc(16)
    for i2 in range(8):
        a(f's_waitcnt vmcnt({max(0, min(63, 32 - 4 * (i2 + 1)))})')
        for m in range(2):
            for k in range(4):
                lo, hi = GW + 64 * m + 8 * i2 + k, GW + 64 * m + 8 * i2 + 4 + k
                t = 32 + (k & 3)
                a(f'v_perm_b32 v{t}, v{hi}, v{lo}, s74')
                a(f'v_perm_b32 v{hi}, v{hi}, v{lo}, s75')
                a(f'v_mov_b32 v{lo}, v{t}')
    stamp('wready')
    KCONV = opt('kconv', 1)

    def fetch_token():
        a('v_lshlrev_b32 v6, 2, v1')
        a(f'v_add_u32 v7, {L_X}, v6')
        if opt('kdelay', 0):
            a(f's_sleep {opt("kdelay", 0)}')
        if not opt('spec', 1):
            key_poll(65)
            stamp('gkey')
            a('s_and_b32 s66, s65, 0xffff')
            a('s_sub_u32 s66, 2047, s66')
            a('s_lshr_b32 s66, s66, 4')
            a(f's_xor_b32 s66, s66, {RSW}')
            a(f's_lshl_b32 s66, s66, {SH}')
            a('s_lshl_b32 s60, s76, 7')
            a('s_add_u32 s66, s66, s60')
            a(f's_add_u32 s66, s66, {WS_CAND}')
            a('s_mov_b32 exec_hi, 0')
            retry_loop('px', [f'buffer_load_dword v8, v6, {WSR}, s66 offen sc1'], lambda: a('v_cmp_eq_u32 vcc, -1, v8'), sleep=1, mask='0xffffffff')
        else:
            a('v_lshlrev_b32 v4, 7, v1')
            a(f's_mov_b32 s64, {WS_KEYS + 8192}')
            a('s_lshl_b32 s63, s76, 7')
            a(f's_add_u32 s63, s63, {WS_CAND}')
            a(f's_and_b32 s62, s3, {opt("canmask", 63)}')
            a('s_lshl_b32 s62, s62, 7')
            a(f's_add_u32 s62, s62, {WS_KEYS + 4}')
            a('s_mov_b64 exec, 1')
            retry_loop('kc2', [f'buffer_load_dword v8, v4, {WSR}, s62 offen sc1'], lambda: a('v_cmp_ne_u32 vcc, s8, v8'), sleep=opt('kcsleep', 2))
            stamp('kcan')
            kl = [f'buffer_load_dwordx2 v[16:17], v4, {WSR}, {WS_KEYS} offen sc1', f'buffer_load_dwordx2 v[18:19], v4, {WSR}, s64 offen sc1']

            def cand_addr():
                a('s_not_b32 s66, s65')
                a('s_bfe_u32 s66, s66, 0x70004')
                a(f's_xor_b32 s66, s66, {RSW}')
                a(f's_lshl_b32 s66, s66, {SH}')
                a('s_add_u32 s66, s66, s63')
            for l in kl:
                a(l)
            a('s_mov_b32 s67, 0')
            a('s_mov_b32 s61, 0')
            a('v_mov_b32 v8, -1')
            a('ks_chk:')
            a('s_waitcnt vmcnt(0)')
            a('v_cmp_eq_u32 vcc, s8, v17')
            a('v_cmp_eq_u32 s[70:71], s8, v19')
            a('v_cndmask_b32 v12, 0, v16, vcc')
            a('v_cndmask_b32 v9, 0, v18, s[70:71]')
            a('s_nand_b64 s[70:71], s[70:71], vcc')
            a('v_max_u32 v12, v12, v9')
            a('s_cbranch_scc0 ks_all')
            a('s_add_u32 s61, s61, 1')
            a(f's_cmp_ge_u32 s61, {POLL_MAX}')
            a('s_cbranch_scc1 ks_all')
            a('s_mov_b64 exec, s[70:71]')
            for l in kl:
                a(l)
            a('s_mov_b64 exec, -1')
            wave_reduce('v_max_u32', 12)
            a('v_readlane_b32 s65, v12, 63')
            a('s_mov_b32 s67, s65')
            cand_addr()
            a('s_mov_b32 exec_hi, 0')
            a(f'buffer_load_dword v8, v6, {WSR}, s66 offen sc1')
            a('s_mov_b64 exec, -1')
            a('s_branch ks_chk')
            a('ks_all:')
            wave_reduce('v_max_u32', 12)
            a('v_readlane_b32 s65, v12, 63')
            stamp('gkey')
            cand_addr()
            a('s_mov_b32 exec_hi, 0')
            a('s_cmp_eq_u32 s65, s67')
            a('s_cbranch_scc1 px_chk')
            retry_loop('px', [f'buffer_load_dword v8, v6, {WSR}, s66 offen sc1'], lambda: a('v_cmp_eq_u32 vcc, -1, v8'), sleep=1, mask='0xffffffff')
        a('ds_write_b32 v7, v8')
        a('s_mov_b64 exec, -1')
        a('s_waitcnt lgkmcnt(0)')
    if not KCONV:
        a('s_cmp_eq_u32 s13, 0')
        a('s_cbranch_scc0 f2_bar')
        fetch_token()
    a('f2_bar:')
    a('s_barrier')
    XS, AC = 36, 44
    stamp('ffn0')
    a(f'ds_read_b128 v[{XS}:{XS + 3}], v201')
    a(f'ds_read_b128 v[{XS + 4}:{XS + 7}], v201 offset:16')
    for p in range(8):
        if p % 4 == 0:
            a(f's_waitcnt lgkmcnt({1 - p // 4})')
        for m in range(2):
            for c in range(8):
                r = GW + 64 * m + 8 * p + 4 * (c & 1) + (c >> 1)
                i = AC + 8 * m + c
                src2 = '0' if p == 0 else f'v{i}'
                a(f'v_dot2_f32_bf16 v{i}, v{r}, v{XS + p}, {src2}')
    for q in range(4):
        a(f'ds_write_b128 v203, v[{AC + 4 * q}:{AC + 4 * q + 3}] offset:{128 * (q >> 1) + 16 * (q & 1)}')
    a('s_waitcnt lgkmcnt(0)')
    a('s_barrier')
    for q in range(4):
        a(f'ds_read_b128 v[{8 + 4 * q}:{11 + 4 * q}], v205 offset:{16 * RP * q}')
    a('s_waitcnt lgkmcnt(2)')
    pk('add', 8, 8, 12)
    pk('add', 10, 10, 14)
    a('s_waitcnt lgkmcnt(0)')
    pk('add', 16, 16, 20)
    pk('add', 18, 18, 22)
    pk('add', 8, 8, 16)
    pk('add', 10, 10, 18)
    if GXL:
        a(f'buffer_store_dwordx4 v[8:11], v247, {WSR}, s79 offen')
    a(f'buffer_store_dwordx4 v[8:11], v247, {WSR}, s78 offen sc1')
    stamp('gxst')
    a('s_branch main_fl')

    a('conv_ffn:')
    a('s_cmp_lt_u32 s3, 112')
    a('s_cbranch_scc0 red_conv')
    if KCONV:
        assert not DWHO
        a('s_cmp_eq_u32 s12, 0')
        a('s_cbranch_scc0 main_fl')
        a('s_and_b32 s76, s3, 15')
        fetch_token()
        a('s_barrier')
    if DWHO:
        DW2 = 80
        lds_spin('gu', 16, 4, 8)
        d_base()
        for stp in d_list(DW2):
            for l in stp:
                a(l)
        a('v_lshlrev_b32 v237, 1, v253')
        a(f's_lshl_b32 s77, s3, {SH}')
        a(f's_add_u32 s79, s77, {WS_GX}')
        a(f's_add_u32 s77, s77, {WS_PART}')
        a(f's_add_u32 s63, s79, {WS_GX2 - WS_GX}')
        a(f's_mov_b32 s62, s{63 if GXL else 79}')
        for aa in range(4):
            a(f's_waitcnt vmcnt({24 - 8 * aa})')
            d_perm(DW2, range(4 * aa, 4 * aa + 4))
        stamp('dready')
        a('s_barrier')
        a('s_barrier')
        ffn2(DW2, False)
    a('s_branch main_fl')

    a('red_conv:')
    a('s_cmp_eq_u32 s12, 0')
    a('s_cbranch_scc0 red_wait')
    if opt('rdelay', 0):
        a(f's_sleep {opt("rdelay", 0)}')
    key_poll(71)
    a('s_sub_u32 s76, s3, 112')
    a('s_and_b32 s72, s71, 0xffff')
    a('s_sub_u32 s72, 2047, s72')
    a('s_lshr_b32 s73, s72, 4')
    a(f's_xor_b32 s73, s73, {RSW}')
    a(f's_lshl_b32 s73, s73, {SH}')
    a('s_lshl_b32 s60, s76, 7')
    a('s_add_u32 s73, s73, s60')
    a(f's_add_u32 s73, s73, {WS_CAND}')
    a('s_lshl_b32 s72, s72, 11')
    a('s_add_u32 s72, s72, s60')
    a('v_and_b32 v6, 31, v0')
    a('v_lshlrev_b32 v6, 2, v6')
    a('s_cmp_eq_u32 s76, 0')
    a(f's_cselect_b32 s60, {WS_EPOCH}, 0x40000000')
    a('v_mov_b32 v49, s8')
    a('v_mov_b32 v50, 0')
    a('s_mov_b64 exec, 1')
    a(f'buffer_store_dword v49, v50, {WSR}, s60 offen')
    a('s_mov_b64 exec, -1')
    loads = [f'buffer_load_dword v{40 + p}, v6, {WSR}, s73 offen offset:{2048 * p} sc1' for p in range(2)]
    poll_loop('ph', loads, (40, 41), 42)
    a('s_and_b32 s60, s71, 0xffff0000')
    a('s_xor_b32 s61, s60, 0x80000000')
    a('s_xor_b32 s62, s60, 0xffff0000')
    a('s_cmp_lt_i32 s60, 0')
    a('s_cselect_b32 s60, s61, s62')
    a('v_mov_b32 v42, 0xbfb8aa3b')
    a('v_mul_f32 v42, s60, v42')
    a('v_exp_f32 v42, v42')
    a('v_add_f32 v42, 1.0, v42')
    a('v_rcp_f32 v42, v42')
    rnd(42, 42)
    unpack(44, 45, 40)
    unpack(46, 47, 41)
    a('red_wait:')
    a(f's_add_u32 s{S_G}, s{S_WS}, {WS_PART}')
    a(f's_addc_u32 s{S_G + 1}, s{S_WS + 1}, 0')
    a(f's_mov_b32 s{S_G + 2}, {112 << SH}')
    a('s_sub_u32 s76, s3, 112')
    a('v_and_b32 v4, 15, v0')
    a('v_lshrrev_b32 v5, 4, v0')
    a(f'v_lshlrev_b32 v5, {SH}, v5')
    a('v_lshl_add_u32 v5, v4, 4, v5')
    a('s_lshl_b32 s64, s76, 8')
    a(f's_add_u32 s65, s64, {32 << SH}')
    a(f's_add_u32 s66, s64, {64 << SH}')
    a(f's_add_u32 s67, s64, {96 << SH}')
    a('v_lshrrev_b32 v7, 4, v1')
    a('v_lshl_add_u32 v7, v4, 2, v7')
    a('v_lshlrev_b32 v7, 2, v7')
    a('s_lshl_b32 s60, s12, 8')
    a(f's_add_u32 s60, s60, {L_RED}')
    a('v_add_u32 v7, s60, v7')
    a('v_lshlrev_b32 v48, 3, v1')
    a(f'v_add_u32 v48, {L_RED}, v48')
    a('s_barrier')
    if opt('finsleep', 30):
        a(f's_sleep {opt("finsleep", 30)}')
    P = 8
    loads = [f'buffer_load_dwordx4 v[{P + 4 * r}:{P + 4 * r + 3}], v5, s[{S_G}:{S_G + 3}], s{64 + r} offen sc1' for r in range(4)]
    poll_loop('pp', loads, range(P, P + 16), 24)
    stamp('ppoll')
    pk('add', P, P, P + 4)
    pk('add', P + 2, P + 2, P + 6)
    pk('add', P + 8, P + 8, P + 12)
    pk('add', P + 10, P + 10, P + 14)
    pk('add', P, P, P + 8)
    pk('add', P + 2, P + 2, P + 10)
    a(f'v_permlane32_swap_b32 v{P}, v{P + 2}')
    a(f'v_permlane32_swap_b32 v{P + 1}, v{P + 3}')
    pk('add', P, P, P + 2)
    a(f'v_permlane16_swap_b32 v{P}, v{P + 1}')
    a(f'v_add_f32 v{P}, v{P}, v{P + 1}')
    a(f'ds_write_b32 v7, v{P}')
    a('s_waitcnt lgkmcnt(0)')
    a('s_barrier')
    a('s_cmp_eq_u32 s12, 0')
    a('s_cbranch_scc0 main_fl')
    a('s_mov_b32 exec_hi, 0')
    for q in range(8):
        a(f'ds_read_b64 v[{P + 2 * q}:{P + 2 * q + 1}], v48 offset:{256 * q}')
    a('s_waitcnt lgkmcnt(0)')
    for q in range(4):
        pk('add', P + 4 * q, P + 4 * q, P + 4 * q + 2)
    pk('add', P, P, P + 4)
    pk('add', P + 8, P + 8, P + 12)
    pk('add', P, P, P + 8)
    rnd(P, P)
    rnd(P + 1, P + 1)
    a(f'v_mul_f32 v{P}, v{P}, v42')
    a(f'v_mul_f32 v{P + 1}, v{P + 1}, v42')
    rnd(P, P)
    rnd(P + 1, P + 1)
    pk('add', P, P, 44)
    rnd(P, P)
    rnd(P + 1, P + 1)
    pk('add', P, P, 46)
    a(f'v_cvt_pk_bf16_f32 v{P}, v{P}, v{P + 1}')
    a(f'buffer_store_dword v{P}, v6, {XBR}, s72 offen')
    if opt('diag', 0):
        a('s_mov_b64 exec, -1')
        a('s_cmp_eq_u32 s76, 0')
        a('s_cbranch_scc0 main_done')
        a('v_lshlrev_b32 v4, 7, v1')
        a(f's_mov_b32 s64, {WS_KEYS + 8192}')
        a(f'buffer_load_dwordx2 v[8:9], v4, {WSR}, {WS_KEYS} offen offset:8 sc1')
        a(f'buffer_load_dwordx2 v[10:11], v4, {WSR}, s64 offen offset:8 sc1')
        a('s_memrealtime s[62:63]')
        a('s_waitcnt vmcnt(0) lgkmcnt(0)')
        for r in range(8, 12):
            a(f'v_sub_u32 v{r}, s62, v{r}')
        a('v_max_u32 v12, v8, v10')
        a('v_min_u32 v13, v8, v10')
        a('v_min_u32 v14, v9, v11')
        a('v_not_b32 v13, v13')
        a('v_not_b32 v14, v14')
        wave_reduce('v_max_u32', [12, 13, 14])
        a('v_readlane_b32 s64, v12, 63')
        a('v_readlane_b32 s65, v13, 63')
        a('v_readlane_b32 s66, v14, 63')
        a('s_not_b32 s65, s65')
        a('s_not_b32 s66, s66')
        d = opt('diag', 0)
        if d == 1:
            a('s_sub_u32 s64, s64, s65')
        if d == 3:
            a('s_sub_u32 s64, s64, s66')
        if d >= 10:
            x = d % 10
            a(f'v_readlane_b32 s65, v{(8 if x < 4 else 10) + (d >= 20)}, {16 * (x & 3) + 5}')
            a('s_sub_u32 s64, s64, s65')
        a(f's_mul_i32 s64, s64, {opt("diagk", 10)}')
        a('s_min_u32 s64, s64, 100000')
        a('diag_spin:')
        a('s_memrealtime s[66:67]')
        a('s_waitcnt lgkmcnt(0)')
        a('s_sub_u32 s66, s66, s62')
        a('s_cmp_lt_u32 s66, s64')
        a('s_cbranch_scc1 diag_spin')
        a('s_branch main_done')
    a('main_fl:')
    if opt('diag', 0):
        a('s_branch main_done')
    if opt('dbg', 0) == 999:
        a('s_waitcnt vmcnt(0) lgkmcnt(0)')
        stamp(7)
        a('s_mov_b64 s[96:97], s[100:101]')
        a('s_mov_b32 s98, 256')
        a('s_mov_b32 s99, 0x00020000')
        a('s_mov_b64 exec, 1')
        a('v_mov_b32 v1, 0')
        a('s_waitcnt lgkmcnt(0)')
        for i in range(8):
            a(f's_and_b32 s60, s{80 + 2 * i}, 0xffffff')
            a('s_xor_b32 s61, s60, 0xffffff')
            a(f's_cmp_eq_u32 s{80 + 2 * i}, 0')
            a('s_cselect_b32 s61, 0, s61')
            a('v_mov_b32 v2, s60')
            a('v_mov_b32 v3, s61')
            a(f'buffer_atomic_umax v2, v1, s[96:99], 0 offen offset:{4 * i} sc1')
            a(f'buffer_atomic_umax v3, v1, s[96:99], 0 offen offset:{32 + 4 * i} sc1')
    elif opt('dbg', 0):
        a('s_waitcnt vmcnt(0) lgkmcnt(0)')
        stamp(7)
        a('s_mov_b64 s[96:97], s[100:101]')
        a('s_mov_b32 s98, 256')
        a('s_mov_b32 s99, 0x00020000')
        a('s_lshl_b32 s60, s2, 3')
        a('s_add_u32 s60, s60, s12')
        a('s_mov_b32 s61, 0x40000000')
        a(f's_cmp_eq_u32 s60, {225 * 8}')
        a('s_cselect_b32 s61, 0, s61')
        a(f's_cmp_eq_u32 s60, {opt("dbg", 0) * 8 + opt("dbgw", 0)}')
        a('s_cselect_b32 s61, 32, s61')
        a('s_mov_b64 exec, 1')
        a('v_mov_b32 v1, 0')
        a('s_waitcnt lgkmcnt(0)')
        for i in range(8):
            a(f's_sub_u32 s60, s{80 + 2 * i}, s80')
            a(f's_cmp_eq_u32 s{80 + 2 * i}, 0')
            a('s_cselect_b32 s60, 0, s60')
            a('v_mov_b32 v2, s60')
            a(f'buffer_store_dword v2, v1, s[96:99], s61 offen offset:{4 * i}')
    else:
        stamp_flush(S_WS, 7, 0)
    a('main_done:')
    a('s_endpgm')
    return kernel_desc(KN, 256, 102 if STAMPS else 80)


launch = '; @launch grid=(256,1,1) block=(512,1,1) lds=%d\n' % MAIN_LDS
finish(launch, [k_main()])
```

```python
from common import *
import common
STAMPS = common.STAMPS

WS_KEYS = 0
WS_EPOCH = 32 * 1024
WS_GX = 1536 * 1024
WS_FA = 128 * 1024
WS_FB = 192 * 1024
WS_FA2 = 64 * 1024
WS_CAND = 262144
WS_PART = 1 << 20
WS_GX2 = 6 << 20
WS_KV = 2 << 20
WS_SIZE = 7 << 20
SH = 12
if opt('reuse', 0):
    SH = 14
    WS_CAND, WS_PART, WS_GX, WS_GX2 = WS_KV, WS_KV + 4096, WS_KV + (2 << 20), WS_KV + (2 << 20) + 4096
WSOFF = opt('wsoff', 0) << 20
common.WS_STAMP -= WSOFF
POLL_MAX = 1 << 16
KN = NAME + '_kernel'

DEPTH = opt('depth', 7)
XPOS = opt('xpos', 4)
UWOFF = opt('uwoff', 0)
FLC = opt('flc', 3)
FBC = opt('fbc', 12)
YSLEEP = opt('ysleep', 1)
CODEPF = opt('codepf', 6)
DEARLY = opt('dearly', 0)
SWZ = opt('swz', 0)
YB = 's_andn2_b32 s62, s15, 0x380' if SWZ & 2 else 's_mov_b32 s62, s15'
CPERM = opt('cperm', 0)
RSW = opt('rsw', 0)
YLO = opt('ylo', 1)
DWHO = opt('dwho', 0)
GXL = opt('gxl', 40)
DYN = opt('dyn', 0)
LSLEEP = opt('lsleep', 6)
FILLBY = opt('fillby', 1)
DUAL = opt('dual', 12)
KVS = '' if opt('l2kv', 0) else ' sc1'
KVL = {0: ' sc1', 1: ' sc0', 2: ''}[opt('kvl', 0)]
FAL = {0: ' sc1', 1: ' sc0', 2: ''}[opt('fal', 0)]
PAUSE = opt('pause', 20)

GS = 4160
UOFF = 4 * GS
CS = 21312
L_YL = 4 * CS
RS = 2064
L_YT = L_YL + 16384
L_P0 = L_YL
L_W = L_YT + 16 * RS
L_ST = L_W + 2048
L_PART = 0
PS = 272
RP = 272
L_H = 8192
L_CNT = L_ST + 272
L_GKEY = L_CNT + 28
L_SW = L_CNT + 48
L_X = L_CNT + 64
L_RED = L_X + 1024
MAIN_LDS = L_RED + 4096

S_K, S_V, S_SK, S_H, S_WS, S_Q, S_WR, S_OUT, S_G, S_U, S_D = 16, 20, 24, 28, 32, 36, 40, 44, 48, 52, 56
WSR = f's[{S_WS}:{S_WS + 3}]'
XBR = f's[{S_OUT}:{S_OUT + 3}]'
KVR = WSR
VC, V1 = 254, 255


def sentinel_check(regs, tmp):
    rs = list(regs)
    cur = rs.pop(0)
    while rs:
        if len(rs) >= 2:
            a(f'v_max3_u32 v{tmp}, v{cur}, v{rs[0]}, v{rs[1]}')
            rs = rs[2:]
        else:
            a(f'v_max_u32 v{tmp}, v{cur}, v{rs[0]}')
            rs = rs[1:]
        cur = tmp
    a(f'v_cmp_eq_u32 vcc, -1, v{cur}')


def retry_loop(name, loads, check, sleep=2, issued=False, mask='-1'):
    a('s_mov_b32 s61, 0')
    if issued:
        a(f's_branch {name}_chk')
    a(f'{name}_again:')
    for l in loads:
        a(l)
    a(f'{name}_chk:')
    a('s_waitcnt vmcnt(0)')
    check()
    a(f's_cbranch_vccz {name}_ok')
    a('s_add_u32 s61, s61, 1')
    a(f's_cmp_ge_u32 s61, {POLL_MAX}')
    a(f's_cbranch_scc1 {name}_ok')
    a('s_mov_b64 exec, vcc')
    a(f's_sleep {sleep}')
    a(f's_branch {name}_again')
    a(f'{name}_ok:')
    a(f's_mov_b64 exec, {mask}')


def poll_loop(name, loads, regs, tmp, sleep=2, issued=False):
    retry_loop(name, loads, lambda: sentinel_check(regs, tmp), sleep, issued)


def lds_spin(name, off, want, vt, sleep=1):
    a('s_mov_b32 s61, 0')
    a(f'{name}_spin:')
    a(f'ds_read_b32 v{vt}, v{VC} offset:{off}')
    a('s_add_u32 s61, s61, 1')
    a('s_waitcnt lgkmcnt(0)')
    a(f'v_readfirstlane_b32 s60, v{vt}')
    a(f's_cmp_ge_u32 s60, {want}')
    a(f's_cbranch_scc1 {name}_go')
    a(f's_cmp_ge_u32 s61, {1 << 22}')
    a(f's_cbranch_scc1 {name}_go')
    a(f's_sleep {sleep}')
    a(f's_branch {name}_spin')
    a(f'{name}_go:')


def lds_inc(off):
    a('s_mov_b64 exec, 1')
    a(f'ds_add_u32 v{VC}, v{V1} offset:{off}')
    a('s_mov_b64 exec, -1')


XP = [4, 20]
N = [36, 52]
T = [68, 84]
WF = 100
MV = [116, 120]
AA = [124, 132]
YR = [140, 148]
XR = 36
VG8, VXA, VWA, VSA, VKL, VPR, VPW, VRA, VBIT = range(228, 237)


def ln_x(xr, wr):
    for r in range(2):
        for i in range(8):
            unpack(XP[r] + 2 * i, XP[r] + 2 * i + 1, xr + 8 * r + i)
    for i in range(8):
        unpack(WF + 2 * i, WF + 2 * i + 1, wr + i)
    srcs = [(XP[0], T[0]), (XP[1], T[0] + 8), (WF, T[1])]
    for i in range(4):
        for (sx, t) in srcs:
            pk('add', t + 2 * i, sx + 4 * i, sx + 4 * i + 2)
    for (_, b) in srcs:
        pk('add', b, b, b + 2)
        pk('add', b + 4, b + 4, b + 6)
    for (_, b) in srcs:
        pk('add', b, b, b + 4)
    for (_, b) in srcs:
        a(f'v_add_f32 v{b}, v{b}, v{b + 1}')
    K = T[1] + 8
    a(f'v_mov_b32 v{K}, 0x3a800000')
    wave_reduce('v_add_f32', [b for _, b in srcs])
    a(f'v_readlane_b32 s60, v{T[0]}, 63')
    a(f'v_readlane_b32 s62, v{T[0] + 8}, 63')
    a(f'v_readlane_b32 s71, v{T[1]}, 63')
    for r in range(2):
        M, V = MV[r], MV[r] + 2
        a(f'v_mul_f32 v{V}, s{60 + 2 * r}, v{K}')
    for r in range(2):
        M, V = MV[r], MV[r] + 2
        rnd(M, V)
        rnd(M + 1, V)
        a(f'v_sub_f32 v{V}, v{V}, v{M}')
        a(f'v_readfirstlane_b32 s{72 + r}, v{M}')
    for r in range(2):
        for i in range(8):
            pk('add', XP[r] + 2 * i, XP[r] + 2 * i, MV[r], mods='neg_lo:[0,1] neg_hi:[0,1]')
    for i in range(8):
        for r in range(2):
            if i == 0:
                pk('mul', AA[r], XP[r], XP[r])
            else:
                pk('fma', AA[r], XP[r] + 2 * i, XP[r] + 2 * i, AA[r])
    for r in range(2):
        a(f'v_add_f32 v{AA[r]}, v{AA[r]}, v{AA[r] + 1}')
        a(f'v_mul_f32 v{MV[r] + 2}, v{MV[r] + 2}, v{MV[r] + 2}')
    wave_reduce('v_add_f32', AA)
    for r in range(2):
        a(f'v_readlane_b32 s{60 + 2 * r}, v{AA[r]}, 63')
    for step in range(8):
        for r in range(2):
            V = MV[r] + 2
            if step == 0:
                a(f'v_fma_f32 v{V}, s{60 + 2 * r}, v{K}, -v{V}')
            elif step in (1, 3, 5):
                rnd(V, V)
            elif step == 2:
                a(f'v_add_f32 v{V}, 0x3727c5ac, v{V}')
            elif step == 4:
                a(f'v_sqrt_f32 v{V}, v{V}')
            elif step == 6:
                a(f'v_rcp_f32 v{V + 1}, v{V}')
            else:
                a(f'v_rcp_f32 v{V}, v{V}')
    for r in range(2):
        for i in range(16):
            rnd(N[r] + i, XP[r] + i)
    for r in range(2):
        for i in range(8):
            pk('mul', N[r] + 2 * i, N[r] + 2 * i, MV[r] + 2)
    for r in range(2):
        for i in range(16):
            rnd(N[r] + i, N[r] + i)


def key_poll(dst):
    a('v_lshlrev_b32 v4, 7, v1')
    a(f's_mov_b32 s65, {WS_KEYS}')
    a(f's_mov_b32 s66, {WS_KEYS + 8192}')
    if opt('kcan', 1):
        a('s_lshl_b32 s62, s3, 7')
        a(f's_add_u32 s62, s62, {WS_KEYS + 4}')
        a('s_mov_b64 exec, 1')
        retry_loop(a.newlabel('kc'), [f'buffer_load_dword v8, v4, {WSR}, s62 offen sc1'], lambda: a('v_cmp_ne_u32 vcc, s8, v8'), sleep=opt('kcsleep', 2))
        stamp('kcan')
    loads = [f'buffer_load_dwordx2 v[{16 + 2 * p}:{17 + 2 * p}], v4, {WSR}, s{65 + p} offen sc1' for p in range(2)]

    def chk():
        a('v_xor_b32 v8, s8, v17')
        a('v_xor_b32 v9, s8, v19')
        a('v_max_u32 v12, v16, v18')
        a('v_or_b32 v8, v8, v9')
        a('v_cmp_ne_u32 vcc, 0, v8')
    retry_loop(a.newlabel('pk'), loads, chk, sleep=opt('ksleep', 2))
    wave_reduce('v_max_u32', 12)
    a(f'v_readlane_b32 s{dst}, v12, 63')


def k_main():
    kernel_begin(a, KN)
    a('s_cmp_ge_u32 s2, 256')
    a('s_cbranch_scc1 main_done')
    stamp_begin(0)
    if opt('dbg', 0):
        a('s_load_dwordx2 s[100:101], s[0:1], 96')
    for sr, off in ((S_WS, 104), (S_K, 8), (S_V, 16), (S_SK, 24), (S_H, 32), (10, 40), (S_Q, 0), (S_WR, 56), (S_OUT, 88), (S_G, 64), (S_U, 72), (S_D, 80)):
        a(f's_load_dwordx2 s[{sr}:{sr + 1}], s[0:1], {off}')
    if CODEPF:
        a('s_getpc_b64 s[4:5]')
        a('pc0:')
        a('s_mov_b32 s6, main_done-pc0')
        a('s_mov_b32 s7, 0x00020000')
        a('s_lshr_b32 s3, s2, 3')
        a(f's_mul_i32 s3, s3, {CODEPF * 128}')
        a('v_lshlrev_b32 v3, 7, v0')
        a(f'v_cmp_gt_u32 vcc, {CODEPF}, v0')
        a('s_and_saveexec_b64 s[60:61], vcc')
        a('s_cbranch_execz no_codepf')
        a('buffer_load_dword v252, v3, s[4:7], s3 offen')
        a('no_codepf:')
        a('s_mov_b64 exec, -1')
    if opt('scramble', 0) == 1:
        a('s_lshl_b32 s5, s2, 3')
        a('s_lshr_b32 s2, s2, 5')
        a('s_or_b32 s2, s2, s5')
        a('s_and_b32 s2, s2, 255')
    if opt('scramble', 0) == 2:
        a('s_lshr_b32 s5, s2, 1')
        a('s_cmp_eq_u32 s5, 21')
        a('s_cselect_b32 s5, 1, 0')
        a('s_xor_b32 s2, s2, s5')
    a('s_lshr_b32 s5, s2, 4')
    a(f's_add_u32 s4, s2, {opt("xrot", 0)}')
    a('s_and_b32 s4, s4, 7')
    a('s_lshl_b32 s4, s4, 1')
    a('s_bfe_u32 s6, s2, 0x10003')
    a('s_or_b32 s4, s4, s6')
    a('s_lshl_b32 s2, s4, 4')
    a('s_or_b32 s2, s2, s5')
    a('v_lshrrev_b32 v3, 6, v0')
    a('v_and_b32 v1, 63, v0')
    a('v_readfirstlane_b32 s12, v3')
    a('v_lshlrev_b32 v2, 4, v1')
    a(f'v_mov_b32 v{VC}, {L_CNT}')
    a(f'v_mov_b32 v{V1}, 1')
    for r in range(6):
        a(f'v_mov_b32 v{144 + r}, 0')
    for r in range(4):
        a(f'v_mov_b32 v{240 + r}, -1')
    a('s_cmp_eq_u32 s12, 0')
    a('s_cbranch_scc0 no_cnt_init')
    a('s_mov_b64 exec, 1')
    a(f'ds_write_b128 v{VC}, v[144:147]')
    a(f'ds_write_b128 v{VC}, v[144:147] offset:16')
    a(f'ds_write_b128 v{VC}, v[144:147] offset:32')
    a('s_mov_b64 exec, -1')
    a('no_cnt_init:')
    for sr, n in ((S_WS, WS_SIZE), (S_K, MB4), (S_V, MB4), (S_SK, 8192), (S_H, 4096), (S_Q, 0 if opt('free', 0) & 4 else MB4), (S_WR, 2048), (S_OUT, MB4),
                  (S_G, 0 if opt('free', 0) & 1 else 1024 * 7168), (S_U, 0 if opt('free', 0) & 1 else 1024 * 7168), (S_D, 0 if opt('free', 0) & 2 else 3584 * 2048)):
        a(f's_mov_b32 s{sr + 2}, {n}')
        a(f's_mov_b32 s{sr + 3}, 0x00020000')
    a('s_and_b32 s13, s12, 3')
    if opt('gmix', 1):
        a('s_and_b32 s14, s12, 1')
        a('s_xor_b32 s4, s4, s14')
    a('s_lshr_b32 s14, s12, 2')
    if CPERM:
        a('s_bfe_u32 s15, s2, 0x20005')
        a('s_lshl_b32 s15, s15, 1')
        a('s_lshr_b32 s9, s2, 7')
        a('s_xor_b32 s9, s9, 1')
        a('s_or_b32 s15, s15, s9')
        a('s_and_b32 s9, s4, 1')
        a('s_lshl_b32 s7, s15, 1')
        a('s_or_b32 s7, s7, s9')
        a('s_lshl_b32 s15, s15, 5')
        a('s_and_b32 s9, s2, 31')
        a('s_or_b32 s15, s15, s9')
        a('s_lshl_b32 s15, s15, 2')
    else:
        a(f's_xor_b32 s7, s4, {opt("cx", 0) << 1}')
        a(f's_xor_b32 s15, s2, {opt("cx", 0) << 5}')
        a('s_lshl_b32 s15, s15, 2')
    a('s_add_u32 s15, s15, s13')
    a('s_lshr_b32 s3, s2, 1')
    a('v_and_b32 v4, 15, v1')
    a('v_lshrrev_b32 v5, 4, v1')
    a('v_and_b32 v10, 31, v1')
    a('v_lshrrev_b32 v11, 5, v1')
    a('v_lshrrev_b32 v6, 3, v1')
    a('v_lshlrev_b32 v8, 11, v6')
    if SWZ & 1:
        a('s_and_b32 s60, s5, 7')
        a('v_xor_b32 v7, s60, v6')
        a('v_lshlrev_b32 v6, 13, v6')
        a('v_lshl_add_u32 v6, v7, 7, v6')
    else:
        a('v_lshlrev_b32 v6, 13, v6')
    a('v_and_b32 v7, 7, v1')
    a('v_lshl_add_u32 v6, v7, 4, v6')
    a('v_lshl_add_u32 v8, v7, 4, v8')
    a('s_lshl_b32 s62, s4, 17')
    a('s_lshl_b32 s63, s13, 11')
    a('s_add_u32 s62, s62, s63')
    a('s_lshl_b32 s63, s14, 21')
    a('s_add_u32 s62, s62, s63')
    a(f's_add_u32 s62, s62, {WS_KV}')
    if SWZ & 1:
        a('s_and_b32 s63, s5, 8')
        a('s_lshl_b32 s63, s63, 7')
    else:
        a('s_lshl_b32 s63, s5, 7')
    a('s_add_u32 s62, s62, s63')
    a('s_add_u32 s63, s62, 0x10000')
    a('s_lshl_b32 s64, s12, 19')
    a('s_lshl_b32 s65, s5, 15')
    a('s_add_u32 s64, s64, s65')
    a('s_lshl_b32 s65, s7, 7')
    a('s_add_u32 s64, s64, s65')
    a('s_add_u32 s65, s64, 16384')
    a('s_sub_u32 s77, s64, 6144')
    a('s_cselect_b32 s77, 0x40000000, s77')
    a('s_lshl_b32 s79, s7, 9')
    a('v_lshlrev_b32 v9, 4, v10')
    a('s_lshl_b32 s67, s15, 12')
    a('s_lshl_b32 s70, s15, 1')
    a('s_and_b32 s70, s70, 0xfffffffc')
    a(f's_xor_b32 s68, s3, {RSW}')
    a('s_lshl_b32 s68, s68, 4')
    a('s_lshl_b32 s69, s13, 2')
    a('s_add_u32 s68, s68, s69')
    a('s_lshl_b32 s69, s68, 11')
    a('s_mul_i32 s66, s12, 4608')
    a(f's_add_u32 s66, s66, {L_P0}')
    a(f's_mov_b32 s6, {WS_EPOCH}')
    a('s_mov_b32 m0, s66')
    a('s_waitcnt lgkmcnt(0)')
    stamp('karg')
    if WSOFF:
        a(f's_add_u32 s{S_WS}, s{S_WS}, {WSOFF}')
        a(f's_addc_u32 s{S_WS + 1}, s{S_WS + 1}, 0')
    a(f's_load_dword s8, s[{S_WS}:{S_WS + 1}], s6')
    a('s_load_dword s9, s[10:11], s70')
    KR, VR, SKR = 16, 28, 36

    GL = 96
    a('s_cmp_eq_u32 s14, 0')
    a('s_cbranch_scc1 ld_kv')
    a(f's_add_u32 s{S_H}, s{S_H}, s67')
    a(f's_addc_u32 s{S_H + 1}, s{S_H + 1}, 0')
    a('s_barrier')
    for i in range(4):
        a(f'buffer_load_dwordx4 v[{GL + 6 * i}:{GL + 6 * i + 3}], v2, s[{S_H}:{S_H + 3}], 0 offen offset:{1024 * i} nt')
    if opt('hipos', 0) >= 8:
        lds_spin('kvq', 32, opt('hipos', 0) - 4, 3)
    elif opt('hipos', 0):
        a(f's_waitcnt vmcnt({4 - opt("hipos", 0)})')
    a('ld_kv:')
    a(f'buffer_load_dwordx4 v[{SKR}:{SKR + 3}], v9, s[{S_SK}:{S_SK + 3}], s79 offen')
    a('s_mov_b64 exec, 0xffffff')
    a(f'buffer_load_dwordx4 v8, s[{S_K}:{S_K + 3}], s77 offen nt lds')
    a('s_mov_b64 exec, -1')
    for (sr, so, lo) in ((S_K, 64, 384), (S_K, 65, 1408), (S_V, 64, 2432), (S_V, 65, 3456)):
        a(f's_add_u32 m0, s66, {lo}')
        a(f'buffer_load_dwordx4 v8, s[{sr}:{sr + 3}], s{so} offen nt lds')
    a('s_cmp_eq_u32 s14, 0')
    a('s_cbranch_scc0 ld_done')
    a('s_barrier')
    a('ld_done:')
    a(f's_mul_i32 s67, s13, {CS}')
    a('s_mov_b32 s74, 0x05040100')
    a('s_mov_b32 s75, 0x07060302')
    a('v_lshlrev_b32 v92, 10, v11')
    a('v_lshl_add_u32 v92, v10, 2, v92')
    a('v_add_u32 v92, s66, v92')
    a('v_add_u32 v93, 1024, v92')
    a('v_add_u32 v94, 2432, v92')
    a('v_lshrrev_b32 v8, 1, v10')
    a('v_mul_u32_u24 v8, 144, v8')
    a('v_and_b32 v9, 1, v10')
    a('v_lshl_add_u32 v8, v9, 6, v8')
    a('v_sub_u32 v9, 1, v11')
    a('v_lshl_add_u32 v8, v9, 4, v8')
    a('v_add_u32 v8, s66, v8')
    a('v_lshrrev_b32 v9, 3, v1')
    a('v_mul_u32_u24 v9, 144, v9')
    a('v_lshl_add_u32 v9, v7, 4, v9')
    a('v_add_u32 v9, s66, v9')
    a('v_add_u32 v160, s67, v2')
    a('v_and_b32 v161, 3, v1')
    a(f'v_mul_u32_u24 v161, {GS}, v161')
    a('v_bfe_u32 v162, v1, 2, 2')
    a('v_lshl_add_u32 v161, v162, 3, v161')
    a('v_lshl_add_u32 v161, v5, 4, v161')
    a('v_add_u32 v161, s67, v161')
    a(f's_add_u32 s60, s67, {UOFF + 480}')
    a('v_lshlrev_b32 v163, 5, v4')
    a('v_sub_u32 v162, s60, v163')
    a('v_lshl_add_u32 v162, v5, 4, v162')
    a('v_lshl_add_u32 v163, v5, 3, v163')
    a('s_lshl_b32 s60, s13, 12')
    a(f's_add_u32 s60, s60, {L_YL}')
    a('v_add_u32 v163, s60, v163')
    a('v_bfe_u32 v165, v1, 1, 2')
    a(f'v_mul_u32_u24 v165, {CS}, v165')
    a('v_and_b32 v166, 1, v1')
    a('v_lshl_add_u32 v165, v166, 4, v165')
    a('v_lshrrev_b32 v166, 3, v1')
    if SWZ & 1:
        a('s_and_b32 s60, s5, 7')
        a('v_xor_b32 v166, s60, v166')
    a('v_lshlrev_b32 v166, 5, v166')
    a('v_sub_u32 v165, v165, v166')
    a('s_lshl_b32 s60, s12, 9')
    a(f's_sub_u32 s60, {UOFF + 4064 - 256}, s60')
    a('v_add_u32 v165, s60, v165')
    a('s_lshl_b32 s78, s2, 13')
    a('s_lshl_b32 s60, s13, 11')
    a('s_add_u32 s78, s78, s60')
    a('s_lshl_b32 s60, s14, 21')
    a('s_add_u32 s78, s78, s60')
    a(f's_add_u32 s78, s78, {WS_KV}')
    a('v_lshl_add_u32 v166, v5, 3, v4')
    a('v_sub_u32 v166, 15, v166')
    a('v_and_b32 v167, 1, v166')
    a('v_lshlrev_b32 v167, 4, v167')
    a('v_ashrrev_i32 v166, 1, v166')
    a(f'v_mul_u32_u24 v150, {GS}, v1')
    a('v_add_u32 v150, s67, v150')
    a('v_lshlrev_b32 v245, 7, v4')
    a('v_bfe_u32 v248, v1, 3, 2')
    a('v_lshlrev_b32 v248, 13, v248')
    a('v_lshl_add_u32 v248, v7, 7, v248')
    a('v_lshlrev_b32 v251, 4, v0')
    a('v_bfe_u32 v238, v0, 3, 5')
    if SWZ & 2:
        a('s_and_b32 s60, s3, 7')
        a('s_lshl_b32 s60, s60, 7')
        a('v_xor_b32 v251, s60, v251')
        a('s_and_b32 s60, s5, 7')
        a('v_xor_b32 v3, s60, v238')
        a('v_and_b32 v3, 7, v3')
    a('v_lshlrev_b32 v238, 15, v238')
    a('v_lshl_add_u32 v238, v7, 4, v238')
    if SWZ & 2:
        a('v_lshl_add_u32 v238, v3, 7, v238')
    a(f'v_lshrrev_b32 v{VG8}, 3, v0')
    a(f'v_lshlrev_b32 v{VG8}, 3, v{VG8}')
    a(f'v_mul_u32_u24 v{VXA}, {2 * RS}, v7')
    a(f'v_add_u32 v{VXA}, v{VXA}, v{VG8}')
    a(f'v_add_u32 v{VXA}, {L_YT}, v{VXA}')
    a(f'v_add_u32 v{VWA}, {L_W}, v{VG8}')
    a(f'v_lshlrev_b32 v{VSA}, 5, v7')
    a(f'v_add_u32 v{VSA}, {L_ST}, v{VSA}')
    a(f'v_bfe_u32 v{VKL}, v1, 3, 1')
    a(f'v_lshl_add_u32 v{VKL}, v7, 1, v{VKL}')
    a(f'v_mul_u32_u24 v{VPR}, {PS}, v{VKL}')
    a(f'v_lshl_add_u32 v{VPR}, v5, 6, v{VPR}')
    a(f'v_lshl_add_u32 v{VPW}, v7, 1, v11')
    a(f'v_mul_u32_u24 v{VPW}, {PS}, v{VPW}')
    a('v_and_b32 v3, 1, v5')
    a(f'v_lshl_add_u32 v{VPW}, v3, 4, v{VPW}')
    a('s_lshl_b32 s60, s12, 5')
    a(f'v_add_u32 v{VPW}, s60, v{VPW}')
    a(f's_xor_b32 s60, s3, {RSW}')
    a('s_lshl_b32 s60, s60, 4')
    a('s_sub_u32 s60, 2047, s60')
    a(f'v_sub_u32 v{VKL}, s60, v{VKL}')
    a(f's_mul_i32 s60, s13, {4 * RS}')
    a(f's_add_u32 s60, s60, {L_YT}')
    a(f'v_add_u32 v{VRA}, s60, v2')
    a(f'v_lshrrev_b32 v{VBIT}, 3, v1')
    a(f'v_lshlrev_b32 v{VBIT}, v{VBIT}, 1')
    a('v_and_b32 v253, 255, v0')
    a('v_lshlrev_b32 v253, 3, v253')
    a('v_lshlrev_b32 v237, 1, v253')
    a(f'v_lshlrev_b32 v247, {SH}, v5')
    a('v_lshl_add_u32 v247, v4, 4, v247')
    a('s_mov_b64 exec, 0xf')
    a('ds_write_b128 v150, v[144:147]')
    a('s_mov_b64 exec, 0x3fffffff')
    a(f'ds_write_b128 v160, v[144:147] offset:{UOFF + 4096}')
    a('s_mov_b64 exec, -1')
    WFp, KF, O, PKD = 40, 48, 70, 86
    a('s_waitcnt lgkmcnt(0)')
    a('s_add_u32 s8, s8, 0x9e3779b9')
    a('s_or_b32 s8, s8, 1')
    a('s_and_b32 s61, s15, 1')
    a('s_lshl_b32 s61, s61, 4')
    a('s_lshr_b32 s9, s9, s61')
    a('s_and_b32 s9, s9, 0xffff')
    a('v_lshlrev_b32 v167, v167, s9')
    for r in range(4):
        a(f'v_cmp_eq_u32 vcc, {r}, v166')
        a(f'v_cndmask_b32 v{168 + r}, 0, v167, vcc')
    a('s_lshl_b32 s64, s4, 11')
    a(f's_add_u32 s64, s64, {WS_FA}')
    a('s_lshl_b32 s65, s2, 7')
    a('s_lshr_b32 s15, s15, 2')
    a('s_lshl_b32 s15, s15, 7')
    a(f's_add_u32 s7, s15, {WS_FB}')
    a('s_lshl_b32 s60, s13, 2')
    a('s_add_u32 s7, s7, s60')
    a('s_bfe_u32 s60, s3, 0x20003')
    a('s_lshl_b32 s60, s60, 2')
    a('v_add_u32 v248, s60, v248')
    a(f's_add_u32 s65, s65, {WS_FA}')
    a('v_mov_b32 v13, s8')
    a('v_mov_b32 v14, 0')
    a(f's_add_u32 s10, s65, {WS_FA2 - WS_FA}')
    a('s_cmp_eq_u32 s12, 0')
    a('s_cselect_b32 s60, s10, 0x40000000')
    a('s_mov_b64 exec, 0xff')
    a(f'buffer_store_dwordx4 v[144:147], v2, {WSR}, s60 offen')
    a('s_mov_b64 exec, -1')
    XV = 1
    a('s_lshl_b32 s60, s12, 2')
    a('s_add_u32 s64, s64, s60')
    a('s_add_u32 s65, s65, s60')
    a('s_add_u32 s10, s10, s60')
    a(f's_add_u32 s11, s64, {WS_FA2 - WS_FA}')
    if DYN:
        a('s_memrealtime s[4:5]')
    a('s_cmp_eq_u32 s14, 0')
    a('s_cbranch_scc1 p0')
    LATER = 6 + XV
    a(f's_waitcnt vmcnt({LATER + 3})')
    a(f'v_readlane_b32 s76, v{GL}, 0')
    a(f'v_readlane_b32 s77, v{GL + 1}, 0')
    a('s_lshl_b32 s70, s76, 16')
    a('s_lshr_b32 s61, s76, 16')
    a('s_lshl_b32 s71, s77, 16')
    a('s_or_b32 s61, s61, s71')
    a('v_writelane_b32 v149, s70, 0')
    a('v_writelane_b32 v149, s76, 1')
    a('v_writelane_b32 v149, s61, 2')
    a('v_writelane_b32 v149, s77, 3')
    a('v_writelane_b32 v148, s70, 2')
    a('v_writelane_b32 v148, s76, 3')
    a('s_mov_b64 exec, 0xf')
    a('ds_write_b128 v150, v[146:149] offset:16')
    a('s_mov_b64 exec, -1')
    for i in range(4):
        w = GL + 6 * i
        a(f'v_mov_b32_dpp v{w + 4}, v{w} wave_shl:1 row_mask:0xf bank_mask:0xf bound_ctrl:0')
        a(f'v_mov_b32_dpp v{w + 5}, v{w + 1} wave_shl:1 row_mask:0xf bank_mask:0xf bound_ctrl:0')
        if i < 3:
            a(f's_waitcnt vmcnt({LATER + 2 - i})')
            a(f'v_readlane_b32 s70, v{w + 6}, 0')
            a(f'v_readlane_b32 s71, v{w + 7}, 0')
            a(f'v_writelane_b32 v{w + 4}, s70, 63')
            a(f'v_writelane_b32 v{w + 5}, s71, 63')
        ta, tb, tc = 176 + 12 * i, 180 + 12 * i, 184 + 12 * i
        a(f'ds_write_b128 v160, v[{w + 2}:{w + 5}] offset:{32 + 1024 * i + 3 * GS}')
        for j in range(4):
            a(f'v_alignbit_b32 v{ta + j}, v{w + j + 1}, v{w + j}, 16')
        a(f'ds_write_b128 v160, v[{ta}:{ta + 3}] offset:{32 + 1024 * i + 0 * GS}')
        for j in range(4):
            a(f'v_alignbit_b32 v{tb + j}, v{w + j + 2}, v{w + j + 1}, 16')
        a(f'ds_write_b128 v160, v[{tb}:{tb + 3}] offset:{32 + 1024 * i + 2 * GS}')
        for j in range(4):
            a(f'v_mov_b32 v{tc + j}, v{w + j + 1}')
        a(f'ds_write_b128 v160, v[{tc}:{tc + 3}] offset:{32 + 1024 * i + 1 * GS}')
    lds_inc(20)
    a(f'v_add_u32 v239, {L_W}, v2')
    a('v_and_b32 v244, 1, v5')
    a('v_lshl_add_u32 v244, v244, 1, v11')
    a('v_lshlrev_b32 v244, 4, v244')
    a('s_lshl_b32 s60, s13, 6')
    a(f's_add_u32 s60, s60, {L_ST}')
    a('v_add_u32 v244, s60, v244')
    a('s_waitcnt lgkmcnt(0)')
    for p in range(4):
        a(f'v_mov_b32 v{YR[0] + 4 * p}, -1')
    a('s_lshl_b32 s60, s13, 5')
    a(f's_add_u32 s60, s60, {L_X}')
    a('v_mov_b32 v201, s60')
    a(f'v_mul_u32_u24 v203, {RP}, v4')
    a('v_lshl_add_u32 v203, v5, 5, v203')
    a(f's_mul_i32 s60, s13, {16 * RP}')
    a('v_add_u32 v203, s60, v203')
    a(f'v_mul_u32_u24 v205, {RP}, v5')
    a('v_lshl_add_u32 v205, v4, 4, v205')
    a(f's_mul_i32 s60, s13, {4 * RP}')
    a('v_add_u32 v205, s60, v205')
    stamp('gdone')
    a('p0:')
    a(f's_waitcnt vmcnt({5 + XV})')
    for jj in range(2):
        unpack(WFp + 0 + jj, WFp + 2 + jj, SKR + 2 * jj)
        unpack(WFp + 4 + jj, WFp + 6 + jj, SKR + 2 * jj + 1)
    a(f's_waitcnt vmcnt({2 + XV})')
    stamp('kdata')
    for r in range(0, 8, 2):
        a(f'ds_read2_b32 v[{KR + r}:{KR + r + 1}], v92 offset0:{32 * r} offset1:{32 * r + 32}')
    a(f'ds_read2_b32 v[{KR + 8}:{KR + 9}], v93 offset0:0 offset1:32')
    a(f'ds_read_b32 v{KR + 10}, v93 offset:256')
    a(f's_waitcnt vmcnt({0 + XV})')
    for r in range(0, 8, 2):
        a(f'ds_read2_b32 v[{VR + r}:{VR + r + 1}], v94 offset0:{32 * r} offset1:{32 * r + 32}')
    for r in range(11):
        if r % 2 == 0:
            a(f's_waitcnt lgkmcnt({9 - r // 2})')
        unpack(KF + 2 * r, KF + 2 * r + 1, KR + r)
    for t in range(4):
        tap = 3 - t
        for r in range(8):
            if t == 0:
                pk('mul', O + 2 * r, KF + 2 * (r + t), WFp + 2 * tap)
            else:
                pk('fma', O + 2 * r, KF + 2 * (r + t), WFp + 2 * tap, O + 2 * r)
    a('s_waitcnt lgkmcnt(0)')
    for r in range(8):
        unpack(KF + 2 * r, KF + 2 * r + 1, VR + r)
    for r in range(8):
        pk('mul', O + 2 * r, O + 2 * r, KF + 2 * r)
    for jj in range(2):
        d = PKD + 2 + 4 * jj
        for m in range(4):
            a(f'v_cvt_pk_bf16_f32 v{d + m}, v{O + 2 * (7 - 2 * m) + jj}, v{O + 2 * (6 - 2 * m) + jj}')
        a(f'ds_write_b128 v8, v[{d}:{d + 3}] offset:{32 * jj}')
    a('s_waitcnt lgkmcnt(0)')
    if opt('hhold', 0):
        a('s_cmp_eq_u32 s14, 0')
        a('s_cbranch_scc1 hh_go')
        lds_spin('hh', 32, opt('hhold', 0), 3)
    a('ds_read_b128 v[16:19], v9')
    a(f'ds_read_b128 v[20:23], v9 offset:{8 * 144}')
    a('s_waitcnt lgkmcnt(1)')
    a(f'buffer_store_dwordx4 v[16:19], v6, {KVR}, s62 offen sc1')
    a('s_waitcnt lgkmcnt(0)')
    a(f'buffer_store_dwordx4 v[20:23], v6, {KVR}, s63 offen sc1')
    stamp('kvst')
    if opt('hipos', 0) == 8:
        lds_inc(32)
    UP = 120
    a('s_waitcnt vmcnt(0)')
    stamp('kvack')
    a('s_mov_b64 exec, 1')
    a(f'buffer_store_dword v13, v14, {WSR}, s10 offen')
    FL2 = opt('fl2', 1)
    if not FL2:
        a(f'buffer_store_dword v13, v14, {WSR}, s65 offen sc1')
    EX, EF = opt('ex', 0), opt('ef', 0)
    GW, XH = 64, 68

    def gu_base():
        a('s_and_b32 s76, s3, 15')
        a('s_lshl_b32 s77, s76, 2')
        a('s_add_u32 s77, s77, s13')
        a(f's_mul_i32 s77, s77, {16 * 7168}')
        a('s_lshr_b32 s60, s3, 4')
        a('s_lshl_b32 s60, s60, 10')
        a('s_add_u32 s77, s77, s60')
    steps = []
    for i in range(16):
        for m, sr in ((0, S_G), (1, S_U)):
            r = GW + 64 * m + 4 * i
            steps.append([f'buffer_load_dwordx4 v[{r}:{r + 3}], v2, s[{sr}:{sr + 3}], s77 offen nt'])
        steps[-1].append('s_add_u32 s77, s77, 7168')

    def x_load(i):
        a(f'buffer_load_dwordx4 v[{XH + 4 * i}:{XH + 4 * i + 3}], v2, s[{S_Q}:{S_Q + 3}], s{69 + (i >> 2)} offen offset:{1024 * (i & 3)} nt')
    if EX or EF:
        a('s_mov_b64 exec, -1')
        a('s_cmp_eq_u32 s14, 0')
        a('s_cbranch_scc1 early_done')
        gu_base()
        a('s_add_u32 s70, s69, 4096')
        lds_spin('eh', 32, 4, 3)
        a('s_bitcmp0_b32 s2, 0')
        a('s_cbranch_scc0 early_ffn')
        for i in range(EX):
            x_load(i)
        a('s_branch early_done')
        a('early_ffn:')
        a('s_cmp_lt_u32 s3, 112')
        a('s_cbranch_scc0 early_done')
        for k in range(EF):
            for l in steps[k]:
                a(l)
        a('early_done:')
    a('s_mov_b64 exec, 0xffff')
    a('s_mov_b32 s61, 0')
    a('fa2_again:')
    a(f'buffer_load_dword v246, v245, {WSR}, s11 offen sc1')
    a('s_add_u32 s61, s61, 1')
    a('s_waitcnt vmcnt(0)')
    a('v_cmp_ne_u32 vcc, s8, v246')
    a('s_cbranch_vccz fa_ok')
    a('s_mov_b64 exec, vcc')
    if opt('fa2sleep', 0):
        a(f's_sleep {opt("fa2sleep", 0)}')
    a(f's_cmp_lt_u32 s61, {DUAL}')
    a('s_cbranch_scc1 fa2_again')
    if FL2:
        a(f'buffer_store_dword v13, v14, {WSR}, s65 offen sc1')
    retry_loop('fa', [f'buffer_load_dword v246, v245, {WSR}, s64 offen sc1'], lambda: a('v_cmp_ne_u32 vcc, s8, v246'), sleep=opt('fasleep', 1))
    stamp('faok')
    for q in range(2):
        a(f'buffer_load_dwordx4 v[{UP + 4 * q}:{UP + 4 * q + 3}], v2, {KVR}, s78 offen offset:{1024 * q}{KVL}')
    if FL2:
        a('s_mov_b64 exec, 1')
        a(f'buffer_store_dword v13, v14, {WSR}, s65 offen sc1')
        a('s_mov_b64 exec, -1')
    a('s_cmp_eq_u32 s14, 0')
    a('s_cbranch_scc0 helper')

    ACC = 16
    FA_ = [48, 196]
    FB_ = [80, 112]

    def readsA(s, c):
        out = []
        for j in range(8):
            out.append(f'ds_read_b64 v[{s + 4 * j}:{s + 4 * j + 1}], v161 offset:{64 * (8 * j + c)}')
            out.append(f'ds_read_b64 v[{s + 4 * j + 2}:{s + 4 * j + 3}], v161 offset:{64 * (8 * j + c) + 8}')
        return out

    def readsB(s, c):
        return [f'ds_read_b128 v[{s + 4 * z}:{s + 4 * z + 3}], v162 offset:{64 * (56 - (8 * z - c))}' for z in range(8)]

    def y_fill():
        a(YB)
        for q in range(4):
            a(f'buffer_store_dwordx4 v[240:243], v238, {XBR}, s62 offen sc1')
            if q < 3:
                a('s_add_u32 s62, s62, 0x100000')

    if opt('hhold', 0) or EX or EF:
        lds_inc(32)
    lds_spin('g4', 20, 4, 153)
    for r in readsA(FA_[0], 0):
        a(r)
    for q in range(2):
        a(f's_waitcnt vmcnt({1 - q + FL2})')
        a(f'ds_write_b128 v165, v[{UP + 4 * q}:{UP + 4 * q + 3}] offset:{256 - 256 * q}')
    lds_inc(12)
    stamp('u0')
    if FILLBY == 1 and opt('fst', -1) < 0:
        y_fill()
    lds_spin('u4', 12, 4, 153)
    stamp('mf0')
    for r in readsB(FB_[0], 0)[:4]:
        a(r)

    def mfma(w, A, B, init=False):
        c = '0' if init else f'v[{ACC + 4 * w}:{ACC + 4 * w + 3}]'
        a(f'v_mfma_f32_16x16x32_bf16 v[{ACC + 4 * w}:{ACC + 4 * w + 3}], v[{A}:{A + 3}], v[{B}:{B + 3}], {c}')

    def ystage(w):
        E = 172 + 2 * (w & 3)
        return [f'v_cvt_pk_bf16_f32 v{E}, v{ACC + 4 * w}, v{ACC + 4 * w + 1}',
                f'v_cvt_pk_bf16_f32 v{E + 1}, v{ACC + 4 * w + 2}, v{ACC + 4 * w + 3}',
                f'ds_write_b64 v163, v[{E}:{E + 1}] offset:{512 * w}']

    gsetup = ['v_lshlrev_b32 v180, 2, v0', f'v_add_u32 v180, {L_YL}, v180', 'v_add_u32 v181, 0x2000, v180',
              YB, 's_add_u32 s63, s62, 0x100000', 's_add_u32 s64, s62, 0x200000', 's_add_u32 s65, s62, 0x300000',
              's_lshl_b32 s6, s12, 10', f's_add_u32 s6, s6, {WS_FB}',
              's_bitcmp0_b32 s2, 0', 's_cselect_b32 s66, s69, 0x40000000', 's_cselect_b32 s70, 0, 0x40000000', 's_cselect_b32 s71, s6, 0x40000000']
    WR2 = 152

    def gather(p0_, sregs, GR, GP):
        rd, out = [], []
        for p in range(2):
            g = GR + 4 * p
            for hf in range(2):
                rd.append(f'ds_read2st64_b32 v[{g + 2 * hf}:{g + 2 * hf + 1}], v{180 + hf} offset0:{4 * (p0_ + p)} offset1:{16 + 4 * (p0_ + p)}')
            out.append(f'buffer_store_dwordx4 v[{g}:{g + 3}], v238, {XBR}, s{sregs[p]} offen sc1')
        return rd, out

    fbload = f'buffer_load_dword v249, v248, {WSR}, s6 offen sc1'
    PY = YR[0]
    YM = 16

    GM = 48

    def y_setup(regs=True):
        for p in range(4):
            a(f's_mov_b64 s[{YM + 2 * p}:{YM + 2 * p + 1}], -1')
            if regs:
                a(f'v_mov_b32 v{PY + 4 * p}, -1')
        a(f's_xor_b32 s24, s3, {RSW}')
        a('s_lshl_b32 s24, s24, 15')
        for p in range(1, 4):
            a(f's_add_u32 s{24 + p}, s24, {8192 * p}')
        a('s_mov_b64 s[0:1], -1')

    def fb_check():
        lab = a.newlabel('fbk')
        a('s_cmp_eq_u32 s0, 0')
        a(f's_cbranch_scc1 {lab}')
        a('v_cmp_ne_u32 s[0:1], s8, v249')
        for p in range(4):
            a(f's_lshr_b32 s9, s0, {8 * p}')
            a(f'v_and_b32 v250, s9, v{VBIT}')
            a(f'v_cmp_eq_u32 s[{GM + 2 * p}:{GM + 2 * p + 1}], 0, v250')
        a(f'{lab}:')

    def y_issue():
        lab = a.newlabel('yf')
        a('s_mov_b32 exec_lo, s0')
        a('s_mov_b32 exec_hi, 0')
        a(f's_cbranch_execz {lab}')
        a(fbload)
        a(f'{lab}:')
        for p in range(4):
            lab = a.newlabel('yi')
            a(f's_and_b64 exec, s[{YM + 2 * p}:{YM + 2 * p + 1}], s[{GM + 2 * p}:{GM + 2 * p + 1}]')
            a(f's_cbranch_execz {lab}')
            a(f'buffer_load_dwordx4 v[{PY + 4 * p}:{PY + 4 * p + 3}], v251, {XBR}, s{24 + p} offen sc1')
            a(f'{lab}:')
        a('s_mov_b64 exec, -1')

    def y_check():
        a('s_waitcnt vmcnt(0)')
        fb_check()
        for p in range(4):
            a(f'v_max3_u32 v250, v{PY + 4 * p}, v{PY + 4 * p + 1}, v{PY + 4 * p + 2}')
            a(f'v_max_u32 v250, v250, v{PY + 4 * p + 3}')
            a(f'v_cmp_eq_u32 s[{YM + 2 * p}:{YM + 2 * p + 1}], -1, v250')
        a(f's_or_b64 s[28:29], s[{YM}:{YM + 1}], s[{YM + 2}:{YM + 3}]')
        a(f's_or_b64 s[30:31], s[{YM + 4}:{YM + 5}], s[{YM + 6}:{YM + 7}]')
        a('s_or_b64 s[28:29], s[28:29], s[30:31]')

    AC = [116, 122]
    ST = [128, 132]
    TY = 68

    def prep_a():
        lds_spin(a.newlabel('xr'), 12, 8, 3)
        RX, RW = 76, 92
        for r in range(2):
            for p in range(4):
                a(f'ds_read_b64 v[{RX + 8 * r + 2 * p}:{RX + 8 * r + 2 * p + 1}], v{VXA} offset:{512 * p + RS * r}')
        for p in range(4):
            a(f'ds_read_b64 v[{RW + 2 * p}:{RW + 2 * p + 1}], v{VWA} offset:{512 * p}')
        for i in range(0, 12, 2):
            a(f'v_mov_b64 v[{AC[0] + i}:{AC[0] + i + 1}], 0')
        a('s_mov_b32 s72, 0')
        for r in range(2):
            a(f's_waitcnt lgkmcnt({8 - 4 * r})')
            for i in range(8):
                unpack(XP[r] + 2 * i, XP[r] + 2 * i + 1, RX + 8 * r + i)
        a('s_waitcnt lgkmcnt(0)')
        for i in range(8):
            unpack(WF + 2 * i, WF + 2 * i + 1, RW + i)

    def prep_b():
        lds_spin(a.newlabel('xs'), 28, 4, 3)
        for r in range(2):
            a(f'ds_read_b128 v[{ST[r]}:{ST[r] + 3}], v{VSA} offset:{16 * r}')
        a(f'ds_read_b32 v3, v{VC} offset:{L_SW - L_CNT}')
        for r in range(2):
            a(f's_waitcnt lgkmcnt({2 - r})')
            for i in range(8):
                pk('fma', N[r] + 2 * i, XP[r] + 2 * i, ST[r] + 2, ST[r])
        a('s_waitcnt lgkmcnt(0)')
        a('v_readfirstlane_b32 s71, v3')
        stamp('lnx')

    def y_fold():
        for p in range(4):
            lab = a.newlabel('yd')
            a(f's_bitcmp1_b32 s72, {p}')
            a(f's_cbranch_scc1 {lab}')
            a(f's_cmp_eq_u64 s[{YM + 2 * p}:{YM + 2 * p + 1}], 0')
            a(f's_cbranch_scc0 {lab}')
            a(f's_bitset1_b32 s72, {p}')
            for i in range(4):
                unpack(TY + i, TY + 4 + i, PY + 4 * p + i)
            for i in range(4):
                e = XP[i >> 1] + 4 * p + 2 * (i & 1)
                pk('fma', e, TY + 2 * i, N[i >> 1] + 4 * p + 2 * (i & 1), e)
            for k in range(2):
                for r in range(2):
                    e = XP[r] + 4 * p + 2 * k
                    pk('add', AC[r], AC[r], e)
                    pk('fma', AC[r] + 2, e, e, AC[r] + 2)
                    pk('fma', AC[r] + 4, e, WF + 4 * p + 2 * k, AC[r] + 4)
            a(f'{lab}:')

    def spread(pairs, low_first=False):
        out, left = [], list(pairs)
        if low_first:
            left.sort(key=lambda q: q[0])

        def feasible(rest, prev):
            cnt = {}
            for q in rest:
                cnt[q[0]] = cnt.get(q[0], 0) + 1
            n = len(rest)
            return all(c <= (n + 1) // 2 - (1 if (w == prev and n % 2 == 1) else 0) for w, c in cnt.items())
        while left:
            recent = [q[0] for q in out[-2:]]
            pick = None
            for avoid in (recent, recent[-1:]):
                for q in left:
                    if q[0] in avoid:
                        continue
                    rest = list(left)
                    rest.remove(q)
                    if feasible(rest, q[0]):
                        pick = q
                        break
                if pick:
                    break
            assert pick
            out.append(pick)
            left.remove(pick)
        return out

    assert YLO and FILLBY == 1 and opt('fst', -1) < 0
    cnt = {'n': 0}
    mark = {}
    late_code = []

    def em(item):
        if isinstance(item, list):
            for q in item:
                em(q)
        elif isinstance(item, tuple):
            if item[0] == 'mark':
                mark[item[1]] = cnt['n']
            elif item[0] == 'wait':
                a(f's_waitcnt lgkmcnt({min(15, cnt["n"] - mark[item[1]])})')
            else:
                _, name, off, want = item
                a('v_readfirstlane_b32 s60, v164')
                a(f's_cmp_ge_u32 s60, {want}')
                a.raw(f'    s_cbranch_scc0 {name}_slow')
                a.raw(f'{name}_back:')
                late_code.append((name, off, want))
        else:
            a(item)
            if item.startswith('ds_'):
                cnt['n'] += 1

    def bufB(c):
        return FA_[(c >> 1) & 1] + 16 * (c & 1), FB_[(c >> 1) & 1] + 16 * (c & 1)

    def rdA(c):
        return readsA(bufB(c)[0], c)[:8]

    def rdB(c):
        return readsB(bufB(c)[1] - 16, c)[4:]

    def one_lane(*ins):
        return ['s_mov_b64 exec, 1'] + list(ins) + ['s_mov_b64 exec, -1']

    rlo, olo = gather(0, (62, 63), 184, 144)
    mark['s0'] = 0
    seen = set()
    prev = None
    for st in range(16):
        em(('wait', f's{st}'))
        stamp(f'st{st}')
        slots = {}

        def put(items, first, per):
            for k, it in enumerate(items):
                slots.setdefault(first + k // per, []).append(it)
        if st < 8:
            sa, sb = FA_[st & 1], FB_[st & 1]
            pairs = [(n + z, sa + 4 * n, sb + 4 * z) for n in range(8) for z in range(min(4, 8 - n))]
            if st == 0:
                pairs = [(z, 168, sb + 4 * z) for z in range(4)] + pairs
            order = spread(pairs, st == 7)
        else:
            c = st - 8
            sa, sb = bufB(c)
            byw = {w: [(w, sa + 4 * n, sb + 4 * (w - n - 4)) for n in range(w - 3)] for w in range(4, 8)}
            seq = [7, 4, 7, 5, 6, 5, 7, 6, 7, 6]
            if c == 0:
                for z in range(4, 8):
                    byw[z].append((z, 168, sb + 4 * (z - 4)))
                seq = [4, 7, 5, 6] + seq
            order = [byw[w].pop() for w in seq]
        if st < 7:
            nx = FA_[(st + 1) & 1], FB_[(st + 1) & 1]
            rd = readsB(nx[1], st + 1)[:4] + readsA(nx[0], st + 1)
            rd[-1] = [rd[-1], ('mark', f's{st + 1}')]
            put(rd, 0, 1)
        if st == 0:
            put(gsetup[:9], 20, 2)
            put([gsetup[9:]], 27, 1)
        if st == FLC:
            put([['s_waitcnt vmcnt(0)'] + one_lane(f'buffer_store_dword v13, v14, {WSR}, s7 offen sc1')], 22, 1)
        if st == 7:
            put([[f'ds_read_b32 v164, v{VC} offset:0', ('mark', 'uc')]] + rdA(0) + rdA(1), 0, 2)
            put([[('wait', 'uc'), ('check', 'uhi', 0, 4)]], 9, 1)
            b0, b1 = rdB(0), rdB(1)
            b0[-1] = [b0[-1], ('mark', 's8')]
            b1[-1] = [b1[-1], ('mark', 's9')]
            put(b0 + b1, 10, 2)
            put(ystage(0) + ystage(1) + ystage(2), 14, 1)
            put(ystage(3), 23, 1)
        if 8 <= st < 14:
            rd = rdB(st - 6) + rdA(st - 6)
            rd[-1] = [rd[-1], ('mark', f's{st + 2}')]
            put(rd[:4], 1, 2)
            put(rd[4:], 2 if st > 8 else 3, 1)
        YG = opt('yg', 10)
        if st == 8:
            put([one_lane(f'ds_add_u32 v{VC}, v{V1} offset:20')], 0, 1)
        if st == YG - 1:
            put([[f'ds_read_b32 v164, v{VC} offset:20', ('mark', 'yc')]], 4, 1)
        if st == YG:
            put([[('wait', 'yc'), ('check', 'ylo', 20, 8)]], 0, 1)
            rl = list(rlo)
            rl[-1] = [rl[-1], ('mark', 'yg')]
            put(rl, 3, 1)
        if st == YG + 1:
            put([[('wait', 'yg'), olo[0]], olo[1]], 2, 1)
        if st == FBC:
            put([f'ds_write_b32 v{VC}, v{V1} offset:24'], 0, 1)
        if st == opt('fbc2', 14):
            put([fbload.replace('s6 ', 's71 ')], 0, 1)
        assert max(slots, default=0) < len(order), (st, max(slots), len(order))
        for i, (w, A, B) in enumerate(order):
            assert w != prev
            prev = w
            mfma(w, A, B, w not in seen)
            seen.add(w)
            for it in slots.get(i, []):
                em(it)
            if opt('mslack', 0) and i % opt('mslack', 0) == opt('mslack', 0) - 1 and opt('ms0', 0) <= st < opt('ms1', 16):
                a(f's_nop {opt("mnop", 5)}')
    for w in (4, 5, 7, 6):
        for l in ystage(w):
            a(l)
    stamp('s1end')
    if opt('cprio', 1):
        a('s_setprio 2')
    lds_inc(8)
    lds_spin('c2', 8, 4, 166)
    if GXL and DWHO:
        a('s_and_b32 s60, s2, 1')
        a('s_cmp_lt_u32 s3, 112')
        a('s_cselect_b32 s60, s60, 0')
        a('s_cmp_eq_u32 s60, 0')
        a('s_cbranch_scc1 ib_go')
        lds_spin('ib', 28, 4, 166)
    (r0, o0), (r1, o1) = gather(0, (62, 63), 184, 196), gather(2, (64, 65), 164, 204)
    if YLO:
        tail = r1 + ['s_waitcnt lgkmcnt(2)', o1[0], 's_waitcnt lgkmcnt(0)', o1[1]]
    else:
        tail = r0 + r1 + ['s_waitcnt lgkmcnt(4)'] + o0 + ['s_waitcnt lgkmcnt(0)'] + o1
    for l in tail:
        a(l)
    stamp('yst')
    if opt('cprio', 1):
        a('s_setprio 0')
    lds_inc(8)
    a('s_bitcmp0_b32 s2, 0')
    a('s_cbranch_scc0 conv_ffn')
    a('s_waitcnt vmcnt(2)')
    y_setup()
    fb_check()
    YF = opt('yfirst', 0)
    if YF:
        a('s_cmp_lt_u32 s3, 64')
        a('s_cbranch_scc0 yf_skip')
    y_issue()
    a('yf_skip:')
    prep_a()
    prep_b()
    a('s_branch rows')
    for name, off, want in late_code:
        a(f'{name}_slow:')
        a('s_nop 7')
        lds_spin(name, off, want, 164)
        a(f's_branch {name}_back')

    a('helper:')
    for q in range(2):
        a(f's_waitcnt vmcnt({1 - q + FL2})')
        a(f'ds_write_b128 v165, v[{UP + 4 * q}:{UP + 4 * q + 3}] offset:{256 - 256 * q}')
    lds_inc(0)
    stamp('u0')
    if FILLBY == 0:
        lds_spin('uw', UWOFF, 4, 28)
        y_fill()

    def fb_publish():
        if FILLBY:
            return
        a('s_mov_b64 exec, 1')
        a(f'ds_add_rtn_u32 v12, v{VC}, v{V1} offset:4')
        a(f'ds_add_u32 v{VC}, v{V1} offset:8')
        a('s_waitcnt lgkmcnt(0)')
        a('v_cmp_eq_u32 vcc, 3, v12')
        a('v_cndmask_b32 v14, -16, v14, vcc')
        a(f'buffer_store_dword v13, v14, {WSR}, s7 offen sc1')
        a('s_mov_b64 exec, -1')
        stamp('fillB')
    if FILLBY:
        lds_spin('uw', UWOFF, 4, 28)
    a(f's_lshl_b32 s61, s3, {SH}')
    a('s_bitcmp0_b32 s2, 0')
    a('s_cbranch_scc0 helper_ffn')
    a(f's_add_u32 s62, s61, {WS_CAND}')
    a(f's_add_u32 s63, s61, {WS_PART}')
    a(f's_add_u32 s79, s61, {WS_GX}')
    DW = 156
    DSP = opt('dsp', 1)

    def d_base():
        if DSP:
            a('s_lshr_b32 s78, s3, 4')
            a('s_lshl_b32 s78, s78, 20')
            a('s_and_b32 s60, s3, 15')
            a('s_lshl_b32 s60, s60, 14')
            a('s_add_u32 s78, s78, s60')
        else:
            a('s_lshl_b32 s78, s3, 16')

    def d_list(DW):
        return [[f'buffer_load_dwordx2 v[{DW + 2 * r}:{DW + 2 * r + 1}], v253, s[{S_D}:{S_D + 3}], s78 offen offset:{(r & 1) * 2048} nt']
                + ([f's_add_u32 s78, s78, {4096 + (262144 - 16384 if DSP and r % 8 == 7 else 0)}'] if r & 1 else []) for r in range(32)]
    d_base()
    dl = d_list(DW)
    XH, WH = 68, 100
    stamp('xiss')
    a('s_add_u32 s70, s69, 4096')
    for i in range(EX, 8):
        x_load(i)
        if opt('xdepth', 0) and i >= opt('xdepth', 0) - 1:
            a(f's_waitcnt vmcnt({opt("xdepth", 0) - 1})')
    for i in range(2):
        a(f'buffer_load_dwordx4 v[{WH + 4 * i}:{WH + 4 * i + 3}], v2, s[{S_WR}:{S_WR + 3}], 0 offen offset:{1024 * i}')
    if not FILLBY:
        a('s_waitcnt vmcnt(10)')
        fb_publish()
    if opt('reuse', 0):
        assert not DWHO
        lds_spin('ru0', 0, 4, 3)
        lds_spin('ru1', 12, 4, 3)
    a(f'buffer_store_dwordx4 v[240:243], v237, {WSR}, s62 offen sc1')
    a(f'buffer_store_dwordx4 v[240:243], v237, {WSR}, s63 offen sc1')
    a(f'buffer_store_dwordx4 v[240:243], v237, {WSR}, s79 offen sc1')
    NL = 3 + (0 if FILLBY else 1)
    if GXL and not DWHO:
        a(f's_add_u32 s60, s79, {WS_GX2 - WS_GX}')
        a(f'buffer_store_dwordx4 v[240:243], v237, {WSR}, s60 offen')
        NL += 1
    a('s_mov_b32 s72, 0x3f803f80')
    a('s_mov_b32 s73, 0x3a800000')
    a('s_lshl_b32 s6, s12, 10')
    a(f's_add_u32 s6, s6, {WS_FB}')
    y_setup(False)
    XLATE = opt('xlate', 1)

    def x_to_lds(waits):
        for r in range(4):
            if waits:
                a(f's_waitcnt vmcnt({NL + 2 + 6 - 2 * r})')
            for hf in range(2):
                a(f'ds_write_b128 v{VRA}, v[{XH + 8 * r + 4 * hf}:{XH + 8 * r + 4 * hf + 3}] offset:{RS * r + 1024 * hf}')
        if waits:
            a(f's_waitcnt vmcnt({NL})')
        for hf in range(2):
            a(f'ds_write_b128 v239, v[{WH + 4 * hf}:{WH + 4 * hf + 3}] offset:{1024 * hf}')
        lds_inc(12)
    if not XLATE:
        lds_spin('cp0', 12, 4, 28)
        x_to_lds(True)
    elif opt('dafterx', 1):
        a(f's_waitcnt vmcnt({NL})')
    stamp('xarr')
    S1, S2, SW = 36, 40, 44

    def stats_a():
        for i in range(8):
            for r in range(4):
                x = XH + 8 * r + i
                a(f'v_dot2_f32_bf16 v{S1 + r}, v{x}, s72, {"0" if i == 0 else "v%d" % (S1 + r)}')
                a(f'v_dot2_f32_bf16 v{S2 + r}, v{x}, v{x}, {"0" if i == 0 else "v%d" % (S2 + r)}')
            a(f'v_dot2_f32_bf16 v{SW}, v{WH + i}, s72, {"0" if i == 0 else "v%d" % SW}')
    def stats_b():
        for b in (S1, S2):
            a(f'v_permlane32_swap_b32 v{b}, v{b + 1}')
            a(f'v_permlane32_swap_b32 v{b + 2}, v{b + 3}')
        for b in (S1, S2):
            a(f'v_add_f32 v{b}, v{b}, v{b + 1}')
            a(f'v_add_f32 v{b + 2}, v{b + 2}, v{b + 3}')
        for b in (S1, S2):
            a(f'v_permlane16_swap_b32 v{b}, v{b + 2}')
        for b in (S1, S2):
            a(f'v_add_f32 v{b}, v{b}, v{b + 2}')
        for sh in (1, 2, 4, 8):
            for v in (S1, S2, SW):
                a(f'v_add_f32_dpp v{v}, v{v}, v{v} row_shr:{sh} row_mask:0xf bank_mask:0xf bound_ctrl:0')
        a(f'v_add_f32_dpp v{SW}, v{SW}, v{SW} row_bcast:15 row_mask:0xa bank_mask:0xf')
        a(f'v_mul_f32 v{S1}, s73, v{S1}')
        a(f'v_add_f32_dpp v{SW}, v{SW}, v{SW} row_bcast:31 row_mask:0xc bank_mask:0xf')
        a(f'v_mul_f32 v{S1 + 1}, v{S1}, v{S1}')
        a(f'v_fma_f32 v{S2}, v{S2}, s73, -v{S1 + 1}')
        a(f'v_max_f32 v{S2}, 0, v{S2}')
        rnd(S1, S1)
        rnd(S2, S2)
        a(f'v_add_f32 v{S2}, 0x3727c5ac, v{S2}')
        rnd(S2, S2)
        a(f'v_sqrt_f32 v{S2}, v{S2}')
        rnd(S2, S2)
        a(f'v_rcp_f32 v50, v{S2}')
        a(f'v_rcp_f32 v51, v{S2}')
        a(f'v_mul_f32 v48, -v{S1}, v50')
        a(f'v_mul_f32 v49, -v{S1}, v50')
        a('s_mov_b32 exec_lo, 0x80008000')
        a('s_mov_b32 exec_hi, 0x80008000')
        a('ds_write_b128 v244, v[48:51]')
        a('s_mov_b32 exec_lo, 0')
        a('s_mov_b32 exec_hi, 0x80000000')
        a(f'ds_write_b32 v{VC}, v{SW} offset:{L_SW - L_CNT}')
        lds_inc(28)
    STMF = opt('stmf', 0)
    if STMF:
        if opt('hprio', 3):
            a(f's_setprio {opt("hprio", 3)}')
        stats_a()
        if STMF == 2:
            stats_b()
        a('s_setprio 0')
        stamp('stdone')
    lds_spin('late', 24, 1, 3, sleep=LSLEEP)
    a(fbload)
    if DYN:
        a('s_memrealtime s[60:61]')
        a('s_waitcnt lgkmcnt(0)')
        a('s_sub_u32 s60, s60, s4')
        a(f's_cmp_lt_u32 s60, {DYN}')
        a('s_cselect_b32 s5, 1, 0')
        a('s_cbranch_scc1 d_early')
        a('s_waitcnt vmcnt(0)')
        a('s_branch d_early_done')
        a('d_early:')
    for r in range(DEARLY):
        for l in dl[r]:
            a(l)
    stamp('dearly')
    assert opt('dafterx', 1)
    a('d_early_done:')
    stamp('fbarr')
    STE = opt('stearly', 2)
    lds_spin('mf1', 8, 4, 3)
    stamp('mf1')
    if opt('sprio', 1):
        a(f's_setprio {opt("sprio", 1)}')
    if XLATE:
        x_to_lds(False)
    if STE and not STMF:
        stats_a()
    if STE < 2:
        a(f's_waitcnt vmcnt({DEARLY})')
        fb_check()
        lds_spin('mf', 8, opt('mfcnt', 8), 3)
        y_issue()
    if not STE:
        stats_a()
    if STMF < 2:
        stats_b()
    stamp('pre')
    if opt('sprio', 1):
        a('s_setprio 0')
    if STE == 2:
        a(f's_waitcnt vmcnt({DEARLY})')
        fb_check()
        lds_spin('mf', 8, opt('mfcnt', 8), 3)
        if YF:
            a('s_cmp_lt_u32 s3, 64')
            a('s_cbranch_scc0 yf_skip2')
        y_issue()
        a('yf_skip2:')
    prep_a()
    prep_b()

    a('rows:')
    if YF > 1:
        a('s_cmp_lt_u32 s3, 64')
        a('s_cbranch_scc1 yf_skip3')
        a(f's_sleep {YF}')
        a('yf_skip3:')
    a('s_mov_b32 s61, 0')
    a('py_top:')
    y_check()
    a('s_cbranch_scc0 py_ok')
    a('s_add_u32 s61, s61, 1')
    a(f's_cmp_ge_u32 s61, {POLL_MAX}')
    a('s_cbranch_scc1 py_give')
    if YSLEEP:
        a(f's_sleep {YSLEEP}')
    y_issue()
    y_fold()
    a('s_branch py_top')
    a('py_give:')
    for p in range(4):
        a(f's_mov_b64 s[{YM + 2 * p}:{YM + 2 * p + 1}], 0')
    a('py_ok:')
    stamp('ypoll')
    y_fold()
    H = XP
    a('s_mov_b32 s73, 0x3a800000')
    Q = TY
    for r in range(2):
        for k in range(3):
            d = Q + k if r == 0 else Q + 4 + k
            a(f'v_add_f32 v{d}, v{AC[r] + 2 * k}, v{AC[r] + 2 * k + 1}')
    for k in range(3):
        a(f'v_permlane32_swap_b32 v{Q + k}, v{Q + 4 + k}')
    for k in range(3):
        a(f'v_add_f32 v{Q + k}, v{Q + k}, v{Q + 4 + k}')
    for k in range(3):
        a(f'v_add_f32_dpp v{Q + k}, v{Q + k}, v{Q + k} row_ror:8 row_mask:0xf bank_mask:0xf')
    a('s_mov_b32 exec_lo, 0x00ff00ff')
    a('s_mov_b32 exec_hi, 0x00ff00ff')
    a(f'ds_write_b128 v{VPW}, v[{Q}:{Q + 3}]')
    a('s_mov_b64 exec, -1')
    a('s_lshl_b32 s60, s3, 7')
    a(f's_add_u32 s60, s60, {WS_KEYS}')
    a('s_cmp_eq_u32 s12, 0')
    a('s_cselect_b32 s60, s60, 0x40000000')
    if opt('prio', 1):
        a('s_cbranch_scc0 no_prio')
        a('s_setprio 3')
        a('no_prio:')
    a('s_waitcnt lgkmcnt(0)')
    a('s_barrier')
    R = 76
    for i in range(4):
        a(f'ds_read_b128 v[{R + 4 * i}:{R + 4 * i + 3}], v{VPR} offset:{16 * i}')
    stamp('bar2')
    A = AC[0]
    a(f'v_mov_b32 v{A + 7}, s8')
    a(f'v_mov_b32 v{A + 5}, 0')
    a('s_waitcnt lgkmcnt(2)')
    pk('add', R, R, R + 4)
    a(f'v_add_f32 v{R + 2}, v{R + 2}, v{R + 6}')
    a('s_waitcnt lgkmcnt(0)')
    pk('add', R + 8, R + 8, R + 12)
    a(f'v_add_f32 v{R + 10}, v{R + 10}, v{R + 14}')
    pk('add', R, R, R + 8)
    a(f'v_add_f32 v{R + 2}, v{R + 2}, v{R + 10}')
    for sw in ('v_permlane32_swap_b32', 'v_permlane16_swap_b32'):
        for k in range(3):
            a(f'v_mov_b32 v{R + 4 + k}, v{R + k}')
        for k in range(3):
            a(f'{sw} v{R + k}, v{R + 4 + k}')
        pk('add', R, R, R + 4)
        a(f'v_add_f32 v{R + 2}, v{R + 2}, v{R + 6}')
    M, V = R + 8, R + 9
    a(f'v_mul_f32 v{R}, s73, v{R}')
    a(f'v_mul_f32 v{R + 3}, v{R}, v{R}')
    a(f'v_fma_f32 v{V}, v{R + 1}, s73, -v{R + 3}')
    rnd(M, R)
    a(f'v_max_f32 v{V}, 0, v{V}')
    rnd(V, V)
    a(f'v_fma_f32 v{R + 2}, -v{M}, s71, v{R + 2}')
    a(f'v_add_f32 v{V}, 0x3727c5ac, v{V}')
    rnd(V, V)
    a(f'v_sqrt_f32 v{V}, v{V}')
    rnd(V, V)
    a(f'v_rcp_f32 v{V}, v{V}')
    a(f'v_mul_f32 v{R + 2}, v{R + 2}, v{V}')
    rnd(R + 2, R + 2)
    a(f'v_ashrrev_i32 v{R + 3}, 31, v{R + 2}')
    a(f'v_and_b32 v{R + 3}, 0x7fff0000, v{R + 3}')
    a(f'v_xor_b32 v{R + 2}, 0x80000000, v{R + 2}')
    a(f'v_xor_b32 v{R + 2}, v{R + 2}, v{R + 3}')
    a(f'v_or_b32 v{A + 6}, v{R + 2}, v{VKL}')
    for sh in (1, 2, 4, 8):
        a(f'v_max_u32_dpp v{A + 6}, v{A + 6}, v{A + 6} row_ror:{sh} row_mask:0xf bank_mask:0xf')
    if opt('diag', 0):
        a('s_mov_b64 exec, 1')
        a(f'v_mov_b32 v{R + 4}, s80')
        a(f'v_mov_b32 v{R + 5}, s82')
        a(f'buffer_store_dwordx2 v[{R + 4}:{R + 5}], v{A + 5}, {WSR}, s60 offen offset:8 sc1')
    a('s_mov_b64 exec, 1')
    a(f'buffer_store_dwordx2 v[{A + 6}:{A + 7}], v{A + 5}, {WSR}, s60 offen sc1')
    a('s_mov_b64 exec, -1')
    stamp('key')
    if opt('prio', 1):
        a('s_setprio 0')
    a(f'v_readfirstlane_b32 s76, v{A + 6}')
    DMID = opt('dmid', 0)

    def down_loads(r0, r1):
        r1 = min(r1, 32)
        if r1 <= r0 or DWHO:
            return
        lab = a.newlabel('nodl')
        a('s_cmp_eq_u32 s14, 0')
        a(f's_cbranch_scc1 {lab}')
        for r in range(r0, r1):
            for l in dl[r]:
                a(l)
        a(f'{lab}:')
    if not DYN:
        down_loads(DEARLY, DEARLY + DMID)
    a(f'v_mov_b32 v{R + 4}, v{M}')
    a(f'v_mul_f32 v{M}, -v{M}, v{V}')
    HS = [R + 12, R + 16]
    a(f'v_mov_b32_dpp v{R + 11}, v{V} row_ror:8 row_mask:0xf bank_mask:0xf')
    a(f'v_mov_b32_dpp v{R + 10}, v{M} row_ror:8 row_mask:0xf bank_mask:0xf')
    a('s_mov_b32 vcc_lo, 0xff00ff00')
    a('s_mov_b32 vcc_hi, 0xff00ff00')
    for k in range(4):
        own, oth = M + (k >> 1), R + 10 + (k >> 1)
        a(f'v_cndmask_b32 v{HS[0] + k}, v{own}, v{oth}, vcc')
        a(f'v_cndmask_b32 v{HS[1] + k}, v{oth}, v{own}, vcc')
    a(f's_lshl_b32 s77, s3, {SH}')
    a(f's_add_u32 s77, s77, {WS_CAND}')
    a('s_not_b32 s64, s76')
    a('s_bfe_u32 s65, s64, 0x30001')
    a('s_mov_b32 s66, 0x01010101')
    a('s_lshl_b32 s66, s66, s65')
    a('s_mov_b32 s67, s66')
    OUTR = [124, 132]

    def cand_row(r):
        a('s_mov_b64 exec, s[66:67]')
        for i in range(8):
            pk('fma', N[0] + 2 * i, H[r] + 2 * i, HS[r] + 2, HS[r])
        for i in range(8):
            a(f'v_cvt_pk_bf16_f32 v{YR[0] + i}, v{N[0] + 2 * i}, v{N[0] + 2 * i + 1}')
        for p in range(4):
            a(f'buffer_store_dwordx2 v[{YR[0] + 2 * p}:{YR[0] + 2 * p + 1}], v{VG8}, {WSR}, s77 offen offset:{512 * p} sc1')
        for i in range(8):
            a(f'v_cvt_pk_bf16_f32 v{WF + i}, v{H[r] + 2 * i}, v{H[r] + 2 * i + 1}')

    a('s_bitcmp1_b32 s64, 0')
    a('s_cbranch_scc1 order10')
    cand_row(0)
    a('s_branch cand_done')
    a('order10:')
    cand_row(1)
    a('cand_done:')
    stamp('cand')
    for p in range(4):
        a(f'ds_write_b64 v{VG8}, v[{WF + 2 * p}:{WF + 2 * p + 1}] offset:{L_H + 512 * p}')
    a('s_mov_b64 exec, -1')
    assert not DYN
    D2 = DEARLY + DMID + opt('dmid2', 8)
    down_loads(DEARLY + DMID, D2)
    EXACT = opt('exact', 0)
    if EXACT == 2:
        down_loads(D2, 32)
        D2 = 32
        a(f'v_mov_b32_dpp v{R + 5}, v{R + 4} row_ror:8 row_mask:0xf bank_mask:0xf')
        a('s_mov_b32 vcc_lo, 0xff00ff00')
        a('s_mov_b32 vcc_hi, 0xff00ff00')
        for k in range(2):
            a(f'v_cndmask_b32 v{HS[0] + k}, v{R + 4}, v{R + 5}, vcc')
            a(f'v_cndmask_b32 v{HS[1] + k}, v{R + 5}, v{R + 4}, vcc')
    if not EXACT:
        for r in range(2):
            a(f'v_add_f32 v{HS[r] + 2}, 1.0, v{HS[r] + 2}')
            a(f'v_add_f32 v{HS[r] + 3}, 1.0, v{HS[r] + 3}')
    for r in range(2):
        if EXACT == 2:
            for i in range(16):
                rnd(H[r] + i, H[r] + i)
            for i in range(8):
                pk('add', N[0] + 2 * i, H[r] + 2 * i, HS[r], mods='neg_lo:[0,1] neg_hi:[0,1]')
            for i in range(16):
                rnd(N[0] + i, N[0] + i)
            for i in range(8):
                pk('mul', N[0] + 2 * i, N[0] + 2 * i, HS[r] + 2)
            for i in range(16):
                rnd(N[0] + i, N[0] + i)
            for i in range(8):
                pk('add', H[r] + 2 * i, H[r] + 2 * i, N[0] + 2 * i)
        elif EXACT:
            for i in range(16):
                rnd(H[r] + i, H[r] + i)
            for i in range(8):
                pk('fma', N[0] + 2 * i, H[r] + 2 * i, HS[r] + 2, HS[r])
            for i in range(16):
                rnd(N[0] + i, N[0] + i)
            for i in range(8):
                pk('add', H[r] + 2 * i, H[r] + 2 * i, N[0] + 2 * i)
        else:
            for i in range(8):
                pk('fma', H[r] + 2 * i, H[r] + 2 * i, HS[r] + 2, HS[r])
        for i in range(8):
            a(f'v_cvt_pk_bf16_f32 v{N[1] + 8 * r + i}, v{H[r] + 2 * i}, v{H[r] + 2 * i + 1}')
        for p in range(4):
            a(f'ds_write_b64 v{VXA}, v[{N[1] + 8 * r + 2 * p}:{N[1] + 8 * r + 2 * p + 1}] offset:{512 * p + RS * r}')
    lds_inc(28)
    a('s_cmp_eq_u32 s14, 0')
    a('s_cbranch_scc0 ffn2')
    a('s_and_b32 s64, s64, 15')
    a(f's_mul_i32 s60, s64, {RS}')
    a(f's_add_u32 s60, s60, {L_YT}')
    a('v_add_u32 v3, s60, v2')
    a(f's_xor_b32 s65, s3, {RSW}')
    a('s_lshl_b32 s65, s65, 4')
    a('s_add_u32 s64, s64, s65')
    a('s_lshl_b32 s65, s64, 11')
    lds_spin('o8', 28, 12, 68)
    a('s_cmp_eq_u32 s12, 0')
    a('s_cbranch_scc0 no_cand_h')
    for hf in range(2):
        a(f'ds_read_b128 v[{68 + 4 * hf}:{71 + 4 * hf}], v3 offset:{1024 * hf}')
    for hf in range(2):
        a(f'ds_read_b128 v[{WF + 4 * hf}:{WF + 4 * hf + 3}], v2 offset:{L_H + 1024 * hf}')
    for hf in range(2):
        a(f's_waitcnt lgkmcnt({3 - hf})')
        a(f'buffer_store_dwordx4 v[{68 + 4 * hf}:{71 + 4 * hf}], v2, {XBR}, s65 offen offset:{1024 * hf} sc1')
    a('s_waitcnt vmcnt(0) lgkmcnt(0)')
    a(f'buffer_store_dwordx4 v[{WF}:{WF + 3}], v2, {WSR}, s77 offen offset:2048 sc1')
    a(f'buffer_store_dwordx4 v[{WF + 4}:{WF + 7}], v2, {WSR}, s77 offen offset:3072 sc1')
    a('no_cand_h:')
    for i in range(8):
        a(f'ds_read_b128 v[{4 + 4 * i}:{7 + 4 * i}], v{VRA} offset:{RS * (i >> 1) + 1024 * (i & 1)}')
    OE, OM = opt('oearly', 0), opt('omid', 0)
    a('s_waitcnt lgkmcnt(0)')
    for r in range(4):
        if r == OE and OM and not DWHO:
            a('s_cmp_lt_u32 s3, 112')
            a('s_cbranch_scc0 dr_go')
            lds_spin('dr', 16, 4, 68)
        if r == OE + OM and not DWHO:
            a('s_cmp_lt_u32 s3, 112')
            a('s_cbranch_scc0 dp_go')
            lds_spin('dp', 16, 8, 68, sleep=2)
            if opt('osleep', 0):
                a(f's_sleep {opt("osleep", 0)}')
        a('s_cmp_eq_u32 s68, s64')
        a('s_cselect_b32 s60, 0x40000000, s69')
        for hf in range(2):
            i = 2 * r + hf
            a(f'buffer_store_dwordx4 v[{4 + 4 * i}:{7 + 4 * i}], v2, {XBR}, s60 offen offset:{1024 * hf} sc1')
        if r < 3:
            a('s_add_u32 s68, s68, 1')
            a('s_add_u32 s69, s69, 2048')
    a('s_branch main_fl')
    TT = 8

    def d_perm(DW, ps):
        for p in ps:
            for k in range(2):
                lo, hi = DW + 2 * (8 * (p >> 2) + (p & 3)) + k, DW + 2 * (8 * (p >> 2) + (p & 3) + 4) + k
                t = 48 + k
                a(f'v_perm_b32 v{t}, v{hi}, v{lo}, s74')
                a(f'v_perm_b32 v{hi}, v{hi}, v{lo}, s75')
                a(f'v_mov_b32 v{lo}, v{t}')

    def gx_loads():
        for q in range(4):
            a(f'buffer_load_dwordx4 v[{52 + 4 * q}:{52 + 4 * q + 3}], v2, {WSR}, s62 offen offset:{1024 * q} sc1')

    def ffn2(DW, issued):
        P = 52
        a('s_mov_b32 s61, 0')
        if issued:
            a('s_branch pg_chk')
        a('pg_again:')
        gx_loads()
        a('pg_chk:')
        a('s_waitcnt vmcnt(0)')
        sentinel_check(range(P, P + 16), P + 16)
        a('s_cbranch_vccz pg_ok')
        a('s_add_u32 s61, s61, 1')
        a(f's_cmp_ge_u32 s61, {POLL_MAX}')
        a('s_cbranch_scc1 pg_ok')
        a('s_mov_b64 exec, vcc')
        a(f's_cmp_lt_u32 s61, {GXL}')
        a('s_cselect_b32 s62, s63, s79')
        if opt('gxsleep', 1):
            a(f's_sleep {opt("gxsleep", 1)}')
        a('s_branch pg_again')
        a('pg_ok:')
        a('s_mov_b64 exec, -1')
        stamp('gxpoll')
        pk('add', P, P, P + 4)
        pk('add', P + 2, P + 2, P + 6)
        pk('add', P + 8, P + 8, P + 12)
        pk('add', P + 10, P + 10, P + 14)
        pk('add', P, P, P + 8)
        pk('add', P + 2, P + 2, P + 10)
        a(f'v_permlane32_swap_b32 v{P}, v{P + 2}')
        a(f'v_permlane32_swap_b32 v{P + 1}, v{P + 3}')
        pk('add', P, P, P + 2)
        a(f'v_permlane16_swap_b32 v{P}, v{P + 1}')
        a(f'v_add_f32 v{TT}, v{P}, v{P + 1}')
        rnd(TT, TT)
        a(f'v_mul_f32 v{TT + 2}, 0xbfb8aa3b, v{TT}')
        a(f'v_mov_b32_dpp v{TT + 3}, v{TT} row_ror:8 row_mask:0xf bank_mask:0xf')
        a(f'v_exp_f32 v{TT + 2}, v{TT + 2}')
        a(f'v_add_f32 v{TT + 2}, 1.0, v{TT + 2}')
        a(f'v_rcp_f32 v{TT + 2}, v{TT + 2}')
        a(f'v_mul_f32 v{TT}, v{TT}, v{TT + 2}')
        rnd(TT, TT)
        a(f'v_mul_f32 v{TT}, v{TT}, v{TT + 3}')
        a(f'v_mov_b32_dpp v{TT + 1}, v{TT} row_shr:1 row_mask:0xf bank_mask:0xf bound_ctrl:0')
        a(f'v_cvt_pk_bf16_f32 v{TT}, v{TT + 1}, v{TT}')
        for p in range(16):
            a(f'v_readlane_b32 s{S_K + p}, v{TT}, {16 * (p & 3) + 2 * (p >> 2) + 1}')
        AC2 = 24
        for p in range(16):
            for c in range(4):
                r = DW + 2 * (8 * (p >> 2) + (p & 3) + 4 * (c & 1)) + (c >> 1)
                h = AC2 + 4 * (p & 1) + c
                src2 = '0' if p < 2 else f'v{h}'
                a(f'v_dot2_f32_bf16 v{h}, v{r}, s{S_K + p}, {src2}')
        pk('add', AC2, AC2, AC2 + 4)
        pk('add', AC2 + 2, AC2 + 2, AC2 + 6)
        a(f'buffer_store_dwordx4 v[{AC2}:{AC2 + 3}], v237, {WSR}, s77 offen sc1')
        stamp('pst')

    a('ffn2:')
    if DWHO:
        a('s_branch main_fl')
    else:
        a('s_cmp_lt_u32 s3, 112')
        a('s_cbranch_scc0 main_fl')
        for r in range(min(D2, 32), 32):
            for l in dl[r]:
                a(l)
        a(f's_lshl_b32 s77, s3, {SH}')
        a(f's_add_u32 s77, s77, {WS_PART}')
        a(f's_add_u32 s63, s79, {WS_GX2 - WS_GX}')
        a(f's_mov_b32 s62, s{63 if GXL else 79}')
        for aa in range(4):
            a(f's_waitcnt vmcnt({24 - 8 * aa})')
            if aa == 3:
                lds_inc(16)
                stamp('dready')
                gx_loads()
            d_perm(DW, range(4 * aa, 4 * aa + 4))
        ffn2(DW, True)
        lds_inc(16)
        a('s_branch main_fl')

    a('helper_ffn:')
    a('s_cmp_lt_u32 s3, 112')
    a('s_cbranch_scc1 ffn_go')
    a('s_waitcnt vmcnt(0)')
    fb_publish()
    a('s_branch red_wait')
    a('ffn_go:')
    GW = 64
    if not (EX or EF):
        gu_base()
    a('s_lshr_b32 s78, s3, 4')
    a('s_lshl_b32 s78, s78, 2')
    a('s_add_u32 s78, s78, s13')
    a(f's_lshl_b32 s78, s78, {SH + 2}')
    a('s_lshl_b32 s60, s76, 8')
    a('s_add_u32 s78, s78, s60')
    a(f's_add_u32 s78, s78, {WS_GX}')
    a(f's_add_u32 s79, s78, {WS_GX2 - WS_GX}')
    if GXL and DWHO:
        a(f's_add_u32 s60, s61, {WS_GX2}')
        a(f'buffer_store_dwordx4 v[240:243], v237, {WSR}, s60 offen')
    assert DSP
    stamp('uw')
    FBK = opt('fbk', 2)
    for k, stp in enumerate(steps):
        if k < EF:
            continue
        if k == PAUSE:
            stamp('pause')
            lds_spin('late2', 24, 1, 28, sleep=LSLEEP)
            lds_spin('yw', 8, 8, 28)
            if opt('rsleep', 0):
                a(f's_sleep {opt("rsleep", 0)}')
        for l in stp:
            a(l)
        if k >= EF + DEPTH - 1 and k < PAUSE:
            a(f's_waitcnt vmcnt({DEPTH - 1})')
        if PAUSE <= k < PAUSE + opt('slow', 0):
            a(f's_waitcnt vmcnt({opt("depth2", 2) - 1})')
        if k == DEPTH - 1 and GXL and DWHO:
            lds_inc(28)
        if k == FBK - 1 and not FILLBY:
            a(f's_waitcnt vmcnt({FBK})')
            fb_publish()
    assert DEPTH <= PAUSE < 32
    if DWHO:
        lds_inc(16)
    for i2 in range(8):
        a(f's_waitcnt vmcnt({max(0, min(63, 32 - 4 * (i2 + 1)))})')
        for m in range(2):
            for k in range(4):
                lo, hi = GW + 64 * m + 8 * i2 + k, GW + 64 * m + 8 * i2 + 4 + k
                t = 32 + (k & 3)
                a(f'v_perm_b32 v{t}, v{hi}, v{lo}, s74')
                a(f'v_perm_b32 v{hi}, v{hi}, v{lo}, s75')
                a(f'v_mov_b32 v{lo}, v{t}')
    stamp('wready')
    KCONV = opt('kconv', 1)

    def fetch_token():
        a('v_lshlrev_b32 v6, 2, v1')
        a(f'v_add_u32 v7, {L_X}, v6')
        if opt('kdelay', 0):
            a(f's_sleep {opt("kdelay", 0)}')
        if not opt('spec', 1):
            key_poll(65)
            stamp('gkey')
            a('s_and_b32 s66, s65, 0xffff')
            a('s_sub_u32 s66, 2047, s66')
            a('s_lshr_b32 s66, s66, 4')
            a(f's_xor_b32 s66, s66, {RSW}')
            a(f's_lshl_b32 s66, s66, {SH}')
            a('s_lshl_b32 s60, s76, 7')
            a('s_add_u32 s66, s66, s60')
            a(f's_add_u32 s66, s66, {WS_CAND}')
            a('s_mov_b32 exec_hi, 0')
            retry_loop('px', [f'buffer_load_dword v8, v6, {WSR}, s66 offen sc1'], lambda: a('v_cmp_eq_u32 vcc, -1, v8'), sleep=1, mask='0xffffffff')
        else:
            a('v_lshlrev_b32 v4, 7, v1')
            a(f's_mov_b32 s64, {WS_KEYS + 8192}')
            a('s_lshl_b32 s63, s76, 7')
            a(f's_add_u32 s63, s63, {WS_CAND}')
            a(f's_and_b32 s62, s3, {opt("canmask", 63)}')
            a('s_lshl_b32 s62, s62, 7')
            a(f's_add_u32 s62, s62, {WS_KEYS + 4}')
            a('s_mov_b64 exec, 1')
            retry_loop('kc2', [f'buffer_load_dword v8, v4, {WSR}, s62 offen sc1'], lambda: a('v_cmp_ne_u32 vcc, s8, v8'), sleep=opt('kcsleep', 2))
            stamp('kcan')
            kl = [f'buffer_load_dwordx2 v[16:17], v4, {WSR}, {WS_KEYS} offen sc1', f'buffer_load_dwordx2 v[18:19], v4, {WSR}, s64 offen sc1']

            def cand_addr():
                a('s_not_b32 s66, s65')
                a('s_bfe_u32 s66, s66, 0x70004')
                a(f's_xor_b32 s66, s66, {RSW}')
                a(f's_lshl_b32 s66, s66, {SH}')
                a('s_add_u32 s66, s66, s63')
            for l in kl:
                a(l)
            a('s_mov_b32 s67, 0')
            a('s_mov_b32 s61, 0')
            a('v_mov_b32 v8, -1')
            a('ks_chk:')
            a('s_waitcnt vmcnt(0)')
            a('v_cmp_eq_u32 vcc, s8, v17')
            a('v_cmp_eq_u32 s[70:71], s8, v19')
            a('v_cndmask_b32 v12, 0, v16, vcc')
            a('v_cndmask_b32 v9, 0, v18, s[70:71]')
            a('s_nand_b64 s[70:71], s[70:71], vcc')
            a('v_max_u32 v12, v12, v9')
            a('s_cbranch_scc0 ks_all')
            a('s_add_u32 s61, s61, 1')
            a(f's_cmp_ge_u32 s61, {POLL_MAX}')
            a('s_cbranch_scc1 ks_all')
            a('s_mov_b64 exec, s[70:71]')
            for l in kl:
                a(l)
            a('s_mov_b64 exec, -1')
            wave_reduce('v_max_u32', 12)
            a('v_readlane_b32 s65, v12, 63')
            a('s_mov_b32 s67, s65')
            cand_addr()
            a('s_mov_b32 exec_hi, 0')
            a(f'buffer_load_dword v8, v6, {WSR}, s66 offen sc1')
            a('s_mov_b64 exec, -1')
            a('s_branch ks_chk')
            a('ks_all:')
            wave_reduce('v_max_u32', 12)
            a('v_readlane_b32 s65, v12, 63')
            stamp('gkey')
            cand_addr()
            a('s_mov_b32 exec_hi, 0')
            a('s_cmp_eq_u32 s65, s67')
            a('s_cbranch_scc1 px_chk')
            retry_loop('px', [f'buffer_load_dword v8, v6, {WSR}, s66 offen sc1'], lambda: a('v_cmp_eq_u32 vcc, -1, v8'), sleep=1, mask='0xffffffff')
        a('ds_write_b32 v7, v8')
        a('s_mov_b64 exec, -1')
        a('s_waitcnt lgkmcnt(0)')
    if not KCONV:
        a('s_cmp_eq_u32 s13, 0')
        a('s_cbranch_scc0 f2_bar')
        fetch_token()
    a('f2_bar:')
    a('s_barrier')
    XS, AC = 36, 44
    stamp('ffn0')
    a(f'ds_read_b128 v[{XS}:{XS + 3}], v201')
    a(f'ds_read_b128 v[{XS + 4}:{XS + 7}], v201 offset:16')
    for p in range(8):
        if p % 4 == 0:
            a(f's_waitcnt lgkmcnt({1 - p // 4})')
        for m in range(2):
            for c in range(8):
                r = GW + 64 * m + 8 * p + 4 * (c & 1) + (c >> 1)
                i = AC + 8 * m + c
                src2 = '0' if p == 0 else f'v{i}'
                a(f'v_dot2_f32_bf16 v{i}, v{r}, v{XS + p}, {src2}')
    for q in range(4):
        a(f'ds_write_b128 v203, v[{AC + 4 * q}:{AC + 4 * q + 3}] offset:{128 * (q >> 1) + 16 * (q & 1)}')
    a('s_waitcnt lgkmcnt(0)')
    a('s_barrier')
    for q in range(4):
        a(f'ds_read_b128 v[{8 + 4 * q}:{11 + 4 * q}], v205 offset:{16 * RP * q}')
    a('s_waitcnt lgkmcnt(2)')
    pk('add', 8, 8, 12)
    pk('add', 10, 10, 14)
    a('s_waitcnt lgkmcnt(0)')
    pk('add', 16, 16, 20)
    pk('add', 18, 18, 22)
    pk('add', 8, 8, 16)
    pk('add', 10, 10, 18)
    if GXL:
        a(f'buffer_store_dwordx4 v[8:11], v247, {WSR}, s79 offen')
    a(f'buffer_store_dwordx4 v[8:11], v247, {WSR}, s78 offen sc1')
    stamp('gxst')
    a('s_branch main_fl')

    a('conv_ffn:')
    a('s_cmp_lt_u32 s3, 112')
    a('s_cbranch_scc0 red_conv')
    if KCONV:
        assert not DWHO
        a('s_cmp_eq_u32 s12, 0')
        a('s_cbranch_scc0 main_fl')
        a('s_and_b32 s76, s3, 15')
        fetch_token()
        a('s_barrier')
    if DWHO:
        DW2 = 80
        lds_spin('gu', 16, 4, 8)
        d_base()
        for stp in d_list(DW2):
            for l in stp:
                a(l)
        a('v_lshlrev_b32 v237, 1, v253')
        a(f's_lshl_b32 s77, s3, {SH}')
        a(f's_add_u32 s79, s77, {WS_GX}')
        a(f's_add_u32 s77, s77, {WS_PART}')
        a(f's_add_u32 s63, s79, {WS_GX2 - WS_GX}')
        a(f's_mov_b32 s62, s{63 if GXL else 79}')
        for aa in range(4):
            a(f's_waitcnt vmcnt({24 - 8 * aa})')
            d_perm(DW2, range(4 * aa, 4 * aa + 4))
        stamp('dready')
        a('s_barrier')
        a('s_barrier')
        ffn2(DW2, False)
    a('s_branch main_fl')

    a('red_conv:')
    a('s_cmp_eq_u32 s12, 0')
    a('s_cbranch_scc0 red_wait')
    if opt('rdelay', 0):
        a(f's_sleep {opt("rdelay", 0)}')
    key_poll(71)
    a('s_sub_u32 s76, s3, 112')
    a('s_and_b32 s72, s71, 0xffff')
    a('s_sub_u32 s72, 2047, s72')
    a('s_lshr_b32 s73, s72, 4')
    a(f's_xor_b32 s73, s73, {RSW}')
    a(f's_lshl_b32 s73, s73, {SH}')
    a('s_lshl_b32 s60, s76, 7')
    a('s_add_u32 s73, s73, s60')
    a(f's_add_u32 s73, s73, {WS_CAND}')
    a('s_lshl_b32 s72, s72, 11')
    a('s_add_u32 s72, s72, s60')
    a('v_and_b32 v6, 31, v0')
    a('v_lshlrev_b32 v6, 2, v6')
    a('s_cmp_eq_u32 s76, 0')
    a(f's_cselect_b32 s60, {WS_EPOCH}, 0x40000000')
    a('v_mov_b32 v49, s8')
    a('v_mov_b32 v50, 0')
    a('s_mov_b64 exec, 1')
    a(f'buffer_store_dword v49, v50, {WSR}, s60 offen')
    a('s_mov_b64 exec, -1')
    loads = [f'buffer_load_dword v{40 + p}, v6, {WSR}, s73 offen offset:{2048 * p} sc1' for p in range(2)]
    poll_loop('ph', loads, (40, 41), 42)
    a('s_and_b32 s60, s71, 0xffff0000')
    a('s_xor_b32 s61, s60, 0x80000000')
    a('s_xor_b32 s62, s60, 0xffff0000')
    a('s_cmp_lt_i32 s60, 0')
    a('s_cselect_b32 s60, s61, s62')
    a('v_mov_b32 v42, 0xbfb8aa3b')
    a('v_mul_f32 v42, s60, v42')
    a('v_exp_f32 v42, v42')
    a('v_add_f32 v42, 1.0, v42')
    a('v_rcp_f32 v42, v42')
    rnd(42, 42)
    unpack(44, 45, 40)
    unpack(46, 47, 41)
    a('red_wait:')
    a(f's_add_u32 s{S_G}, s{S_WS}, {WS_PART}')
    a(f's_addc_u32 s{S_G + 1}, s{S_WS + 1}, 0')
    a(f's_mov_b32 s{S_G + 2}, {112 << SH}')
    a('s_sub_u32 s76, s3, 112')
    a('v_and_b32 v4, 15, v0')
    a('v_lshrrev_b32 v5, 4, v0')
    a(f'v_lshlrev_b32 v5, {SH}, v5')
    a('v_lshl_add_u32 v5, v4, 4, v5')
    a('s_lshl_b32 s64, s76, 8')
    a(f's_add_u32 s65, s64, {32 << SH}')
    a(f's_add_u32 s66, s64, {64 << SH}')
    a(f's_add_u32 s67, s64, {96 << SH}')
    a('v_lshrrev_b32 v7, 4, v1')
    a('v_lshl_add_u32 v7, v4, 2, v7')
    a('v_lshlrev_b32 v7, 2, v7')
    a('s_lshl_b32 s60, s12, 8')
    a(f's_add_u32 s60, s60, {L_RED}')
    a('v_add_u32 v7, s60, v7')
    a('v_lshlrev_b32 v48, 3, v1')
    a(f'v_add_u32 v48, {L_RED}, v48')
    a('s_barrier')
    if opt('finsleep', 30):
        a(f's_sleep {opt("finsleep", 30)}')
    P = 8
    loads = [f'buffer_load_dwordx4 v[{P + 4 * r}:{P + 4 * r + 3}], v5, s[{S_G}:{S_G + 3}], s{64 + r} offen sc1' for r in range(4)]
    poll_loop('pp', loads, range(P, P + 16), 24)
    stamp('ppoll')
    pk('add', P, P, P + 4)
    pk('add', P + 2, P + 2, P + 6)
    pk('add', P + 8, P + 8, P + 12)
    pk('add', P + 10, P + 10, P + 14)
    pk('add', P, P, P + 8)
    pk('add', P + 2, P + 2, P + 10)
    a(f'v_permlane32_swap_b32 v{P}, v{P + 2}')
    a(f'v_permlane32_swap_b32 v{P + 1}, v{P + 3}')
    pk('add', P, P, P + 2)
    a(f'v_permlane16_swap_b32 v{P}, v{P + 1}')
    a(f'v_add_f32 v{P}, v{P}, v{P + 1}')
    a(f'ds_write_b32 v7, v{P}')
    a('s_waitcnt lgkmcnt(0)')
    a('s_barrier')
    a('s_cmp_eq_u32 s12, 0')
    a('s_cbranch_scc0 main_fl')
    a('s_mov_b32 exec_hi, 0')
    for q in range(8):
        a(f'ds_read_b64 v[{P + 2 * q}:{P + 2 * q + 1}], v48 offset:{256 * q}')
    a('s_waitcnt lgkmcnt(0)')
    for q in range(4):
        pk('add', P + 4 * q, P + 4 * q, P + 4 * q + 2)
    pk('add', P, P, P + 4)
    pk('add', P + 8, P + 8, P + 12)
    pk('add', P, P, P + 8)
    rnd(P, P)
    rnd(P + 1, P + 1)
    a(f'v_mul_f32 v{P}, v{P}, v42')
    a(f'v_mul_f32 v{P + 1}, v{P + 1}, v42')
    rnd(P, P)
    rnd(P + 1, P + 1)
    pk('add', P, P, 44)
    rnd(P, P)
    rnd(P + 1, P + 1)
    pk('add', P, P, 46)
    a(f'v_cvt_pk_bf16_f32 v{P}, v{P}, v{P + 1}')
    a(f'buffer_store_dword v{P}, v6, {XBR}, s72 offen')
    if opt('diag', 0):
        a('s_mov_b64 exec, -1')
        a('s_cmp_eq_u32 s76, 0')
        a('s_cbranch_scc0 main_done')
        a('v_lshlrev_b32 v4, 7, v1')
        a(f's_mov_b32 s64, {WS_KEYS + 8192}')
        a(f'buffer_load_dwordx2 v[8:9], v4, {WSR}, {WS_KEYS} offen offset:8 sc1')
        a(f'buffer_load_dwordx2 v[10:11], v4, {WSR}, s64 offen offset:8 sc1')
        a('s_memrealtime s[62:63]')
        a('s_waitcnt vmcnt(0) lgkmcnt(0)')
        for r in range(8, 12):
            a(f'v_sub_u32 v{r}, s62, v{r}')
        a('v_max_u32 v12, v8, v10')
        a('v_min_u32 v13, v8, v10')
        a('v_min_u32 v14, v9, v11')
        a('v_not_b32 v13, v13')
        a('v_not_b32 v14, v14')
        wave_reduce('v_max_u32', [12, 13, 14])
        a('v_readlane_b32 s64, v12, 63')
        a('v_readlane_b32 s65, v13, 63')
        a('v_readlane_b32 s66, v14, 63')
        a('s_not_b32 s65, s65')
        a('s_not_b32 s66, s66')
        d = opt('diag', 0)
        if d == 1:
            a('s_sub_u32 s64, s64, s65')
        if d == 3:
            a('s_sub_u32 s64, s64, s66')
        if d >= 10:
            x = d % 10
            a(f'v_readlane_b32 s65, v{(8 if x < 4 else 10) + (d >= 20)}, {16 * (x & 3) + 5}')
            a('s_sub_u32 s64, s64, s65')
        a(f's_mul_i32 s64, s64, {opt("diagk", 10)}')
        a('s_min_u32 s64, s64, 100000')
        a('diag_spin:')
        a('s_memrealtime s[66:67]')
        a('s_waitcnt lgkmcnt(0)')
        a('s_sub_u32 s66, s66, s62')
        a('s_cmp_lt_u32 s66, s64')
        a('s_cbranch_scc1 diag_spin')
        a('s_branch main_done')
    a('main_fl:')
    if opt('diag', 0):
        a('s_branch main_done')
    if opt('dbg', 0) == 999:
        a('s_waitcnt vmcnt(0) lgkmcnt(0)')
        stamp(7)
        a('s_mov_b64 s[96:97], s[100:101]')
        a('s_mov_b32 s98, 256')
        a('s_mov_b32 s99, 0x00020000')
        a('s_mov_b64 exec, 1')
        a('v_mov_b32 v1, 0')
        a('s_waitcnt lgkmcnt(0)')
        for i in range(8):
            a(f's_and_b32 s60, s{80 + 2 * i}, 0xffffff')
            a('s_xor_b32 s61, s60, 0xffffff')
            a(f's_cmp_eq_u32 s{80 + 2 * i}, 0')
            a('s_cselect_b32 s61, 0, s61')
            a('v_mov_b32 v2, s60')
            a('v_mov_b32 v3, s61')
            a(f'buffer_atomic_umax v2, v1, s[96:99], 0 offen offset:{4 * i} sc1')
            a(f'buffer_atomic_umax v3, v1, s[96:99], 0 offen offset:{32 + 4 * i} sc1')
    elif opt('dbg', 0):
        a('s_waitcnt vmcnt(0) lgkmcnt(0)')
        stamp(7)
        a('s_mov_b64 s[96:97], s[100:101]')
        a('s_mov_b32 s98, 256')
        a('s_mov_b32 s99, 0x00020000')
        a('s_lshl_b32 s60, s2, 3')
        a('s_add_u32 s60, s60, s12')
        a('s_mov_b32 s61, 0x40000000')
        a(f's_cmp_eq_u32 s60, {225 * 8}')
        a('s_cselect_b32 s61, 0, s61')
        a(f's_cmp_eq_u32 s60, {opt("dbg", 0) * 8 + opt("dbgw", 0)}')
        a('s_cselect_b32 s61, 32, s61')
        a('s_mov_b64 exec, 1')
        a('v_mov_b32 v1, 0')
        a('s_waitcnt lgkmcnt(0)')
        for i in range(8):
            a(f's_sub_u32 s60, s{80 + 2 * i}, s80')
            a(f's_cmp_eq_u32 s{80 + 2 * i}, 0')
            a('s_cselect_b32 s60, 0, s60')
            a('v_mov_b32 v2, s60')
            a(f'buffer_store_dword v2, v1, s[96:99], s61 offen offset:{4 * i}')
    else:
        stamp_flush(S_WS, 7, 0)
    a('main_done:')
    a('s_endpgm')
    return kernel_desc(KN, 256, 102 if STAMPS else 80)


launch = '; @launch grid=(256,1,1) block=(512,1,1) lds=%d\n' % MAIN_LDS
finish(launch, [k_main()])
```

```python
from common import *
import common
STAMPS = common.STAMPS

WS_KEYS = 0
WS_EPOCH = 32 * 1024
WS_GX = 1536 * 1024
WS_FA = 128 * 1024
WS_FB = 192 * 1024
WS_FA2 = 64 * 1024
WS_CAND = 262144
WS_PART = 1 << 20
WS_GX2 = 6 << 20
WS_KV = 2 << 20
WS_SIZE = 7 << 20
SH = 12
if opt('reuse', 0):
    SH = 14
    WS_CAND, WS_PART, WS_GX, WS_GX2 = WS_KV, WS_KV + 4096, WS_KV + (2 << 20), WS_KV + (2 << 20) + 4096
WSOFF = opt('wsoff', 0) << 20
common.WS_STAMP -= WSOFF
POLL_MAX = 1 << 16
KN = NAME + '_kernel'

DEPTH = opt('depth', 7)
XPOS = opt('xpos', 4)
UWOFF = opt('uwoff', 0)
FLC = opt('flc', 3)
FBC = opt('fbc', 12)
YSLEEP = opt('ysleep', 1)
CODEPF = opt('codepf', 6)
DEARLY = opt('dearly', 0)
SWZ = opt('swz', 0)
YB = 's_andn2_b32 s62, s15, 0x380' if SWZ & 2 else 's_mov_b32 s62, s15'
CPERM = opt('cperm', 0)
RSW = opt('rsw', 0)
YLO = opt('ylo', 1)
DWHO = opt('dwho', 0)
GXL = opt('gxl', 40)
DYN = opt('dyn', 0)
LSLEEP = opt('lsleep', 6)
FILLBY = opt('fillby', 1)
DUAL = opt('dual', 12)
KVS = '' if opt('l2kv', 0) else ' sc1'
KVL = {0: ' sc1', 1: ' sc0', 2: ''}[opt('kvl', 0)]
FAL = {0: ' sc1', 1: ' sc0', 2: ''}[opt('fal', 0)]
PAUSE = opt('pause', 20)

GS = 4160
UOFF = 4 * GS
CS = 21312
L_YL = 4 * CS
RS = 2064
L_YT = L_YL + 16384
L_P0 = L_YL
L_W = L_YT + 16 * RS
L_ST = L_W + 2048
L_PART = 0
PS = 272
RP = 272
L_H = 8192
L_CNT = L_ST + 272
L_GKEY = L_CNT + 28
L_SW = L_CNT + 48
L_X = L_CNT + 64
L_RED = L_X + 1024
MAIN_LDS = L_RED + 4096

S_K, S_V, S_SK, S_H, S_WS, S_Q, S_WR, S_OUT, S_G, S_U, S_D = 16, 20, 24, 28, 32, 36, 40, 44, 48, 52, 56
WSR = f's[{S_WS}:{S_WS + 3}]'
XBR = f's[{S_OUT}:{S_OUT + 3}]'
KVR = WSR
VC, V1 = 254, 255


def sentinel_check(regs, tmp):
    rs = list(regs)
    cur = rs.pop(0)
    while rs:
        if len(rs) >= 2:
            a(f'v_max3_u32 v{tmp}, v{cur}, v{rs[0]}, v{rs[1]}')
            rs = rs[2:]
        else:
            a(f'v_max_u32 v{tmp}, v{cur}, v{rs[0]}')
            rs = rs[1:]
        cur = tmp
    a(f'v_cmp_eq_u32 vcc, -1, v{cur}')


def retry_loop(name, loads, check, sleep=2, issued=False, mask='-1'):
    a('s_mov_b32 s61, 0')
    if issued:
        a(f's_branch {name}_chk')
    a(f'{name}_again:')
    for l in loads:
        a(l)
    a(f'{name}_chk:')
    a('s_waitcnt vmcnt(0)')
    check()
    a(f's_cbranch_vccz {name}_ok')
    a('s_add_u32 s61, s61, 1')
    a(f's_cmp_ge_u32 s61, {POLL_MAX}')
    a(f's_cbranch_scc1 {name}_ok')
    a('s_mov_b64 exec, vcc')
    a(f's_sleep {sleep}')
    a(f's_branch {name}_again')
    a(f'{name}_ok:')
    a(f's_mov_b64 exec, {mask}')


def poll_loop(name, loads, regs, tmp, sleep=2, issued=False):
    retry_loop(name, loads, lambda: sentinel_check(regs, tmp), sleep, issued)


def lds_spin(name, off, want, vt, sleep=1):
    a('s_mov_b32 s61, 0')
    a(f'{name}_spin:')
    a(f'ds_read_b32 v{vt}, v{VC} offset:{off}')
    a('s_add_u32 s61, s61, 1')
    a('s_waitcnt lgkmcnt(0)')
    a(f'v_readfirstlane_b32 s60, v{vt}')
    a(f's_cmp_ge_u32 s60, {want}')
    a(f's_cbranch_scc1 {name}_go')
    a(f's_cmp_ge_u32 s61, {1 << 22}')
    a(f's_cbranch_scc1 {name}_go')
    a(f's_sleep {sleep}')
    a(f's_branch {name}_spin')
    a(f'{name}_go:')


def lds_inc(off):
    a('s_mov_b64 exec, 1')
    a(f'ds_add_u32 v{VC}, v{V1} offset:{off}')
    a('s_mov_b64 exec, -1')


XP = [4, 20]
N = [36, 52]
T = [68, 84]
WF = 100
MV = [116, 120]
AA = [124, 132]
YR = [140, 148]
XR = 36
VG8, VXA, VWA, VSA, VKL, VPR, VPW, VRA, VBIT = range(228, 237)


def ln_x(xr, wr):
    for r in range(2):
        for i in range(8):
            unpack(XP[r] + 2 * i, XP[r] + 2 * i + 1, xr + 8 * r + i)
    for i in range(8):
        unpack(WF + 2 * i, WF + 2 * i + 1, wr + i)
    srcs = [(XP[0], T[0]), (XP[1], T[0] + 8), (WF, T[1])]
    for i in range(4):
        for (sx, t) in srcs:
            pk('add', t + 2 * i, sx + 4 * i, sx + 4 * i + 2)
    for (_, b) in srcs:
        pk('add', b, b, b + 2)
        pk('add', b + 4, b + 4, b + 6)
    for (_, b) in srcs:
        pk('add', b, b, b + 4)
    for (_, b) in srcs:
        a(f'v_add_f32 v{b}, v{b}, v{b + 1}')
    K = T[1] + 8
    a(f'v_mov_b32 v{K}, 0x3a800000')
    wave_reduce('v_add_f32', [b for _, b in srcs])
    a(f'v_readlane_b32 s60, v{T[0]}, 63')
    a(f'v_readlane_b32 s62, v{T[0] + 8}, 63')
    a(f'v_readlane_b32 s71, v{T[1]}, 63')
    for r in range(2):
        M, V = MV[r], MV[r] + 2
        a(f'v_mul_f32 v{V}, s{60 + 2 * r}, v{K}')
    for r in range(2):
        M, V = MV[r], MV[r] + 2
        rnd(M, V)
        rnd(M + 1, V)
        a(f'v_sub_f32 v{V}, v{V}, v{M}')
        a(f'v_readfirstlane_b32 s{72 + r}, v{M}')
    for r in range(2):
        for i in range(8):
            pk('add', XP[r] + 2 * i, XP[r] + 2 * i, MV[r], mods='neg_lo:[0,1] neg_hi:[0,1]')
    for i in range(8):
        for r in range(2):
            if i == 0:
                pk('mul', AA[r], XP[r], XP[r])
            else:
                pk('fma', AA[r], XP[r] + 2 * i, XP[r] + 2 * i, AA[r])
    for r in range(2):
        a(f'v_add_f32 v{AA[r]}, v{AA[r]}, v{AA[r] + 1}')
        a(f'v_mul_f32 v{MV[r] + 2}, v{MV[r] + 2}, v{MV[r] + 2}')
    wave_reduce('v_add_f32', AA)
    for r in range(2):
        a(f'v_readlane_b32 s{60 + 2 * r}, v{AA[r]}, 63')
    for step in range(8):
        for r in range(2):
            V = MV[r] + 2
            if step == 0:
                a(f'v_fma_f32 v{V}, s{60 + 2 * r}, v{K}, -v{V}')
            elif step in (1, 3, 5):
                rnd(V, V)
            elif step == 2:
                a(f'v_add_f32 v{V}, 0x3727c5ac, v{V}')
            elif step == 4:
                a(f'v_sqrt_f32 v{V}, v{V}')
            elif step == 6:
                a(f'v_rcp_f32 v{V + 1}, v{V}')
            else:
                a(f'v_rcp_f32 v{V}, v{V}')
    for r in range(2):
        for i in range(16):
            rnd(N[r] + i, XP[r] + i)
    for r in range(2):
        for i in range(8):
            pk('mul', N[r] + 2 * i, N[r] + 2 * i, MV[r] + 2)
    for r in range(2):
        for i in range(16):
            rnd(N[r] + i, N[r] + i)


def key_poll(dst):
    a('v_lshlrev_b32 v4, 7, v1')
    a(f's_mov_b32 s65, {WS_KEYS}')
    a(f's_mov_b32 s66, {WS_KEYS + 8192}')
    if opt('kcan', 1):
        a('s_lshl_b32 s62, s3, 7')
        a(f's_add_u32 s62, s62, {WS_KEYS + 4}')
        a('s_mov_b64 exec, 1')
        retry_loop(a.newlabel('kc'), [f'buffer_load_dword v8, v4, {WSR}, s62 offen sc1'], lambda: a('v_cmp_ne_u32 vcc, s8, v8'), sleep=opt('kcsleep', 2))
        stamp('kcan')
    loads = [f'buffer_load_dwordx2 v[{16 + 2 * p}:{17 + 2 * p}], v4, {WSR}, s{65 + p} offen sc1' for p in range(2)]

    def chk():
        a('v_xor_b32 v8, s8, v17')
        a('v_xor_b32 v9, s8, v19')
        a('v_max_u32 v12, v16, v18')
        a('v_or_b32 v8, v8, v9')
        a('v_cmp_ne_u32 vcc, 0, v8')
    retry_loop(a.newlabel('pk'), loads, chk, sleep=opt('ksleep', 2))
    wave_reduce('v_max_u32', 12)
    a(f'v_readlane_b32 s{dst}, v12, 63')


def k_main():
    kernel_begin(a, KN)
    a('s_cmp_ge_u32 s2, 256')
    a('s_cbranch_scc1 main_done')
    stamp_begin(0)
    if opt('dbg', 0):
        a('s_load_dwordx2 s[100:101], s[0:1], 96')
    for sr, off in ((S_WS, 104), (S_K, 8), (S_V, 16), (S_SK, 24), (S_H, 32), (10, 40), (S_Q, 0), (S_WR, 56), (S_OUT, 88), (S_G, 64), (S_U, 72), (S_D, 80)):
        a(f's_load_dwordx2 s[{sr}:{sr + 1}], s[0:1], {off}')
    if CODEPF:
        a('s_getpc_b64 s[4:5]')
        a('pc0:')
        a('s_mov_b32 s6, main_done-pc0')
        a('s_mov_b32 s7, 0x00020000')
        a('s_lshr_b32 s3, s2, 3')
        a(f's_mul_i32 s3, s3, {CODEPF * 128}')
        a('v_lshlrev_b32 v3, 7, v0')
        a(f'v_cmp_gt_u32 vcc, {CODEPF}, v0')
        a('s_and_saveexec_b64 s[60:61], vcc')
        a('s_cbranch_execz no_codepf')
        a('buffer_load_dword v250, v3, s[4:7], s3 offen')
        a('no_codepf:')
        a('s_mov_b64 exec, -1')
    if opt('scramble', 0) == 1:
        a('s_lshl_b32 s5, s2, 3')
        a('s_lshr_b32 s2, s2, 5')
        a('s_or_b32 s2, s2, s5')
        a('s_and_b32 s2, s2, 255')
    if opt('scramble', 0) == 2:
        a('s_lshr_b32 s5, s2, 1')
        a('s_cmp_eq_u32 s5, 21')
        a('s_cselect_b32 s5, 1, 0')
        a('s_xor_b32 s2, s2, s5')
    a('s_lshr_b32 s5, s2, 4')
    a(f's_add_u32 s4, s2, {opt("xrot", 0)}')
    a('s_and_b32 s4, s4, 7')
    a('s_lshl_b32 s4, s4, 1')
    a('s_bfe_u32 s6, s2, 0x10003')
    a('s_or_b32 s4, s4, s6')
    a('s_lshl_b32 s2, s4, 4')
    a('s_or_b32 s2, s2, s5')
    a('v_lshrrev_b32 v3, 6, v0')
    a('v_and_b32 v1, 63, v0')
    a('v_readfirstlane_b32 s12, v3')
    a('v_lshlrev_b32 v2, 4, v1')
    a(f'v_mov_b32 v{VC}, {L_CNT}')
    a(f'v_mov_b32 v{V1}, 1')
    for r in range(6):
        a(f'v_mov_b32 v{144 + r}, 0')
    for r in range(4):
        a(f'v_mov_b32 v{240 + r}, -1')
    a('s_cmp_eq_u32 s12, 0')
    a('s_cbranch_scc0 no_cnt_init')
    a('s_mov_b64 exec, 1')
    a(f'ds_write_b128 v{VC}, v[144:147]')
    a(f'ds_write_b128 v{VC}, v[144:147] offset:16')
    a(f'ds_write_b128 v{VC}, v[144:147] offset:32')
    a('s_mov_b64 exec, -1')
    a('no_cnt_init:')
    for sr, n in ((S_WS, WS_SIZE), (S_K, MB4), (S_V, MB4), (S_SK, 8192), (S_H, 4096), (S_Q, 0 if opt('free', 0) & 4 else MB4), (S_WR, 2048), (S_OUT, MB4),
                  (S_G, 0 if opt('free', 0) & 1 else 1024 * 7168), (S_U, 0 if opt('free', 0) & 1 else 1024 * 7168), (S_D, 0 if opt('free', 0) & 2 else 3584 * 2048)):
        a(f's_mov_b32 s{sr + 2}, {n}')
        a(f's_mov_b32 s{sr + 3}, 0x00020000')
    a('s_and_b32 s13, s12, 3')
    if opt('gmix', 1):
        a('s_and_b32 s14, s12, 1')
        a('s_xor_b32 s4, s4, s14')
    a('s_lshr_b32 s14, s12, 2')
    if CPERM:
        a('s_bfe_u32 s15, s2, 0x20005')
        a('s_lshl_b32 s15, s15, 1')
        a('s_lshr_b32 s9, s2, 7')
        a('s_xor_b32 s9, s9, 1')
        a('s_or_b32 s15, s15, s9')
        a('s_and_b32 s9, s4, 1')
        a('s_lshl_b32 s7, s15, 1')
        a('s_or_b32 s7, s7, s9')
        a('s_lshl_b32 s15, s15, 5')
        a('s_and_b32 s9, s2, 31')
        a('s_or_b32 s15, s15, s9')
        a('s_lshl_b32 s15, s15, 2')
    else:
        a(f's_xor_b32 s7, s4, {opt("cx", 0) << 1}')
        a(f's_xor_b32 s15, s2, {opt("cx", 0) << 5}')
        a('s_lshl_b32 s15, s15, 2')
    a('s_add_u32 s15, s15, s13')
    a('s_lshr_b32 s3, s2, 1')
    a('v_and_b32 v4, 15, v1')
    a('v_lshrrev_b32 v5, 4, v1')
    a('v_and_b32 v10, 31, v1')
    a('v_lshrrev_b32 v11, 5, v1')
    a('v_lshrrev_b32 v6, 3, v1')
    a('v_lshlrev_b32 v8, 11, v6')
    if SWZ & 1:
        a('s_and_b32 s60, s5, 7')
        a('v_xor_b32 v7, s60, v6')
        a('v_lshlrev_b32 v6, 13, v6')
        a('v_lshl_add_u32 v6, v7, 7, v6')
    else:
        a('v_lshlrev_b32 v6, 13, v6')
    a('v_and_b32 v7, 7, v1')
    a('v_lshl_add_u32 v6, v7, 4, v6')
    a('v_lshl_add_u32 v8, v7, 4, v8')
    a('s_lshl_b32 s62, s4, 17')
    a('s_lshl_b32 s63, s13, 11')
    a('s_add_u32 s62, s62, s63')
    a('s_lshl_b32 s63, s14, 21')
    a('s_add_u32 s62, s62, s63')
    a(f's_add_u32 s62, s62, {WS_KV}')
    if SWZ & 1:
        a('s_and_b32 s63, s5, 8')
        a('s_lshl_b32 s63, s63, 7')
    else:
        a('s_lshl_b32 s63, s5, 7')
    a('s_add_u32 s62, s62, s63')
    a('s_add_u32 s63, s62, 0x10000')
    a('s_lshl_b32 s64, s12, 19')
    a('s_lshl_b32 s65, s5, 15')
    a('s_add_u32 s64, s64, s65')
    a('s_lshl_b32 s65, s7, 7')
    a('s_add_u32 s64, s64, s65')
    a('s_add_u32 s65, s64, 16384')
    a('s_sub_u32 s77, s64, 6144')
    a('s_cselect_b32 s77, 0x40000000, s77')
    a('s_lshl_b32 s79, s7, 9')
    a('v_lshlrev_b32 v9, 4, v10')
    a('s_lshl_b32 s67, s15, 12')
    a('s_lshl_b32 s70, s15, 1')
    a('s_and_b32 s70, s70, 0xfffffffc')
    a(f's_xor_b32 s68, s3, {RSW}')
    a('s_lshl_b32 s68, s68, 4')
    a('s_lshl_b32 s69, s13, 2')
    a('s_add_u32 s68, s68, s69')
    a('s_lshl_b32 s69, s68, 11')
    a('s_mul_i32 s66, s12, 4608')
    a(f's_add_u32 s66, s66, {L_P0}')
    a(f's_mov_b32 s6, {WS_EPOCH}')
    a('s_mov_b32 m0, s66')
    a('s_waitcnt lgkmcnt(0)')
    stamp('karg')
    if WSOFF:
        a(f's_add_u32 s{S_WS}, s{S_WS}, {WSOFF}')
        a(f's_addc_u32 s{S_WS + 1}, s{S_WS + 1}, 0')
    a(f's_load_dword s8, s[{S_WS}:{S_WS + 1}], s6')
    a('s_load_dword s9, s[10:11], s70')
    KR, VR, SKR = 16, 28, 36

    GL = 96
    a('s_cmp_eq_u32 s14, 0')
    a('s_cbranch_scc1 ld_kv')
    a(f's_add_u32 s{S_H}, s{S_H}, s67')
    a(f's_addc_u32 s{S_H + 1}, s{S_H + 1}, 0')
    a('s_barrier')
    for i in range(4):
        a(f'buffer_load_dwordx4 v[{GL + 6 * i}:{GL + 6 * i + 3}], v2, s[{S_H}:{S_H + 3}], 0 offen offset:{1024 * i} nt')
    if opt('hipos', 0) >= 8:
        lds_spin('kvq', 32, opt('hipos', 0) - 4, 3)
    elif opt('hipos', 0):
        a(f's_waitcnt vmcnt({4 - opt("hipos", 0)})')
    a('ld_kv:')
    a(f'buffer_load_dwordx4 v[{SKR}:{SKR + 3}], v9, s[{S_SK}:{S_SK + 3}], s79 offen')
    a('s_mov_b64 exec, 0xffffff')
    a(f'buffer_load_dwordx4 v8, s[{S_K}:{S_K + 3}], s77 offen nt lds')
    a('s_mov_b64 exec, -1')
    for (sr, so, lo) in ((S_K, 64, 384), (S_K, 65, 1408), (S_V, 64, 2432), (S_V, 65, 3456)):
        a(f's_add_u32 m0, s66, {lo}')
        a(f'buffer_load_dwordx4 v8, s[{sr}:{sr + 3}], s{so} offen nt lds')
    a('s_cmp_eq_u32 s14, 0')
    a('s_cbranch_scc0 ld_done')
    a('s_barrier')
    a('ld_done:')
    a(f's_mul_i32 s67, s13, {CS}')
    a('s_mov_b32 s74, 0x05040100')
    a('s_mov_b32 s75, 0x07060302')
    a('v_lshlrev_b32 v92, 10, v11')
    a('v_lshl_add_u32 v92, v10, 2, v92')
    a('v_add_u32 v92, s66, v92')
    a('v_add_u32 v93, 1024, v92')
    a('v_add_u32 v94, 2432, v92')
    a('v_lshrrev_b32 v8, 1, v10')
    a('v_mul_u32_u24 v8, 144, v8')
    a('v_and_b32 v9, 1, v10')
    a('v_lshl_add_u32 v8, v9, 6, v8')
    a('v_sub_u32 v9, 1, v11')
    a('v_lshl_add_u32 v8, v9, 4, v8')
    a('v_add_u32 v8, s66, v8')
    a('v_lshrrev_b32 v9, 3, v1')
    a('v_mul_u32_u24 v9, 144, v9')
    a('v_lshl_add_u32 v9, v7, 4, v9')
    a('v_add_u32 v9, s66, v9')
    a('v_add_u32 v160, s67, v2')
    a('v_and_b32 v161, 3, v1')
    a(f'v_mul_u32_u24 v161, {GS}, v161')
    a('v_bfe_u32 v162, v1, 2, 2')
    a('v_lshl_add_u32 v161, v162, 3, v161')
    a('v_lshl_add_u32 v161, v5, 4, v161')
    a('v_add_u32 v161, s67, v161')
    a(f's_add_u32 s60, s67, {UOFF + 480}')
    a('v_lshlrev_b32 v163, 5, v4')
    a('v_sub_u32 v162, s60, v163')
    a('v_lshl_add_u32 v162, v5, 4, v162')
    a('v_lshl_add_u32 v163, v5, 3, v163')
    a('s_lshl_b32 s60, s13, 12')
    a(f's_add_u32 s60, s60, {L_YL}')
    a('v_add_u32 v163, s60, v163')
    a('v_bfe_u32 v165, v1, 1, 2')
    a(f'v_mul_u32_u24 v165, {CS}, v165')
    a('v_and_b32 v166, 1, v1')
    a('v_lshl_add_u32 v165, v166, 4, v165')
    a('v_lshrrev_b32 v166, 3, v1')
    if SWZ & 1:
        a('s_and_b32 s60, s5, 7')
        a('v_xor_b32 v166, s60, v166')
    a('v_lshlrev_b32 v166, 5, v166')
    a('v_sub_u32 v165, v165, v166')
    a('s_lshl_b32 s60, s12, 9')
    a(f's_sub_u32 s60, {UOFF + 4064 - 256}, s60')
    a('v_add_u32 v165, s60, v165')
    a('s_lshl_b32 s78, s2, 13')
    a('s_lshl_b32 s60, s13, 11')
    a('s_add_u32 s78, s78, s60')
    a('s_lshl_b32 s60, s14, 21')
    a('s_add_u32 s78, s78, s60')
    a(f's_add_u32 s78, s78, {WS_KV}')
    a('v_lshl_add_u32 v166, v5, 3, v4')
    a('v_sub_u32 v166, 15, v166')
    a('v_and_b32 v167, 1, v166')
    a('v_lshlrev_b32 v167, 4, v167')
    a('v_ashrrev_i32 v166, 1, v166')
    a(f'v_mul_u32_u24 v150, {GS}, v1')
    a('v_add_u32 v150, s67, v150')
    a('v_lshlrev_b32 v245, 7, v4')
    a('v_bfe_u32 v248, v1, 3, 2')
    a('v_lshlrev_b32 v248, 13, v248')
    a('v_lshl_add_u32 v248, v7, 7, v248')
    a('v_lshlrev_b32 v251, 4, v0')
    a('v_bfe_u32 v238, v0, 3, 5')
    if SWZ & 2:
        a('s_and_b32 s60, s3, 7')
        a('s_lshl_b32 s60, s60, 7')
        a('v_xor_b32 v251, s60, v251')
        a('s_and_b32 s60, s5, 7')
        a('v_xor_b32 v3, s60, v238')
        a('v_and_b32 v3, 7, v3')
    a('v_lshlrev_b32 v238, 15, v238')
    a('v_lshl_add_u32 v238, v7, 4, v238')
    if SWZ & 2:
        a('v_lshl_add_u32 v238, v3, 7, v238')
    a(f'v_lshrrev_b32 v{VG8}, 3, v0')
    a(f'v_lshlrev_b32 v{VG8}, 3, v{VG8}')
    a(f'v_mul_u32_u24 v{VXA}, {2 * RS}, v7')
    a(f'v_add_u32 v{VXA}, v{VXA}, v{VG8}')
    a(f'v_add_u32 v{VXA}, {L_YT}, v{VXA}')
    a(f'v_add_u32 v{VWA}, {L_W}, v{VG8}')
    a(f'v_lshlrev_b32 v{VSA}, 5, v7')
    a(f'v_add_u32 v{VSA}, {L_ST}, v{VSA}')
    a(f'v_bfe_u32 v{VKL}, v1, 3, 1')
    a(f'v_lshl_add_u32 v{VKL}, v7, 1, v{VKL}')
    a(f'v_mul_u32_u24 v{VPR}, {PS}, v{VKL}')
    a(f'v_lshl_add_u32 v{VPR}, v5, 6, v{VPR}')
    a(f'v_lshl_add_u32 v{VPW}, v7, 1, v11')
    a(f'v_mul_u32_u24 v{VPW}, {PS}, v{VPW}')
    a('v_and_b32 v3, 1, v5')
    a(f'v_lshl_add_u32 v{VPW}, v3, 4, v{VPW}')
    a('s_lshl_b32 s60, s12, 5')
    a(f'v_add_u32 v{VPW}, s60, v{VPW}')
    a(f's_xor_b32 s60, s3, {RSW}')
    a('s_lshl_b32 s60, s60, 4')
    a('s_sub_u32 s60, 2047, s60')
    a(f'v_sub_u32 v{VKL}, s60, v{VKL}')
    a(f's_mul_i32 s60, s13, {4 * RS}')
    a(f's_add_u32 s60, s60, {L_YT}')
    a(f'v_add_u32 v{VRA}, s60, v2')
    a(f'v_lshrrev_b32 v{VBIT}, 3, v1')
    a(f'v_lshlrev_b32 v{VBIT}, v{VBIT}, 1')
    a('v_and_b32 v253, 255, v0')
    a('v_lshlrev_b32 v253, 3, v253')
    a('v_lshlrev_b32 v237, 1, v253')
    a(f'v_lshlrev_b32 v247, {SH}, v4')
    a('v_lshl_add_u32 v247, v11, 7, v247')
    a('v_and_b32 v3, 1, v5')
    a('v_lshl_add_u32 v247, v3, 4, v247')
    a(f'v_mul_u32_u24 v252, {16 * 7168}, v5')
    a('v_lshl_add_u32 v252, v4, 4, v252')
    a('s_mov_b64 exec, 0xf')
    a('ds_write_b128 v150, v[144:147]')
    a('s_mov_b64 exec, 0x3fffffff')
    a(f'ds_write_b128 v160, v[144:147] offset:{UOFF + 4096}')
    a('s_mov_b64 exec, -1')
    WFp, KF, O, PKD = 40, 48, 70, 86
    a('s_waitcnt lgkmcnt(0)')
    a('s_add_u32 s8, s8, 0x9e3779b9')
    a('s_or_b32 s8, s8, 1')
    a('s_and_b32 s61, s15, 1')
    a('s_lshl_b32 s61, s61, 4')
    a('s_lshr_b32 s9, s9, s61')
    a('s_and_b32 s9, s9, 0xffff')
    a('v_lshlrev_b32 v167, v167, s9')
    for r in range(4):
        a(f'v_cmp_eq_u32 vcc, {r}, v166')
        a(f'v_cndmask_b32 v{168 + r}, 0, v167, vcc')
    a('s_lshl_b32 s64, s4, 11')
    a(f's_add_u32 s64, s64, {WS_FA}')
    a('s_lshl_b32 s65, s2, 7')
    a('s_lshr_b32 s15, s15, 2')
    a('s_lshl_b32 s15, s15, 7')
    a(f's_add_u32 s7, s15, {WS_FB}')
    a('s_lshl_b32 s60, s13, 2')
    a('s_add_u32 s7, s7, s60')
    a('s_bfe_u32 s60, s3, 0x20003')
    a('s_lshl_b32 s60, s60, 2')
    a('v_add_u32 v248, s60, v248')
    a(f's_add_u32 s65, s65, {WS_FA}')
    a('v_mov_b32 v13, s8')
    a('v_mov_b32 v14, 0')
    a(f's_add_u32 s10, s65, {WS_FA2 - WS_FA}')
    a('s_cmp_eq_u32 s12, 0')
    a('s_cselect_b32 s60, s10, 0x40000000')
    a('s_mov_b64 exec, 0xff')
    a(f'buffer_store_dwordx4 v[144:147], v2, {WSR}, s60 offen')
    a('s_mov_b64 exec, -1')
    XV = 1
    a('s_lshl_b32 s60, s12, 2')
    a('s_add_u32 s64, s64, s60')
    a('s_add_u32 s65, s65, s60')
    a('s_add_u32 s10, s10, s60')
    a(f's_add_u32 s11, s64, {WS_FA2 - WS_FA}')
    if DYN:
        a('s_memrealtime s[4:5]')
    a('s_cmp_eq_u32 s14, 0')
    a('s_cbranch_scc1 p0')
    LATER = 6 + XV
    a(f's_waitcnt vmcnt({LATER + 3})')
    a(f'v_readlane_b32 s76, v{GL}, 0')
    a(f'v_readlane_b32 s77, v{GL + 1}, 0')
    a('s_lshl_b32 s70, s76, 16')
    a('s_lshr_b32 s61, s76, 16')
    a('s_lshl_b32 s71, s77, 16')
    a('s_or_b32 s61, s61, s71')
    a('v_writelane_b32 v149, s70, 0')
    a('v_writelane_b32 v149, s76, 1')
    a('v_writelane_b32 v149, s61, 2')
    a('v_writelane_b32 v149, s77, 3')
    a('v_writelane_b32 v148, s70, 2')
    a('v_writelane_b32 v148, s76, 3')
    a('s_mov_b64 exec, 0xf')
    a('ds_write_b128 v150, v[146:149] offset:16')
    a('s_mov_b64 exec, -1')
    for i in range(4):
        w = GL + 6 * i
        a(f'v_mov_b32_dpp v{w + 4}, v{w} wave_shl:1 row_mask:0xf bank_mask:0xf bound_ctrl:0')
        a(f'v_mov_b32_dpp v{w + 5}, v{w + 1} wave_shl:1 row_mask:0xf bank_mask:0xf bound_ctrl:0')
        if i < 3:
            a(f's_waitcnt vmcnt({LATER + 2 - i})')
            a(f'v_readlane_b32 s70, v{w + 6}, 0')
            a(f'v_readlane_b32 s71, v{w + 7}, 0')
            a(f'v_writelane_b32 v{w + 4}, s70, 63')
            a(f'v_writelane_b32 v{w + 5}, s71, 63')
        ta, tb, tc = 176 + 12 * i, 180 + 12 * i, 184 + 12 * i
        a(f'ds_write_b128 v160, v[{w + 2}:{w + 5}] offset:{32 + 1024 * i + 3 * GS}')
        for j in range(4):
            a(f'v_alignbit_b32 v{ta + j}, v{w + j + 1}, v{w + j}, 16')
        a(f'ds_write_b128 v160, v[{ta}:{ta + 3}] offset:{32 + 1024 * i + 0 * GS}')
        for j in range(4):
            a(f'v_alignbit_b32 v{tb + j}, v{w + j + 2}, v{w + j + 1}, 16')
        a(f'ds_write_b128 v160, v[{tb}:{tb + 3}] offset:{32 + 1024 * i + 2 * GS}')
        for j in range(4):
            a(f'v_mov_b32 v{tc + j}, v{w + j + 1}')
        a(f'ds_write_b128 v160, v[{tc}:{tc + 3}] offset:{32 + 1024 * i + 1 * GS}')
    lds_inc(20)
    a(f'v_add_u32 v239, {L_W}, v2')
    a('v_and_b32 v244, 1, v5')
    a('v_lshl_add_u32 v244, v244, 1, v11')
    a('v_lshlrev_b32 v244, 4, v244')
    a('s_lshl_b32 s60, s13, 6')
    a(f's_add_u32 s60, s60, {L_ST}')
    a('v_add_u32 v244, s60, v244')
    a('s_waitcnt lgkmcnt(0)')
    for p in range(4):
        a(f'v_mov_b32 v{YR[0] + 4 * p}, -1')
    a('v_lshlrev_b32 v201, 5, v5')
    a(f'v_add_u32 v201, {L_X}, v201')
    stamp('gdone')
    a('p0:')
    a(f's_waitcnt vmcnt({5 + XV})')
    for jj in range(2):
        unpack(WFp + 0 + jj, WFp + 2 + jj, SKR + 2 * jj)
        unpack(WFp + 4 + jj, WFp + 6 + jj, SKR + 2 * jj + 1)
    a(f's_waitcnt vmcnt({2 + XV})')
    stamp('kdata')
    for r in range(0, 8, 2):
        a(f'ds_read2_b32 v[{KR + r}:{KR + r + 1}], v92 offset0:{32 * r} offset1:{32 * r + 32}')
    a(f'ds_read2_b32 v[{KR + 8}:{KR + 9}], v93 offset0:0 offset1:32')
    a(f'ds_read_b32 v{KR + 10}, v93 offset:256')
    a(f's_waitcnt vmcnt({0 + XV})')
    for r in range(0, 8, 2):
        a(f'ds_read2_b32 v[{VR + r}:{VR + r + 1}], v94 offset0:{32 * r} offset1:{32 * r + 32}')
    for r in range(11):
        if r % 2 == 0:
            a(f's_waitcnt lgkmcnt({9 - r // 2})')
        unpack(KF + 2 * r, KF + 2 * r + 1, KR + r)
    for t in range(4):
        tap = 3 - t
        for r in range(8):
            if t == 0:
                pk('mul', O + 2 * r, KF + 2 * (r + t), WFp + 2 * tap)
            else:
                pk('fma', O + 2 * r, KF + 2 * (r + t), WFp + 2 * tap, O + 2 * r)
    a('s_waitcnt lgkmcnt(0)')
    for r in range(8):
        unpack(KF + 2 * r, KF + 2 * r + 1, VR + r)
    for r in range(8):
        pk('mul', O + 2 * r, O + 2 * r, KF + 2 * r)
    for jj in range(2):
        d = PKD + 2 + 4 * jj
        for m in range(4):
            a(f'v_cvt_pk_bf16_f32 v{d + m}, v{O + 2 * (7 - 2 * m) + jj}, v{O + 2 * (6 - 2 * m) + jj}')
        a(f'ds_write_b128 v8, v[{d}:{d + 3}] offset:{32 * jj}')
    a('s_waitcnt lgkmcnt(0)')
    if opt('hhold', 0):
        a('s_cmp_eq_u32 s14, 0')
        a('s_cbranch_scc1 hh_go')
        lds_spin('hh', 32, opt('hhold', 0), 3)
    a('ds_read_b128 v[16:19], v9')
    a(f'ds_read_b128 v[20:23], v9 offset:{8 * 144}')
    a('s_waitcnt lgkmcnt(1)')
    a(f'buffer_store_dwordx4 v[16:19], v6, {KVR}, s62 offen sc1')
    a('s_waitcnt lgkmcnt(0)')
    a(f'buffer_store_dwordx4 v[20:23], v6, {KVR}, s63 offen sc1')
    stamp('kvst')
    if opt('hipos', 0) == 8:
        lds_inc(32)
    UP = 120
    a('s_waitcnt vmcnt(0)')
    stamp('kvack')
    a('s_mov_b64 exec, 1')
    a(f'buffer_store_dword v13, v14, {WSR}, s10 offen')
    FL2 = opt('fl2', 1)
    if not FL2:
        a(f'buffer_store_dword v13, v14, {WSR}, s65 offen sc1')
    EX, EF = opt('ex', 0), opt('ef', 0)
    GW, XH = 64, 68

    def gu_base():
        a('s_and_b32 s76, s3, 15')
        a(f's_mul_i32 s77, s76, {64 * 7168}')
        a('s_lshr_b32 s60, s3, 4')
        a('s_lshl_b32 s60, s60, 10')
        a('s_add_u32 s77, s77, s60')
        a('s_lshl_b32 s60, s13, 8')
        a('s_add_u32 s77, s77, s60')
    steps = []
    for i in range(16):
        for m, sr in ((0, S_G), (1, S_U)):
            r = GW + 64 * m + 4 * i
            steps.append([f'buffer_load_dwordx4 v[{r}:{r + 3}], v252, s[{sr}:{sr + 3}], s77 offen nt'])
        steps[-1].append('s_add_u32 s77, s77, 7168')

    def x_load(i):
        a(f'buffer_load_dwordx4 v[{XH + 4 * i}:{XH + 4 * i + 3}], v2, s[{S_Q}:{S_Q + 3}], s{69 + (i >> 2)} offen offset:{1024 * (i & 3)} nt')
    if EX or EF:
        a('s_mov_b64 exec, -1')
        a('s_cmp_eq_u32 s14, 0')
        a('s_cbranch_scc1 early_done')
        gu_base()
        a('s_add_u32 s70, s69, 4096')
        lds_spin('eh', 32, 4, 3)
        a('s_bitcmp0_b32 s2, 0')
        a('s_cbranch_scc0 early_ffn')
        for i in range(EX):
            x_load(i)
        a('s_branch early_done')
        a('early_ffn:')
        a('s_cmp_lt_u32 s3, 112')
        a('s_cbranch_scc0 early_done')
        for k in range(EF):
            for l in steps[k]:
                a(l)
        a('early_done:')
    a('s_mov_b64 exec, 0xffff')
    a('s_mov_b32 s61, 0')
    a('fa2_again:')
    a(f'buffer_load_dword v246, v245, {WSR}, s11 offen sc1')
    a('s_add_u32 s61, s61, 1')
    a('s_waitcnt vmcnt(0)')
    a('v_cmp_ne_u32 vcc, s8, v246')
    a('s_cbranch_vccz fa_ok')
    a('s_mov_b64 exec, vcc')
    if opt('fa2sleep', 0):
        a(f's_sleep {opt("fa2sleep", 0)}')
    a(f's_cmp_lt_u32 s61, {DUAL}')
    a('s_cbranch_scc1 fa2_again')
    if FL2:
        a(f'buffer_store_dword v13, v14, {WSR}, s65 offen sc1')
    retry_loop('fa', [f'buffer_load_dword v246, v245, {WSR}, s64 offen sc1'], lambda: a('v_cmp_ne_u32 vcc, s8, v246'), sleep=opt('fasleep', 1))
    stamp('faok')
    for q in range(2):
        a(f'buffer_load_dwordx4 v[{UP + 4 * q}:{UP + 4 * q + 3}], v2, {KVR}, s78 offen offset:{1024 * q}{KVL}')
    if FL2:
        a('s_mov_b64 exec, 1')
        a(f'buffer_store_dword v13, v14, {WSR}, s65 offen sc1')
        a('s_mov_b64 exec, -1')
    a('s_cmp_eq_u32 s14, 0')
    a('s_cbranch_scc0 helper')

    ACC = 16
    FA_ = [48, 196]
    FB_ = [80, 112]

    def readsA(s, c):
        out = []
        for j in range(8):
            out.append(f'ds_read_b64 v[{s + 4 * j}:{s + 4 * j + 1}], v161 offset:{64 * (8 * j + c)}')
            out.append(f'ds_read_b64 v[{s + 4 * j + 2}:{s + 4 * j + 3}], v161 offset:{64 * (8 * j + c) + 8}')
        return out

    def readsB(s, c):
        return [f'ds_read_b128 v[{s + 4 * z}:{s + 4 * z + 3}], v162 offset:{64 * (56 - (8 * z - c))}' for z in range(8)]

    def y_fill():
        a(YB)
        for q in range(4):
            a(f'buffer_store_dwordx4 v[240:243], v238, {XBR}, s62 offen sc1')
            if q < 3:
                a('s_add_u32 s62, s62, 0x100000')

    if opt('hhold', 0) or EX or EF:
        lds_inc(32)
    lds_spin('g4', 20, 4, 153)
    for r in readsA(FA_[0], 0):
        a(r)
    for q in range(2):
        a(f's_waitcnt vmcnt({1 - q + FL2})')
        a(f'ds_write_b128 v165, v[{UP + 4 * q}:{UP + 4 * q + 3}] offset:{256 - 256 * q}')
    lds_inc(12)
    stamp('u0')
    if FILLBY == 1 and opt('fst', -1) < 0:
        y_fill()
    lds_spin('u4', 12, 4, 153)
    stamp('mf0')
    for r in readsB(FB_[0], 0)[:4]:
        a(r)

    def mfma(w, A, B, init=False):
        c = '0' if init else f'v[{ACC + 4 * w}:{ACC + 4 * w + 3}]'
        a(f'v_mfma_f32_16x16x32_bf16 v[{ACC + 4 * w}:{ACC + 4 * w + 3}], v[{A}:{A + 3}], v[{B}:{B + 3}], {c}')

    def ystage(w):
        E = 172 + 2 * (w & 3)
        return [f'v_cvt_pk_bf16_f32 v{E}, v{ACC + 4 * w}, v{ACC + 4 * w + 1}',
                f'v_cvt_pk_bf16_f32 v{E + 1}, v{ACC + 4 * w + 2}, v{ACC + 4 * w + 3}',
                f'ds_write_b64 v163, v[{E}:{E + 1}] offset:{512 * w}']

    gsetup = ['v_lshlrev_b32 v180, 2, v0', f'v_add_u32 v180, {L_YL}, v180', 'v_add_u32 v181, 0x2000, v180',
              YB, 's_add_u32 s63, s62, 0x100000', 's_add_u32 s64, s62, 0x200000', 's_add_u32 s65, s62, 0x300000',
              's_lshl_b32 s6, s12, 10', f's_add_u32 s6, s6, {WS_FB}',
              's_bitcmp0_b32 s2, 0', 's_cselect_b32 s66, s69, 0x40000000', 's_cselect_b32 s70, 0, 0x40000000', 's_cselect_b32 s71, s6, 0x40000000']
    WR2 = 152

    def gather(p0_, sregs, GR, GP):
        rd, out = [], []
        for p in range(2):
            g = GR + 4 * p
            for hf in range(2):
                rd.append(f'ds_read2st64_b32 v[{g + 2 * hf}:{g + 2 * hf + 1}], v{180 + hf} offset0:{4 * (p0_ + p)} offset1:{16 + 4 * (p0_ + p)}')
            out.append(f'buffer_store_dwordx4 v[{g}:{g + 3}], v238, {XBR}, s{sregs[p]} offen sc1')
        return rd, out

    fbload = f'buffer_load_dword v249, v248, {WSR}, s6 offen sc1'
    PY = YR[0]
    YM = 16

    GM = 48

    def y_setup(regs=True):
        for p in range(4):
            a(f's_mov_b64 s[{YM + 2 * p}:{YM + 2 * p + 1}], -1')
            if regs:
                a(f'v_mov_b32 v{PY + 4 * p}, -1')
        a(f's_xor_b32 s24, s3, {RSW}')
        a('s_lshl_b32 s24, s24, 15')
        for p in range(1, 4):
            a(f's_add_u32 s{24 + p}, s24, {8192 * p}')
        a('s_mov_b64 s[0:1], -1')

    def fb_check():
        lab = a.newlabel('fbk')
        a('s_cmp_eq_u32 s0, 0')
        a(f's_cbranch_scc1 {lab}')
        a('v_cmp_ne_u32 s[0:1], s8, v249')
        for p in range(4):
            a(f's_lshr_b32 s9, s0, {8 * p}')
            a(f'v_and_b32 v250, s9, v{VBIT}')
            a(f'v_cmp_eq_u32 s[{GM + 2 * p}:{GM + 2 * p + 1}], 0, v250')
        a(f'{lab}:')

    def y_issue():
        lab = a.newlabel('yf')
        a('s_mov_b32 exec_lo, s0')
        a('s_mov_b32 exec_hi, 0')
        a(f's_cbranch_execz {lab}')
        a(fbload)
        a(f'{lab}:')
        for p in range(4):
            lab = a.newlabel('yi')
            a(f's_and_b64 exec, s[{YM + 2 * p}:{YM + 2 * p + 1}], s[{GM + 2 * p}:{GM + 2 * p + 1}]')
            a(f's_cbranch_execz {lab}')
            a(f'buffer_load_dwordx4 v[{PY + 4 * p}:{PY + 4 * p + 3}], v251, {XBR}, s{24 + p} offen sc1')
            a(f'{lab}:')
        a('s_mov_b64 exec, -1')

    def y_check():
        a('s_waitcnt vmcnt(0)')
        fb_check()
        for p in range(4):
            a(f'v_max3_u32 v250, v{PY + 4 * p}, v{PY + 4 * p + 1}, v{PY + 4 * p + 2}')
            a(f'v_max_u32 v250, v250, v{PY + 4 * p + 3}')
            a(f'v_cmp_eq_u32 s[{YM + 2 * p}:{YM + 2 * p + 1}], -1, v250')
        a(f's_or_b64 s[28:29], s[{YM}:{YM + 1}], s[{YM + 2}:{YM + 3}]')
        a(f's_or_b64 s[30:31], s[{YM + 4}:{YM + 5}], s[{YM + 6}:{YM + 7}]')
        a('s_or_b64 s[28:29], s[28:29], s[30:31]')

    AC = [116, 122]
    ST = [128, 132]
    TY = 68

    def prep_a():
        lds_spin(a.newlabel('xr'), 12, 8, 3)
        RX, RW = 76, 92
        for r in range(2):
            for p in range(4):
                a(f'ds_read_b64 v[{RX + 8 * r + 2 * p}:{RX + 8 * r + 2 * p + 1}], v{VXA} offset:{512 * p + RS * r}')
        for p in range(4):
            a(f'ds_read_b64 v[{RW + 2 * p}:{RW + 2 * p + 1}], v{VWA} offset:{512 * p}')
        for i in range(0, 12, 2):
            a(f'v_mov_b64 v[{AC[0] + i}:{AC[0] + i + 1}], 0')
        a('s_mov_b32 s72, 0')
        for r in range(2):
            a(f's_waitcnt lgkmcnt({8 - 4 * r})')
            for i in range(8):
                unpack(XP[r] + 2 * i, XP[r] + 2 * i + 1, RX + 8 * r + i)
        a('s_waitcnt lgkmcnt(0)')
        for i in range(8):
            unpack(WF + 2 * i, WF + 2 * i + 1, RW + i)

    def prep_b():
        lds_spin(a.newlabel('xs'), 28, 4, 3)
        for r in range(2):
            a(f'ds_read_b128 v[{ST[r]}:{ST[r] + 3}], v{VSA} offset:{16 * r}')
        a(f'ds_read_b32 v3, v{VC} offset:{L_SW - L_CNT}')
        for r in range(2):
            a(f's_waitcnt lgkmcnt({2 - r})')
            for i in range(8):
                pk('fma', N[r] + 2 * i, XP[r] + 2 * i, ST[r] + 2, ST[r])
        a('s_waitcnt lgkmcnt(0)')
        a('v_readfirstlane_b32 s71, v3')
        stamp('lnx')

    def y_fold():
        for p in range(4):
            lab = a.newlabel('yd')
            a(f's_bitcmp1_b32 s72, {p}')
            a(f's_cbranch_scc1 {lab}')
            a(f's_cmp_eq_u64 s[{YM + 2 * p}:{YM + 2 * p + 1}], 0')
            a(f's_cbranch_scc0 {lab}')
            a(f's_bitset1_b32 s72, {p}')
            for i in range(4):
                unpack(TY + i, TY + 4 + i, PY + 4 * p + i)
            for i in range(4):
                e = XP[i >> 1] + 4 * p + 2 * (i & 1)
                pk('fma', e, TY + 2 * i, N[i >> 1] + 4 * p + 2 * (i & 1), e)
            for k in range(2):
                for r in range(2):
                    e = XP[r] + 4 * p + 2 * k
                    pk('add', AC[r], AC[r], e)
                    pk('fma', AC[r] + 2, e, e, AC[r] + 2)
                    pk('fma', AC[r] + 4, e, WF + 4 * p + 2 * k, AC[r] + 4)
            a(f'{lab}:')

    def spread(pairs, low_first=False):
        out, left = [], list(pairs)
        if low_first:
            left.sort(key=lambda q: q[0])

        def feasible(rest, prev):
            cnt = {}
            for q in rest:
                cnt[q[0]] = cnt.get(q[0], 0) + 1
            n = len(rest)
            return all(c <= (n + 1) // 2 - (1 if (w == prev and n % 2 == 1) else 0) for w, c in cnt.items())
        while left:
            recent = [q[0] for q in out[-2:]]
            pick = None
            for avoid in (recent, recent[-1:]):
                for q in left:
                    if q[0] in avoid:
                        continue
                    rest = list(left)
                    rest.remove(q)
                    if feasible(rest, q[0]):
                        pick = q
                        break
                if pick:
                    break
            assert pick
            out.append(pick)
            left.remove(pick)
        return out

    assert YLO and FILLBY == 1 and opt('fst', -1) < 0
    cnt = {'n': 0}
    mark = {}
    late_code = []

    def em(item):
        if isinstance(item, list):
            for q in item:
                em(q)
        elif isinstance(item, tuple):
            if item[0] == 'mark':
                mark[item[1]] = cnt['n']
            elif item[0] == 'wait':
                a(f's_waitcnt lgkmcnt({min(15, cnt["n"] - mark[item[1]])})')
            else:
                _, name, off, want = item
                a('v_readfirstlane_b32 s60, v164')
                a(f's_cmp_ge_u32 s60, {want}')
                a.raw(f'    s_cbranch_scc0 {name}_slow')
                a.raw(f'{name}_back:')
                late_code.append((name, off, want))
        else:
            a(item)
            if item.startswith('ds_'):
                cnt['n'] += 1

    def bufB(c):
        return FA_[(c >> 1) & 1] + 16 * (c & 1), FB_[(c >> 1) & 1] + 16 * (c & 1)

    def rdA(c):
        return readsA(bufB(c)[0], c)[:8]

    def rdB(c):
        return readsB(bufB(c)[1] - 16, c)[4:]

    def one_lane(*ins):
        return ['s_mov_b64 exec, 1'] + list(ins) + ['s_mov_b64 exec, -1']

    rlo, olo = gather(0, (62, 63), 184, 144)
    mark['s0'] = 0
    seen = set()
    prev = None
    for st in range(16):
        em(('wait', f's{st}'))
        stamp(f'st{st}')
        slots = {}

        def put(items, first, per):
            for k, it in enumerate(items):
                slots.setdefault(first + k // per, []).append(it)
        if st < 8:
            sa, sb = FA_[st & 1], FB_[st & 1]
            pairs = [(n + z, sa + 4 * n, sb + 4 * z) for n in range(8) for z in range(min(4, 8 - n))]
            if st == 0:
                pairs = [(z, 168, sb + 4 * z) for z in range(4)] + pairs
            order = spread(pairs, st == 7)
        else:
            c = st - 8
            sa, sb = bufB(c)
            byw = {w: [(w, sa + 4 * n, sb + 4 * (w - n - 4)) for n in range(w - 3)] for w in range(4, 8)}
            seq = [7, 4, 7, 5, 6, 5, 7, 6, 7, 6]
            if c == 0:
                for z in range(4, 8):
                    byw[z].append((z, 168, sb + 4 * (z - 4)))
                seq = [4, 7, 5, 6] + seq
            order = [byw[w].pop() for w in seq]
        if st < 7:
            nx = FA_[(st + 1) & 1], FB_[(st + 1) & 1]
            rd = readsB(nx[1], st + 1)[:4] + readsA(nx[0], st + 1)
            rd[-1] = [rd[-1], ('mark', f's{st + 1}')]
            put(rd, 0, 1)
        if st == 0:
            put(gsetup[:9], 20, 2)
            put([gsetup[9:]], 27, 1)
        if st == FLC:
            put([['s_waitcnt vmcnt(0)'] + one_lane(f'buffer_store_dword v13, v14, {WSR}, s7 offen sc1')], 22, 1)
        if st == 7:
            put([[f'ds_read_b32 v164, v{VC} offset:0', ('mark', 'uc')]] + rdA(0) + rdA(1), 0, 2)
            put([[('wait', 'uc'), ('check', 'uhi', 0, 4)]], 9, 1)
            b0, b1 = rdB(0), rdB(1)
            b0[-1] = [b0[-1], ('mark', 's8')]
            b1[-1] = [b1[-1], ('mark', 's9')]
            put(b0 + b1, 10, 2)
            put(ystage(0) + ystage(1) + ystage(2), 14, 1)
            put(ystage(3), 23, 1)
        if 8 <= st < 14:
            rd = rdB(st - 6) + rdA(st - 6)
            rd[-1] = [rd[-1], ('mark', f's{st + 2}')]
            put(rd[:4], 1, 2)
            put(rd[4:], 2 if st > 8 else 3, 1)
        YG = opt('yg', 10)
        if st == 8:
            put([one_lane(f'ds_add_u32 v{VC}, v{V1} offset:20')], 0, 1)
        if st == YG - 1:
            put([[f'ds_read_b32 v164, v{VC} offset:20', ('mark', 'yc')]], 4, 1)
        if st == YG:
            put([[('wait', 'yc'), ('check', 'ylo', 20, 8)]], 0, 1)
            rl = list(rlo)
            rl[-1] = [rl[-1], ('mark', 'yg')]
            put(rl, 3, 1)
        if st == YG + 1:
            put([[('wait', 'yg'), olo[0]], olo[1]], 2, 1)
        if st == FBC:
            put([f'ds_write_b32 v{VC}, v{V1} offset:24'], 0, 1)
        if st == opt('fbc2', 14):
            put([fbload.replace('s6 ', 's71 ')], 0, 1)
        assert max(slots, default=0) < len(order), (st, max(slots), len(order))
        for i, (w, A, B) in enumerate(order):
            assert w != prev
            prev = w
            mfma(w, A, B, w not in seen)
            seen.add(w)
            for it in slots.get(i, []):
                em(it)
            if opt('mslack', 0) and i % opt('mslack', 0) == opt('mslack', 0) - 1 and opt('ms0', 0) <= st < opt('ms1', 16):
                a(f's_nop {opt("mnop", 5)}')
    for w in (4, 5, 7, 6):
        for l in ystage(w):
            a(l)
    stamp('s1end')
    if opt('cprio', 1):
        a('s_setprio 2')
    lds_inc(8)
    lds_spin('c2', 8, 4, 166)
    if GXL and DWHO:
        a('s_and_b32 s60, s2, 1')
        a('s_cmp_lt_u32 s3, 112')
        a('s_cselect_b32 s60, s60, 0')
        a('s_cmp_eq_u32 s60, 0')
        a('s_cbranch_scc1 ib_go')
        lds_spin('ib', 28, 4, 166)
    (r0, o0), (r1, o1) = gather(0, (62, 63), 184, 196), gather(2, (64, 65), 164, 204)
    if YLO:
        tail = r1 + ['s_waitcnt lgkmcnt(2)', o1[0], 's_waitcnt lgkmcnt(0)', o1[1]]
    else:
        tail = r0 + r1 + ['s_waitcnt lgkmcnt(4)'] + o0 + ['s_waitcnt lgkmcnt(0)'] + o1
    for l in tail:
        a(l)
    stamp('yst')
    if opt('cprio', 1):
        a('s_setprio 0')
    lds_inc(8)
    a('s_bitcmp0_b32 s2, 0')
    a('s_cbranch_scc0 conv_ffn')
    a('s_waitcnt vmcnt(2)')
    y_setup()
    fb_check()
    YF = opt('yfirst', 0)
    if YF:
        a('s_cmp_lt_u32 s3, 64')
        a('s_cbranch_scc0 yf_skip')
    y_issue()
    a('yf_skip:')
    prep_a()
    prep_b()
    a('s_branch rows')
    for name, off, want in late_code:
        a(f'{name}_slow:')
        a('s_nop 7')
        lds_spin(name, off, want, 164)
        a(f's_branch {name}_back')

    a('helper:')
    for q in range(2):
        a(f's_waitcnt vmcnt({1 - q + FL2})')
        a(f'ds_write_b128 v165, v[{UP + 4 * q}:{UP + 4 * q + 3}] offset:{256 - 256 * q}')
    lds_inc(0)
    stamp('u0')
    if FILLBY == 0:
        lds_spin('uw', UWOFF, 4, 28)
        y_fill()

    def fb_publish():
        if FILLBY:
            return
        a('s_mov_b64 exec, 1')
        a(f'ds_add_rtn_u32 v12, v{VC}, v{V1} offset:4')
        a(f'ds_add_u32 v{VC}, v{V1} offset:8')
        a('s_waitcnt lgkmcnt(0)')
        a('v_cmp_eq_u32 vcc, 3, v12')
        a('v_cndmask_b32 v14, -16, v14, vcc')
        a(f'buffer_store_dword v13, v14, {WSR}, s7 offen sc1')
        a('s_mov_b64 exec, -1')
        stamp('fillB')
    if FILLBY:
        lds_spin('uw', UWOFF, 4, 28)
    a(f's_lshl_b32 s61, s3, {SH}')
    a('s_bitcmp0_b32 s2, 0')
    a('s_cbranch_scc0 helper_ffn')
    a(f's_add_u32 s62, s61, {WS_CAND}')
    a(f's_add_u32 s63, s61, {WS_PART}')
    a(f's_add_u32 s79, s61, {WS_GX}')
    DW = 156
    DSP = opt('dsp', 1)

    def d_base():
        if DSP:
            a('s_lshr_b32 s78, s3, 4')
            a('s_lshl_b32 s78, s78, 20')
            a('s_and_b32 s60, s3, 15')
            a('s_lshl_b32 s60, s60, 14')
            a('s_add_u32 s78, s78, s60')
        else:
            a('s_lshl_b32 s78, s3, 16')

    def d_list(DW):
        return [[f'buffer_load_dwordx2 v[{DW + 2 * r}:{DW + 2 * r + 1}], v253, s[{S_D}:{S_D + 3}], s78 offen offset:{(r & 1) * 2048} nt']
                + ([f's_add_u32 s78, s78, {4096 + (262144 - 16384 if DSP and r % 8 == 7 else 0)}'] if r & 1 else []) for r in range(32)]
    d_base()
    dl = d_list(DW)
    XH, WH = 68, 100
    stamp('xiss')
    a('s_add_u32 s70, s69, 4096')
    for i in range(EX, 8):
        x_load(i)
        if opt('xdepth', 0) and i >= opt('xdepth', 0) - 1:
            a(f's_waitcnt vmcnt({opt("xdepth", 0) - 1})')
    for i in range(2):
        a(f'buffer_load_dwordx4 v[{WH + 4 * i}:{WH + 4 * i + 3}], v2, s[{S_WR}:{S_WR + 3}], 0 offen offset:{1024 * i}')
    if not FILLBY:
        a('s_waitcnt vmcnt(10)')
        fb_publish()
    if opt('reuse', 0):
        assert not DWHO
        lds_spin('ru0', 0, 4, 3)
        lds_spin('ru1', 12, 4, 3)
    a(f'buffer_store_dwordx4 v[240:243], v237, {WSR}, s62 offen sc1')
    a(f'buffer_store_dwordx4 v[240:243], v237, {WSR}, s63 offen sc1')
    a(f'buffer_store_dwordx4 v[240:243], v237, {WSR}, s79 offen sc1')
    NL = 3 + (0 if FILLBY else 1)
    if GXL and not DWHO:
        a(f's_add_u32 s60, s79, {WS_GX2 - WS_GX}')
        a(f'buffer_store_dwordx4 v[240:243], v237, {WSR}, s60 offen')
        NL += 1
    a('s_mov_b32 s72, 0x3f803f80')
    a('s_mov_b32 s73, 0x3a800000')
    a('s_lshl_b32 s6, s12, 10')
    a(f's_add_u32 s6, s6, {WS_FB}')
    y_setup(False)
    XLATE = opt('xlate', 1)

    def x_to_lds(waits):
        for r in range(4):
            if waits:
                a(f's_waitcnt vmcnt({NL + 2 + 6 - 2 * r})')
            for hf in range(2):
                a(f'ds_write_b128 v{VRA}, v[{XH + 8 * r + 4 * hf}:{XH + 8 * r + 4 * hf + 3}] offset:{RS * r + 1024 * hf}')
        if waits:
            a(f's_waitcnt vmcnt({NL})')
        for hf in range(2):
            a(f'ds_write_b128 v239, v[{WH + 4 * hf}:{WH + 4 * hf + 3}] offset:{1024 * hf}')
        lds_inc(12)
    if not XLATE:
        lds_spin('cp0', 12, 4, 28)
        x_to_lds(True)
    elif opt('dafterx', 1):
        a(f's_waitcnt vmcnt({NL})')
    stamp('xarr')
    S1, S2, SW = 36, 40, 44

    def stats_a():
        for i in range(8):
            for r in range(4):
                x = XH + 8 * r + i
                a(f'v_dot2_f32_bf16 v{S1 + r}, v{x}, s72, {"0" if i == 0 else "v%d" % (S1 + r)}')
                a(f'v_dot2_f32_bf16 v{S2 + r}, v{x}, v{x}, {"0" if i == 0 else "v%d" % (S2 + r)}')
            a(f'v_dot2_f32_bf16 v{SW}, v{WH + i}, s72, {"0" if i == 0 else "v%d" % SW}')
    def stats_b():
        for b in (S1, S2):
            a(f'v_permlane32_swap_b32 v{b}, v{b + 1}')
            a(f'v_permlane32_swap_b32 v{b + 2}, v{b + 3}')
        for b in (S1, S2):
            a(f'v_add_f32 v{b}, v{b}, v{b + 1}')
            a(f'v_add_f32 v{b + 2}, v{b + 2}, v{b + 3}')
        for b in (S1, S2):
            a(f'v_permlane16_swap_b32 v{b}, v{b + 2}')
        for b in (S1, S2):
            a(f'v_add_f32 v{b}, v{b}, v{b + 2}')
        for sh in (1, 2, 4, 8):
            for v in (S1, S2, SW):
                a(f'v_add_f32_dpp v{v}, v{v}, v{v} row_shr:{sh} row_mask:0xf bank_mask:0xf bound_ctrl:0')
        a(f'v_add_f32_dpp v{SW}, v{SW}, v{SW} row_bcast:15 row_mask:0xa bank_mask:0xf')
        a(f'v_mul_f32 v{S1}, s73, v{S1}')
        a(f'v_add_f32_dpp v{SW}, v{SW}, v{SW} row_bcast:31 row_mask:0xc bank_mask:0xf')
        a(f'v_mul_f32 v{S1 + 1}, v{S1}, v{S1}')
        a(f'v_fma_f32 v{S2}, v{S2}, s73, -v{S1 + 1}')
        a(f'v_max_f32 v{S2}, 0, v{S2}')
        rnd(S1, S1)
        rnd(S2, S2)
        a(f'v_add_f32 v{S2}, 0x3727c5ac, v{S2}')
        rnd(S2, S2)
        a(f'v_sqrt_f32 v{S2}, v{S2}')
        rnd(S2, S2)
        a(f'v_rcp_f32 v50, v{S2}')
        a(f'v_rcp_f32 v51, v{S2}')
        a(f'v_mul_f32 v48, -v{S1}, v50')
        a(f'v_mul_f32 v49, -v{S1}, v50')
        a('s_mov_b32 exec_lo, 0x80008000')
        a('s_mov_b32 exec_hi, 0x80008000')
        a('ds_write_b128 v244, v[48:51]')
        a('s_mov_b32 exec_lo, 0')
        a('s_mov_b32 exec_hi, 0x80000000')
        a(f'ds_write_b32 v{VC}, v{SW} offset:{L_SW - L_CNT}')
        lds_inc(28)
    STMF = opt('stmf', 0)
    if STMF:
        if opt('hprio', 3):
            a(f's_setprio {opt("hprio", 3)}')
        stats_a()
        if STMF == 2:
            stats_b()
        a('s_setprio 0')
        stamp('stdone')
    lds_spin('late', 24, 1, 3, sleep=LSLEEP)
    a(fbload)
    if DYN:
        a('s_memrealtime s[60:61]')
        a('s_waitcnt lgkmcnt(0)')
        a('s_sub_u32 s60, s60, s4')
        a(f's_cmp_lt_u32 s60, {DYN}')
        a('s_cselect_b32 s5, 1, 0')
        a('s_cbranch_scc1 d_early')
        a('s_waitcnt vmcnt(0)')
        a('s_branch d_early_done')
        a('d_early:')
    for r in range(DEARLY):
        for l in dl[r]:
            a(l)
    stamp('dearly')
    assert opt('dafterx', 1)
    a('d_early_done:')
    stamp('fbarr')
    STE = opt('stearly', 2)
    lds_spin('mf1', 8, 4, 3)
    stamp('mf1')
    if opt('sprio', 1):
        a(f's_setprio {opt("sprio", 1)}')
    if XLATE:
        x_to_lds(False)
    if STE and not STMF:
        stats_a()
    if STE < 2:
        a(f's_waitcnt vmcnt({DEARLY})')
        fb_check()
        lds_spin('mf', 8, opt('mfcnt', 8), 3)
        y_issue()
    if not STE:
        stats_a()
    if STMF < 2:
        stats_b()
    stamp('pre')
    if opt('sprio', 1):
        a('s_setprio 0')
    if STE == 2:
        a(f's_waitcnt vmcnt({DEARLY})')
        fb_check()
        lds_spin('mf', 8, opt('mfcnt', 8), 3)
        if YF:
            a('s_cmp_lt_u32 s3, 64')
            a('s_cbranch_scc0 yf_skip2')
        y_issue()
        a('yf_skip2:')
    prep_a()
    prep_b()

    a('rows:')
    if YF > 1:
        a('s_cmp_lt_u32 s3, 64')
        a('s_cbranch_scc1 yf_skip3')
        a(f's_sleep {YF}')
        a('yf_skip3:')
    a('s_mov_b32 s61, 0')
    a('py_top:')
    y_check()
    a('s_cbranch_scc0 py_ok')
    a('s_add_u32 s61, s61, 1')
    a(f's_cmp_ge_u32 s61, {POLL_MAX}')
    a('s_cbranch_scc1 py_give')
    if YSLEEP:
        a(f's_sleep {YSLEEP}')
    y_issue()
    y_fold()
    a('s_branch py_top')
    a('py_give:')
    for p in range(4):
        a(f's_mov_b64 s[{YM + 2 * p}:{YM + 2 * p + 1}], 0')
    a('py_ok:')
    stamp('ypoll')
    y_fold()
    H = XP
    a('s_mov_b32 s73, 0x3a800000')
    Q = TY
    for r in range(2):
        for k in range(3):
            d = Q + k if r == 0 else Q + 4 + k
            a(f'v_add_f32 v{d}, v{AC[r] + 2 * k}, v{AC[r] + 2 * k + 1}')
    for k in range(3):
        a(f'v_permlane32_swap_b32 v{Q + k}, v{Q + 4 + k}')
    for k in range(3):
        a(f'v_add_f32 v{Q + k}, v{Q + k}, v{Q + 4 + k}')
    for k in range(3):
        a(f'v_add_f32_dpp v{Q + k}, v{Q + k}, v{Q + k} row_ror:8 row_mask:0xf bank_mask:0xf')
    a('s_mov_b32 exec_lo, 0x00ff00ff')
    a('s_mov_b32 exec_hi, 0x00ff00ff')
    a(f'ds_write_b128 v{VPW}, v[{Q}:{Q + 3}]')
    a('s_mov_b64 exec, -1')
    a('s_lshl_b32 s60, s3, 7')
    a(f's_add_u32 s60, s60, {WS_KEYS}')
    a('s_cmp_eq_u32 s12, 0')
    a('s_cselect_b32 s60, s60, 0x40000000')
    if opt('prio', 1):
        a('s_cbranch_scc0 no_prio')
        a('s_setprio 3')
        a('no_prio:')
    a('s_waitcnt lgkmcnt(0)')
    a('s_barrier')
    DMID = opt('dmid', 0)

    def down_loads(r0, r1):
        r1 = min(r1, 32)
        if r1 <= r0 or DWHO:
            return
        lab = a.newlabel('nodl')
        a('s_cmp_eq_u32 s14, 0')
        a(f's_cbranch_scc1 {lab}')
        for r in range(r0, r1):
            for l in dl[r]:
                a(l)
        a(f'{lab}:')
    DBAR = opt('dbar', 0)
    down_loads(DEARLY, DEARLY + DBAR)
    R = 76
    for i in range(4):
        a(f'ds_read_b128 v[{R + 4 * i}:{R + 4 * i + 3}], v{VPR} offset:{16 * i}')
    stamp('bar2')
    A = AC[0]
    a(f'v_mov_b32 v{A + 7}, s8')
    a(f'v_mov_b32 v{A + 5}, 0')
    a('s_waitcnt lgkmcnt(2)')
    pk('add', R, R, R + 4)
    a(f'v_add_f32 v{R + 2}, v{R + 2}, v{R + 6}')
    a('s_waitcnt lgkmcnt(0)')
    pk('add', R + 8, R + 8, R + 12)
    a(f'v_add_f32 v{R + 10}, v{R + 10}, v{R + 14}')
    pk('add', R, R, R + 8)
    a(f'v_add_f32 v{R + 2}, v{R + 2}, v{R + 10}')
    for sw in ('v_permlane32_swap_b32', 'v_permlane16_swap_b32'):
        for k in range(3):
            a(f'v_mov_b32 v{R + 4 + k}, v{R + k}')
        for k in range(3):
            a(f'{sw} v{R + k}, v{R + 4 + k}')
        pk('add', R, R, R + 4)
        a(f'v_add_f32 v{R + 2}, v{R + 2}, v{R + 6}')
    M, V = R + 8, R + 9
    a(f'v_mul_f32 v{R}, s73, v{R}')
    a(f'v_mul_f32 v{R + 3}, v{R}, v{R}')
    a(f'v_fma_f32 v{V}, v{R + 1}, s73, -v{R + 3}')
    rnd(M, R)
    a(f'v_max_f32 v{V}, 0, v{V}')
    rnd(V, V)
    a(f'v_fma_f32 v{R + 2}, -v{M}, s71, v{R + 2}')
    a(f'v_add_f32 v{V}, 0x3727c5ac, v{V}')
    rnd(V, V)
    a(f'v_sqrt_f32 v{V}, v{V}')
    rnd(V, V)
    a(f'v_rcp_f32 v{V}, v{V}')
    a(f'v_mul_f32 v{R + 2}, v{R + 2}, v{V}')
    rnd(R + 2, R + 2)
    a(f'v_ashrrev_i32 v{R + 3}, 31, v{R + 2}')
    a(f'v_and_b32 v{R + 3}, 0x7fff0000, v{R + 3}')
    a(f'v_xor_b32 v{R + 2}, 0x80000000, v{R + 2}')
    a(f'v_xor_b32 v{R + 2}, v{R + 2}, v{R + 3}')
    a(f'v_or_b32 v{A + 6}, v{R + 2}, v{VKL}')
    for sh in (1, 2, 4, 8):
        a(f'v_max_u32_dpp v{A + 6}, v{A + 6}, v{A + 6} row_ror:{sh} row_mask:0xf bank_mask:0xf')
    if opt('diag', 0):
        a('s_mov_b64 exec, 1')
        a(f'v_mov_b32 v{R + 4}, s80')
        a(f'v_mov_b32 v{R + 5}, s82')
        a(f'buffer_store_dwordx2 v[{R + 4}:{R + 5}], v{A + 5}, {WSR}, s60 offen offset:8 sc1')
    a('s_mov_b64 exec, 1')
    a(f'buffer_store_dwordx2 v[{A + 6}:{A + 7}], v{A + 5}, {WSR}, s60 offen sc1')
    a('s_mov_b64 exec, -1')
    stamp('key')
    if opt('prio', 1):
        a('s_setprio 0')
    a(f'v_readfirstlane_b32 s76, v{A + 6}')
    if not DYN:
        down_loads(DEARLY + DBAR, DEARLY + DMID)
    a(f'v_mov_b32 v{R + 4}, v{M}')
    a(f'v_mul_f32 v{M}, -v{M}, v{V}')
    HS = [R + 12, R + 16]
    a(f'v_mov_b32_dpp v{R + 11}, v{V} row_ror:8 row_mask:0xf bank_mask:0xf')
    a(f'v_mov_b32_dpp v{R + 10}, v{M} row_ror:8 row_mask:0xf bank_mask:0xf')
    a('s_mov_b32 vcc_lo, 0xff00ff00')
    a('s_mov_b32 vcc_hi, 0xff00ff00')
    for k in range(4):
        own, oth = M + (k >> 1), R + 10 + (k >> 1)
        a(f'v_cndmask_b32 v{HS[0] + k}, v{own}, v{oth}, vcc')
        a(f'v_cndmask_b32 v{HS[1] + k}, v{oth}, v{own}, vcc')
    a(f's_lshl_b32 s77, s3, {SH}')
    a(f's_add_u32 s77, s77, {WS_CAND}')
    a('s_not_b32 s64, s76')
    a('s_bfe_u32 s65, s64, 0x30001')
    a('s_mov_b32 s66, 0x01010101')
    a('s_lshl_b32 s66, s66, s65')
    a('s_mov_b32 s67, s66')
    OUTR = [124, 132]

    def cand_row(r):
        a('s_mov_b64 exec, s[66:67]')
        for i in range(8):
            pk('fma', N[0] + 2 * i, H[r] + 2 * i, HS[r] + 2, HS[r])
        for i in range(8):
            a(f'v_cvt_pk_bf16_f32 v{YR[0] + i}, v{N[0] + 2 * i}, v{N[0] + 2 * i + 1}')
        for p in range(4):
            a(f'buffer_store_dwordx2 v[{YR[0] + 2 * p}:{YR[0] + 2 * p + 1}], v{VG8}, {WSR}, s77 offen offset:{512 * p} sc1')
        for i in range(8):
            a(f'v_cvt_pk_bf16_f32 v{WF + i}, v{H[r] + 2 * i}, v{H[r] + 2 * i + 1}')

    a('s_bitcmp1_b32 s64, 0')
    a('s_cbranch_scc1 order10')
    cand_row(0)
    a('s_branch cand_done')
    a('order10:')
    cand_row(1)
    a('cand_done:')
    stamp('cand')
    for p in range(4):
        a(f'ds_write_b64 v{VG8}, v[{WF + 2 * p}:{WF + 2 * p + 1}] offset:{L_H + 512 * p}')
    a('s_mov_b64 exec, -1')
    assert not DYN
    D2 = DEARLY + DMID + opt('dmid2', 8)
    down_loads(DEARLY + DMID, D2)
    EXACT = opt('exact', 0)
    if EXACT == 2:
        down_loads(D2, 32)
        D2 = 32
        a(f'v_mov_b32_dpp v{R + 5}, v{R + 4} row_ror:8 row_mask:0xf bank_mask:0xf')
        a('s_mov_b32 vcc_lo, 0xff00ff00')
        a('s_mov_b32 vcc_hi, 0xff00ff00')
        for k in range(2):
            a(f'v_cndmask_b32 v{HS[0] + k}, v{R + 4}, v{R + 5}, vcc')
            a(f'v_cndmask_b32 v{HS[1] + k}, v{R + 5}, v{R + 4}, vcc')
    if not EXACT:
        for r in range(2):
            a(f'v_add_f32 v{HS[r] + 2}, 1.0, v{HS[r] + 2}')
            a(f'v_add_f32 v{HS[r] + 3}, 1.0, v{HS[r] + 3}')
    for r in range(2):
        if EXACT == 2:
            for i in range(16):
                rnd(H[r] + i, H[r] + i)
            for i in range(8):
                pk('add', N[0] + 2 * i, H[r] + 2 * i, HS[r], mods='neg_lo:[0,1] neg_hi:[0,1]')
            for i in range(16):
                rnd(N[0] + i, N[0] + i)
            for i in range(8):
                pk('mul', N[0] + 2 * i, N[0] + 2 * i, HS[r] + 2)
            for i in range(16):
                rnd(N[0] + i, N[0] + i)
            for i in range(8):
                pk('add', H[r] + 2 * i, H[r] + 2 * i, N[0] + 2 * i)
        elif EXACT:
            for i in range(16):
                rnd(H[r] + i, H[r] + i)
            for i in range(8):
                pk('fma', N[0] + 2 * i, H[r] + 2 * i, HS[r] + 2, HS[r])
            for i in range(16):
                rnd(N[0] + i, N[0] + i)
            for i in range(8):
                pk('add', H[r] + 2 * i, H[r] + 2 * i, N[0] + 2 * i)
        else:
            for i in range(8):
                pk('fma', H[r] + 2 * i, H[r] + 2 * i, HS[r] + 2, HS[r])
        for i in range(8):
            a(f'v_cvt_pk_bf16_f32 v{N[1] + 8 * r + i}, v{H[r] + 2 * i}, v{H[r] + 2 * i + 1}')
        for p in range(4):
            a(f'ds_write_b64 v{VXA}, v[{N[1] + 8 * r + 2 * p}:{N[1] + 8 * r + 2 * p + 1}] offset:{512 * p + RS * r}')
    lds_inc(28)
    a('s_cmp_eq_u32 s14, 0')
    a('s_cbranch_scc0 ffn2')
    a('s_and_b32 s64, s64, 15')
    a(f's_mul_i32 s60, s64, {RS}')
    a(f's_add_u32 s60, s60, {L_YT}')
    a('v_add_u32 v3, s60, v2')
    a(f's_xor_b32 s65, s3, {RSW}')
    a('s_lshl_b32 s65, s65, 4')
    a('s_add_u32 s64, s64, s65')
    a('s_lshl_b32 s65, s64, 11')
    lds_spin('o8', 28, 12, 68)
    a('s_cmp_eq_u32 s12, 0')
    a('s_cbranch_scc0 no_cand_h')
    for hf in range(2):
        a(f'ds_read_b128 v[{68 + 4 * hf}:{71 + 4 * hf}], v3 offset:{1024 * hf}')
    for hf in range(2):
        a(f'ds_read_b128 v[{WF + 4 * hf}:{WF + 4 * hf + 3}], v2 offset:{L_H + 1024 * hf}')
    for hf in range(2):
        a(f's_waitcnt lgkmcnt({3 - hf})')
        a(f'buffer_store_dwordx4 v[{68 + 4 * hf}:{71 + 4 * hf}], v2, {XBR}, s65 offen offset:{1024 * hf} sc1')
    a('s_waitcnt vmcnt(0) lgkmcnt(0)')
    a(f'buffer_store_dwordx4 v[{WF}:{WF + 3}], v2, {WSR}, s77 offen offset:2048 sc1')
    a(f'buffer_store_dwordx4 v[{WF + 4}:{WF + 7}], v2, {WSR}, s77 offen offset:3072 sc1')
    a('no_cand_h:')
    for i in range(8):
        a(f'ds_read_b128 v[{4 + 4 * i}:{7 + 4 * i}], v{VRA} offset:{RS * (i >> 1) + 1024 * (i & 1)}')
    OE, OM = opt('oearly', 0), opt('omid', 0)
    a('s_waitcnt lgkmcnt(0)')
    for r in range(4):
        if r == OE and OM and not DWHO:
            a('s_cmp_lt_u32 s3, 112')
            a('s_cbranch_scc0 dr_go')
            lds_spin('dr', 16, 4, 68)
        if r == OE + OM and not DWHO:
            a('s_cmp_lt_u32 s3, 112')
            a('s_cbranch_scc0 dp_go')
            lds_spin('dp', 16, 8, 68, sleep=2)
            if opt('osleep', 0):
                a(f's_sleep {opt("osleep", 0)}')
        a('s_cmp_eq_u32 s68, s64')
        a('s_cselect_b32 s60, 0x40000000, s69')
        for hf in range(2):
            i = 2 * r + hf
            a(f'buffer_store_dwordx4 v[{4 + 4 * i}:{7 + 4 * i}], v2, {XBR}, s60 offen offset:{1024 * hf}{"" if r < opt("oplain", 0) else " sc1"}')
        if r < 3:
            a('s_add_u32 s68, s68, 1')
            a('s_add_u32 s69, s69, 2048')
    a('s_branch main_fl')
    TT = 8

    def d_perm(DW, ps):
        for p in ps:
            for k in range(2):
                lo, hi = DW + 2 * (8 * (p >> 2) + (p & 3)) + k, DW + 2 * (8 * (p >> 2) + (p & 3) + 4) + k
                t = 48 + k
                a(f'v_perm_b32 v{t}, v{hi}, v{lo}, s74')
                a(f'v_perm_b32 v{hi}, v{hi}, v{lo}, s75')
                a(f'v_mov_b32 v{lo}, v{t}')

    def gx_loads():
        for q in range(4):
            a(f'buffer_load_dwordx4 v[{52 + 4 * q}:{52 + 4 * q + 3}], v2, {WSR}, s62 offen offset:{1024 * q} sc1')

    def ffn2(DW, issued):
        P = 52
        a('s_mov_b32 s61, 0')
        if issued:
            a('s_branch pg_chk')
        a('pg_again:')
        gx_loads()
        a('pg_chk:')
        a('s_waitcnt vmcnt(0)')
        sentinel_check(range(P, P + 16), P + 16)
        a('s_cbranch_vccz pg_ok')
        a('s_add_u32 s61, s61, 1')
        a(f's_cmp_ge_u32 s61, {POLL_MAX}')
        a('s_cbranch_scc1 pg_ok')
        a('s_mov_b64 exec, vcc')
        a(f's_cmp_lt_u32 s61, {GXL}')
        a('s_cselect_b32 s62, s63, s79')
        if opt('gxsleep', 1):
            a(f's_sleep {opt("gxsleep", 1)}')
        a('s_branch pg_again')
        a('pg_ok:')
        a('s_mov_b64 exec, -1')
        stamp('gxpoll')
        pk('add', P, P, P + 4)
        pk('add', P + 2, P + 2, P + 6)
        pk('add', P + 8, P + 8, P + 12)
        pk('add', P + 10, P + 10, P + 14)
        pk('add', P, P, P + 8)
        pk('add', P + 2, P + 2, P + 10)
        a(f'v_permlane32_swap_b32 v{P}, v{P + 2}')
        a(f'v_permlane32_swap_b32 v{P + 1}, v{P + 3}')
        pk('add', P, P, P + 2)
        a(f'v_permlane16_swap_b32 v{P}, v{P + 1}')
        a(f'v_add_f32 v{TT}, v{P}, v{P + 1}')
        rnd(TT, TT)
        a(f'v_mul_f32 v{TT + 2}, 0xbfb8aa3b, v{TT}')
        a(f'v_mov_b32_dpp v{TT + 3}, v{TT} row_ror:8 row_mask:0xf bank_mask:0xf')
        a(f'v_exp_f32 v{TT + 2}, v{TT + 2}')
        a(f'v_add_f32 v{TT + 2}, 1.0, v{TT + 2}')
        a(f'v_rcp_f32 v{TT + 2}, v{TT + 2}')
        a(f'v_mul_f32 v{TT}, v{TT}, v{TT + 2}')
        rnd(TT, TT)
        a(f'v_mul_f32 v{TT}, v{TT}, v{TT + 3}')
        a(f'v_mov_b32_dpp v{TT + 1}, v{TT} row_shr:1 row_mask:0xf bank_mask:0xf bound_ctrl:0')
        a(f'v_cvt_pk_bf16_f32 v{TT}, v{TT + 1}, v{TT}')
        for p in range(16):
            a(f'v_readlane_b32 s{S_K + p}, v{TT}, {16 * (p & 3) + 2 * (p >> 2) + 1}')
        AC2 = 24
        for p in range(16):
            for c in range(4):
                r = DW + 2 * (8 * (p >> 2) + (p & 3) + 4 * (c & 1)) + (c >> 1)
                h = AC2 + 4 * (p & 1) + c
                src2 = '0' if p < 2 else f'v{h}'
                a(f'v_dot2_f32_bf16 v{h}, v{r}, s{S_K + p}, {src2}')
        pk('add', AC2, AC2, AC2 + 4)
        pk('add', AC2 + 2, AC2 + 2, AC2 + 6)
        if opt('dry', 0) & 2:
            a('s_cmp_eq_u32 s73, 0')
            a('s_mov_b32 s73, 1')
            a('s_cbranch_scc1 f2_dry_back')
        a(f'buffer_store_dwordx4 v[{AC2}:{AC2 + 3}], v237, {WSR}, s77 offen sc1')
        stamp('pst')

    a('ffn2:')
    if DWHO:
        a('s_branch main_fl')
    else:
        a('s_cmp_lt_u32 s3, 112')
        a('s_cbranch_scc0 main_fl')
        for r in range(min(D2, 32), 32):
            for l in dl[r]:
                a(l)
        a(f's_lshl_b32 s77, s3, {SH}')
        a(f's_add_u32 s77, s77, {WS_PART}')
        a(f's_add_u32 s63, s79, {WS_GX2 - WS_GX}')
        a(f's_mov_b32 s62, s{63 if GXL else 79}')
        for aa in range(4):
            a(f's_waitcnt vmcnt({24 - 8 * aa})')
            if aa == 3:
                lds_inc(16)
                stamp('dready')
            if aa == 1 and opt('dry', 0) & 2:
                a('s_mov_b32 s73, 0')
                a('s_branch pg_ok')
                a('f2_dry_back:')
            if aa == 3:
                gx_loads()
            d_perm(DW, range(4 * aa, 4 * aa + 4))
        ffn2(DW, True)
        if opt('pack', 0):
            a('s_waitcnt vmcnt(0)')
        lds_inc(16)
        a('s_branch main_fl')

    a('helper_ffn:')
    a('s_cmp_lt_u32 s3, 112')
    a('s_cbranch_scc1 ffn_go')
    a('s_waitcnt vmcnt(0)')
    fb_publish()
    a('s_and_b32 s60, s3, 3')
    a('s_cbranch_scc1 main_fl')
    a('s_barrier')
    if opt('r7sleep', 14):
        a(f's_sleep {opt("r7sleep", 14)}')
    a('s_branch red_entry')
    a('ffn_go:')
    GW = 64
    if not (EX or EF):
        gu_base()
    a('s_lshr_b32 s78, s3, 4')
    a(f's_lshl_b32 s78, s78, {SH + 4}')
    a('s_lshl_b32 s60, s13, 5')
    a('s_add_u32 s78, s78, s60')
    a('s_lshl_b32 s60, s76, 8')
    a('s_add_u32 s78, s78, s60')
    a(f's_add_u32 s78, s78, {WS_GX}')
    a(f's_add_u32 s79, s78, {WS_GX2 - WS_GX}')
    if GXL and DWHO:
        a(f's_add_u32 s60, s61, {WS_GX2}')
        a(f'buffer_store_dwordx4 v[240:243], v237, {WSR}, s60 offen')
    assert DSP
    stamp('uw')
    FBK = opt('fbk', 2)
    for k, stp in enumerate(steps):
        if k < EF:
            continue
        if k == PAUSE:
            stamp('pause')
            lds_spin('late2', 24, 1, 28, sleep=LSLEEP)
            lds_spin('yw', 8, 8, 28)
            if opt('rsleep', 0):
                a(f's_sleep {opt("rsleep", 0)}')
        for l in stp:
            a(l)
        if k >= EF + DEPTH - 1 and k < PAUSE:
            a(f's_waitcnt vmcnt({DEPTH - 1})')
        if PAUSE <= k < PAUSE + opt('slow', 0):
            a(f's_waitcnt vmcnt({opt("depth2", 2) - 1})')
        if k == DEPTH - 1 and GXL and DWHO:
            lds_inc(28)
        if k == FBK - 1 and not FILLBY:
            a(f's_waitcnt vmcnt({FBK})')
            fb_publish()
    assert DEPTH <= PAUSE < 32
    if DWHO:
        lds_inc(16)
    for i2 in range(8):
        a(f's_waitcnt vmcnt({max(0, min(63, 32 - 4 * (i2 + 1)))})')
        for m in range(2):
            for k in range(4):
                lo, hi = GW + 64 * m + 8 * i2 + k, GW + 64 * m + 8 * i2 + 4 + k
                t = 32 + (k & 3)
                a(f'v_perm_b32 v{t}, v{hi}, v{lo}, s74')
                a(f'v_perm_b32 v{hi}, v{hi}, v{lo}, s75')
                a(f'v_mov_b32 v{lo}, v{t}')
    stamp('wready')
    KCONV = opt('kconv', 1)

    def fetch_token():
        a('v_lshlrev_b32 v6, 2, v1')
        a(f'v_add_u32 v7, {L_X}, v6')
        if opt('kdelay', 0):
            a(f's_sleep {opt("kdelay", 0)}')
        if not opt('spec', 1):
            key_poll(65)
            stamp('gkey')
            a('s_and_b32 s66, s65, 0xffff')
            a('s_sub_u32 s66, 2047, s66')
            a('s_lshr_b32 s66, s66, 4')
            a(f's_xor_b32 s66, s66, {RSW}')
            a(f's_lshl_b32 s66, s66, {SH}')
            a('s_lshl_b32 s60, s76, 7')
            a('s_add_u32 s66, s66, s60')
            a(f's_add_u32 s66, s66, {WS_CAND}')
            a('s_mov_b32 exec_hi, 0')
            retry_loop('px', [f'buffer_load_dword v8, v6, {WSR}, s66 offen sc1'], lambda: a('v_cmp_eq_u32 vcc, -1, v8'), sleep=1, mask='0xffffffff')
        else:
            a('v_lshlrev_b32 v4, 7, v1')
            a(f's_mov_b32 s64, {WS_KEYS + 8192}')
            a('s_lshl_b32 s63, s76, 7')
            a(f's_add_u32 s63, s63, {WS_CAND}')
            a(f's_and_b32 s62, s3, {opt("canmask", 63)}')
            a('s_lshl_b32 s62, s62, 7')
            a(f's_add_u32 s62, s62, {WS_KEYS + 4}')
            a('s_mov_b64 exec, 1')
            retry_loop('kc2', [f'buffer_load_dword v8, v4, {WSR}, s62 offen sc1'], lambda: a('v_cmp_ne_u32 vcc, s8, v8'), sleep=opt('kcsleep', 2))
            stamp('kcan')
            kl = [f'buffer_load_dwordx2 v[16:17], v4, {WSR}, {WS_KEYS} offen sc1', f'buffer_load_dwordx2 v[18:19], v4, {WSR}, s64 offen sc1']

            def cand_addr():
                a('s_not_b32 s66, s65')
                a('s_bfe_u32 s66, s66, 0x70004')
                a(f's_xor_b32 s66, s66, {RSW}')
                a(f's_lshl_b32 s66, s66, {SH}')
                a('s_add_u32 s66, s66, s63')
            for l in kl:
                a(l)
            a('s_mov_b32 s67, 0')
            a('s_mov_b32 s61, 0')
            a('v_mov_b32 v8, -1')
            a('ks_chk:')
            a('s_waitcnt vmcnt(0)')
            a('v_cmp_eq_u32 vcc, s8, v17')
            a('v_cmp_eq_u32 s[70:71], s8, v19')
            a('v_cndmask_b32 v12, 0, v16, vcc')
            a('v_cndmask_b32 v9, 0, v18, s[70:71]')
            a('s_nand_b64 s[70:71], s[70:71], vcc')
            a('v_max_u32 v12, v12, v9')
            a('s_cbranch_scc0 ks_all')
            a('s_add_u32 s61, s61, 1')
            a(f's_cmp_ge_u32 s61, {POLL_MAX}')
            a('s_cbranch_scc1 ks_all')
            a('s_mov_b64 exec, s[70:71]')
            if opt('kssleep', 0):
                a(f's_sleep {opt("kssleep", 0)}')
            for l in kl:
                a(l)
            a('s_mov_b64 exec, -1')
            wave_reduce('v_max_u32', 12)
            a('v_readlane_b32 s65, v12, 63')
            a('s_mov_b32 s67, s65')
            cand_addr()
            a('s_mov_b32 exec_hi, 0')
            a(f'buffer_load_dword v8, v6, {WSR}, s66 offen sc1')
            a('s_mov_b64 exec, -1')
            a('s_branch ks_chk')
            a('ks_all:')
            wave_reduce('v_max_u32', 12)
            a('v_readlane_b32 s65, v12, 63')
            stamp('gkey')
            cand_addr()
            a('s_mov_b32 exec_hi, 0')
            a('s_cmp_eq_u32 s65, s67')
            a('s_cbranch_scc1 px_chk')
            retry_loop('px', [f'buffer_load_dword v8, v6, {WSR}, s66 offen sc1'], lambda: a('v_cmp_eq_u32 vcc, -1, v8'), sleep=1, mask='0xffffffff')
        a('ds_write_b32 v7, v8')
        a('v_mov_b32 v9, s65')
        a(f'ds_write_b32 v{VC}, v9 offset:44')
        a('s_mov_b64 exec, -1')
        a('s_waitcnt lgkmcnt(0)')
    if not KCONV:
        a('s_cmp_eq_u32 s13, 0')
        a('s_cbranch_scc0 f2_bar')
        fetch_token()
    DRY = opt('dry', 0)
    if DRY & 1:
        a('s_mov_b32 s62, 0')
        a('s_branch f1_body')
    a('f2_bar:')
    a('s_barrier')
    a('f1_body:')
    XS, AC = 36, 44
    stamp('ffn0')
    a(f'ds_read_b128 v[{XS}:{XS + 3}], v201')
    a(f'ds_read_b128 v[{XS + 4}:{XS + 7}], v201 offset:16')
    for p in range(8):
        if p % 4 == 0:
            a(f's_waitcnt lgkmcnt({1 - p // 4})')
        for m in range(2):
            for c in range(8):
                r = GW + 64 * m + 8 * p + 4 * (c & 1) + (c >> 1)
                i = AC + 8 * m + c
                src2 = '0' if p == 0 else f'v{i}'
                a(f'v_dot2_f32_bf16 v{i}, v{r}, v{XS + p}, {src2}')
    for i in range(8):
        a(f'v_permlane32_swap_b32 v{AC + i}, v{AC + 8 + i}')
    for i in range(0, 8, 2):
        pk('add', AC + i, AC + i, AC + 8 + i)
    for i in range(4):
        a(f'v_permlane16_swap_b32 v{AC + i}, v{AC + 4 + i}')
    for i in range(0, 4, 2):
        pk('add', AC + i, AC + i, AC + 4 + i)
    if DRY & 1:
        a('s_cmp_eq_u32 s62, 0')
        a('s_mov_b32 s62, 1')
        a('s_cbranch_scc1 f2_bar')
    if GXL:
        a(f'buffer_store_dwordx4 v[{AC}:{AC + 3}], v247, {WSR}, s79 offen')
    a(f'buffer_store_dwordx4 v[{AC}:{AC + 3}], v247, {WSR}, s78 offen sc1')
    stamp('gxst')
    a('s_and_b32 s60, s3, 3')
    a('s_cbranch_scc0 red_entry')
    a('s_branch main_fl')

    a('conv_ffn:')
    a('s_cmp_lt_u32 s3, 112')
    a('s_cbranch_scc1 conv_tok')
    a('s_and_b32 s60, s3, 3')
    a('s_cbranch_scc1 main_fl')
    a('conv_tok:')
    if KCONV:
        assert not DWHO
        a('s_cmp_eq_u32 s12, 0')
        a('s_cbranch_scc0 main_fl')
        a('s_and_b32 s76, s3, 15')
        fetch_token()
        a('s_barrier')
    if DWHO:
        DW2 = 80
        lds_spin('gu', 16, 4, 8)
        d_base()
        for stp in d_list(DW2):
            for l in stp:
                a(l)
        a('v_lshlrev_b32 v237, 1, v253')
        a(f's_lshl_b32 s77, s3, {SH}')
        a(f's_add_u32 s79, s77, {WS_GX}')
        a(f's_add_u32 s77, s77, {WS_PART}')
        a(f's_add_u32 s63, s79, {WS_GX2 - WS_GX}')
        a(f's_mov_b32 s62, s{63 if GXL else 79}')
        for aa in range(4):
            a(f's_waitcnt vmcnt({24 - 8 * aa})')
            d_perm(DW2, range(4 * aa, 4 * aa + 4))
        stamp('dready')
        a('s_barrier')
        a('s_barrier')
        ffn2(DW2, False)
    a('s_branch main_fl')

    a('red_entry:')
    a('s_lshr_b32 s76, s3, 2')
    a('s_cmp_eq_u32 s13, 0')
    a('s_cbranch_scc0 red_wait')
    a(f'ds_read_b32 v8, v{VC} offset:44')
    a('s_waitcnt lgkmcnt(0)')
    a('v_readfirstlane_b32 s71, v8')
    a('s_and_b32 s72, s71, 0xffff')
    a('s_sub_u32 s72, 2047, s72')
    a('s_lshr_b32 s73, s72, 4')
    a(f's_xor_b32 s73, s73, {RSW}')
    a(f's_lshl_b32 s73, s73, {SH}')
    a('s_lshl_b32 s60, s76, 6')
    a('s_add_u32 s73, s73, s60')
    a(f's_add_u32 s73, s73, {WS_CAND}')
    a('s_lshl_b32 s72, s72, 11')
    a('s_add_u32 s72, s72, s60')
    a('v_and_b32 v6, 15, v0')
    a('v_lshlrev_b32 v6, 2, v6')
    a('s_cmp_eq_u32 s76, 1')
    a(f's_cselect_b32 s60, {WS_EPOCH}, 0x40000000')
    a('v_mov_b32 v49, s8')
    a('v_mov_b32 v50, 0')
    a('s_mov_b64 exec, 1')
    a(f'buffer_store_dword v49, v50, {WSR}, s60 offen')
    a('s_mov_b64 exec, -1')
    loads = [f'buffer_load_dword v{40 + p}, v6, {WSR}, s73 offen offset:{2048 * p} sc1' for p in range(2)]
    poll_loop('ph', loads, (40, 41), 42)
    a('s_and_b32 s60, s71, 0xffff0000')
    a('s_xor_b32 s61, s60, 0x80000000')
    a('s_xor_b32 s62, s60, 0xffff0000')
    a('s_cmp_lt_i32 s60, 0')
    a('s_cselect_b32 s60, s61, s62')
    a('v_mov_b32 v42, 0xbfb8aa3b')
    a('v_mul_f32 v42, s60, v42')
    a('v_exp_f32 v42, v42')
    a('v_add_f32 v42, 1.0, v42')
    a('v_rcp_f32 v42, v42')
    rnd(42, 42)
    unpack(44, 45, 40)
    unpack(46, 47, 41)
    a('red_wait:')
    a(f's_add_u32 s{S_G}, s{S_WS}, {WS_PART}')
    a(f's_addc_u32 s{S_G + 1}, s{S_WS + 1}, 0')
    a(f's_mov_b32 s{S_G + 2}, {112 << SH}')
    a(f's_mov_b32 s{S_G + 3}, 0x00020000')
    a('v_and_b32 v4, 7, v0')
    a('v_bfe_u32 v5, v0, 3, 5')
    a(f'v_lshlrev_b32 v5, {SH}, v5')
    a('v_lshl_add_u32 v5, v4, 4, v5')
    a('s_lshl_b32 s64, s76, 7')
    a(f's_add_u32 s65, s64, {32 << SH}')
    a(f's_add_u32 s66, s64, {64 << SH}')
    a(f's_add_u32 s67, s64, {96 << SH}')
    a('v_lshrrev_b32 v7, 4, v1')
    a('v_lshl_add_u32 v7, v4, 2, v7')
    a('v_lshlrev_b32 v7, 2, v7')
    a('s_lshl_b32 s60, s13, 7')
    a(f's_add_u32 s60, s60, {L_RED}')
    a('v_add_u32 v7, s60, v7')
    a('v_lshlrev_b32 v48, 3, v1')
    a(f'v_add_u32 v48, {L_RED}, v48')
    if opt('finsleep', 30):
        a(f's_sleep {opt("finsleep", 30)}')
    P = 8
    loads = [f'buffer_load_dwordx4 v[{P + 4 * r}:{P + 4 * r + 3}], v5, s[{S_G}:{S_G + 3}], s{64 + r} offen sc1' for r in range(4)]
    poll_loop('pp', loads, range(P, P + 16), 24, sleep=opt('ppsleep', 2))
    stamp('ppoll')
    pk('add', P, P, P + 4)
    pk('add', P + 2, P + 2, P + 6)
    pk('add', P + 8, P + 8, P + 12)
    pk('add', P + 10, P + 10, P + 14)
    pk('add', P, P, P + 8)
    pk('add', P + 2, P + 2, P + 10)
    a(f'v_permlane32_swap_b32 v{P}, v{P + 2}')
    a(f'v_permlane32_swap_b32 v{P + 1}, v{P + 3}')
    pk('add', P, P, P + 2)
    a(f'v_permlane16_swap_b32 v{P}, v{P + 1}')
    a(f'v_add_f32 v{P}, v{P}, v{P + 1}')
    a(f'v_add_f32_dpp v{P}, v{P}, v{P} row_ror:8 row_mask:0xf bank_mask:0xf')
    a(f'ds_write_b32 v7, v{P}')
    lds_inc(40)
    a('s_cmp_eq_u32 s13, 0')
    a('s_cbranch_scc0 main_fl')
    lds_spin('r3', 40, 4, 24, sleep=0)
    a('s_mov_b64 exec, 0xffff')
    for q in range(4):
        a(f'ds_read_b64 v[{P + 2 * q}:{P + 2 * q + 1}], v48 offset:{128 * q}')
    a('s_waitcnt lgkmcnt(0)')
    pk('add', P, P, P + 2)
    pk('add', P + 4, P + 4, P + 6)
    pk('add', P, P, P + 4)
    rnd(P, P)
    rnd(P + 1, P + 1)
    a(f'v_mul_f32 v{P}, v{P}, v42')
    a(f'v_mul_f32 v{P + 1}, v{P + 1}, v42')
    rnd(P, P)
    rnd(P + 1, P + 1)
    pk('add', P, P, 44)
    rnd(P, P)
    rnd(P + 1, P + 1)
    pk('add', P, P, 46)
    a(f'v_cvt_pk_bf16_f32 v{P}, v{P}, v{P + 1}')
    a(f'buffer_store_dword v{P}, v6, {XBR}, s72 offen')
    if opt('diag', 0):
        a('s_mov_b64 exec, -1')
        a('s_cmp_eq_u32 s76, 1')
        a('s_cbranch_scc0 main_done')
        a('v_lshlrev_b32 v4, 7, v1')
        a(f's_mov_b32 s64, {WS_KEYS + 8192}')
        a(f'buffer_load_dwordx2 v[8:9], v4, {WSR}, {WS_KEYS} offen offset:8 sc1')
        a(f'buffer_load_dwordx2 v[10:11], v4, {WSR}, s64 offen offset:8 sc1')
        a('s_memrealtime s[62:63]')
        a('s_waitcnt vmcnt(0) lgkmcnt(0)')
        for r in range(8, 12):
            a(f'v_sub_u32 v{r}, s62, v{r}')
        a('v_max_u32 v12, v8, v10')
        a('v_min_u32 v13, v8, v10')
        a('v_min_u32 v14, v9, v11')
        a('v_not_b32 v13, v13')
        a('v_not_b32 v14, v14')
        wave_reduce('v_max_u32', [12, 13, 14])
        a('v_readlane_b32 s64, v12, 63')
        a('v_readlane_b32 s65, v13, 63')
        a('v_readlane_b32 s66, v14, 63')
        a('s_not_b32 s65, s65')
        a('s_not_b32 s66, s66')
        d = opt('diag', 0)
        if d == 1:
            a('s_sub_u32 s64, s64, s65')
        if d == 3:
            a('s_sub_u32 s64, s64, s66')
        if d >= 10:
            x = d % 10
            a(f'v_readlane_b32 s65, v{(8 if x < 4 else 10) + (d >= 20)}, {16 * (x & 3) + 5}')
            a('s_sub_u32 s64, s64, s65')
        a(f's_mul_i32 s64, s64, {opt("diagk", 10)}')
        a('s_min_u32 s64, s64, 100000')
        a('diag_spin:')
        a('s_memrealtime s[66:67]')
        a('s_waitcnt lgkmcnt(0)')
        a('s_sub_u32 s66, s66, s62')
        a('s_cmp_lt_u32 s66, s64')
        a('s_cbranch_scc1 diag_spin')
        a('s_branch main_done')
    a('main_fl:')
    if opt('diag', 0):
        a('s_branch main_done')
    if opt('dbg', 0) == 999:
        a('s_waitcnt vmcnt(0) lgkmcnt(0)')
        stamp(7)
        a('s_mov_b64 s[96:97], s[100:101]')
        a('s_mov_b32 s98, 256')
        a('s_mov_b32 s99, 0x00020000')
        a('s_mov_b64 exec, 1')
        a('v_mov_b32 v1, 0')
        a('s_waitcnt lgkmcnt(0)')
        for i in range(8):
            a(f's_and_b32 s60, s{80 + 2 * i}, 0xffffff')
            a('s_xor_b32 s61, s60, 0xffffff')
            a(f's_cmp_eq_u32 s{80 + 2 * i}, 0')
            a('s_cselect_b32 s61, 0, s61')
            a('v_mov_b32 v2, s60')
            a('v_mov_b32 v3, s61')
            a(f'buffer_atomic_umax v2, v1, s[96:99], 0 offen offset:{4 * i} sc1')
            a(f'buffer_atomic_umax v3, v1, s[96:99], 0 offen offset:{32 + 4 * i} sc1')
    elif opt('dbg', 0):
        a('s_waitcnt vmcnt(0) lgkmcnt(0)')
        stamp(7)
        a('s_mov_b64 s[96:97], s[100:101]')
        a('s_mov_b32 s98, 256')
        a('s_mov_b32 s99, 0x00020000')
        a('s_lshl_b32 s60, s2, 3')
        a('s_add_u32 s60, s60, s12')
        a('s_mov_b32 s61, 0x40000000')
        a(f's_cmp_eq_u32 s60, {225 * 8}')
        a('s_cselect_b32 s61, 0, s61')
        a(f's_cmp_eq_u32 s60, {opt("dbg", 0) * 8 + opt("dbgw", 0)}')
        a('s_cselect_b32 s61, 32, s61')
        a('s_mov_b64 exec, 1')
        a('v_mov_b32 v1, 0')
        a('s_waitcnt lgkmcnt(0)')
        for i in range(8):
            a(f's_sub_u32 s60, s{80 + 2 * i}, s80')
            a(f's_cmp_eq_u32 s{80 + 2 * i}, 0')
            a('s_cselect_b32 s60, 0, s60')
            a('v_mov_b32 v2, s60')
            a(f'buffer_store_dword v2, v1, s[96:99], s61 offen offset:{4 * i}')
    else:
        stamp_flush(S_WS, 7, 0)
    a('main_done:')
    a('s_endpgm')
    return kernel_desc(KN, 256, 102 if STAMPS else 80)


launch = '; @launch grid=(256,1,1) block=(512,1,1) lds=%d\n' % MAIN_LDS
finish(launch, [k_main()])
```
